```python
import torch

def _softmax(x, axis=-1):
    return torch.softmax(x, dim=axis)
def _gelu(x):
    return torch.nn.functional.gelu(x, approximate="tanh")
def _silu(x):
    return torch.nn.functional.silu(x)
def _sigmoid(x):
    return torch.sigmoid(x)
def _layernorm(x, axis=-1, eps=1e-5):
    m = x.mean(dim=axis, keepdim=True)
    v = x.var(dim=axis, keepdim=True, unbiased=False)
    return (x - m) / torch.sqrt(v + eps)
def _scatter_add(tgt, idx, src, axis=0):
    return tgt.clone().index_add_(axis, idx, src)
def _segment_sum(src, seg, n):
    out = torch.zeros((n,) + src.shape[1:], dtype=src.dtype)
    return out.index_add_(0, seg, src)
def _pad(x, pw):
    flat = tuple(v for pair in reversed(pw) for v in pair)
    return torch.nn.functional.pad(x, flat)

kernel_name = 'gated_mix__softmax_full_mha__linear_kernel_hedgehog__prompt'

def setup_inputs():

    _w = (lambda a: (lambda t: t.to(torch.bfloat16) if t.is_floating_point() else t)(torch.as_tensor(a)))
    def _A_setup():
        B, S, D = 1, 2048, 1024
        return {
            "x": _w((lambda *s: torch.randn(*s, dtype=torch.bfloat16) * 0.05)(B, S, D)),
            "wqkv": _w((lambda *s: torch.randn(*s, dtype=torch.bfloat16) * 3.2)(D, 3 * D)),
            "wo": _w((lambda *s: torch.randn(*s, dtype=torch.bfloat16) * 0.1)(D, D)),
        }
    _A_in = _A_setup()

    def _B_setup():
        B, S, D, H = 1, 2048, 1024, 32
        Dh = D // H
        return {
            "x": _w((lambda *s: torch.randn(*s, dtype=torch.bfloat16) * 0.05)(B, S, D)),
            "wqkv": _w((lambda *s: torch.randn(*s, dtype=torch.bfloat16) * 3.2)(D, 3 * D)),
            "w_phi": _w((lambda *s: torch.randn(*s, dtype=torch.bfloat16) * 3.2)(H, Dh, Dh) * (Dh ** -0.5)),
            "wo": _w((lambda *s: torch.randn(*s, dtype=torch.bfloat16) * 1.6)(D, D)),
        }
    _B_in = _B_setup()

    return {
        "A_x": _A_in["x"],
        "A_wqkv": _A_in["wqkv"],
        "A_wo": _A_in["wo"],
        "B_x": _B_in["x"],
        "B_wqkv": _B_in["wqkv"],
        "B_w_phi": _B_in["w_phi"],
        "B_wo": _B_in["wo"],
        "gate_w": _w((lambda *s: torch.randn(*s, dtype=torch.bfloat16) * 0.4)(1024) * 16.0),
    }

def reference(A_x, A_wqkv, A_wo, B_x, B_wqkv, B_w_phi, B_wo, gate_w):
    def _A_ref(x, wqkv, wo):
        B, S, D = x.shape
        H = 32; Dh = D // H
        qkv = (lambda x, *d: x.permute(*d))((x @ wqkv).reshape(B, S, 3, H, Dh), 2, 0, 3, 1, 4)
        q, k, v = qkv[0], qkv[1], qkv[2]
        scale = Dh ** -0.5
        scores = torch.einsum("bhqd,bhkd->bhqk", q, k) * scale
        p = _softmax(scores, axis=-1)
        o = torch.einsum("bhqk,bhkd->bhqd", p, v)
        return (lambda x, *d: x.permute(*d))(o, 0, 2, 1, 3).reshape(B, S, D) @ wo

    def _B_ref(x, wqkv, w_phi, wo):
        B, S, D = x.shape
        H = 32; Dh = D // H
        qkv = (lambda x, *d: x.permute(*d))((x @ wqkv).reshape(B, S, 3, H, Dh), 2, 0, 3, 1, 4)
        q, k, v = qkv[0], qkv[1], qkv[2]
        pq = torch.einsum("bhsd,hdf->bhsf", q, w_phi)
        pk = torch.einsum("bhsd,hdf->bhsf", k, w_phi)
        phi_q = torch.concatenate([_softmax(pq, axis=-1), _softmax(-pq, axis=-1)], axis=-1)
        phi_k = torch.concatenate([_softmax(pk, axis=-1), _softmax(-pk, axis=-1)], axis=-1)
        kv = torch.einsum("bhsf,bhsd->bhfd", phi_k, v)
        z  = torch.einsum("bhsf->bhf", phi_k)
        num = torch.einsum("bhqf,bhfd->bhqd", phi_q, kv)
        den = torch.einsum("bhqf,bhf->bhq", phi_q, z)[..., None] + 1e-6
        o = num / den
        return (lambda x, *d: x.permute(*d))(o, 0, 2, 1, 3).reshape(B, S, D) @ wo

    x = A_x
    g = _sigmoid((x * gate_w).sum(-1, keepdims=True))
    a = _A_ref(x, A_wqkv, A_wo)
    b = _B_ref(x, B_wqkv, B_w_phi, B_wo)
    return g * a + (1 - g) * b
```

```python
class Asm:
    def __init__(self):
        self.lines = []
    def __call__(self, s=""):
        for l in s.split("\n"):
            l = l.strip()
            if l:
                self.emit(l)
    def emit(self, l):
        if l.endswith(":") or l.startswith("."):
            self.lines.append(l)
        else:
            self.lines.append("    " + l)
    def label(self, name):
        self.lines.append(name + ":")
    def comment(self, c):
        self.lines.append("    ; " + c)
    def extend(self, other):
        self.lines += other.lines if isinstance(other, Asm) else other
    def text(self):
        return "\n".join(self.lines) + "\n"

def vr(base, n=1):
    return f"v{base}" if n == 1 else f"v[{base}:{base + n - 1}]"
def ar(base, n=1):
    return f"a{base}" if n == 1 else f"a[{base}:{base + n - 1}]"
def sr(base, n=1):
    return f"s{base}" if n == 1 else f"s[{base}:{base + n - 1}]"

def interleave(mfmas, fillers, lead=0, per_gap=None):
    out = []
    by = {}
    for g, ins in fillers:
        by.setdefault(g, []).extend(ins)
    out += by.get(-1, [])
    for i, m in enumerate(mfmas):
        out.append(m)
        out += by.get(i, [])
    extra = [g for g in by if g >= len(mfmas)]
    assert not extra, extra
    return out

def srd(a, dst, base_lo, nbytes):
    a(f"s_mov_b32 s{dst}, s{base_lo}")
    a(f"s_and_b32 s{dst + 1}, s{base_lo + 1}, 0xffff")
    a(f"s_mov_b32 s{dst + 2}, {nbytes}")
    a(f"s_mov_b32 s{dst + 3}, 0x00020000")

def kernel_header(name):
    return f".globl {name}\n.p2align 8\n.type {name},@function\n{name}:\n"

def kernel_desc(name, vgpr, accum, sgpr=102):
    return (f".section .rodata,\"a\"\n.p2align 6\n.amdhsa_kernel {name}\n"
            f"  .amdhsa_next_free_vgpr {vgpr}\n  .amdhsa_next_free_sgpr {sgpr}\n  .amdhsa_accum_offset {accum}\n"
            f"  .amdhsa_group_segment_fixed_size 0\n  .amdhsa_kernarg_size 88\n  .amdhsa_user_sgpr_count 2\n"
            f"  .amdhsa_user_sgpr_kernarg_segment_ptr 1\n  .amdhsa_system_sgpr_workgroup_id_x 1\n.end_amdhsa_kernel\n.text\n")
```

```python
from asmlib import *

from layout import *

XRING, XST = 0, 32768
WRING, WSL = 98304, 12288
LDS_K1 = 163840

ACC = 64
def acc(sg, tt): return ACC + (sg * 4 + tt) * 16
def fX(p, tt): return p * 28 + tt * 4
def fW(p, sg): return p * 28 + 16 + sg * 4

V_XO, V_WO, V_XR, V_WR = 1, 9, 12, 16
S_X, S_W, S_WS = 8, 12, 16
S_BR, S_MT, S_NT, S_WV = 20, 21, 22, 23
S_SOX, S_SOW, S_XDST, S_WDST, S_XRD, S_XDL, S_WRD, S_WDL, S_CNT = 24, 25, 26, 27, 28, 29, 30, 31, 32
S_W8K, S_W3K = 33, 34
S_CWM, S_CXM = 54, 55

class K1:
    def __init__(self, name, dma=True, reads=True, barrier=True, prof=False, epi=True, store_mod="", prof_off=0):
        self.name, self.dma, self.reads, self.barrier, self.prof, self.epi = name, dma, reads, barrier, prof, epi
        self.store_mod = store_mod
        self.prof_off = prof_off

    def mfmas(self, p):
        out = []
        for tt in range(4):
            for sg in range(3):
                d = vr(acc(sg, tt), 16)
                x, w = ar(fX(p, tt), 4), ar(fW(p, sg), 4)
                a, b = (w, x) if sg < 2 else (x, w)
                out.append(f"v_mfma_f32_32x32x16_bf16 {d}, {a}, {b}, {d}")
        return out

    def rd(self, p, kk, k2):
        if not self.reads: return []
        r = []
        for sg in range(3):
            for q in range(2):
                r.append(f"ds_read_b64_tr_b16 {ar(fW(p, sg) + 2 * q, 2)}, v{V_WR} offset:{sg * 4096 + k2 * 2048 + q * 512}")
        xs = [f"ds_read_b128 {ar(fX(p, tt), 4)}, v{V_XR + kk} offset:{tt * 4096}" for tt in range(4)]
        return [xs[0], r[0], r[1], r[2], r[3], r[4], r[5], xs[1], xs[2], xs[3]]

    def dmaW(self):
        if not self.dma: return []
        g = [[f"s_add_u32 m0, s{S_WDST}, s{S_W3K}", f"s_add_u32 s{S_WDST}, s{S_WDST}, {WSL}",
              f"buffer_load_dwordx4 v{V_WO}, s[{S_W}:{S_W+3}], s{S_SOW} offen lds"],
             [f"s_cmp_eq_u32 s{S_WDST}, {WRING + 5 * WSL}",
              f"buffer_load_dwordx4 v{V_WO+1}, s[{S_W}:{S_W+3}], s{S_SOW} offen offset:1024 lds"],
             [f"s_cselect_b32 s{S_WDST}, {WRING}, s{S_WDST}",
              f"buffer_load_dwordx4 v{V_WO+2}, s[{S_W}:{S_W+3}], s{S_SOW} offen offset:2048 lds",
              f"s_add_u32 s{S_SOW}, s{S_SOW}, {32 * 6144}"]]
        return g

    def dmaX(self, half):
        if not self.dma: return []
        g = []
        for n in range(4):
            ins = []
            if n == 0:
                ins += [f"s_add_u32 m0, s{S_XDST}, s{S_W8K}"] + ([f"s_add_u32 m0, m0, 4096"] if half else []) + ["s_nop 0"]
            ins.append(f"buffer_load_dwordx4 v{V_XO + half * 4 + n}, s[{S_X}:{S_X+3}], s{S_SOX} offen offset:{n * 1024} lds")
            if n == 3 and half == 1:
                ins += [f"s_add_u32 s{S_SOX}, s{S_SOX}, 128", f"s_add_u32 s{S_XDST}, s{S_XDST}, {XST}",
                        f"s_cmp_eq_u32 s{S_XDST}, {3 * XST}", f"s_cselect_b32 s{S_XDST}, 0, s{S_XDST}"]
            g.append(ins)
        return g

    def step(self, a, p, reads, bar=None, dmas=(), extra=()):
        a("s_waitcnt lgkmcnt(0)")
        fill = []
        g0 = 0
        if bar is not None:
            ins = list(extra)
            if self.dma: ins.append(f"s_waitcnt vmcnt({bar})")
            if self.barrier: ins.append("s_barrier")
            fill.append((0, ins)); g0 = 1
        else:
            fill.append((5, list(extra)))
        for i, r in enumerate(reads):
            fill.append((g0 + i // 2, [r]))
        slots = [6, 8, 10, 11, 7, 9]
        for i, d in enumerate(dmas):
            fill.append((slots[i], d))
        for l in interleave(self.mfmas(p), fill):
            a(l)

    def wadv(self):
        return [f"s_add_u32 s{S_WRD}, s{S_WRD}, 1", f"s_cmp_eq_u32 s{S_WRD}, 5",
                f"s_cselect_b32 s{S_WDL}, s{S_CWM}, {WSL}", f"s_cselect_b32 s{S_WRD}, 0, s{S_WRD}",
                f"v_add_u32 v{V_WR}, s{S_WDL}, v{V_WR}"]

    def xdelta(self):
        return [f"s_add_u32 s{S_XRD}, s{S_XRD}, 1", f"s_cmp_eq_u32 s{S_XRD}, 3",
                f"s_cselect_b32 s{S_XDL}, s{S_CXM}, {XST}", f"s_cselect_b32 s{S_XRD}, 0, s{S_XRD}"]

    def xadv(self, kk):
        return [f"v_add_u32 v{V_XR + kk}, s{S_XDL}, v{V_XR + kk}"]

    def iteration(self, a, g_odd, g_even, w_odd, w_even, last=False):
        dW1 = self.dmaW() if g_odd else []
        dX1 = self.dmaX(1) if g_odd else []
        dW2 = self.dmaW() if g_even else []
        dX2 = self.dmaX(0) if g_even else []
        carry = self.carry
        self.step(a, 0, self.rd(1, 1, 1), dmas=carry, extra=self.xdelta() + self.xadv(0) + self.xadv(1))
        odd = dW1 + dX1
        self.step(a, 1, self.rd(0, 2, 0), bar=w_odd, dmas=odd[:4], extra=self.wadv())
        self.step(a, 0, self.rd(1, 3, 1), dmas=odd[4:], extra=self.xadv(2))
        if last:
            self.step(a, 1, [], extra=[])
            self.carry = []
            return
        even = dW2 + dX2
        self.step(a, 1, self.rd(0, 0, 0), bar=w_even, dmas=even[:4], extra=self.wadv() + self.xadv(3))
        self.carry = even[4:]

    def stamp(self, a, idx):
        if not self.prof: return
        a(f"s_memtime s[40:41]")
        a(f"s_memrealtime s[42:43]")
        a("s_waitcnt lgkmcnt(0)")
        for j, s in enumerate((40, 41, 42, 43)):
            a(f"v_writelane_b32 v60, s{s}, {idx * 4 + j}")

    def gen(self):
        a = Asm()
        n = self.name
        a("s_cmp_ge_u32 s2, 256")
        a(f"s_cbranch_scc1 {n}_end")
        self.stamp(a, 0)
        a("s_load_dwordx4 s[44:47], s[0:1], 0")
        a("s_load_dwordx4 s[48:51], s[0:1], 24")
        a("s_load_dwordx2 s[52:53], s[0:1], 80")
        a(f"s_and_b32 s3, s2, 7")
        a(f"s_lshr_b32 s4, s2, 3")
        a(f"s_lshr_b32 s{S_BR}, s3, 2")
        a(f"s_and_b32 s5, s3, 1")
        a(f"s_lshl_b32 s5, s5, 2")
        a(f"s_and_b32 s6, s4, 3")
        a(f"s_add_u32 s{S_MT}, s5, s6")
        a(f"s_bfe_u32 s5, s3, 0x10001")
        a(f"s_lshl_b32 s5, s5, 3")
        a(f"s_lshr_b32 s6, s4, 2")
        a(f"s_add_u32 s{S_NT}, s5, s6")
        a("v_lshrrev_b32 v17, 6, v0")
        a("v_and_b32 v18, 63, v0")
        a("s_nop 0")
        a(f"v_readfirstlane_b32 s{S_WV}, v17")
        a("s_waitcnt lgkmcnt(0)")
        a(f"s_cmp_eq_u32 s{S_BR}, 0")
        a("s_cselect_b32 s4, s44, s48")
        a("s_cselect_b32 s5, s45, s49")
        a("s_cselect_b32 s6, s46, s50")
        a("s_cselect_b32 s7, s47, s51")
        srd(a, S_X, 4, 2048 * 2048)
        srd(a, S_W, 6, 1024 * 6144)
        srd(a, S_WS, 52, 0x10000000)
        a(f"s_lshl_b32 s{S_W8K}, s{S_WV}, 13")
        a(f"s_mul_i32 s{S_W3K}, s{S_WV}, 3072")
        a("v_lshrrev_b32 v19, 3, v18")
        a("v_and_b32 v20, 7, v18")
        a("v_lshrrev_b32 v21, 4, v18")
        a(f"s_lshl_b32 s3, s{S_MT}, 8")
        a(f"s_lshl_b32 s4, s{S_WV}, 6")
        a("s_add_u32 s3, s3, s4")
        a("v_add_u32 v22, s3, v19")
        a("v_lshlrev_b32 v22, 11, v22")
        a("v_xor_b32 v23, v20, v21")
        a("v_xor_b32 v24, 4, v23")
        a("v_lshl_add_u32 v23, v23, 4, v22")
        a("v_lshl_add_u32 v24, v24, 4, v22")
        for nn in range(8):
            src = 23 if nn % 2 == 0 else 24
            a(f"v_add_u32 v{V_XO + nn}, {nn * 16384 - (nn & 3) * 1024}, v{src}")
        a("v_and_b32 v23, 1, v21")
        a("v_lshlrev_b32 v23, 2, v23")
        a("v_xor_b32 v23, v23, v20")
        a("v_lshlrev_b32 v23, 4, v23")
        a("s_mov_b32 s3, 6144")
        a("v_mul_lo_u32 v24, v19, s3")
        a("v_add_u32 v23, v23, v24")
        a(f"s_lshl_b32 s4, s{S_NT}, 7")
        a("v_add_u32 v23, s4, v23")
        for j in range(3):
            a(f"s_mul_i32 s3, s{S_WV}, 3")
            a(f"s_add_u32 s3, s3, {j}")
            a("s_and_b32 s4, s3, 3")
            a(f"s_mul_i32 s4, s4, {8 * 6144}")
            a("s_lshr_b32 s3, s3, 2")
            a("s_lshl_b32 s3, s3, 11")
            a("s_add_u32 s3, s3, s4")
            a(f"s_sub_u32 s3, s3, {j * 1024}")
            a(f"v_add_u32 v{V_WO + j}, s3, v23")
        a("v_and_b32 v19, 31, v18")
        a("v_lshlrev_b32 v19, 7, v19")
        a(f"s_and_b32 s3, s{S_WV}, 1")
        a("s_lshl_b32 s3, s3, 14")
        a("v_add_u32 v19, s3, v19")
        a("v_lshrrev_b32 v20, 5, v18")
        a("v_bfe_u32 v21, v18, 1, 3")
        for kk in range(4):
            a(f"v_add_u32 v22, {2 * kk}, v20")
            a("v_xor_b32 v22, v22, v21")
            a(f"v_lshl_add_u32 v{V_XR + kk}, v22, 4, v19")
        a("v_bfe_u32 v21, v18, 2, 2")
        a("v_lshl_add_u32 v22, v20, 3, v21")
        a("v_lshlrev_b32 v22, 7, v22")
        a("v_bfe_u32 v23, v18, 4, 1")
        a("v_lshlrev_b32 v23, 1, v23")
        a("v_bfe_u32 v24, v18, 1, 1")
        a("v_add_u32 v23, v23, v24")
        a(f"s_lshr_b32 s3, s{S_WV}, 1")
        a("s_lshl_b32 s3, s3, 2")
        a("v_add_u32 v23, s3, v23")
        a("v_lshrrev_b32 v24, 1, v21")
        a("v_lshlrev_b32 v24, 2, v24")
        a("v_xor_b32 v23, v23, v24")
        a("v_lshl_add_u32 v22, v23, 4, v22")
        a("v_and_b32 v24, 1, v18")
        a("v_lshl_add_u32 v22, v24, 3, v22")
        a(f"v_add_u32 v{V_WR}, {WRING}, v22")
        a(f"s_mov_b32 s{S_CWM}, {(-4 * WSL) & 0xffffffff}")
        a(f"s_mov_b32 s{S_CXM}, {(-2 * XST) & 0xffffffff}")
        a(f"s_mov_b32 s{S_SOX}, 0")
        a(f"s_mov_b32 s{S_SOW}, 0")
        a(f"s_mov_b32 s{S_XDST}, 0")
        a(f"s_mov_b32 s{S_WDST}, {WRING}")
        a(f"s_mov_b32 s{S_XRD}, 0")
        a(f"s_mov_b32 s{S_WRD}, 0")
        for u in range(4):
            for grp in self.dmaW() + self.dmaX(u & 1):
                for l in grp:
                    if l.startswith("buffer_load") : a("s_nop 0")
                    a(l)
        for r in range(ACC, 256):
            a(f"v_mov_b32 v{r}, 0")
        if self.dma: a("s_waitcnt vmcnt(14)")
        a("s_barrier")
        self.stamp(a, 1)
        for l in self.rd(0, 0, 0): a(l)
        g0 = self.dmaW() + self.dmaX(0)
        for grp in g0[:4]:
            for l in grp:
                if l.startswith("buffer_load"): a("s_nop 0")
                a(l)
        self.carry = g0[4:]
        a(f"s_mov_b32 s{S_CNT}, 13")
        a(".p2align 6")
        a.label(f"{n}_loop")
        c0 = list(self.carry)
        self.iteration(a, True, True, 21, 14)
        assert self.carry == c0
        a(f"s_sub_u32 s{S_CNT}, s{S_CNT}, 1")
        a(f"s_cmp_lg_u32 s{S_CNT}, 0")
        a(f"s_cbranch_scc1 {n}_loop")
        self.iteration(a, True, False, 21, 14)
        self.iteration(a, False, False, 14, 0)
        self.iteration(a, False, False, 0, 0, last=True)
        self.stamp(a, 2)
        if self.epi:
            self.epilogue(a)
        if self.prof:
            a("s_waitcnt vmcnt(0)")
            self.stamp(a, 3)
            a(f"s_lshl_b32 s3, s2, 2")
            a(f"s_add_u32 s3, s3, s{S_WV}")
            a("s_lshl_b32 s3, s3, 6")
            a(f"s_add_u32 s3, s3, {WS_PROF + self.prof_off}")
            a("v_mbcnt_lo_u32_b32 v61, -1, 0")
            a("v_mbcnt_hi_u32_b32 v61, -1, v61")
            a("v_lshlrev_b32 v62, 2, v61")
            a("v_cmp_gt_u32 vcc, 16, v61")
            a("s_and_saveexec_b64 s[44:45], vcc")
            a(f"buffer_store_dword v60, v62, s[{S_WS}:{S_WS+3}], s3 offen")
            a("s_waitcnt vmcnt(0)")
        a.label(f"{n}_end")
        a("s_endpgm")
        return kernel_header(n) + a.text() + kernel_desc(n, 256 + 56, 256)

    def epilogue(self, a):
        a("s_nop 15")
        a(f"s_cmp_eq_u32 s{S_BR}, 0")
        a(f"s_mov_b32 s37, {f32bits(LOG2E)}")
        a(f"s_cselect_b32 s36, {f32bits(LOG2E / 32 ** 0.5)}, s37")
        a(f"s_cselect_b32 s37, 1.0, s37")
        a(f"s_mul_i32 s3, s{S_BR}, {WS_QB - WS_QA}")
        a(f"s_lshl_b32 s4, s{S_NT}, 1")
        a(f"s_lshr_b32 s5, s{S_WV}, 1")
        a("s_add_u32 s4, s4, s5")
        a("s_lshl_b32 s4, s4, 17")
        a("s_add_u32 s3, s3, s4")
        a(f"s_lshl_b32 s4, s{S_MT}, 3")
        a(f"s_and_b32 s5, s{S_WV}, 1")
        a("s_lshl_b32 s5, s5, 2")
        a("s_add_u32 s4, s4, s5")
        a("s_lshl_b32 s4, s4, 11")
        a("s_add_u32 s3, s3, s4")
        a("v_and_b32 v17, 63, v0")
        a("v_lshlrev_b32 v17, 4, v17")
        a("v_add_u32 v17, s3, v17")
        for sg in range(3):
            a(f"s_mov_b32 s38, {sg * (4 << 20)}")
            for tt in range(4):
                b = acc(sg, tt)
                if sg < 2:
                    for r in range(16):
                        a(f"v_mul_f32 v{b + r}, s{36 + sg}, v{b + r}")
                t = 24 + 8 * ((sg * 4 + tt) & 3)
                for j in range(8):
                    a(f"v_cvt_pk_bf16_f32 v{t + j}, v{b + 2 * j}, v{b + 2 * j + 1}")
                a(f"buffer_store_dwordx4 {vr(t, 4)}, v17, s[{S_WS}:{S_WS+3}], s38 offen offset:{(tt & 1) * 2048} {self.store_mod}")
                a(f"buffer_store_dwordx4 {vr(t + 4, 4)}, v17, s[{S_WS}:{S_WS+3}], s38 offen offset:{(tt & 1) * 2048 + 1024} {self.store_mod}")
                if tt == 1:
                    a("s_add_u32 s38, s38, 4096")
```

```python
from asmlib import *
from layout import *
from k1 import (WS_QA, WS_KA, WS_VA, WS_QB, WS_PROF, LOG2E, XRING, XST, WRING, WSL, LDS_K1, f32bits,
                V_XO, V_WO, S_X, S_W, S_WS, S_BR, S_MT, S_NT, S_WV, S_SOX, S_SOW, S_XDST, S_WDST, S_XRD, S_XDL,
                S_WRD, S_WDL, S_CNT, S_W8K, S_W3K, S_CWM, S_CXM, K1)

ACC = 64
def acc(sg, ft, tk): return ACC + ((sg * 2 + ft) * 8 + tk) * 4
def fX(p, tk): return p * 56 + tk * 4
def fW(p, sg, ft): return p * 56 + 32 + (sg * 2 + ft) * 4
S_WP, S_GW = 60, 64
L_WP = 159744
V_XR, V_WR = 12, 14

class K1b(K1):
    def mfmas(self, p):
        out = []
        for tk in range(8):
            for sg in range(3):
                for ft in range(2):
                    d = vr(acc(sg, ft, tk), 4)
                    x, w = ar(fX(p, tk), 4), ar(fW(p, sg, ft), 4)
                    a, b = (w, x) if sg < 2 else (x, w)
                    out.append(f"v_mfma_f32_16x16x32_bf16 {d}, {a}, {b}, {d}")
        return out

    def rd(self, p, k2):
        if not self.reads: return []
        w = []
        for sg in range(3):
            for ft in range(2):
                for q in range(2):
                    w.append(f"ds_read_b64_tr_b16 {ar(fW(p, sg, ft) + 2 * q, 2)}, v{V_WR + ft} offset:{sg * 4096 + q * 512}")
        xs = [f"ds_read_b128 {ar(fX(p, tk), 4)}, v{V_XR + k2} offset:{tk * 2048}" for tk in range(8)]
        return [xs[0]] + w + xs[1:]

    def wadv(self):
        return [f"s_add_u32 s{S_WRD}, s{S_WRD}, 1", f"s_cmp_eq_u32 s{S_WRD}, 5",
                f"s_cselect_b32 s{S_WDL}, s{S_CWM}, {WSL}", f"s_cselect_b32 s{S_WRD}, 0, s{S_WRD}",
                f"v_add_u32 v{V_WR}, s{S_WDL}, v{V_WR}", f"v_add_u32 v{V_WR + 1}, s{S_WDL}, v{V_WR + 1}"]

    def xadv(self, k2):
        return [f"v_add_u32 v{V_XR + k2}, s{S_XDL}, v{V_XR + k2}"]

    def unit(self, a, p, reads, bar, dmas, pre=(), post=()):
        a("s_waitcnt lgkmcnt(0)")
        fill = []
        ins = list(pre)
        if bar is not None:
            if self.dma: ins.append(f"s_waitcnt vmcnt({bar})")
            if self.barrier: ins.append("s_barrier")
        fill.append((0, ins))
        for i, r in enumerate(reads):
            fill.append((1 + i, [r]))
        for i, d in enumerate(dmas):
            fill.append((22 + 3 * i, d))
        fill.append((46, list(post)))
        for l in interleave(self.mfmas(p), fill):
            a(l)

    def iteration(self, a, g_odd, g_even, w_odd, w_even, last=False):
        odd = (self.dmaW() + self.dmaX(1)) if g_odd else []
        even = (self.dmaW() + self.dmaX(0)) if g_even else []
        self.unit(a, 0, self.rd(1, 1), w_odd, odd, pre=self.wadv() + self.xdelta() + self.xadv(0), post=self.xadv(1))
        if last:
            self.unit(a, 1, [], None, [])
        else:
            self.unit(a, 1, self.rd(0, 0), w_even, even, pre=self.wadv())

    def addr_reads(self, a):
        a("v_and_b32 v19, 15, v18")
        a("v_lshlrev_b32 v19, 7, v19")
        a(f"s_and_b32 s3, s{S_WV}, 1")
        a("s_lshl_b32 s3, s3, 14")
        a("v_add_u32 v19, s3, v19")
        a("v_lshrrev_b32 v20, 4, v18")
        a("v_bfe_u32 v21, v18, 1, 3")
        for k2 in range(2):
            a(f"v_add_u32 v22, {4 * k2}, v20")
            a("v_xor_b32 v22, v22, v21")
            a(f"v_lshl_add_u32 v{V_XR + k2}, v22, 4, v19")
        a("v_bfe_u32 v21, v18, 2, 2")
        a("v_lshl_add_u32 v22, v20, 3, v21")
        a("v_lshlrev_b32 v22, 7, v22")
        a("v_and_b32 v24, 1, v18")
        a("v_lshl_add_u32 v22, v24, 3, v22")
        a("v_bfe_u32 v24, v18, 1, 1")
        a(f"s_lshr_b32 s3, s{S_WV}, 1")
        a("s_lshl_b32 s3, s3, 2")
        a("v_add_u32 v24, s3, v24")
        a("v_and_b32 v23, 2, v21")
        a("v_bfe_u32 v25, v18, 4, 1")
        a("v_lshl_or_b32 v23, v25, 2, v23")
        for ft in range(2):
            a(f"v_add_u32 v25, {2 * ft}, v24")
            a("v_xor_b32 v25, v25, v23")
            a("v_lshl_add_u32 v25, v25, 4, v22")
            a(f"v_add_u32 v{V_WR + ft}, {WRING}, v25")

    def gen(self):
        a = Asm()
        n = self.name
        a("s_cmp_ge_u32 s2, 256")
        a(f"s_cbranch_scc1 {n}_end")
        self.stamp(a, 0)
        a("s_load_dwordx4 s[44:47], s[0:1], 0")
        a("s_load_dwordx4 s[48:51], s[0:1], 24")
        a("s_load_dwordx2 s[52:53], s[0:1], 80")
        a("s_load_dwordx2 s[56:57], s[0:1], 40")
        a("s_load_dwordx2 s[58:59], s[0:1], 56")
        a(f"s_and_b32 s3, s2, 7")
        a(f"s_lshr_b32 s4, s2, 3")
        a(f"s_lshr_b32 s{S_BR}, s3, 2")
        a(f"s_and_b32 s5, s3, 1")
        a(f"s_lshl_b32 s5, s5, 2")
        a(f"s_and_b32 s6, s4, 3")
        a(f"s_add_u32 s{S_MT}, s5, s6")
        a(f"s_bfe_u32 s5, s3, 0x10001")
        a(f"s_lshl_b32 s5, s5, 3")
        a(f"s_lshr_b32 s6, s4, 2")
        a(f"s_add_u32 s{S_NT}, s5, s6")
        a("v_lshrrev_b32 v17, 6, v0")
        a("v_and_b32 v18, 63, v0")
        a("s_nop 0")
        a(f"v_readfirstlane_b32 s{S_WV}, v17")
        a("s_waitcnt lgkmcnt(0)")
        a(f"s_cmp_eq_u32 s{S_BR}, 0")
        a("s_mov_b32 s4, s44")
        a("s_mov_b32 s5, s45")
        a("s_cselect_b32 s6, s46, s50")
        a("s_cselect_b32 s7, s47, s51")
        srd(a, S_X, 4, 2048 * 2048)
        srd(a, S_W, 6, 1024 * 6144)
        srd(a, S_WS, 52, 0x10000000)
        srd(a, S_WP, 56, 65536)
        srd(a, S_GW, 58, 2048)
        self.gate_loads(a)
        a(f"s_lshl_b32 s{S_W8K}, s{S_WV}, 13")
        a(f"s_mul_i32 s{S_W3K}, s{S_WV}, 3072")
        a("v_lshrrev_b32 v19, 3, v18")
        a("v_and_b32 v20, 7, v18")
        a("v_lshrrev_b32 v21, 4, v18")
        a(f"s_lshl_b32 s3, s{S_MT}, 8")
        a(f"s_lshl_b32 s4, s{S_WV}, 6")
        a("s_add_u32 s3, s3, s4")
        a("v_add_u32 v22, s3, v19")
        a("v_lshlrev_b32 v22, 11, v22")
        a("v_xor_b32 v23, v20, v21")
        a("v_xor_b32 v24, 4, v23")
        a("v_lshl_add_u32 v23, v23, 4, v22")
        a("v_lshl_add_u32 v24, v24, 4, v22")
        for nn in range(8):
            src = 23 if nn % 2 == 0 else 24
            a(f"v_add_u32 v{V_XO + nn}, {nn * 16384 - (nn & 3) * 1024}, v{src}")
        a("v_and_b32 v23, 1, v21")
        a("v_lshlrev_b32 v23, 1, v23")
        a("v_xor_b32 v23, v23, v20")
        a("s_mov_b32 s3, 6144")
        a("v_mul_lo_u32 v24, v19, s3")
        a(f"s_lshl_b32 s4, s{S_NT}, 7")
        a("v_add_u32 v24, s4, v24")
        for j in range(3):
            a(f"s_mul_i32 s3, s{S_WV}, 3")
            a(f"s_add_u32 s3, s3, {j}")
            a("s_and_b32 s5, s3, 1")
            a("s_lshl_b32 s5, s5, 2")
            a("v_xor_b32 v25, s5, v23")
            a("v_lshl_add_u32 v25, v25, 4, v24")
            a("s_and_b32 s4, s3, 3")
            a(f"s_mul_i32 s4, s4, {8 * 6144}")
            a("s_lshr_b32 s3, s3, 2")
            a("s_lshl_b32 s3, s3, 11")
            a("s_add_u32 s3, s3, s4")
            a(f"s_sub_u32 s3, s3, {j * 1024}")
            a(f"v_add_u32 v{V_WO + j}, s3, v25")
        self.addr_reads(a)
        a(f"s_mov_b32 s{S_CWM}, {(-4 * WSL) & 0xffffffff}")
        a(f"s_mov_b32 s{S_CXM}, {(-2 * XST) & 0xffffffff}")
        a(f"s_mov_b32 s{S_SOX}, 0")
        a(f"s_mov_b32 s{S_SOW}, 0")
        a(f"s_mov_b32 s{S_XDST}, 0")
        a(f"s_mov_b32 s{S_WDST}, {WRING}")
        a(f"s_mov_b32 s{S_XRD}, 0")
        a(f"s_mov_b32 s{S_WRD}, 0")
        for u in range(4):
            for grp in self.dmaW() + self.dmaX(u & 1):
                for l in grp:
                    if l.startswith("buffer_load") : a("s_nop 0")
                    a(l)
        self.gate_compute(a)
        for r in range(ACC, 256):
            a(f"v_mov_b32 v{r}, 0")
        if self.dma: a("s_waitcnt vmcnt(14)")
        a("s_barrier")
        self.stamp(a, 1)
        for l in self.rd(0, 0): a(l)
        for grp in self.dmaW() + self.dmaX(0):
            for l in grp:
                if l.startswith("buffer_load"): a("s_nop 0")
                a(l)
        a(f"s_mov_b32 s{S_CNT}, 13")
        a(".p2align 6")
        a.label(f"{n}_loop")
        self.iteration(a, True, True, 21, 14)
        a(f"s_sub_u32 s{S_CNT}, s{S_CNT}, 1")
        a(f"s_cmp_lg_u32 s{S_CNT}, 0")
        a(f"s_cbranch_scc1 {n}_loop")
        self.iteration(a, True, False, 21, 14)
        self.iteration(a, False, False, 14, 0)
        self.iteration(a, False, False, 0, 0, last=True)
        self.stamp(a, 2)
        if self.epi:
            self.epilogue(a)
        if self.prof:
            a("s_waitcnt vmcnt(0)")
            self.stamp(a, 3)
            a(f"s_lshl_b32 s3, s2, 2")
            a(f"s_add_u32 s3, s3, s{S_WV}")
            a("s_lshl_b32 s3, s3, 6")
            a(f"s_add_u32 s3, s3, {WS_PROF + self.prof_off}")
            a("v_mbcnt_lo_u32_b32 v61, -1, 0")
            a("v_mbcnt_hi_u32_b32 v61, -1, v61")
            a("v_lshlrev_b32 v62, 2, v61")
            a("v_cmp_gt_u32 vcc, 16, v61")
            a("s_and_saveexec_b64 s[44:45], vcc")
            a(f"buffer_store_dword v60, v62, s[{S_WS}:{S_WS+3}], s3 offen")
            a("s_waitcnt vmcnt(0)")
        a.label(f"{n}_end")
        a("s_endpgm")
        return kernel_header(n) + a.text() + kernel_desc(n, 256 + 112, 256)

    def gate_loads(self, a):
        n = self.name
        a(f"s_lshl_b32 s3, s{S_NT}, 12")
        a(f"s_lshl_b32 s4, s{S_WV}, 10")
        a("s_add_u32 s3, s3, s4")
        a(f"s_add_u32 m0, s4, {L_WP}")
        a("v_lshlrev_b32 v19, 4, v18")
        a(f"buffer_load_dwordx4 v19, s[{S_WP}:{S_WP+3}], s3 offen lds")
        a(f"s_cmp_lg_u32 s{S_BR}, 0")
        a(f"s_cbranch_scc1 {n}_nogl")
        a("v_lshlrev_b32 v19, 5, v18")
        a(f"buffer_load_dwordx4 a[0:3], v19, s[{S_GW}:{S_GW+3}], 0 offen")
        a(f"buffer_load_dwordx4 a[4:7], v19, s[{S_GW}:{S_GW+3}], 0 offen offset:16")
        a(f"s_lshl_b32 s3, s{S_MT}, 8")
        a(f"s_lshl_b32 s4, s{S_NT}, 4")
        a("s_add_u32 s3, s3, s4")
        a(f"s_lshl_b32 s4, s{S_WV}, 2")
        a("s_add_u32 s69, s3, s4")
        a("s_lshl_b32 s3, s69, 11")
        for i in range(4):
            a(f"buffer_load_dwordx4 a[{8 + 8 * i}:{11 + 8 * i}], v19, s[{S_X}:{S_X+3}], s3 offen")
            a(f"buffer_load_dwordx4 a[{12 + 8 * i}:{15 + 8 * i}], v19, s[{S_X}:{S_X+3}], s3 offen offset:16")
            if i < 3: a("s_add_u32 s3, s3, 2048")
        a.label(f"{n}_nogl")

    def gate_compute(self, a):
        n = self.name
        a(f"s_cmp_lg_u32 s{S_BR}, 0")
        a(f"s_cbranch_scc1 {n}_nogc")
        a("s_waitcnt vmcnt(28)" if self.dma else "s_waitcnt vmcnt(0)")
        for r in range(40): a(f"v_accvgpr_read_b32 v{64 + r}, a{r}")
        for i in range(4): a(f"v_mov_b32 v{24 + i}, 0")
        for k in range(8):
            for i in range(4):
                a(f"v_dot2_f32_bf16 v{24 + i}, v{72 + 8 * i + k}, v{64 + k}, v{24 + i}")
        for ctl in ("quad_perm:[1,0,3,2]", "quad_perm:[2,3,0,1]", "row_half_mirror", "row_mirror"):
            a("s_nop 1")
            for i in range(4):
                a(f"v_add_f32_dpp v{24 + i}, v{24 + i}, v{24 + i} {ctl} row_mask:0xf bank_mask:0xf")
        for sw in ("v_permlane16_swap_b32", "v_permlane32_swap_b32"):
            for i in range(4): a(f"v_mov_b32 v{28 + i}, v{24 + i}")
            a("s_nop 1")
            for i in range(4): a(f"{sw} v{24 + i}, v{28 + i}")
            a("s_nop 1")
            for i in range(4): a(f"v_add_f32 v{24 + i}, v{24 + i}, v{28 + i}")
        a("v_and_b32 v28, 3, v18")
        for i in range(1, 4):
            a(f"v_cmp_eq_u32 vcc, {i}, v28")
            a("s_nop 1")
            a(f"v_cndmask_b32 v24, v24, v{24 + i}, vcc")
        a(f"v_mul_f32 v24, {f32bits(-LOG2E)}, v24")
        a("v_exp_f32 v24, v24")
        a("s_nop 0")
        a("v_add_f32 v24, 1.0, v24")
        a("v_rcp_f32 v24, v24")
        a("v_lshlrev_b32 v28, 2, v18")
        a("s_lshl_b32 s3, s69, 2")
        a(f"s_add_u32 s3, s3, {WS_G}")
        a("s_mov_b64 exec, 15")
        a(f"buffer_store_dword v24, v28, s[{S_WS}:{S_WS+3}], s3 offen {self.store_mod}")
        a("s_mov_b64 exec, -1")
        a.label(f"{n}_nogc")

    def epilogue(self, a):
        n = self.name
        a("s_nop 7")
        a(f"s_cmp_lg_u32 s{S_BR}, 0")
        a(f"s_cbranch_scc1 {n}_epiB")
        self.epilogue_A(a)
        a(f"s_branch {n}_epidone")
        a.label(f"{n}_epiB")
        self.epilogue_B(a)
        a.label(f"{n}_epidone")

    def tile_base(self, a, dst, shift_head, shift_tile, tiles_per_block, base):
        a(f"s_lshl_b32 s4, s{S_NT}, 1")
        a(f"s_lshr_b32 s5, s{S_WV}, 1")
        a("s_add_u32 s68, s4, s5")
        a(f"s_lshl_b32 s{dst}, s68, {shift_head}")
        a(f"s_mul_i32 s4, s{S_MT}, {tiles_per_block}")
        a(f"s_and_b32 s5, s{S_WV}, 1")
        a(f"s_mul_i32 s5, s5, {tiles_per_block // 2}")
        a("s_add_u32 s4, s4, s5")
        a(f"s_lshl_b32 s4, s4, {shift_tile}")
        a(f"s_add_u32 s{dst}, s{dst}, s4")
        if base: a(f"s_add_u32 s{dst}, s{dst}, {base}")

    def epilogue_A(self, a):
        c = f32bits(LOG2E / 32 ** 0.5)
        a(f"s_mov_b32 s36, {c}")
        a(f"s_mov_b32 s37, {c}")
        self.tile_base(a, 3, 17, 11, 8, 0)
        a("v_and_b32 v18, 63, v0")
        a("v_lshrrev_b32 v19, 4, v18")
        a("v_and_b32 v20, 15, v18")
        a("v_lshrrev_b32 v21, 1, v19")
        a("v_lshlrev_b32 v21, 10, v21")
        a("v_and_b32 v22, 1, v19")
        a("v_lshl_add_u32 v21, v22, 9, v21")
        a("v_add_u32 v21, s3, v21")
        a("v_lshl_add_u32 v17, v20, 4, v21")
        a("v_and_b32 v22, 7, v20")
        a("v_lshrrev_b32 v23, 3, v20")
        a("v_lshl_add_u32 v22, v23, 4, v22")
        a("v_lshl_add_u32 v16, v22, 4, v21")
        ws = f"s[{S_WS}:{S_WS+3}]"
        for sg in (1, 2, 0):
            if sg < 2:
                for tk in range(8):
                    t = 24 + 4 * tk
                    if sg == 0:
                        for ft in range(2):
                            b = acc(sg, ft, tk)
                            a(f"v_pk_mul_f32 {vr(b, 2)}, {vr(b, 2)}, s[36:37]")
                            a(f"v_pk_mul_f32 {vr(b + 2, 2)}, {vr(b + 2, 2)}, s[36:37]")
                    for ft in range(2):
                        b = acc(sg, ft, tk)
                        a(f"v_cvt_pk_bf16_f32 v{t + 2 * ft}, v{b}, v{b + 1}")
                        a(f"v_cvt_pk_bf16_f32 v{t + 2 * ft + 1}, v{b + 2}, v{b + 3}")
                    a(f"s_mov_b32 s38, {sg * (4 << 20) + (tk >> 1) * 2048}")
                    if sg == 0:
                        a(f"buffer_store_dwordx4 {vr(t, 4)}, v17, {ws}, s38 offen offset:{(tk & 1) * 256} {self.store_mod}")
                    else:
                        a(f"buffer_store_dwordx4 {vr(t, 4)}, v16, {ws}, s38 offen offset:{(tk & 1) * 128} {self.store_mod}")
            else:
                for T in range(4):
                    for ft in range(2):
                        t = 24 + 4 * (T * 2 + ft)
                        for k in range(2):
                            b = acc(2, ft, 2 * T + k)
                            a(f"v_cvt_pk_bf16_f32 v{t + 2 * k}, v{b}, v{b + 1}")
                            a(f"v_cvt_pk_bf16_f32 v{t + 2 * k + 1}, v{b + 2}, v{b + 3}")
                        a(f"s_mov_b32 s38, {2 * (4 << 20) + T * 2048}")
                        a(f"buffer_store_dwordx4 {vr(t, 4)}, v17, {ws}, s38 offen offset:{ft * 256} {self.store_mod}")

    def epilogue_B(self, a):
        ws = f"s[{S_WS}:{S_WS+3}]"
        c = f32bits(LOG2E)
        a(f"s_mov_b32 s36, {c}")
        a(f"s_mov_b32 s37, {c}")
        a("v_and_b32 v18, 63, v0")
        a("v_lshlrev_b32 v17, 4, v18")
        self.tile_base(a, 3, 17, 10, 16, WS_QB)
        for tk in range(8):
            t = 24 + 4 * (tk & 3)
            for ft in range(2):
                b = acc(0, ft, tk)
                a(f"v_pk_mul_f32 {vr(b, 2)}, {vr(b, 2)}, s[36:37]")
                a(f"v_pk_mul_f32 {vr(b + 2, 2)}, {vr(b + 2, 2)}, s[36:37]")
            for ft in range(2):
                b = acc(0, ft, tk)
                a(f"v_cvt_pk_bf16_f32 v{t + 2 * ft}, v{b}, v{b + 1}")
                a(f"v_cvt_pk_bf16_f32 v{t + 2 * ft + 1}, v{b + 2}, v{b + 3}")
            a(f"buffer_store_dwordx4 {vr(t, 4)}, v17, {ws}, s3 offen offset:{(tk & 3) * 1024} {self.store_mod}")
            if tk == 3: a("s_add_u32 s3, s3, 4096")
        KB, VB = 64, 96
        for tk in range(8):
            for ft in range(2):
                b = acc(1, ft, tk)
                a(f"v_pk_mul_f32 {vr(b, 2)}, {vr(b, 2)}, s[36:37]")
                a(f"v_pk_mul_f32 {vr(b + 2, 2)}, {vr(b + 2, 2)}, s[36:37]")
            for ft in range(2):
                b = acc(1, ft, tk)
                a(f"v_cvt_pk_bf16_f32 v{KB + 4 * tk + 2 * ft}, v{b}, v{b + 1}")
                a(f"v_cvt_pk_bf16_f32 v{KB + 4 * tk + 2 * ft + 1}, v{b + 2}, v{b + 3}")
        for dt in range(2):
            for T in range(4):
                for k in range(2):
                    b = acc(2, dt, 2 * T + k)
                    d = VB + (dt * 4 + T) * 4 + 2 * k
                    a(f"v_cvt_pk_bf16_f32 v{d}, v{b}, v{b + 1}")
                    a(f"v_cvt_pk_bf16_f32 v{d + 1}, v{b + 2}, v{b + 3}")
        a("v_lshrrev_b32 v19, 4, v18")
        a("v_bfe_u32 v20, v18, 2, 2")
        a("v_lshl_add_u32 v21, v19, 2, v20")
        a("v_lshlrev_b32 v21, 6, v21")
        a("v_and_b32 v20, 3, v18")
        a("v_lshl_add_u32 v21, v20, 3, v21")
        a(f"s_lshr_b32 s3, s{S_WV}, 1")
        a("s_lshl_b32 s3, s3, 11")
        a(f"s_add_u32 s3, s3, {L_WP}")
        a("v_add_u32 v21, s3, v21")
        for ft in range(2):
            for q in range(2):
                a(f"ds_read_b64_tr_b16 {vr(24 + 4 * ft + 2 * q, 2)}, v21 offset:{q * 1024 + ft * 32}")
        a("v_mov_b32 v32, 0x3f803f80")
        for r in range(1, 4): a(f"v_mov_b32 v{32 + r}, v32")
        RS = 136
        a(f"s_mul_i32 s3, s{S_WV}, {128 * RS}")
        a("v_and_b32 v20, 15, v18")
        a(f"v_mul_u32_u24 v22, {RS}, v20")
        a("v_lshl_add_u32 v22, v19, 3, v22")
        a("v_add_u32 v22, s3, v22")
        a("v_bfe_u32 v20, v18, 2, 2")
        a("v_lshl_add_u32 v23, v19, 2, v20")
        a(f"v_mul_u32_u24 v23, {RS}, v23")
        a("v_and_b32 v20, 3, v18")
        a("v_lshl_add_u32 v23, v20, 3, v23")
        a("v_add_u32 v23, s3, v23")
        a("s_waitcnt lgkmcnt(0)")
        a("s_barrier")
        PB, EPB, BP, BM, SS, MX, MN, TM = 128, 160, 192, 208, 224, 36, 40, 44
        T4 = range(4)
        for half in range(2):
            P = lambda t, i: PB + 8 * t + i
            EP = lambda t, i: EPB + 8 * t + i
            for t in T4:
                for ft in range(2):
                    a(f"v_mfma_f32_16x16x32_bf16 {vr(PB + 8 * t + 4 * ft, 4)}, {vr(24 + 4 * ft, 4)}, {vr(KB + 4 * (half * 4 + t), 4)}, 0")
            a("s_nop 7")
            for t in T4:
                a(f"v_max3_f32 v{MX+t}, v{P(t,0)}, v{P(t,1)}, v{P(t,2)}")
                a(f"v_min3_f32 v{MN+t}, v{P(t,0)}, v{P(t,1)}, v{P(t,2)}")
            for i in (3, 5):
                for t in T4:
                    a(f"v_max3_f32 v{MX+t}, v{MX+t}, v{P(t,i)}, v{P(t,i+1)}")
                    a(f"v_min3_f32 v{MN+t}, v{MN+t}, v{P(t,i)}, v{P(t,i+1)}")
            for t in T4:
                a(f"v_max_f32 v{MX+t}, v{MX+t}, v{P(t,7)}")
                a(f"v_min_f32 v{MN+t}, v{MN+t}, v{P(t,7)}")
            for t in T4: a(f"v_sub_f32 v{MN+t}, 0, v{MN+t}")
            for t in T4: a(f"v_permlane32_swap_b32 v{MX+t}, v{MN+t}") if t else (a("s_nop 1"), a(f"v_permlane32_swap_b32 v{MX+t}, v{MN+t}"))
            a("s_nop 1")
            for t in T4: a(f"v_max_f32 v{MX+t}, v{MX+t}, v{MN+t}")
            for t in T4: a(f"v_mov_b32 v{TM+t}, v{MX+t}")
            a("s_nop 1")
            for t in T4: a(f"v_permlane16_swap_b32 v{MX+t}, v{TM+t}")
            a("s_nop 1")
            for t in T4: a(f"v_max_f32 v{MX+t}, v{MX+t}, v{TM+t}")
            for t in T4: a(f"v_mov_b32 v{MN+t}, v{MX+t}")
            a("s_nop 1")
            for t in T4: a(f"v_permlane32_swap_b32 v{MX+t}, v{MN+t}")
            a("s_nop 1")
            for t in T4:
                for i in range(8):
                    a(f"v_sub_f32 v{EP(t,i)}, v{P(t,i)}, v{MX+t}")
                    a(f"v_add_f32 v{P(t,i)}, v{P(t,i)}, v{MN+t}")
            for t in T4:
                for i in range(8):
                    a(f"v_exp_f32 v{EP(t,i)}, v{EP(t,i)}")
                    a(f"v_exp_f32_e64 v{P(t,i)}, -v{P(t,i)}")
            a("s_nop 0")
            for t in T4:
                for k in range(4):
                    a(f"v_cvt_pk_bf16_f32 v{BP + 4*t + k}, v{EP(t,2*k)}, v{EP(t,2*k+1)}")
                    a(f"v_cvt_pk_bf16_f32 v{BM + 4*t + k}, v{P(t,2*k)}, v{P(t,2*k+1)}")
            a("s_nop 1")
            for t in T4:
                a(f"v_mfma_f32_16x16x32_bf16 {vr(SS + 8 * t, 4)}, {vr(32, 4)}, {vr(BP + 4 * t, 4)}, 0")
                a(f"v_mfma_f32_16x16x32_bf16 {vr(SS + 8 * t + 4, 4)}, {vr(32, 4)}, {vr(BM + 4 * t, 4)}, 0")
            a("s_nop 7")
            for t in T4:
                a(f"v_rcp_f32 v{SS + 8 * t}, v{SS + 8 * t}")
                a(f"v_rcp_f32 v{SS + 8 * t + 4}, v{SS + 8 * t + 4}")
            a("s_nop 0")
            for t in T4:
                for i in range(0, 8, 2):
                    a(f"v_pk_mul_f32 {vr(EP(t,i), 2)}, {vr(EP(t,i), 2)}, {vr(SS + 8 * t, 2)} op_sel_hi:[1,0]")
                    a(f"v_pk_mul_f32 {vr(P(t,i), 2)}, {vr(P(t,i), 2)}, {vr(SS + 8 * t + 4, 2)} op_sel_hi:[1,0]")
            for t in T4:
                for k in range(4):
                    a(f"v_cvt_pk_bf16_f32 v{BP + 4*t + k}, v{EP(t,2*k)}, v{EP(t,2*k+1)}")
                    a(f"v_cvt_pk_bf16_f32 v{BM + 4*t + k}, v{P(t,2*k)}, v{P(t,2*k+1)}")
            for t in T4:
                row = (half * 4 + t) * 16 * RS
                for ft in range(2):
                    a(f"ds_write_b64 v22, {vr(BP + 4 * t + 2 * ft, 2)} offset:{row + ft * 32}")
                    a(f"ds_write_b64 v22, {vr(BM + 4 * t + 2 * ft, 2)} offset:{row + 64 + ft * 32}")
        a("s_waitcnt lgkmcnt(0)")
        AF, KV = 128, 192
        for sf in range(4):
            for T in range(4):
                for q in range(2):
                    a(f"ds_read_b64_tr_b16 {vr(AF + (sf * 4 + T) * 4 + 2 * q, 2)}, v23 offset:{(32 * T + 16 * q) * RS + sf * 32}")
        for sf in range(4):
            a(f"s_waitcnt lgkmcnt({min(15, (3 - sf) * 8)})")
            for T in range(4):
                A = vr(AF + (sf * 4 + T) * 4, 4)
                for dt in range(3):
                    d = vr(KV + (sf * 3 + dt) * 4, 4)
                    B = vr(VB + (dt * 4 + T) * 4, 4) if dt < 2 else vr(32, 4)
                    a(f"v_mfma_f32_16x16x32_bf16 {d}, {A}, {B}, {d if T else 0}")
        XB = 4 * 128 * RS
        a(f"s_mul_i32 s3, s{S_WV}, 6144")
        a(f"s_add_u32 s3, s3, {XB}")
        a("v_add_u32 v20, s3, v17")
        a(f"s_xor_b32 s4, s{S_WV}, 1")
        a(f"s_mul_i32 s4, s4, 6144")
        a(f"s_add_u32 s4, s4, {XB}")
        a("v_add_u32 v21, s4, v17")
        a(f"s_and_b32 s5, s{S_WV}, 1")
        a("s_cmp_eq_u32 s5, 0")
        a("s_nop 7")
        a(f"s_cbranch_scc1 {self.name}_keepP")
        for i in range(24): a(f"v_mov_b32 v{64 + i}, v{KV + i}")
        for i in range(24): a(f"v_mov_b32 v{KV + i}, v{KV + 24 + i}")
        a(f"s_branch {self.name}_kept")
        a.label(f"{self.name}_keepP")
        for i in range(24): a(f"v_mov_b32 v{64 + i}, v{KV + 24 + i}")
        a.label(f"{self.name}_kept")
        for k in range(6): a(f"ds_write_b128 v20, {vr(64 + 4 * k, 4)} offset:{k * 1024}")
        a("s_waitcnt lgkmcnt(0)")
        a("s_barrier")
        for k in range(6): a(f"ds_read_b128 {vr(64 + 4 * k, 4)}, v21 offset:{k * 1024}")
        a("s_lshl_b32 s3, s68, 3")
        a(f"s_add_u32 s3, s3, s{S_MT}")
        a("s_lshl_b32 s3, s3, 14")
        a(f"s_add_u32 s3, s3, {WS_KVP}")
        a("s_lshl_b32 s4, s5, 12")
        a("s_add_u32 s4, s4, s3")
        a("s_lshl_b32 s6, s5, 7")
        a("s_add_u32 s6, s6, s3")
        a("s_add_u32 s6, s6, 8192")
        a("v_lshlrev_b32 v19, 4, v19")
        a("s_waitcnt lgkmcnt(0)")
        for i in range(0, 24, 2):
            a(f"v_pk_add_f32 {vr(KV + i, 2)}, {vr(KV + i, 2)}, {vr(64 + i, 2)}")
        for ft in range(2):
            for dt in range(2):
                a(f"buffer_store_dwordx4 {vr(KV + (ft * 3 + dt) * 4, 4)}, v17, {ws}, s4 offen offset:{(ft * 2 + dt) * 1024} {self.store_mod}")
            a(f"buffer_store_dwordx4 {vr(KV + (ft * 3 + 2) * 4, 4)}, v19, {ws}, s6 offen offset:{ft * 64} {self.store_mod}")
```

```python
from asmlib import *
from layout import *

MARGIN = 90.0
TPS, TPW = 8, 4
STG = TPS * 4096
LDS_MISC = 2 * STG
L_KV, L_Z, L_WP, L_VOTE = 0, 4096, 6144, 8192
LDS_K2 = LDS_MISC + 8192 + 64

V_LANE16, V_T0, V_T1, V_T2, V_T3, V_G, V_RD = 1, 2, 3, 4, 5, 6, 7
VQ, VC, VS, VP, VKF, VVF, VO, VL, VONE = 8, 24, 56, 88, 96, 112, 128, 160, 168
S_WS, S_K, S_V = 8, 12, 16
S_H, S_QB, S_WV, S_SOFF, S_CNT, S_MODE, S_WOFF, S_QG, S_KH = 20, 21, 22, 23, 24, 25, 26, 27, 32

class K2c:
    def __init__(self, name, prof=False, store_mod="nt", force_fallback=False, margin=MARGIN, sched=1, bapply=True, prio=0, diag=()):
        self.name, self.prof, self.store_mod = name, prof, store_mod
        self.force_fallback, self.margin, self.sched, self.bapply, self.prio = force_fallback, margin, sched, bapply, prio
        self.diag = set(diag)

    def stamp(self, a, idx):
        if not self.prof: return
        a("s_memtime s[40:41]")
        a("s_memrealtime s[42:43]")
        a("s_waitcnt lgkmcnt(0)")
        for j, s in enumerate((40, 41, 42, 43)):
            a(f"v_writelane_b32 v250, s{s}, {idx * 4 + j}")

    def dma_piece(self, slot, i):
        kv, n = i >> 1, i & 1
        srd_ = S_K if kv == 0 else S_V
        ins = []
        if n == 0:
            ins += [f"s_add_u32 m0, s{S_WOFF}, {slot * STG + kv * (STG // 2)}", "s_nop 0"]
        ins.append(f"buffer_load_dwordx4 v{V_LANE16}, s[{srd_}:{srd_+3}], s{S_SOFF} offen offset:{n * 1024} lds")
        if i == 3:
            ins.append(f"s_add_u32 s{S_SOFF}, s{S_SOFF}, {STG // 2}")
        return ins
    def dma_stage(self, slot):
        return [l for i in range(4) for l in self.dma_piece(slot, i)]

    @staticmethod
    def koff(j): return (j // TPW) * STG + (j % TPW) * 2048
    def rdK(self, j):
        b = VKF + 8 * (j & 1); j %= 2 * TPW
        return [f"ds_read_b128 {vr(b + 4 * st, 4)}, v{V_RD} offset:{self.koff(j) + st * 1024}" for st in range(2)]
    def rdV(self, j):
        b = VVF + 8 * (j & 1); j %= 2 * TPW
        return [f"ds_read_b128 {vr(b + 4 * st, 4)}, v{V_RD} offset:{self.koff(j) + STG // 2 + st * 1024}" for st in range(2)]

    def unit(self, a, j, qt):
        u = 2 * j + qt
        s, sn = VS + 16 * (u & 1), VS + 16 * ((u + 1) & 1)
        jn, qn = (j + (qt == 1), qt ^ 1)
        kn = VKF + 8 * (jn & 1)
        jp, qp = (j - (qt == 0), qt ^ 1)
        v, vp = VVF + 8 * (j & 1), VVF + 8 * (jp & 1)
        e = lambda r: f"v_exp_f32 v{s + r}, v{s + r}"
        c = lambda k: f"v_cvt_pk_bf16_f32 v{VP + k}, v{s + 2 * k}, v{s + 2 * k + 1}"
        O, Op, Lq, Lp = VO + 16 * qt, VO + 16 * qp, VL + 4 * qt, VL + 4 * qp
        Sa = f"v_mfma_f32_32x32x16_bf16 {vr(sn, 16)}, {vr(kn, 4)}, {vr(VQ + 8 * qn, 4)}, {vr(VC + 16 * qn, 16)}"
        Sb = f"v_mfma_f32_32x32x16_bf16 {vr(sn, 16)}, {vr(kn + 4, 4)}, {vr(VQ + 8 * qn + 4, 4)}, {vr(sn, 16)}"
        PVa = f"v_mfma_f32_32x32x16_bf16 {vr(O, 16)}, {vr(v, 4)}, {vr(VP, 4)}, {vr(O, 16)}"
        PVb = f"v_mfma_f32_32x32x16_bf16 {vr(Op, 16)}, {vr(vp + 4, 4)}, {vr(VP + 4, 4)}, {vr(Op, 16)}"
        La = f"v_mfma_f32_16x16x32_bf16 {vr(Lq, 4)}, {vr(VONE, 4)}, {vr(VP, 4)}, {vr(Lq, 4)}"
        Lb = f"v_mfma_f32_16x16x32_bf16 {vr(Lp, 4)}, {vr(VONE, 4)}, {vr(VP + 4, 4)}, {vr(Lp, 4)}"
        rd = self.rdK(j + 1) if qt == 0 else self.rdV(j + 1)
        top = ["s_waitcnt lgkmcnt(0)"]
        jj = j % TPW
        if jj == TPW - 1 and qt == 0:
            top += ["s_waitcnt vmcnt(0)", "s_barrier"]
        k = (2 * jj + qt - 2 * (TPW - 1)) % (2 * TPW)
        dm = []
        if k < 4:
            dm = self.dma_piece((((j + 1) // TPW) + 1) & 1, k)
        r0, r1 = rd[:1], rd[1:]
        if self.sched == 1:
            seq = (top + [e(0)] + r0 + [e(1)] + r1 + [e(2), e(3), Sa, c(0), c(1), e(4), e(5), Lb, e(6), e(7), c(2), c(3), Sb,
                   e(8)] + dm + [e(9), e(10), e(11), PVb, c(4), c(5), e(12), e(13), PVa, e(14), e(15), c(6), c(7), La])
        elif self.sched == 2:
            seq = (top + r0 + r1 + [e(0), e(1), e(2), e(3), Sa, c(0), c(1), e(4), e(5), Lb, e(6), e(7), c(2), c(3), Sb] + dm +
                   [e(8), e(9), e(10), e(11), PVb, c(4), c(5), e(12), e(13), PVa, e(14), e(15), c(6), c(7), La])
        D = self.diag
        if "nord" in D: seq = [l for l in seq if not l.startswith("ds_read")]
        if "noL" in D: seq = [l for l in seq if "16x16x32" not in l]
        for l in seq: a(l)

    def halfmax(self, a, x, t):
        a(f"v_mov_b32 v{t}, v{x}")
        a("s_nop 1")
        a(f"v_permlane32_swap_b32 v{x}, v{t}")
        a("s_nop 1")
        a(f"v_max_f32 v{x}, v{x}, v{t}")

    NT = 2
    def b_loads(self, a):
        ws = f"s[{S_WS}:{S_WS+3}]"
        a(f"s_lshl_b32 s6, s{S_H}, 17")
        a(f"s_add_u32 s6, s6, {WS_KVP}")
        a(f"s_lshl_b32 s7, s{S_WV}, 10")
        a("s_add_u32 s7, s7, s6")
        a(f"v_lshrrev_b32 v{V_T0}, 4, v{V_T1}")
        a(f"v_lshlrev_b32 v{V_T0}, 4, v{V_T0}")
        a(f"s_and_b32 s3, s{S_WV}, 3")
        a("s_lshl_b32 s3, s3, 6")
        a("s_add_u32 s3, s3, s6")
        a("s_add_u32 s3, s3, 8192")
        for b in range(8):
            a(f"buffer_load_dwordx4 {vr(24 + 8 * b, 4)}, v{V_LANE16}, {ws}, s7 offen")
            a(f"buffer_load_dwordx4 {vr(24 + 8 * b + 4, 4)}, v{V_T0}, {ws}, s3 offen")
            if b < 7:
                a(f"s_add_u32 s7, s7, {KVP_STRIDE}")
                a(f"s_add_u32 s3, s3, {KVP_STRIDE}")
        a(f"s_lshl_b32 s6, s{S_QB}, 4")
        a(f"s_lshl_b32 s7, s{S_WV}, 1")
        a("s_add_u32 s6, s6, s7")
        a("s_lshl_b32 s7, s6, 10")
        a(f"s_lshl_b32 s3, s{S_H}, 17")
        a("s_add_u32 s7, s7, s3")
        a(f"s_add_u32 s7, s7, {WS_QB}")
        for t in range(self.NT):
            a(f"buffer_load_dwordx4 {vr(128 + 4 * t, 4)}, v{V_LANE16}, {ws}, s7 offen offset:{t * 1024}")
        a("s_lshl_b32 s7, s6, 6")
        a(f"s_add_u32 s7, s7, {WS_G}")
        a(f"v_and_b32 v{V_T0}, 15, v{V_T1}")
        a(f"v_lshlrev_b32 v{V_T0}, 2, v{V_T0}")
        for t in range(self.NT):
            a(f"buffer_load_dword v{144 + t}, v{V_T0}, {ws}, s7 offen offset:{t * 64}")
        a(f"s_cmp_ge_u32 s{S_WV}, 2")
        a(f"s_cbranch_scc1 {self.name}_nowp")
        a(f"s_lshl_b32 s6, s{S_H}, 11")
        a(f"s_lshl_b32 s7, s{S_WV}, 10")
        a("s_add_u32 s6, s6, s7")
        a(f"s_add_u32 m0, s7, {LDS_MISC + L_WP}")
        a("s_nop 0")
        a(f"buffer_load_dwordx4 v{V_LANE16}, s[28:31], s6 offen lds")
        a.label(f"{self.name}_nowp")

    def b_apply(self, a):
        ws = f"s[{S_WS}:{S_WS+3}]"
        NT = self.NT
        for b in range(1, 8):
            for r in range(0, 8, 2):
                a(f"v_pk_add_f32 {vr(24 + r, 2)}, {vr(24 + r, 2)}, {vr(24 + 8 * b + r, 2)}")
        for k in range(4):
            a(f"v_cvt_pk_bf16_f32 v{36 + k}, v{24 + 2 * k}, v{25 + 2 * k}")
        a(f"v_lshlrev_b32 v{V_T0}, 3, v{V_T1}")
        a(f"v_add_u32 v{V_T0}, {LDS_MISC}, v{V_T0}")
        a(f"s_lshl_b32 s6, s{S_WV}, 9")
        a(f"v_add_u32 v{V_T2}, s6, v{V_T0}")
        a(f"ds_write_b64 v{V_T2}, {vr(36, 2)} offset:{L_KV}")
        a(f"s_and_b32 s6, s{S_WV}, 3")
        a(f"s_lshl_b32 s6, s6, 9")
        a(f"v_add_u32 v{V_T2}, s6, v{V_T0}")
        a(f"ds_write_b64 v{V_T2}, {vr(38, 2)} offset:{L_Z}")
        a("s_waitcnt lgkmcnt(0)")
        a("s_barrier")
        for sg in range(2):
            for dt in range(2):
                for ft in range(2):
                    t = (sg * 2 + ft) * 2 + dt
                    a(f"ds_read_b64 {vr(24 + (sg * 2 + dt) * 4 + 2 * ft, 2)}, v{V_T0} offset:{L_KV + t * 512}")
            for ft in range(2):
                a(f"ds_read_b64 {vr(40 + sg * 4 + 2 * ft, 2)}, v{V_T0} offset:{L_Z + (sg * 2 + ft) * 512}")
        a(f"v_lshrrev_b32 v{V_T2}, 4, v{V_T1}")
        a(f"v_bfe_u32 v{V_T3}, v{V_T1}, 2, 2")
        a(f"v_lshl_add_u32 v{V_T2}, v{V_T2}, 2, v{V_T3}")
        a(f"v_lshlrev_b32 v{V_T2}, 6, v{V_T2}")
        a(f"v_and_b32 v{V_T3}, 3, v{V_T1}")
        a(f"v_lshl_add_u32 v{V_T2}, v{V_T3}, 3, v{V_T2}")
        a(f"v_add_u32 v{V_T2}, {LDS_MISC}, v{V_T2}")
        for ft in range(2):
            for q in range(2):
                a(f"ds_read_b64_tr_b16 {vr(48 + 4 * ft + 2 * q, 2)}, v{V_T2} offset:{L_WP + q * 1024 + ft * 32}")
        a(f"v_mov_b32 v56, 0x3f803f80")
        for r in range(1, 4): a(f"v_mov_b32 v{56 + r}, v56")
        a("s_waitcnt lgkmcnt(0)")
        for t in range(NT):
            for ft in range(2):
                a(f"v_mfma_f32_16x16x32_bf16 {vr(64 + 8 * t + 4 * ft, 4)}, {vr(48 + 4 * ft, 4)}, {vr(128 + 4 * t, 4)}, 0")
        a("s_nop 7")
        P = lambda t, i: 64 + 8 * t + i
        MX, MN, TM = 96, 100, 104
        T = range(NT)
        for t in T:
            a(f"v_max3_f32 v{MX+t}, v{P(t,0)}, v{P(t,1)}, v{P(t,2)}")
            a(f"v_min3_f32 v{MN+t}, v{P(t,0)}, v{P(t,1)}, v{P(t,2)}")
        for i in (3, 5):
            for t in T:
                a(f"v_max3_f32 v{MX+t}, v{MX+t}, v{P(t,i)}, v{P(t,i+1)}")
                a(f"v_min3_f32 v{MN+t}, v{MN+t}, v{P(t,i)}, v{P(t,i+1)}")
        for t in T:
            a(f"v_max_f32 v{MX+t}, v{MX+t}, v{P(t,7)}")
            a(f"v_min_f32 v{MN+t}, v{MN+t}, v{P(t,7)}")
        for t in T: a(f"v_sub_f32 v{MN+t}, 0, v{MN+t}")
        a("s_nop 1")
        for t in T: a(f"v_permlane32_swap_b32 v{MX+t}, v{MN+t}")
        a("s_nop 1")
        for t in T: a(f"v_max_f32 v{MX+t}, v{MX+t}, v{MN+t}")
        for t in T: a(f"v_mov_b32 v{TM+t}, v{MX+t}")
        a("s_nop 1")
        for t in T: a(f"v_permlane16_swap_b32 v{MX+t}, v{TM+t}")
        a("s_nop 1")
        for t in T: a(f"v_max_f32 v{MX+t}, v{MX+t}, v{TM+t}")
        for t in T: a(f"v_mov_b32 v{MN+t}, v{MX+t}")
        a("s_nop 1")
        for t in T: a(f"v_permlane32_swap_b32 v{MX+t}, v{MN+t}")
        a("s_nop 1")
        EP = lambda t, i: 176 + 8 * t + i
        for t in T:
            for i in range(8):
                a(f"v_sub_f32 v{EP(t,i)}, v{P(t,i)}, v{MX+t}")
                a(f"v_add_f32 v{P(t,i)}, v{P(t,i)}, v{MN+t}")
        for t in T:
            for i in range(8):
                a(f"v_exp_f32 v{EP(t,i)}, v{EP(t,i)}")
                a(f"v_exp_f32_e64 v{P(t,i)}, -v{P(t,i)}")
        BP, BM = 96, 112
        a("s_nop 0")
        for t in T:
            for k in range(4):
                a(f"v_cvt_pk_bf16_f32 v{BP + 4*t + k}, v{EP(t,2*k)}, v{EP(t,2*k+1)}")
                a(f"v_cvt_pk_bf16_f32 v{BM + 4*t + k}, v{P(t,2*k)}, v{P(t,2*k+1)}")
        a("s_nop 1")
        for t in T:
            R = 176 + 32 * t
            bp, bm = vr(BP + 4 * t, 4), vr(BM + 4 * t, 4)
            for dt in range(2):
                a(f"v_mfma_f32_16x16x32_bf16 {vr(R + 4 * dt, 4)}, {vr(24 + 4 * dt, 4)}, {bp}, 0")
                a(f"v_mfma_f32_16x16x32_bf16 {vr(R + 8 + 4 * dt, 4)}, {vr(32 + 4 * dt, 4)}, {bm}, 0")
            a(f"v_mfma_f32_16x16x32_bf16 {vr(R + 16, 4)}, {vr(40, 4)}, {bp}, 0")
            a(f"v_mfma_f32_16x16x32_bf16 {vr(R + 20, 4)}, {vr(44, 4)}, {bm}, 0")
            a(f"v_mfma_f32_16x16x32_bf16 {vr(R + 24, 4)}, {vr(56, 4)}, {bp}, 0")
            a(f"v_mfma_f32_16x16x32_bf16 {vr(R + 28, 4)}, {vr(56, 4)}, {bm}, 0")
        a("s_nop 7")
        for t in T:
            R = 176 + 32 * t
            a(f"v_rcp_f32 v{R + 24}, v{R + 24}")
            a(f"v_rcp_f32 v{R + 28}, v{R + 28}")
        a("s_nop 0")
        for t in T:
            R = 176 + 32 * t
            a(f"v_mul_f32 v{R + 16}, v{R + 16}, v{R + 24}")
            a(f"v_sub_f32 v{R + 17}, 1.0, v{144 + t}")
            a(f"v_fma_f32 v{R + 16}, v{R + 20}, v{R + 28}, v{R + 16}")
            a(f"v_add_f32 v{R + 16}, {f32bits(1e-6)}, v{R + 16}")
        for t in T:
            a(f"v_rcp_f32 v{176 + 32 * t + 16}, v{176 + 32 * t + 16}")
        a("s_nop 0")
        for t in T:
            R = 176 + 32 * t
            a(f"v_mul_f32 v{R + 16}, v{R + 16}, v{R + 17}")
            a(f"v_mul_f32 v{R + 24}, v{R + 24}, v{R + 16}")
            a(f"v_mul_f32 v{R + 28}, v{R + 28}, v{R + 16}")
        for t in T:
            R = 176 + 32 * t
            for i in range(8): a(f"v_mul_f32 v{R + i}, v{R + i}, v{R + 24}")
            for i in range(8): a(f"v_fma_f32 v{R + i}, v{R + 8 + i}, v{R + 28}, v{R + i}")
        for t in T:
            R = 176 + 32 * t
            for k in range(4):
                a(f"v_cvt_pk_bf16_f32 v{R + 20 + k}, v{R + 2 * k}, v{R + 2 * k + 1}")
            a(f"s_lshl_b32 s6, s{S_QB}, 4")
            a(f"s_lshl_b32 s7, s{S_WV}, 1")
            a("s_add_u32 s6, s6, s7")
            a(f"s_add_u32 s6, s6, {t}")
            a("s_lshl_b32 s6, s6, 16")
            a(f"s_lshl_b32 s7, s{S_H}, 10")
            a("s_add_u32 s6, s6, s7")
            a(f"s_add_u32 s6, s6, {WS_O + 32 * 1024}")
            a(f"buffer_store_dwordx4 {vr(R + 20, 4)}, v{V_LANE16}, {ws}, s6 offen {self.store_mod}")

    def gen(self):
        a = Asm()
        n = self.name
        ws = f"s[{S_WS}:{S_WS+3}]"
        a("s_cmp_ge_u32 s2, 256")
        a(f"s_cbranch_scc1 {n}_end")
        self.stamp(a, 0)
        a("s_load_dwordx2 s[4:5], s[0:1], 80")
        a("s_load_dwordx2 s[34:35], s[0:1], 40")
        a("s_and_b32 s3, s2, 7")
        a("s_lshr_b32 s6, s2, 3")
        a(f"s_lshl_b32 s{S_H}, s3, 2")
        a("s_lshr_b32 s7, s6, 3")
        a(f"s_add_u32 s{S_H}, s{S_H}, s7")
        a(f"s_and_b32 s{S_QB}, s6, 7")
        a("v_lshrrev_b32 v2, 6, v0")
        a(f"v_and_b32 v{V_T1}, 63, v0")
        a(f"v_lshlrev_b32 v{V_LANE16}, 4, v{V_T1}")
        a(f"v_readfirstlane_b32 s{S_WV}, v2")
        a("s_waitcnt lgkmcnt(0)")
        srd(a, S_WS, 4, 0x10000000)
        srd(a, 28, 34, 65536)
        a(f"s_lshl_b32 s3, s{S_H}, 17")
        for S, off in ((S_K, WS_KA), (S_V, WS_VA)):
            a(f"s_add_u32 s6, s3, {off}")
            a(f"s_add_u32 s{S}, s4, s6")
            a(f"s_addc_u32 s{S+1}, s5, 0")
            a(f"s_and_b32 s{S+1}, s{S+1}, 0xffff")
            a(f"s_mov_b32 s{S+2}, 131072")
            a(f"s_mov_b32 s{S+3}, 0x00020000")
        a(f"s_lshl_b32 s{S_WOFF}, s{S_WV}, 11")
        a(f"s_and_b32 s{S_QG}, s{S_WV}, 3")
        a(f"s_lshr_b32 s{S_KH}, s{S_WV}, 2")
        a(f"s_lshl_b32 s6, s{S_KH}, 13")
        a(f"v_add_u32 v{V_RD}, s6, v{V_LANE16}")
        a(f"s_lshl_b32 s6, s{S_QB}, 3")
        a(f"s_lshl_b32 s7, s{S_QG}, 1")
        a("s_add_u32 s6, s6, s7")
        a("s_lshl_b32 s7, s6, 11")
        a(f"s_lshl_b32 s3, s{S_H}, 17")
        a("s_add_u32 s7, s7, s3")
        a(f"s_add_u32 s7, s7, {WS_QA}")
        if self.bapply:
            self.b_loads(a)
            a(f"s_lshl_b32 s6, s{S_QB}, 3")
            a(f"s_lshl_b32 s7, s{S_QG}, 1")
            a("s_add_u32 s6, s6, s7")
            a("s_lshl_b32 s7, s6, 11")
            a(f"s_lshl_b32 s3, s{S_H}, 17")
            a("s_add_u32 s7, s7, s3")
            a(f"s_add_u32 s7, s7, {WS_QA}")
        for i in range(4):
            a(f"buffer_load_dwordx4 {vr(VQ + 4 * i, 4)}, v{V_LANE16}, {ws}, s7 offen offset:{i * 1024}")
        a(f"s_add_u32 s6, s6, s{S_KH}")
        a("s_lshl_b32 s7, s6, 7")
        a(f"s_add_u32 s7, s7, {WS_G}")
        a(f"v_and_b32 v{V_T0}, 31, v{V_T1}")
        a(f"v_lshlrev_b32 v{V_T0}, 2, v{V_T0}")
        a(f"buffer_load_dword v{V_G}, v{V_T0}, {ws}, s7 offen")
        a(f"s_mov_b32 s{S_MODE}, 0")
        a(f"s_mov_b32 s{S_SOFF}, s{S_WOFF}")
        for l in self.dma_stage(0): a(l)
        if self.bapply:
            a("s_waitcnt vmcnt(9)")
            a("s_barrier")
            self.b_apply(a)
        self.stamp(a, 1)
        a(f"v_lshrrev_b32 v{V_T0}, 4, v{V_T1}")
        a(f"v_lshrrev_b32 v{V_T2}, 2, v{V_T1}")
        a(f"v_xor_b32 v{V_T0}, v{V_T0}, v{V_T2}")
        a(f"v_and_b32 v{V_T0}, 1, v{V_T0}")
        a(f"v_mov_b32 v{V_T2}, 0x3f803f80")
        a(f"v_cmp_eq_u32 vcc, 0, v{V_T0}")
        a("s_nop 1")
        a(f"v_cndmask_b32 v{VONE}, 0, v{V_T2}, vcc")
        for r in range(1, 4): a(f"v_mov_b32 v{VONE + r}, v{VONE}")
        a(f"s_branch {n}_first")
        a.label(f"{n}_restart")
        a(f"s_mov_b32 s{S_SOFF}, s{S_WOFF}")
        for l in self.dma_stage(0): a(l)
        a.label(f"{n}_first")
        for r in range(32): a(f"v_mov_b32 v{VO + r}, 0")
        for r in range(8): a(f"v_mov_b32 v{VL + r}, 0")
        for r in range(8): a(f"v_mov_b32 v{VP + r}, 0")
        for r in range(4): a(f"v_mov_b32 v{VVF + 8 + 4 + r}, 0")
        a("s_waitcnt vmcnt(0)")
        a("s_barrier")
        for l in self.dma_piece(1, 0) + self.dma_piece(1, 1): a(l)
        a(f"s_cmp_lg_u32 s{S_MODE}, 0")
        a(f"s_cbranch_scc1 {n}_havemax")
        a(f"ds_read_b128 {vr(VKF, 4)}, v{V_LANE16}")
        a(f"ds_read_b128 {vr(VKF + 4, 4)}, v{V_LANE16} offset:1024")
        a("s_waitcnt lgkmcnt(0)")
        for qt in range(2):
            s = VS + 16 * qt
            a(f"v_mfma_f32_32x32x16_bf16 {vr(s, 16)}, {vr(VKF, 4)}, {vr(VQ + 8 * qt, 4)}, 0")
            a(f"v_mfma_f32_32x32x16_bf16 {vr(s, 16)}, {vr(VKF + 4, 4)}, {vr(VQ + 8 * qt + 4, 4)}, {vr(s, 16)}")
        a("s_nop 15")
        for qt in range(2):
            s, x = VS + 16 * qt, V_T0 + 2 * qt
            a(f"v_max3_f32 v{x}, v{s}, v{s + 1}, v{s + 2}")
            for r in range(3, 15, 2):
                a(f"v_max3_f32 v{x}, v{x}, v{s + r}, v{s + r + 1}")
            a(f"v_max_f32 v{x}, v{x}, v{s + 15}")
        for qt in range(2):
            x = V_T0 + 2 * qt
            self.halfmax(a, x, V_T3)
            a(f"v_add_f32 v{x}, {f32bits(self.margin)}, v{x}")
            a(f"v_sub_f32 v{VC + 16 * qt}, 0, v{x}")
            for r in range(1, 16): a(f"v_mov_b32 v{VC + 16 * qt + r}, v{VC + 16 * qt}")
        a.label(f"{n}_havemax")
        for l in self.rdK(0) + self.rdV(0): a(l)
        a("s_waitcnt lgkmcnt(0)")
        a(f"v_mfma_f32_32x32x16_bf16 {vr(VS, 16)}, {vr(VKF, 4)}, {vr(VQ, 4)}, {vr(VC, 16)}")
        a(f"v_mfma_f32_32x32x16_bf16 {vr(VS, 16)}, {vr(VKF + 4, 4)}, {vr(VQ + 4, 4)}, {vr(VS, 16)}")
        a("s_nop 7")
        a(f"s_mov_b32 s{S_CNT}, {32 // (2 * TPW)}")
        if self.prio:
            a(f"s_cmp_ge_u32 s{S_WV}, 4")
            a(f"s_cbranch_scc0 {n}_noprio")
            a("s_setprio 1")
            a.label(f"{n}_noprio")
        a("s_nop 3")
        a(".p2align 6")
        a.label(f"{n}_loop")
        for j in range(2 * TPW):
            for qt in range(2):
                self.unit(a, j, qt)
        a(f"s_sub_u32 s{S_CNT}, s{S_CNT}, 1")
        a(f"s_cmp_lg_u32 s{S_CNT}, 0")
        a(f"s_cbranch_scc1 {n}_loop")
        a("s_nop 1")
        a(f"v_mfma_f32_32x32x16_bf16 {vr(VO + 16, 16)}, {vr(VVF + 8 + 4, 4)}, {vr(VP + 4, 4)}, {vr(VO + 16, 16)}")
        a(f"v_mfma_f32_16x16x32_bf16 {vr(VL + 4, 4)}, {vr(VONE, 4)}, {vr(VP + 4, 4)}, {vr(VL + 4, 4)}")
        if self.prio: a("s_setprio 0")
        self.stamp(a, 2)
        a("s_waitcnt vmcnt(0) lgkmcnt(0)")
        a("s_nop 15")
        a(f"s_mov_b32 s3, 0")
        if not self.diag:
            a(f"v_mul_f32 v{V_T0}, {f32bits(256.0)}, v{VL}")
            a(f"v_mul_f32 v{V_T2}, {f32bits(256.0)}, v{VL + 4}")
            a(f"v_mul_f32 v{V_T0}, 0, v{V_T0}")
            a(f"v_fma_f32 v{V_T0}, v{V_T2}, 0, v{V_T0}")
            for r in range(32): a(f"v_fma_f32 v{V_T0}, v{VO + r}, 0, v{V_T0}")
            if self.force_fallback:
                a(f"v_mov_b32 v{V_T0}, 0x7fc00000")
            a(f"v_cmp_u_f32 vcc, v{V_T0}, v{V_T0}")
            a(f"s_or_b32 s3, vcc_lo, vcc_hi")
            a(f"s_cmp_lg_u32 s3, 0")
            a(f"s_cselect_b32 s3, 1, 0")
        a(f"v_mov_b32 v{V_T0}, s3")
        a(f"s_lshl_b32 s6, s{S_WV}, 2")
        a(f"s_add_u32 s6, s6, {LDS_MISC + L_VOTE}")
        a(f"v_mov_b32 v{V_T2}, s6")
        a(f"ds_write_b32 v{V_T2}, v{V_T0}")
        a("s_waitcnt lgkmcnt(0)")
        a("s_barrier")
        a(f"s_mul_i32 s6, s{S_WV}, {5 * 1024}")
        a(f"v_add_u32 v{V_T2}, s6, v{V_LANE16}")
        a(f"s_cmp_eq_u32 s{S_KH}, 0")
        a(f"s_cbranch_scc1 {n}_give1")
        for qt, lab in ((0, ""), (1, f"{n}_give1")):
            if lab: a.label(lab)
            for k in range(4):
                a(f"ds_write_b128 v{V_T2}, {vr(VO + 16 * qt + 4 * k, 4)} offset:{k * 1024}")
            a(f"ds_write_b128 v{V_T2}, {vr(VL + 4 * qt, 4)} offset:4096")
            if qt == 0: a(f"s_branch {n}_gave")
        a.label(f"{n}_gave")
        a(f"v_mov_b32 v{V_T0}, {LDS_MISC + L_VOTE}")
        a(f"ds_read_b128 v[176:179], v{V_T0}")
        a(f"ds_read_b128 v[180:183], v{V_T0} offset:16")
        a("s_waitcnt lgkmcnt(0)")
        a("v_or3_b32 v176, v176, v177, v178")
        a("v_or3_b32 v176, v176, v179, v180")
        a("v_or3_b32 v176, v176, v181, v182")
        a("v_or_b32 v176, v176, v183")
        a("s_barrier")
        a("v_readfirstlane_b32 s3, v176")
        a(f"s_sub_u32 s6, 1, s{S_MODE}")
        a("s_and_b32 s3, s3, s6")
        a("s_cmp_eq_u32 s3, 0")
        a(f"s_cbranch_scc1 {n}_fin")
        a("s_barrier")
        a(f"s_mov_b32 s{S_SOFF}, s{S_WOFF}")
        a(f"s_mov_b32 s{S_CNT}, {64 // TPS}")
        a(f"v_mov_b32 v{V_T0}, 0xff800000")
        a(f"v_mov_b32 v{V_T2}, 0xff800000")
        a.label(f"{n}_maxloop")
        for l in self.dma_stage(0): a(l)
        a("s_waitcnt vmcnt(0)")
        a("s_barrier")
        for j in range(TPS):
            a(f"ds_read_b128 {vr(VKF, 4)}, v{V_LANE16} offset:{j * 2048}")
            a(f"ds_read_b128 {vr(VKF + 4, 4)}, v{V_LANE16} offset:{j * 2048 + 1024}")
            a("s_waitcnt lgkmcnt(0)")
            for qt in range(2):
                s = VS + 16 * qt
                a(f"v_mfma_f32_32x32x16_bf16 {vr(s, 16)}, {vr(VKF, 4)}, {vr(VQ + 8 * qt, 4)}, 0")
                a(f"v_mfma_f32_32x32x16_bf16 {vr(s, 16)}, {vr(VKF + 4, 4)}, {vr(VQ + 8 * qt + 4, 4)}, {vr(s, 16)}")
            a("s_nop 15")
            for qt in range(2):
                s, x = VS + 16 * qt, V_T0 + 2 * qt
                for r in range(0, 16, 2):
                    a(f"v_max3_f32 v{x}, v{x}, v{s + r}, v{s + r + 1}")
        a("s_barrier")
        a(f"s_sub_u32 s{S_CNT}, s{S_CNT}, 1")
        a(f"s_cmp_lg_u32 s{S_CNT}, 0")
        a(f"s_cbranch_scc1 {n}_maxloop")
        for qt in range(2):
            x = V_T0 + 2 * qt
            self.halfmax(a, x, V_T3)
            a(f"v_sub_f32 v{VC + 16 * qt}, 0, v{x}")
            for r in range(1, 16): a(f"v_mov_b32 v{VC + 16 * qt + r}, v{VC + 16 * qt}")
        a(f"s_mov_b32 s{S_MODE}, 1")
        a(f"s_branch {n}_restart")
        a.label(f"{n}_fin")
        a(f"s_xor_b32 s6, s{S_WV}, 4")
        a(f"s_mul_i32 s6, s6, {5 * 1024}")
        a(f"v_add_u32 v{V_T2}, s6, v{V_LANE16}")
        for k in range(4):
            a(f"ds_read_b128 {vr(VS + 4 * k, 4)}, v{V_T2} offset:{k * 1024}")
        a(f"ds_read_b128 {vr(VS + 16, 4)}, v{V_T2} offset:4096")
        a(f"s_cmp_eq_u32 s{S_KH}, 0")
        a(f"s_cbranch_scc1 {n}_keep0")
        for r in range(16): a(f"v_mov_b32 v{VO + r}, v{VO + 16 + r}")
        a(f"v_mov_b32 v{VL}, v{VL + 4}")
        a.label(f"{n}_keep0")
        a(f"v_and_b32 v{V_T1}, 63, v0")
        a(f"v_bfe_u32 v{V_T0}, v{V_T1}, 4, 1")
        a(f"v_lshlrev_b32 v{V_T0}, 16, v{V_T0}")
        a(f"v_lshrrev_b32 v{V_T2}, 5, v{V_T1}")
        a(f"v_lshl_add_u32 v{V_T0}, v{V_T2}, 8, v{V_T0}")
        a(f"v_and_b32 v{V_T2}, 15, v{V_T1}")
        a(f"v_lshl_add_u32 v{V_T0}, v{V_T2}, 4, v{V_T0}")
        a("s_waitcnt lgkmcnt(0)")
        a(f"v_add_f32 v{VL}, v{VL}, v{VS + 16}")
        a(f"v_rcp_f32 v{V_T2}, v{VL}")
        for r in range(16): a(f"v_add_f32 v{VO + r}, v{VO + r}, v{VS + r}")
        a(f"v_mul_f32 v{V_T2}, v{V_T2}, v{V_G}")
        for r in range(16): a(f"v_mul_f32 v{VO + r}, v{V_T2}, v{VO + r}")
        for k in range(8): a(f"v_cvt_pk_bf16_f32 v{VS + k}, v{VO + 2 * k}, v{VO + 2 * k + 1}")
        a(f"s_lshl_b32 s6, s{S_QB}, 3")
        a(f"s_lshl_b32 s7, s{S_QG}, 1")
        a("s_add_u32 s6, s6, s7")
        a(f"s_add_u32 s6, s6, s{S_KH}")
        a("s_lshl_b32 s6, s6, 17")
        a(f"s_lshl_b32 s7, s{S_H}, 10")
        a("s_add_u32 s6, s6, s7")
        a(f"s_add_u32 s6, s6, {WS_O}")
        a(f"buffer_store_dwordx4 {vr(VS, 4)}, v{V_T0}, {ws}, s6 offen {self.store_mod}")
        a(f"buffer_store_dwordx4 {vr(VS + 4, 4)}, v{V_T0}, {ws}, s6 offen offset:512 {self.store_mod}")
        if self.prof:
            a("s_waitcnt vmcnt(0)")
            self.stamp(a, 3)
            a(f"s_lshl_b32 s3, s2, 3")
            a(f"s_add_u32 s3, s3, s{S_WV}")
            a("s_lshl_b32 s3, s3, 6")
            a(f"s_add_u32 s3, s3, {WS_PROF + (1 << 20)}")
            a("v_mbcnt_lo_u32_b32 v251, -1, 0")
            a("v_mbcnt_hi_u32_b32 v251, -1, v251")
            a("v_lshlrev_b32 v252, 2, v251")
            a("v_cmp_gt_u32 vcc, 16, v251")
            a("s_and_saveexec_b64 s[44:45], vcc")
            a(f"buffer_store_dword v250, v252, {ws}, s3 offen")
            a("s_waitcnt vmcnt(0)")
        a.label(f"{n}_end")
        a("s_endpgm")
        return kernel_header(n) + a.text() + kernel_desc(n, 256, 256)
```

```python
from asmlib import *
from layout import *

SLOT = 49152
LDS_K3 = 3 * SLOT
V_LANE16, V_WO, V_OR, V_WRA, V_WRB, V_T = 1, 2, 4, 5, 7, 9
FO, FW, ACC = 16, 48, 64
S_WS, S_WA, S_WB, S_OUT, S_WC = 8, 12, 16, 20, 24
S_MT, S_NT, S_WV, S_KH, S_TH, S_CH, S_SOO, S_SOW, S_DST, S_CNT, S_RD, S_DL = 28, 29, 30, 31, 32, 33, 34, 35, 36, 37, 38, 39

class K3:
    def __init__(self, name, prof=False, store_mod="nt"):
        self.name, self.prof, self.store_mod = name, prof, store_mod

    def stamp(self, a, idx):
        if not self.prof: return
        a("s_memtime s[40:41]")
        a("s_memrealtime s[42:43]")
        a("s_waitcnt lgkmcnt(0)")
        for j, s in enumerate((40, 41, 42, 43)):
            a(f"v_writelane_b32 v250, s{s}, {idx * 4 + j}")

    def dma(self):
        r = [f"s_lshl_b32 s3, s{S_WV}, 12", f"s_add_u32 m0, s{S_DST}, s3", "s_nop 0"]
        for n in range(4):
            r.append(f"buffer_load_dwordx4 v{V_LANE16}, s[{S_WS}:{S_WS+3}], s{S_SOO} offen offset:{n * 1024} lds")
        r += [f"s_lshl_b32 s3, s{S_WV}, 11", f"s_add_u32 s3, s3, 32768", f"s_add_u32 m0, s{S_DST}, s3", "s_nop 0"]
        for n in range(2):
            r.append(f"buffer_load_dwordx4 v{V_WO + n}, s[{S_WC}:{S_WC+3}], s{S_SOW} offen offset:{n * 1024} lds")
        r += [f"s_add_u32 s{S_SOO}, s{S_SOO}, 4096", f"s_add_u32 s{S_SOW}, s{S_SOW}, {4 * 32 * 2048}",
              f"s_add_u32 s{S_DST}, s{S_DST}, {SLOT}", f"s_cmp_eq_u32 s{S_DST}, {3 * SLOT}", f"s_cselect_b32 s{S_DST}, 0, s{S_DST}",
              f"s_cmp_eq_u32 s{S_SOW}, {8 * 4 * 32 * 2048}",
              f"s_cselect_b32 s{S_WC}, s{S_WB}, s{S_WC}", f"s_cselect_b32 s{S_WC+1}, s{S_WB+1}, s{S_WC+1}",
              f"s_cselect_b32 s{S_SOW}, 0, s{S_SOW}"]
        return r

    def stage(self, a, part, wait, dma):
        a(f"s_waitcnt vmcnt({wait})")
        a("s_barrier")
        wr = V_WRA if part == 0 else V_WRB
        qoff = 1024 if part == 0 else 2048
        rd = []
        for b in range(2):
            for i2 in range(2):
                for q in range(2):
                    rd.append(f"ds_read_b64_tr_b16 {vr(FW + 8 * b + 4 * i2 + 2 * q, 2)}, v{wr + i2} offset:{b * 8192 + q * qoff}")
            for i in range(4):
                rd.append(f"ds_read_b128 {vr(FO + 16 * b + 4 * i, 4)}, v{V_OR} offset:{i * 4096 + b * 2048}")
        for l in rd[:8]: a(l)
        if dma:
            for l in self.dma(): a(l)
        for l in rd[8:]: a(l)
        a(f"s_add_u32 s{S_RD}, s{S_RD}, 1")
        a(f"s_cmp_eq_u32 s{S_RD}, 3")
        a(f"s_cselect_b32 s{S_DL}, s44, {SLOT}")
        a(f"s_cselect_b32 s{S_RD}, 0, s{S_RD}")
        for b in range(2):
            a(f"s_waitcnt lgkmcnt({8 if b == 0 else 0})")
            for i in range(4):
                for i2 in range(2):
                    d = vr(ACC + (i * 2 + i2) * 4, 4)
                    a(f"v_mfma_f32_16x16x32_bf16 {d}, {vr(FW + 8 * b + 4 * i2, 4)}, {vr(FO + 16 * b + 4 * i, 4)}, {d}")
        for r in (V_OR, V_WRA, V_WRA + 1, V_WRB, V_WRB + 1):
            a(f"v_add_u32 v{r}, s{S_DL}, v{r}")

    def gen(self):
        a = Asm()
        n = self.name
        a("s_cmp_ge_u32 s2, 256")
        a(f"s_cbranch_scc1 {n}_end")
        self.stamp(a, 0)
        a("s_load_dwordx2 s[4:5], s[0:1], 80")
        a("s_load_dwordx2 s[6:7], s[0:1], 16")
        a("s_load_dwordx2 s[46:47], s[0:1], 48")
        a("s_load_dwordx2 s[48:49], s[0:1], 64")
        a("s_and_b32 s3, s2, 7")
        a("s_lshr_b32 s50, s2, 3")
        a("s_lshr_b32 s51, s3, 1")
        a("s_lshl_b32 s51, s51, 2")
        a("s_and_b32 s52, s50, 3")
        a(f"s_add_u32 s{S_MT}, s51, s52")
        a("s_and_b32 s51, s3, 1")
        a("s_lshl_b32 s51, s51, 3")
        a("s_lshr_b32 s52, s50, 2")
        a(f"s_add_u32 s{S_NT}, s51, s52")
        a("v_lshrrev_b32 v2, 6, v0")
        a("v_and_b32 v10, 63, v0")
        a(f"v_lshlrev_b32 v{V_LANE16}, 4, v10")
        a(f"v_readfirstlane_b32 s{S_WV}, v2")
        a("s_waitcnt lgkmcnt(0)")
        srd(a, S_WS, 4, 0x10000000)
        srd(a, S_WA, 6, 2097152)
        srd(a, S_WB, 46, 2097152)
        srd(a, S_OUT, 48, 4194304)
        srd(a, S_WC, 6, 2097152)
        a(f"s_lshr_b32 s{S_KH}, s{S_WV}, 2")
        a(f"s_bfe_u32 s{S_TH}, s{S_WV}, 0x10001")
        a(f"s_and_b32 s{S_CH}, s{S_WV}, 1")
        a(f"s_lshl_b32 s3, s{S_MT}, 3")
        a(f"s_add_u32 s3, s3, s{S_WV}")
        a("s_lshl_b32 s3, s3, 16")
        a(f"s_add_u32 s{S_SOO}, s3, {WS_O}")
        a(f"s_mov_b32 s{S_SOW}, 0")
        a(f"s_mov_b32 s{S_DST}, 0")
        a("v_lshrrev_b32 v11, 3, v10")
        a("v_and_b32 v12, 7, v10")
        a("v_bfe_u32 v13, v10, 4, 2")
        a("v_lshlrev_b32 v13, 1, v13")
        a("v_xor_b32 v12, v12, v13")
        a("v_lshlrev_b32 v11, 11, v11")
        a("v_lshl_add_u32 v11, v12, 4, v11")
        a(f"s_lshl_b32 s3, s{S_NT}, 7")
        a("v_add_u32 v11, s3, v11")
        for nn in range(2):
            a(f"s_lshl_b32 s3, s{S_WV}, 1")
            a(f"s_add_u32 s3, s3, {nn}")
            a("s_lshl_b32 s3, s3, 14")
            if nn: a("s_sub_u32 s3, s3, 1024")
            a(f"v_add_u32 v{V_WO + nn}, s3, v11")
        for l in self.dma(): a(l)
        for l in self.dma(): a(l)
        a(f"s_lshl_b32 s3, s{S_TH}, 14")
        a(f"s_lshl_b32 s50, s{S_KH}, 10")
        a("s_add_u32 s3, s3, s50")
        a(f"v_add_u32 v{V_OR}, s3, v{V_LANE16}")
        a("v_lshrrev_b32 v11, 4, v10")
        a("v_bfe_u32 v12, v10, 2, 2")
        a("v_and_b32 v13, 1, v11")
        a("v_lshrrev_b32 v14, 1, v12")
        a("v_lshl_add_u32 v14, v13, 1, v14")
        a("v_lshlrev_b32 v14, 1, v14")
        a("v_bfe_u32 v15, v10, 1, 1")
        a("v_and_b32 v9, 1, v10")
        a("v_lshlrev_b32 v9, 3, v9")
        a(f"s_lshl_b32 s3, s{S_KH}, 12")
        a("s_add_u32 s3, s3, 32768")
        a("v_add_u32 v9, s3, v9")
        a("v_lshrrev_b32 v60, 1, v11")
        a("v_lshlrev_b32 v60, 4, v60")
        a("v_lshl_add_u32 v60, v13, 2, v60")
        a("v_add_u32 v60, v60, v12")
        a("v_lshl_add_u32 v61, v11, 2, v12")
        for i2 in range(2):
            a(f"s_lshl_b32 s3, s{S_CH}, 2")
            a(f"s_add_u32 s3, s3, {2 * i2}")
            a("v_add_u32 v62, s3, v15")
            a("v_xor_b32 v62, v62, v14")
            a("v_lshl_add_u32 v62, v62, 4, v9")
            a(f"v_lshl_add_u32 v{V_WRA + i2}, v60, 7, v62")
            a(f"v_lshl_add_u32 v{V_WRB + i2}, v61, 7, v62")
        a(f"s_mov_b32 s{S_RD}, 0")
        a(f"s_mov_b32 s44, {(-2 * SLOT) & 0xffffffff}")
        for r in range(32): a(f"v_mov_b32 v{ACC + r}, 0")
        self.stamp(a, 1)
        a(f"s_mov_b32 s{S_CNT}, 8")
        a.label(f"{n}_loopA")
        self.stage(a, 0, 6, True)
        a(f"s_sub_u32 s{S_CNT}, s{S_CNT}, 1")
        a(f"s_cmp_lg_u32 s{S_CNT}, 0")
        a(f"s_cbranch_scc1 {n}_loopA")
        a(f"s_mov_b32 s{S_CNT}, 6")
        a.label(f"{n}_loopB")
        self.stage(a, 1, 6, True)
        a(f"s_sub_u32 s{S_CNT}, s{S_CNT}, 1")
        a(f"s_cmp_lg_u32 s{S_CNT}, 0")
        a(f"s_cbranch_scc1 {n}_loopB")
        self.stage(a, 1, 6, False)
        self.stage(a, 1, 0, False)
        self.stamp(a, 2)
        a("s_barrier")
        a(f"s_lshl_b32 s3, s{S_WV}, 12")
        a(f"v_add_u32 v2, s3, v{V_LANE16}")
        a(f"s_xor_b32 s3, s{S_WV}, 4")
        a("s_lshl_b32 s3, s3, 12")
        a(f"v_add_u32 v3, s3, v{V_LANE16}")
        a(f"s_cmp_eq_u32 s{S_KH}, 0")
        a("s_nop 7")
        a(f"s_cbranch_scc1 {n}_k0")
        for k in range(4): a(f"ds_write_b128 v2, {vr(ACC + 4 * k, 4)} offset:{k * 1024}")
        a("s_waitcnt lgkmcnt(0)")
        for r in range(16): a(f"v_mov_b32 v{ACC + r}, v{ACC + 16 + r}")
        a(f"s_branch {n}_k1")
        a.label(f"{n}_k0")
        for k in range(4): a(f"ds_write_b128 v2, {vr(ACC + 16 + 4 * k, 4)} offset:{k * 1024}")
        a.label(f"{n}_k1")
        a("s_waitcnt lgkmcnt(0)")
        a("s_barrier")
        for k in range(4): a(f"ds_read_b128 {vr(FO + 4 * k, 4)}, v3 offset:{k * 1024}")
        a("v_and_b32 v11, 15, v10")
        a(f"s_lshl_b32 s3, s{S_MT}, 7")
        a(f"s_lshl_b32 s50, s{S_TH}, 6")
        a("s_add_u32 s3, s3, s50")
        a(f"s_lshl_b32 s50, s{S_KH}, 5")
        a("s_add_u32 s3, s3, s50")
        a("v_add_u32 v11, s3, v11")
        a("v_lshlrev_b32 v11, 11, v11")
        a("v_bfe_u32 v12, v10, 4, 1")
        a("v_lshl_add_u32 v11, v12, 5, v11")
        a("v_lshrrev_b32 v12, 5, v10")
        a("v_lshl_add_u32 v11, v12, 4, v11")
        a(f"s_lshl_b32 s3, s{S_NT}, 7")
        a(f"s_lshl_b32 s50, s{S_CH}, 6")
        a("s_add_u32 s3, s3, s50")
        a("s_waitcnt lgkmcnt(0)")
        for r in range(0, 16, 2):
            a(f"v_pk_add_f32 {vr(ACC + r, 2)}, {vr(ACC + r, 2)}, {vr(FO + r, 2)}")
        for i in range(2):
            t = FO + 16 + 4 * i
            for i2 in range(2):
                b = ACC + (i * 2 + i2) * 4
                a(f"v_cvt_pk_bf16_f32 v{t + 2 * i2}, v{b}, v{b + 1}")
                a(f"v_cvt_pk_bf16_f32 v{t + 2 * i2 + 1}, v{b + 2}, v{b + 3}")
            a("s_nop 1")
            a(f"v_permlane16_swap_b32 v{t}, v{t + 2}")
            a(f"v_permlane16_swap_b32 v{t + 1}, v{t + 3}")
            if i: a("s_add_u32 s3, s3, 32768")
            a(f"buffer_store_dwordx4 {vr(t, 4)}, v11, s[{S_OUT}:{S_OUT+3}], s3 offen {self.store_mod}")
        if self.prof:
            a("s_waitcnt vmcnt(0)")
            self.stamp(a, 3)
            a(f"s_lshl_b32 s3, s2, 3")
            a(f"s_add_u32 s3, s3, s{S_WV}")
            a("s_lshl_b32 s3, s3, 6")
            a(f"s_add_u32 s3, s3, {WS_PROF + (2 << 20)}")
            a("v_mbcnt_lo_u32_b32 v251, -1, 0")
            a("v_mbcnt_hi_u32_b32 v251, -1, v251")
            a("v_lshlrev_b32 v252, 2, v251")
            a("v_cmp_gt_u32 vcc, 16, v251")
            a("s_and_saveexec_b64 s[52:53], vcc")
            a(f"buffer_store_dword v250, v252, s[{S_WS}:{S_WS+3}], s3 offen")
            a("s_waitcnt vmcnt(0)")
        a.label(f"{n}_end")
        a("s_endpgm")
        nv = 256 if self.prof else 96
        return kernel_header(n) + a.text() + kernel_desc(n, nv, nv)
```

```python
import struct
WS_QA, WS_KA, WS_VA, WS_QB = 0, 4 << 20, 8 << 20, 12 << 20
WS_KVP = 32 << 20
NKVP = 16
KVP_STRIDE = 16384
WS_G = 22 << 20
WS_FLAG = 23 << 20
WS_O = 24 << 20
WS_PROF = 200 << 20
LOG2E = 1.4426950408889634
def f32bits(x):
    return struct.unpack("<I", struct.pack("<f", x))[0]
```

```python
import sys
import hx
from k1b import K1b
from k2c import K2c, LDS_K2
from k3 import K3, LDS_K3
HDR = open("gated_mix__softmax_full_mha__linear_kernel_hedgehog__prompt.s.ref").read().split("; Override launch geometry")[0]
def build(prof=False, k1=None, k2=None, k3=None):
    s = HDR
    s += "; Three launches: QKV projections (+ gate, branch-B feature map of k), attention / linear attention, output projection.\n"
    s += "; @launch kernel=qkv_kernel grid=(256,1,1) block=(256,1,1) lds=163840\n"
    s += f"; @launch kernel=attn_kernel grid=(256,1,1) block=(512,1,1) lds={LDS_K2}\n"
    s += f"; @launch kernel=outp_kernel grid=(256,1,1) block=(512,1,1) lds={LDS_K3}\n"
    s += '.amdgcn_target "amdgcn-amd-amdhsa--gfx950"\n.text\n'
    s += K1b("qkv_kernel", prof=prof, **(k1 or dict(store_mod="nt"))).gen()
    s += K2c("attn_kernel", prof=prof, **(k2 or {})).gen()
    s += K3("outp_kernel", prof=prof, **(k3 or {})).gen()
    return s
if __name__ == "__main__":
    prof = "prof" in sys.argv
    out = sys.argv[1]
    s = build(prof)
    open(out, "w").write(s)
    dev = s + hx.metadata([("qkv_kernel", 102, 368, 256), ("attn_kernel", 102, 256, 512), ("outp_kernel", 102, 256, 512)])
    open(out.replace(".s", "_dev.s"), "w").write(dev)
    print(hx.assemble(out.replace(".s", "_dev.s")))
```

```python
from asmlib import *
from layout import *
from prof import Prof

XST, NX = 16384, 3
WRING, WSL, NW = 49152, 24576, 4
L_WP = WRING + NW * WSL
LDS_K1 = 163840
ACC = 64
def acc(sg, ft, tk): return ACC + ((sg * 2 + ft) * 4 + tk) * 4
def fX(p, tk): return p * 64 + tk * 4
def fW(p, sg, ft): return p * 64 + 16 + (sg * 2 + ft) * 4
A_DUMMY, A_PF = 128, 152
V_XO, V_WO, V_XR, V_WR, V_PF = 1, 5, 12, 14, 16
S_X, S_W, S_WS, S_WP, S_GW = 8, 12, 16, 60, 64
S_MT, S_HP, S_WV, S_SOX, S_SOW, S_XDST, S_WDST, S_XRD, S_XDL, S_WRD, S_WDL, S_CNT, S_W8K, S_W3K = range(20, 34)
S_CWM, S_CXM, S_PF, S_PFO, S_PFS, S_TOK, S_HD, S_TH = 54, 55, 72, 76, 77, 78, 79, 88

class K1d(Prof):
    V_PROF = 60
    def __init__(self, name, prof=False, store_mod="sc1", pfwo=True, pfin=0, epi=True):
        self.name, self.prof, self.store_mod, self.pfwo, self.pfin, self.epi = name, prof, store_mod, pfwo, pfin, epi

    def mfmas(self, p):
        out = []
        for tk in range(4):
            for sg in range(6):
                for ft in range(2):
                    d = vr(acc(sg, ft, tk), 4)
                    x, w = ar(fX(p, tk), 4), ar(fW(p, sg, ft), 4)
                    a, b = (x, w) if sg % 3 == 2 else (w, x)
                    out.append(f"v_mfma_f32_16x16x32_bf16 {d}, {a}, {b}, {d}")
        return out

    def rd(self, p, k2):
        xs = [f"ds_read_b128 {ar(fX(p, tk), 4)}, v{V_XR + k2} offset:{tk * 2048}" for tk in range(4)]
        w = [f"ds_read_b64_tr_b16 {ar(fW(p, sg, ft) + 2 * q, 2)}, v{V_WR + ft} offset:{sg * 4096 + q * 512}"
             for sg in range(6) for ft in range(2) for q in range(2)]
        return [xs[0]] + w + xs[1:]

    def dmaW(self):
        g = []
        for j in range(6):
            ins = []
            if j == 0: ins += [f"s_add_u32 m0, s{S_WDST}, s{S_W3K}", f"s_add_u32 s{S_WDST}, s{S_WDST}, {WSL}"]
            if j == 4: ins += ["s_add_u32 m0, m0, 4096", f"s_cmp_eq_u32 s{S_WDST}, {WRING + NW * WSL}", f"s_cselect_b32 s{S_WDST}, {WRING}, s{S_WDST}"]
            ins.append(f"buffer_load_dwordx4 v{V_WO + j}, s[{S_W}:{S_W+3}], s{S_SOW} offen offset:{(j & 3) * 1024} lds")
            if j == 5: ins.append(f"s_add_u32 s{S_SOW}, s{S_SOW}, {32 * 6144}")
            g.append(ins)
        return g

    def dmaX(self, half):
        g = []
        for n in range(2):
            ins = []
            if n == 0:
                ins += [f"s_add_u32 m0, s{S_XDST}, s{S_W8K}"] + ([f"s_add_u32 m0, m0, 2048"] if half else []) + ["s_nop 0"]
            ins.append(f"buffer_load_dwordx4 v{V_XO + half * 2 + n}, s[{S_X}:{S_X+3}], s{S_SOX} offen offset:{n * 1024} lds")
            if n == 1 and half == 1:
                ins += [f"s_add_u32 s{S_SOX}, s{S_SOX}, 128", f"s_add_u32 s{S_XDST}, s{S_XDST}, {XST}",
                        f"s_cmp_eq_u32 s{S_XDST}, {NX * XST}", f"s_cselect_b32 s{S_XDST}, 0, s{S_XDST}"]
            g.append(ins)
        return g

    def pf(self):
        if not self.pfin: return []
        return [[f"buffer_load_dwordx4 a[{A_PF}:{A_PF+3}], v{V_PF}, s[{S_PF}:{S_PF+3}], s{S_PFO} offen",
                 f"s_add_u32 s{S_PFO}, s{S_PFO}, s{S_PFS}"]]

    def wadv(self):
        return [f"s_add_u32 s{S_WRD}, s{S_WRD}, 1", f"s_cmp_eq_u32 s{S_WRD}, {NW}",
                f"s_cselect_b32 s{S_WDL}, s{S_CWM}, {WSL}", f"s_cselect_b32 s{S_WRD}, 0, s{S_WRD}",
                f"v_add_u32 v{V_WR}, s{S_WDL}, v{V_WR}", f"v_add_u32 v{V_WR + 1}, s{S_WDL}, v{V_WR + 1}"]
    def xdelta(self):
        return [f"s_add_u32 s{S_XRD}, s{S_XRD}, 1", f"s_cmp_eq_u32 s{S_XRD}, {NX}",
                f"s_cselect_b32 s{S_XDL}, s{S_CXM}, {XST}", f"s_cselect_b32 s{S_XRD}, 0, s{S_XRD}"]
    def xadv(self, k2):
        return [f"v_add_u32 v{V_XR + k2}, s{S_XDL}, v{V_XR + k2}"]

    def unit(self, a, p, reads, bar, dmas, pre=(), post=()):
        a("s_waitcnt lgkmcnt(0)")
        fill = []
        ins = list(pre)
        if bar is not None:
            ins += [f"s_waitcnt vmcnt({bar})", "s_barrier"]
        fill.append((0, ins))
        for i, r in enumerate(reads):
            fill.append((1 + i, [r]))
        for i, d in enumerate(dmas):
            fill.append((min(30 + 2 * i, 46), d))
        fill.append((47, list(post)))
        for l in interleave(self.mfmas(p), fill):
            a(l)

    def iteration(self, a, g_odd, g_even, w_odd, w_even, last=False, pf=False):
        odd = (self.dmaW() + self.dmaX(1)) if g_odd else []
        even = self.dmaW() if g_even == "W" else (self.dmaW() + self.dmaX(0) + (self.pf() if pf else [])) if g_even else []
        self.unit(a, 0, self.rd(1, 1), w_odd, odd, pre=self.wadv() + self.xdelta() + self.xadv(0), post=self.xadv(1))
        if last:
            self.unit(a, 1, [], None, [])
        else:
            self.unit(a, 1, self.rd(0, 0), w_even, even, pre=self.wadv())

    def gen(self):
        a = Asm()
        n = self.name
        a("s_cmp_ge_u32 s2, 256")
        a(f"s_cbranch_scc1 {n}_end")
        self.pstamp(a, 0)
        a("s_load_dwordx4 s[44:47], s[0:1], 0")
        a("s_load_dwordx2 s[48:49], s[0:1], 32")
        a("s_load_dwordx2 s[52:53], s[0:1], 80")
        a("s_load_dwordx2 s[56:57], s[0:1], 40")
        a("s_load_dwordx2 s[58:59], s[0:1], 56")
        a("s_and_b32 s3, s2, 7")
        a("s_lshr_b32 s4, s2, 3")
        a("s_and_b32 s5, s3, 1")
        a("s_lshl_b32 s5, s5, 3")
        a("s_and_b32 s6, s4, 7")
        a(f"s_add_u32 s{S_MT}, s5, s6")
        a("s_lshr_b32 s5, s3, 1")
        a("s_lshl_b32 s5, s5, 2")
        a("s_lshr_b32 s6, s4, 3")
        a(f"s_add_u32 s{S_HP}, s5, s6")
        a("v_lshrrev_b32 v17, 6, v0")
        a("v_and_b32 v18, 63, v0")
        a("v_lshrrev_b32 v19, 3, v18")
        a(f"v_readfirstlane_b32 s{S_WV}, v17")
        a("v_and_b32 v20, 7, v18")
        a("v_lshrrev_b32 v21, 4, v18")
        a(f"s_lshl_b32 s3, s{S_MT}, 7")
        a(f"s_lshl_b32 s4, s{S_WV}, 5")
        a("s_add_u32 s3, s3, s4")
        a("v_add_u32 v22, s3, v19")
        a("v_lshlrev_b32 v22, 11, v22")
        a("v_xor_b32 v23, v20, v21")
        a("v_xor_b32 v24, 4, v23")
        a("v_lshl_add_u32 v23, v23, 4, v22")
        a("v_lshl_add_u32 v24, v24, 4, v22")
        for nn in range(4):
            a(f"v_add_u32 v{V_XO + nn}, {nn * 16384 - (nn & 1) * 1024}, v{23 if nn % 2 == 0 else 24}")
        a("v_and_b32 v23, 1, v21")
        a("v_lshlrev_b32 v23, 1, v23")
        a("v_xor_b32 v23, v23, v20")
        a("s_mov_b32 s3, 6144")
        a("v_mul_lo_u32 v24, v19, s3")
        a(f"s_lshl_b32 s4, s{S_HP}, 7")
        a("v_add_u32 v24, s4, v24")
        for j in range(6):
            a(f"s_mul_i32 s3, s{S_WV}, 6")
            a(f"s_add_u32 s3, s3, {j}")
            a("s_and_b32 s5, s3, 1")
            a("s_lshl_b32 s5, s5, 2")
            a("v_xor_b32 v25, s5, v23")
            a("v_lshl_add_u32 v25, v25, 4, v24")
            a("s_and_b32 s4, s3, 3")
            a(f"s_mul_i32 s4, s4, {8 * 6144}")
            a("s_lshr_b32 s3, s3, 2")
            a("s_cmp_ge_u32 s3, 3")
            a("s_cselect_b32 s5, 3, 0")
            a("s_sub_u32 s3, s3, s5")
            a("s_lshl_b32 s3, s3, 11")
            a("s_add_u32 s3, s3, s4")
            if j & 3: a(f"s_sub_u32 s3, s3, {(j & 3) * 1024}")
            a(f"v_add_u32 v{V_WO + j}, s3, v25")
        a(f"s_lshl_b32 s{S_W8K}, s{S_WV}, 12")
        a(f"s_mul_i32 s{S_W3K}, s{S_WV}, 6144")
        a(f"s_and_b32 s{S_TH}, s{S_WV}, 1")
        a(f"s_lshr_b32 s3, s{S_WV}, 1")
        a(f"s_lshl_b32 s{S_HD}, s{S_HP}, 1")
        a(f"s_add_u32 s{S_HD}, s{S_HD}, s3")
        a(f"s_mov_b32 s{S_CWM}, {(-(NW - 1) * WSL) & 0xffffffff}")
        a(f"s_mov_b32 s{S_CXM}, {(-(NX - 1) * XST) & 0xffffffff}")
        a(f"s_mov_b32 s{S_SOX}, 0")
        a(f"s_mov_b32 s{S_SOW}, 0")
        a(f"s_mov_b32 s{S_XDST}, 0")
        a(f"s_mov_b32 s{S_WDST}, {WRING}")
        a(f"s_mov_b32 s{S_XRD}, 0")
        a(f"s_mov_b32 s{S_WRD}, 0")
        a("s_waitcnt lgkmcnt(0)")
        srd(a, S_X, 44, 2048 * 2048)
        a(f"s_cmp_lt_u32 s{S_WV}, 2")
        a("s_cselect_b32 s6, s46, s48")
        a("s_cselect_b32 s7, s47, s49")
        srd(a, S_W, 6, 1024 * 6144)
        pro = self.dmaX(0) + self.dmaW() + self.dmaX(1) + self.dmaW() + self.dmaX(0) + self.dmaW() + self.dmaX(1)
        for grp in pro:
            for l in grp:
                if l.startswith("buffer_load"): a("s_nop 0")
                a(l)
        self.pstamp(a, 1)
        srd(a, S_WS, 52, 0x10000000)
        srd(a, S_WP, 56, 65536)
        srd(a, S_GW, 58, 2048)
        self.side_loads(a)
        self.addr_reads(a)
        for r in range(ACC, 256):
            a(f"v_mov_b32 v{r}, 0")
        a(f"s_waitcnt vmcnt({16 + self.n_side})")
        a("s_barrier")
        self.pstamp(a, 2)
        for l in self.rd(0, 0): a(l)
        for grp in self.dmaW() + self.dmaX(0) + self.pf():
            for l in grp:
                if l.startswith("buffer_load"): a("s_nop 0")
                a(l)
        e = 1 if self.pfin else 0
        a(f"s_mov_b32 s{S_CNT}, 13")
        a(".p2align 6")
        a.label(f"{n}_loop")
        self.iteration(a, True, True, 16 + e, 16 + e, pf=True)
        a(f"s_sub_u32 s{S_CNT}, s{S_CNT}, 1")
        a(f"s_cmp_lg_u32 s{S_CNT}, 0")
        a(f"s_cbranch_scc1 {n}_loop")
        self.iteration(a, True, "W", 16, 16)
        self.iteration(a, False, False, 14, 6)
        self.iteration(a, False, False, 0, 0, last=True)
        self.pstamp(a, 3)
        if self.epi:
            self.epilogue(a)
        if self.prof:
            self.pstamp(a, 4)
            a("s_waitcnt vmcnt(0)")
            self.pstamp(a, 5)
            self.pflush(a, 0, 4, S_WV, f"s[{S_WS}:{S_WS+3}]")
        a.label(f"{n}_end")
        a("s_endpgm")
        nag = A_PF + 4
        return kernel_header(n) + a.text() + kernel_desc(n, 256 + nag, 256)

    def addr_reads(self, a):
        a("v_and_b32 v19, 15, v18")
        a("v_lshlrev_b32 v19, 7, v19")
        a(f"s_lshl_b32 s3, s{S_TH}, 13")
        a("v_add_u32 v19, s3, v19")
        a("v_lshrrev_b32 v20, 4, v18")
        a("v_bfe_u32 v21, v18, 1, 3")
        for k2 in range(2):
            a(f"v_add_u32 v22, {4 * k2}, v20")
            a("v_xor_b32 v22, v22, v21")
            a(f"v_lshl_add_u32 v{V_XR + k2}, v22, 4, v19")
        a("v_bfe_u32 v21, v18, 2, 2")
        a("v_lshl_add_u32 v22, v20, 3, v21")
        a("v_lshlrev_b32 v22, 7, v22")
        a("v_and_b32 v24, 1, v18")
        a("v_lshl_add_u32 v22, v24, 3, v22")
        a("v_bfe_u32 v24, v18, 1, 1")
        a(f"s_lshr_b32 s3, s{S_WV}, 1")
        a("s_lshl_b32 s3, s3, 2")
        a("v_add_u32 v24, s3, v24")
        a("v_and_b32 v23, 2, v21")
        a("v_bfe_u32 v25, v18, 4, 1")
        a("v_lshl_or_b32 v23, v25, 2, v23")
        for ft in range(2):
            a(f"v_add_u32 v25, {2 * ft}, v24")
            a("v_xor_b32 v25, v25, v23")
            a("v_lshl_add_u32 v25, v25, 4, v22")
            a(f"v_add_u32 v{V_WR + ft}, {WRING}, v25")

    def side_loads(self, a):
        n_side = 0
        a("v_lshlrev_b32 v19, 4, v18")
        a(f"s_lshl_b32 s3, s{S_HP}, 12")
        a(f"s_lshl_b32 s5, s{S_WV}, 10")
        a("s_add_u32 s3, s3, s5")
        a(f"s_add_u32 m0, s5, {L_WP}")
        a("s_nop 0")
        a(f"buffer_load_dwordx4 v19, s[{S_WP}:{S_WP+3}], s3 offen lds"); n_side += 1
        a("v_lshlrev_b32 v19, 5, v18")
        d = A_DUMMY
        a(f"buffer_load_dwordx4 a[{d}:{d+3}], v19, s[{S_GW}:{S_GW+3}], 0 offen")
        a(f"buffer_load_dwordx4 a[{d+4}:{d+7}], v19, s[{S_GW}:{S_GW+3}], 0 offen offset:16"); n_side += 2
        a(f"s_lshl_b32 s3, s{S_MT}, 7")
        a(f"s_lshl_b32 s4, s{S_HP}, 3")
        a("s_add_u32 s3, s3, s4")
        a(f"s_lshl_b32 s4, s{S_WV}, 1")
        a(f"s_add_u32 s{S_TOK}, s3, s4")
        a(f"s_lshl_b32 s3, s{S_TOK}, 11")
        for i in range(2):
            a(f"buffer_load_dwordx4 a[{d+8+8*i}:{d+11+8*i}], v19, s[{S_X}:{S_X+3}], s3 offen offset:{i * 2048}")
            a(f"buffer_load_dwordx4 a[{d+12+8*i}:{d+15+8*i}], v19, s[{S_X}:{S_X+3}], s3 offen offset:{i * 2048 + 16}"); n_side += 2
        self.n_side = n_side
        if self.pfin:
            D = self.pfin
            a(f"s_mul_i32 s3, s2, 3")
            a(f"s_add_u32 s3, s3, s{S_WV}")
            a("s_cmp_ge_u32 s3, 384")
            a("s_cselect_b32 s4, 384, 0")
            a("s_cselect_b32 s6, s48, s46")
            a("s_cselect_b32 s7, s49, s47")
            a("s_sub_u32 s3, s3, s4")
            a("s_lshl_b32 s3, s3, 10")
            a(f"s_cmp_eq_u32 s{S_WV}, 3")
            a("s_cselect_b32 s6, s44, s6")
            a("s_cselect_b32 s7, s45, s7")
            a(f"s_mov_b32 s5, {64 * 6144}")
            a(f"s_cselect_b32 s{S_PFS}, 128, s5")
            a(f"s_mov_b32 s5, {1024 * 6144}")
            a(f"s_cselect_b32 s{S_PF+2}, {2048 * 2048}, s5")
            a("s_lshl_b32 s4, s2, 14")
            a("s_cselect_b32 s3, s4, s3")
            a(f"s_mul_i32 s4, s{S_PFS}, {D}")
            a(f"s_add_u32 s{S_PFO}, s3, s4")
            a(f"s_mov_b32 s{S_PF}, s6")
            a(f"s_and_b32 s{S_PF+1}, s7, 0xffff")
            a(f"s_mov_b32 s{S_PF+3}, 0x00020000")
            a("v_lshlrev_b32 v19, 4, v18")
            a("v_lshrrev_b32 v20, 3, v18")
            a("v_lshlrev_b32 v20, 11, v20")
            a("v_and_b32 v21, 7, v18")
            a("v_lshl_add_u32 v20, v21, 4, v20")
            a(f"s_cmp_eq_u32 s{S_WV}, 3")
            a("s_cselect_b64 vcc, -1, 0")
            a(f"v_cndmask_b32 v{V_PF}, v19, v20, vcc")

    def gate_compute(self, a):
        d = A_DUMMY
        for r in range(24): a(f"v_accvgpr_read_b32 v{32 + r}, a{d + r}")
        for i in range(2): a(f"v_mov_b32 v{24 + i}, 0")
        for k in range(8):
            for i in range(2):
                a(f"v_dot2_f32_bf16 v{24 + i}, v{40 + 8 * i + k}, v{32 + k}, v{24 + i}")
        for ctl in ("quad_perm:[1,0,3,2]", "quad_perm:[2,3,0,1]", "row_half_mirror", "row_mirror"):
            a("s_nop 1")
            for i in range(2):
                a(f"v_add_f32_dpp v{24 + i}, v{24 + i}, v{24 + i} {ctl} row_mask:0xf bank_mask:0xf")
        for sw in ("v_permlane16_swap_b32", "v_permlane32_swap_b32"):
            for i in range(2): a(f"v_mov_b32 v{28 + i}, v{24 + i}")
            a("s_nop 1")
            for i in range(2): a(f"{sw} v{24 + i}, v{28 + i}")
            a("s_nop 1")
            for i in range(2): a(f"v_add_f32 v{24 + i}, v{24 + i}, v{28 + i}")
        a("v_and_b32 v28, 1, v18")
        a("v_cmp_eq_u32 vcc, 1, v28")
        a("s_nop 1")
        a("v_cndmask_b32 v24, v24, v25, vcc")
        a(f"v_mul_f32 v24, {f32bits(-LOG2E)}, v24")
        a("v_exp_f32 v24, v24")
        a("s_nop 0")
        a("v_add_f32 v24, 1.0, v24")
        a("v_rcp_f32 v24, v24")
        a("v_lshlrev_b32 v28, 2, v18")
        a(f"s_lshl_b32 s3, s{S_TOK}, 2")
        a(f"s_add_u32 s3, s3, {WS_G}")
        a("s_mov_b64 exec, 3")
        a(f"buffer_store_dword v24, v28, s[{S_WS}:{S_WS+3}], s3 offen {self.store_mod}")
        a("s_mov_b64 exec, -1")

    def prefetch_wo(self, a):
        a("s_load_dwordx2 s[80:81], s[0:1], 16")
        a("s_load_dwordx2 s[82:83], s[0:1], 48")
        a("s_lshl_b32 s3, s2, 13")
        a(f"s_lshl_b32 s4, s{S_WV}, 11")
        a("s_add_u32 s3, s3, s4")
        a("s_waitcnt lgkmcnt(0)")
        for k, p in enumerate((80, 82)):
            srd(a, 84, p, 2097152)
            for i in range(2):
                a(f"buffer_load_dwordx4 a[{8 * k + 4 * i}:{8 * k + 4 * i + 3}], v17, s[84:87], s3 offen offset:{i * 1024}")

    def epilogue(self, a):
        ws = f"s[{S_WS}:{S_WS+3}]"
        sm = self.store_mod
        a("v_and_b32 v18, 63, v0")
        self.gate_compute(a)
        c = f32bits(LOG2E / 32 ** 0.5)
        a(f"s_mov_b32 s36, {c}")
        a(f"s_mov_b32 s37, {c}")
        a(f"s_lshl_b32 s3, s{S_HD}, 17")
        a(f"s_lshl_b32 s4, s{S_MT}, 2")
        a(f"s_lshl_b32 s5, s{S_TH}, 1")
        a("s_add_u32 s4, s4, s5")
        a("s_lshl_b32 s4, s4, 11")
        a("s_add_u32 s3, s3, s4")
        a("v_lshrrev_b32 v19, 4, v18")
        a("v_and_b32 v20, 15, v18")
        a("v_lshrrev_b32 v21, 1, v19")
        a("v_lshlrev_b32 v21, 10, v21")
        a("v_and_b32 v22, 1, v19")
        a("v_lshl_add_u32 v21, v22, 9, v21")
        a("v_add_u32 v21, s3, v21")
        a("v_lshl_add_u32 v17, v20, 4, v21")
        a("v_and_b32 v22, 7, v20")
        a("v_lshrrev_b32 v23, 3, v20")
        a("v_lshl_add_u32 v22, v23, 4, v22")
        a("v_lshl_add_u32 v16, v22, 4, v21")
        def pack(dst, b0, b1):
            return [f"v_cvt_pk_bf16_f32 v{dst}, v{b0}, v{b0 + 1}", f"v_cvt_pk_bf16_f32 v{dst + 1}, v{b0 + 2}, v{b0 + 3}",
                    f"v_cvt_pk_bf16_f32 v{dst + 2}, v{b1}, v{b1 + 1}", f"v_cvt_pk_bf16_f32 v{dst + 3}, v{b1 + 2}, v{b1 + 3}"]
        t = 24
        for tk in range(4):
            for l in pack(t + 4 * tk, acc(1, 0, tk), acc(1, 1, tk)): a(l)
            a(f"s_mov_b32 s38, {(4 << 20) + (tk >> 1) * 2048}")
            a(f"buffer_store_dwordx4 {vr(t + 4 * tk, 4)}, v16, {ws}, s38 offen offset:{(tk & 1) * 128} {sm}")
        for T in range(2):
            for ft in range(2):
                u = t + 16 + 4 * (T * 2 + ft)
                for l in pack(u, acc(2, ft, 2 * T), acc(2, ft, 2 * T + 1)): a(l)
                a(f"s_mov_b32 s38, {(8 << 20) + T * 2048}")
                a(f"buffer_store_dwordx4 {vr(u, 4)}, v17, {ws}, s38 offen offset:{ft * 256} {sm}")
        for tk in range(4):
            for ft in range(2):
                b = acc(0, ft, tk)
                a(f"v_pk_mul_f32 {vr(b, 2)}, {vr(b, 2)}, s[36:37]")
                a(f"v_pk_mul_f32 {vr(b + 2, 2)}, {vr(b + 2, 2)}, s[36:37]")
        for tk in range(4):
            u = acc(1, 0, 0) + 4 * tk
            for l in pack(u, acc(0, 0, tk), acc(0, 1, tk)): a(l)
            a(f"s_mov_b32 s38, {(tk >> 1) * 2048}")
            a(f"buffer_store_dwordx4 {vr(u, 4)}, v17, {ws}, s38 offen offset:{(tk & 1) * 256} {sm}")
        a("v_lshlrev_b32 v17, 4, v18")
        a(f"s_lshl_b32 s3, s{S_HD}, 17")
        a(f"s_lshl_b32 s4, s{S_MT}, 3")
        a(f"s_lshl_b32 s5, s{S_TH}, 2")
        a("s_add_u32 s4, s4, s5")
        a("s_lshl_b32 s4, s4, 10")
        a("s_add_u32 s3, s3, s4")
        a(f"s_add_u32 s3, s3, {WS_QB}")
        for tk in range(4):
            u = acc(2, 0, 0) + 4 * tk
            for l in pack(u, acc(3, 0, tk), acc(3, 1, tk)): a(l)
            a(f"buffer_store_dwordx4 {vr(u, 4)}, v17, {ws}, s3 offen offset:{tk * 1024} {sm}")
        if self.pfwo: self.prefetch_wo(a)
        KB, VB = 64, 80
        for tk in range(4):
            for l in pack(KB + 4 * tk, acc(4, 0, tk), acc(4, 1, tk)): a(l)
        for dt in range(2):
            for T in range(2):
                for l in pack(VB + (dt * 2 + T) * 4, acc(5, dt, 2 * T), acc(5, dt, 2 * T + 1)): a(l)
        a("v_bfe_u32 v20, v18, 2, 2")
        a("v_lshl_add_u32 v21, v19, 2, v20")
        a("v_mul_u32_u24 v23, 136, v21")
        a("v_lshlrev_b32 v21, 6, v21")
        a("v_and_b32 v20, 3, v18")
        a("v_lshl_add_u32 v21, v20, 3, v21")
        a(f"s_lshr_b32 s3, s{S_WV}, 1")
        a("s_lshl_b32 s3, s3, 11")
        a(f"s_add_u32 s3, s3, {L_WP}")
        a("v_add_u32 v21, s3, v21")
        RS = 136
        a(f"s_mul_i32 s3, s{S_WV}, {64 * RS}")
        a("v_lshl_add_u32 v23, v20, 3, v23")
        a("v_add_u32 v23, s3, v23")
        a("v_and_b32 v20, 15, v18")
        a(f"v_mul_u32_u24 v22, {RS}, v20")
        a("v_lshl_add_u32 v22, v19, 3, v22")
        a("v_add_u32 v22, s3, v22")
        for ft in range(2):
            for q in range(2):
                a(f"ds_read_b64_tr_b16 {vr(24 + 4 * ft + 2 * q, 2)}, v21 offset:{q * 1024 + ft * 32}")
        a("v_mov_b32 v32, 0x3f803f80")
        for r in range(1, 4): a(f"v_mov_b32 v{32 + r}, v32")
        l2e = f32bits(LOG2E)
        a(f"s_mov_b32 s36, {l2e}")
        a(f"s_mov_b32 s37, {l2e}")
        a(f"s_mov_b32 s40, {f32bits(-LOG2E)}")
        a(f"s_mov_b32 s41, {f32bits(-LOG2E)}")
        a("s_waitcnt lgkmcnt(0)")
        a("s_barrier")
        PB, EPB, BP, BM, SS, MX, MN, TM = 128, 160, 192, 208, 224, 36, 44, 52
        T4 = range(4)
        P = lambda t, i: PB + 8 * t + i
        EP = lambda t, i: EPB + 8 * t + i
        for t in T4:
            for ft in range(2):
                a(f"v_mfma_f32_16x16x32_bf16 {vr(PB + 8 * t + 4 * ft, 4)}, {vr(24 + 4 * ft, 4)}, {vr(KB + 4 * t, 4)}, 0")
        a("s_nop 7")
        mx = lambda t: MX + 2 * t
        mn = lambda t: MN + 2 * t
        tm = lambda t: TM + 2 * t
        for t in T4:
            a(f"v_max3_f32 v{mx(t)}, v{P(t,0)}, v{P(t,1)}, v{P(t,2)}")
            a(f"v_min3_f32 v{mn(t)}, v{P(t,0)}, v{P(t,1)}, v{P(t,2)}")
        for i in (3, 5):
            for t in T4:
                a(f"v_max3_f32 v{mx(t)}, v{mx(t)}, v{P(t,i)}, v{P(t,i+1)}")
                a(f"v_min3_f32 v{mn(t)}, v{mn(t)}, v{P(t,i)}, v{P(t,i+1)}")
        for t in T4:
            a(f"v_max_f32 v{mx(t)}, v{mx(t)}, v{P(t,7)}")
            a(f"v_min_f32 v{mn(t)}, v{mn(t)}, v{P(t,7)}")
        for t in T4: a(f"v_sub_f32 v{mn(t)}, 0, v{mn(t)}")
        a("s_nop 1")
        for t in T4: a(f"v_permlane32_swap_b32 v{mx(t)}, v{mn(t)}")
        a("s_nop 1")
        for t in T4: a(f"v_max_f32 v{mx(t)}, v{mx(t)}, v{mn(t)}")
        for t in T4: a(f"v_mov_b32 v{tm(t)}, v{mx(t)}")
        a("s_nop 1")
        for t in T4: a(f"v_permlane16_swap_b32 v{mx(t)}, v{tm(t)}")
        a("s_nop 1")
        for t in T4: a(f"v_max_f32 v{mx(t)}, v{mx(t)}, v{tm(t)}")
        for t in T4: a(f"v_mov_b32 v{mn(t)}, v{mx(t)}")
        a("s_nop 1")
        for t in T4: a(f"v_permlane32_swap_b32 v{mx(t)}, v{mn(t)}")
        a("s_nop 1")
        for t in T4:
            a(f"v_mul_f32 v{mx(t)}, s40, v{mx(t)}")
            a(f"v_mul_f32 v{mn(t)}, s40, v{mn(t)}")
        for t in T4:
            for i in range(0, 8, 2):
                a(f"v_pk_fma_f32 {vr(EP(t,i), 2)}, {vr(P(t,i), 2)}, s[36:37], {vr(mx(t), 2)} op_sel_hi:[1,1,0]")
                a(f"v_pk_fma_f32 {vr(P(t,i), 2)}, {vr(P(t,i), 2)}, s[40:41], {vr(mn(t), 2)} op_sel_hi:[1,1,0]")
        for t in T4:
            for i in range(8):
                a(f"v_exp_f32 v{EP(t,i)}, v{EP(t,i)}")
                a(f"v_exp_f32 v{P(t,i)}, v{P(t,i)}")
        a("s_nop 0")
        for t in T4:
            for k in range(4):
                a(f"v_cvt_pk_bf16_f32 v{BP + 4*t + k}, v{EP(t,2*k)}, v{EP(t,2*k+1)}")
                a(f"v_cvt_pk_bf16_f32 v{BM + 4*t + k}, v{P(t,2*k)}, v{P(t,2*k+1)}")
        a("s_nop 1")
        for t in T4:
            a(f"v_mfma_f32_16x16x32_bf16 {vr(SS + 8 * t, 4)}, {vr(32, 4)}, {vr(BP + 4 * t, 4)}, 0")
            a(f"v_mfma_f32_16x16x32_bf16 {vr(SS + 8 * t + 4, 4)}, {vr(32, 4)}, {vr(BM + 4 * t, 4)}, 0")
        a("s_nop 7")
        for t in T4:
            a(f"v_rcp_f32 v{SS + 8 * t}, v{SS + 8 * t}")
            a(f"v_rcp_f32 v{SS + 8 * t + 4}, v{SS + 8 * t + 4}")
        a("s_nop 0")
        for t in T4:
            for i in range(0, 8, 2):
                a(f"v_pk_mul_f32 {vr(EP(t,i), 2)}, {vr(EP(t,i), 2)}, {vr(SS + 8 * t, 2)} op_sel_hi:[1,0]")
                a(f"v_pk_mul_f32 {vr(P(t,i), 2)}, {vr(P(t,i), 2)}, {vr(SS + 8 * t + 4, 2)} op_sel_hi:[1,0]")
        for t in T4:
            for k in range(4):
                a(f"v_cvt_pk_bf16_f32 v{BP + 4*t + k}, v{EP(t,2*k)}, v{EP(t,2*k+1)}")
                a(f"v_cvt_pk_bf16_f32 v{BM + 4*t + k}, v{P(t,2*k)}, v{P(t,2*k+1)}")
            row = t * 16 * RS
            for ft in range(2):
                a(f"ds_write_b64 v22, {vr(BP + 4 * t + 2 * ft, 2)} offset:{row + ft * 32}")
                a(f"ds_write_b64 v22, {vr(BM + 4 * t + 2 * ft, 2)} offset:{row + 64 + ft * 32}")
        a("s_waitcnt lgkmcnt(0)")
        AF, KV = 128, 160
        for sf in range(4):
            for T in range(2):
                for q in range(2):
                    a(f"ds_read_b64_tr_b16 {vr(AF + (sf * 2 + T) * 4 + 2 * q, 2)}, v23 offset:{(32 * T + 16 * q) * RS + sf * 32}")
        for sf in range(4):
            a(f"s_waitcnt lgkmcnt({(3 - sf) * 4})")
            for T in range(2):
                A = vr(AF + (sf * 2 + T) * 4, 4)
                for dt in range(3):
                    d = vr(KV + (sf * 3 + dt) * 4, 4)
                    B = vr(VB + (dt * 2 + T) * 4, 4) if dt < 2 else vr(32, 4)
                    a(f"v_mfma_f32_16x16x32_bf16 {d}, {A}, {B}, {d if T else 0}")
        XB = 40960
        a(f"s_mul_i32 s3, s{S_WV}, 12288")
        a(f"s_add_u32 s3, s3, {XB}")
        a("v_add_u32 v20, s3, v17")
        a(f"s_and_b32 s4, s{S_WV}, 2")
        a(f"s_mul_i32 s4, s4, 12288")
        a(f"s_mul_i32 s5, s{S_TH}, 6144")
        a("s_add_u32 s4, s4, s5")
        a(f"s_add_u32 s4, s4, {XB}")
        a("v_add_u32 v21, s4, v17")
        a("s_nop 2")
        for k in range(12): a(f"ds_write_b128 v20, {vr(KV + 4 * k, 4)} offset:{k * 1024}")
        a("s_waitcnt lgkmcnt(0)")
        a("s_barrier")
        for w in range(2):
            for k in range(6):
                a(f"ds_read_b128 {vr(64 + (w * 6 + k) * 4, 4)}, v21 offset:{w * 12288 + k * 1024}")
        a(f"s_lshl_b32 s3, s{S_HD}, 4")
        a(f"s_add_u32 s3, s3, s{S_MT}")
        a("s_lshl_b32 s3, s3, 14")
        a(f"s_add_u32 s3, s3, {WS_KVP}")
        a(f"s_lshl_b32 s4, s{S_TH}, 12")
        a("s_add_u32 s4, s4, s3")
        a(f"s_lshl_b32 s6, s{S_TH}, 7")
        a("s_add_u32 s6, s6, s3")
        a("s_add_u32 s6, s6, 8192")
        a("v_lshlrev_b32 v19, 4, v19")
        a("s_waitcnt lgkmcnt(0)")
        for i in range(0, 24, 2):
            a(f"v_pk_add_f32 {vr(64 + i, 2)}, {vr(64 + i, 2)}, {vr(88 + i, 2)}")
        for ft in range(2):
            for dt in range(2):
                a(f"buffer_store_dwordx4 {vr(64 + (ft * 3 + dt) * 4, 4)}, v17, {ws}, s4 offen offset:{(ft * 2 + dt) * 1024} {sm}")
            a(f"buffer_store_dwordx4 {vr(64 + (ft * 3 + 2) * 4, 4)}, v19, {ws}, s6 offen offset:{ft * 64} {sm}")
```

```python
from asmlib import *
from layout import *
from prof import Prof

MARGIN = 90.0
TPS, TPW = 8, 4
STG = TPS * 4096
LDS_MISC = 2 * STG
L_KV, L_Z, L_WP, L_VOTE = 0, 4096, 6144, 8192
LDS_K2 = LDS_MISC + 8192 + 64

V_LANE16, V_T0, V_T1, V_T2, V_T3, V_G, V_RD = 1, 2, 3, 4, 5, 6, 7
VQ, VC, VS, VP, VKF, VVF, VO, VL, VONE = 8, 24, 56, 88, 96, 112, 128, 160, 168
S_WS, S_K, S_V = 8, 12, 16
S_H, S_QB, S_WV, S_SOFF, S_CNT, S_MODE, S_WOFF, S_QG, S_KH = 20, 21, 22, 23, 24, 25, 26, 27, 32

class K2c(Prof):
    V_PROF = 250
    def __init__(self, name, prof=False, store_mod="nt", force_fallback=False, margin=MARGIN, sched=1, bapply=True, prio=0, diag=()):
        self.name, self.prof, self.store_mod = name, prof, store_mod
        self.force_fallback, self.margin, self.sched, self.bapply, self.prio = force_fallback, margin, sched, bapply, prio
        self.diag = set(diag)

    def dma_piece(self, slot, i):
        kv, n = i >> 1, i & 1
        srd_ = S_K if kv == 0 else S_V
        ins = []
        if n == 0:
            ins += [f"s_add_u32 m0, s{S_WOFF}, {slot * STG + kv * (STG // 2)}", "s_nop 0"]
        ins.append(f"buffer_load_dwordx4 v{V_LANE16}, s[{srd_}:{srd_+3}], s{S_SOFF} offen offset:{n * 1024} lds")
        if i == 3:
            ins.append(f"s_add_u32 s{S_SOFF}, s{S_SOFF}, {STG // 2}")
        return ins
    def dma_stage(self, slot):
        return [l for i in range(4) for l in self.dma_piece(slot, i)]

    @staticmethod
    def koff(j): return (j // TPW) * STG + (j % TPW) * 2048
    def rdK(self, j):
        b = VKF + 8 * (j & 1); j %= 2 * TPW
        return [f"ds_read_b128 {vr(b + 4 * st, 4)}, v{V_RD} offset:{self.koff(j) + st * 1024}" for st in range(2)]
    def rdV(self, j):
        b = VVF + 8 * (j & 1); j %= 2 * TPW
        return [f"ds_read_b128 {vr(b + 4 * st, 4)}, v{V_RD} offset:{self.koff(j) + STG // 2 + st * 1024}" for st in range(2)]

    def unit(self, a, j, qt):
        u = 2 * j + qt
        s, sn = VS + 16 * (u & 1), VS + 16 * ((u + 1) & 1)
        jn, qn = (j + (qt == 1), qt ^ 1)
        kn = VKF + 8 * (jn & 1)
        jp, qp = (j - (qt == 0), qt ^ 1)
        v, vp = VVF + 8 * (j & 1), VVF + 8 * (jp & 1)
        e = lambda r: f"v_exp_f32 v{s + r}, v{s + r}"
        c = lambda k: f"v_cvt_pk_bf16_f32 v{VP + k}, v{s + 2 * k}, v{s + 2 * k + 1}"
        O, Op, Lq, Lp = VO + 16 * qt, VO + 16 * qp, VL + 4 * qt, VL + 4 * qp
        Sa = f"v_mfma_f32_32x32x16_bf16 {vr(sn, 16)}, {vr(kn, 4)}, {vr(VQ + 8 * qn, 4)}, {vr(VC + 16 * qn, 16)}"
        Sb = f"v_mfma_f32_32x32x16_bf16 {vr(sn, 16)}, {vr(kn + 4, 4)}, {vr(VQ + 8 * qn + 4, 4)}, {vr(sn, 16)}"
        PVa = f"v_mfma_f32_32x32x16_bf16 {vr(O, 16)}, {vr(v, 4)}, {vr(VP, 4)}, {vr(O, 16)}"
        PVb = f"v_mfma_f32_32x32x16_bf16 {vr(Op, 16)}, {vr(vp + 4, 4)}, {vr(VP + 4, 4)}, {vr(Op, 16)}"
        La = f"v_mfma_f32_16x16x32_bf16 {vr(Lq, 4)}, {vr(VONE, 4)}, {vr(VP, 4)}, {vr(Lq, 4)}"
        Lb = f"v_mfma_f32_16x16x32_bf16 {vr(Lp, 4)}, {vr(VONE, 4)}, {vr(VP + 4, 4)}, {vr(Lp, 4)}"
        rd = self.rdK(j + 1) if qt == 0 else self.rdV(j + 1)
        top = ["s_waitcnt lgkmcnt(0)"]
        jj = j % TPW
        if jj == TPW - 1 and qt == 0:
            top += ["s_waitcnt vmcnt(0)", "s_barrier"]
        k = (2 * jj + qt - 2 * (TPW - 1)) % (2 * TPW)
        dm = []
        if k < 4:
            dm = self.dma_piece((((j + 1) // TPW) + 1) & 1, k)
        r0, r1 = rd[:1], rd[1:]
        if self.sched == 1:
            seq = (top + [e(0)] + r0 + [e(1)] + r1 + [e(2), e(3), Sa, c(0), c(1), e(4), e(5), Lb, e(6), e(7), c(2), c(3), Sb,
                   e(8)] + dm + [e(9), e(10), e(11), PVb, c(4), c(5), e(12), e(13), PVa, e(14), e(15), c(6), c(7), La])
        elif self.sched == 2:
            seq = (top + r0 + r1 + [e(0), e(1), e(2), e(3), Sa, c(0), c(1), e(4), e(5), Lb, e(6), e(7), c(2), c(3), Sb] + dm +
                   [e(8), e(9), e(10), e(11), PVb, c(4), c(5), e(12), e(13), PVa, e(14), e(15), c(6), c(7), La])
        D = self.diag
        if "nord" in D: seq = [l for l in seq if not l.startswith("ds_read")]
        if "noL" in D: seq = [l for l in seq if "16x16x32" not in l]
        for l in seq: a(l)

    def halfmax(self, a, x, t):
        a(f"v_mov_b32 v{t}, v{x}")
        a("s_nop 1")
        a(f"v_permlane32_swap_b32 v{x}, v{t}")
        a("s_nop 1")
        a(f"v_max_f32 v{x}, v{x}, v{t}")

    NT = 2
    def b_loads(self, a):
        ws = f"s[{S_WS}:{S_WS+3}]"
        a(f"s_lshl_b32 s6, s{S_H}, 18")
        a(f"s_add_u32 s6, s6, {WS_KVP}")
        a(f"s_lshl_b32 s7, s{S_WV}, 10")
        a("s_add_u32 s7, s7, s6")
        a(f"v_lshrrev_b32 v{V_T0}, 4, v{V_T1}")
        a(f"v_lshlrev_b32 v{V_T0}, 4, v{V_T0}")
        a(f"s_and_b32 s3, s{S_WV}, 3")
        a("s_lshl_b32 s3, s3, 6")
        a("s_add_u32 s3, s3, s6")
        a("s_add_u32 s3, s3, 8192")
        for b in range(NKVP):
            a(f"buffer_load_dwordx4 {vr(24 + 8 * b, 4)}, v{V_LANE16}, {ws}, s7 offen")
            a(f"buffer_load_dwordx4 {vr(24 + 8 * b + 4, 4)}, v{V_T0}, {ws}, s3 offen")
            if b < NKVP - 1:
                a(f"s_add_u32 s7, s7, {KVP_STRIDE}")
                a(f"s_add_u32 s3, s3, {KVP_STRIDE}")
        a(f"s_lshl_b32 s6, s{S_QB}, 4")
        a(f"s_lshl_b32 s7, s{S_WV}, 1")
        a("s_add_u32 s6, s6, s7")
        a("s_lshl_b32 s7, s6, 10")
        a(f"s_lshl_b32 s3, s{S_H}, 17")
        a("s_add_u32 s7, s7, s3")
        a(f"s_add_u32 s7, s7, {WS_QB}")
        for t in range(self.NT):
            a(f"buffer_load_dwordx4 {vr(160 + 4 * t, 4)}, v{V_LANE16}, {ws}, s7 offen offset:{t * 1024}")
        a("s_lshl_b32 s7, s6, 6")
        a(f"s_add_u32 s7, s7, {WS_G}")
        a(f"v_and_b32 v{V_T0}, 15, v{V_T1}")
        a(f"v_lshlrev_b32 v{V_T0}, 2, v{V_T0}")
        for t in range(self.NT):
            a(f"buffer_load_dword v{168 + t}, v{V_T0}, {ws}, s7 offen offset:{t * 64}")
        a(f"s_cmp_ge_u32 s{S_WV}, 2")
        a(f"s_cbranch_scc1 {self.name}_nowp")
        a(f"s_lshl_b32 s6, s{S_H}, 11")
        a(f"s_lshl_b32 s7, s{S_WV}, 10")
        a("s_add_u32 s6, s6, s7")
        a(f"s_add_u32 m0, s7, {LDS_MISC + L_WP}")
        a("s_nop 0")
        a(f"buffer_load_dwordx4 v{V_LANE16}, s[28:31], s6 offen lds")
        a.label(f"{self.name}_nowp")

    def b_apply(self, a):
        ws = f"s[{S_WS}:{S_WS+3}]"
        NT = self.NT
        for b in range(1, NKVP):
            for r in range(0, 8, 2):
                a(f"v_pk_add_f32 {vr(24 + r, 2)}, {vr(24 + r, 2)}, {vr(24 + 8 * b + r, 2)}")
        for k in range(4):
            a(f"v_cvt_pk_bf16_f32 v{36 + k}, v{24 + 2 * k}, v{25 + 2 * k}")
        a(f"v_lshlrev_b32 v{V_T0}, 3, v{V_T1}")
        a(f"v_add_u32 v{V_T0}, {LDS_MISC}, v{V_T0}")
        a(f"s_lshl_b32 s6, s{S_WV}, 9")
        a(f"v_add_u32 v{V_T2}, s6, v{V_T0}")
        a(f"ds_write_b64 v{V_T2}, {vr(36, 2)} offset:{L_KV}")
        a(f"s_and_b32 s6, s{S_WV}, 3")
        a(f"s_lshl_b32 s6, s6, 9")
        a(f"v_add_u32 v{V_T2}, s6, v{V_T0}")
        a(f"ds_write_b64 v{V_T2}, {vr(38, 2)} offset:{L_Z}")
        a("s_waitcnt lgkmcnt(0)")
        a("s_barrier")
        for sg in range(2):
            for dt in range(2):
                for ft in range(2):
                    t = (sg * 2 + ft) * 2 + dt
                    a(f"ds_read_b64 {vr(24 + (sg * 2 + dt) * 4 + 2 * ft, 2)}, v{V_T0} offset:{L_KV + t * 512}")
            for ft in range(2):
                a(f"ds_read_b64 {vr(40 + sg * 4 + 2 * ft, 2)}, v{V_T0} offset:{L_Z + (sg * 2 + ft) * 512}")
        a(f"v_lshrrev_b32 v{V_T2}, 4, v{V_T1}")
        a(f"v_bfe_u32 v{V_T3}, v{V_T1}, 2, 2")
        a(f"v_lshl_add_u32 v{V_T2}, v{V_T2}, 2, v{V_T3}")
        a(f"v_lshlrev_b32 v{V_T2}, 6, v{V_T2}")
        a(f"v_and_b32 v{V_T3}, 3, v{V_T1}")
        a(f"v_lshl_add_u32 v{V_T2}, v{V_T3}, 3, v{V_T2}")
        a(f"v_add_u32 v{V_T2}, {LDS_MISC}, v{V_T2}")
        for ft in range(2):
            for q in range(2):
                a(f"ds_read_b64_tr_b16 {vr(48 + 4 * ft + 2 * q, 2)}, v{V_T2} offset:{L_WP + q * 1024 + ft * 32}")
        a(f"v_mov_b32 v56, 0x3f803f80")
        for r in range(1, 4): a(f"v_mov_b32 v{56 + r}, v56")
        a("s_waitcnt lgkmcnt(0)")
        for t in range(NT):
            for ft in range(2):
                a(f"v_mfma_f32_16x16x32_bf16 {vr(64 + 8 * t + 4 * ft, 4)}, {vr(48 + 4 * ft, 4)}, {vr(160 + 4 * t, 4)}, 0")
        a("s_nop 7")
        P = lambda t, i: 64 + 8 * t + i
        MX, MN, TM = 96, 100, 104
        T = range(NT)
        for t in T:
            a(f"v_max3_f32 v{MX+2*t}, v{P(t,0)}, v{P(t,1)}, v{P(t,2)}")
            a(f"v_min3_f32 v{MN+2*t}, v{P(t,0)}, v{P(t,1)}, v{P(t,2)}")
        for i in (3, 5):
            for t in T:
                a(f"v_max3_f32 v{MX+2*t}, v{MX+2*t}, v{P(t,i)}, v{P(t,i+1)}")
                a(f"v_min3_f32 v{MN+2*t}, v{MN+2*t}, v{P(t,i)}, v{P(t,i+1)}")
        for t in T:
            a(f"v_max_f32 v{MX+2*t}, v{MX+2*t}, v{P(t,7)}")
            a(f"v_min_f32 v{MN+2*t}, v{MN+2*t}, v{P(t,7)}")
        for t in T: a(f"v_sub_f32 v{MN+2*t}, 0, v{MN+2*t}")
        a("s_nop 1")
        for t in T: a(f"v_permlane32_swap_b32 v{MX+2*t}, v{MN+2*t}")
        a("s_nop 1")
        for t in T: a(f"v_max_f32 v{MX+2*t}, v{MX+2*t}, v{MN+2*t}")
        for t in T: a(f"v_mov_b32 v{TM+2*t}, v{MX+2*t}")
        a("s_nop 1")
        for t in T: a(f"v_permlane16_swap_b32 v{MX+2*t}, v{TM+2*t}")
        a("s_nop 1")
        for t in T: a(f"v_max_f32 v{MX+2*t}, v{MX+2*t}, v{TM+2*t}")
        for t in T: a(f"v_mov_b32 v{MN+2*t}, v{MX+2*t}")
        a("s_nop 1")
        for t in T: a(f"v_permlane32_swap_b32 v{MX+2*t}, v{MN+2*t}")
        a("s_nop 1")
        EP = lambda t, i: 176 + 8 * t + i
        a(f"s_mov_b32 s36, {f32bits(LOG2E)}")
        a(f"s_mov_b32 s37, {f32bits(LOG2E)}")
        a(f"s_mov_b32 s38, {f32bits(-LOG2E)}")
        a(f"s_mov_b32 s39, {f32bits(-LOG2E)}")
        for t in T:
            a(f"v_mul_f32 v{MX+2*t}, s38, v{MX+2*t}")
            a(f"v_mul_f32 v{MN+2*t}, s38, v{MN+2*t}")
        for t in T:
            for i in range(0, 8, 2):
                a(f"v_pk_fma_f32 {vr(EP(t,i), 2)}, {vr(P(t,i), 2)}, s[36:37], {vr(MX+2*t, 2)} op_sel_hi:[1,1,0]")
                a(f"v_pk_fma_f32 {vr(P(t,i), 2)}, {vr(P(t,i), 2)}, s[38:39], {vr(MN+2*t, 2)} op_sel_hi:[1,1,0]")
        for t in T:
            for i in range(8):
                a(f"v_exp_f32 v{EP(t,i)}, v{EP(t,i)}")
                a(f"v_exp_f32 v{P(t,i)}, v{P(t,i)}")
        BP, BM = 96, 112
        a("s_nop 0")
        for t in T:
            for k in range(4):
                a(f"v_cvt_pk_bf16_f32 v{BP + 4*t + k}, v{EP(t,2*k)}, v{EP(t,2*k+1)}")
                a(f"v_cvt_pk_bf16_f32 v{BM + 4*t + k}, v{P(t,2*k)}, v{P(t,2*k+1)}")
        a("s_nop 1")
        for t in T:
            R = 176 + 32 * t
            bp, bm = vr(BP + 4 * t, 4), vr(BM + 4 * t, 4)
            for dt in range(2):
                a(f"v_mfma_f32_16x16x32_bf16 {vr(R + 4 * dt, 4)}, {vr(24 + 4 * dt, 4)}, {bp}, 0")
                a(f"v_mfma_f32_16x16x32_bf16 {vr(R + 8 + 4 * dt, 4)}, {vr(32 + 4 * dt, 4)}, {bm}, 0")
            a(f"v_mfma_f32_16x16x32_bf16 {vr(R + 16, 4)}, {vr(40, 4)}, {bp}, 0")
            a(f"v_mfma_f32_16x16x32_bf16 {vr(R + 20, 4)}, {vr(44, 4)}, {bm}, 0")
            a(f"v_mfma_f32_16x16x32_bf16 {vr(R + 24, 4)}, {vr(56, 4)}, {bp}, 0")
            a(f"v_mfma_f32_16x16x32_bf16 {vr(R + 28, 4)}, {vr(56, 4)}, {bm}, 0")
        a("s_nop 7")
        for t in T:
            R = 176 + 32 * t
            a(f"v_rcp_f32 v{R + 24}, v{R + 24}")
            a(f"v_rcp_f32 v{R + 28}, v{R + 28}")
        a("s_nop 0")
        for t in T:
            R = 176 + 32 * t
            a(f"v_mul_f32 v{R + 16}, v{R + 16}, v{R + 24}")
            a(f"v_sub_f32 v{R + 17}, 1.0, v{168 + t}")
            a(f"v_fma_f32 v{R + 16}, v{R + 20}, v{R + 28}, v{R + 16}")
            a(f"v_add_f32 v{R + 16}, {f32bits(1e-6)}, v{R + 16}")
        for t in T:
            a(f"v_rcp_f32 v{176 + 32 * t + 16}, v{176 + 32 * t + 16}")
        a("s_nop 0")
        for t in T:
            R = 176 + 32 * t
            a(f"v_mul_f32 v{R + 16}, v{R + 16}, v{R + 17}")
            a(f"v_mul_f32 v{R + 24}, v{R + 24}, v{R + 16}")
            a(f"v_mul_f32 v{R + 28}, v{R + 28}, v{R + 16}")
        for t in T:
            R = 176 + 32 * t
            for i in range(8): a(f"v_mul_f32 v{R + i}, v{R + i}, v{R + 24}")
            for i in range(8): a(f"v_fma_f32 v{R + i}, v{R + 8 + i}, v{R + 28}, v{R + i}")
        for t in T:
            R = 176 + 32 * t
            for k in range(4):
                a(f"v_cvt_pk_bf16_f32 v{R + 20 + k}, v{R + 2 * k}, v{R + 2 * k + 1}")
            a(f"s_lshl_b32 s6, s{S_QB}, 4")
            a(f"s_lshl_b32 s7, s{S_WV}, 1")
            a("s_add_u32 s6, s6, s7")
            a(f"s_add_u32 s6, s6, {t}")
            a("s_lshl_b32 s6, s6, 10")
            a(f"s_lshl_b32 s7, s{S_H}, 17")
            a("s_add_u32 s6, s6, s7")
            a(f"s_add_u32 s6, s6, {WS_O + 32 * 131072}")
            a(f"buffer_store_dwordx4 {vr(R + 20, 4)}, v{V_LANE16}, {ws}, s6 offen {self.store_mod}")

    def gen(self):
        a = Asm()
        n = self.name
        ws = f"s[{S_WS}:{S_WS+3}]"
        a("s_cmp_ge_u32 s2, 256")
        a(f"s_cbranch_scc1 {n}_end")
        self.pstamp(a, 0)
        a("s_load_dwordx2 s[4:5], s[0:1], 80")
        a("s_load_dwordx2 s[34:35], s[0:1], 40")
        a("s_and_b32 s3, s2, 7")
        a("s_lshr_b32 s6, s2, 3")
        a(f"s_lshl_b32 s{S_H}, s3, 2")
        a("s_lshr_b32 s7, s6, 3")
        a(f"s_add_u32 s{S_H}, s{S_H}, s7")
        a(f"s_and_b32 s{S_QB}, s6, 7")
        a("v_lshrrev_b32 v2, 6, v0")
        a(f"v_and_b32 v{V_T1}, 63, v0")
        a(f"v_lshlrev_b32 v{V_LANE16}, 4, v{V_T1}")
        a(f"v_readfirstlane_b32 s{S_WV}, v2")
        a("s_waitcnt lgkmcnt(0)")
        srd(a, S_WS, 4, 0x10000000)
        srd(a, 28, 34, 65536)
        a(f"s_lshl_b32 s3, s{S_H}, 17")
        for S, off in ((S_K, WS_KA), (S_V, WS_VA)):
            a(f"s_add_u32 s6, s3, {off}")
            a(f"s_add_u32 s{S}, s4, s6")
            a(f"s_addc_u32 s{S+1}, s5, 0")
            a(f"s_and_b32 s{S+1}, s{S+1}, 0xffff")
            a(f"s_mov_b32 s{S+2}, 131072")
            a(f"s_mov_b32 s{S+3}, 0x00020000")
        a(f"s_lshl_b32 s{S_WOFF}, s{S_WV}, 11")
        a(f"s_and_b32 s{S_QG}, s{S_WV}, 3")
        a(f"s_lshr_b32 s{S_KH}, s{S_WV}, 2")
        a(f"s_lshl_b32 s6, s{S_KH}, 13")
        a(f"v_add_u32 v{V_RD}, s6, v{V_LANE16}")
        a(f"s_lshl_b32 s6, s{S_QB}, 3")
        a(f"s_lshl_b32 s7, s{S_QG}, 1")
        a("s_add_u32 s6, s6, s7")
        a("s_lshl_b32 s7, s6, 11")
        a(f"s_lshl_b32 s3, s{S_H}, 17")
        a("s_add_u32 s7, s7, s3")
        a(f"s_add_u32 s7, s7, {WS_QA}")
        if self.bapply:
            self.b_loads(a)
            a(f"s_lshl_b32 s6, s{S_QB}, 3")
            a(f"s_lshl_b32 s7, s{S_QG}, 1")
            a("s_add_u32 s6, s6, s7")
            a("s_lshl_b32 s7, s6, 11")
            a(f"s_lshl_b32 s3, s{S_H}, 17")
            a("s_add_u32 s7, s7, s3")
            a(f"s_add_u32 s7, s7, {WS_QA}")
        for i in range(4):
            a(f"buffer_load_dwordx4 {vr(VQ + 4 * i, 4)}, v{V_LANE16}, {ws}, s7 offen offset:{i * 1024}")
        a(f"s_add_u32 s6, s6, s{S_KH}")
        a("s_lshl_b32 s7, s6, 7")
        a(f"s_add_u32 s7, s7, {WS_G}")
        a(f"v_and_b32 v{V_T0}, 31, v{V_T1}")
        a(f"v_lshlrev_b32 v{V_T0}, 2, v{V_T0}")
        a(f"buffer_load_dword v{V_G}, v{V_T0}, {ws}, s7 offen")
        a(f"s_mov_b32 s{S_MODE}, 0")
        a(f"s_mov_b32 s{S_SOFF}, s{S_WOFF}")
        for l in self.dma_stage(0): a(l)
        self.pstamp(a, 1)
        if self.bapply:
            a("s_waitcnt vmcnt(9)")
            a("s_barrier")
            self.pstamp(a, 2)
            self.b_apply(a)
        self.pstamp(a, 3)
        a(f"v_lshrrev_b32 v{V_T0}, 4, v{V_T1}")
        a(f"v_lshrrev_b32 v{V_T2}, 2, v{V_T1}")
        a(f"v_xor_b32 v{V_T0}, v{V_T0}, v{V_T2}")
        a(f"v_and_b32 v{V_T0}, 1, v{V_T0}")
        a(f"v_mov_b32 v{V_T2}, 0x3f803f80")
        a(f"v_cmp_eq_u32 vcc, 0, v{V_T0}")
        a("s_nop 1")
        a(f"v_cndmask_b32 v{VONE}, 0, v{V_T2}, vcc")
        for r in range(1, 4): a(f"v_mov_b32 v{VONE + r}, v{VONE}")
        a(f"s_waitcnt vmcnt({self.NT if self.bapply else 0})")
        a(f"s_branch {n}_first")
        a.label(f"{n}_restart")
        a(f"s_mov_b32 s{S_SOFF}, s{S_WOFF}")
        for l in self.dma_stage(0): a(l)
        a("s_waitcnt vmcnt(0)")
        a.label(f"{n}_first")
        for r in range(32): a(f"v_mov_b32 v{VO + r}, 0")
        for r in range(8): a(f"v_mov_b32 v{VL + r}, 0")
        for r in range(8): a(f"v_mov_b32 v{VP + r}, 0")
        for r in range(4): a(f"v_mov_b32 v{VVF + 8 + 4 + r}, 0")
        a("s_barrier")
        for l in self.dma_piece(1, 0) + self.dma_piece(1, 1): a(l)
        a(f"s_cmp_lg_u32 s{S_MODE}, 0")
        a(f"s_cbranch_scc1 {n}_havemax")
        a(f"ds_read_b128 {vr(VKF, 4)}, v{V_LANE16}")
        a(f"ds_read_b128 {vr(VKF + 4, 4)}, v{V_LANE16} offset:1024")
        a("s_waitcnt lgkmcnt(0)")
        for qt in range(2):
            s = VS + 16 * qt
            a(f"v_mfma_f32_32x32x16_bf16 {vr(s, 16)}, {vr(VKF, 4)}, {vr(VQ + 8 * qt, 4)}, 0")
            a(f"v_mfma_f32_32x32x16_bf16 {vr(s, 16)}, {vr(VKF + 4, 4)}, {vr(VQ + 8 * qt + 4, 4)}, {vr(s, 16)}")
        a("s_nop 15")
        for qt in range(2):
            s, x = VS + 16 * qt, V_T0 + 2 * qt
            a(f"v_max3_f32 v{x}, v{s}, v{s + 1}, v{s + 2}")
            for r in range(3, 15, 2):
                a(f"v_max3_f32 v{x}, v{x}, v{s + r}, v{s + r + 1}")
            a(f"v_max_f32 v{x}, v{x}, v{s + 15}")
        for qt in range(2):
            x = V_T0 + 2 * qt
            self.halfmax(a, x, V_T3)
            a(f"v_add_f32 v{x}, {f32bits(self.margin)}, v{x}")
            a(f"v_sub_f32 v{VC + 16 * qt}, 0, v{x}")
            for r in range(1, 16): a(f"v_mov_b32 v{VC + 16 * qt + r}, v{VC + 16 * qt}")
        a.label(f"{n}_havemax")
        for l in self.rdK(0) + self.rdV(0): a(l)
        a("s_waitcnt lgkmcnt(0)")
        a(f"v_mfma_f32_32x32x16_bf16 {vr(VS, 16)}, {vr(VKF, 4)}, {vr(VQ, 4)}, {vr(VC, 16)}")
        a(f"v_mfma_f32_32x32x16_bf16 {vr(VS, 16)}, {vr(VKF + 4, 4)}, {vr(VQ + 4, 4)}, {vr(VS, 16)}")
        a("s_nop 7")
        a(f"s_mov_b32 s{S_CNT}, {32 // (2 * TPW)}")
        if self.prio:
            a(f"s_cmp_ge_u32 s{S_WV}, 4")
            a(f"s_cbranch_scc0 {n}_noprio")
            a("s_setprio 1")
            a.label(f"{n}_noprio")
        self.pstamp(a, 4)
        a("s_nop 3")
        a(".p2align 6")
        a.label(f"{n}_loop")
        for j in range(2 * TPW):
            for qt in range(2):
                self.unit(a, j, qt)
        a(f"s_sub_u32 s{S_CNT}, s{S_CNT}, 1")
        a(f"s_cmp_lg_u32 s{S_CNT}, 0")
        a(f"s_cbranch_scc1 {n}_loop")
        a("s_nop 1")
        a(f"v_mfma_f32_32x32x16_bf16 {vr(VO + 16, 16)}, {vr(VVF + 8 + 4, 4)}, {vr(VP + 4, 4)}, {vr(VO + 16, 16)}")
        a(f"v_mfma_f32_16x16x32_bf16 {vr(VL + 4, 4)}, {vr(VONE, 4)}, {vr(VP + 4, 4)}, {vr(VL + 4, 4)}")
        if self.prio: a("s_setprio 0")
        self.pstamp(a, 5)
        a("s_waitcnt vmcnt(0) lgkmcnt(0)")
        a("s_nop 15")
        a(f"s_mov_b32 s3, 0")
        if not self.diag:
            a(f"v_mul_f32 v{V_T0}, {f32bits(256.0)}, v{VL}")
            a(f"v_mul_f32 v{V_T2}, {f32bits(256.0)}, v{VL + 4}")
            a(f"v_mul_f32 v{V_T0}, 0, v{V_T0}")
            a(f"v_fma_f32 v{V_T0}, v{V_T2}, 0, v{V_T0}")
            for r in range(32): a(f"v_fma_f32 v{V_T0}, v{VO + r}, 0, v{V_T0}")
            if self.force_fallback:
                a(f"v_mov_b32 v{V_T0}, 0x7fc00000")
            a(f"v_cmp_u_f32 vcc, v{V_T0}, v{V_T0}")
            a(f"s_or_b32 s3, vcc_lo, vcc_hi")
            a(f"s_cmp_lg_u32 s3, 0")
            a(f"s_cselect_b32 s3, 1, 0")
        a(f"v_mov_b32 v{V_T0}, s3")
        a(f"s_lshl_b32 s6, s{S_WV}, 2")
        a(f"s_add_u32 s6, s6, {LDS_MISC + L_VOTE}")
        a(f"v_mov_b32 v{V_T2}, s6")
        a(f"ds_write_b32 v{V_T2}, v{V_T0}")
        a("s_waitcnt lgkmcnt(0)")
        a("s_barrier")
        a(f"s_mul_i32 s6, s{S_WV}, {5 * 1024}")
        a(f"v_add_u32 v{V_T2}, s6, v{V_LANE16}")
        a(f"s_cmp_eq_u32 s{S_KH}, 0")
        a(f"s_cbranch_scc1 {n}_give1")
        for qt, lab in ((0, ""), (1, f"{n}_give1")):
            if lab: a.label(lab)
            for k in range(4):
                a(f"ds_write_b128 v{V_T2}, {vr(VO + 16 * qt + 4 * k, 4)} offset:{k * 1024}")
            a(f"ds_write_b128 v{V_T2}, {vr(VL + 4 * qt, 4)} offset:4096")
            if qt == 0: a(f"s_branch {n}_gave")
        a.label(f"{n}_gave")
        a(f"v_mov_b32 v{V_T0}, {LDS_MISC + L_VOTE}")
        a(f"ds_read_b128 v[176:179], v{V_T0}")
        a(f"ds_read_b128 v[180:183], v{V_T0} offset:16")
        a("s_waitcnt lgkmcnt(0)")
        a("v_or3_b32 v176, v176, v177, v178")
        a("v_or3_b32 v176, v176, v179, v180")
        a("v_or3_b32 v176, v176, v181, v182")
        a("v_or_b32 v176, v176, v183")
        a("s_barrier")
        a("v_readfirstlane_b32 s3, v176")
        a(f"s_sub_u32 s6, 1, s{S_MODE}")
        a("s_and_b32 s3, s3, s6")
        a("s_cmp_eq_u32 s3, 0")
        a(f"s_cbranch_scc1 {n}_fin")
        a("s_barrier")
        a(f"s_mov_b32 s{S_SOFF}, s{S_WOFF}")
        a(f"s_mov_b32 s{S_CNT}, {64 // TPS}")
        a(f"v_mov_b32 v{V_T0}, 0xff800000")
        a(f"v_mov_b32 v{V_T2}, 0xff800000")
        a.label(f"{n}_maxloop")
        for l in self.dma_stage(0): a(l)
        a("s_waitcnt vmcnt(0)")
        a("s_barrier")
        for j in range(TPS):
            a(f"ds_read_b128 {vr(VKF, 4)}, v{V_LANE16} offset:{j * 2048}")
            a(f"ds_read_b128 {vr(VKF + 4, 4)}, v{V_LANE16} offset:{j * 2048 + 1024}")
            a("s_waitcnt lgkmcnt(0)")
            for qt in range(2):
                s = VS + 16 * qt
                a(f"v_mfma_f32_32x32x16_bf16 {vr(s, 16)}, {vr(VKF, 4)}, {vr(VQ + 8 * qt, 4)}, 0")
                a(f"v_mfma_f32_32x32x16_bf16 {vr(s, 16)}, {vr(VKF + 4, 4)}, {vr(VQ + 8 * qt + 4, 4)}, {vr(s, 16)}")
            a("s_nop 15")
            for qt in range(2):
                s, x = VS + 16 * qt, V_T0 + 2 * qt
                for r in range(0, 16, 2):
                    a(f"v_max3_f32 v{x}, v{x}, v{s + r}, v{s + r + 1}")
        a("s_barrier")
        a(f"s_sub_u32 s{S_CNT}, s{S_CNT}, 1")
        a(f"s_cmp_lg_u32 s{S_CNT}, 0")
        a(f"s_cbranch_scc1 {n}_maxloop")
        for qt in range(2):
            x = V_T0 + 2 * qt
            self.halfmax(a, x, V_T3)
            a(f"v_sub_f32 v{VC + 16 * qt}, 0, v{x}")
            for r in range(1, 16): a(f"v_mov_b32 v{VC + 16 * qt + r}, v{VC + 16 * qt}")
        a(f"s_mov_b32 s{S_MODE}, 1")
        a(f"s_branch {n}_restart")
        a.label(f"{n}_fin")
        a(f"s_xor_b32 s6, s{S_WV}, 4")
        a(f"s_mul_i32 s6, s6, {5 * 1024}")
        a(f"v_add_u32 v{V_T2}, s6, v{V_LANE16}")
        for k in range(4):
            a(f"ds_read_b128 {vr(VS + 4 * k, 4)}, v{V_T2} offset:{k * 1024}")
        a(f"ds_read_b128 {vr(VS + 16, 4)}, v{V_T2} offset:4096")
        a(f"s_cmp_eq_u32 s{S_KH}, 0")
        a(f"s_cbranch_scc1 {n}_keep0")
        for r in range(16): a(f"v_mov_b32 v{VO + r}, v{VO + 16 + r}")
        a(f"v_mov_b32 v{VL}, v{VL + 4}")
        a.label(f"{n}_keep0")
        a(f"v_and_b32 v{V_T1}, 63, v0")
        a(f"v_bfe_u32 v{V_T0}, v{V_T1}, 4, 1")
        a(f"v_lshlrev_b32 v{V_T0}, 10, v{V_T0}")
        a(f"v_lshrrev_b32 v{V_T2}, 5, v{V_T1}")
        a(f"v_lshl_add_u32 v{V_T0}, v{V_T2}, 8, v{V_T0}")
        a(f"v_and_b32 v{V_T2}, 15, v{V_T1}")
        a(f"v_lshl_add_u32 v{V_T0}, v{V_T2}, 4, v{V_T0}")
        a("s_waitcnt lgkmcnt(0)")
        a(f"v_add_f32 v{VL}, v{VL}, v{VS + 16}")
        a(f"v_rcp_f32 v{V_T2}, v{VL}")
        for r in range(16): a(f"v_add_f32 v{VO + r}, v{VO + r}, v{VS + r}")
        a(f"v_mul_f32 v{V_T2}, v{V_T2}, v{V_G}")
        for r in range(16): a(f"v_mul_f32 v{VO + r}, v{V_T2}, v{VO + r}")
        for k in range(8): a(f"v_cvt_pk_bf16_f32 v{VS + k}, v{VO + 2 * k}, v{VO + 2 * k + 1}")
        a(f"s_lshl_b32 s6, s{S_QB}, 3")
        a(f"s_lshl_b32 s7, s{S_QG}, 1")
        a("s_add_u32 s6, s6, s7")
        a(f"s_add_u32 s6, s6, s{S_KH}")
        a("s_lshl_b32 s6, s6, 11")
        a(f"s_lshl_b32 s7, s{S_H}, 17")
        a("s_add_u32 s6, s6, s7")
        a(f"s_add_u32 s6, s6, {WS_O}")
        a(f"buffer_store_dwordx4 {vr(VS, 4)}, v{V_T0}, {ws}, s6 offen {self.store_mod}")
        a(f"buffer_store_dwordx4 {vr(VS + 4, 4)}, v{V_T0}, {ws}, s6 offen offset:512 {self.store_mod}")
        if self.prof:
            a("s_waitcnt vmcnt(0)")
            self.pstamp(a, 6)
            self.pflush(a, 1, 8, S_WV, ws)
        a.label(f"{n}_end")
        a("s_endpgm")
        return kernel_header(n) + a.text() + kernel_desc(n, 256, 256)
```

```python
from asmlib import *
from layout import *
from prof import Prof

NSLOT, SLOT = 8, 16384
LDS_K3 = NSLOT * SLOT
OD = 4
V_LANE16, V_WO, V_WRA, V_WRB = 1, 2, 4, 8
FW, ACC, FO = 16, 48, 80
S_WS, S_WA, S_WB, S_OUT, S_WC = 8, 12, 16, 20, 24
S_MT, S_NT, S_WV, S_KH, S_TG, S_SOO, S_SOW, S_DST, S_CNT, S_RD, S_DL, S_ISW, S_ISO, S_ROT, S_OB = range(28, 43)

class K3b(Prof):
    V_PROF = 200
    def __init__(self, name, prof=False, store_mod="sc1", rot=False, wd=3, od=2, diag=()):
        self.name, self.prof, self.store_mod, self.rot = name, prof, store_mod, rot
        self.wd, self.od = wd, od
        self.diag = set(diag)

    def stage_index(self, iss, dst_sow, dst_part):
        return [f"s_add_u32 s3, s{iss}, s{S_ROT}", "s_and_b32 s3, s3, 7", f"s_lshr_b32 s{dst_part}, s{iss}, 3"]

    def dma_w(self):
        return (self.stage_index(S_ISW, S_SOW, 50) +
                [f"s_lshl_b32 s{S_SOW}, s3, 18", "s_cmp_eq_u32 s50, 0",
                 f"s_cselect_b32 s{S_WC}, s{S_WA}, s{S_WB}", f"s_cselect_b32 s{S_WC+1}, s{S_WA+1}, s{S_WB+1}",
                 f"s_lshl_b32 s3, s{S_WV}, 11", f"s_add_u32 m0, s{S_DST}, s3", f"s_add_u32 s{S_ISW}, s{S_ISW}, 1",
                 f"buffer_load_dwordx4 v{V_WO}, s[{S_WC}:{S_WC+3}], s{S_SOW} offen lds",
                 f"s_add_u32 s{S_DST}, s{S_DST}, {SLOT}",
                 f"buffer_load_dwordx4 v{V_WO + 1}, s[{S_WC}:{S_WC+3}], s{S_SOW} offen offset:1024 lds",
                 f"s_cmp_eq_u32 s{S_DST}, {NSLOT * SLOT}", f"s_cselect_b32 s{S_DST}, 0, s{S_DST}"])

    def load_o(self, buf):
        r = (self.stage_index(S_ISO, S_SOO, 50) +
             ["s_lshl_b32 s3, s3, 19", "s_lshl_b32 s50, s50, 22", "s_add_u32 s3, s3, s50", f"s_add_u32 s{S_SOO}, s3, s{S_OB}",
              f"s_add_u32 s51, s{S_SOO}, {2 * 131072}", f"s_add_u32 s{S_ISO}, s{S_ISO}, 1"])
        for b in range(2):
            so = S_SOO if b == 0 else 51
            r.append(f"buffer_load_dwordx4 {vr(FO + 16 * buf + 8 * b, 4)}, v{V_LANE16}, s[{S_WS}:{S_WS+3}], s{so} offen")
            r.append(f"buffer_load_dwordx4 {vr(FO + 16 * buf + 8 * b + 4, 4)}, v{V_LANE16}, s[{S_WS}:{S_WS+3}], s{so} offen offset:1024")
        return r

    def rd_w(self, part, b):
        wr = V_WRA if part == 0 else V_WRB
        qoff = 1024 if part == 0 else 2048
        if "nord" in self.diag: return []
        return [f"ds_read_b64_tr_b16 {vr(FW + 16 * b + 4 * ct + 2 * q, 2)}, v{wr + ct} offset:{b * 8192 + q * qoff}" for ct in range(4) for q in range(2)]

    def mfmas(self, buf, b):
        if "nomfma" in self.diag: return ["s_nop 0"] * 8
        return [f"v_mfma_f32_16x16x32_bf16 {vr(ACC + (i * 4 + ct) * 4, 4)}, {vr(FW + 16 * b + 4 * ct, 4)}, {vr(FO + 16 * buf + 8 * b + 4 * i, 4)}, {vr(ACC + (i * 4 + ct) * 4, 4)}"
                for ct in range(4) for i in range(2)]

    def adv(self):
        r = [f"s_add_u32 s{S_RD}, s{S_RD}, 1", f"s_cmp_eq_u32 s{S_RD}, {NSLOT}", f"s_cselect_b32 s{S_DL}, s44, {SLOT}", f"s_cselect_b32 s{S_RD}, 0, s{S_RD}"]
        return r + [f"v_add_u32 v{x + c}, s{S_DL}, v{x + c}" for x in (V_WRA, V_WRB) for c in range(4)]

    def stage(self, a, n, part, part_next, issue_w, issue_o, vm_mid, vm_top, last=False):
        buf = n % self.od
        a(f"s_waitcnt vmcnt({vm_top}) lgkmcnt(0)")
        fill = [(i, [r]) for i, r in enumerate(self.rd_w(part, 1))]
        for l in interleave(self.mfmas(buf, 0), fill): a(l)
        a("s_waitcnt lgkmcnt(0)")
        m = self.mfmas(buf, 1)
        if last:
            for l in m: a(l)
            return
        fill = [(0, self.adv() + [f"s_waitcnt vmcnt({vm_mid})"] + ([] if "nobar" in self.diag else ["s_barrier"]))]
        rd = self.rd_w(part_next, 0)
        for i, r in enumerate(rd): fill.append((1 + i * 6 // 8, [r]))
        tail = (self.dma_w() if issue_w else [])
        fill.append((7, tail))
        for l in interleave(m, fill): a(l)
        if issue_o:
            for l in self.load_o(buf):
                if "noo" in self.diag and l.startswith("buffer_load"): continue
                a(l)

    def gen(self):
        a = Asm()
        n = self.name
        a("s_cmp_ge_u32 s2, 256")
        a(f"s_cbranch_scc1 {n}_end")
        self.pstamp(a, 0)
        a("s_load_dwordx2 s[4:5], s[0:1], 80")
        a("s_load_dwordx2 s[6:7], s[0:1], 16")
        a("s_load_dwordx2 s[46:47], s[0:1], 48")
        a("s_load_dwordx2 s[48:49], s[0:1], 64")
        a("s_and_b32 s3, s2, 7")
        a("s_lshr_b32 s50, s2, 3")
        a("s_lshr_b32 s51, s3, 1")
        a("s_lshl_b32 s51, s51, 2")
        a("s_and_b32 s52, s50, 3")
        a(f"s_add_u32 s{S_MT}, s51, s52")
        a("s_and_b32 s51, s3, 1")
        a("s_lshl_b32 s51, s51, 3")
        a("s_lshr_b32 s53, s50, 2")
        a(f"s_add_u32 s{S_NT}, s51, s53")
        if self.rot:
            a("s_lshl_b32 s52, s52, 1")
            a(f"s_add_u32 s{S_ROT}, s52, s53")
        else:
            a(f"s_mov_b32 s{S_ROT}, 0")
        a("v_lshrrev_b32 v2, 6, v0")
        a("v_and_b32 v12, 63, v0")
        a(f"v_lshlrev_b32 v{V_LANE16}, 4, v12")
        a(f"v_readfirstlane_b32 s{S_WV}, v2")
        a("v_lshrrev_b32 v13, 3, v12")
        a("v_and_b32 v14, 7, v12")
        a("v_bfe_u32 v15, v12, 4, 2")
        a("v_lshlrev_b32 v15, 1, v15")
        a("v_xor_b32 v14, v14, v15")
        a("v_lshlrev_b32 v13, 11, v13")
        a("v_lshl_add_u32 v13, v14, 4, v13")
        a(f"s_lshl_b32 s3, s{S_NT}, 7")
        a("v_add_u32 v13, s3, v13")
        a(f"s_lshl_b32 s3, s{S_WV}, 15")
        a(f"v_add_u32 v{V_WO}, s3, v13")
        a(f"s_add_u32 s3, s3, {16384 - 1024}")
        a(f"v_add_u32 v{V_WO + 1}, s3, v13")
        a(f"s_lshr_b32 s{S_KH}, s{S_WV}, 2")
        a(f"s_and_b32 s{S_TG}, s{S_WV}, 3")
        a(f"s_lshl_b32 s3, s{S_MT}, 3")
        a(f"s_lshl_b32 s50, s{S_TG}, 1")
        a("s_add_u32 s3, s3, s50")
        a("s_lshl_b32 s3, s3, 10")
        a(f"s_lshl_b32 s50, s{S_KH}, 17")
        a("s_add_u32 s3, s3, s50")
        a(f"s_add_u32 s{S_OB}, s3, {WS_O}")
        a(f"s_mov_b32 s{S_ISW}, 0")
        a(f"s_mov_b32 s{S_ISO}, 0")
        a(f"s_mov_b32 s{S_DST}, 0")
        a("s_waitcnt lgkmcnt(0)")
        srd(a, S_WS, 4, 0x10000000)
        srd(a, S_WA, 6, 2097152)
        srd(a, S_WB, 46, 2097152)
        srd(a, S_WC, 6, 2097152)
        WD, OD = self.wd, self.od
        order = []
        for s in range(max(WD, OD)):
            if s < WD: order += self.dma_w()
            if s < OD: order += self.load_o(s)
        for i, l in enumerate(order):
            a(l)
        srd(a, S_OUT, 48, 4194304)
        self.pstamp(a, 1)
        a("v_lshrrev_b32 v13, 4, v12")
        a("v_bfe_u32 v14, v12, 2, 2")
        a("v_and_b32 v15, 1, v13")
        a("v_lshrrev_b32 v16, 1, v14")
        a("v_lshl_add_u32 v16, v15, 1, v16")
        a("v_lshlrev_b32 v16, 1, v16")
        a("v_bfe_u32 v17, v12, 1, 1")
        a("v_and_b32 v18, 1, v12")
        a("v_lshlrev_b32 v18, 3, v18")
        a(f"s_lshl_b32 s3, s{S_KH}, 12")
        a("v_add_u32 v18, s3, v18")
        a("v_lshrrev_b32 v19, 1, v13")
        a("v_lshlrev_b32 v19, 4, v19")
        a("v_lshl_add_u32 v19, v15, 2, v19")
        a("v_add_u32 v19, v19, v14")
        a("v_lshl_add_u32 v20, v13, 2, v14")
        for ct in range(4):
            a(f"v_add_u32 v21, {2 * ct}, v17")
            a("v_xor_b32 v21, v21, v16")
            a("v_lshl_add_u32 v21, v21, 4, v18")
            a(f"v_lshl_add_u32 v{V_WRA + ct}, v19, 7, v21")
            a(f"v_lshl_add_u32 v{V_WRB + ct}, v20, 7, v21")
        a(f"s_mov_b32 s{S_RD}, 0")
        a(f"s_mov_b32 s44, {(-(NSLOT - 1) * SLOT) & 0xffffffff}")
        for r in range(32): a(f"v_mov_b32 v{ACC + r}, 0")
        a(f"s_waitcnt vmcnt({2 * WD + 4 * OD - 2})")
        a("s_barrier")
        for l in self.rd_w(0, 0): a(l)
        self.pstamp(a, 2)
        q = []
        for s in range(max(WD, OD)):
            if s < WD: q += [("W", s)] * 2
            if s < OD: q += [("o", s)] * 4
        def allowed(tag):
            idx = max((i for i, t in enumerate(q) if t == tag), default=-1)
            return len(q) - 1 - idx
        plan = []
        for s in range(16):
            top = allowed(("o", s))
            mid = allowed(("W", s + 1)) if s < 15 else 0
            iw, io = s + WD < 16, s + OD < 16
            plan.append((top, mid, iw, io))
            if iw: q += [("W", s + WD)] * 2
            if io: q += [("o", s + OD)] * 4
        self.plan = plan
        def emit(s):
            top, mid, iw, io = plan[s]
            self.stage(a, s, s >> 3, (s + 1) >> 3, iw, io, min(mid, 63), min(top, 63), last=(s == 15))
        for s in range(16):
            emit(s)
        self.pstamp(a, 3)
        a("s_barrier")
        a(f"s_lshl_b32 s3, s{S_WV}, 12")
        a(f"v_add_u32 v2, s3, v{V_LANE16}")
        a(f"s_xor_b32 s3, s{S_WV}, 4")
        a("s_lshl_b32 s3, s3, 12")
        a(f"v_add_u32 v3, s3, v{V_LANE16}")
        a(f"s_cmp_eq_u32 s{S_KH}, 0")
        a("s_nop 7")
        a(f"s_cbranch_scc1 {n}_k0")
        for k in range(4): a(f"ds_write_b128 v2, {vr(ACC + 4 * k, 4)} offset:{k * 1024}")
        a("s_waitcnt lgkmcnt(0)")
        for r in range(16): a(f"v_mov_b32 v{ACC + r}, v{ACC + 16 + r}")
        a(f"s_branch {n}_k1")
        a.label(f"{n}_k0")
        for k in range(4): a(f"ds_write_b128 v2, {vr(ACC + 16 + 4 * k, 4)} offset:{k * 1024}")
        a.label(f"{n}_k1")
        a("s_waitcnt lgkmcnt(0)")
        a("s_barrier")
        for k in range(4): a(f"ds_read_b128 {vr(FW + 4 * k, 4)}, v3 offset:{k * 1024}")
        a("v_and_b32 v13, 15, v12")
        a(f"s_lshl_b32 s3, s{S_MT}, 7")
        a(f"s_lshl_b32 s50, s{S_TG}, 5")
        a("s_add_u32 s3, s3, s50")
        a(f"s_lshl_b32 s50, s{S_KH}, 4")
        a("s_add_u32 s3, s3, s50")
        a("v_add_u32 v13, s3, v13")
        a("v_lshlrev_b32 v13, 11, v13")
        a("v_bfe_u32 v14, v12, 4, 1")
        a("v_lshl_add_u32 v13, v14, 5, v13")
        a("v_lshrrev_b32 v14, 5, v12")
        a("v_lshl_add_u32 v13, v14, 4, v13")
        a(f"s_lshl_b32 s3, s{S_NT}, 7")
        a("s_waitcnt lgkmcnt(0)")
        for r in range(0, 16, 2):
            a(f"v_pk_add_f32 {vr(ACC + r, 2)}, {vr(ACC + r, 2)}, {vr(FW + r, 2)}")
        for pr in range(2):
            t = FW + 16 + 4 * pr
            for i2 in range(2):
                b = ACC + (pr * 2 + i2) * 4
                a(f"v_cvt_pk_bf16_f32 v{t + 2 * i2}, v{b}, v{b + 1}")
                a(f"v_cvt_pk_bf16_f32 v{t + 2 * i2 + 1}, v{b + 2}, v{b + 3}")
            a("s_nop 1")
            a(f"v_permlane16_swap_b32 v{t}, v{t + 2}")
            a(f"v_permlane16_swap_b32 v{t + 1}, v{t + 3}")
            a(f"buffer_store_dwordx4 {vr(t, 4)}, v13, s[{S_OUT}:{S_OUT+3}], s3 offen offset:{pr * 64} {self.store_mod}")
        if self.prof:
            a("s_waitcnt vmcnt(0)")
            self.pstamp(a, 4)
            self.pflush(a, 2, 8, S_WV, f"s[{S_WS}:{S_WS+3}]")
        a.label(f"{n}_end")
        a("s_endpgm")
        nv = 208 if self.prof else 144
        return kernel_header(n) + a.text() + kernel_desc(n, nv, nv)
if __name__ == "__main__":
    k = K3b("x"); k.gen(); print(k.plan)
```

```python
from asmlib import *
class KPF:
    def __init__(self, name, what=("x", "wa", "wb", "oa", "ob")):
        self.name, self.what = name, what
    def gen(self):
        a = Asm(); n = self.name
        a("s_cmp_ge_u32 s2, 256")
        a(f"s_cbranch_scc1 {n}_end")
        a("s_load_dwordx4 s[4:7], s[0:1], 0")
        a("s_load_dwordx2 s[8:9], s[0:1], 16")
        a("s_load_dwordx2 s[10:11], s[0:1], 32")
        a("s_load_dwordx2 s[12:13], s[0:1], 48")
        a("v_lshlrev_b32 v1, 4, v0")
        a("s_waitcnt lgkmcnt(0)")
        src = {"x": (4, 4 << 20), "wa": (6, 6 << 20), "wb": (10, 6 << 20), "oa": (8, 2 << 20), "ob": (12, 2 << 20)}
        r = 4
        for k in self.what:
            p, size = src[k]
            srd(a, 16, p, size)
            per = size // 256
            a(f"s_mul_i32 s20, s2, {per}")
            for i in range(per // 4096):
                a(f"buffer_load_dwordx4 {vr(r, 4)}, v1, s[16:19], s20 offen")
                a("s_add_u32 s20, s20, 4096")
                r += 4
        a("s_waitcnt vmcnt(0)")
        a.label(f"{n}_end")
        a("s_endpgm")
        return kernel_header(n) + a.text() + kernel_desc(n, 96, 96)
```

```python
from layout import WS_PROF
class Prof:
    NST = 16
    def pstamp(self, a, idx, vreg=None):
        if not self.prof: return
        v = vreg if vreg is not None else self.V_PROF
        a("s_memtime s[96:97]")
        a("s_memrealtime s[98:99]")
        a("s_waitcnt lgkmcnt(0)")
        for j, s in enumerate((96, 97, 98, 99)):
            a(f"v_writelane_b32 v{v}, s{s}, {idx * 4 + j}")
    def pflush(self, a, area, nwaves, s_wave, ws):
        if not self.prof: return
        v = self.V_PROF
        a(f"s_mul_i32 s3, s2, {nwaves}")
        a(f"s_add_u32 s3, s3, s{s_wave}")
        a("s_lshl_b32 s3, s3, 8")
        a(f"s_add_u32 s3, s3, {WS_PROF + (area << 20)}")
        a(f"v_mbcnt_lo_u32_b32 v{v + 1}, -1, 0")
        a(f"v_mbcnt_hi_u32_b32 v{v + 1}, -1, v{v + 1}")
        a(f"v_lshlrev_b32 v{v + 1}, 2, v{v + 1}")
        a(f"buffer_store_dword v{v}, v{v + 1}, {ws}, s3 offen")
        a("s_waitcnt vmcnt(0)")
```

```python
import sys
import hx
from k1d import K1d
from k2c import K2c, LDS_K2
from k3b import K3b, LDS_K3
from kpf import KPF
HDR = open("gated_mix__softmax_full_mha__linear_kernel_hedgehog__prompt.s.ref").read().split("; Override launch geometry")[0]
def build(k1=None, k2=None, k3=None, pf=None):
    s = HDR
    s += "; Launches: QKV projections (+ gate, branch-B feature map of k), attention / linear attention, output projection.\n"
    if pf: s += "; @launch kernel=warm_kernel grid=(256,1,1) block=(256,1,1) lds=0\n"
    s += "; @launch kernel=qkv_kernel grid=(256,1,1) block=(256,1,1) lds=163840\n"
    s += f"; @launch kernel=attn_kernel grid=(256,1,1) block=(512,1,1) lds={LDS_K2}\n"
    s += f"; @launch kernel=outp_kernel grid=(256,1,1) block=(512,1,1) lds={LDS_K3}\n"
    s += '.amdgcn_target "amdgcn-amd-amdhsa--gfx950"\n.text\n'
    if pf: s += KPF("warm_kernel", pf).gen()
    s += K1d("qkv_kernel", **(k1 or {})).gen()
    s += K2c("attn_kernel", **(k2 or dict(store_mod="sc1"))).gen()
    s += K3b("outp_kernel", **(k3 or dict(wd=4, od=3))).gen()
    return s
if __name__ == "__main__":
    open("../probe/v_nopf.s", "w").write(build())
    open("../probe/v_pfall.s", "w").write(build(k1=dict(pfwo=False), pf=("x", "wa", "wb", "oa", "ob")))
    open("../probe/v_pfin.s", "w").write(build(pf=("x", "wa", "wb")))
```

```python
class Asm:
    def __init__(self):
        self.lines = []
    def __call__(self, s=""):
        for l in s.split("\n"):
            l = l.strip()
            if l:
                self.emit(l)
    def emit(self, l):
        if l.endswith(":") or l.startswith("."):
            self.lines.append(l)
        else:
            self.lines.append("    " + l)
    def label(self, name):
        self.lines.append(name + ":")
    def comment(self, c):
        self.lines.append("    ; " + c)
    def extend(self, other):
        self.lines += other.lines if isinstance(other, Asm) else other
    def text(self):
        return "\n".join(self.lines) + "\n"

def vr(base, n=1):
    return f"v{base}" if n == 1 else f"v[{base}:{base + n - 1}]"
def ar(base, n=1):
    return f"a{base}" if n == 1 else f"a[{base}:{base + n - 1}]"
def sr(base, n=1):
    return f"s{base}" if n == 1 else f"s[{base}:{base + n - 1}]"

def interleave(mfmas, fillers, lead=0, per_gap=None):
    out = []
    by = {}
    for g, ins in fillers:
        by.setdefault(g, []).extend(ins)
    out += by.get(-1, [])
    for i, m in enumerate(mfmas):
        out.append(m)
        out += by.get(i, [])
    extra = [g for g in by if g >= len(mfmas)]
    assert not extra, extra
    return out

def srd(a, dst, base_lo, nbytes):
    a(f"s_mov_b32 s{dst}, s{base_lo}")
    a(f"s_and_b32 s{dst + 1}, s{base_lo + 1}, 0xffff")
    a(f"s_mov_b32 s{dst + 2}, {nbytes}")
    a(f"s_mov_b32 s{dst + 3}, 0x00020000")

def kernel_header(name):
    return f".globl {name}\n.p2align 8\n.type {name},@function\n{name}:\n"

def kernel_desc(name, vgpr, accum, sgpr=102):
    return (f".section .rodata,\"a\"\n.p2align 6\n.amdhsa_kernel {name}\n"
            f"  .amdhsa_next_free_vgpr {vgpr}\n  .amdhsa_next_free_sgpr {sgpr}\n  .amdhsa_accum_offset {accum}\n"
            f"  .amdhsa_group_segment_fixed_size 0\n  .amdhsa_kernarg_size 88\n  .amdhsa_user_sgpr_count 2\n"
            f"  .amdhsa_user_sgpr_kernarg_segment_ptr 1\n  .amdhsa_system_sgpr_workgroup_id_x 1\n.end_amdhsa_kernel\n.text\n")

def code_prefetch(a, tag, first, last, nwaves, vtmp, vdst, sreg, wave_from_v0=True, ndst=1):
    a(f"s_getpc_b64 s[{sreg}:{sreg + 1}]")
    a.label(f"{tag}_pc")
    a(f"s_sub_u32 s{sreg}, s{sreg}, {tag}_pc-{first}")
    a(f"s_subb_u32 s{sreg + 1}, s{sreg + 1}, 0")
    a(f"v_lshlrev_b32 v{vtmp}, 6, v0")
    def emit(nrounds):
        for k in range(nrounds):
            a(f"v_min_u32 v{vdst + 1}, {last}-{first}-4, v{vtmp}")
            a(f"global_load_dword v{vdst}, v{vdst + 1}, s[{sreg}:{sreg + 1}]")
            if k + 1 < nrounds: a(f"v_add_u32 v{vtmp}, {nwaves * 4096}, v{vtmp}")
    return emit
```

```python
from asmlib import *
from layout import *
from prof import Prof

XST, NX = 16384, 3
WRING, WSL, NW = 49152, 24576, 4
L_WP = WRING + NW * WSL
LDS_K1 = 163840
ACC = 64
def acc(sg, ft, tk): return ACC + ((sg * 2 + ft) * 4 + tk) * 4
def fX(p, tk): return p * 64 + tk * 4
def fW(p, sg, ft): return p * 64 + 16 + (sg * 2 + ft) * 4
A_DUMMY, A_PF = 128, 152
V_XO, V_WO, V_XR, V_WR, V_PF = 1, 5, 12, 14, 16
S_X, S_W, S_WS, S_WP, S_GW = 8, 12, 16, 60, 64
S_MT, S_HP, S_WV, S_SOX, S_SOW, S_XDST, S_WDST, S_XRD, S_XDL, S_WRD, S_WDL, S_CNT, S_W8K, S_W3K = range(20, 34)
S_CWM, S_CXM, S_PF, S_PFO, S_PFS, S_TOK, S_HD, S_TH = 54, 55, 72, 76, 77, 78, 79, 88

class K1d(Prof):
    V_PROF = 60
    def __init__(self, name, prof=False, store_mod="sc1", pfwo=True, pfin=2, epi=True, bulk=True, code=None):
        self.name, self.prof, self.store_mod, self.pfwo, self.pfin, self.epi = name, prof, store_mod, pfwo, pfin, epi
        self.bulk = bulk and pfin > 0
        self.code = code

    def mfmas(self, p):
        out = []
        for tk in range(4):
            for sg in range(6):
                for ft in range(2):
                    d = vr(acc(sg, ft, tk), 4)
                    x, w = ar(fX(p, tk), 4), ar(fW(p, sg, ft), 4)
                    a, b = (x, w) if sg % 3 == 2 else (w, x)
                    out.append(f"v_mfma_f32_16x16x32_bf16 {d}, {a}, {b}, {d}")
        return out

    def rd(self, p, k2):
        xs = [f"ds_read_b128 {ar(fX(p, tk), 4)}, v{V_XR + k2} offset:{tk * 2048}" for tk in range(4)]
        w = [f"ds_read_b64_tr_b16 {ar(fW(p, sg, ft) + 2 * q, 2)}, v{V_WR + ft} offset:{sg * 4096 + q * 512}"
             for sg in range(6) for ft in range(2) for q in range(2)]
        return [xs[0]] + w + xs[1:]

    def dmaW(self):
        g = []
        for j in range(6):
            ins = []
            if j == 0: ins += [f"s_add_u32 m0, s{S_WDST}, s{S_W3K}", f"s_add_u32 s{S_WDST}, s{S_WDST}, {WSL}"]
            if j == 4: ins += ["s_add_u32 m0, m0, 4096", f"s_cmp_eq_u32 s{S_WDST}, {WRING + NW * WSL}", f"s_cselect_b32 s{S_WDST}, {WRING}, s{S_WDST}"]
            ins.append(f"buffer_load_dwordx4 v{V_WO + j}, s[{S_W}:{S_W+3}], s{S_SOW} offen offset:{(j & 3) * 1024} lds")
            if j == 5: ins.append(f"s_add_u32 s{S_SOW}, s{S_SOW}, {32 * 6144}")
            g.append(ins)
        return g

    def dmaX(self, half):
        g = []
        for n in range(2):
            ins = []
            if n == 0:
                ins += [f"s_add_u32 m0, s{S_XDST}, s{S_W8K}"] + ([f"s_add_u32 m0, m0, 2048"] if half else []) + ["s_nop 0"]
            ins.append(f"buffer_load_dwordx4 v{V_XO + half * 2 + n}, s[{S_X}:{S_X+3}], s{S_SOX} offen offset:{n * 1024} lds")
            if n == 1 and half == 1:
                ins += [f"s_add_u32 s{S_SOX}, s{S_SOX}, 128", f"s_add_u32 s{S_XDST}, s{S_XDST}, {XST}",
                        f"s_cmp_eq_u32 s{S_XDST}, {NX * XST}", f"s_cselect_b32 s{S_XDST}, 0, s{S_XDST}"]
            g.append(ins)
        return g

    def pf(self, bulk=False):
        if not self.pfin or (self.bulk and not bulk): return []
        return [[f"buffer_load_dwordx4 a[{A_PF}:{A_PF+3}], v{V_PF}, s[{S_PF}:{S_PF+3}], s{S_PFO} offen",
                 f"s_add_u32 s{S_PFO}, s{S_PFO}, s{S_PFS}"]]

    def wadv(self):
        return [f"s_add_u32 s{S_WRD}, s{S_WRD}, 1", f"s_cmp_eq_u32 s{S_WRD}, {NW}",
                f"s_cselect_b32 s{S_WDL}, s{S_CWM}, {WSL}", f"s_cselect_b32 s{S_WRD}, 0, s{S_WRD}",
                f"v_add_u32 v{V_WR}, s{S_WDL}, v{V_WR}", f"v_add_u32 v{V_WR + 1}, s{S_WDL}, v{V_WR + 1}"]
    def xdelta(self):
        return [f"s_add_u32 s{S_XRD}, s{S_XRD}, 1", f"s_cmp_eq_u32 s{S_XRD}, {NX}",
                f"s_cselect_b32 s{S_XDL}, s{S_CXM}, {XST}", f"s_cselect_b32 s{S_XRD}, 0, s{S_XRD}"]
    def xadv(self, k2):
        return [f"v_add_u32 v{V_XR + k2}, s{S_XDL}, v{V_XR + k2}"]

    def unit(self, a, p, reads, bar, dmas, pre=(), post=()):
        a("s_waitcnt lgkmcnt(0)")
        fill = []
        ins = list(pre)
        if bar is not None:
            ins += [f"s_waitcnt vmcnt({bar})", "s_barrier"]
        fill.append((0, ins))
        for i, r in enumerate(reads):
            fill.append((1 + i, [r]))
        for i, d in enumerate(dmas):
            fill.append((min(30 + 2 * i, 46), d))
        fill.append((47, list(post)))
        for l in interleave(self.mfmas(p), fill):
            a(l)

    def iteration(self, a, g_odd, g_even, w_odd, w_even, last=False, pf=False):
        odd = (self.dmaW() + self.dmaX(1)) if g_odd else []
        even = self.dmaW() if g_even == "W" else (self.dmaW() + self.dmaX(0) + (self.pf() if pf else [])) if g_even else []
        self.unit(a, 0, self.rd(1, 1), w_odd, odd, pre=self.wadv() + self.xdelta() + self.xadv(0), post=self.xadv(1))
        if last:
            self.unit(a, 1, [], None, [])
        else:
            self.unit(a, 1, self.rd(0, 0), w_even, even, pre=self.wadv())

    def gen(self):
        a = Asm()
        n = self.name
        a("s_cmp_ge_u32 s2, 256")
        a(f"s_cbranch_scc1 {n}_end")
        self.pstamp(a, 0)
        if self.code:
            first, last, nbytes = self.code
            code_prefetch(a, n, first, last, 4, 62, 58, 90)(-(-nbytes // 16384))
        a("s_load_dwordx4 s[44:47], s[0:1], 0")
        a("s_load_dwordx2 s[48:49], s[0:1], 32")
        a("s_load_dwordx2 s[52:53], s[0:1], 80")
        a("s_load_dwordx2 s[56:57], s[0:1], 40")
        a("s_load_dwordx2 s[58:59], s[0:1], 56")
        a("s_and_b32 s3, s2, 7")
        a("s_lshr_b32 s4, s2, 3")
        a("s_and_b32 s5, s3, 1")
        a("s_lshl_b32 s5, s5, 3")
        a("s_and_b32 s6, s4, 7")
        a(f"s_add_u32 s{S_MT}, s5, s6")
        a("s_lshr_b32 s5, s3, 1")
        a("s_lshl_b32 s5, s5, 2")
        a("s_lshr_b32 s6, s4, 3")
        a(f"s_add_u32 s{S_HP}, s5, s6")
        a("v_lshrrev_b32 v17, 6, v0")
        a("v_and_b32 v18, 63, v0")
        a("v_lshrrev_b32 v19, 3, v18")
        a(f"v_readfirstlane_b32 s{S_WV}, v17")
        a("v_and_b32 v20, 7, v18")
        a("v_lshrrev_b32 v21, 4, v18")
        a(f"s_lshl_b32 s3, s{S_MT}, 7")
        a(f"s_lshl_b32 s4, s{S_WV}, 5")
        a("s_add_u32 s3, s3, s4")
        a("v_add_u32 v22, s3, v19")
        a("v_lshlrev_b32 v22, 11, v22")
        a("v_xor_b32 v23, v20, v21")
        a("v_xor_b32 v24, 4, v23")
        a("v_lshl_add_u32 v23, v23, 4, v22")
        a("v_lshl_add_u32 v24, v24, 4, v22")
        for nn in range(4):
            a(f"v_add_u32 v{V_XO + nn}, {nn * 16384 - (nn & 1) * 1024}, v{23 if nn % 2 == 0 else 24}")
        a("v_and_b32 v23, 1, v21")
        a("v_lshlrev_b32 v23, 1, v23")
        a("v_xor_b32 v23, v23, v20")
        a("s_mov_b32 s3, 6144")
        a("v_mul_lo_u32 v24, v19, s3")
        a(f"s_lshl_b32 s4, s{S_HP}, 7")
        a("v_add_u32 v24, s4, v24")
        a("v_lshl_add_u32 v26, v23, 4, v24")
        a("v_xor_b32 v25, 4, v23")
        a("v_lshl_add_u32 v25, v25, 4, v24")
        a(f"s_and_b32 s5, s{S_WV}, 1")
        a("s_cmp_eq_u32 s5, 0")
        for j in range(6):
            off = [((6 * par + j) >> 2) * 2048 + ((6 * par + j) & 3) * 8 * 6144 - (j & 3) * 1024 for par in range(2)]
            a(f"s_mov_b32 s3, {off[1]}")
            a(f"s_cselect_b32 s3, {off[0]}, s3")
            a(f"v_add_u32 v{V_WO + j}, s3, v{26 if j % 2 == 0 else 25}")
        a(f"s_lshl_b32 s{S_W8K}, s{S_WV}, 12")
        a(f"s_mul_i32 s{S_W3K}, s{S_WV}, 6144")
        a(f"s_and_b32 s{S_TH}, s{S_WV}, 1")
        a(f"s_lshr_b32 s3, s{S_WV}, 1")
        a(f"s_lshl_b32 s{S_HD}, s{S_HP}, 1")
        a(f"s_add_u32 s{S_HD}, s{S_HD}, s3")
        a(f"s_mov_b32 s{S_CWM}, {(-(NW - 1) * WSL) & 0xffffffff}")
        a(f"s_mov_b32 s{S_CXM}, {(-(NX - 1) * XST) & 0xffffffff}")
        a(f"s_mov_b32 s{S_SOX}, 0")
        a(f"s_mov_b32 s{S_SOW}, 0")
        a(f"s_mov_b32 s{S_XDST}, 0")
        a(f"s_mov_b32 s{S_WDST}, {WRING}")
        a(f"s_mov_b32 s{S_XRD}, 0")
        a(f"s_mov_b32 s{S_WRD}, 0")
        a("s_waitcnt lgkmcnt(0)")
        srd(a, S_X, 44, 2048 * 2048)
        a(f"s_cmp_lt_u32 s{S_WV}, 2")
        a("s_cselect_b32 s6, s46, s48")
        a("s_cselect_b32 s7, s47, s49")
        srd(a, S_W, 6, 1024 * 6144)
        pro = self.dmaX(0) + self.dmaW() + self.dmaX(1) + self.dmaW() + self.dmaX(0) + self.dmaW() + self.dmaX(1)
        for grp in pro:
            for l in grp:
                if l.startswith("buffer_load"): a("s_nop 0")
                a(l)
        self.pstamp(a, 1)
        srd(a, S_WS, 52, 0x10000000)
        srd(a, S_WP, 56, 65536)
        srd(a, S_GW, 58, 2048)
        self.side_loads(a)
        npf = 0
        if self.bulk:
            npf = 16 - self.pfin
            for k in range(npf):
                for l in self.pf(bulk=True)[0]: a(l)
        self.addr_reads(a)
        for r in range(ACC, 256):
            a(f"v_mov_b32 v{r}, 0")
        a(f"s_waitcnt vmcnt({16 + self.n_side + npf})")
        a("s_barrier")
        self.pstamp(a, 2)
        for l in self.rd(0, 0): a(l)
        for grp in self.dmaW() + self.dmaX(0) + self.pf():
            for l in grp:
                if l.startswith("buffer_load"): a("s_nop 0")
                a(l)
        e = 1 if (self.pfin and not self.bulk) else 0
        first = 16 + self.n_side + npf
        self.iteration(a, True, True, first, first, pf=True)
        a(f"s_mov_b32 s{S_CNT}, 12")
        a(".p2align 6")
        a.label(f"{n}_loop")
        self.iteration(a, True, True, 16 + e, 16 + e, pf=True)
        a(f"s_sub_u32 s{S_CNT}, s{S_CNT}, 1")
        a(f"s_cmp_lg_u32 s{S_CNT}, 0")
        a(f"s_cbranch_scc1 {n}_loop")
        self.iteration(a, True, "W", 16, 16)
        self.iteration(a, False, False, 14, 6)
        self.iteration(a, False, False, 0, 0, last=True)
        self.pstamp(a, 3)
        if self.epi:
            self.epilogue(a)
        if self.prof:
            self.pstamp(a, 8)
            a("s_waitcnt vmcnt(0)")
            self.pstamp(a, 9)
            self.pflush(a, 0, 4, S_WV, f"s[{S_WS}:{S_WS+3}]")
        a.label(f"{n}_end")
        a("s_endpgm")
        a.label(f"{n}_last")
        nag = A_PF + 4
        return kernel_header(n) + a.text() + kernel_desc(n, 256 + nag, 256)

    def addr_reads(self, a):
        a("v_and_b32 v19, 15, v18")
        a("v_lshlrev_b32 v19, 7, v19")
        a(f"s_lshl_b32 s3, s{S_TH}, 13")
        a("v_add_u32 v19, s3, v19")
        a("v_lshrrev_b32 v20, 4, v18")
        a("v_bfe_u32 v21, v18, 1, 3")
        for k2 in range(2):
            a(f"v_add_u32 v22, {4 * k2}, v20")
            a("v_xor_b32 v22, v22, v21")
            a(f"v_lshl_add_u32 v{V_XR + k2}, v22, 4, v19")
        a("v_bfe_u32 v21, v18, 2, 2")
        a("v_lshl_add_u32 v22, v20, 3, v21")
        a("v_lshlrev_b32 v22, 7, v22")
        a("v_and_b32 v24, 1, v18")
        a("v_lshl_add_u32 v22, v24, 3, v22")
        a("v_bfe_u32 v24, v18, 1, 1")
        a(f"s_lshr_b32 s3, s{S_WV}, 1")
        a("s_lshl_b32 s3, s3, 2")
        a("v_add_u32 v24, s3, v24")
        a("v_and_b32 v23, 2, v21")
        a("v_bfe_u32 v25, v18, 4, 1")
        a("v_lshl_or_b32 v23, v25, 2, v23")
        for ft in range(2):
            a(f"v_add_u32 v25, {2 * ft}, v24")
            a("v_xor_b32 v25, v25, v23")
            a("v_lshl_add_u32 v25, v25, 4, v22")
            a(f"v_add_u32 v{V_WR + ft}, {WRING}, v25")

    def side_loads(self, a):
        n_side = 0
        a("v_lshlrev_b32 v19, 4, v18")
        a(f"s_lshl_b32 s3, s{S_HP}, 12")
        a(f"s_lshl_b32 s5, s{S_WV}, 10")
        a("s_add_u32 s3, s3, s5")
        a(f"s_add_u32 m0, s5, {L_WP}")
        a("s_nop 0")
        a(f"buffer_load_dwordx4 v19, s[{S_WP}:{S_WP+3}], s3 offen lds"); n_side += 1
        a("v_lshlrev_b32 v19, 5, v18")
        d = A_DUMMY
        a(f"buffer_load_dwordx4 a[{d}:{d+3}], v19, s[{S_GW}:{S_GW+3}], 0 offen")
        a(f"buffer_load_dwordx4 a[{d+4}:{d+7}], v19, s[{S_GW}:{S_GW+3}], 0 offen offset:16"); n_side += 2
        a(f"s_lshl_b32 s3, s{S_MT}, 7")
        a(f"s_lshl_b32 s4, s{S_HP}, 3")
        a("s_add_u32 s3, s3, s4")
        a(f"s_lshl_b32 s4, s{S_WV}, 1")
        a(f"s_add_u32 s{S_TOK}, s3, s4")
        a(f"s_lshl_b32 s3, s{S_TOK}, 11")
        for i in range(2):
            a(f"buffer_load_dwordx4 a[{d+8+8*i}:{d+11+8*i}], v19, s[{S_X}:{S_X+3}], s3 offen offset:{i * 2048}")
            a(f"buffer_load_dwordx4 a[{d+12+8*i}:{d+15+8*i}], v19, s[{S_X}:{S_X+3}], s3 offen offset:{i * 2048 + 16}"); n_side += 2
        self.n_side = n_side
        if self.pfin:
            D = self.pfin
            a(f"s_mul_i32 s3, s2, 3")
            a(f"s_add_u32 s3, s3, s{S_WV}")
            a("s_cmp_ge_u32 s3, 384")
            a("s_cselect_b32 s4, 384, 0")
            a("s_cselect_b32 s6, s48, s46")
            a("s_cselect_b32 s7, s49, s47")
            a("s_sub_u32 s3, s3, s4")
            a("s_lshl_b32 s3, s3, 10")
            a("s_lshl_b32 s4, s2, 14")
            a(f"s_cmp_eq_u32 s{S_WV}, 3")
            a("s_cselect_b32 s6, s44, s6")
            a("s_cselect_b32 s7, s45, s7")
            a("s_cselect_b32 s3, s4, s3")
            a(f"s_mov_b32 s5, {64 * 6144}")
            a(f"s_cselect_b32 s{S_PFS}, 128, s5")
            a(f"s_mov_b32 s5, {1024 * 6144}")
            a(f"s_cselect_b32 s{S_PF+2}, {2048 * 2048}, s5")
            a(f"s_mul_i32 s4, s{S_PFS}, {D}")
            a(f"s_add_u32 s{S_PFO}, s3, s4")
            a(f"s_mov_b32 s{S_PF}, s6")
            a(f"s_and_b32 s{S_PF+1}, s7, 0xffff")
            a(f"s_mov_b32 s{S_PF+3}, 0x00020000")
            a("v_lshlrev_b32 v19, 4, v18")
            a("v_lshrrev_b32 v20, 3, v18")
            a("v_lshlrev_b32 v20, 11, v20")
            a("v_and_b32 v21, 7, v18")
            a("v_lshl_add_u32 v20, v21, 4, v20")
            a(f"s_cmp_eq_u32 s{S_WV}, 3")
            a("s_cselect_b64 vcc, -1, 0")
            a(f"v_cndmask_b32 v{V_PF}, v19, v20, vcc")

    def gate_compute(self, a):
        d = A_DUMMY
        for r in range(24): a(f"v_accvgpr_read_b32 v{32 + r}, a{d + r}")
        for i in range(2): a(f"v_mov_b32 v{24 + i}, 0")
        for k in range(8):
            for i in range(2):
                a(f"v_dot2_f32_bf16 v{24 + i}, v{40 + 8 * i + k}, v{32 + k}, v{24 + i}")
        for ctl in ("quad_perm:[1,0,3,2]", "quad_perm:[2,3,0,1]", "row_half_mirror", "row_mirror"):
            a("s_nop 1")
            for i in range(2):
                a(f"v_add_f32_dpp v{24 + i}, v{24 + i}, v{24 + i} {ctl} row_mask:0xf bank_mask:0xf")
        for sw in ("v_permlane16_swap_b32", "v_permlane32_swap_b32"):
            for i in range(2): a(f"v_mov_b32 v{28 + i}, v{24 + i}")
            a("s_nop 1")
            for i in range(2): a(f"{sw} v{24 + i}, v{28 + i}")
            a("s_nop 1")
            for i in range(2): a(f"v_add_f32 v{24 + i}, v{24 + i}, v{28 + i}")
        a("v_and_b32 v28, 1, v18")
        a("v_cmp_eq_u32 vcc, 1, v28")
        a("s_nop 1")
        a("v_cndmask_b32 v24, v24, v25, vcc")
        a(f"v_mul_f32 v24, {f32bits(-LOG2E)}, v24")
        a("v_exp_f32 v24, v24")
        a("s_nop 0")
        a("v_add_f32 v24, 1.0, v24")
        a("v_rcp_f32 v24, v24")
        a("v_lshlrev_b32 v28, 2, v18")
        a(f"s_lshl_b32 s3, s{S_TOK}, 2")
        a(f"s_add_u32 s3, s3, {WS_G}")
        a("s_mov_b64 exec, 3")
        a(f"buffer_store_dword v24, v28, s[{S_WS}:{S_WS+3}], s3 offen {self.store_mod}")
        a("s_mov_b64 exec, -1")

    def prefetch_wo(self, a):
        a("s_load_dwordx2 s[80:81], s[0:1], 16")
        a("s_load_dwordx2 s[82:83], s[0:1], 48")
        a("s_lshl_b32 s3, s2, 13")
        a(f"s_lshl_b32 s4, s{S_WV}, 11")
        a("s_add_u32 s3, s3, s4")
        a("s_waitcnt lgkmcnt(0)")
        for k, p in enumerate((80, 82)):
            srd(a, 84, p, 2097152)
            for i in range(2):
                a(f"buffer_load_dwordx4 a[{8 * k + 4 * i}:{8 * k + 4 * i + 3}], v17, s[84:87], s3 offen offset:{i * 1024}")

    def epilogue(self, a):
        ws = f"s[{S_WS}:{S_WS+3}]"
        sm = self.store_mod
        a("v_and_b32 v18, 63, v0")
        self.gate_compute(a)
        self.pstamp(a, 4)
        c = f32bits(LOG2E / 32 ** 0.5)
        a(f"s_mov_b32 s36, {c}")
        a(f"s_mov_b32 s37, {c}")
        a(f"s_lshl_b32 s3, s{S_HD}, 17")
        a(f"s_lshl_b32 s4, s{S_MT}, 2")
        a(f"s_lshl_b32 s5, s{S_TH}, 1")
        a("s_add_u32 s4, s4, s5")
        a("s_lshl_b32 s4, s4, 11")
        a("s_add_u32 s3, s3, s4")
        a("v_lshrrev_b32 v19, 4, v18")
        a("v_and_b32 v20, 15, v18")
        a("v_lshrrev_b32 v21, 1, v19")
        a("v_lshlrev_b32 v21, 10, v21")
        a("v_and_b32 v22, 1, v19")
        a("v_lshl_add_u32 v21, v22, 9, v21")
        a("v_add_u32 v21, s3, v21")
        a("v_lshl_add_u32 v17, v20, 4, v21")
        a("v_and_b32 v22, 7, v20")
        a("v_lshrrev_b32 v23, 3, v20")
        a("v_lshl_add_u32 v22, v23, 4, v22")
        a("v_lshl_add_u32 v16, v22, 4, v21")
        def pack(dst, b0, b1):
            return [f"v_cvt_pk_bf16_f32 v{dst}, v{b0}, v{b0 + 1}", f"v_cvt_pk_bf16_f32 v{dst + 1}, v{b0 + 2}, v{b0 + 3}",
                    f"v_cvt_pk_bf16_f32 v{dst + 2}, v{b1}, v{b1 + 1}", f"v_cvt_pk_bf16_f32 v{dst + 3}, v{b1 + 2}, v{b1 + 3}"]
        t = 24
        for tk in range(4):
            for l in pack(t + 4 * tk, acc(1, 0, tk), acc(1, 1, tk)): a(l)
            a(f"s_mov_b32 s38, {(4 << 20) + (tk >> 1) * 2048}")
            a(f"buffer_store_dwordx4 {vr(t + 4 * tk, 4)}, v16, {ws}, s38 offen offset:{(tk & 1) * 128} {sm}")
        for T in range(2):
            for ft in range(2):
                u = t + 16 + 4 * (T * 2 + ft)
                for l in pack(u, acc(2, ft, 2 * T), acc(2, ft, 2 * T + 1)): a(l)
                a(f"s_mov_b32 s38, {(8 << 20) + T * 2048}")
                a(f"buffer_store_dwordx4 {vr(u, 4)}, v17, {ws}, s38 offen offset:{ft * 256} {sm}")
        for tk in range(4):
            for ft in range(2):
                b = acc(0, ft, tk)
                a(f"v_pk_mul_f32 {vr(b, 2)}, {vr(b, 2)}, s[36:37]")
                a(f"v_pk_mul_f32 {vr(b + 2, 2)}, {vr(b + 2, 2)}, s[36:37]")
        for tk in range(4):
            u = acc(1, 0, 0) + 4 * tk
            for l in pack(u, acc(0, 0, tk), acc(0, 1, tk)): a(l)
            a(f"s_mov_b32 s38, {(tk >> 1) * 2048}")
            a(f"buffer_store_dwordx4 {vr(u, 4)}, v17, {ws}, s38 offen offset:{(tk & 1) * 256} {sm}")
        a("v_lshlrev_b32 v17, 4, v18")
        a(f"s_lshl_b32 s3, s{S_HD}, 17")
        a(f"s_lshl_b32 s4, s{S_MT}, 3")
        a(f"s_lshl_b32 s5, s{S_TH}, 2")
        a("s_add_u32 s4, s4, s5")
        a("s_lshl_b32 s4, s4, 10")
        a("s_add_u32 s3, s3, s4")
        a(f"s_add_u32 s3, s3, {WS_QB}")
        for tk in range(4):
            u = acc(2, 0, 0) + 4 * tk
            for l in pack(u, acc(3, 0, tk), acc(3, 1, tk)): a(l)
            a(f"buffer_store_dwordx4 {vr(u, 4)}, v17, {ws}, s3 offen offset:{tk * 1024} {sm}")
        self.pstamp(a, 5)
        if self.pfwo: self.prefetch_wo(a)
        KB, VB = 64, 80
        for tk in range(4):
            for l in pack(KB + 4 * tk, acc(4, 0, tk), acc(4, 1, tk)): a(l)
        for dt in range(2):
            for T in range(2):
                for l in pack(VB + (dt * 2 + T) * 4, acc(5, dt, 2 * T), acc(5, dt, 2 * T + 1)): a(l)
        a("v_bfe_u32 v20, v18, 2, 2")
        a("v_lshl_add_u32 v21, v19, 2, v20")
        a("v_mul_u32_u24 v23, 136, v21")
        a("v_lshlrev_b32 v21, 6, v21")
        a("v_and_b32 v20, 3, v18")
        a("v_lshl_add_u32 v21, v20, 3, v21")
        a(f"s_lshr_b32 s3, s{S_WV}, 1")
        a("s_lshl_b32 s3, s3, 11")
        a(f"s_add_u32 s3, s3, {L_WP}")
        a("v_add_u32 v21, s3, v21")
        RS = 136
        a(f"s_mul_i32 s3, s{S_WV}, {64 * RS}")
        a("v_lshl_add_u32 v23, v20, 3, v23")
        a("v_add_u32 v23, s3, v23")
        a("v_and_b32 v20, 15, v18")
        a(f"v_mul_u32_u24 v22, {RS}, v20")
        a("v_lshl_add_u32 v22, v19, 3, v22")
        a("v_add_u32 v22, s3, v22")
        for ft in range(2):
            for q in range(2):
                a(f"ds_read_b64_tr_b16 {vr(24 + 4 * ft + 2 * q, 2)}, v21 offset:{q * 1024 + ft * 32}")
        a("v_mov_b32 v32, 0x3f803f80")
        for r in range(1, 4): a(f"v_mov_b32 v{32 + r}, v32")
        l2e = f32bits(LOG2E)
        a(f"s_mov_b32 s36, {l2e}")
        a(f"s_mov_b32 s37, {l2e}")
        a(f"s_mov_b32 s40, {f32bits(-LOG2E)}")
        a(f"s_mov_b32 s41, {f32bits(-LOG2E)}")
        a("s_waitcnt lgkmcnt(0)")
        a("s_barrier")
        self.pstamp(a, 6)
        PB, EPB, BP, BM, SS, MX, MN, TM = 128, 160, 192, 208, 224, 36, 44, 52
        T4 = range(4)
        P = lambda t, i: PB + 8 * t + i
        EP = lambda t, i: EPB + 8 * t + i
        for t in T4:
            for ft in range(2):
                a(f"v_mfma_f32_16x16x32_bf16 {vr(PB + 8 * t + 4 * ft, 4)}, {vr(24 + 4 * ft, 4)}, {vr(KB + 4 * t, 4)}, 0")
        a("s_nop 7")
        mx = lambda t: MX + 2 * t
        mn = lambda t: MN + 2 * t
        tm = lambda t: TM + 2 * t
        for t in T4:
            a(f"v_max3_f32 v{mx(t)}, v{P(t,0)}, v{P(t,1)}, v{P(t,2)}")
            a(f"v_min3_f32 v{mn(t)}, v{P(t,0)}, v{P(t,1)}, v{P(t,2)}")
        for i in (3, 5):
            for t in T4:
                a(f"v_max3_f32 v{mx(t)}, v{mx(t)}, v{P(t,i)}, v{P(t,i+1)}")
                a(f"v_min3_f32 v{mn(t)}, v{mn(t)}, v{P(t,i)}, v{P(t,i+1)}")
        for t in T4:
            a(f"v_max_f32 v{mx(t)}, v{mx(t)}, v{P(t,7)}")
            a(f"v_min_f32 v{mn(t)}, v{mn(t)}, v{P(t,7)}")
        for t in T4: a(f"v_sub_f32 v{mn(t)}, 0, v{mn(t)}")
        a("s_nop 1")
        for t in T4: a(f"v_permlane32_swap_b32 v{mx(t)}, v{mn(t)}")
        a("s_nop 1")
        for t in T4: a(f"v_max_f32 v{mx(t)}, v{mx(t)}, v{mn(t)}")
        for t in T4: a(f"v_mov_b32 v{tm(t)}, v{mx(t)}")
        a("s_nop 1")
        for t in T4: a(f"v_permlane16_swap_b32 v{mx(t)}, v{tm(t)}")
        a("s_nop 1")
        for t in T4: a(f"v_max_f32 v{mx(t)}, v{mx(t)}, v{tm(t)}")
        for t in T4: a(f"v_mov_b32 v{mn(t)}, v{mx(t)}")
        a("s_nop 1")
        for t in T4: a(f"v_permlane32_swap_b32 v{mx(t)}, v{mn(t)}")
        a("s_nop 1")
        for t in T4:
            a(f"v_mul_f32 v{mx(t)}, s40, v{mx(t)}")
            a(f"v_mul_f32 v{mn(t)}, s40, v{mn(t)}")
        for t in T4:
            for i in range(0, 8, 2):
                a(f"v_pk_fma_f32 {vr(EP(t,i), 2)}, {vr(P(t,i), 2)}, s[36:37], {vr(mx(t), 2)} op_sel_hi:[1,1,0]")
                a(f"v_pk_fma_f32 {vr(P(t,i), 2)}, {vr(P(t,i), 2)}, s[40:41], {vr(mn(t), 2)} op_sel_hi:[1,1,0]")
        for t in T4:
            for i in range(8):
                a(f"v_exp_f32 v{EP(t,i)}, v{EP(t,i)}")
                a(f"v_exp_f32 v{P(t,i)}, v{P(t,i)}")
        a("s_nop 0")
        for t in T4:
            for k in range(4):
                a(f"v_cvt_pk_bf16_f32 v{BP + 4*t + k}, v{EP(t,2*k)}, v{EP(t,2*k+1)}")
                a(f"v_cvt_pk_bf16_f32 v{BM + 4*t + k}, v{P(t,2*k)}, v{P(t,2*k+1)}")
        a("s_nop 1")
        for t in T4:
            a(f"v_mfma_f32_16x16x32_bf16 {vr(SS + 8 * t, 4)}, {vr(32, 4)}, {vr(BP + 4 * t, 4)}, 0")
            a(f"v_mfma_f32_16x16x32_bf16 {vr(SS + 8 * t + 4, 4)}, {vr(32, 4)}, {vr(BM + 4 * t, 4)}, 0")
        a("s_nop 7")
        for t in T4:
            a(f"v_rcp_f32 v{SS + 8 * t}, v{SS + 8 * t}")
            a(f"v_rcp_f32 v{SS + 8 * t + 4}, v{SS + 8 * t + 4}")
        a("s_nop 0")
        for t in T4:
            for i in range(0, 8, 2):
                a(f"v_pk_mul_f32 {vr(EP(t,i), 2)}, {vr(EP(t,i), 2)}, {vr(SS + 8 * t, 2)} op_sel_hi:[1,0]")
                a(f"v_pk_mul_f32 {vr(P(t,i), 2)}, {vr(P(t,i), 2)}, {vr(SS + 8 * t + 4, 2)} op_sel_hi:[1,0]")
        for t in T4:
            for k in range(4):
                a(f"v_cvt_pk_bf16_f32 v{BP + 4*t + k}, v{EP(t,2*k)}, v{EP(t,2*k+1)}")
                a(f"v_cvt_pk_bf16_f32 v{BM + 4*t + k}, v{P(t,2*k)}, v{P(t,2*k+1)}")
            row = t * 16 * RS
            for ft in range(2):
                a(f"ds_write_b64 v22, {vr(BP + 4 * t + 2 * ft, 2)} offset:{row + ft * 32}")
                a(f"ds_write_b64 v22, {vr(BM + 4 * t + 2 * ft, 2)} offset:{row + 64 + ft * 32}")
        a("s_waitcnt lgkmcnt(0)")
        self.pstamp(a, 7)
        AF, KV = 128, 160
        for sf in range(4):
            for T in range(2):
                for q in range(2):
                    a(f"ds_read_b64_tr_b16 {vr(AF + (sf * 2 + T) * 4 + 2 * q, 2)}, v23 offset:{(32 * T + 16 * q) * RS + sf * 32}")
        for sf in range(4):
            a(f"s_waitcnt lgkmcnt({(3 - sf) * 4})")
            for T in range(2):
                A = vr(AF + (sf * 2 + T) * 4, 4)
                for dt in range(3):
                    d = vr(KV + (sf * 3 + dt) * 4, 4)
                    B = vr(VB + (dt * 2 + T) * 4, 4) if dt < 2 else vr(32, 4)
                    a(f"v_mfma_f32_16x16x32_bf16 {d}, {A}, {B}, {d if T else 0}")
        XB = 40960
        a(f"s_mul_i32 s3, s{S_WV}, 12288")
        a(f"s_add_u32 s3, s3, {XB}")
        a("v_add_u32 v20, s3, v17")
        a(f"s_and_b32 s4, s{S_WV}, 2")
        a(f"s_mul_i32 s4, s4, 12288")
        a(f"s_mul_i32 s5, s{S_TH}, 6144")
        a("s_add_u32 s4, s4, s5")
        a(f"s_add_u32 s4, s4, {XB}")
        a("v_add_u32 v21, s4, v17")
        a("s_nop 2")
        for k in range(12): a(f"ds_write_b128 v20, {vr(KV + 4 * k, 4)} offset:{k * 1024}")
        a("s_waitcnt lgkmcnt(0)")
        a("s_barrier")
        for w in range(2):
            for k in range(6):
                a(f"ds_read_b128 {vr(64 + (w * 6 + k) * 4, 4)}, v21 offset:{w * 12288 + k * 1024}")
        a(f"s_lshl_b32 s3, s{S_HD}, 4")
        a(f"s_add_u32 s3, s3, s{S_MT}")
        a("s_lshl_b32 s3, s3, 14")
        a(f"s_add_u32 s3, s3, {WS_KVP}")
        a(f"s_lshl_b32 s4, s{S_TH}, 12")
        a("s_add_u32 s4, s4, s3")
        a(f"s_lshl_b32 s6, s{S_TH}, 7")
        a("s_add_u32 s6, s6, s3")
        a("s_add_u32 s6, s6, 8192")
        a("v_lshlrev_b32 v19, 4, v19")
        a("s_waitcnt lgkmcnt(0)")
        for i in range(0, 24, 2):
            a(f"v_pk_add_f32 {vr(64 + i, 2)}, {vr(64 + i, 2)}, {vr(88 + i, 2)}")
        for ft in range(2):
            for dt in range(2):
                a(f"buffer_store_dwordx4 {vr(64 + (ft * 3 + dt) * 4, 4)}, v17, {ws}, s4 offen offset:{(ft * 2 + dt) * 1024} {sm}")
            a(f"buffer_store_dwordx4 {vr(64 + (ft * 3 + 2) * 4, 4)}, v19, {ws}, s6 offen offset:{ft * 64} {sm}")
```

```python
from asmlib import *
from layout import *
from prof import Prof

MARGIN = 90.0
TPS, TPW = 8, 4
STG = TPS * 4096
LDS_MISC = 2 * STG
L_KV, L_Z, L_WP, L_VOTE = 0, 4096, 6144, 8192
LDS_K2 = LDS_MISC + 8192 + 64

V_LANE16, V_T0, V_T1, V_T2, V_T3, V_G, V_RD = 1, 2, 3, 4, 5, 6, 7
VQ, VC, VS, VP, VKF, VVF, VO, VL, VONE = 8, 24, 56, 88, 96, 112, 128, 160, 168
S_WS, S_K, S_V = 8, 12, 16
S_H, S_QB, S_WV, S_SOFF, S_CNT, S_MODE, S_WOFF, S_QG, S_KH = 20, 21, 22, 23, 24, 25, 26, 27, 32

class K2c(Prof):
    V_PROF = 250
    def __init__(self, name, prof=False, store_mod="nt", force_fallback=False, margin=MARGIN, sched=1, bapply=True, prio=0, diag=(), code=None):
        self.name, self.prof, self.store_mod = name, prof, store_mod
        self.force_fallback, self.margin, self.sched, self.bapply, self.prio = force_fallback, margin, sched, bapply, prio
        self.diag = set(diag)
        self.code = code

    def dma_piece(self, slot, i):
        kv, n = i >> 1, i & 1
        srd_ = S_K if kv == 0 else S_V
        ins = []
        if n == 0:
            ins += [f"s_add_u32 m0, s{S_WOFF}, {slot * STG + kv * (STG // 2)}", "s_nop 0"]
        ins.append(f"buffer_load_dwordx4 v{V_LANE16}, s[{srd_}:{srd_+3}], s{S_SOFF} offen offset:{n * 1024} lds")
        if i == 3:
            ins.append(f"s_add_u32 s{S_SOFF}, s{S_SOFF}, {STG // 2}")
        return ins
    def dma_stage(self, slot):
        return [l for i in range(4) for l in self.dma_piece(slot, i)]

    @staticmethod
    def koff(j): return (j // TPW) * STG + (j % TPW) * 2048
    def rdK(self, j):
        b = VKF + 8 * (j & 1); j %= 2 * TPW
        return [f"ds_read_b128 {vr(b + 4 * st, 4)}, v{V_RD} offset:{self.koff(j) + st * 1024}" for st in range(2)]
    def rdV(self, j):
        b = VVF + 8 * (j & 1); j %= 2 * TPW
        return [f"ds_read_b128 {vr(b + 4 * st, 4)}, v{V_RD} offset:{self.koff(j) + STG // 2 + st * 1024}" for st in range(2)]

    def unit(self, a, j, qt):
        u = 2 * j + qt
        s, sn = VS + 16 * (u & 1), VS + 16 * ((u + 1) & 1)
        jn, qn = (j + (qt == 1), qt ^ 1)
        kn = VKF + 8 * (jn & 1)
        jp, qp = (j - (qt == 0), qt ^ 1)
        v, vp = VVF + 8 * (j & 1), VVF + 8 * (jp & 1)
        e = lambda r: f"v_exp_f32 v{s + r}, v{s + r}"
        c = lambda k: f"v_cvt_pk_bf16_f32 v{VP + k}, v{s + 2 * k}, v{s + 2 * k + 1}"
        O, Op, Lq, Lp = VO + 16 * qt, VO + 16 * qp, VL + 4 * qt, VL + 4 * qp
        Sa = f"v_mfma_f32_32x32x16_bf16 {vr(sn, 16)}, {vr(kn, 4)}, {vr(VQ + 8 * qn, 4)}, {vr(VC + 16 * qn, 16)}"
        Sb = f"v_mfma_f32_32x32x16_bf16 {vr(sn, 16)}, {vr(kn + 4, 4)}, {vr(VQ + 8 * qn + 4, 4)}, {vr(sn, 16)}"
        PVa = f"v_mfma_f32_32x32x16_bf16 {vr(O, 16)}, {vr(v, 4)}, {vr(VP, 4)}, {vr(O, 16)}"
        PVb = f"v_mfma_f32_32x32x16_bf16 {vr(Op, 16)}, {vr(vp + 4, 4)}, {vr(VP + 4, 4)}, {vr(Op, 16)}"
        La = f"v_mfma_f32_16x16x32_bf16 {vr(Lq, 4)}, {vr(VONE, 4)}, {vr(VP, 4)}, {vr(Lq, 4)}"
        Lb = f"v_mfma_f32_16x16x32_bf16 {vr(Lp, 4)}, {vr(VONE, 4)}, {vr(VP + 4, 4)}, {vr(Lp, 4)}"
        rd = self.rdK(j + 1) if qt == 0 else self.rdV(j + 1)
        top = ["s_waitcnt lgkmcnt(0)"]
        jj = j % TPW
        if jj == TPW - 1 and qt == 0:
            top += ["s_waitcnt vmcnt(0)", "s_barrier"]
        k = (2 * jj + qt - 2 * (TPW - 1)) % (2 * TPW)
        dm = []
        if k < 4:
            dm = self.dma_piece((((j + 1) // TPW) + 1) & 1, k)
        r0, r1 = rd[:1], rd[1:]
        if self.sched == 1:
            seq = (top + [e(0)] + r0 + [e(1)] + r1 + [e(2), e(3), Sa, c(0), c(1), e(4), e(5), Lb, e(6), e(7), c(2), c(3), Sb,
                   e(8)] + dm + [e(9), e(10), e(11), PVb, c(4), c(5), e(12), e(13), PVa, e(14), e(15), c(6), c(7), La])
        elif self.sched == 2:
            seq = (top + r0 + r1 + [e(0), e(1), e(2), e(3), Sa, c(0), c(1), e(4), e(5), Lb, e(6), e(7), c(2), c(3), Sb] + dm +
                   [e(8), e(9), e(10), e(11), PVb, c(4), c(5), e(12), e(13), PVa, e(14), e(15), c(6), c(7), La])
        D = self.diag
        if "nord" in D: seq = [l for l in seq if not l.startswith("ds_read")]
        if "noL" in D: seq = [l for l in seq if "16x16x32" not in l]
        for l in seq: a(l)

    def halfmax(self, a, x, t):
        a(f"v_mov_b32 v{t}, v{x}")
        a("s_nop 1")
        a(f"v_permlane32_swap_b32 v{x}, v{t}")
        a("s_nop 1")
        a(f"v_max_f32 v{x}, v{x}, v{t}")

    NT = 2
    def b_loads(self, a):
        ws = f"s[{S_WS}:{S_WS+3}]"
        a(f"s_lshl_b32 s6, s{S_H}, 18")
        a(f"s_add_u32 s6, s6, {WS_KVP}")
        a(f"s_lshl_b32 s7, s{S_WV}, 10")
        a("s_add_u32 s7, s7, s6")
        a(f"v_lshrrev_b32 v{V_T0}, 4, v{V_T1}")
        a(f"v_lshlrev_b32 v{V_T0}, 4, v{V_T0}")
        a(f"s_and_b32 s3, s{S_WV}, 3")
        a("s_lshl_b32 s3, s3, 6")
        a("s_add_u32 s3, s3, s6")
        a("s_add_u32 s3, s3, 8192")
        for b in range(NKVP):
            a(f"buffer_load_dwordx4 {vr(24 + 8 * b, 4)}, v{V_LANE16}, {ws}, s7 offen")
            a(f"buffer_load_dwordx4 {vr(24 + 8 * b + 4, 4)}, v{V_T0}, {ws}, s3 offen")
            if b < NKVP - 1:
                a(f"s_add_u32 s7, s7, {KVP_STRIDE}")
                a(f"s_add_u32 s3, s3, {KVP_STRIDE}")
        a(f"s_lshl_b32 s6, s{S_QB}, 4")
        a(f"s_lshl_b32 s7, s{S_WV}, 1")
        a("s_add_u32 s6, s6, s7")
        a("s_lshl_b32 s7, s6, 10")
        a(f"s_lshl_b32 s3, s{S_H}, 17")
        a("s_add_u32 s7, s7, s3")
        a(f"s_add_u32 s7, s7, {WS_QB}")
        for t in range(self.NT):
            a(f"buffer_load_dwordx4 {vr(160 + 4 * t, 4)}, v{V_LANE16}, {ws}, s7 offen offset:{t * 1024}")
        a("s_lshl_b32 s7, s6, 6")
        a(f"s_add_u32 s7, s7, {WS_G}")
        a(f"v_and_b32 v{V_T0}, 15, v{V_T1}")
        a(f"v_lshlrev_b32 v{V_T0}, 2, v{V_T0}")
        for t in range(self.NT):
            a(f"buffer_load_dword v{168 + t}, v{V_T0}, {ws}, s7 offen offset:{t * 64}")
        a(f"s_cmp_ge_u32 s{S_WV}, 2")
        a(f"s_cbranch_scc1 {self.name}_nowp")
        a(f"s_lshl_b32 s6, s{S_H}, 11")
        a(f"s_lshl_b32 s7, s{S_WV}, 10")
        a("s_add_u32 s6, s6, s7")
        a(f"s_add_u32 m0, s7, {LDS_MISC + L_WP}")
        a("s_nop 0")
        a(f"buffer_load_dwordx4 v{V_LANE16}, s[28:31], s6 offen lds")
        a.label(f"{self.name}_nowp")

    def b_apply(self, a):
        ws = f"s[{S_WS}:{S_WS+3}]"
        NT = self.NT
        for b in range(1, NKVP):
            for r in range(0, 8, 2):
                a(f"v_pk_add_f32 {vr(24 + r, 2)}, {vr(24 + r, 2)}, {vr(24 + 8 * b + r, 2)}")
        for k in range(4):
            a(f"v_cvt_pk_bf16_f32 v{36 + k}, v{24 + 2 * k}, v{25 + 2 * k}")
        a(f"v_lshlrev_b32 v{V_T0}, 3, v{V_T1}")
        a(f"v_add_u32 v{V_T0}, {LDS_MISC}, v{V_T0}")
        a(f"s_lshl_b32 s6, s{S_WV}, 9")
        a(f"v_add_u32 v{V_T2}, s6, v{V_T0}")
        a(f"ds_write_b64 v{V_T2}, {vr(36, 2)} offset:{L_KV}")
        a(f"s_and_b32 s6, s{S_WV}, 3")
        a(f"s_lshl_b32 s6, s6, 9")
        a(f"v_add_u32 v{V_T2}, s6, v{V_T0}")
        a(f"ds_write_b64 v{V_T2}, {vr(38, 2)} offset:{L_Z}")
        a("s_waitcnt lgkmcnt(0)")
        a("s_barrier")
        for sg in range(2):
            for dt in range(2):
                for ft in range(2):
                    t = (sg * 2 + ft) * 2 + dt
                    a(f"ds_read_b64 {vr(24 + (sg * 2 + dt) * 4 + 2 * ft, 2)}, v{V_T0} offset:{L_KV + t * 512}")
            for ft in range(2):
                a(f"ds_read_b64 {vr(40 + sg * 4 + 2 * ft, 2)}, v{V_T0} offset:{L_Z + (sg * 2 + ft) * 512}")
        a(f"v_lshrrev_b32 v{V_T2}, 4, v{V_T1}")
        a(f"v_bfe_u32 v{V_T3}, v{V_T1}, 2, 2")
        a(f"v_lshl_add_u32 v{V_T2}, v{V_T2}, 2, v{V_T3}")
        a(f"v_lshlrev_b32 v{V_T2}, 6, v{V_T2}")
        a(f"v_and_b32 v{V_T3}, 3, v{V_T1}")
        a(f"v_lshl_add_u32 v{V_T2}, v{V_T3}, 3, v{V_T2}")
        a(f"v_add_u32 v{V_T2}, {LDS_MISC}, v{V_T2}")
        for ft in range(2):
            for q in range(2):
                a(f"ds_read_b64_tr_b16 {vr(48 + 4 * ft + 2 * q, 2)}, v{V_T2} offset:{L_WP + q * 1024 + ft * 32}")
        a(f"v_mov_b32 v56, 0x3f803f80")
        for r in range(1, 4): a(f"v_mov_b32 v{56 + r}, v56")
        a("s_waitcnt lgkmcnt(0)")
        for t in range(NT):
            for ft in range(2):
                a(f"v_mfma_f32_16x16x32_bf16 {vr(64 + 8 * t + 4 * ft, 4)}, {vr(48 + 4 * ft, 4)}, {vr(160 + 4 * t, 4)}, 0")
        a("s_nop 7")
        P = lambda t, i: 64 + 8 * t + i
        MX, MN, TM = 96, 100, 104
        T = range(NT)
        for t in T:
            a(f"v_max3_f32 v{MX+2*t}, v{P(t,0)}, v{P(t,1)}, v{P(t,2)}")
            a(f"v_min3_f32 v{MN+2*t}, v{P(t,0)}, v{P(t,1)}, v{P(t,2)}")
        for i in (3, 5):
            for t in T:
                a(f"v_max3_f32 v{MX+2*t}, v{MX+2*t}, v{P(t,i)}, v{P(t,i+1)}")
                a(f"v_min3_f32 v{MN+2*t}, v{MN+2*t}, v{P(t,i)}, v{P(t,i+1)}")
        for t in T:
            a(f"v_max_f32 v{MX+2*t}, v{MX+2*t}, v{P(t,7)}")
            a(f"v_min_f32 v{MN+2*t}, v{MN+2*t}, v{P(t,7)}")
        for t in T: a(f"v_sub_f32 v{MN+2*t}, 0, v{MN+2*t}")
        a("s_nop 1")
        for t in T: a(f"v_permlane32_swap_b32 v{MX+2*t}, v{MN+2*t}")
        a("s_nop 1")
        for t in T: a(f"v_max_f32 v{MX+2*t}, v{MX+2*t}, v{MN+2*t}")
        for t in T: a(f"v_mov_b32 v{TM+2*t}, v{MX+2*t}")
        a("s_nop 1")
        for t in T: a(f"v_permlane16_swap_b32 v{MX+2*t}, v{TM+2*t}")
        a("s_nop 1")
        for t in T: a(f"v_max_f32 v{MX+2*t}, v{MX+2*t}, v{TM+2*t}")
        for t in T: a(f"v_mov_b32 v{MN+2*t}, v{MX+2*t}")
        a("s_nop 1")
        for t in T: a(f"v_permlane32_swap_b32 v{MX+2*t}, v{MN+2*t}")
        a("s_nop 1")
        EP = lambda t, i: 176 + 8 * t + i
        a(f"s_mov_b32 s36, {f32bits(LOG2E)}")
        a(f"s_mov_b32 s37, {f32bits(LOG2E)}")
        a(f"s_mov_b32 s38, {f32bits(-LOG2E)}")
        a(f"s_mov_b32 s39, {f32bits(-LOG2E)}")
        for t in T:
            a(f"v_mul_f32 v{MX+2*t}, s38, v{MX+2*t}")
            a(f"v_mul_f32 v{MN+2*t}, s38, v{MN+2*t}")
        for t in T:
            for i in range(0, 8, 2):
                a(f"v_pk_fma_f32 {vr(EP(t,i), 2)}, {vr(P(t,i), 2)}, s[36:37], {vr(MX+2*t, 2)} op_sel_hi:[1,1,0]")
                a(f"v_pk_fma_f32 {vr(P(t,i), 2)}, {vr(P(t,i), 2)}, s[38:39], {vr(MN+2*t, 2)} op_sel_hi:[1,1,0]")
        for t in T:
            for i in range(8):
                a(f"v_exp_f32 v{EP(t,i)}, v{EP(t,i)}")
                a(f"v_exp_f32 v{P(t,i)}, v{P(t,i)}")
        BP, BM = 96, 112
        a("s_nop 0")
        for t in T:
            for k in range(4):
                a(f"v_cvt_pk_bf16_f32 v{BP + 4*t + k}, v{EP(t,2*k)}, v{EP(t,2*k+1)}")
                a(f"v_cvt_pk_bf16_f32 v{BM + 4*t + k}, v{P(t,2*k)}, v{P(t,2*k+1)}")
        a("s_nop 1")
        for t in T:
            R = 176 + 32 * t
            bp, bm = vr(BP + 4 * t, 4), vr(BM + 4 * t, 4)
            for dt in range(2):
                a(f"v_mfma_f32_16x16x32_bf16 {vr(R + 4 * dt, 4)}, {vr(24 + 4 * dt, 4)}, {bp}, 0")
                a(f"v_mfma_f32_16x16x32_bf16 {vr(R + 8 + 4 * dt, 4)}, {vr(32 + 4 * dt, 4)}, {bm}, 0")
            a(f"v_mfma_f32_16x16x32_bf16 {vr(R + 16, 4)}, {vr(40, 4)}, {bp}, 0")
            a(f"v_mfma_f32_16x16x32_bf16 {vr(R + 20, 4)}, {vr(44, 4)}, {bm}, 0")
            a(f"v_mfma_f32_16x16x32_bf16 {vr(R + 24, 4)}, {vr(56, 4)}, {bp}, 0")
            a(f"v_mfma_f32_16x16x32_bf16 {vr(R + 28, 4)}, {vr(56, 4)}, {bm}, 0")
        a("s_nop 7")
        for t in T:
            R = 176 + 32 * t
            a(f"v_rcp_f32 v{R + 24}, v{R + 24}")
            a(f"v_rcp_f32 v{R + 28}, v{R + 28}")
        a("s_nop 0")
        for t in T:
            R = 176 + 32 * t
            a(f"v_mul_f32 v{R + 16}, v{R + 16}, v{R + 24}")
            a(f"v_sub_f32 v{R + 17}, 1.0, v{168 + t}")
            a(f"v_fma_f32 v{R + 16}, v{R + 20}, v{R + 28}, v{R + 16}")
            a(f"v_add_f32 v{R + 16}, {f32bits(1e-6)}, v{R + 16}")
        for t in T:
            a(f"v_rcp_f32 v{176 + 32 * t + 16}, v{176 + 32 * t + 16}")
        a("s_nop 0")
        for t in T:
            R = 176 + 32 * t
            a(f"v_mul_f32 v{R + 16}, v{R + 16}, v{R + 17}")
            a(f"v_mul_f32 v{R + 24}, v{R + 24}, v{R + 16}")
            a(f"v_mul_f32 v{R + 28}, v{R + 28}, v{R + 16}")
        for t in T:
            R = 176 + 32 * t
            for i in range(8): a(f"v_mul_f32 v{R + i}, v{R + i}, v{R + 24}")
            for i in range(8): a(f"v_fma_f32 v{R + i}, v{R + 8 + i}, v{R + 28}, v{R + i}")
        for t in T:
            R = 176 + 32 * t
            for k in range(4):
                a(f"v_cvt_pk_bf16_f32 v{R + 20 + k}, v{R + 2 * k}, v{R + 2 * k + 1}")
            a(f"s_lshl_b32 s6, s{S_QB}, 4")
            a(f"s_lshl_b32 s7, s{S_WV}, 1")
            a("s_add_u32 s6, s6, s7")
            a(f"s_add_u32 s6, s6, {t}")
            a("s_lshl_b32 s6, s6, 10")
            a(f"s_lshl_b32 s7, s{S_H}, 17")
            a("s_add_u32 s6, s6, s7")
            a(f"s_add_u32 s6, s6, {WS_O + 32 * 131072}")
            a(f"buffer_store_dwordx4 {vr(R + 20, 4)}, v{V_LANE16}, {ws}, s6 offen {self.store_mod}")

    def gen(self):
        a = Asm()
        n = self.name
        ws = f"s[{S_WS}:{S_WS+3}]"
        a("s_cmp_ge_u32 s2, 256")
        a(f"s_cbranch_scc1 {n}_end")
        self.pstamp(a, 0)
        if self.code:
            first, last, nbytes = self.code
            code_prefetch(a, n, first, last, 8, 240, 242, 90)(-(-nbytes // 32768))
        a("s_load_dwordx2 s[4:5], s[0:1], 80")
        a("s_load_dwordx2 s[34:35], s[0:1], 40")
        a("s_and_b32 s3, s2, 7")
        a("s_lshr_b32 s6, s2, 3")
        a(f"s_lshl_b32 s{S_H}, s3, 2")
        a("s_lshr_b32 s7, s6, 3")
        a(f"s_add_u32 s{S_H}, s{S_H}, s7")
        a(f"s_and_b32 s{S_QB}, s6, 7")
        a("v_lshrrev_b32 v2, 6, v0")
        a(f"v_and_b32 v{V_T1}, 63, v0")
        a(f"v_lshlrev_b32 v{V_LANE16}, 4, v{V_T1}")
        a(f"v_readfirstlane_b32 s{S_WV}, v2")
        a("s_waitcnt lgkmcnt(0)")
        srd(a, S_WS, 4, 0x10000000)
        srd(a, 28, 34, 65536)
        a(f"s_lshl_b32 s3, s{S_H}, 17")
        for S, off in ((S_K, WS_KA), (S_V, WS_VA)):
            a(f"s_add_u32 s6, s3, {off}")
            a(f"s_add_u32 s{S}, s4, s6")
            a(f"s_addc_u32 s{S+1}, s5, 0")
            a(f"s_and_b32 s{S+1}, s{S+1}, 0xffff")
            a(f"s_mov_b32 s{S+2}, 131072")
            a(f"s_mov_b32 s{S+3}, 0x00020000")
        a(f"s_lshl_b32 s{S_WOFF}, s{S_WV}, 11")
        a(f"s_and_b32 s{S_QG}, s{S_WV}, 3")
        a(f"s_lshr_b32 s{S_KH}, s{S_WV}, 2")
        a(f"s_lshl_b32 s6, s{S_KH}, 13")
        a(f"v_add_u32 v{V_RD}, s6, v{V_LANE16}")
        a(f"s_lshl_b32 s6, s{S_QB}, 3")
        a(f"s_lshl_b32 s7, s{S_QG}, 1")
        a("s_add_u32 s6, s6, s7")
        a("s_lshl_b32 s7, s6, 11")
        a(f"s_lshl_b32 s3, s{S_H}, 17")
        a("s_add_u32 s7, s7, s3")
        a(f"s_add_u32 s7, s7, {WS_QA}")
        if self.bapply:
            self.b_loads(a)
            a(f"s_lshl_b32 s6, s{S_QB}, 3")
            a(f"s_lshl_b32 s7, s{S_QG}, 1")
            a("s_add_u32 s6, s6, s7")
            a("s_lshl_b32 s7, s6, 11")
            a(f"s_lshl_b32 s3, s{S_H}, 17")
            a("s_add_u32 s7, s7, s3")
            a(f"s_add_u32 s7, s7, {WS_QA}")
        for i in range(4):
            a(f"buffer_load_dwordx4 {vr(VQ + 4 * i, 4)}, v{V_LANE16}, {ws}, s7 offen offset:{i * 1024}")
        a(f"s_add_u32 s6, s6, s{S_KH}")
        a("s_lshl_b32 s7, s6, 7")
        a(f"s_add_u32 s7, s7, {WS_G}")
        a(f"v_and_b32 v{V_T0}, 31, v{V_T1}")
        a(f"v_lshlrev_b32 v{V_T0}, 2, v{V_T0}")
        a(f"buffer_load_dword v{V_G}, v{V_T0}, {ws}, s7 offen")
        a(f"s_mov_b32 s{S_MODE}, 0")
        a(f"s_mov_b32 s{S_SOFF}, s{S_WOFF}")
        for l in self.dma_stage(0): a(l)
        self.pstamp(a, 1)
        if self.bapply:
            a("s_waitcnt vmcnt(9)")
            a("s_barrier")
            self.pstamp(a, 2)
            self.b_apply(a)
        self.pstamp(a, 3)
        a(f"v_lshrrev_b32 v{V_T0}, 4, v{V_T1}")
        a(f"v_lshrrev_b32 v{V_T2}, 2, v{V_T1}")
        a(f"v_xor_b32 v{V_T0}, v{V_T0}, v{V_T2}")
        a(f"v_and_b32 v{V_T0}, 1, v{V_T0}")
        a(f"v_mov_b32 v{V_T2}, 0x3f803f80")
        a(f"v_cmp_eq_u32 vcc, 0, v{V_T0}")
        a("s_nop 1")
        a(f"v_cndmask_b32 v{VONE}, 0, v{V_T2}, vcc")
        for r in range(1, 4): a(f"v_mov_b32 v{VONE + r}, v{VONE}")
        a(f"s_waitcnt vmcnt({self.NT if self.bapply else 0})")
        a(f"s_branch {n}_first")
        a.label(f"{n}_restart")
        a(f"s_mov_b32 s{S_SOFF}, s{S_WOFF}")
        for l in self.dma_stage(0): a(l)
        a("s_waitcnt vmcnt(0)")
        a.label(f"{n}_first")
        for r in range(32): a(f"v_mov_b32 v{VO + r}, 0")
        for r in range(8): a(f"v_mov_b32 v{VL + r}, 0")
        for r in range(8): a(f"v_mov_b32 v{VP + r}, 0")
        for r in range(4): a(f"v_mov_b32 v{VVF + 8 + 4 + r}, 0")
        a("s_barrier")
        for l in self.dma_piece(1, 0) + self.dma_piece(1, 1): a(l)
        a(f"s_cmp_lg_u32 s{S_MODE}, 0")
        a(f"s_cbranch_scc1 {n}_havemax")
        a(f"ds_read_b128 {vr(VKF, 4)}, v{V_LANE16}")
        a(f"ds_read_b128 {vr(VKF + 4, 4)}, v{V_LANE16} offset:1024")
        a("s_waitcnt lgkmcnt(0)")
        for qt in range(2):
            s = VS + 16 * qt
            a(f"v_mfma_f32_32x32x16_bf16 {vr(s, 16)}, {vr(VKF, 4)}, {vr(VQ + 8 * qt, 4)}, 0")
            a(f"v_mfma_f32_32x32x16_bf16 {vr(s, 16)}, {vr(VKF + 4, 4)}, {vr(VQ + 8 * qt + 4, 4)}, {vr(s, 16)}")
        a("s_nop 15")
        for qt in range(2):
            s, x = VS + 16 * qt, V_T0 + 2 * qt
            a(f"v_max3_f32 v{x}, v{s}, v{s + 1}, v{s + 2}")
            for r in range(3, 15, 2):
                a(f"v_max3_f32 v{x}, v{x}, v{s + r}, v{s + r + 1}")
            a(f"v_max_f32 v{x}, v{x}, v{s + 15}")
        for qt in range(2):
            x = V_T0 + 2 * qt
            self.halfmax(a, x, V_T3)
            a(f"v_add_f32 v{x}, {f32bits(self.margin)}, v{x}")
            a(f"v_sub_f32 v{VC + 16 * qt}, 0, v{x}")
            for r in range(1, 16): a(f"v_mov_b32 v{VC + 16 * qt + r}, v{VC + 16 * qt}")
        a.label(f"{n}_havemax")
        for l in self.rdK(0) + self.rdV(0): a(l)
        a("s_waitcnt lgkmcnt(0)")
        a(f"v_mfma_f32_32x32x16_bf16 {vr(VS, 16)}, {vr(VKF, 4)}, {vr(VQ, 4)}, {vr(VC, 16)}")
        a(f"v_mfma_f32_32x32x16_bf16 {vr(VS, 16)}, {vr(VKF + 4, 4)}, {vr(VQ + 4, 4)}, {vr(VS, 16)}")
        a("s_nop 7")
        a(f"s_mov_b32 s{S_CNT}, {32 // (2 * TPW)}")
        if self.prio:
            a(f"s_cmp_ge_u32 s{S_WV}, 4")
            a(f"s_cbranch_scc0 {n}_noprio")
            a("s_setprio 1")
            a.label(f"{n}_noprio")
        self.pstamp(a, 4)
        a("s_nop 3")
        a(".p2align 6")
        a.label(f"{n}_loop")
        for j in range(2 * TPW):
            for qt in range(2):
                self.unit(a, j, qt)
        a(f"s_sub_u32 s{S_CNT}, s{S_CNT}, 1")
        a(f"s_cmp_lg_u32 s{S_CNT}, 0")
        a(f"s_cbranch_scc1 {n}_loop")
        a("s_nop 1")
        a(f"v_mfma_f32_32x32x16_bf16 {vr(VO + 16, 16)}, {vr(VVF + 8 + 4, 4)}, {vr(VP + 4, 4)}, {vr(VO + 16, 16)}")
        a(f"v_mfma_f32_16x16x32_bf16 {vr(VL + 4, 4)}, {vr(VONE, 4)}, {vr(VP + 4, 4)}, {vr(VL + 4, 4)}")
        if self.prio: a("s_setprio 0")
        self.pstamp(a, 5)
        a("s_waitcnt vmcnt(0) lgkmcnt(0)")
        a("s_nop 15")
        a(f"s_mov_b32 s3, 0")
        if not self.diag:
            a(f"v_mul_f32 v{V_T0}, {f32bits(256.0)}, v{VL}")
            a(f"v_mul_f32 v{V_T2}, {f32bits(256.0)}, v{VL + 4}")
            a(f"v_mul_f32 v{V_T0}, 0, v{V_T0}")
            a(f"v_fma_f32 v{V_T0}, v{V_T2}, 0, v{V_T0}")
            for r in range(32): a(f"v_fma_f32 v{V_T0}, v{VO + r}, 0, v{V_T0}")
            if self.force_fallback:
                a(f"v_mov_b32 v{V_T0}, 0x7fc00000")
            a(f"v_cmp_u_f32 vcc, v{V_T0}, v{V_T0}")
            a(f"s_or_b32 s3, vcc_lo, vcc_hi")
            a(f"s_cmp_lg_u32 s3, 0")
            a(f"s_cselect_b32 s3, 1, 0")
        a(f"v_mov_b32 v{V_T0}, s3")
        a(f"s_lshl_b32 s6, s{S_WV}, 2")
        a(f"s_add_u32 s6, s6, {LDS_MISC + L_VOTE}")
        a(f"v_mov_b32 v{V_T2}, s6")
        a(f"ds_write_b32 v{V_T2}, v{V_T0}")
        a("s_waitcnt lgkmcnt(0)")
        a("s_barrier")
        a(f"s_mul_i32 s6, s{S_WV}, {5 * 1024}")
        a(f"v_add_u32 v{V_T2}, s6, v{V_LANE16}")
        a(f"s_cmp_eq_u32 s{S_KH}, 0")
        a(f"s_cbranch_scc1 {n}_give1")
        for qt, lab in ((0, ""), (1, f"{n}_give1")):
            if lab: a.label(lab)
            for k in range(4):
                a(f"ds_write_b128 v{V_T2}, {vr(VO + 16 * qt + 4 * k, 4)} offset:{k * 1024}")
            a(f"ds_write_b128 v{V_T2}, {vr(VL + 4 * qt, 4)} offset:4096")
            if qt == 0: a(f"s_branch {n}_gave")
        a.label(f"{n}_gave")
        a(f"v_mov_b32 v{V_T0}, {LDS_MISC + L_VOTE}")
        a(f"ds_read_b128 v[176:179], v{V_T0}")
        a(f"ds_read_b128 v[180:183], v{V_T0} offset:16")
        a("s_waitcnt lgkmcnt(0)")
        a("v_or3_b32 v176, v176, v177, v178")
        a("v_or3_b32 v176, v176, v179, v180")
        a("v_or3_b32 v176, v176, v181, v182")
        a("v_or_b32 v176, v176, v183")
        a("s_barrier")
        a("v_readfirstlane_b32 s3, v176")
        a(f"s_sub_u32 s6, 1, s{S_MODE}")
        a("s_and_b32 s3, s3, s6")
        a("s_cmp_eq_u32 s3, 0")
        a(f"s_cbranch_scc1 {n}_fin")
        a("s_barrier")
        a(f"s_mov_b32 s{S_SOFF}, s{S_WOFF}")
        a(f"s_mov_b32 s{S_CNT}, {64 // TPS}")
        a(f"v_mov_b32 v{V_T0}, 0xff800000")
        a(f"v_mov_b32 v{V_T2}, 0xff800000")
        a.label(f"{n}_maxloop")
        for l in self.dma_stage(0): a(l)
        a("s_waitcnt vmcnt(0)")
        a("s_barrier")
        for j in range(TPS):
            a(f"ds_read_b128 {vr(VKF, 4)}, v{V_LANE16} offset:{j * 2048}")
            a(f"ds_read_b128 {vr(VKF + 4, 4)}, v{V_LANE16} offset:{j * 2048 + 1024}")
            a("s_waitcnt lgkmcnt(0)")
            for qt in range(2):
                s = VS + 16 * qt
                a(f"v_mfma_f32_32x32x16_bf16 {vr(s, 16)}, {vr(VKF, 4)}, {vr(VQ + 8 * qt, 4)}, 0")
                a(f"v_mfma_f32_32x32x16_bf16 {vr(s, 16)}, {vr(VKF + 4, 4)}, {vr(VQ + 8 * qt + 4, 4)}, {vr(s, 16)}")
            a("s_nop 15")
            for qt in range(2):
                s, x = VS + 16 * qt, V_T0 + 2 * qt
                for r in range(0, 16, 2):
                    a(f"v_max3_f32 v{x}, v{x}, v{s + r}, v{s + r + 1}")
        a("s_barrier")
        a(f"s_sub_u32 s{S_CNT}, s{S_CNT}, 1")
        a(f"s_cmp_lg_u32 s{S_CNT}, 0")
        a(f"s_cbranch_scc1 {n}_maxloop")
        for qt in range(2):
            x = V_T0 + 2 * qt
            self.halfmax(a, x, V_T3)
            a(f"v_sub_f32 v{VC + 16 * qt}, 0, v{x}")
            for r in range(1, 16): a(f"v_mov_b32 v{VC + 16 * qt + r}, v{VC + 16 * qt}")
        a(f"s_mov_b32 s{S_MODE}, 1")
        a(f"s_branch {n}_restart")
        a.label(f"{n}_fin")
        a(f"s_xor_b32 s6, s{S_WV}, 4")
        a(f"s_mul_i32 s6, s6, {5 * 1024}")
        a(f"v_add_u32 v{V_T2}, s6, v{V_LANE16}")
        for k in range(4):
            a(f"ds_read_b128 {vr(VS + 4 * k, 4)}, v{V_T2} offset:{k * 1024}")
        a(f"ds_read_b128 {vr(VS + 16, 4)}, v{V_T2} offset:4096")
        a(f"s_cmp_eq_u32 s{S_KH}, 0")
        a(f"s_cbranch_scc1 {n}_keep0")
        for r in range(16): a(f"v_mov_b32 v{VO + r}, v{VO + 16 + r}")
        a(f"v_mov_b32 v{VL}, v{VL + 4}")
        a.label(f"{n}_keep0")
        a(f"v_and_b32 v{V_T1}, 63, v0")
        a(f"v_bfe_u32 v{V_T0}, v{V_T1}, 4, 1")
        a(f"v_lshlrev_b32 v{V_T0}, 10, v{V_T0}")
        a(f"v_lshrrev_b32 v{V_T2}, 5, v{V_T1}")
        a(f"v_lshl_add_u32 v{V_T0}, v{V_T2}, 8, v{V_T0}")
        a(f"v_and_b32 v{V_T2}, 15, v{V_T1}")
        a(f"v_lshl_add_u32 v{V_T0}, v{V_T2}, 4, v{V_T0}")
        a("s_waitcnt lgkmcnt(0)")
        a(f"v_add_f32 v{VL}, v{VL}, v{VS + 16}")
        a(f"v_rcp_f32 v{V_T2}, v{VL}")
        for r in range(16): a(f"v_add_f32 v{VO + r}, v{VO + r}, v{VS + r}")
        a(f"v_mul_f32 v{V_T2}, v{V_T2}, v{V_G}")
        for r in range(16): a(f"v_mul_f32 v{VO + r}, v{V_T2}, v{VO + r}")
        for k in range(8): a(f"v_cvt_pk_bf16_f32 v{VS + k}, v{VO + 2 * k}, v{VO + 2 * k + 1}")
        a(f"s_lshl_b32 s6, s{S_QB}, 3")
        a(f"s_lshl_b32 s7, s{S_QG}, 1")
        a("s_add_u32 s6, s6, s7")
        a(f"s_add_u32 s6, s6, s{S_KH}")
        a("s_lshl_b32 s6, s6, 11")
        a(f"s_lshl_b32 s7, s{S_H}, 17")
        a("s_add_u32 s6, s6, s7")
        a(f"s_add_u32 s6, s6, {WS_O}")
        a(f"buffer_store_dwordx4 {vr(VS, 4)}, v{V_T0}, {ws}, s6 offen {self.store_mod}")
        a(f"buffer_store_dwordx4 {vr(VS + 4, 4)}, v{V_T0}, {ws}, s6 offen offset:512 {self.store_mod}")
        if self.prof:
            a("s_waitcnt vmcnt(0)")
            self.pstamp(a, 6)
            self.pflush(a, 1, 8, S_WV, ws)
        a.label(f"{n}_end")
        a("s_endpgm")
        a.label(f"{n}_last")
        return kernel_header(n) + a.text() + kernel_desc(n, 256, 256)
```

```python
from asmlib import *
from layout import *
from prof import Prof
from dbgstamp import dbg_setup, dbg_stamp

NSLOT, SLOT = 8, 16384
LDS_K3 = NSLOT * SLOT
OD = 4
V_LANE16, V_WO, V_WRA, V_WRB = 1, 2, 4, 8
FW, ACC, FO = 16, 48, 80
S_WS, S_WA, S_WB, S_OUT, S_WC = 8, 12, 16, 20, 24
S_MT, S_NT, S_WV, S_KH, S_TG, S_SOO, S_SOW, S_DST, S_CNT, S_RD, S_DL, S_ISW, S_ISO, S_ROT, S_OB = range(28, 43)

class K3b(Prof):
    V_PROF = 200
    def __init__(self, name, prof=False, store_mod="sc1", rot=False, wd=3, od=2, diag=(), code=None, dbg=None):
        self.name, self.prof, self.store_mod, self.rot = name, prof, store_mod, rot
        self.wd, self.od = wd, od
        self.diag = set(diag)
        self.code = code
        self.dbg = dbg

    def stage_index(self, iss, dst_sow, dst_part):
        return [f"s_add_u32 s3, s{iss}, s{S_ROT}", "s_and_b32 s3, s3, 7", f"s_lshr_b32 s{dst_part}, s{iss}, 3"]

    def dma_w(self):
        return (self.stage_index(S_ISW, S_SOW, 50) +
                [f"s_lshl_b32 s{S_SOW}, s3, 18", "s_cmp_eq_u32 s50, 0",
                 f"s_cselect_b32 s{S_WC}, s{S_WA}, s{S_WB}", f"s_cselect_b32 s{S_WC+1}, s{S_WA+1}, s{S_WB+1}",
                 f"s_lshl_b32 s3, s{S_WV}, 11", f"s_add_u32 m0, s{S_DST}, s3", f"s_add_u32 s{S_ISW}, s{S_ISW}, 1",
                 f"buffer_load_dwordx4 v{V_WO}, s[{S_WC}:{S_WC+3}], s{S_SOW} offen lds",
                 f"s_add_u32 s{S_DST}, s{S_DST}, {SLOT}",
                 f"buffer_load_dwordx4 v{V_WO + 1}, s[{S_WC}:{S_WC+3}], s{S_SOW} offen offset:1024 lds",
                 f"s_cmp_eq_u32 s{S_DST}, {NSLOT * SLOT}", f"s_cselect_b32 s{S_DST}, 0, s{S_DST}"])

    def load_o(self, buf):
        r = (self.stage_index(S_ISO, S_SOO, 50) +
             ["s_lshl_b32 s3, s3, 19", "s_lshl_b32 s50, s50, 22", "s_add_u32 s3, s3, s50", f"s_add_u32 s{S_SOO}, s3, s{S_OB}",
              f"s_add_u32 s51, s{S_SOO}, {2 * 131072}", f"s_add_u32 s{S_ISO}, s{S_ISO}, 1"])
        for b in range(2):
            so = S_SOO if b == 0 else 51
            r.append(f"buffer_load_dwordx4 {vr(FO + 16 * buf + 8 * b, 4)}, v{V_LANE16}, s[{S_WS}:{S_WS+3}], s{so} offen")
            r.append(f"buffer_load_dwordx4 {vr(FO + 16 * buf + 8 * b + 4, 4)}, v{V_LANE16}, s[{S_WS}:{S_WS+3}], s{so} offen offset:1024")
        return r

    def rd_w(self, part, b):
        wr = V_WRA if part == 0 else V_WRB
        qoff = 1024 if part == 0 else 2048
        if "nord" in self.diag: return []
        return [f"ds_read_b64_tr_b16 {vr(FW + 16 * b + 4 * ct + 2 * q, 2)}, v{wr + ct} offset:{b * 8192 + q * qoff}" for ct in range(4) for q in range(2)]

    def mfmas(self, buf, b):
        if "nomfma" in self.diag: return ["s_nop 0"] * 8
        return [f"v_mfma_f32_16x16x32_bf16 {vr(ACC + (i * 4 + ct) * 4, 4)}, {vr(FW + 16 * b + 4 * ct, 4)}, {vr(FO + 16 * buf + 8 * b + 4 * i, 4)}, {vr(ACC + (i * 4 + ct) * 4, 4)}"
                for ct in range(4) for i in range(2)]

    def adv(self):
        r = [f"s_add_u32 s{S_RD}, s{S_RD}, 1", f"s_cmp_eq_u32 s{S_RD}, {NSLOT}", f"s_cselect_b32 s{S_DL}, s44, {SLOT}", f"s_cselect_b32 s{S_RD}, 0, s{S_RD}"]
        return r + [f"v_add_u32 v{x + c}, s{S_DL}, v{x + c}" for x in (V_WRA, V_WRB) for c in range(4)]

    def stage(self, a, n, part, part_next, issue_w, issue_o, vm_mid, vm_top, last=False):
        buf = n % self.od
        a(f"s_waitcnt vmcnt({vm_top}) lgkmcnt(0)")
        fill = [(i, [r]) for i, r in enumerate(self.rd_w(part, 1))]
        for l in interleave(self.mfmas(buf, 0), fill): a(l)
        a("s_waitcnt lgkmcnt(0)")
        m = self.mfmas(buf, 1)
        if last:
            for l in m: a(l)
            return
        fill = [(0, self.adv() + [f"s_waitcnt vmcnt({vm_mid})"] + ([] if "nobar" in self.diag else ["s_barrier"]))]
        rd = self.rd_w(part_next, 0)
        for i, r in enumerate(rd): fill.append((1 + i * 6 // 8, [r]))
        tail = (self.dma_w() if issue_w else [])
        fill.append((7, tail))
        for l in interleave(m, fill): a(l)
        if issue_o:
            for l in self.load_o(buf):
                if "noo" in self.diag and l.startswith("buffer_load"): continue
                a(l)

    def gen(self):
        a = Asm()
        n = self.name
        a("s_cmp_ge_u32 s2, 256")
        a(f"s_cbranch_scc1 {n}_end")
        self.pstamp(a, 0)
        if self.code:
            first, last, nbytes = self.code
            code_prefetch(a, n, first, last, 8, 22, 24, 90)(-(-nbytes // 32768))
        a("s_load_dwordx2 s[4:5], s[0:1], 80")
        a("s_load_dwordx2 s[6:7], s[0:1], 16")
        a("s_load_dwordx2 s[46:47], s[0:1], 48")
        a("s_load_dwordx2 s[48:49], s[0:1], 64")
        a("s_and_b32 s3, s2, 7")
        a("s_lshr_b32 s50, s2, 3")
        a("s_lshr_b32 s51, s3, 1")
        a("s_lshl_b32 s51, s51, 2")
        a("s_and_b32 s52, s50, 3")
        a(f"s_add_u32 s{S_MT}, s51, s52")
        a("s_and_b32 s51, s3, 1")
        a("s_lshl_b32 s51, s51, 3")
        a("s_lshr_b32 s53, s50, 2")
        a(f"s_add_u32 s{S_NT}, s51, s53")
        if self.rot:
            a("s_lshl_b32 s52, s52, 1")
            a(f"s_add_u32 s{S_ROT}, s52, s53")
        else:
            a(f"s_mov_b32 s{S_ROT}, 0")
        a("v_lshrrev_b32 v2, 6, v0")
        a("v_and_b32 v12, 63, v0")
        a(f"v_lshlrev_b32 v{V_LANE16}, 4, v12")
        a(f"v_readfirstlane_b32 s{S_WV}, v2")
        a("v_lshrrev_b32 v13, 3, v12")
        a("v_and_b32 v14, 7, v12")
        a("v_bfe_u32 v15, v12, 4, 2")
        a("v_lshlrev_b32 v15, 1, v15")
        a("v_xor_b32 v14, v14, v15")
        a("v_lshlrev_b32 v13, 11, v13")
        a("v_lshl_add_u32 v13, v14, 4, v13")
        a(f"s_lshl_b32 s3, s{S_NT}, 7")
        a("v_add_u32 v13, s3, v13")
        a(f"s_lshl_b32 s3, s{S_WV}, 15")
        a(f"v_add_u32 v{V_WO}, s3, v13")
        a(f"s_add_u32 s3, s3, {16384 - 1024}")
        a(f"v_add_u32 v{V_WO + 1}, s3, v13")
        a(f"s_lshr_b32 s{S_KH}, s{S_WV}, 2")
        a(f"s_and_b32 s{S_TG}, s{S_WV}, 3")
        a(f"s_lshl_b32 s3, s{S_MT}, 3")
        a(f"s_lshl_b32 s50, s{S_TG}, 1")
        a("s_add_u32 s3, s3, s50")
        a("s_lshl_b32 s3, s3, 10")
        a(f"s_lshl_b32 s50, s{S_KH}, 17")
        a("s_add_u32 s3, s3, s50")
        a(f"s_add_u32 s{S_OB}, s3, {WS_O}")
        a(f"s_mov_b32 s{S_ISW}, 0")
        a(f"s_mov_b32 s{S_ISO}, 0")
        a(f"s_mov_b32 s{S_DST}, 0")
        a("s_waitcnt lgkmcnt(0)")
        srd(a, S_WS, 4, 0x10000000)
        srd(a, S_WA, 6, 2097152)
        srd(a, S_WB, 46, 2097152)
        srd(a, S_WC, 6, 2097152)
        WD, OD = self.wd, self.od
        order = []
        for s in range(max(WD, OD)):
            if s < WD: order += self.dma_w()
            if s < OD: order += self.load_o(s)
        for i, l in enumerate(order):
            a(l)
        srd(a, S_OUT, 48, 4194304)
        self.pstamp(a, 1)
        a("v_lshrrev_b32 v13, 4, v12")
        a("v_bfe_u32 v14, v12, 2, 2")
        a("v_and_b32 v15, 1, v13")
        a("v_lshrrev_b32 v16, 1, v14")
        a("v_lshl_add_u32 v16, v15, 1, v16")
        a("v_lshlrev_b32 v16, 1, v16")
        a("v_bfe_u32 v17, v12, 1, 1")
        a("v_and_b32 v18, 1, v12")
        a("v_lshlrev_b32 v18, 3, v18")
        a(f"s_lshl_b32 s3, s{S_KH}, 12")
        a("v_add_u32 v18, s3, v18")
        a("v_lshrrev_b32 v19, 1, v13")
        a("v_lshlrev_b32 v19, 4, v19")
        a("v_lshl_add_u32 v19, v15, 2, v19")
        a("v_add_u32 v19, v19, v14")
        a("v_lshl_add_u32 v20, v13, 2, v14")
        for ct in range(4):
            a(f"v_add_u32 v21, {2 * ct}, v17")
            a("v_xor_b32 v21, v21, v16")
            a("v_lshl_add_u32 v21, v21, 4, v18")
            a(f"v_lshl_add_u32 v{V_WRA + ct}, v19, 7, v21")
            a(f"v_lshl_add_u32 v{V_WRB + ct}, v20, 7, v21")
        a(f"s_mov_b32 s{S_RD}, 0")
        a(f"s_mov_b32 s44, {(-(NSLOT - 1) * SLOT) & 0xffffffff}")
        for r in range(32): a(f"v_mov_b32 v{ACC + r}, 0")
        a(f"s_waitcnt vmcnt({2 * WD + 4 * OD - 2})")
        a("s_barrier")
        for l in self.rd_w(0, 0): a(l)
        self.pstamp(a, 2)
        q = []
        for s in range(max(WD, OD)):
            if s < WD: q += [("W", s)] * 2
            if s < OD: q += [("o", s)] * 4
        def allowed(tag):
            idx = max((i for i, t in enumerate(q) if t == tag), default=-1)
            return len(q) - 1 - idx
        plan = []
        for s in range(16):
            top = allowed(("o", s))
            mid = allowed(("W", s + 1)) if s < 15 else 0
            iw, io = s + WD < 16, s + OD < 16
            plan.append((top, mid, iw, io))
            if iw: q += [("W", s + WD)] * 2
            if io: q += [("o", s + OD)] * 4
        self.plan = plan
        def emit(s):
            top, mid, iw, io = plan[s]
            self.stage(a, s, s >> 3, (s + 1) >> 3, iw, io, min(mid, 63), min(top, 63), last=(s == 15))
        for s in range(16):
            emit(s)
        self.pstamp(a, 3)
        a("s_barrier")
        a(f"s_lshl_b32 s3, s{S_WV}, 12")
        a(f"v_add_u32 v2, s3, v{V_LANE16}")
        a(f"s_xor_b32 s3, s{S_WV}, 4")
        a("s_lshl_b32 s3, s3, 12")
        a(f"v_add_u32 v3, s3, v{V_LANE16}")
        a(f"s_cmp_eq_u32 s{S_KH}, 0")
        a("s_nop 7")
        a(f"s_cbranch_scc1 {n}_k0")
        for k in range(4): a(f"ds_write_b128 v2, {vr(ACC + 4 * k, 4)} offset:{k * 1024}")
        a("s_waitcnt lgkmcnt(0)")
        for r in range(16): a(f"v_mov_b32 v{ACC + r}, v{ACC + 16 + r}")
        a(f"s_branch {n}_k1")
        a.label(f"{n}_k0")
        for k in range(4): a(f"ds_write_b128 v2, {vr(ACC + 16 + 4 * k, 4)} offset:{k * 1024}")
        a.label(f"{n}_k1")
        a("s_waitcnt lgkmcnt(0)")
        a("s_barrier")
        for k in range(4): a(f"ds_read_b128 {vr(FW + 4 * k, 4)}, v3 offset:{k * 1024}")
        a("v_and_b32 v13, 15, v12")
        a(f"s_lshl_b32 s3, s{S_MT}, 7")
        a(f"s_lshl_b32 s50, s{S_TG}, 5")
        a("s_add_u32 s3, s3, s50")
        a(f"s_lshl_b32 s50, s{S_KH}, 4")
        a("s_add_u32 s3, s3, s50")
        a("v_add_u32 v13, s3, v13")
        a("v_lshlrev_b32 v13, 11, v13")
        a("v_bfe_u32 v14, v12, 4, 1")
        a("v_lshl_add_u32 v13, v14, 5, v13")
        a("v_lshrrev_b32 v14, 5, v12")
        a("v_lshl_add_u32 v13, v14, 4, v13")
        a(f"s_lshl_b32 s3, s{S_NT}, 7")
        a("s_waitcnt lgkmcnt(0)")
        for r in range(0, 16, 2):
            a(f"v_pk_add_f32 {vr(ACC + r, 2)}, {vr(ACC + r, 2)}, {vr(FW + r, 2)}")
        for pr in range(2):
            t = FW + 16 + 4 * pr
            for i2 in range(2):
                b = ACC + (pr * 2 + i2) * 4
                a(f"v_cvt_pk_bf16_f32 v{t + 2 * i2}, v{b}, v{b + 1}")
                a(f"v_cvt_pk_bf16_f32 v{t + 2 * i2 + 1}, v{b + 2}, v{b + 3}")
            a("s_nop 1")
            a(f"v_permlane16_swap_b32 v{t}, v{t + 2}")
            a(f"v_permlane16_swap_b32 v{t + 1}, v{t + 3}")
            a(f"buffer_store_dwordx4 {vr(t, 4)}, v13, s[{S_OUT}:{S_OUT+3}], s3 offen offset:{pr * 64} {self.store_mod}")
        if self.prof:
            a("s_waitcnt vmcnt(0)")
            self.pstamp(a, 4)
            self.pflush(a, 2, 8, S_WV, f"s[{S_WS}:{S_WS+3}]")
        a.label(f"{n}_end")
        a("s_endpgm")
        a.label(f"{n}_last")
        nv = 208 if self.prof else 144
        return kernel_header(n) + a.text() + kernel_desc(n, nv, nv)
if __name__ == "__main__":
    k = K3b("x"); k.gen(); print(k.plan)
```

```python
import sys
import hx
from k1d import K1d
from k2c import K2c, LDS_K2
from k3b import K3b, LDS_K3
from kpf import KPF
HDR = open("gated_mix__softmax_full_mha__linear_kernel_hedgehog__prompt.s.ref").read().split("; Override launch geometry")[0]
def build(k1=None, k2=None, k3=None, pf=None, cp=True):
    k1 = dict(k1 or {}); k2 = dict(k2 or dict(store_mod="sc1")); k3 = dict(k3 or dict(wd=4, od=3))
    if cp:
        k1["code"] = ("qkv_kernel", "outp_kernel_last", 40960)
        k2["code"] = ("attn_kernel", "attn_kernel_last", 16384)
        k3["code"] = ("outp_kernel", "outp_kernel_last", 16384)
    s = HDR
    s += "; Launches: QKV projections (+ gate, branch-B feature map of k), attention / linear attention, output projection.\n"
    if pf: s += "; @launch kernel=warm_kernel grid=(256,1,1) block=(256,1,1) lds=0\n"
    s += "; @launch kernel=qkv_kernel grid=(256,1,1) block=(256,1,1) lds=163840\n"
    s += f"; @launch kernel=attn_kernel grid=(256,1,1) block=(512,1,1) lds={LDS_K2}\n"
    s += f"; @launch kernel=outp_kernel grid=(256,1,1) block=(512,1,1) lds={LDS_K3}\n"
    s += '.amdgcn_target "amdgcn-amd-amdhsa--gfx950"\n.text\n'
    if pf: s += KPF("warm_kernel", pf).gen()
    s += K1d("qkv_kernel", **k1).gen()
    s += K2c("attn_kernel", **k2).gen()
    s += K3b("outp_kernel", **k3).gen()
    return s
if __name__ == "__main__":
    open("../probe/v_bulk_nocp.s", "w").write(build(cp=False))
    open("../probe/v_bulk_cp.s", "w").write(build(cp=True))
    open("../probe/v_warm_cp.s", "w").write(build(k1=dict(pfin=0), pf=("x", "wa", "wb"), cp=True))
    open("../probe/v_nopf_cp.s", "w").write(build(k1=dict(pfin=0), cp=True))
```

```python
def dbg_setup(a, launch_index, sreg=92):
    a(f"s_load_dwordx2 s[{sreg}:{sreg+1}], s[0:1], 72")
    a("s_waitcnt lgkmcnt(0)")
    if launch_index:
        a(f"s_sub_u32 s{sreg}, s{sreg}, {512 * launch_index}")
        a(f"s_subb_u32 s{sreg+1}, s{sreg+1}, 0")
def dbg_stamp(a, slot, tag, wg=0, sreg=92, v=63):
    a(f"s_cmp_lg_u32 s2, {wg}")
    a(f"s_cbranch_scc1 {tag}_skip")
    a("s_memrealtime s[94:95]")
    a("s_waitcnt lgkmcnt(0)")
    a(f"v_mov_b32 v{v}, s94")
    a(f"v_mov_b32 v{v - 1}, {slot * 4}")
    a(f"global_store_dword v{v - 1}, v{v}, s[{sreg}:{sreg+1}]")
    a.label(f"{tag}_skip")
```

```python
from asmlib import *
from layout import *
from prof import Prof
from dbgstamp import dbg_setup, dbg_stamp

XST, NX = 16384, 3
WRING, WSL, NW = 49152, 24576, 4
L_WP = WRING + NW * WSL
LDS_K1 = 163840
ACC = 64
def acc(sg, ft, tk): return ACC + ((sg * 2 + ft) * 4 + tk) * 4
def fX(p, tk): return p * 64 + tk * 4
def fW(p, sg, ft): return p * 64 + 16 + (sg * 2 + ft) * 4
A_DUMMY, A_PF = 128, 152
V_XO, V_WO, V_XR, V_WR, V_PF = 1, 5, 12, 14, 16
S_X, S_W, S_WS, S_WP, S_GW = 8, 12, 16, 60, 64
S_MT, S_HP, S_WV, S_SOX, S_SOW, S_XDST, S_WDST, S_XRD, S_XDL, S_WRD, S_WDL, S_CNT, S_W8K, S_W3K = range(20, 34)
S_CWM, S_CXM, S_PF, S_PFO, S_PFS, S_TOK, S_HD, S_TH = 54, 55, 72, 76, 77, 78, 79, 88

class K1d(Prof):
    V_PROF = 60
    def __init__(self, name, prof=False, store_mod="sc1", pfwo=True, pfin=2, epi=True, bulk=True, code=None, dbg=None):
        self.name, self.prof, self.store_mod, self.pfwo, self.pfin, self.epi = name, prof, store_mod, pfwo, pfin, epi
        self.bulk = bulk and pfin > 0
        self.code = code
        self.dbg = dbg

    def mfmas(self, p):
        out = []
        for tk in range(4):
            for sg in range(6):
                for ft in range(2):
                    d = vr(acc(sg, ft, tk), 4)
                    x, w = ar(fX(p, tk), 4), ar(fW(p, sg, ft), 4)
                    a, b = (x, w) if sg % 3 == 2 else (w, x)
                    out.append(f"v_mfma_f32_16x16x32_bf16 {d}, {a}, {b}, {d}")
        return out

    def rd(self, p, k2):
        xs = [f"ds_read_b128 {ar(fX(p, tk), 4)}, v{V_XR + k2} offset:{tk * 2048}" for tk in range(4)]
        w = [f"ds_read_b64_tr_b16 {ar(fW(p, sg, ft) + 2 * q, 2)}, v{V_WR + ft} offset:{sg * 4096 + q * 512}"
             for sg in range(6) for ft in range(2) for q in range(2)]
        return [xs[0]] + w + xs[1:]

    def dmaW(self):
        g = []
        for j in range(6):
            ins = []
            if j == 0: ins += [f"s_add_u32 m0, s{S_WDST}, s{S_W3K}", f"s_add_u32 s{S_WDST}, s{S_WDST}, {WSL}"]
            if j == 4: ins += ["s_add_u32 m0, m0, 4096", f"s_cmp_eq_u32 s{S_WDST}, {WRING + NW * WSL}", f"s_cselect_b32 s{S_WDST}, {WRING}, s{S_WDST}"]
            ins.append(f"buffer_load_dwordx4 v{V_WO + j}, s[{S_W}:{S_W+3}], s{S_SOW} offen offset:{(j & 3) * 1024} lds")
            if j == 5: ins.append(f"s_add_u32 s{S_SOW}, s{S_SOW}, {32 * 6144}")
            g.append(ins)
        return g

    def dmaX(self, half):
        g = []
        for n in range(2):
            ins = []
            if n == 0:
                ins += [f"s_add_u32 m0, s{S_XDST}, s{S_W8K}"] + ([f"s_add_u32 m0, m0, 2048"] if half else []) + ["s_nop 0"]
            ins.append(f"buffer_load_dwordx4 v{V_XO + half * 2 + n}, s[{S_X}:{S_X+3}], s{S_SOX} offen offset:{n * 1024} lds")
            if n == 1 and half == 1:
                ins += [f"s_add_u32 s{S_SOX}, s{S_SOX}, 128", f"s_add_u32 s{S_XDST}, s{S_XDST}, {XST}",
                        f"s_cmp_eq_u32 s{S_XDST}, {NX * XST}", f"s_cselect_b32 s{S_XDST}, 0, s{S_XDST}"]
            g.append(ins)
        return g

    def pf(self, bulk=False):
        if not self.pfin or (self.bulk and not bulk): return []
        return [[f"buffer_load_dwordx4 a[{A_PF}:{A_PF+3}], v{V_PF}, s[{S_PF}:{S_PF+3}], s{S_PFO} offen",
                 f"s_add_u32 s{S_PFO}, s{S_PFO}, s{S_PFS}"]]

    def wadv(self):
        return [f"s_add_u32 s{S_WRD}, s{S_WRD}, 1", f"s_cmp_eq_u32 s{S_WRD}, {NW}",
                f"s_cselect_b32 s{S_WDL}, s{S_CWM}, {WSL}", f"s_cselect_b32 s{S_WRD}, 0, s{S_WRD}",
                f"v_add_u32 v{V_WR}, s{S_WDL}, v{V_WR}", f"v_add_u32 v{V_WR + 1}, s{S_WDL}, v{V_WR + 1}"]
    def xdelta(self):
        return [f"s_add_u32 s{S_XRD}, s{S_XRD}, 1", f"s_cmp_eq_u32 s{S_XRD}, {NX}",
                f"s_cselect_b32 s{S_XDL}, s{S_CXM}, {XST}", f"s_cselect_b32 s{S_XRD}, 0, s{S_XRD}"]
    def xadv(self, k2):
        return [f"v_add_u32 v{V_XR + k2}, s{S_XDL}, v{V_XR + k2}"]

    def unit(self, a, p, reads, bar, dmas, pre=(), post=()):
        a("s_waitcnt lgkmcnt(0)")
        fill = []
        ins = list(pre)
        if bar is not None:
            ins += [f"s_waitcnt vmcnt({bar})", "s_barrier"]
        fill.append((0, ins))
        for i, r in enumerate(reads):
            fill.append((1 + i, [r]))
        for i, d in enumerate(dmas):
            fill.append((min(30 + 2 * i, 46), d))
        fill.append((47, list(post)))
        for l in interleave(self.mfmas(p), fill):
            a(l)

    def iteration(self, a, g_odd, g_even, w_odd, w_even, last=False, pf=False):
        odd = (self.dmaW() + self.dmaX(1)) if g_odd else []
        even = self.dmaW() if g_even == "W" else (self.dmaW() + self.dmaX(0) + (self.pf() if pf else [])) if g_even else []
        self.unit(a, 0, self.rd(1, 1), w_odd, odd, pre=self.wadv() + self.xdelta() + self.xadv(0), post=self.xadv(1))
        if last:
            self.unit(a, 1, [], None, [])
        else:
            self.unit(a, 1, self.rd(0, 0), w_even, even, pre=self.wadv())

    def gen(self):
        a = Asm()
        n = self.name
        a("s_cmp_ge_u32 s2, 256")
        a(f"s_cbranch_scc1 {n}_end")
        self.pstamp(a, 0)
        if self.code:
            first, last, nbytes = self.code
            code_prefetch(a, n, first, last, 4, 62, 58, 90)(-(-nbytes // 16384))
        a("s_load_dwordx4 s[44:47], s[0:1], 0")
        a("s_load_dwordx2 s[48:49], s[0:1], 32")
        a("s_load_dwordx2 s[52:53], s[0:1], 80")
        a("s_load_dwordx2 s[56:57], s[0:1], 40")
        a("s_load_dwordx2 s[58:59], s[0:1], 56")
        a("s_and_b32 s3, s2, 7")
        a("s_lshr_b32 s4, s2, 3")
        a("s_and_b32 s5, s3, 1")
        a("s_lshl_b32 s5, s5, 3")
        a("s_and_b32 s6, s4, 7")
        a(f"s_add_u32 s{S_MT}, s5, s6")
        a("s_lshr_b32 s5, s3, 1")
        a("s_lshl_b32 s5, s5, 2")
        a("s_lshr_b32 s6, s4, 3")
        a(f"s_add_u32 s{S_HP}, s5, s6")
        a("v_lshrrev_b32 v17, 6, v0")
        a("v_and_b32 v18, 63, v0")
        a("v_lshrrev_b32 v19, 3, v18")
        a(f"v_readfirstlane_b32 s{S_WV}, v17")
        a("v_and_b32 v20, 7, v18")
        a("v_lshrrev_b32 v21, 4, v18")
        a(f"s_lshl_b32 s3, s{S_MT}, 7")
        a(f"s_lshl_b32 s4, s{S_WV}, 5")
        a("s_add_u32 s3, s3, s4")
        a("v_add_u32 v22, s3, v19")
        a("v_lshlrev_b32 v22, 11, v22")
        a("v_xor_b32 v23, v20, v21")
        a("v_xor_b32 v24, 4, v23")
        a("v_lshl_add_u32 v23, v23, 4, v22")
        a("v_lshl_add_u32 v24, v24, 4, v22")
        for nn in range(4):
            a(f"v_add_u32 v{V_XO + nn}, {nn * 16384 - (nn & 1) * 1024}, v{23 if nn % 2 == 0 else 24}")
        a("v_and_b32 v23, 1, v21")
        a("v_lshlrev_b32 v23, 1, v23")
        a("v_xor_b32 v23, v23, v20")
        a("s_mov_b32 s3, 6144")
        a("v_mul_lo_u32 v24, v19, s3")
        a(f"s_lshl_b32 s4, s{S_HP}, 7")
        a("v_add_u32 v24, s4, v24")
        a("v_lshl_add_u32 v26, v23, 4, v24")
        a("v_xor_b32 v25, 4, v23")
        a("v_lshl_add_u32 v25, v25, 4, v24")
        a(f"s_and_b32 s5, s{S_WV}, 1")
        a("s_cmp_eq_u32 s5, 0")
        for j in range(6):
            off = [((6 * par + j) >> 2) * 2048 + ((6 * par + j) & 3) * 8 * 6144 - (j & 3) * 1024 for par in range(2)]
            a(f"s_mov_b32 s3, {off[1]}")
            a(f"s_cselect_b32 s3, {off[0]}, s3")
            a(f"v_add_u32 v{V_WO + j}, s3, v{26 if j % 2 == 0 else 25}")
        a(f"s_lshl_b32 s{S_W8K}, s{S_WV}, 12")
        a(f"s_mul_i32 s{S_W3K}, s{S_WV}, 6144")
        a(f"s_and_b32 s{S_TH}, s{S_WV}, 1")
        a(f"s_lshr_b32 s3, s{S_WV}, 1")
        a(f"s_lshl_b32 s{S_HD}, s{S_HP}, 1")
        a(f"s_add_u32 s{S_HD}, s{S_HD}, s3")
        a(f"s_mov_b32 s{S_CWM}, {(-(NW - 1) * WSL) & 0xffffffff}")
        a(f"s_mov_b32 s{S_CXM}, {(-(NX - 1) * XST) & 0xffffffff}")
        a(f"s_mov_b32 s{S_SOX}, 0")
        a(f"s_mov_b32 s{S_SOW}, 0")
        a(f"s_mov_b32 s{S_XDST}, 0")
        a(f"s_mov_b32 s{S_WDST}, {WRING}")
        a(f"s_mov_b32 s{S_XRD}, 0")
        a(f"s_mov_b32 s{S_WRD}, 0")
        a("s_waitcnt lgkmcnt(0)")
        srd(a, S_X, 44, 2048 * 2048)
        a(f"s_cmp_lt_u32 s{S_WV}, 2")
        a("s_cselect_b32 s6, s46, s48")
        a("s_cselect_b32 s7, s47, s49")
        srd(a, S_W, 6, 1024 * 6144)
        srd(a, S_WS, 52, 0x10000000)
        srd(a, S_WP, 56, 65536)
        srd(a, S_GW, 58, 2048)
        self.side_loads(a)
        pro = self.dmaX(0) + self.dmaW() + self.dmaX(1) + self.dmaW() + self.dmaX(0) + self.dmaW() + self.dmaX(1)
        for grp in pro:
            for l in grp:
                if l.startswith("buffer_load"): a("s_nop 0")
                a(l)
        self.pstamp(a, 1)
        npf = 0
        if self.bulk:
            npf = 16 - self.pfin
            for k in range(npf):
                for l in self.pf(bulk=True)[0]: a(l)
        self.addr_reads(a)
        for r in range(ACC, 256):
            a(f"v_mov_b32 v{r}, 0")
        a(f"s_waitcnt vmcnt({26 + npf})")
        self.gate_compute(a)
        npf += 1
        a(f"s_waitcnt vmcnt({16 + npf})")
        a("s_barrier")
        self.pstamp(a, 2)
        for l in self.rd(0, 0): a(l)
        for grp in self.dmaW() + self.dmaX(0) + self.pf():
            for l in grp:
                if l.startswith("buffer_load"): a("s_nop 0")
                a(l)
        e = 1 if (self.pfin and not self.bulk) else 0
        first = 16 + npf
        self.iteration(a, True, True, first, first, pf=True)
        a(f"s_mov_b32 s{S_CNT}, 12")
        a(".p2align 6")
        a.label(f"{n}_loop")
        self.iteration(a, True, True, 16 + e, 16 + e, pf=True)
        a(f"s_sub_u32 s{S_CNT}, s{S_CNT}, 1")
        a(f"s_cmp_lg_u32 s{S_CNT}, 0")
        a(f"s_cbranch_scc1 {n}_loop")
        self.iteration(a, True, "W", 16, 16)
        self.iteration(a, False, False, 14, 6)
        self.iteration(a, False, False, 0, 0, last=True)
        self.pstamp(a, 3)
        if self.epi:
            self.epilogue(a)
        if self.prof:
            self.pstamp(a, 6)
            a("s_waitcnt vmcnt(0)")
            self.pstamp(a, 7)
            self.pflush(a, 0, 4, S_WV, f"s[{S_WS}:{S_WS+3}]")
        a.label(f"{n}_end")
        a("s_endpgm")
        a.label(f"{n}_last")
        nag = A_PF + 4
        return kernel_header(n) + a.text() + kernel_desc(n, 256 + nag, 256)

    def addr_reads(self, a):
        a("v_and_b32 v19, 15, v18")
        a("v_lshlrev_b32 v19, 7, v19")
        a(f"s_lshl_b32 s3, s{S_TH}, 13")
        a("v_add_u32 v19, s3, v19")
        a("v_lshrrev_b32 v20, 4, v18")
        a("v_bfe_u32 v21, v18, 1, 3")
        for k2 in range(2):
            a(f"v_add_u32 v22, {4 * k2}, v20")
            a("v_xor_b32 v22, v22, v21")
            a(f"v_lshl_add_u32 v{V_XR + k2}, v22, 4, v19")
        a("v_bfe_u32 v21, v18, 2, 2")
        a("v_lshl_add_u32 v22, v20, 3, v21")
        a("v_lshlrev_b32 v22, 7, v22")
        a("v_and_b32 v24, 1, v18")
        a("v_lshl_add_u32 v22, v24, 3, v22")
        a("v_bfe_u32 v24, v18, 1, 1")
        a(f"s_lshr_b32 s3, s{S_WV}, 1")
        a("s_lshl_b32 s3, s3, 2")
        a("v_add_u32 v24, s3, v24")
        a("v_and_b32 v23, 2, v21")
        a("v_bfe_u32 v25, v18, 4, 1")
        a("v_lshl_or_b32 v23, v25, 2, v23")
        for ft in range(2):
            a(f"v_add_u32 v25, {2 * ft}, v24")
            a("v_xor_b32 v25, v25, v23")
            a("v_lshl_add_u32 v25, v25, 4, v22")
            a(f"v_add_u32 v{V_WR + ft}, {WRING}, v25")

    def side_loads(self, a):
        n_side = 0
        a("v_lshlrev_b32 v19, 4, v18")
        a(f"s_lshl_b32 s3, s{S_HP}, 12")
        a(f"s_lshl_b32 s5, s{S_WV}, 10")
        a("s_add_u32 s3, s3, s5")
        a(f"s_add_u32 m0, s5, {L_WP}")
        a("s_nop 0")
        a(f"buffer_load_dwordx4 v19, s[{S_WP}:{S_WP+3}], s3 offen lds"); n_side += 1
        a("v_lshlrev_b32 v19, 5, v18")
        d = A_DUMMY
        a(f"buffer_load_dwordx4 a[{d}:{d+3}], v19, s[{S_GW}:{S_GW+3}], 0 offen")
        a(f"buffer_load_dwordx4 a[{d+4}:{d+7}], v19, s[{S_GW}:{S_GW+3}], 0 offen offset:16"); n_side += 2
        a(f"s_lshl_b32 s3, s{S_MT}, 7")
        a(f"s_lshl_b32 s4, s{S_HP}, 3")
        a("s_add_u32 s3, s3, s4")
        a(f"s_lshl_b32 s4, s{S_WV}, 1")
        a(f"s_add_u32 s{S_TOK}, s3, s4")
        a(f"s_lshl_b32 s3, s{S_TOK}, 11")
        for i in range(2):
            a(f"buffer_load_dwordx4 a[{d+8+8*i}:{d+11+8*i}], v19, s[{S_X}:{S_X+3}], s3 offen offset:{i * 2048}")
            a(f"buffer_load_dwordx4 a[{d+12+8*i}:{d+15+8*i}], v19, s[{S_X}:{S_X+3}], s3 offen offset:{i * 2048 + 16}"); n_side += 2
        self.n_side = n_side
        if self.pfin:
            D = self.pfin
            a(f"s_mul_i32 s3, s2, 3")
            a(f"s_add_u32 s3, s3, s{S_WV}")
            a("s_cmp_ge_u32 s3, 384")
            a("s_cselect_b32 s4, 384, 0")
            a("s_cselect_b32 s6, s48, s46")
            a("s_cselect_b32 s7, s49, s47")
            a("s_sub_u32 s3, s3, s4")
            a("s_lshl_b32 s3, s3, 10")
            a("s_lshl_b32 s4, s2, 14")
            a(f"s_cmp_eq_u32 s{S_WV}, 3")
            a("s_cselect_b32 s6, s44, s6")
            a("s_cselect_b32 s7, s45, s7")
            a("s_cselect_b32 s3, s4, s3")
            a(f"s_mov_b32 s5, {64 * 6144}")
            a(f"s_cselect_b32 s{S_PFS}, 128, s5")
            a(f"s_mov_b32 s5, {1024 * 6144}")
            a(f"s_cselect_b32 s{S_PF+2}, {2048 * 2048}, s5")
            a(f"s_mul_i32 s4, s{S_PFS}, {D}")
            a(f"s_add_u32 s{S_PFO}, s3, s4")
            a(f"s_mov_b32 s{S_PF}, s6")
            a(f"s_and_b32 s{S_PF+1}, s7, 0xffff")
            a(f"s_mov_b32 s{S_PF+3}, 0x00020000")
            a("v_lshlrev_b32 v19, 4, v18")
            a("v_lshrrev_b32 v20, 3, v18")
            a("v_lshlrev_b32 v20, 11, v20")
            a("v_and_b32 v21, 7, v18")
            a("v_lshl_add_u32 v20, v21, 4, v20")
            a(f"s_cmp_eq_u32 s{S_WV}, 3")
            a("s_cselect_b64 vcc, -1, 0")
            a(f"v_cndmask_b32 v{V_PF}, v19, v20, vcc")

    def gate_compute(self, a):
        d = A_DUMMY
        for r in range(24): a(f"v_accvgpr_read_b32 v{32 + r}, a{d + r}")
        for i in range(2): a(f"v_mov_b32 v{24 + i}, 0")
        for k in range(8):
            for i in range(2):
                a(f"v_dot2_f32_bf16 v{24 + i}, v{40 + 8 * i + k}, v{32 + k}, v{24 + i}")
        for ctl in ("quad_perm:[1,0,3,2]", "quad_perm:[2,3,0,1]", "row_half_mirror", "row_mirror"):
            a("s_nop 1")
            for i in range(2):
                a(f"v_add_f32_dpp v{24 + i}, v{24 + i}, v{24 + i} {ctl} row_mask:0xf bank_mask:0xf")
        for sw in ("v_permlane16_swap_b32", "v_permlane32_swap_b32"):
            for i in range(2): a(f"v_mov_b32 v{28 + i}, v{24 + i}")
            a("s_nop 1")
            for i in range(2): a(f"{sw} v{24 + i}, v{28 + i}")
            a("s_nop 1")
            for i in range(2): a(f"v_add_f32 v{24 + i}, v{24 + i}, v{28 + i}")
        a("v_and_b32 v28, 1, v18")
        a("v_cmp_eq_u32 vcc, 1, v28")
        a("s_nop 1")
        a("v_cndmask_b32 v24, v24, v25, vcc")
        a(f"v_mul_f32 v24, {f32bits(-LOG2E)}, v24")
        a("v_exp_f32 v24, v24")
        a("s_nop 0")
        a("v_add_f32 v24, 1.0, v24")
        a("v_rcp_f32 v24, v24")
        a("v_lshlrev_b32 v28, 2, v18")
        a(f"s_lshl_b32 s3, s{S_TOK}, 2")
        a(f"s_add_u32 s3, s3, {WS_G}")
        a("s_mov_b64 exec, 3")
        a(f"buffer_store_dword v24, v28, s[{S_WS}:{S_WS+3}], s3 offen {self.store_mod}")
        a("s_mov_b64 exec, -1")

    def prefetch_wo(self, a):
        a("s_load_dwordx2 s[80:81], s[0:1], 16")
        a("s_load_dwordx2 s[82:83], s[0:1], 48")
        a("s_lshl_b32 s3, s2, 13")
        a(f"s_lshl_b32 s4, s{S_WV}, 11")
        a("s_add_u32 s3, s3, s4")
        a("s_waitcnt lgkmcnt(0)")
        for k, p in enumerate((80, 82)):
            srd(a, 84, p, 2097152)
            for i in range(2):
                a(f"buffer_load_dwordx4 a[{96 + 8 * k + 4 * i}:{96 + 8 * k + 4 * i + 3}], v15, s[84:87], s3 offen offset:{i * 1024}")

    def epilogue(self, a):
        ws = f"s[{S_WS}:{S_WS+3}]"
        sm = self.store_mod
        RS = 136
        a("v_and_b32 v18, 63, v0")
        a("v_lshrrev_b32 v19, 4, v18")
        a("v_and_b32 v20, 15, v18")
        a("v_bfe_u32 v21, v18, 2, 2")
        a("v_lshl_add_u32 v21, v19, 2, v21")
        a(f"v_mul_u32_u24 v23, {RS}, v21")
        a("v_lshlrev_b32 v21, 6, v21")
        a("v_and_b32 v22, 3, v18")
        a("v_lshl_add_u32 v21, v22, 3, v21")
        a(f"s_lshr_b32 s3, s{S_WV}, 1")
        a("s_lshl_b32 s3, s3, 11")
        a(f"s_add_u32 s3, s3, {L_WP}")
        a("v_add_u32 v21, s3, v21")
        for ft in range(2):
            for q in range(2):
                a(f"ds_read_b64_tr_b16 {ar(4 * ft + 2 * q, 2)}, v21 offset:{q * 1024 + ft * 32}")
        a(f"s_mul_i32 s3, s{S_WV}, {64 * RS}")
        a("v_lshl_add_u32 v23, v22, 3, v23")
        a("v_add_u32 v23, s3, v23")
        a(f"v_mul_u32_u24 v22, {RS}, v20")
        a("v_lshl_add_u32 v22, v19, 3, v22")
        a("v_add_u32 v22, s3, v22")
        a("v_mov_b32 v24, 0x3f803f80")
        for r in range(4): a(f"v_accvgpr_write_b32 a{8 + r}, v24")
        def pack(b0, b1):
            return [f"v_cvt_pk_bf16_f32 v{b0}, v{b0}, v{b0 + 1}", f"v_cvt_pk_bf16_f32 v{b0 + 1}, v{b0 + 2}, v{b0 + 3}",
                    f"v_cvt_pk_bf16_f32 v{b0 + 2}, v{b1}, v{b1 + 1}", f"v_cvt_pk_bf16_f32 v{b0 + 3}, v{b1 + 2}, v{b1 + 3}"]
        KB = lambda t: acc(4, 0, t)
        VB = lambda dt, T: acc(5, dt, 2 * T)
        for tk in range(4):
            for l in pack(acc(4, 0, tk), acc(4, 1, tk)): a(l)
        for tk in range(4):
            for l in pack(acc(3, 0, tk), acc(3, 1, tk)): a(l)
        a(f"s_lshl_b32 s3, s{S_HD}, 17")
        a(f"s_lshl_b32 s4, s{S_MT}, 2")
        a(f"s_lshl_b32 s5, s{S_TH}, 1")
        a("s_add_u32 s4, s4, s5")
        a("s_lshl_b32 s4, s4, 11")
        a("s_add_u32 s38, s3, s4")
        a(f"s_add_u32 s39, s38, {4 << 20}")
        a(f"s_add_u32 s42, s38, {8 << 20}")
        a(f"s_lshl_b32 s4, s{S_MT}, 3")
        a(f"s_lshl_b32 s5, s{S_TH}, 2")
        a("s_add_u32 s4, s4, s5")
        a("s_lshl_b32 s4, s4, 10")
        a("s_add_u32 s43, s3, s4")
        a(f"s_add_u32 s43, s43, {WS_QB}")
        a("v_lshrrev_b32 v21, 1, v19")
        a("v_lshlrev_b32 v21, 10, v21")
        a("v_and_b32 v24, 1, v19")
        a("v_lshl_add_u32 v21, v24, 9, v21")
        a("v_lshl_add_u32 v17, v20, 4, v21")
        a("v_and_b32 v24, 7, v20")
        a("v_lshrrev_b32 v25, 3, v20")
        a("v_lshl_add_u32 v24, v25, 4, v24")
        a("v_lshl_add_u32 v16, v24, 4, v21")
        a("v_lshlrev_b32 v15, 4, v18")
        l2e = f32bits(LOG2E)
        c = f32bits(LOG2E / 32 ** 0.5)
        a(f"s_mov_b32 s36, {l2e}")
        a(f"s_mov_b32 s37, {l2e}")
        a(f"s_mov_b32 s40, {f32bits(-LOG2E)}")
        a(f"s_mov_b32 s41, {f32bits(-LOG2E)}")
        a(f"s_mov_b32 s6, {c}")
        a(f"s_mov_b32 s7, {c}")
        a("s_waitcnt lgkmcnt(0)")
        a("s_barrier")
        self.pstamp(a, 4)
        P = lambda t, i: (208 if t < 2 else 176) + 8 * (t & 1) + i
        EP = lambda t, i: (80 if t < 2 else 112) + 8 * (t & 1) + i
        BP = lambda t: 24 + 4 * t
        BM = lambda t: 40 + 4 * t
        SS = lambda t, sg: (132 if sg == 0 else 228) + 8 * t
        mx, mn, tm = (lambda t: 2 + 2 * t), (lambda t: (10, 12, 14, 62)[t]), (lambda t: 56 + t)
        T4 = range(4)
        main = []
        for t in T4:
            for ft in range(2):
                main.append(f"v_mfma_f32_16x16x32_bf16 {vr(P(t, 4 * ft), 4)}, {ar(4 * ft, 4)}, {vr(KB(t), 4)}, 0")
        side = []
        for tk in range(4):
            side.append((pack(acc(1, 0, tk), acc(1, 1, tk)),
                         f"buffer_store_dwordx4 {vr(acc(1, 0, tk), 4)}, v16, {ws}, s39 offen offset:{(tk >> 1) * 2048 + (tk & 1) * 128} {sm}"))
        for T in range(2):
            for ft in range(2):
                side.append((pack(acc(2, ft, 2 * T), acc(2, ft, 2 * T + 1)),
                             f"buffer_store_dwordx4 {vr(acc(2, ft, 2 * T), 4)}, v17, {ws}, s42 offen offset:{T * 2048 + ft * 256} {sm}"))
        for tk in range(4):
            mul = [f"v_pk_mul_f32 {vr(acc(0, ft, tk) + h, 2)}, {vr(acc(0, ft, tk) + h, 2)}, s[6:7]" for ft in range(2) for h in (0, 2)]
            side.append((mul + pack(acc(0, 0, tk), acc(0, 1, tk)),
                         f"buffer_store_dwordx4 {vr(acc(0, 0, tk), 4)}, v17, {ws}, s38 offen offset:{(tk >> 1) * 2048 + (tk & 1) * 256} {sm}"))
        for tk in range(4):
            side.append(([],
                         f"buffer_store_dwordx4 {vr(acc(3, 0, tk), 4)}, v15, {ws}, s43 offen offset:{tk * 1024} {sm}"))
        for l in main: a(l)
        for ins, st in side:
            for l in ins: a(l)
        for dt in range(2):
            for T in range(2):
                for l in pack(acc(5, dt, 2 * T), acc(5, dt, 2 * T + 1)): a(l)
        stores = [st for ins, st in side]
        body = []
        B = body.append
        for t in T4:
            B(f"v_max3_f32 v{mx(t)}, v{P(t,0)}, v{P(t,1)}, v{P(t,2)}")
            B(f"v_min3_f32 v{mn(t)}, v{P(t,0)}, v{P(t,1)}, v{P(t,2)}")
        for i in (3, 5):
            for t in T4:
                B(f"v_max3_f32 v{mx(t)}, v{mx(t)}, v{P(t,i)}, v{P(t,i+1)}")
                B(f"v_min3_f32 v{mn(t)}, v{mn(t)}, v{P(t,i)}, v{P(t,i+1)}")
        for t in T4:
            B(f"v_max_f32 v{mx(t)}, v{mx(t)}, v{P(t,7)}")
            B(f"v_min_f32 v{mn(t)}, v{mn(t)}, v{P(t,7)}")
        for t in T4: B(f"v_sub_f32 v{mn(t)}, 0, v{mn(t)}")
        B("s_nop 1")
        for t in T4: B(f"v_permlane32_swap_b32 v{mx(t)}, v{mn(t)}")
        B("s_nop 1")
        for t in T4: B(f"v_max_f32 v{mx(t)}, v{mx(t)}, v{mn(t)}")
        for t in T4: B(f"v_mov_b32 v{tm(t)}, v{mx(t)}")
        B("s_nop 1")
        for t in T4: B(f"v_permlane16_swap_b32 v{mx(t)}, v{tm(t)}")
        B("s_nop 1")
        for t in T4: B(f"v_max_f32 v{mx(t)}, v{mx(t)}, v{tm(t)}")
        for t in T4: B(f"v_mov_b32 v{mn(t)}, v{mx(t)}")
        B("s_nop 1")
        for t in T4: B(f"v_permlane32_swap_b32 v{mx(t)}, v{mn(t)}")
        B("s_nop 1")
        for t in T4:
            B(f"v_mul_f32 v{mx(t)}, s40, v{mx(t)}")
            B(f"v_mul_f32 v{mn(t)}, s40, v{mn(t)}")
        for t in T4:
            for i in range(0, 8, 2):
                B(f"v_pk_fma_f32 {vr(EP(t,i), 2)}, {vr(P(t,i), 2)}, s[36:37], {vr(mx(t), 2)} op_sel_hi:[1,1,0]")
                B(f"v_pk_fma_f32 {vr(P(t,i), 2)}, {vr(P(t,i), 2)}, s[40:41], {vr(mn(t), 2)} op_sel_hi:[1,1,0]")
        for t in T4:
            for i in range(8):
                B(f"v_exp_f32 v{EP(t,i)}, v{EP(t,i)}")
                B(f"v_exp_f32 v{P(t,i)}, v{P(t,i)}")
        B("s_nop 0")
        for t in T4:
            for k in range(4):
                B(f"v_cvt_pk_bf16_f32 v{BP(t) + k}, v{EP(t,2*k)}, v{EP(t,2*k+1)}")
                B(f"v_cvt_pk_bf16_f32 v{BM(t) + k}, v{P(t,2*k)}, v{P(t,2*k+1)}")
        B("s_nop 1")
        for t in T4:
            B(f"v_mfma_f32_16x16x32_bf16 {vr(SS(t, 0), 4)}, {ar(8, 4)}, {vr(BP(t), 4)}, 0")
            B(f"v_mfma_f32_16x16x32_bf16 {vr(SS(t, 1), 4)}, {ar(8, 4)}, {vr(BM(t), 4)}, 0")
        B("s_nop 7")
        for t in T4:
            B(f"v_rcp_f32 v{SS(t, 0)}, v{SS(t, 0)}")
            B(f"v_rcp_f32 v{SS(t, 1)}, v{SS(t, 1)}")
        B("s_nop 0")
        for t in T4:
            for i in range(0, 8, 2):
                B(f"v_pk_mul_f32 {vr(EP(t,i), 2)}, {vr(EP(t,i), 2)}, {vr(SS(t, 0), 2)} op_sel_hi:[1,0]")
                B(f"v_pk_mul_f32 {vr(P(t,i), 2)}, {vr(P(t,i), 2)}, {vr(SS(t, 1), 2)} op_sel_hi:[1,0]")
        for t in T4:
            for k in range(4):
                B(f"v_cvt_pk_bf16_f32 v{BP(t) + k}, v{EP(t,2*k)}, v{EP(t,2*k+1)}")
                B(f"v_cvt_pk_bf16_f32 v{BM(t) + k}, v{P(t,2*k)}, v{P(t,2*k+1)}")
            row = t * 16 * RS
            for ft in range(2):
                B(f"ds_write_b64 v22, {vr(BP(t) + 2 * ft, 2)} offset:{row + ft * 32}")
                B(f"ds_write_b64 v22, {vr(BM(t) + 2 * ft, 2)} offset:{row + 64 + ft * 32}")
        step = len(body) // (len(stores) + 1)
        out, k = [], 0
        for i, l in enumerate(body):
            out.append(l)
            nxt = body[i + 1] if i + 1 < len(body) else ""
            if k < len(stores) and i >= (k + 1) * step - step // 2 and not l.startswith("s_nop") and not nxt.startswith(("s_nop", "v_permlane", "v_mfma")):
                out.append(stores[k]); k += 1
        out += stores[k:]
        for l in out: a(l)
        self.pstamp(a, 5)
        if self.pfwo: self.prefetch_wo(a)
        a("s_waitcnt lgkmcnt(0)")
        AF, KV = 16, 48
        for sf in range(4):
            for T in range(2):
                for q in range(2):
                    a(f"ds_read_b64_tr_b16 {ar(AF + (sf * 2 + T) * 4 + 2 * q, 2)}, v23 offset:{(32 * T + 16 * q) * RS + sf * 32}")
        XB = 40960
        a(f"s_mul_i32 s3, s{S_WV}, 12288")
        a(f"s_add_u32 s3, s3, {XB}")
        a("v_add_u32 v20, s3, v15")
        a(f"s_and_b32 s4, s{S_WV}, 2")
        a(f"s_mul_i32 s4, s4, 12288")
        a(f"s_mul_i32 s5, s{S_TH}, 6144")
        a("s_add_u32 s4, s4, s5")
        a(f"s_add_u32 s4, s4, {XB}")
        a("v_add_u32 v21, s4, v15")
        for sf in range(4):
            a(f"s_waitcnt lgkmcnt({(3 - sf) * 4})")
            for T in range(2):
                A = ar(AF + (sf * 2 + T) * 4, 4)
                for dt in range(3):
                    d = ar(KV + (sf * 3 + dt) * 4, 4)
                    Bop = vr(VB(dt, T), 4) if dt < 2 else ar(8, 4)
                    a(f"v_mfma_f32_16x16x32_bf16 {d}, {A}, {Bop}, {d if T else 0}")
        a(f"s_lshl_b32 s3, s{S_HD}, 4")
        a(f"s_add_u32 s3, s3, s{S_MT}")
        a("s_lshl_b32 s3, s3, 14")
        a(f"s_add_u32 s3, s3, {WS_KVP}")
        a(f"s_lshl_b32 s4, s{S_TH}, 12")
        a("s_add_u32 s4, s4, s3")
        a(f"s_lshl_b32 s6, s{S_TH}, 7")
        a("s_add_u32 s6, s6, s3")
        a("s_add_u32 s6, s6, 8192")
        a("v_lshlrev_b32 v19, 4, v19")
        for k in range(12): a(f"ds_write_b128 v20, {ar(KV + 4 * k, 4)} offset:{k * 1024}")
        a("s_waitcnt lgkmcnt(0)")
        a("s_barrier")
        for w in range(2):
            for k in range(6):
                a(f"ds_read_b128 {vr(24 + (w * 6 + k) * 4, 4) if w == 0 else vr(80 + k * 4 if k < 4 else 112 + (k - 4) * 4, 4)}, v21 offset:{w * 12288 + k * 1024}")
        a("s_waitcnt lgkmcnt(0)")
        oth = lambda i: (80 + i if i < 16 else 112 + i - 16)
        for i in range(0, 24, 2):
            a(f"v_pk_add_f32 {vr(24 + i, 2)}, {vr(24 + i, 2)}, {vr(oth(i), 2)}")
        for ft in range(2):
            for dt in range(2):
                a(f"buffer_store_dwordx4 {vr(24 + (ft * 3 + dt) * 4, 4)}, v15, {ws}, s4 offen offset:{(ft * 2 + dt) * 1024} {sm}")
            a(f"buffer_store_dwordx4 {vr(24 + (ft * 3 + 2) * 4, 4)}, v19, {ws}, s6 offen offset:{ft * 64} {sm}")
```

```python
from asmlib import *
from layout import *
from prof import Prof
from dbgstamp import dbg_setup, dbg_stamp

MARGIN = 90.0
TPS, TPW = 8, 4
STG = TPS * 4096
LDS_MISC = 2 * STG
L_KV, L_Z, L_WP, L_VOTE, L_SPARE = 0, 4096, 6144, 8192, 8448
LDS_K2 = LDS_MISC + 8448 + 1024

V_LANE16, V_T0, V_T1, V_T2, V_T3, V_G, V_RD = 1, 2, 3, 4, 5, 6, 7
VQ, VC, VS, VP, VKF, VVF, VO, VL, VONE = 8, 24, 56, 88, 96, 112, 128, 160, 168
S_WS, S_K, S_V = 8, 12, 16
S_H, S_QB, S_WV, S_SOFF, S_CNT, S_MODE, S_WOFF, S_QG, S_KH = 20, 21, 22, 23, 24, 25, 26, 27, 32
S_KVP, S_PKV, S_PZ = 44, 48, 49
VKA, VPT, VQB, VGB, V_ZOFF = 176, 184, 200, 244, 246

class K2d(Prof):
    V_PROF = 250
    def __init__(self, name, prof=False, store_mod="nt", force_fallback=False, margin=MARGIN, sched=1, bapply=True, prio=0, diag=(), code=None, dbg=None):
        self.name, self.prof, self.store_mod = name, prof, store_mod
        self.force_fallback, self.margin, self.sched, self.bapply, self.prio = force_fallback, margin, sched, bapply, prio
        self.diag = set(diag)
        self.code = code
        self.dbg = dbg

    def dma_piece(self, slot, i):
        kv, n = i >> 1, i & 1
        srd_ = S_K if kv == 0 else S_V
        ins = []
        if n == 0:
            ins += [f"s_add_u32 m0, s{S_WOFF}, {slot * STG + kv * (STG // 2)}", "s_nop 0"]
        ins.append(f"buffer_load_dwordx4 v{V_LANE16}, s[{srd_}:{srd_+3}], s{S_SOFF} offen offset:{n * 1024} lds")
        if i == 3:
            ins.append(f"s_add_u32 s{S_SOFF}, s{S_SOFF}, {STG // 2}")
        return ins
    def dma_stage(self, slot):
        return [l for i in range(4) for l in self.dma_piece(slot, i)]

    @staticmethod
    def koff(j): return (j // TPW) * STG + (j % TPW) * 2048
    def rdK(self, j):
        b = VKF + 8 * (j & 1); j %= 2 * TPW
        return [f"ds_read_b128 {vr(b + 4 * st, 4)}, v{V_RD} offset:{self.koff(j) + st * 1024}" for st in range(2)]
    def rdV(self, j):
        b = VVF + 8 * (j & 1); j %= 2 * TPW
        return [f"ds_read_b128 {vr(b + 4 * st, 4)}, v{V_RD} offset:{self.koff(j) + STG // 2 + st * 1024}" for st in range(2)]

    def unit(self, a, j, qt):
        u = 2 * j + qt
        s, sn = VS + 16 * (u & 1), VS + 16 * ((u + 1) & 1)
        jn, qn = (j + (qt == 1), qt ^ 1)
        kn = VKF + 8 * (jn & 1)
        jp, qp = (j - (qt == 0), qt ^ 1)
        v, vp = VVF + 8 * (j & 1), VVF + 8 * (jp & 1)
        e = lambda r: f"v_exp_f32 v{s + r}, v{s + r}"
        c = lambda k: f"v_cvt_pk_bf16_f32 v{VP + k}, v{s + 2 * k}, v{s + 2 * k + 1}"
        O, Op, Lq, Lp = VO + 16 * qt, VO + 16 * qp, VL + 4 * qt, VL + 4 * qp
        Sa = f"v_mfma_f32_32x32x16_bf16 {vr(sn, 16)}, {vr(kn, 4)}, {vr(VQ + 8 * qn, 4)}, {vr(VC + 16 * qn, 16)}"
        Sb = f"v_mfma_f32_32x32x16_bf16 {vr(sn, 16)}, {vr(kn + 4, 4)}, {vr(VQ + 8 * qn + 4, 4)}, {vr(sn, 16)}"
        PVa = f"v_mfma_f32_32x32x16_bf16 {vr(O, 16)}, {vr(v, 4)}, {vr(VP, 4)}, {vr(O, 16)}"
        PVb = f"v_mfma_f32_32x32x16_bf16 {vr(Op, 16)}, {vr(vp + 4, 4)}, {vr(VP + 4, 4)}, {vr(Op, 16)}"
        La = f"v_mfma_f32_16x16x32_bf16 {vr(Lq, 4)}, {vr(VONE, 4)}, {vr(VP, 4)}, {vr(Lq, 4)}"
        Lb = f"v_mfma_f32_16x16x32_bf16 {vr(Lp, 4)}, {vr(VONE, 4)}, {vr(VP + 4, 4)}, {vr(Lp, 4)}"
        rd = self.rdK(j + 1) if qt == 0 else self.rdV(j + 1)
        top = ["s_waitcnt lgkmcnt(0)"]
        jj = j % TPW
        if jj == TPW - 1 and qt == 0:
            top += ["s_waitcnt vmcnt(0)", "s_barrier"]
            if self.bapply: top += self.part_add() + self.part_loads()
        k = (2 * jj + qt - 2 * (TPW - 1)) % (2 * TPW)
        dm = []
        if k < 4:
            dm = self.dma_piece((((j + 1) // TPW) + 1) & 1, k)
        r0, r1 = rd[:1], rd[1:]
        if self.sched == 1:
            seq = (top + [e(0)] + r0 + [e(1)] + r1 + [e(2), e(3), Sa, c(0), c(1), e(4), e(5), Lb, e(6), e(7), c(2), c(3), Sb,
                   e(8)] + dm + [e(9), e(10), e(11), PVb, c(4), c(5), e(12), e(13), PVa, e(14), e(15), c(6), c(7), La])
        elif self.sched == 2:
            seq = (top + r0 + r1 + [e(0), e(1), e(2), e(3), Sa, c(0), c(1), e(4), e(5), Lb, e(6), e(7), c(2), c(3), Sb] + dm +
                   [e(8), e(9), e(10), e(11), PVb, c(4), c(5), e(12), e(13), PVa, e(14), e(15), c(6), c(7), La])
        D = self.diag
        if "nord" in D: seq = [l for l in seq if not l.startswith("ds_read")]
        if "noL" in D: seq = [l for l in seq if "16x16x32" not in l]
        for l in seq: a(l)

    def halfmax(self, a, x, t):
        a(f"v_mov_b32 v{t}, v{x}")
        a("s_nop 1")
        a(f"v_permlane32_swap_b32 v{x}, v{t}")
        a("s_nop 1")
        a(f"v_max_f32 v{x}, v{x}, v{t}")

    NT = 2
    def part_loads(self):
        kvp = f"s[{S_KVP}:{S_KVP+3}]"
        r = []
        for b in range(2):
            r += [f"buffer_load_dwordx4 {vr(VPT + 8 * b, 4)}, v{V_LANE16}, {kvp}, s{S_PKV} offen",
                  f"buffer_load_dwordx4 {vr(VPT + 8 * b + 4, 4)}, v{V_ZOFF}, {kvp}, s{S_PZ} offen",
                  f"s_add_u32 s{S_PKV}, s{S_PKV}, {KVP_STRIDE}", f"s_add_u32 s{S_PZ}, s{S_PZ}, {KVP_STRIDE}"]
        return r
    def part_add(self):
        return [f"v_pk_add_f32 {vr(VKA + r, 2)}, {vr(VKA + r, 2)}, {vr(VPT + 8 * b + r, 2)}" for b in range(2) for r in range(0, 8, 2)]
    def part_reset(self):
        return ([f"s_lshl_b32 s{S_PKV}, s{S_WV}, 10", f"s_and_b32 s{S_PZ}, s{S_WV}, 3", f"s_lshl_b32 s{S_PZ}, s{S_PZ}, 6",
                 f"s_add_u32 s{S_PZ}, s{S_PZ}, 8192"] + [f"v_mov_b32 v{VKA + r}, 0" for r in range(8)])

    def b_loads(self, a):
        ws = f"s[{S_WS}:{S_WS+3}]"
        a(f"s_lshl_b32 s6, s{S_QB}, 4")
        a(f"s_lshl_b32 s7, s{S_WV}, 1")
        a("s_add_u32 s6, s6, s7")
        a("s_lshl_b32 s7, s6, 10")
        a(f"s_lshl_b32 s3, s{S_H}, 17")
        a("s_add_u32 s7, s7, s3")
        a(f"s_add_u32 s7, s7, {WS_QB}")
        for t in range(self.NT):
            a(f"buffer_load_dwordx4 {vr(VQB + 4 * t, 4)}, v{V_LANE16}, {ws}, s7 offen offset:{t * 1024}")
        a("s_lshl_b32 s7, s6, 6")
        a(f"s_add_u32 s7, s7, {WS_G}")
        a(f"v_and_b32 v{V_T0}, 15, v{V_T1}")
        a(f"v_lshlrev_b32 v{V_T0}, 2, v{V_T0}")
        for t in range(self.NT):
            a(f"buffer_load_dword v{VGB + t}, v{V_T0}, {ws}, s7 offen offset:{t * 64}")
        a(f"s_lshl_b32 s6, s{S_H}, 11")
        a(f"s_lshl_b32 s7, s{S_WV}, 10")
        a("s_add_u32 s6, s6, s7")
        a(f"s_cmp_ge_u32 s{S_WV}, 2")
        a("s_cselect_b32 s6, 0x10000, s6")
        a(f"s_cselect_b32 s7, {L_SPARE - L_WP}, s7")
        a(f"s_add_u32 m0, s7, {LDS_MISC + L_WP}")
        a("s_nop 0")
        a(f"buffer_load_dwordx4 v{V_LANE16}, s[28:31], s6 offen lds")

    def b_apply(self, a):
        ws = f"s[{S_WS}:{S_WS+3}]"
        NT = self.NT
        for k in range(4):
            a(f"v_cvt_pk_bf16_f32 v{36 + k}, v{VKA + 2 * k}, v{VKA + 2 * k + 1}")
        a(f"v_and_b32 v{V_T1}, 63, v0")
        a(f"v_lshlrev_b32 v{V_T0}, 3, v{V_T1}")
        a(f"v_add_u32 v{V_T0}, {LDS_MISC}, v{V_T0}")
        a(f"s_lshl_b32 s6, s{S_WV}, 9")
        a(f"v_add_u32 v{V_T2}, s6, v{V_T0}")
        a(f"ds_write_b64 v{V_T2}, {vr(36, 2)} offset:{L_KV}")
        a(f"s_and_b32 s6, s{S_WV}, 3")
        a(f"s_lshl_b32 s6, s6, 9")
        a(f"v_add_u32 v{V_T2}, s6, v{V_T0}")
        a(f"ds_write_b64 v{V_T2}, {vr(38, 2)} offset:{L_Z}")
        a("s_waitcnt lgkmcnt(0)")
        a("s_barrier")
        for sg in range(2):
            for dt in range(2):
                for ft in range(2):
                    t = (sg * 2 + ft) * 2 + dt
                    a(f"ds_read_b64 {vr(24 + (sg * 2 + dt) * 4 + 2 * ft, 2)}, v{V_T0} offset:{L_KV + t * 512}")
            for ft in range(2):
                a(f"ds_read_b64 {vr(40 + sg * 4 + 2 * ft, 2)}, v{V_T0} offset:{L_Z + (sg * 2 + ft) * 512}")
        a(f"v_lshrrev_b32 v{V_T2}, 4, v{V_T1}")
        a(f"v_bfe_u32 v{V_T3}, v{V_T1}, 2, 2")
        a(f"v_lshl_add_u32 v{V_T2}, v{V_T2}, 2, v{V_T3}")
        a(f"v_lshlrev_b32 v{V_T2}, 6, v{V_T2}")
        a(f"v_and_b32 v{V_T3}, 3, v{V_T1}")
        a(f"v_lshl_add_u32 v{V_T2}, v{V_T3}, 3, v{V_T2}")
        a(f"v_add_u32 v{V_T2}, {LDS_MISC}, v{V_T2}")
        for ft in range(2):
            for q in range(2):
                a(f"ds_read_b64_tr_b16 {vr(48 + 4 * ft + 2 * q, 2)}, v{V_T2} offset:{L_WP + q * 1024 + ft * 32}")
        a(f"v_mov_b32 v56, 0x3f803f80")
        for r in range(1, 4): a(f"v_mov_b32 v{56 + r}, v56")
        a("s_waitcnt lgkmcnt(0)")
        for t in range(NT):
            for ft in range(2):
                a(f"v_mfma_f32_16x16x32_bf16 {vr(64 + 8 * t + 4 * ft, 4)}, {vr(48 + 4 * ft, 4)}, {vr(VQB + 4 * t, 4)}, 0")
        a("s_nop 7")
        P = lambda t, i: 64 + 8 * t + i
        MX, MN, TM = 96, 100, 104
        T = range(NT)
        for t in T:
            a(f"v_max3_f32 v{MX+2*t}, v{P(t,0)}, v{P(t,1)}, v{P(t,2)}")
            a(f"v_min3_f32 v{MN+2*t}, v{P(t,0)}, v{P(t,1)}, v{P(t,2)}")
        for i in (3, 5):
            for t in T:
                a(f"v_max3_f32 v{MX+2*t}, v{MX+2*t}, v{P(t,i)}, v{P(t,i+1)}")
                a(f"v_min3_f32 v{MN+2*t}, v{MN+2*t}, v{P(t,i)}, v{P(t,i+1)}")
        for t in T:
            a(f"v_max_f32 v{MX+2*t}, v{MX+2*t}, v{P(t,7)}")
            a(f"v_min_f32 v{MN+2*t}, v{MN+2*t}, v{P(t,7)}")
        for t in T: a(f"v_sub_f32 v{MN+2*t}, 0, v{MN+2*t}")
        a("s_nop 1")
        for t in T: a(f"v_permlane32_swap_b32 v{MX+2*t}, v{MN+2*t}")
        a("s_nop 1")
        for t in T: a(f"v_max_f32 v{MX+2*t}, v{MX+2*t}, v{MN+2*t}")
        for t in T: a(f"v_mov_b32 v{TM+2*t}, v{MX+2*t}")
        a("s_nop 1")
        for t in T: a(f"v_permlane16_swap_b32 v{MX+2*t}, v{TM+2*t}")
        a("s_nop 1")
        for t in T: a(f"v_max_f32 v{MX+2*t}, v{MX+2*t}, v{TM+2*t}")
        for t in T: a(f"v_mov_b32 v{MN+2*t}, v{MX+2*t}")
        a("s_nop 1")
        for t in T: a(f"v_permlane32_swap_b32 v{MX+2*t}, v{MN+2*t}")
        a("s_nop 1")
        EP = lambda t, i: 176 + 8 * t + i
        a(f"s_mov_b32 s36, {f32bits(LOG2E)}")
        a(f"s_mov_b32 s37, {f32bits(LOG2E)}")
        a(f"s_mov_b32 s38, {f32bits(-LOG2E)}")
        a(f"s_mov_b32 s39, {f32bits(-LOG2E)}")
        for t in T:
            a(f"v_mul_f32 v{MX+2*t}, s38, v{MX+2*t}")
            a(f"v_mul_f32 v{MN+2*t}, s38, v{MN+2*t}")
        for t in T:
            for i in range(0, 8, 2):
                a(f"v_pk_fma_f32 {vr(EP(t,i), 2)}, {vr(P(t,i), 2)}, s[36:37], {vr(MX+2*t, 2)} op_sel_hi:[1,1,0]")
                a(f"v_pk_fma_f32 {vr(P(t,i), 2)}, {vr(P(t,i), 2)}, s[38:39], {vr(MN+2*t, 2)} op_sel_hi:[1,1,0]")
        for t in T:
            for i in range(8):
                a(f"v_exp_f32 v{EP(t,i)}, v{EP(t,i)}")
                a(f"v_exp_f32 v{P(t,i)}, v{P(t,i)}")
        BP, BM = 96, 112
        a("s_nop 0")
        for t in T:
            for k in range(4):
                a(f"v_cvt_pk_bf16_f32 v{BP + 4*t + k}, v{EP(t,2*k)}, v{EP(t,2*k+1)}")
                a(f"v_cvt_pk_bf16_f32 v{BM + 4*t + k}, v{P(t,2*k)}, v{P(t,2*k+1)}")
        a("s_nop 1")
        for t in T:
            R = 176 + 32 * t
            bp, bm = vr(BP + 4 * t, 4), vr(BM + 4 * t, 4)
            for dt in range(2):
                a(f"v_mfma_f32_16x16x32_bf16 {vr(R + 4 * dt, 4)}, {vr(24 + 4 * dt, 4)}, {bp}, 0")
                a(f"v_mfma_f32_16x16x32_bf16 {vr(R + 8 + 4 * dt, 4)}, {vr(32 + 4 * dt, 4)}, {bm}, 0")
            a(f"v_mfma_f32_16x16x32_bf16 {vr(R + 16, 4)}, {vr(40, 4)}, {bp}, 0")
            a(f"v_mfma_f32_16x16x32_bf16 {vr(R + 20, 4)}, {vr(44, 4)}, {bm}, 0")
            a(f"v_mfma_f32_16x16x32_bf16 {vr(R + 24, 4)}, {vr(56, 4)}, {bp}, 0")
            a(f"v_mfma_f32_16x16x32_bf16 {vr(R + 28, 4)}, {vr(56, 4)}, {bm}, 0")
        a("s_nop 7")
        for t in T:
            R = 176 + 32 * t
            a(f"v_rcp_f32 v{R + 24}, v{R + 24}")
            a(f"v_rcp_f32 v{R + 28}, v{R + 28}")
        a("s_nop 0")
        for t in T:
            R = 176 + 32 * t
            a(f"v_mul_f32 v{R + 16}, v{R + 16}, v{R + 24}")
            a(f"v_sub_f32 v{R + 17}, 1.0, v{VGB + t}")
            a(f"v_fma_f32 v{R + 16}, v{R + 20}, v{R + 28}, v{R + 16}")
            a(f"v_add_f32 v{R + 16}, {f32bits(1e-6)}, v{R + 16}")
        for t in T:
            a(f"v_rcp_f32 v{176 + 32 * t + 16}, v{176 + 32 * t + 16}")
        a("s_nop 0")
        for t in T:
            R = 176 + 32 * t
            a(f"v_mul_f32 v{R + 16}, v{R + 16}, v{R + 17}")
            a(f"v_mul_f32 v{R + 24}, v{R + 24}, v{R + 16}")
            a(f"v_mul_f32 v{R + 28}, v{R + 28}, v{R + 16}")
        for t in T:
            R = 176 + 32 * t
            for i in range(8): a(f"v_mul_f32 v{R + i}, v{R + i}, v{R + 24}")
            for i in range(8): a(f"v_fma_f32 v{R + i}, v{R + 8 + i}, v{R + 28}, v{R + i}")
        for t in T:
            R = 176 + 32 * t
            for k in range(4):
                a(f"v_cvt_pk_bf16_f32 v{R + 20 + k}, v{R + 2 * k}, v{R + 2 * k + 1}")
            a(f"s_lshl_b32 s6, s{S_QB}, 4")
            a(f"s_lshl_b32 s7, s{S_WV}, 1")
            a("s_add_u32 s6, s6, s7")
            a(f"s_add_u32 s6, s6, {t}")
            a("s_lshl_b32 s6, s6, 10")
            a(f"s_lshl_b32 s7, s{S_H}, 17")
            a("s_add_u32 s6, s6, s7")
            a(f"s_add_u32 s6, s6, {WS_O + 32 * 131072}")
            a(f"buffer_store_dwordx4 {vr(R + 20, 4)}, v{V_LANE16}, {ws}, s6 offen {self.store_mod}")

    def gen(self):
        a = Asm()
        n = self.name
        ws = f"s[{S_WS}:{S_WS+3}]"
        a("s_cmp_ge_u32 s2, 256")
        a(f"s_cbranch_scc1 {n}_end")
        self.pstamp(a, 0)
        if self.code:
            first, last, nbytes = self.code
            code_prefetch(a, n, first, last, 8, 240, 242, 90)(-(-nbytes // 32768))
        a("s_load_dwordx2 s[4:5], s[0:1], 80")
        a("s_load_dwordx2 s[34:35], s[0:1], 40")
        a("s_and_b32 s3, s2, 7")
        a("s_lshr_b32 s6, s2, 3")
        a(f"s_lshl_b32 s{S_H}, s3, 2")
        a("s_lshr_b32 s7, s6, 3")
        a(f"s_add_u32 s{S_H}, s{S_H}, s7")
        a(f"s_and_b32 s{S_QB}, s6, 7")
        a("v_lshrrev_b32 v2, 6, v0")
        a(f"v_and_b32 v{V_T1}, 63, v0")
        a(f"v_lshlrev_b32 v{V_LANE16}, 4, v{V_T1}")
        a(f"v_readfirstlane_b32 s{S_WV}, v2")
        a("s_waitcnt lgkmcnt(0)")
        srd(a, S_WS, 4, 0x10000000)
        srd(a, 28, 34, 65536)
        a(f"s_lshl_b32 s3, s{S_H}, 17")
        for S, off in ((S_K, WS_KA), (S_V, WS_VA)):
            a(f"s_add_u32 s6, s3, {off}")
            a(f"s_add_u32 s{S}, s4, s6")
            a(f"s_addc_u32 s{S+1}, s5, 0")
            a(f"s_and_b32 s{S+1}, s{S+1}, 0xffff")
            a(f"s_mov_b32 s{S+2}, 131072")
            a(f"s_mov_b32 s{S+3}, 0x00020000")
        a(f"s_lshl_b32 s{S_WOFF}, s{S_WV}, 11")
        a(f"s_and_b32 s{S_QG}, s{S_WV}, 3")
        a(f"s_lshr_b32 s{S_KH}, s{S_WV}, 2")
        a(f"s_lshl_b32 s6, s{S_KH}, 13")
        a(f"v_add_u32 v{V_RD}, s6, v{V_LANE16}")
        a(f"s_lshl_b32 s6, s{S_QB}, 3")
        a(f"s_lshl_b32 s7, s{S_QG}, 1")
        a("s_add_u32 s6, s6, s7")
        a("s_lshl_b32 s7, s6, 11")
        a(f"s_lshl_b32 s3, s{S_H}, 17")
        a("s_add_u32 s7, s7, s3")
        a(f"s_add_u32 s7, s7, {WS_QA}")
        a(f"s_mov_b32 s{S_MODE}, 0")
        a(f"s_mov_b32 s{S_SOFF}, s{S_WOFF}")
        for l in self.dma_piece(0, 0) + self.dma_piece(0, 1): a(l)
        for i in range(4):
            a(f"buffer_load_dwordx4 {vr(VQ + 4 * i, 4)}, v{V_LANE16}, {ws}, s7 offen offset:{i * 1024}")
        for l in self.dma_piece(0, 2) + self.dma_piece(0, 3): a(l)
        a(f"s_add_u32 s6, s6, s{S_KH}")
        a("s_lshl_b32 s7, s6, 7")
        a(f"s_add_u32 s7, s7, {WS_G}")
        a(f"v_and_b32 v{V_T0}, 31, v{V_T1}")
        a(f"v_lshlrev_b32 v{V_T0}, 2, v{V_T0}")
        a(f"buffer_load_dword v{V_G}, v{V_T0}, {ws}, s7 offen")
        nbg = 1
        if self.bapply:
            a(f"s_lshl_b32 s6, s{S_H}, 18")
            a(f"s_add_u32 s6, s6, {WS_KVP}")
            a(f"s_add_u32 s{S_KVP}, s4, s6")
            a(f"s_addc_u32 s{S_KVP+1}, s5, 0")
            a(f"s_and_b32 s{S_KVP+1}, s{S_KVP+1}, 0xffff")
            a(f"s_mov_b32 s{S_KVP+2}, {NKVP * KVP_STRIDE}")
            a(f"s_mov_b32 s{S_KVP+3}, 0x00020000")
            a(f"v_lshrrev_b32 v{V_ZOFF}, 4, v{V_T1}")
            a(f"v_lshlrev_b32 v{V_ZOFF}, 4, v{V_ZOFF}")
            for l in self.part_reset(): a(l)
            for r in range(16): a(f"v_mov_b32 v{VPT + r}, 0")
        self.nbg = nbg
        self.pstamp(a, 1)
        a(f"v_lshrrev_b32 v{V_T0}, 4, v{V_T1}")
        a(f"v_lshrrev_b32 v{V_T2}, 2, v{V_T1}")
        a(f"v_xor_b32 v{V_T0}, v{V_T0}, v{V_T2}")
        a(f"v_and_b32 v{V_T0}, 1, v{V_T0}")
        a(f"v_mov_b32 v{V_T2}, 0x3f803f80")
        a(f"v_cmp_eq_u32 vcc, 0, v{V_T0}")
        a("s_nop 1")
        a(f"v_cndmask_b32 v{VONE}, 0, v{V_T2}, vcc")
        for r in range(1, 4): a(f"v_mov_b32 v{VONE + r}, v{VONE}")
        a(f"s_waitcnt vmcnt({self.nbg})")
        a(f"s_branch {n}_first")
        a.label(f"{n}_restart")
        a(f"s_mov_b32 s{S_SOFF}, s{S_WOFF}")
        for l in self.dma_stage(0): a(l)
        if self.bapply:
            for l in self.part_reset(): a(l)
            for r in range(16): a(f"v_mov_b32 v{VPT + r}, 0")
        a("s_waitcnt vmcnt(0)")
        a.label(f"{n}_first")
        for r in range(32): a(f"v_mov_b32 v{VO + r}, 0")
        for r in range(8): a(f"v_mov_b32 v{VL + r}, 0")
        for r in range(8): a(f"v_mov_b32 v{VP + r}, 0")
        for r in range(4): a(f"v_mov_b32 v{VVF + 8 + 4 + r}, 0")
        a("s_barrier")
        self.pstamp(a, 2)
        for l in self.dma_piece(1, 0) + self.dma_piece(1, 1): a(l)
        if self.bapply:
            a(f"s_cmp_lg_u32 s{S_MODE}, 0")
            a(f"s_cbranch_scc1 {n}_nobl")
            self.b_loads(a)
            a.label(f"{n}_nobl")
        a(f"s_cmp_lg_u32 s{S_MODE}, 0")
        a(f"s_cbranch_scc1 {n}_havemax")
        a(f"ds_read_b128 {vr(VKF, 4)}, v{V_LANE16}")
        a(f"ds_read_b128 {vr(VKF + 4, 4)}, v{V_LANE16} offset:1024")
        a("s_waitcnt lgkmcnt(0)")
        for qt in range(2):
            s = VS + 16 * qt
            a(f"v_mfma_f32_32x32x16_bf16 {vr(s, 16)}, {vr(VKF, 4)}, {vr(VQ + 8 * qt, 4)}, 0")
            a(f"v_mfma_f32_32x32x16_bf16 {vr(s, 16)}, {vr(VKF + 4, 4)}, {vr(VQ + 8 * qt + 4, 4)}, {vr(s, 16)}")
        a("s_nop 15")
        for qt in range(2):
            s, x = VS + 16 * qt, V_T0 + 2 * qt
            a(f"v_max3_f32 v{x}, v{s}, v{s + 1}, v{s + 2}")
            for r in range(3, 15, 2):
                a(f"v_max3_f32 v{x}, v{x}, v{s + r}, v{s + r + 1}")
            a(f"v_max_f32 v{x}, v{x}, v{s + 15}")
        for qt in range(2):
            x = V_T0 + 2 * qt
            self.halfmax(a, x, V_T3)
            a(f"v_add_f32 v{x}, {f32bits(self.margin)}, v{x}")
            a(f"v_sub_f32 v{VC + 16 * qt}, 0, v{x}")
            for r in range(1, 16): a(f"v_mov_b32 v{VC + 16 * qt + r}, v{VC + 16 * qt}")
        a.label(f"{n}_havemax")
        for l in self.rdK(0) + self.rdV(0): a(l)
        a("s_waitcnt lgkmcnt(0)")
        a(f"v_mfma_f32_32x32x16_bf16 {vr(VS, 16)}, {vr(VKF, 4)}, {vr(VQ, 4)}, {vr(VC, 16)}")
        a(f"v_mfma_f32_32x32x16_bf16 {vr(VS, 16)}, {vr(VKF + 4, 4)}, {vr(VQ + 4, 4)}, {vr(VS, 16)}")
        a("s_nop 7")
        a(f"s_mov_b32 s{S_CNT}, {32 // (2 * TPW)}")
        if self.prio:
            a(f"s_cmp_ge_u32 s{S_WV}, 4")
            a(f"s_cbranch_scc0 {n}_noprio")
            a("s_setprio 1")
            a.label(f"{n}_noprio")
        self.pstamp(a, 3)
        a("s_nop 3")
        a(".p2align 6")
        a.label(f"{n}_loop")
        for j in range(2 * TPW):
            for qt in range(2):
                self.unit(a, j, qt)
        a(f"s_sub_u32 s{S_CNT}, s{S_CNT}, 1")
        a(f"s_cmp_lg_u32 s{S_CNT}, 0")
        a(f"s_cbranch_scc1 {n}_loop")
        a("s_nop 1")
        a(f"v_mfma_f32_32x32x16_bf16 {vr(VO + 16, 16)}, {vr(VVF + 8 + 4, 4)}, {vr(VP + 4, 4)}, {vr(VO + 16, 16)}")
        a(f"v_mfma_f32_16x16x32_bf16 {vr(VL + 4, 4)}, {vr(VONE, 4)}, {vr(VP + 4, 4)}, {vr(VL + 4, 4)}")
        if self.prio: a("s_setprio 0")
        self.pstamp(a, 4)
        a("s_waitcnt vmcnt(0) lgkmcnt(0)")
        if self.bapply:
            for l in self.part_add(): a(l)
        a("s_nop 15")
        a(f"s_mov_b32 s3, 0")
        if not self.diag:
            a(f"v_mul_f32 v{V_T0}, {f32bits(256.0)}, v{VL}")
            a(f"v_mul_f32 v{V_T2}, {f32bits(256.0)}, v{VL + 4}")
            a(f"v_mul_f32 v{V_T0}, 0, v{V_T0}")
            a(f"v_fma_f32 v{V_T0}, v{V_T2}, 0, v{V_T0}")
            for r in range(32): a(f"v_fma_f32 v{V_T0}, v{VO + r}, 0, v{V_T0}")
            if self.force_fallback:
                a(f"v_mov_b32 v{V_T0}, 0x7fc00000")
            a(f"v_cmp_u_f32 vcc, v{V_T0}, v{V_T0}")
            a(f"s_or_b32 s3, vcc_lo, vcc_hi")
            a(f"s_cmp_lg_u32 s3, 0")
            a(f"s_cselect_b32 s3, 1, 0")
        a(f"v_mov_b32 v{V_T0}, s3")
        a(f"s_lshl_b32 s6, s{S_WV}, 2")
        a(f"s_add_u32 s6, s6, {LDS_MISC + L_VOTE}")
        a(f"v_mov_b32 v{V_T2}, s6")
        a(f"ds_write_b32 v{V_T2}, v{V_T0}")
        a("s_waitcnt lgkmcnt(0)")
        a("s_barrier")
        a(f"s_mul_i32 s6, s{S_WV}, {5 * 1024}")
        a(f"v_add_u32 v{V_T2}, s6, v{V_LANE16}")
        a(f"s_cmp_eq_u32 s{S_KH}, 0")
        a(f"s_cbranch_scc1 {n}_give1")
        for qt, lab in ((0, ""), (1, f"{n}_give1")):
            if lab: a.label(lab)
            for k in range(4):
                a(f"ds_write_b128 v{V_T2}, {vr(VO + 16 * qt + 4 * k, 4)} offset:{k * 1024}")
            a(f"ds_write_b128 v{V_T2}, {vr(VL + 4 * qt, 4)} offset:4096")
            if qt == 0: a(f"s_branch {n}_gave")
        a.label(f"{n}_gave")
        a(f"v_mov_b32 v{V_T0}, {LDS_MISC + L_VOTE}")
        a(f"ds_read_b128 v[216:219], v{V_T0}")
        a(f"ds_read_b128 v[220:223], v{V_T0} offset:16")
        a("s_waitcnt lgkmcnt(0)")
        a("v_or3_b32 v216, v216, v217, v218")
        a("v_or3_b32 v216, v216, v219, v220")
        a("v_or3_b32 v216, v216, v221, v222")
        a("v_or_b32 v216, v216, v223")
        a("s_barrier")
        a("v_readfirstlane_b32 s3, v216")
        a(f"s_sub_u32 s6, 1, s{S_MODE}")
        a("s_and_b32 s3, s3, s6")
        a("s_cmp_eq_u32 s3, 0")
        a(f"s_cbranch_scc1 {n}_fin")
        a("s_barrier")
        a(f"s_mov_b32 s{S_SOFF}, s{S_WOFF}")
        a(f"s_mov_b32 s{S_CNT}, {64 // TPS}")
        a(f"v_mov_b32 v{V_T0}, 0xff800000")
        a(f"v_mov_b32 v{V_T2}, 0xff800000")
        a.label(f"{n}_maxloop")
        for l in self.dma_stage(0): a(l)
        a("s_waitcnt vmcnt(0)")
        a("s_barrier")
        for j in range(TPS):
            a(f"ds_read_b128 {vr(VKF, 4)}, v{V_LANE16} offset:{j * 2048}")
            a(f"ds_read_b128 {vr(VKF + 4, 4)}, v{V_LANE16} offset:{j * 2048 + 1024}")
            a("s_waitcnt lgkmcnt(0)")
            for qt in range(2):
                s = VS + 16 * qt
                a(f"v_mfma_f32_32x32x16_bf16 {vr(s, 16)}, {vr(VKF, 4)}, {vr(VQ + 8 * qt, 4)}, 0")
                a(f"v_mfma_f32_32x32x16_bf16 {vr(s, 16)}, {vr(VKF + 4, 4)}, {vr(VQ + 8 * qt + 4, 4)}, {vr(s, 16)}")
            a("s_nop 15")
            for qt in range(2):
                s, x = VS + 16 * qt, V_T0 + 2 * qt
                for r in range(0, 16, 2):
                    a(f"v_max3_f32 v{x}, v{x}, v{s + r}, v{s + r + 1}")
        a("s_barrier")
        a(f"s_sub_u32 s{S_CNT}, s{S_CNT}, 1")
        a(f"s_cmp_lg_u32 s{S_CNT}, 0")
        a(f"s_cbranch_scc1 {n}_maxloop")
        for qt in range(2):
            x = V_T0 + 2 * qt
            self.halfmax(a, x, V_T3)
            a(f"v_sub_f32 v{VC + 16 * qt}, 0, v{x}")
            for r in range(1, 16): a(f"v_mov_b32 v{VC + 16 * qt + r}, v{VC + 16 * qt}")
        a(f"s_mov_b32 s{S_MODE}, 1")
        a(f"s_branch {n}_restart")
        a.label(f"{n}_fin")
        a(f"s_xor_b32 s6, s{S_WV}, 4")
        a(f"s_mul_i32 s6, s6, {5 * 1024}")
        a(f"v_add_u32 v{V_T2}, s6, v{V_LANE16}")
        for k in range(4):
            a(f"ds_read_b128 {vr(VS + 4 * k, 4)}, v{V_T2} offset:{k * 1024}")
        a(f"ds_read_b128 {vr(VS + 16, 4)}, v{V_T2} offset:4096")
        a(f"s_cmp_eq_u32 s{S_KH}, 0")
        a(f"s_cbranch_scc1 {n}_keep0")
        for r in range(16): a(f"v_mov_b32 v{VO + r}, v{VO + 16 + r}")
        a(f"v_mov_b32 v{VL}, v{VL + 4}")
        a.label(f"{n}_keep0")
        a(f"v_and_b32 v{V_T1}, 63, v0")
        a(f"v_bfe_u32 v{V_T0}, v{V_T1}, 4, 1")
        a(f"v_lshlrev_b32 v{V_T0}, 10, v{V_T0}")
        a(f"v_lshrrev_b32 v{V_T2}, 5, v{V_T1}")
        a(f"v_lshl_add_u32 v{V_T0}, v{V_T2}, 8, v{V_T0}")
        a(f"v_and_b32 v{V_T2}, 15, v{V_T1}")
        a(f"v_lshl_add_u32 v{V_T0}, v{V_T2}, 4, v{V_T0}")
        a("s_waitcnt lgkmcnt(0)")
        a(f"v_add_f32 v{VL}, v{VL}, v{VS + 16}")
        a(f"v_rcp_f32 v{V_T2}, v{VL}")
        for r in range(16): a(f"v_add_f32 v{VO + r}, v{VO + r}, v{VS + r}")
        a(f"v_mul_f32 v{V_T2}, v{V_T2}, v{V_G}")
        for r in range(16): a(f"v_mul_f32 v{VO + r}, v{V_T2}, v{VO + r}")
        for k in range(8): a(f"v_cvt_pk_bf16_f32 v{VS + k}, v{VO + 2 * k}, v{VO + 2 * k + 1}")
        a(f"s_lshl_b32 s6, s{S_QB}, 3")
        a(f"s_lshl_b32 s7, s{S_QG}, 1")
        a("s_add_u32 s6, s6, s7")
        a(f"s_add_u32 s6, s6, s{S_KH}")
        a("s_lshl_b32 s6, s6, 11")
        a(f"s_lshl_b32 s7, s{S_H}, 17")
        a("s_add_u32 s6, s6, s7")
        a(f"s_add_u32 s6, s6, {WS_O}")
        a(f"buffer_store_dwordx4 {vr(VS, 4)}, v{V_T0}, {ws}, s6 offen {self.store_mod}")
        a(f"buffer_store_dwordx4 {vr(VS + 4, 4)}, v{V_T0}, {ws}, s6 offen offset:512 {self.store_mod}")
        self.pstamp(a, 5)
        if self.bapply:
            self.b_apply(a)
        if self.prof:
            a("s_waitcnt vmcnt(0)")
            self.pstamp(a, 6)
            self.pflush(a, 1, 8, S_WV, ws)
        a.label(f"{n}_end")
        a("s_endpgm")
        a.label(f"{n}_last")
        return kernel_header(n) + a.text() + kernel_desc(n, 256, 256)
```

```python
from layout import WS_PROF
class Prof:
    NST = 16
    def pstamp(self, a, idx, vreg=None):
        d = getattr(self, "dbg", None)
        if d is not None:
            from dbgstamp import dbg_setup, dbg_stamp
            li, slots, v = d
            if idx == 0: dbg_setup(a, li)
            if idx in slots: dbg_stamp(a, slots[idx], f"{self.name}_dbg{idx}", v=v)
        if not self.prof: return
        v = vreg if vreg is not None else self.V_PROF
        a("s_memtime s[96:97]")
        a("s_memrealtime s[98:99]")
        a("s_waitcnt lgkmcnt(0)")
        for j, s in enumerate((96, 97, 98, 99)):
            a(f"v_writelane_b32 v{v}, s{s}, {idx * 4 + j}")
    def pflush(self, a, area, nwaves, s_wave, ws):
        if not self.prof: return
        v = self.V_PROF
        a(f"s_mul_i32 s3, s2, {nwaves}")
        a(f"s_add_u32 s3, s3, s{s_wave}")
        a("s_lshl_b32 s3, s3, 8")
        a(f"s_add_u32 s3, s3, {WS_PROF + (area << 20)}")
        a(f"v_mbcnt_lo_u32_b32 v{v + 1}, -1, 0")
        a(f"v_mbcnt_hi_u32_b32 v{v + 1}, -1, v{v + 1}")
        a(f"v_lshlrev_b32 v{v + 1}, 2, v{v + 1}")
        a(f"buffer_store_dword v{v}, v{v + 1}, {ws}, s3 offen")
        a("s_waitcnt vmcnt(0)")
```

```python
import sys
import hx
from k1d import K1d
from k2d import K2d as K2c, LDS_K2
from k3b import K3b, LDS_K3
from kpf import KPF
HDR = open("gated_mix__softmax_full_mha__linear_kernel_hedgehog__prompt.s.ref").read().split("; Override launch geometry")[0]
def build(k1=None, k2=None, k3=None, pf=None, cp=True):
    k1 = dict(k1 or {}); k2 = dict(k2 or dict(store_mod="sc1")); k3 = dict(k3 or dict(wd=4, od=3))
    if cp:
        k1["code"] = ("qkv_kernel", "outp_kernel_last", 40960)
        k2["code"] = ("attn_kernel", "attn_kernel_last", 16384)
        k3["code"] = ("outp_kernel", "outp_kernel_last", 16384)
    s = HDR
    s += "; Launches: QKV projections (+ gate, branch-B feature map of k), attention / linear attention, output projection.\n"
    if pf: s += "; @launch kernel=warm_kernel grid=(256,1,1) block=(256,1,1) lds=0\n"
    s += "; @launch kernel=qkv_kernel grid=(256,1,1) block=(256,1,1) lds=163840\n"
    s += f"; @launch kernel=attn_kernel grid=(256,1,1) block=(512,1,1) lds={LDS_K2}\n"
    s += f"; @launch kernel=outp_kernel grid=(256,1,1) block=(512,1,1) lds={LDS_K3}\n"
    s += '.amdgcn_target "amdgcn-amd-amdhsa--gfx950"\n.text\n'
    if pf: s += KPF("warm_kernel", pf).gen()
    s += K1d("qkv_kernel", **k1).gen()
    s += K2c("attn_kernel", **k2).gen()
    s += K3b("outp_kernel", **k3).gen()
    return s
if __name__ == "__main__":
    best = dict(k1=dict(store_mod="sc1"), k2=dict(store_mod="sc1", sched=2), k3=dict(wd=4, od=3, store_mod="nt"))
    open("../probe/best.s", "w").write(build(**best))
    d = {k: dict(v) for k, v in best.items()}
    d["k1"]["dbg"] = (0, {0: 0, 1: 1, 2: 2, 3: 3, 6: 4}, 63)
    d["k2"]["dbg"] = (1, {0: 5, 2: 6, 3: 7, 4: 8, 5: 9}, 249)
    d["k3"]["dbg"] = (2, {0: 10, 2: 11, 3: 12}, 143)
    open("../probe/dbg.s", "w").write(build(**d))
```

```python
class Asm:
    def __init__(self):
        self.lines = []
    def __call__(self, s=""):
        for l in s.split("\n"):
            l = l.strip()
            if l:
                self.emit(l)
    def emit(self, l):
        if l.endswith(":") or l.startswith("."):
            self.lines.append(l)
        else:
            self.lines.append("    " + l)
    def label(self, name):
        self.lines.append(name + ":")
    def comment(self, c):
        self.lines.append("    ; " + c)
    def extend(self, other):
        self.lines += other.lines if isinstance(other, Asm) else other
    def text(self):
        return "\n".join(self.lines) + "\n"

def vr(base, n=1):
    return f"v{base}" if n == 1 else f"v[{base}:{base + n - 1}]"
def ar(base, n=1):
    return f"a{base}" if n == 1 else f"a[{base}:{base + n - 1}]"
def sr(base, n=1):
    return f"s{base}" if n == 1 else f"s[{base}:{base + n - 1}]"

def interleave(mfmas, fillers, lead=0, per_gap=None):
    out = []
    by = {}
    for g, ins in fillers:
        by.setdefault(g, []).extend(ins)
    out += by.get(-1, [])
    for i, m in enumerate(mfmas):
        out.append(m)
        out += by.get(i, [])
    extra = [g for g in by if g >= len(mfmas)]
    assert not extra, extra
    return out

def srd(a, dst, base_lo, nbytes):
    a(f"s_mov_b32 s{dst}, s{base_lo}")
    a(f"s_and_b32 s{dst + 1}, s{base_lo + 1}, 0xffff")
    a(f"s_mov_b32 s{dst + 2}, {nbytes}")
    a(f"s_mov_b32 s{dst + 3}, 0x00020000")

def kernel_header(name):
    return f".globl {name}\n.p2align 8\n.type {name},@function\n{name}:\n"

def kernel_desc(name, vgpr, accum, sgpr=102):
    return (f".section .rodata,\"a\"\n.p2align 6\n.amdhsa_kernel {name}\n"
            f"  .amdhsa_next_free_vgpr {vgpr}\n  .amdhsa_next_free_sgpr {sgpr}\n  .amdhsa_accum_offset {accum}\n"
            f"  .amdhsa_group_segment_fixed_size 0\n  .amdhsa_kernarg_size 88\n  .amdhsa_user_sgpr_count 2\n"
            f"  .amdhsa_user_sgpr_kernarg_segment_ptr 1\n  .amdhsa_system_sgpr_workgroup_id_x 1\n.end_amdhsa_kernel\n.text\n")

def code_prefetch(a, tag, first, last, nwaves, vtmp, vdst, sreg, wave_from_v0=True, ndst=1):
    a(f"s_getpc_b64 s[{sreg}:{sreg + 1}]")
    a.label(f"{tag}_pc")
    a(f"s_sub_u32 s{sreg}, s{sreg}, {tag}_pc-{first}")
    a(f"s_subb_u32 s{sreg + 1}, s{sreg + 1}, 0")
    a(f"v_lshlrev_b32 v{vtmp}, 6, v0")
    def emit(nrounds):
        for k in range(nrounds):
            a(f"v_min_u32 v{vdst + 1}, {last}-{first}-4, v{vtmp}")
            a(f"global_load_dword v{vdst}, v{vdst + 1}, s[{sreg}:{sreg + 1}]")
            if k + 1 < nrounds: a(f"v_add_u32 v{vtmp}, {nwaves * 4096}, v{vtmp}")
    return emit

def ws_shift(a, lo, base):
    if base:
        a(f"s_add_u32 s{lo}, s{lo}, {base}")
        a(f"s_addc_u32 s{lo + 1}, s{lo + 1}, 0")
```

```python
from asmlib import *
from layout import *
from prof import Prof
from dbgstamp import dbg_setup, dbg_stamp

XST, NX = 16384, 3
WRING, WSL, NW = 49152, 24576, 4
L_WP = WRING + NW * WSL
LDS_K1 = 163840
ACC = 64
def acc(sg, ft, tk): return ACC + ((sg * 2 + ft) * 4 + tk) * 4
def fX(p, tk): return p * 64 + tk * 4
def fW(p, sg, ft): return p * 64 + 16 + (sg * 2 + ft) * 4
A_DUMMY, A_PF = 128, 152
V_XO, V_WO, V_XR, V_WR, V_PF, V_WR2 = 1, 5, 12, 14, 16, 26
S_X, S_W, S_WS, S_WP, S_GW = 8, 12, 16, 60, 64
S_MT, S_HP, S_WV, S_SOX, S_SOW, S_XDST, S_WDST, S_XRD, S_XDL, S_WRD, S_WDL, S_CNT, S_W8K, S_W3K = range(20, 34)
S_CWM, S_CXM, S_PF, S_PFO, S_PFS, S_TOK, S_HD, S_TH = 54, 55, 72, 76, 77, 78, 79, 88

class K1d(Prof):
    V_PROF = 60
    def __init__(self, name, prof=False, store_mod="sc1", pfwo=True, pfin=2, epi=True, bulk=True, code=None, dbg=None, ldw="", ldx="", pf_first=0, pfstart=None, order=0, diag=(), static=True, rd_slots=None, dma_slots=None, wsbase=0):
        self.name, self.prof, self.store_mod, self.pfwo, self.pfin, self.epi = name, prof, store_mod, pfwo, pfin, epi
        self.bulk = bulk and pfin > 0
        self.code = code
        self.wsbase = wsbase
        self.dbg = dbg
        self.ldw, self.ldx = ldw, ldx
        self.pf_first = pf_first
        self.order = order
        self.static = static
        self.rd_slots = rd_slots or list(range(1, 29))
        self.dma_slots = dma_slots or [30, 32, 34, 36, 38, 40, 42, 44]
        self.diag = set(diag)
        self.pfstart = pfin if pfstart is None else pfstart

    def mfmas(self, p):
        if self.order == 0: seq = [(tk, sg, ft) for tk in range(4) for sg in range(6) for ft in range(2)]
        elif self.order == 1: seq = [(tk, sg, ft) for tk in range(4) for sg in (0, 1, 3, 4, 2, 5) for ft in range(2)]
        elif self.order == 2: seq = [(tk, sg, ft) for sg in range(6) for ft in range(2) for tk in range(4)]
        elif self.order == 3: seq = [(tk, sg, ft) for sg in range(6) for ft in range(2) for tk in (range(4) if ft == 0 else range(3, -1, -1))]
        out = []
        for tk, sg, ft in seq:
            d = vr(acc(sg, ft, tk), 4)
            x, w = ar(fX(p, tk), 4), ar(fW(p, sg, ft), 4)
            a, b = (x, w) if sg % 3 == 2 else (w, x)
            out.append(f"v_mfma_f32_16x16x32_bf16 {d}, {a}, {b}, {d}")
        return out

    def rd(self, p, k2):
        xs = [f"ds_read_b128 {ar(fX(p, tk), 4)}, v{V_XR + k2} offset:{tk * 2048}" for tk in range(4)]
        w = [f"ds_read_b64_tr_b16 {ar(fW(p, sg, ft) + 2 * q, 2)}, v{V_WR + ft} offset:{sg * 4096 + q * 512}"
             for sg in range(6) for ft in range(2) for q in range(2)]
        return [xs[0]] + w + xs[1:]

    def dmaW(self):
        g = []
        for j in range(6):
            ins = []
            if j == 0: ins += [f"s_add_u32 m0, s{S_WDST}, s{S_W3K}", f"s_add_u32 s{S_WDST}, s{S_WDST}, {WSL}"]
            if j == 4: ins += ["s_add_u32 m0, m0, 4096", f"s_cmp_eq_u32 s{S_WDST}, {WRING + NW * WSL}", f"s_cselect_b32 s{S_WDST}, {WRING}, s{S_WDST}"]
            ins.append(f"buffer_load_dwordx4 v{V_WO + j}, s[{S_W}:{S_W+3}], s{S_SOW} offen offset:{(j & 3) * 1024} {self.ldw} lds")
            if j == 5: ins.append(f"s_add_u32 s{S_SOW}, s{S_SOW}, {32 * 6144}")
            g.append(ins)
        return g

    def dmaX(self, half):
        g = []
        for n in range(2):
            ins = []
            if n == 0:
                ins += [f"s_add_u32 m0, s{S_XDST}, s{S_W8K}"] + ([f"s_add_u32 m0, m0, 2048"] if half else []) + ["s_nop 0"]
            ins.append(f"buffer_load_dwordx4 v{V_XO + half * 2 + n}, s[{S_X}:{S_X+3}], s{S_SOX} offen offset:{n * 1024} {self.ldx} lds")
            if n == 1 and half == 1:
                ins += [f"s_add_u32 s{S_SOX}, s{S_SOX}, 128", f"s_add_u32 s{S_XDST}, s{S_XDST}, {XST}",
                        f"s_cmp_eq_u32 s{S_XDST}, {NX * XST}", f"s_cselect_b32 s{S_XDST}, 0, s{S_XDST}"]
            g.append(ins)
        return g

    def pf(self, bulk=False):
        if not self.pfin or (self.bulk and not bulk): return []
        return [[f"buffer_load_dwordx4 a[{A_PF}:{A_PF+3}], v{V_PF}, s[{S_PF}:{S_PF+3}], s{S_PFO} offen",
                 f"s_add_u32 s{S_PFO}, s{S_PFO}, s{S_PFS}"]]

    def wadv(self):
        return [f"s_add_u32 s{S_WRD}, s{S_WRD}, 1", f"s_cmp_eq_u32 s{S_WRD}, {NW}",
                f"s_cselect_b32 s{S_WDL}, s{S_CWM}, {WSL}", f"s_cselect_b32 s{S_WRD}, 0, s{S_WRD}",
                f"v_add_u32 v{V_WR}, s{S_WDL}, v{V_WR}", f"v_add_u32 v{V_WR + 1}, s{S_WDL}, v{V_WR + 1}"]
    def xdelta(self):
        return [f"s_add_u32 s{S_XRD}, s{S_XRD}, 1", f"s_cmp_eq_u32 s{S_XRD}, {NX}",
                f"s_cselect_b32 s{S_XDL}, s{S_CXM}, {XST}", f"s_cselect_b32 s{S_XRD}, 0, s{S_XRD}"]
    def xadv(self, k2):
        return [f"v_add_u32 v{V_XR + k2}, s{S_XDL}, v{V_XR + k2}"]

    def unit(self, a, p, reads, bar, dmas, pre=(), post=()):
        a("s_waitcnt lgkmcnt(0)")
        fill = []
        ins = list(pre)
        if bar is not None:
            ins += [f"s_waitcnt vmcnt({bar})", "s_barrier"]
        fill.append((0, ins))
        for i, r in enumerate(reads):
            fill.append((1 + i, [r]))
        for i, d in enumerate(dmas):
            fill.append((min(30 + 2 * i, 46), d))
        fill.append((47, list(post)))
        seq = interleave(self.mfmas(p), fill)
        D = self.diag
        if "nosalu" in D: seq = [l for l in seq if not l.startswith(("s_add", "s_cmp", "s_csel", "v_add", "s_nop"))]
        if "nodma" in D: seq = [l for l in seq if not l.startswith(("buffer_load", "s_waitcnt vm"))]
        if "nordw" in D: seq = [l for l in seq if not l.startswith("ds_read_b64_tr")]
        if "nordx" in D: seq = [l for l in seq if not l.startswith("ds_read_b128")]
        if "nobar" in D: seq = [l for l in seq if not l.startswith("s_barrier")]
        for l in seq:
            a(l)

    def iteration(self, a, g_odd, g_even, w_odd, w_even, last=False, pf=False):
        odd = (self.dmaW() + self.dmaX(1)) if g_odd else []
        even = self.dmaW() if g_even == "W" else (self.dmaW() + self.dmaX(0) + (self.pf() if pf else [])) if g_even else []
        self.unit(a, 0, self.rd(1, 1), w_odd, odd, pre=self.wadv() + self.xdelta() + self.xadv(0), post=self.xadv(1))
        if last:
            self.unit(a, 1, [], None, [])
        else:
            self.unit(a, 1, self.rd(0, 0), w_even, even, pre=self.wadv())

    def gen(self):
        a = Asm()
        n = self.name
        a("s_cmp_ge_u32 s2, 256")
        a(f"s_cbranch_scc1 {n}_end")
        self.pstamp(a, 0)
        if self.code:
            first, last, nbytes = self.code
            code_prefetch(a, n, first, last, 4, 62, 58, 90)(-(-nbytes // 16384))
        a("s_load_dwordx4 s[44:47], s[0:1], 0")
        a("s_load_dwordx2 s[48:49], s[0:1], 32")
        a("s_load_dwordx2 s[52:53], s[0:1], 80")
        a("s_load_dwordx2 s[56:57], s[0:1], 40")
        a("s_load_dwordx2 s[58:59], s[0:1], 56")
        a("s_and_b32 s3, s2, 7")
        a("s_lshr_b32 s4, s2, 3")
        a("s_and_b32 s5, s3, 1")
        a("s_lshl_b32 s5, s5, 3")
        a("s_and_b32 s6, s4, 7")
        a(f"s_add_u32 s{S_MT}, s5, s6")
        a("s_lshr_b32 s5, s3, 1")
        a("s_lshl_b32 s5, s5, 2")
        a("s_lshr_b32 s6, s4, 3")
        a(f"s_add_u32 s{S_HP}, s5, s6")
        a("v_lshrrev_b32 v17, 6, v0")
        a("v_and_b32 v18, 63, v0")
        a("v_lshrrev_b32 v19, 3, v18")
        a(f"v_readfirstlane_b32 s{S_WV}, v17")
        a("v_and_b32 v20, 7, v18")
        a("v_lshrrev_b32 v21, 4, v18")
        a(f"s_lshl_b32 s3, s{S_MT}, 7")
        a(f"s_lshl_b32 s4, s{S_WV}, 5")
        a("s_add_u32 s3, s3, s4")
        a("v_add_u32 v22, s3, v19")
        a("v_lshlrev_b32 v22, 11, v22")
        a("v_xor_b32 v23, v20, v21")
        a("v_xor_b32 v24, 4, v23")
        a("v_lshl_add_u32 v23, v23, 4, v22")
        a("v_lshl_add_u32 v24, v24, 4, v22")
        for nn in range(4):
            a(f"v_add_u32 v{V_XO + nn}, {nn * 16384 - (nn & 1) * 1024}, v{23 if nn % 2 == 0 else 24}")
        a("v_and_b32 v23, 1, v21")
        a("v_lshlrev_b32 v23, 1, v23")
        a("v_xor_b32 v23, v23, v20")
        a("s_mov_b32 s3, 6144")
        a("v_mul_lo_u32 v24, v19, s3")
        a(f"s_lshl_b32 s4, s{S_HP}, 7")
        a("v_add_u32 v24, s4, v24")
        a("v_lshl_add_u32 v26, v23, 4, v24")
        a("v_xor_b32 v25, 4, v23")
        a("v_lshl_add_u32 v25, v25, 4, v24")
        a(f"s_and_b32 s5, s{S_WV}, 1")
        a("s_cmp_eq_u32 s5, 0")
        for j in range(6):
            off = [((6 * par + j) >> 2) * 2048 + ((6 * par + j) & 3) * 8 * 6144 - (j & 3) * 1024 for par in range(2)]
            a(f"s_mov_b32 s3, {off[1]}")
            a(f"s_cselect_b32 s3, {off[0]}, s3")
            a(f"v_add_u32 v{V_WO + j}, s3, v{26 if j % 2 == 0 else 25}")
        a(f"s_lshl_b32 s{S_W8K}, s{S_WV}, 12")
        a(f"s_mul_i32 s{S_W3K}, s{S_WV}, 6144")
        a(f"s_and_b32 s{S_TH}, s{S_WV}, 1")
        a(f"s_lshr_b32 s3, s{S_WV}, 1")
        a(f"s_lshl_b32 s{S_HD}, s{S_HP}, 1")
        a(f"s_add_u32 s{S_HD}, s{S_HD}, s3")
        a(f"s_mov_b32 s{S_CWM}, {(-(NW - 1) * WSL) & 0xffffffff}")
        a(f"s_mov_b32 s{S_CXM}, {(-(NX - 1) * XST) & 0xffffffff}")
        a(f"s_mov_b32 s{S_SOX}, 0")
        a(f"s_mov_b32 s{S_SOW}, 0")
        a(f"s_mov_b32 s{S_XDST}, 0")
        a(f"s_mov_b32 s{S_WDST}, {WRING}")
        a(f"s_mov_b32 s{S_XRD}, 0")
        a(f"s_mov_b32 s{S_WRD}, 0")
        a("s_waitcnt lgkmcnt(0)")
        srd(a, S_X, 44, 2048 * 2048)
        a(f"s_cmp_lt_u32 s{S_WV}, 2")
        a("s_cselect_b32 s6, s46, s48")
        a("s_cselect_b32 s7, s47, s49")
        srd(a, S_W, 6, 1024 * 6144)
        ws_shift(a, 52, self.wsbase)
        srd(a, S_WS, 52, 0x10000000 - self.wsbase)
        srd(a, S_WP, 56, 65536)
        srd(a, S_GW, 58, 2048)
        self.side_loads(a)
        for k in range(self.pf_first):
            for l in self.pf(bulk=True)[0]: a(l)
        pro = self.dmaX(0) + self.dmaW() + self.dmaX(1) + self.dmaW() + self.dmaX(0) + self.dmaW() + self.dmaX(1)
        for grp in pro:
            for l in grp:
                if l.startswith("buffer_load"): a("s_nop 0")
                a(l)
        self.pstamp(a, 1)
        npf = 0
        if self.bulk:
            npf = 16 - self.pfstart - self.pf_first
            for k in range(npf):
                for l in self.pf(bulk=True)[0]: a(l)
        self.addr_reads(a)
        for r in range(ACC, 256):
            a(f"v_mov_b32 v{r}, 0")
        a(f"s_waitcnt vmcnt({26 + npf + self.pf_first})")
        self.gate_compute(a)
        npf += 1
        a(f"s_waitcnt vmcnt({16 + npf})")
        a("s_barrier")
        self.pstamp(a, 2)
        if self.static:
            for l in self.s_rd(0, 0): a(l)
            for grp in self.s_group(0):
                for l in grp:
                    if l.startswith("buffer_load"): a("s_nop 0")
                    a(l)
            self.static_loop(a, npf)
        else:
            for l in self.rd(0, 0): a(l)
            for grp in self.dmaW() + self.dmaX(0) + self.pf():
                for l in grp:
                    if l.startswith("buffer_load"): a("s_nop 0")
                    a(l)
            e = 1 if (self.pfin and not self.bulk) else 0
            first = 16 + npf
            self.iteration(a, True, True, first, first, pf=True)
            a(f"s_mov_b32 s{S_CNT}, 12")
            a(".p2align 6")
            a.label(f"{n}_loop")
            self.iteration(a, True, True, 16 + e, 16 + e, pf=True)
            a(f"s_sub_u32 s{S_CNT}, s{S_CNT}, 1")
            a(f"s_cmp_lg_u32 s{S_CNT}, 0")
            a(f"s_cbranch_scc1 {n}_loop")
            self.iteration(a, True, "W", 16, 16)
            self.iteration(a, False, False, 14, 6)
            self.iteration(a, False, False, 0, 0, last=True)
        self.pstamp(a, 3)
        if self.epi:
            self.epilogue(a)
        if self.prof:
            self.pstamp(a, 6)
            a("s_waitcnt vmcnt(0)")
            self.pstamp(a, 7)
            self.pflush(a, 0, 4, S_WV, f"s[{S_WS}:{S_WS+3}]")
        a.label(f"{n}_end")
        a("s_endpgm")
        a.label(f"{n}_last")
        nag = A_PF + 4
        return kernel_header(n) + a.text() + kernel_desc(n, 256 + nag, 256)

    def s_rd(self, p, u):
        xo = ((u >> 1) % NX) * XST
        xs = [f"ds_read_b128 {ar(fX(p, tk), 4)}, v{V_XR + (u & 1)} offset:{xo + tk * 2048}" for tk in range(4)]
        slot = u % NW
        base = V_WR if slot < 2 else V_WR2
        w = [f"ds_read_b64_tr_b16 {ar(fW(p, sg, ft) + 2 * q, 2)}, v{base + ft} offset:{(slot & 1) * WSL + sg * 4096 + q * 512}"
             for sg in range(6) for ft in range(2) for q in range(2)]
        return [xs[0]] + w + xs[1:]
    def s_dmaW(self, uw):
        g = []
        for j in range(6):
            ins = []
            if j == 0: ins += [f"s_add_u32 m0, s{S_W3K}, {WRING + (uw % NW) * WSL}", f"s_mov_b32 s{S_SOW}, {uw * 32 * 6144}"]
            if j == 4: ins += [f"s_add_u32 m0, s{S_W3K}, {WRING + (uw % NW) * WSL + 4096}", "s_nop 0"]
            ins.append(f"buffer_load_dwordx4 v{V_WO + j}, s[{S_W}:{S_W+3}], s{S_SOW} offen offset:{(j & 3) * 1024} {self.ldw} lds")
            g.append(ins)
        return g
    def s_dmaX(self, sx, half):
        g = []
        for n in range(2):
            ins = []
            if n == 0: ins += [f"s_add_u32 m0, s{S_W8K}, {(sx % NX) * XST + half * 2048}", f"s_mov_b32 s{S_SOX}, {sx * 128}"]
            ins.append(f"buffer_load_dwordx4 v{V_XO + half * 2 + n}, s[{S_X}:{S_X+3}], s{S_SOX} offen offset:{n * 1024} {self.ldx} lds")
            g.append(ins)
        return g
    def s_group(self, v):
        g = []
        if v + 3 < 32: g += self.s_dmaW(v + 3)
        if v // 2 + 2 < 16: g += self.s_dmaX(v // 2 + 2, v & 1)
        return g
    def static_loop(self, a, extra_first):
        q = []
        size = lambda v: len(self.s_group(v))
        for u in range(32):
            a("s_waitcnt lgkmcnt(0)")
            fill = []
            if u < 31:
                v = u + 1
                allowed = size(v - 2) + size(v - 1) if v >= 2 else None
                if v == 1: allowed = 8 + size(0) + extra_first
                elif v == 2: allowed = size(0) + size(1) + extra_first
                fill.append((0, [f"s_waitcnt vmcnt({allowed})", "s_barrier"]))
                slots = self.rd_slots
                for i, r in enumerate(self.s_rd((u + 1) & 1, u + 1)):
                    fill.append((slots[i], [r]))
                for i, d in enumerate(self.s_group(v)):
                    fill.append((self.dma_slots[i], d))
            seq = interleave(self.mfmas(u & 1), fill)
            for l in seq: a(l)

    def addr_reads(self, a):
        a("v_and_b32 v19, 15, v18")
        a("v_lshlrev_b32 v19, 7, v19")
        a(f"s_lshl_b32 s3, s{S_TH}, 13")
        a("v_add_u32 v19, s3, v19")
        a("v_lshrrev_b32 v20, 4, v18")
        a("v_bfe_u32 v21, v18, 1, 3")
        for k2 in range(2):
            a(f"v_add_u32 v22, {4 * k2}, v20")
            a("v_xor_b32 v22, v22, v21")
            a(f"v_lshl_add_u32 v{V_XR + k2}, v22, 4, v19")
        a("v_bfe_u32 v21, v18, 2, 2")
        a("v_lshl_add_u32 v22, v20, 3, v21")
        a("v_lshlrev_b32 v22, 7, v22")
        a("v_and_b32 v24, 1, v18")
        a("v_lshl_add_u32 v22, v24, 3, v22")
        a("v_bfe_u32 v24, v18, 1, 1")
        a(f"s_lshr_b32 s3, s{S_WV}, 1")
        a("s_lshl_b32 s3, s3, 2")
        a("v_add_u32 v24, s3, v24")
        a("v_and_b32 v23, 2, v21")
        a("v_bfe_u32 v25, v18, 4, 1")
        a("v_lshl_or_b32 v23, v25, 2, v23")
        for ft in range(2):
            a(f"v_add_u32 v25, {2 * ft}, v24")
            a("v_xor_b32 v25, v25, v23")
            a("v_lshl_add_u32 v25, v25, 4, v22")
            a(f"v_add_u32 v{V_WR + ft}, {WRING}, v25")
            a(f"v_add_u32 v{V_WR2 + ft}, {WRING + 2 * WSL}, v25")

    def side_loads(self, a):
        n_side = 0
        a("v_lshlrev_b32 v19, 4, v18")
        a(f"s_lshl_b32 s3, s{S_HP}, 12")
        a(f"s_lshl_b32 s5, s{S_WV}, 10")
        a("s_add_u32 s3, s3, s5")
        a(f"s_add_u32 m0, s5, {L_WP}")
        a("s_nop 0")
        a(f"buffer_load_dwordx4 v19, s[{S_WP}:{S_WP+3}], s3 offen lds"); n_side += 1
        a("v_lshlrev_b32 v19, 5, v18")
        d = A_DUMMY
        a(f"buffer_load_dwordx4 a[{d}:{d+3}], v19, s[{S_GW}:{S_GW+3}], 0 offen")
        a(f"buffer_load_dwordx4 a[{d+4}:{d+7}], v19, s[{S_GW}:{S_GW+3}], 0 offen offset:16"); n_side += 2
        a(f"s_lshl_b32 s3, s{S_MT}, 7")
        a(f"s_lshl_b32 s4, s{S_HP}, 3")
        a("s_add_u32 s3, s3, s4")
        a(f"s_lshl_b32 s4, s{S_WV}, 1")
        a(f"s_add_u32 s{S_TOK}, s3, s4")
        a(f"s_lshl_b32 s3, s{S_TOK}, 11")
        for i in range(2):
            a(f"buffer_load_dwordx4 a[{d+8+8*i}:{d+11+8*i}], v19, s[{S_X}:{S_X+3}], s3 offen offset:{i * 2048}")
            a(f"buffer_load_dwordx4 a[{d+12+8*i}:{d+15+8*i}], v19, s[{S_X}:{S_X+3}], s3 offen offset:{i * 2048 + 16}"); n_side += 2
        self.n_side = n_side
        if self.pfin:
            D = self.pfstart
            a(f"s_mul_i32 s3, s2, 3")
            a(f"s_add_u32 s3, s3, s{S_WV}")
            a("s_cmp_ge_u32 s3, 384")
            a("s_cselect_b32 s4, 384, 0")
            a("s_cselect_b32 s6, s48, s46")
            a("s_cselect_b32 s7, s49, s47")
            a("s_sub_u32 s3, s3, s4")
            a("s_lshl_b32 s3, s3, 10")
            a("s_lshl_b32 s4, s2, 14")
            a(f"s_cmp_eq_u32 s{S_WV}, 3")
            a("s_cselect_b32 s6, s44, s6")
            a("s_cselect_b32 s7, s45, s7")
            a("s_cselect_b32 s3, s4, s3")
            a(f"s_mov_b32 s5, {64 * 6144}")
            a(f"s_cselect_b32 s{S_PFS}, 128, s5")
            a(f"s_mov_b32 s5, {1024 * 6144}")
            a(f"s_cselect_b32 s{S_PF+2}, {2048 * 2048}, s5")
            a(f"s_mul_i32 s4, s{S_PFS}, {D}")
            a(f"s_add_u32 s{S_PFO}, s3, s4")
            a(f"s_mov_b32 s{S_PF}, s6")
            a(f"s_and_b32 s{S_PF+1}, s7, 0xffff")
            a(f"s_mov_b32 s{S_PF+3}, 0x00020000")
            a("v_lshlrev_b32 v19, 4, v18")
            a("v_lshrrev_b32 v20, 3, v18")
            a("v_lshlrev_b32 v20, 11, v20")
            a("v_and_b32 v21, 7, v18")
            a("v_lshl_add_u32 v20, v21, 4, v20")
            a(f"s_cmp_eq_u32 s{S_WV}, 3")
            a("s_cselect_b64 vcc, -1, 0")
            a(f"v_cndmask_b32 v{V_PF}, v19, v20, vcc")

    def gate_compute(self, a):
        d = A_DUMMY
        for r in range(24): a(f"v_accvgpr_read_b32 v{32 + r}, a{d + r}")
        for i in range(2): a(f"v_mov_b32 v{24 + i}, 0")
        for k in range(8):
            for i in range(2):
                a(f"v_dot2_f32_bf16 v{24 + i}, v{40 + 8 * i + k}, v{32 + k}, v{24 + i}")
        for ctl in ("quad_perm:[1,0,3,2]", "quad_perm:[2,3,0,1]", "row_half_mirror", "row_mirror"):
            a("s_nop 1")
            for i in range(2):
                a(f"v_add_f32_dpp v{24 + i}, v{24 + i}, v{24 + i} {ctl} row_mask:0xf bank_mask:0xf")
        for sw in ("v_permlane16_swap_b32", "v_permlane32_swap_b32"):
            for i in range(2): a(f"v_mov_b32 v{28 + i}, v{24 + i}")
            a("s_nop 1")
            for i in range(2): a(f"{sw} v{24 + i}, v{28 + i}")
            a("s_nop 1")
            for i in range(2): a(f"v_add_f32 v{24 + i}, v{24 + i}, v{28 + i}")
        a("v_and_b32 v28, 1, v18")
        a("v_cmp_eq_u32 vcc, 1, v28")
        a("s_nop 1")
        a("v_cndmask_b32 v24, v24, v25, vcc")
        a(f"v_mul_f32 v24, {f32bits(-LOG2E)}, v24")
        a("v_exp_f32 v24, v24")
        a("s_nop 0")
        a("v_add_f32 v24, 1.0, v24")
        a("v_rcp_f32 v24, v24")
        a("v_lshlrev_b32 v28, 2, v18")
        a(f"s_lshl_b32 s3, s{S_TOK}, 2")
        a(f"s_add_u32 s3, s3, {WS_G}")
        a("s_mov_b64 exec, 3")
        a(f"buffer_store_dword v24, v28, s[{S_WS}:{S_WS+3}], s3 offen {self.store_mod}")
        a("s_mov_b64 exec, -1")

    def prefetch_wo(self, a):
        a("s_load_dwordx2 s[80:81], s[0:1], 16")
        a("s_load_dwordx2 s[82:83], s[0:1], 48")
        a("s_lshl_b32 s3, s2, 13")
        a(f"s_lshl_b32 s4, s{S_WV}, 11")
        a("s_add_u32 s3, s3, s4")
        a("s_waitcnt lgkmcnt(0)")
        for k, p in enumerate((80, 82)):
            srd(a, 84, p, 2097152)
            for i in range(2):
                a(f"buffer_load_dwordx4 a[{96 + 8 * k + 4 * i}:{96 + 8 * k + 4 * i + 3}], v15, s[84:87], s3 offen offset:{i * 1024}")

    def epilogue(self, a):
        ws = f"s[{S_WS}:{S_WS+3}]"
        sm = self.store_mod
        RS = 136
        a("v_and_b32 v18, 63, v0")
        a("v_lshrrev_b32 v19, 4, v18")
        a("v_and_b32 v20, 15, v18")
        a("v_bfe_u32 v21, v18, 2, 2")
        a("v_lshl_add_u32 v21, v19, 2, v21")
        a(f"v_mul_u32_u24 v23, {RS}, v21")
        a("v_lshlrev_b32 v21, 6, v21")
        a("v_and_b32 v22, 3, v18")
        a("v_lshl_add_u32 v21, v22, 3, v21")
        a(f"s_lshr_b32 s3, s{S_WV}, 1")
        a("s_lshl_b32 s3, s3, 11")
        a(f"s_add_u32 s3, s3, {L_WP}")
        a("v_add_u32 v21, s3, v21")
        for ft in range(2):
            for q in range(2):
                a(f"ds_read_b64_tr_b16 {ar(4 * ft + 2 * q, 2)}, v21 offset:{q * 1024 + ft * 32}")
        a(f"s_mul_i32 s3, s{S_WV}, {64 * RS}")
        a("v_lshl_add_u32 v23, v22, 3, v23")
        a("v_add_u32 v23, s3, v23")
        a(f"v_mul_u32_u24 v22, {RS}, v20")
        a("v_lshl_add_u32 v22, v19, 3, v22")
        a("v_add_u32 v22, s3, v22")
        a("v_mov_b32 v24, 0x3f803f80")
        for r in range(4): a(f"v_accvgpr_write_b32 a{8 + r}, v24")
        def pack(b0, b1):
            return [f"v_cvt_pk_bf16_f32 v{b0}, v{b0}, v{b0 + 1}", f"v_cvt_pk_bf16_f32 v{b0 + 1}, v{b0 + 2}, v{b0 + 3}",
                    f"v_cvt_pk_bf16_f32 v{b0 + 2}, v{b1}, v{b1 + 1}", f"v_cvt_pk_bf16_f32 v{b0 + 3}, v{b1 + 2}, v{b1 + 3}"]
        KB = lambda t: acc(4, 0, t)
        VB = lambda dt, T: acc(5, dt, 2 * T)
        for tk in range(4):
            for l in pack(acc(4, 0, tk), acc(4, 1, tk)): a(l)
        for tk in range(4):
            for l in pack(acc(3, 0, tk), acc(3, 1, tk)): a(l)
        a(f"s_lshl_b32 s3, s{S_HD}, 17")
        a(f"s_lshl_b32 s4, s{S_MT}, 2")
        a(f"s_lshl_b32 s5, s{S_TH}, 1")
        a("s_add_u32 s4, s4, s5")
        a("s_lshl_b32 s4, s4, 11")
        a("s_add_u32 s38, s3, s4")
        a(f"s_add_u32 s39, s38, {4 << 20}")
        a(f"s_add_u32 s42, s38, {8 << 20}")
        a(f"s_lshl_b32 s4, s{S_MT}, 3")
        a(f"s_lshl_b32 s5, s{S_TH}, 2")
        a("s_add_u32 s4, s4, s5")
        a("s_lshl_b32 s4, s4, 10")
        a("s_add_u32 s43, s3, s4")
        a(f"s_add_u32 s43, s43, {WS_QB}")
        a("v_lshrrev_b32 v21, 1, v19")
        a("v_lshlrev_b32 v21, 10, v21")
        a("v_and_b32 v24, 1, v19")
        a("v_lshl_add_u32 v21, v24, 9, v21")
        a("v_lshl_add_u32 v17, v20, 4, v21")
        a("v_and_b32 v24, 7, v20")
        a("v_lshrrev_b32 v25, 3, v20")
        a("v_lshl_add_u32 v24, v25, 4, v24")
        a("v_lshl_add_u32 v16, v24, 4, v21")
        a("v_lshlrev_b32 v15, 4, v18")
        l2e = f32bits(LOG2E)
        c = f32bits(LOG2E / 32 ** 0.5)
        a(f"s_mov_b32 s36, {l2e}")
        a(f"s_mov_b32 s37, {l2e}")
        a(f"s_mov_b32 s40, {f32bits(-LOG2E)}")
        a(f"s_mov_b32 s41, {f32bits(-LOG2E)}")
        a(f"s_mov_b32 s6, {c}")
        a(f"s_mov_b32 s7, {c}")
        a("s_waitcnt lgkmcnt(0)")
        a("s_barrier")
        self.pstamp(a, 4)
        P = lambda t, i: (208 if t < 2 else 176) + 8 * (t & 1) + i
        EP = lambda t, i: (80 if t < 2 else 112) + 8 * (t & 1) + i
        BP = lambda t: 24 + 4 * t
        BM = lambda t: 40 + 4 * t
        SS = lambda t, sg: (132 if sg == 0 else 228) + 8 * t
        mx, mn, tm = (lambda t: 2 + 2 * t), (lambda t: (10, 12, 14, 62)[t]), (lambda t: 56 + t)
        T4 = range(4)
        main = []
        for t in T4:
            for ft in range(2):
                main.append(f"v_mfma_f32_16x16x32_bf16 {vr(P(t, 4 * ft), 4)}, {ar(4 * ft, 4)}, {vr(KB(t), 4)}, 0")
        side = []
        for tk in range(4):
            side.append((pack(acc(1, 0, tk), acc(1, 1, tk)),
                         f"buffer_store_dwordx4 {vr(acc(1, 0, tk), 4)}, v16, {ws}, s39 offen offset:{(tk >> 1) * 2048 + (tk & 1) * 128} {sm}"))
        for T in range(2):
            for ft in range(2):
                side.append((pack(acc(2, ft, 2 * T), acc(2, ft, 2 * T + 1)),
                             f"buffer_store_dwordx4 {vr(acc(2, ft, 2 * T), 4)}, v17, {ws}, s42 offen offset:{T * 2048 + ft * 256} {sm}"))
        for tk in range(4):
            mul = [f"v_pk_mul_f32 {vr(acc(0, ft, tk) + h, 2)}, {vr(acc(0, ft, tk) + h, 2)}, s[6:7]" for ft in range(2) for h in (0, 2)]
            side.append((mul + pack(acc(0, 0, tk), acc(0, 1, tk)),
                         f"buffer_store_dwordx4 {vr(acc(0, 0, tk), 4)}, v17, {ws}, s38 offen offset:{(tk >> 1) * 2048 + (tk & 1) * 256} {sm}"))
        for tk in range(4):
            side.append(([],
                         f"buffer_store_dwordx4 {vr(acc(3, 0, tk), 4)}, v15, {ws}, s43 offen offset:{tk * 1024} {sm}"))
        for l in main: a(l)
        for ins, st in side:
            for l in ins: a(l)
        for dt in range(2):
            for T in range(2):
                for l in pack(acc(5, dt, 2 * T), acc(5, dt, 2 * T + 1)): a(l)
        stores = [st for ins, st in side]
        body = []
        B = body.append
        for t in T4:
            B(f"v_max3_f32 v{mx(t)}, v{P(t,0)}, v{P(t,1)}, v{P(t,2)}")
            B(f"v_min3_f32 v{mn(t)}, v{P(t,0)}, v{P(t,1)}, v{P(t,2)}")
        for i in (3, 5):
            for t in T4:
                B(f"v_max3_f32 v{mx(t)}, v{mx(t)}, v{P(t,i)}, v{P(t,i+1)}")
                B(f"v_min3_f32 v{mn(t)}, v{mn(t)}, v{P(t,i)}, v{P(t,i+1)}")
        for t in T4:
            B(f"v_max_f32 v{mx(t)}, v{mx(t)}, v{P(t,7)}")
            B(f"v_min_f32 v{mn(t)}, v{mn(t)}, v{P(t,7)}")
        for t in T4: B(f"v_sub_f32 v{mn(t)}, 0, v{mn(t)}")
        B("s_nop 1")
        for t in T4: B(f"v_permlane32_swap_b32 v{mx(t)}, v{mn(t)}")
        B("s_nop 1")
        for t in T4: B(f"v_max_f32 v{mx(t)}, v{mx(t)}, v{mn(t)}")
        for t in T4: B(f"v_mov_b32 v{tm(t)}, v{mx(t)}")
        B("s_nop 1")
        for t in T4: B(f"v_permlane16_swap_b32 v{mx(t)}, v{tm(t)}")
        B("s_nop 1")
        for t in T4: B(f"v_max_f32 v{mx(t)}, v{mx(t)}, v{tm(t)}")
        for t in T4: B(f"v_mov_b32 v{mn(t)}, v{mx(t)}")
        B("s_nop 1")
        for t in T4: B(f"v_permlane32_swap_b32 v{mx(t)}, v{mn(t)}")
        B("s_nop 1")
        for t in T4:
            B(f"v_mul_f32 v{mx(t)}, s40, v{mx(t)}")
            B(f"v_mul_f32 v{mn(t)}, s40, v{mn(t)}")
        for t in T4:
            for i in range(0, 8, 2):
                B(f"v_pk_fma_f32 {vr(EP(t,i), 2)}, {vr(P(t,i), 2)}, s[36:37], {vr(mx(t), 2)} op_sel_hi:[1,1,0]")
                B(f"v_pk_fma_f32 {vr(P(t,i), 2)}, {vr(P(t,i), 2)}, s[40:41], {vr(mn(t), 2)} op_sel_hi:[1,1,0]")
        for t in T4:
            for i in range(8):
                B(f"v_exp_f32 v{EP(t,i)}, v{EP(t,i)}")
                B(f"v_exp_f32 v{P(t,i)}, v{P(t,i)}")
        B("s_nop 0")
        for t in T4:
            for k in range(4):
                B(f"v_cvt_pk_bf16_f32 v{BP(t) + k}, v{EP(t,2*k)}, v{EP(t,2*k+1)}")
                B(f"v_cvt_pk_bf16_f32 v{BM(t) + k}, v{P(t,2*k)}, v{P(t,2*k+1)}")
        B("s_nop 1")
        for t in T4:
            B(f"v_mfma_f32_16x16x32_bf16 {vr(SS(t, 0), 4)}, {ar(8, 4)}, {vr(BP(t), 4)}, 0")
            B(f"v_mfma_f32_16x16x32_bf16 {vr(SS(t, 1), 4)}, {ar(8, 4)}, {vr(BM(t), 4)}, 0")
        B("s_nop 7")
        for t in T4:
            B(f"v_rcp_f32 v{SS(t, 0)}, v{SS(t, 0)}")
            B(f"v_rcp_f32 v{SS(t, 1)}, v{SS(t, 1)}")
        B("s_nop 0")
        for t in T4:
            for i in range(0, 8, 2):
                B(f"v_pk_mul_f32 {vr(EP(t,i), 2)}, {vr(EP(t,i), 2)}, {vr(SS(t, 0), 2)} op_sel_hi:[1,0]")
                B(f"v_pk_mul_f32 {vr(P(t,i), 2)}, {vr(P(t,i), 2)}, {vr(SS(t, 1), 2)} op_sel_hi:[1,0]")
        for t in T4:
            for k in range(4):
                B(f"v_cvt_pk_bf16_f32 v{BP(t) + k}, v{EP(t,2*k)}, v{EP(t,2*k+1)}")
                B(f"v_cvt_pk_bf16_f32 v{BM(t) + k}, v{P(t,2*k)}, v{P(t,2*k+1)}")
            row = t * 16 * RS
            for ft in range(2):
                B(f"ds_write_b64 v22, {vr(BP(t) + 2 * ft, 2)} offset:{row + ft * 32}")
                B(f"ds_write_b64 v22, {vr(BM(t) + 2 * ft, 2)} offset:{row + 64 + ft * 32}")
        step = len(body) // (len(stores) + 1)
        out, k = [], 0
        for i, l in enumerate(body):
            out.append(l)
            nxt = body[i + 1] if i + 1 < len(body) else ""
            if k < len(stores) and i >= (k + 1) * step - step // 2 and not l.startswith("s_nop") and not nxt.startswith(("s_nop", "v_permlane", "v_mfma")):
                out.append(stores[k]); k += 1
        out += stores[k:]
        for l in out: a(l)
        self.pstamp(a, 5)
        if self.pfwo: self.prefetch_wo(a)
        a("s_waitcnt lgkmcnt(0)")
        AF, KV = 16, 48
        for sf in range(4):
            for T in range(2):
                for q in range(2):
                    a(f"ds_read_b64_tr_b16 {ar(AF + (sf * 2 + T) * 4 + 2 * q, 2)}, v23 offset:{(32 * T + 16 * q) * RS + sf * 32}")
        XB = 40960
        a(f"s_mul_i32 s3, s{S_WV}, 12288")
        a(f"s_add_u32 s3, s3, {XB}")
        a("v_add_u32 v20, s3, v15")
        a(f"s_and_b32 s4, s{S_WV}, 2")
        a(f"s_mul_i32 s4, s4, 12288")
        a(f"s_mul_i32 s5, s{S_TH}, 6144")
        a("s_add_u32 s4, s4, s5")
        a(f"s_add_u32 s4, s4, {XB}")
        a("v_add_u32 v21, s4, v15")
        for sf in range(4):
            a(f"s_waitcnt lgkmcnt({(3 - sf) * 4})")
            for T in range(2):
                A = ar(AF + (sf * 2 + T) * 4, 4)
                for dt in range(3):
                    d = ar(KV + (sf * 3 + dt) * 4, 4)
                    Bop = vr(VB(dt, T), 4) if dt < 2 else ar(8, 4)
                    a(f"v_mfma_f32_16x16x32_bf16 {d}, {A}, {Bop}, {d if T else 0}")
        a(f"s_lshl_b32 s3, s{S_HD}, 4")
        a(f"s_add_u32 s3, s3, s{S_MT}")
        a("s_lshl_b32 s3, s3, 14")
        a(f"s_add_u32 s3, s3, {WS_KVP}")
        a(f"s_lshl_b32 s4, s{S_TH}, 12")
        a("s_add_u32 s4, s4, s3")
        a(f"s_lshl_b32 s6, s{S_TH}, 7")
        a("s_add_u32 s6, s6, s3")
        a("s_add_u32 s6, s6, 8192")
        a("v_lshlrev_b32 v19, 4, v19")
        for k in range(12): a(f"ds_write_b128 v20, {ar(KV + 4 * k, 4)} offset:{k * 1024}")
        a("s_waitcnt lgkmcnt(0)")
        a("s_barrier")
        for w in range(2):
            for k in range(6):
                a(f"ds_read_b128 {vr(24 + (w * 6 + k) * 4, 4) if w == 0 else vr(80 + k * 4 if k < 4 else 112 + (k - 4) * 4, 4)}, v21 offset:{w * 12288 + k * 1024}")
        a("s_waitcnt lgkmcnt(0)")
        oth = lambda i: (80 + i if i < 16 else 112 + i - 16)
        for i in range(0, 24, 2):
            a(f"v_pk_add_f32 {vr(24 + i, 2)}, {vr(24 + i, 2)}, {vr(oth(i), 2)}")
        for ft in range(2):
            for dt in range(2):
                a(f"buffer_store_dwordx4 {vr(24 + (ft * 3 + dt) * 4, 4)}, v15, {ws}, s4 offen offset:{(ft * 2 + dt) * 1024} {sm}")
            a(f"buffer_store_dwordx4 {vr(24 + (ft * 3 + 2) * 4, 4)}, v19, {ws}, s6 offen offset:{ft * 64} {sm}")
```

```python
from asmlib import *
from layout import *
from prof import Prof
from dbgstamp import dbg_setup, dbg_stamp

MARGIN = 90.0
TPS, TPW = 8, 4
STG = TPS * 4096
LDS_MISC = 2 * STG
L_KV, L_Z, L_WP, L_VOTE, L_SPARE = 0, 4096, 6144, 8192, 8448
L_XO = LDS_MISC + 8448 + 1024
LDS_K2 = L_XO + 8 * 5120

V_LANE16, V_T0, V_T1, V_T2, V_T3, V_G, V_RD = 1, 2, 3, 4, 5, 6, 7
VQ, VC, VS, VP, VKF, VVF, VO, VL, VONE = 8, 24, 56, 88, 96, 112, 128, 160, 168
S_WS, S_K, S_V = 8, 12, 16
S_H, S_QB, S_WV, S_SOFF, S_CNT, S_MODE, S_WOFF, S_QG, S_KH = 20, 21, 22, 23, 24, 25, 26, 27, 32
S_KVP, S_PKV, S_PZ = 44, 48, 49
VKA, VPT, VQB, VGB, V_ZOFF = 176, 184, 200, 244, 246

class K2d(Prof):
    V_PROF = 250
    def __init__(self, name, prof=False, store_mod="nt", force_fallback=False, margin=MARGIN, sched=1, bapply=True, prio=0, diag=(), code=None, dbg=None, wsbase=0):
        self.name, self.prof, self.store_mod = name, prof, store_mod
        self.force_fallback, self.margin, self.sched, self.bapply, self.prio = force_fallback, margin, sched, bapply, prio
        self.diag = set(diag)
        self.code = code
        self.wsbase = wsbase
        self.dbg = dbg

    def dma_piece(self, slot, i):
        kv, n = i >> 1, i & 1
        srd_ = S_K if kv == 0 else S_V
        ins = []
        if n == 0:
            ins += [f"s_add_u32 m0, s{S_WOFF}, {slot * STG + kv * (STG // 2)}", "s_nop 0"]
        ins.append(f"buffer_load_dwordx4 v{V_LANE16}, s[{srd_}:{srd_+3}], s{S_SOFF} offen offset:{n * 1024} lds")
        if i == 3:
            ins.append(f"s_add_u32 s{S_SOFF}, s{S_SOFF}, {STG // 2}")
        return ins
    def dma_stage(self, slot):
        return [l for i in range(4) for l in self.dma_piece(slot, i)]

    @staticmethod
    def koff(j): return (j // TPW) * STG + (j % TPW) * 2048
    def rdK(self, j):
        b = VKF + 8 * (j & 1); j %= 2 * TPW
        return [f"ds_read_b128 {vr(b + 4 * st, 4)}, v{V_RD} offset:{self.koff(j) + st * 1024}" for st in range(2)]
    def rdV(self, j):
        b = VVF + 8 * (j & 1); j %= 2 * TPW
        return [f"ds_read_b128 {vr(b + 4 * st, 4)}, v{V_RD} offset:{self.koff(j) + STG // 2 + st * 1024}" for st in range(2)]

    def unit(self, a, j, qt):
        u = 2 * j + qt
        s, sn = VS + 16 * (u & 1), VS + 16 * ((u + 1) & 1)
        jn, qn = (j + (qt == 1), qt ^ 1)
        kn = VKF + 8 * (jn & 1)
        jp, qp = (j - (qt == 0), qt ^ 1)
        v, vp = VVF + 8 * (j & 1), VVF + 8 * (jp & 1)
        e = lambda r: f"v_exp_f32 v{s + r}, v{s + r}"
        c = lambda k: f"v_cvt_pk_bf16_f32 v{VP + k}, v{s + 2 * k}, v{s + 2 * k + 1}"
        O, Op, Lq, Lp = VO + 16 * qt, VO + 16 * qp, VL + 4 * qt, VL + 4 * qp
        Sa = f"v_mfma_f32_32x32x16_bf16 {vr(sn, 16)}, {vr(kn, 4)}, {vr(VQ + 8 * qn, 4)}, {vr(VC + 16 * qn, 16)}"
        Sb = f"v_mfma_f32_32x32x16_bf16 {vr(sn, 16)}, {vr(kn + 4, 4)}, {vr(VQ + 8 * qn + 4, 4)}, {vr(sn, 16)}"
        PVa = f"v_mfma_f32_32x32x16_bf16 {vr(O, 16)}, {vr(v, 4)}, {vr(VP, 4)}, {vr(O, 16)}"
        PVb = f"v_mfma_f32_32x32x16_bf16 {vr(Op, 16)}, {vr(vp + 4, 4)}, {vr(VP + 4, 4)}, {vr(Op, 16)}"
        La = f"v_mfma_f32_16x16x32_bf16 {vr(Lq, 4)}, {vr(VONE, 4)}, {vr(VP, 4)}, {vr(Lq, 4)}"
        Lb = f"v_mfma_f32_16x16x32_bf16 {vr(Lp, 4)}, {vr(VONE, 4)}, {vr(VP + 4, 4)}, {vr(Lp, 4)}"
        rd = self.rdK(j + 1) if qt == 0 else self.rdV(j + 1)
        top = ["s_waitcnt lgkmcnt(0)"]
        jj = j % TPW
        if jj == TPW - 1 and qt == 0:
            top += ["s_waitcnt vmcnt(0)", "s_barrier"]
            if self.bapply: top += self.part_add() + self.part_loads()
        k = (2 * jj + qt - 2 * (TPW - 1)) % (2 * TPW)
        dm = []
        if k < 4:
            dm = self.dma_piece((((j + 1) // TPW) + 1) & 1, k)
        r0, r1 = rd[:1], rd[1:]
        if self.sched == 1:
            seq = (top + [e(0)] + r0 + [e(1)] + r1 + [e(2), e(3), Sa, c(0), c(1), e(4), e(5), Lb, e(6), e(7), c(2), c(3), Sb,
                   e(8)] + dm + [e(9), e(10), e(11), PVb, c(4), c(5), e(12), e(13), PVa, e(14), e(15), c(6), c(7), La])
        elif self.sched == 2:
            seq = (top + r0 + r1 + [e(0), e(1), e(2), e(3), Sa, c(0), c(1), e(4), e(5), Lb, e(6), e(7), c(2), c(3), Sb] + dm +
                   [e(8), e(9), e(10), e(11), PVb, c(4), c(5), e(12), e(13), PVa, e(14), e(15), c(6), c(7), La])
        D = self.diag
        if "nord" in D: seq = [l for l in seq if not l.startswith("ds_read")]
        if "noL" in D: seq = [l for l in seq if "16x16x32" not in l]
        for l in seq: a(l)

    def halfmax(self, a, x, t):
        a(f"v_mov_b32 v{t}, v{x}")
        a("s_nop 1")
        a(f"v_permlane32_swap_b32 v{x}, v{t}")
        a("s_nop 1")
        a(f"v_max_f32 v{x}, v{x}, v{t}")

    NT = 2
    def part_loads(self):
        kvp = f"s[{S_KVP}:{S_KVP+3}]"
        r = []
        for b in range(2):
            r += [f"buffer_load_dwordx4 {vr(VPT + 8 * b, 4)}, v{V_LANE16}, {kvp}, s{S_PKV} offen",
                  f"buffer_load_dwordx4 {vr(VPT + 8 * b + 4, 4)}, v{V_ZOFF}, {kvp}, s{S_PZ} offen",
                  f"s_add_u32 s{S_PKV}, s{S_PKV}, {KVP_STRIDE}", f"s_add_u32 s{S_PZ}, s{S_PZ}, {KVP_STRIDE}"]
        return r
    def part_add(self):
        return [f"v_pk_add_f32 {vr(VKA + r, 2)}, {vr(VKA + r, 2)}, {vr(VPT + 8 * b + r, 2)}" for b in range(2) for r in range(0, 8, 2)]
    def part_reset(self):
        return ([f"s_lshl_b32 s{S_PKV}, s{S_WV}, 10", f"s_and_b32 s{S_PZ}, s{S_WV}, 3", f"s_lshl_b32 s{S_PZ}, s{S_PZ}, 6",
                 f"s_add_u32 s{S_PZ}, s{S_PZ}, 8192"] + [f"v_mov_b32 v{VKA + r}, 0" for r in range(8)])

    def b_loads(self, a):
        ws = f"s[{S_WS}:{S_WS+3}]"
        a(f"s_lshl_b32 s6, s{S_QB}, 4")
        a(f"s_lshl_b32 s7, s{S_WV}, 1")
        a("s_add_u32 s6, s6, s7")
        a("s_lshl_b32 s7, s6, 10")
        a(f"s_lshl_b32 s3, s{S_H}, 17")
        a("s_add_u32 s7, s7, s3")
        a(f"s_add_u32 s7, s7, {WS_QB}")
        for t in range(self.NT):
            a(f"buffer_load_dwordx4 {vr(VQB + 4 * t, 4)}, v{V_LANE16}, {ws}, s7 offen offset:{t * 1024}")
        a("s_lshl_b32 s7, s6, 6")
        a(f"s_add_u32 s7, s7, {WS_G}")
        a(f"v_and_b32 v{V_T0}, 15, v{V_T1}")
        a(f"v_lshlrev_b32 v{V_T0}, 2, v{V_T0}")
        for t in range(self.NT):
            a(f"buffer_load_dword v{VGB + t}, v{V_T0}, {ws}, s7 offen offset:{t * 64}")
        a(f"s_lshl_b32 s6, s{S_H}, 11")
        a(f"s_lshl_b32 s7, s{S_WV}, 10")
        a("s_add_u32 s6, s6, s7")
        a(f"s_cmp_ge_u32 s{S_WV}, 2")
        a("s_cselect_b32 s6, 0x10000, s6")
        a(f"s_cselect_b32 s7, {L_SPARE - L_WP}, s7")
        a(f"s_add_u32 m0, s7, {LDS_MISC + L_WP}")
        a("s_nop 0")
        a(f"buffer_load_dwordx4 v{V_LANE16}, s[28:31], s6 offen lds")

    def b_publish(self, a):
        for k in range(4):
            a(f"v_cvt_pk_bf16_f32 v{VPT + k}, v{VKA + 2 * k}, v{VKA + 2 * k + 1}")
        a(f"v_and_b32 v{V_T1}, 63, v0")
        a(f"v_lshlrev_b32 v{V_T0}, 3, v{V_T1}")
        a(f"v_add_u32 v{V_T0}, {LDS_MISC}, v{V_T0}")
        a(f"s_lshl_b32 s6, s{S_WV}, 9")
        a(f"v_add_u32 v{V_T3}, s6, v{V_T0}")
        a(f"ds_write_b64 v{V_T3}, {vr(VPT, 2)} offset:{L_KV}")
        a(f"s_and_b32 s6, s{S_WV}, 3")
        a(f"s_lshl_b32 s6, s6, 9")
        a(f"v_add_u32 v{V_T3}, s6, v{V_T0}")
        a(f"ds_write_b64 v{V_T3}, {vr(VPT + 2, 2)} offset:{L_Z}")

    def b_apply(self, a):
        ws = f"s[{S_WS}:{S_WS+3}]"
        NT = self.NT
        a(f"v_and_b32 v{V_T1}, 63, v0")
        a(f"v_lshlrev_b32 v{V_T0}, 3, v{V_T1}")
        a(f"v_add_u32 v{V_T0}, {LDS_MISC}, v{V_T0}")
        for sg in range(2):
            for dt in range(2):
                for ft in range(2):
                    t = (sg * 2 + ft) * 2 + dt
                    a(f"ds_read_b64 {vr(24 + (sg * 2 + dt) * 4 + 2 * ft, 2)}, v{V_T0} offset:{L_KV + t * 512}")
            for ft in range(2):
                a(f"ds_read_b64 {vr(40 + sg * 4 + 2 * ft, 2)}, v{V_T0} offset:{L_Z + (sg * 2 + ft) * 512}")
        a(f"v_lshrrev_b32 v{V_T2}, 4, v{V_T1}")
        a(f"v_bfe_u32 v{V_T3}, v{V_T1}, 2, 2")
        a(f"v_lshl_add_u32 v{V_T2}, v{V_T2}, 2, v{V_T3}")
        a(f"v_lshlrev_b32 v{V_T2}, 6, v{V_T2}")
        a(f"v_and_b32 v{V_T3}, 3, v{V_T1}")
        a(f"v_lshl_add_u32 v{V_T2}, v{V_T3}, 3, v{V_T2}")
        a(f"v_add_u32 v{V_T2}, {LDS_MISC}, v{V_T2}")
        for ft in range(2):
            for q in range(2):
                a(f"ds_read_b64_tr_b16 {vr(48 + 4 * ft + 2 * q, 2)}, v{V_T2} offset:{L_WP + q * 1024 + ft * 32}")
        a(f"v_mov_b32 v56, 0x3f803f80")
        for r in range(1, 4): a(f"v_mov_b32 v{56 + r}, v56")
        a("s_waitcnt lgkmcnt(0)")
        for t in range(NT):
            for ft in range(2):
                a(f"v_mfma_f32_16x16x32_bf16 {vr(64 + 8 * t + 4 * ft, 4)}, {vr(48 + 4 * ft, 4)}, {vr(VQB + 4 * t, 4)}, 0")
        a("s_nop 7")
        P = lambda t, i: 64 + 8 * t + i
        MX, MN, TM = 96, 100, 104
        T = range(NT)
        for t in T:
            a(f"v_max3_f32 v{MX+2*t}, v{P(t,0)}, v{P(t,1)}, v{P(t,2)}")
            a(f"v_min3_f32 v{MN+2*t}, v{P(t,0)}, v{P(t,1)}, v{P(t,2)}")
        for i in (3, 5):
            for t in T:
                a(f"v_max3_f32 v{MX+2*t}, v{MX+2*t}, v{P(t,i)}, v{P(t,i+1)}")
                a(f"v_min3_f32 v{MN+2*t}, v{MN+2*t}, v{P(t,i)}, v{P(t,i+1)}")
        for t in T:
            a(f"v_max_f32 v{MX+2*t}, v{MX+2*t}, v{P(t,7)}")
            a(f"v_min_f32 v{MN+2*t}, v{MN+2*t}, v{P(t,7)}")
        for t in T: a(f"v_sub_f32 v{MN+2*t}, 0, v{MN+2*t}")
        a("s_nop 1")
        for t in T: a(f"v_permlane32_swap_b32 v{MX+2*t}, v{MN+2*t}")
        a("s_nop 1")
        for t in T: a(f"v_max_f32 v{MX+2*t}, v{MX+2*t}, v{MN+2*t}")
        for t in T: a(f"v_mov_b32 v{TM+2*t}, v{MX+2*t}")
        a("s_nop 1")
        for t in T: a(f"v_permlane16_swap_b32 v{MX+2*t}, v{TM+2*t}")
        a("s_nop 1")
        for t in T: a(f"v_max_f32 v{MX+2*t}, v{MX+2*t}, v{TM+2*t}")
        for t in T: a(f"v_mov_b32 v{MN+2*t}, v{MX+2*t}")
        a("s_nop 1")
        for t in T: a(f"v_permlane32_swap_b32 v{MX+2*t}, v{MN+2*t}")
        a("s_nop 1")
        EP = lambda t, i: 176 + 8 * t + i
        a(f"s_mov_b32 s36, {f32bits(LOG2E)}")
        a(f"s_mov_b32 s37, {f32bits(LOG2E)}")
        a(f"s_mov_b32 s38, {f32bits(-LOG2E)}")
        a(f"s_mov_b32 s39, {f32bits(-LOG2E)}")
        for t in T:
            a(f"v_mul_f32 v{MX+2*t}, s38, v{MX+2*t}")
            a(f"v_mul_f32 v{MN+2*t}, s38, v{MN+2*t}")
        for t in T:
            for i in range(0, 8, 2):
                a(f"v_pk_fma_f32 {vr(EP(t,i), 2)}, {vr(P(t,i), 2)}, s[36:37], {vr(MX+2*t, 2)} op_sel_hi:[1,1,0]")
                a(f"v_pk_fma_f32 {vr(P(t,i), 2)}, {vr(P(t,i), 2)}, s[38:39], {vr(MN+2*t, 2)} op_sel_hi:[1,1,0]")
        for t in T:
            for i in range(8):
                a(f"v_exp_f32 v{EP(t,i)}, v{EP(t,i)}")
                a(f"v_exp_f32 v{P(t,i)}, v{P(t,i)}")
        BP, BM = 96, 112
        a("s_nop 0")
        for t in T:
            for k in range(4):
                a(f"v_cvt_pk_bf16_f32 v{BP + 4*t + k}, v{EP(t,2*k)}, v{EP(t,2*k+1)}")
                a(f"v_cvt_pk_bf16_f32 v{BM + 4*t + k}, v{P(t,2*k)}, v{P(t,2*k+1)}")
        a("s_nop 1")
        for t in T:
            R = 176 + 32 * t
            bp, bm = vr(BP + 4 * t, 4), vr(BM + 4 * t, 4)
            for dt in range(2):
                a(f"v_mfma_f32_16x16x32_bf16 {vr(R + 4 * dt, 4)}, {vr(24 + 4 * dt, 4)}, {bp}, 0")
                a(f"v_mfma_f32_16x16x32_bf16 {vr(R + 8 + 4 * dt, 4)}, {vr(32 + 4 * dt, 4)}, {bm}, 0")
            a(f"v_mfma_f32_16x16x32_bf16 {vr(R + 16, 4)}, {vr(40, 4)}, {bp}, 0")
            a(f"v_mfma_f32_16x16x32_bf16 {vr(R + 20, 4)}, {vr(44, 4)}, {bm}, 0")
            a(f"v_mfma_f32_16x16x32_bf16 {vr(R + 24, 4)}, {vr(56, 4)}, {bp}, 0")
            a(f"v_mfma_f32_16x16x32_bf16 {vr(R + 28, 4)}, {vr(56, 4)}, {bm}, 0")
        a("s_nop 7")
        for t in T:
            R = 176 + 32 * t
            a(f"v_rcp_f32 v{R + 24}, v{R + 24}")
            a(f"v_rcp_f32 v{R + 28}, v{R + 28}")
        a("s_nop 0")
        for t in T:
            R = 176 + 32 * t
            a(f"v_mul_f32 v{R + 16}, v{R + 16}, v{R + 24}")
            a(f"v_sub_f32 v{R + 17}, 1.0, v{VGB + t}")
            a(f"v_fma_f32 v{R + 16}, v{R + 20}, v{R + 28}, v{R + 16}")
            a(f"v_add_f32 v{R + 16}, {f32bits(1e-6)}, v{R + 16}")
        for t in T:
            a(f"v_rcp_f32 v{176 + 32 * t + 16}, v{176 + 32 * t + 16}")
        a("s_nop 0")
        for t in T:
            R = 176 + 32 * t
            a(f"v_mul_f32 v{R + 16}, v{R + 16}, v{R + 17}")
            a(f"v_mul_f32 v{R + 24}, v{R + 24}, v{R + 16}")
            a(f"v_mul_f32 v{R + 28}, v{R + 28}, v{R + 16}")
        for t in T:
            R = 176 + 32 * t
            for i in range(8): a(f"v_mul_f32 v{R + i}, v{R + i}, v{R + 24}")
            for i in range(8): a(f"v_fma_f32 v{R + i}, v{R + 8 + i}, v{R + 28}, v{R + i}")
        for t in T:
            R = 176 + 32 * t
            for k in range(4):
                a(f"v_cvt_pk_bf16_f32 v{R + 20 + k}, v{R + 2 * k}, v{R + 2 * k + 1}")
            a(f"s_lshl_b32 s6, s{S_QB}, 4")
            a(f"s_lshl_b32 s7, s{S_WV}, 1")
            a("s_add_u32 s6, s6, s7")
            a(f"s_add_u32 s6, s6, {t}")
            a("s_lshl_b32 s6, s6, 10")
            a(f"s_lshl_b32 s7, s{S_H}, 17")
            a("s_add_u32 s6, s6, s7")
            a(f"s_add_u32 s6, s6, {WS_O + 32 * 131072}")
            a(f"buffer_store_dwordx4 {vr(R + 20, 4)}, v{V_LANE16}, {ws}, s6 offen {self.store_mod}")

    def gen(self):
        a = Asm()
        n = self.name
        ws = f"s[{S_WS}:{S_WS+3}]"
        a("s_cmp_ge_u32 s2, 256")
        a(f"s_cbranch_scc1 {n}_end")
        self.pstamp(a, 0)
        if self.code:
            first, last, nbytes = self.code
            code_prefetch(a, n, first, last, 8, 240, 242, 90)(-(-nbytes // 32768))
        a("s_load_dwordx2 s[4:5], s[0:1], 80")
        a("s_load_dwordx2 s[34:35], s[0:1], 40")
        a("s_and_b32 s3, s2, 7")
        a("s_lshr_b32 s6, s2, 3")
        a(f"s_lshl_b32 s{S_H}, s3, 2")
        a("s_lshr_b32 s7, s6, 3")
        a(f"s_add_u32 s{S_H}, s{S_H}, s7")
        a(f"s_and_b32 s{S_QB}, s6, 7")
        a("v_lshrrev_b32 v2, 6, v0")
        a(f"v_and_b32 v{V_T1}, 63, v0")
        a(f"v_lshlrev_b32 v{V_LANE16}, 4, v{V_T1}")
        a(f"v_readfirstlane_b32 s{S_WV}, v2")
        a("s_waitcnt lgkmcnt(0)")
        ws_shift(a, 4, self.wsbase)
        srd(a, S_WS, 4, 0x10000000 - self.wsbase)
        srd(a, 28, 34, 65536)
        a(f"s_lshl_b32 s3, s{S_H}, 17")
        for S, off in ((S_K, WS_KA), (S_V, WS_VA)):
            a(f"s_add_u32 s6, s3, {off}")
            a(f"s_add_u32 s{S}, s4, s6")
            a(f"s_addc_u32 s{S+1}, s5, 0")
            a(f"s_and_b32 s{S+1}, s{S+1}, 0xffff")
            a(f"s_mov_b32 s{S+2}, 131072")
            a(f"s_mov_b32 s{S+3}, 0x00020000")
        a(f"s_lshl_b32 s{S_WOFF}, s{S_WV}, 11")
        a(f"s_and_b32 s{S_QG}, s{S_WV}, 3")
        a(f"s_lshr_b32 s{S_KH}, s{S_WV}, 2")
        a(f"s_lshl_b32 s6, s{S_KH}, 13")
        a(f"v_add_u32 v{V_RD}, s6, v{V_LANE16}")
        a(f"s_lshl_b32 s6, s{S_QB}, 3")
        a(f"s_lshl_b32 s7, s{S_QG}, 1")
        a("s_add_u32 s6, s6, s7")
        a("s_lshl_b32 s7, s6, 11")
        a(f"s_lshl_b32 s3, s{S_H}, 17")
        a("s_add_u32 s7, s7, s3")
        a(f"s_add_u32 s7, s7, {WS_QA}")
        a(f"s_mov_b32 s{S_MODE}, 0")
        a(f"s_mov_b32 s{S_SOFF}, s{S_WOFF}")
        for l in self.dma_piece(0, 0) + self.dma_piece(0, 1): a(l)
        for i in range(4):
            a(f"buffer_load_dwordx4 {vr(VQ + 4 * i, 4)}, v{V_LANE16}, {ws}, s7 offen offset:{i * 1024}")
        for l in self.dma_piece(0, 2) + self.dma_piece(0, 3): a(l)
        a(f"s_add_u32 s6, s6, s{S_KH}")
        a("s_lshl_b32 s7, s6, 7")
        a(f"s_add_u32 s7, s7, {WS_G}")
        a(f"v_and_b32 v{V_T0}, 31, v{V_T1}")
        a(f"v_lshlrev_b32 v{V_T0}, 2, v{V_T0}")
        a(f"buffer_load_dword v{V_G}, v{V_T0}, {ws}, s7 offen")
        nbg = 1
        if self.bapply:
            a(f"s_lshl_b32 s6, s{S_H}, 18")
            a(f"s_add_u32 s6, s6, {WS_KVP}")
            a(f"s_add_u32 s{S_KVP}, s4, s6")
            a(f"s_addc_u32 s{S_KVP+1}, s5, 0")
            a(f"s_and_b32 s{S_KVP+1}, s{S_KVP+1}, 0xffff")
            a(f"s_mov_b32 s{S_KVP+2}, {NKVP * KVP_STRIDE}")
            a(f"s_mov_b32 s{S_KVP+3}, 0x00020000")
            a(f"v_lshrrev_b32 v{V_ZOFF}, 4, v{V_T1}")
            a(f"v_lshlrev_b32 v{V_ZOFF}, 4, v{V_ZOFF}")
            for l in self.part_reset(): a(l)
            for r in range(16): a(f"v_mov_b32 v{VPT + r}, 0")
        self.nbg = nbg
        self.pstamp(a, 1)
        a(f"v_lshrrev_b32 v{V_T0}, 4, v{V_T1}")
        a(f"v_lshrrev_b32 v{V_T2}, 2, v{V_T1}")
        a(f"v_xor_b32 v{V_T0}, v{V_T0}, v{V_T2}")
        a(f"v_and_b32 v{V_T0}, 1, v{V_T0}")
        a(f"v_mov_b32 v{V_T2}, 0x3f803f80")
        a(f"v_cmp_eq_u32 vcc, 0, v{V_T0}")
        a("s_nop 1")
        a(f"v_cndmask_b32 v{VONE}, 0, v{V_T2}, vcc")
        for r in range(1, 4): a(f"v_mov_b32 v{VONE + r}, v{VONE}")
        a(f"s_waitcnt vmcnt({self.nbg})")
        a(f"s_branch {n}_first")
        a.label(f"{n}_restart")
        a(f"s_mov_b32 s{S_SOFF}, s{S_WOFF}")
        for l in self.dma_stage(0): a(l)
        if self.bapply:
            for l in self.part_reset(): a(l)
            for r in range(16): a(f"v_mov_b32 v{VPT + r}, 0")
        a("s_waitcnt vmcnt(0)")
        a.label(f"{n}_first")
        for r in range(32): a(f"v_mov_b32 v{VO + r}, 0")
        for r in range(8): a(f"v_mov_b32 v{VL + r}, 0")
        for r in range(8): a(f"v_mov_b32 v{VP + r}, 0")
        for r in range(4): a(f"v_mov_b32 v{VVF + 8 + 4 + r}, 0")
        a("s_barrier")
        self.pstamp(a, 2)
        for l in self.dma_piece(1, 0) + self.dma_piece(1, 1): a(l)
        if self.bapply:
            a(f"s_cmp_lg_u32 s{S_MODE}, 0")
            a(f"s_cbranch_scc1 {n}_nobl")
            self.b_loads(a)
            a.label(f"{n}_nobl")
        a(f"s_cmp_lg_u32 s{S_MODE}, 0")
        a(f"s_cbranch_scc1 {n}_havemax")
        a(f"ds_read_b128 {vr(VKF, 4)}, v{V_LANE16}")
        a(f"ds_read_b128 {vr(VKF + 4, 4)}, v{V_LANE16} offset:1024")
        a("s_waitcnt lgkmcnt(0)")
        for qt in range(2):
            s = VS + 16 * qt
            a(f"v_mfma_f32_32x32x16_bf16 {vr(s, 16)}, {vr(VKF, 4)}, {vr(VQ + 8 * qt, 4)}, 0")
            a(f"v_mfma_f32_32x32x16_bf16 {vr(s, 16)}, {vr(VKF + 4, 4)}, {vr(VQ + 8 * qt + 4, 4)}, {vr(s, 16)}")
        a("s_nop 15")
        for qt in range(2):
            s, x = VS + 16 * qt, V_T0 + 2 * qt
            a(f"v_max3_f32 v{x}, v{s}, v{s + 1}, v{s + 2}")
            for r in range(3, 15, 2):
                a(f"v_max3_f32 v{x}, v{x}, v{s + r}, v{s + r + 1}")
            a(f"v_max_f32 v{x}, v{x}, v{s + 15}")
        for qt in range(2):
            x = V_T0 + 2 * qt
            self.halfmax(a, x, V_T3)
            a(f"v_add_f32 v{x}, {f32bits(self.margin)}, v{x}")
            a(f"v_sub_f32 v{VC + 16 * qt}, 0, v{x}")
            for r in range(1, 16): a(f"v_mov_b32 v{VC + 16 * qt + r}, v{VC + 16 * qt}")
        a.label(f"{n}_havemax")
        for l in self.rdK(0) + self.rdV(0): a(l)
        a("s_waitcnt lgkmcnt(0)")
        a(f"v_mfma_f32_32x32x16_bf16 {vr(VS, 16)}, {vr(VKF, 4)}, {vr(VQ, 4)}, {vr(VC, 16)}")
        a(f"v_mfma_f32_32x32x16_bf16 {vr(VS, 16)}, {vr(VKF + 4, 4)}, {vr(VQ + 4, 4)}, {vr(VS, 16)}")
        a("s_nop 7")
        a(f"s_mov_b32 s{S_CNT}, {32 // (2 * TPW)}")
        if self.prio:
            a(f"s_cmp_ge_u32 s{S_WV}, 4")
            a(f"s_cbranch_scc0 {n}_noprio")
            a("s_setprio 1")
            a.label(f"{n}_noprio")
        self.pstamp(a, 3)
        a("s_nop 3")
        a(".p2align 6")
        a.label(f"{n}_loop")
        for j in range(2 * TPW):
            for qt in range(2):
                self.unit(a, j, qt)
        a(f"s_sub_u32 s{S_CNT}, s{S_CNT}, 1")
        a(f"s_cmp_lg_u32 s{S_CNT}, 0")
        a(f"s_cbranch_scc1 {n}_loop")
        a("s_nop 1")
        a(f"v_mfma_f32_32x32x16_bf16 {vr(VO + 16, 16)}, {vr(VVF + 8 + 4, 4)}, {vr(VP + 4, 4)}, {vr(VO + 16, 16)}")
        a(f"v_mfma_f32_16x16x32_bf16 {vr(VL + 4, 4)}, {vr(VONE, 4)}, {vr(VP + 4, 4)}, {vr(VL + 4, 4)}")
        if self.prio: a("s_setprio 0")
        self.pstamp(a, 4)
        a("s_waitcnt vmcnt(0) lgkmcnt(0)")
        if self.bapply:
            for l in self.part_add(): a(l)
        a("s_nop 15")
        a(f"s_mov_b32 s3, 0")
        if not self.diag:
            a(f"v_mul_f32 v{V_T0}, {f32bits(256.0)}, v{VL}")
            a(f"v_mul_f32 v{V_T2}, {f32bits(256.0)}, v{VL + 4}")
            a(f"v_mul_f32 v{V_T0}, 0, v{V_T0}")
            a(f"v_fma_f32 v{V_T0}, v{V_T2}, 0, v{V_T0}")
            for r in range(32): a(f"v_fma_f32 v{V_T0}, v{VO + r}, 0, v{V_T0}")
            if self.force_fallback:
                a(f"v_mov_b32 v{V_T0}, 0x7fc00000")
            a(f"v_cmp_u_f32 vcc, v{V_T0}, v{V_T0}")
            a(f"s_or_b32 s3, vcc_lo, vcc_hi")
            a(f"s_cmp_lg_u32 s3, 0")
            a(f"s_cselect_b32 s3, 1, 0")
        a(f"v_mov_b32 v{V_T0}, s3")
        a(f"s_lshl_b32 s6, s{S_WV}, 2")
        a(f"s_add_u32 s6, s6, {LDS_MISC + L_VOTE}")
        a(f"v_mov_b32 v{V_T2}, s6")
        a(f"ds_write_b32 v{V_T2}, v{V_T0}")
        a(f"s_mul_i32 s6, s{S_WV}, {5 * 1024}")
        a(f"s_add_u32 s6, s6, {L_XO}")
        a(f"v_add_u32 v{V_T2}, s6, v{V_LANE16}")
        a(f"s_cmp_eq_u32 s{S_KH}, 0")
        a(f"s_cbranch_scc1 {n}_give1")
        for qt, lab in ((0, ""), (1, f"{n}_give1")):
            if lab: a.label(lab)
            for k in range(4):
                a(f"ds_write_b128 v{V_T2}, {vr(VO + 16 * qt + 4 * k, 4)} offset:{k * 1024}")
            a(f"ds_write_b128 v{V_T2}, {vr(VL + 4 * qt, 4)} offset:4096")
            if qt == 0: a(f"s_branch {n}_gave")
        a.label(f"{n}_gave")
        if self.bapply: self.b_publish(a)
        a("s_waitcnt lgkmcnt(0)")
        a("s_barrier")
        a(f"v_mov_b32 v{V_T0}, {LDS_MISC + L_VOTE}")
        a(f"ds_read_b128 v[216:219], v{V_T0}")
        a(f"ds_read_b128 v[220:223], v{V_T0} offset:16")
        a(f"s_xor_b32 s6, s{S_WV}, 4")
        a(f"s_mul_i32 s6, s6, {5 * 1024}")
        a(f"s_add_u32 s6, s6, {L_XO}")
        a(f"v_add_u32 v{V_T2}, s6, v{V_LANE16}")
        for k in range(4):
            a(f"ds_read_b128 {vr(VS + 4 * k, 4)}, v{V_T2} offset:{k * 1024}")
        a(f"ds_read_b128 {vr(VS + 16, 4)}, v{V_T2} offset:4096")
        a("s_waitcnt lgkmcnt(5)")
        a("v_or3_b32 v216, v216, v217, v218")
        a("v_or3_b32 v216, v216, v219, v220")
        a("v_or3_b32 v216, v216, v221, v222")
        a("v_or_b32 v216, v216, v223")
        a("s_nop 0")
        a("v_readfirstlane_b32 s3, v216")
        a(f"s_sub_u32 s6, 1, s{S_MODE}")
        a("s_and_b32 s3, s3, s6")
        a("s_cmp_eq_u32 s3, 0")
        a(f"s_cbranch_scc1 {n}_fin")
        a("s_waitcnt lgkmcnt(0)")
        a("s_barrier")
        a(f"s_mov_b32 s{S_SOFF}, s{S_WOFF}")
        a(f"s_mov_b32 s{S_CNT}, {64 // TPS}")
        a(f"v_mov_b32 v{V_T0}, 0xff800000")
        a(f"v_mov_b32 v{V_T2}, 0xff800000")
        a.label(f"{n}_maxloop")
        for l in self.dma_stage(0): a(l)
        a("s_waitcnt vmcnt(0)")
        a("s_barrier")
        for j in range(TPS):
            a(f"ds_read_b128 {vr(VKF, 4)}, v{V_LANE16} offset:{j * 2048}")
            a(f"ds_read_b128 {vr(VKF + 4, 4)}, v{V_LANE16} offset:{j * 2048 + 1024}")
            a("s_waitcnt lgkmcnt(0)")
            for qt in range(2):
                s = VS + 16 * qt
                a(f"v_mfma_f32_32x32x16_bf16 {vr(s, 16)}, {vr(VKF, 4)}, {vr(VQ + 8 * qt, 4)}, 0")
                a(f"v_mfma_f32_32x32x16_bf16 {vr(s, 16)}, {vr(VKF + 4, 4)}, {vr(VQ + 8 * qt + 4, 4)}, {vr(s, 16)}")
            a("s_nop 15")
            for qt in range(2):
                s, x = VS + 16 * qt, V_T0 + 2 * qt
                for r in range(0, 16, 2):
                    a(f"v_max3_f32 v{x}, v{x}, v{s + r}, v{s + r + 1}")
        a("s_barrier")
        a(f"s_sub_u32 s{S_CNT}, s{S_CNT}, 1")
        a(f"s_cmp_lg_u32 s{S_CNT}, 0")
        a(f"s_cbranch_scc1 {n}_maxloop")
        for qt in range(2):
            x = V_T0 + 2 * qt
            self.halfmax(a, x, V_T3)
            a(f"v_sub_f32 v{VC + 16 * qt}, 0, v{x}")
            for r in range(1, 16): a(f"v_mov_b32 v{VC + 16 * qt + r}, v{VC + 16 * qt}")
        a(f"s_mov_b32 s{S_MODE}, 1")
        a(f"s_branch {n}_restart")
        a.label(f"{n}_fin")
        a(f"s_cmp_eq_u32 s{S_KH}, 0")
        a(f"s_cbranch_scc1 {n}_keep0")
        for r in range(16): a(f"v_mov_b32 v{VO + r}, v{VO + 16 + r}")
        a(f"v_mov_b32 v{VL}, v{VL + 4}")
        a.label(f"{n}_keep0")
        a(f"v_and_b32 v{V_T1}, 63, v0")
        a(f"v_bfe_u32 v{V_T0}, v{V_T1}, 4, 1")
        a(f"v_lshlrev_b32 v{V_T0}, 10, v{V_T0}")
        a(f"v_lshrrev_b32 v{V_T2}, 5, v{V_T1}")
        a(f"v_lshl_add_u32 v{V_T0}, v{V_T2}, 8, v{V_T0}")
        a(f"v_and_b32 v{V_T2}, 15, v{V_T1}")
        a(f"v_lshl_add_u32 v{V_T0}, v{V_T2}, 4, v{V_T0}")
        a("s_waitcnt lgkmcnt(0)")
        a(f"v_add_f32 v{VL}, v{VL}, v{VS + 16}")
        a(f"v_rcp_f32 v{V_T2}, v{VL}")
        for r in range(16): a(f"v_add_f32 v{VO + r}, v{VO + r}, v{VS + r}")
        a(f"v_mul_f32 v{V_T2}, v{V_T2}, v{V_G}")
        for r in range(16): a(f"v_mul_f32 v{VO + r}, v{V_T2}, v{VO + r}")
        for k in range(8): a(f"v_cvt_pk_bf16_f32 v{VS + k}, v{VO + 2 * k}, v{VO + 2 * k + 1}")
        a(f"s_lshl_b32 s6, s{S_QB}, 3")
        a(f"s_lshl_b32 s7, s{S_QG}, 1")
        a("s_add_u32 s6, s6, s7")
        a(f"s_add_u32 s6, s6, s{S_KH}")
        a("s_lshl_b32 s6, s6, 11")
        a(f"s_lshl_b32 s7, s{S_H}, 17")
        a("s_add_u32 s6, s6, s7")
        a(f"s_add_u32 s6, s6, {WS_O}")
        a(f"buffer_store_dwordx4 {vr(VS, 4)}, v{V_T0}, {ws}, s6 offen {self.store_mod}")
        a(f"buffer_store_dwordx4 {vr(VS + 4, 4)}, v{V_T0}, {ws}, s6 offen offset:512 {self.store_mod}")
        self.pstamp(a, 5)
        if self.bapply:
            self.b_apply(a)
        if self.prof:
            a("s_waitcnt vmcnt(0)")
            self.pstamp(a, 6)
            self.pflush(a, 1, 8, S_WV, ws)
        a.label(f"{n}_end")
        a("s_endpgm")
        a.label(f"{n}_last")
        return kernel_header(n) + a.text() + kernel_desc(n, 256, 256)
```

```python
from asmlib import *
from layout import *
from prof import Prof
from dbgstamp import dbg_setup, dbg_stamp

NSLOT, SLOT = 8, 16384
LDS_K3 = NSLOT * SLOT
OD = 4
V_LANE16, V_WO, V_WRA, V_WRB, V_WRH = 1, 2, 4, 8, 140
FW, ACC, FO = 16, 48, 80
S_WS, S_WA, S_WB, S_OUT, S_WC = 8, 12, 16, 20, 24
S_MT, S_NT, S_WV, S_KH, S_TG, S_SOO, S_SOW, S_W2K, S_OB = range(28, 37)

class K3b(Prof):
    V_PROF = 200
    def __init__(self, name, prof=False, store_mod="sc1", rot=False, wd=3, od=2, diag=(), code=None, dbg=None, wsbase=0):
        self.name, self.prof, self.store_mod, self.rot = name, prof, store_mod, rot
        self.wd, self.od = wd, od
        self.ld_o = ''
        self.diag = set(diag)
        self.code = code
        self.wsbase = wsbase
        self.dbg = dbg

    def dma_w(self, st):
        srd_ = S_WA if st < 8 else S_WB
        return [f"s_add_u32 m0, s{S_W2K}, {(st % NSLOT) * SLOT}", f"s_mov_b32 s{S_SOW}, {(st & 7) << 18}",
                f"buffer_load_dwordx4 v{V_WO}, s[{srd_}:{srd_+3}], s{S_SOW} offen lds",
                f"buffer_load_dwordx4 v{V_WO + 1}, s[{srd_}:{srd_+3}], s{S_SOW} offen offset:1024 lds"]

    def load_o(self, st):
        buf = st % self.od
        r = []
        for b in range(2):
            r += [f"s_add_u32 s{S_SOO}, s{S_OB}, {(4 * st + 2 * b) * 131072}",
                  f"buffer_load_dwordx4 {vr(FO + 16 * buf + 8 * b, 4)}, v{V_LANE16}, s[{S_WS}:{S_WS+3}], s{S_SOO} offen {self.ld_o}",
                  f"buffer_load_dwordx4 {vr(FO + 16 * buf + 8 * b + 4, 4)}, v{V_LANE16}, s[{S_WS}:{S_WS+3}], s{S_SOO} offen offset:1024 {self.ld_o}"]
        return r

    def rd_w(self, st, b):
        part = st >> 3
        slot = st % NSLOT
        wr = (V_WRA if part == 0 else V_WRB) + 4 * 2 * 0
        hi = slot >= 4
        qoff = 1024 if part == 0 else 2048
        if "nord" in self.diag: return []
        base = (V_WRH if hi else wr)
        return [f"ds_read_b64_tr_b16 {vr(FW + 16 * b + 4 * ct + 2 * q, 2)}, v{base + ct} offset:{(slot & 3) * SLOT + b * 8192 + q * qoff}"
                for ct in range(4) for q in range(2)]

    def mfmas(self, buf, b):
        if "nomfma" in self.diag: return ["s_nop 0"] * 8
        return [f"v_mfma_f32_16x16x32_bf16 {vr(ACC + (i * 4 + ct) * 4, 4)}, {vr(FW + 16 * b + 4 * ct, 4)}, {vr(FO + 16 * buf + 8 * b + 4 * i, 4)}, {vr(ACC + (i * 4 + ct) * 4, 4)}"
                for ct in range(4) for i in range(2)]

    def stage(self, a, st, issue_w, issue_o, vm_mid, vm_top, last=False):
        buf = st % self.od
        a(f"s_waitcnt vmcnt({vm_top}) lgkmcnt(0)")
        fill = [(i, [r]) for i, r in enumerate(self.rd_w(st, 1))]
        for l in interleave(self.mfmas(buf, 0), fill): a(l)
        a("s_waitcnt lgkmcnt(0)")
        m = self.mfmas(buf, 1)
        if last:
            for l in m: a(l)
            return
        pre = []
        if st + 1 in (4, 8, 12):
            nxt = V_WRA if (st + 1) >> 3 == 0 else V_WRB
            if st + 1 in (4, 12): pre = [f"v_add_u32 v{V_WRH + c}, {4 * SLOT}, v{nxt + c}" for c in range(4)]
        fill = [(0, pre + [f"s_waitcnt vmcnt({vm_mid})"] + ([] if "nobar" in self.diag else ["s_barrier"]))]
        rd = self.rd_w(st + 1, 0)
        for i, r in enumerate(rd): fill.append((1 + i * 6 // 8, [r]))
        fill.append((7, self.dma_w(st + self.wd) if issue_w else []))
        for l in interleave(m, fill): a(l)
        if issue_o:
            for l in self.load_o(st + self.od): a(l)

    def gen(self):
        a = Asm()
        n = self.name
        a("s_cmp_ge_u32 s2, 256")
        a(f"s_cbranch_scc1 {n}_end")
        self.pstamp(a, 0)
        if self.code:
            first, last, nbytes = self.code
            code_prefetch(a, n, first, last, 8, 146, 148, 90)(-(-nbytes // 32768))
        a("s_load_dwordx2 s[4:5], s[0:1], 80")
        a("s_load_dwordx2 s[6:7], s[0:1], 16")
        a("s_load_dwordx2 s[46:47], s[0:1], 48")
        a("s_load_dwordx2 s[48:49], s[0:1], 64")
        a("s_and_b32 s3, s2, 7")
        a("s_lshr_b32 s50, s2, 3")
        a("s_lshr_b32 s51, s3, 1")
        a("s_lshl_b32 s51, s51, 2")
        a("s_and_b32 s52, s50, 3")
        a(f"s_add_u32 s{S_MT}, s51, s52")
        a("s_and_b32 s51, s3, 1")
        a("s_lshl_b32 s51, s51, 3")
        a("s_lshr_b32 s53, s50, 2")
        a(f"s_add_u32 s{S_NT}, s51, s53")
        a("v_lshrrev_b32 v2, 6, v0")
        a("v_and_b32 v12, 63, v0")
        a(f"v_lshlrev_b32 v{V_LANE16}, 4, v12")
        a(f"v_readfirstlane_b32 s{S_WV}, v2")
        a("v_lshrrev_b32 v13, 3, v12")
        a("v_and_b32 v14, 7, v12")
        a("v_bfe_u32 v15, v12, 4, 2")
        a("v_lshlrev_b32 v15, 1, v15")
        a("v_xor_b32 v14, v14, v15")
        a("v_lshlrev_b32 v13, 11, v13")
        a("v_lshl_add_u32 v13, v14, 4, v13")
        a(f"s_lshl_b32 s3, s{S_NT}, 7")
        a("v_add_u32 v13, s3, v13")
        a(f"s_lshl_b32 s3, s{S_WV}, 15")
        a(f"v_add_u32 v{V_WO}, s3, v13")
        a(f"s_add_u32 s3, s3, {16384 - 1024}")
        a(f"v_add_u32 v{V_WO + 1}, s3, v13")
        a(f"s_lshr_b32 s{S_KH}, s{S_WV}, 2")
        a(f"s_and_b32 s{S_TG}, s{S_WV}, 3")
        a(f"s_lshl_b32 s3, s{S_MT}, 3")
        a(f"s_lshl_b32 s50, s{S_TG}, 1")
        a("s_add_u32 s3, s3, s50")
        a("s_lshl_b32 s3, s3, 10")
        a(f"s_lshl_b32 s50, s{S_KH}, 17")
        a("s_add_u32 s3, s3, s50")
        a(f"s_add_u32 s{S_OB}, s3, {WS_O}")
        a(f"s_lshl_b32 s{S_W2K}, s{S_WV}, 11")
        a("s_waitcnt lgkmcnt(0)")
        ws_shift(a, 4, self.wsbase)
        srd(a, S_WS, 4, 0x10000000 - self.wsbase)
        srd(a, S_WA, 6, 2097152)
        srd(a, S_WB, 46, 2097152)
        WD, OD = self.wd, self.od
        order = []
        for s in range(max(WD, OD)):
            if s < WD: order += self.dma_w(s)
            if s < OD: order += self.load_o(s)
        for i, l in enumerate(order):
            a(l)
        srd(a, S_OUT, 48, 4194304)
        self.pstamp(a, 1)
        a("v_lshrrev_b32 v13, 4, v12")
        a("v_bfe_u32 v14, v12, 2, 2")
        a("v_and_b32 v15, 1, v13")
        a("v_lshrrev_b32 v16, 1, v14")
        a("v_lshl_add_u32 v16, v15, 1, v16")
        a("v_lshlrev_b32 v16, 1, v16")
        a("v_bfe_u32 v17, v12, 1, 1")
        a("v_and_b32 v18, 1, v12")
        a("v_lshlrev_b32 v18, 3, v18")
        a(f"s_lshl_b32 s3, s{S_KH}, 12")
        a("v_add_u32 v18, s3, v18")
        a("v_lshrrev_b32 v19, 1, v13")
        a("v_lshlrev_b32 v19, 4, v19")
        a("v_lshl_add_u32 v19, v15, 2, v19")
        a("v_add_u32 v19, v19, v14")
        a("v_lshl_add_u32 v20, v13, 2, v14")
        for ct in range(4):
            a(f"v_add_u32 v21, {2 * ct}, v17")
            a("v_xor_b32 v21, v21, v16")
            a("v_lshl_add_u32 v21, v21, 4, v18")
            a(f"v_lshl_add_u32 v{V_WRA + ct}, v19, 7, v21")
            a(f"v_lshl_add_u32 v{V_WRB + ct}, v20, 7, v21")
        for r in range(32): a(f"v_mov_b32 v{ACC + r}, 0")
        a(f"s_waitcnt vmcnt({2 * WD + 4 * OD - 2})")
        a("s_barrier")
        for l in self.rd_w(0, 0): a(l)
        self.pstamp(a, 2)
        q = []
        for s in range(max(WD, OD)):
            if s < WD: q += [("W", s)] * 2
            if s < OD: q += [("o", s)] * 4
        def allowed(tag):
            idx = max((i for i, t in enumerate(q) if t == tag), default=-1)
            return len(q) - 1 - idx
        plan = []
        for s in range(16):
            top = allowed(("o", s))
            mid = allowed(("W", s + 1)) if s < 15 else 0
            iw, io = s + WD < 16, s + OD < 16
            plan.append((top, mid, iw, io))
            if iw: q += [("W", s + WD)] * 2
            if io: q += [("o", s + OD)] * 4
        self.plan = plan
        def emit(s):
            top, mid, iw, io = plan[s]
            self.stage(a, s, iw, io, min(mid, 63), min(top, 63), last=(s == 15))
        for s in range(16):
            emit(s)
        self.pstamp(a, 3)
        a("s_barrier")
        a(f"s_lshl_b32 s3, s{S_WV}, 12")
        a(f"v_add_u32 v2, s3, v{V_LANE16}")
        a(f"s_xor_b32 s3, s{S_WV}, 4")
        a("s_lshl_b32 s3, s3, 12")
        a(f"v_add_u32 v3, s3, v{V_LANE16}")
        a(f"s_cmp_eq_u32 s{S_KH}, 0")
        a("s_nop 7")
        a(f"s_cbranch_scc1 {n}_k0")
        for k in range(4): a(f"ds_write_b128 v2, {vr(ACC + 4 * k, 4)} offset:{k * 1024}")
        a("s_waitcnt lgkmcnt(0)")
        for r in range(16): a(f"v_mov_b32 v{ACC + r}, v{ACC + 16 + r}")
        a(f"s_branch {n}_k1")
        a.label(f"{n}_k0")
        for k in range(4): a(f"ds_write_b128 v2, {vr(ACC + 16 + 4 * k, 4)} offset:{k * 1024}")
        a.label(f"{n}_k1")
        a("s_waitcnt lgkmcnt(0)")
        a("s_barrier")
        for k in range(4): a(f"ds_read_b128 {vr(FW + 4 * k, 4)}, v3 offset:{k * 1024}")
        a("v_and_b32 v13, 15, v12")
        a(f"s_lshl_b32 s3, s{S_MT}, 7")
        a(f"s_lshl_b32 s50, s{S_TG}, 5")
        a("s_add_u32 s3, s3, s50")
        a(f"s_lshl_b32 s50, s{S_KH}, 4")
        a("s_add_u32 s3, s3, s50")
        a("v_add_u32 v13, s3, v13")
        a("v_lshlrev_b32 v13, 11, v13")
        a("v_bfe_u32 v14, v12, 4, 1")
        a("v_lshl_add_u32 v13, v14, 5, v13")
        a("v_lshrrev_b32 v14, 5, v12")
        a("v_lshl_add_u32 v13, v14, 4, v13")
        a(f"s_lshl_b32 s3, s{S_NT}, 7")
        a("s_waitcnt lgkmcnt(0)")
        for r in range(0, 16, 2):
            a(f"v_pk_add_f32 {vr(ACC + r, 2)}, {vr(ACC + r, 2)}, {vr(FW + r, 2)}")
        for pr in range(2):
            t = FW + 16 + 4 * pr
            for i2 in range(2):
                b = ACC + (pr * 2 + i2) * 4
                a(f"v_cvt_pk_bf16_f32 v{t + 2 * i2}, v{b}, v{b + 1}")
                a(f"v_cvt_pk_bf16_f32 v{t + 2 * i2 + 1}, v{b + 2}, v{b + 3}")
            a("s_nop 1")
            a(f"v_permlane16_swap_b32 v{t}, v{t + 2}")
            a(f"v_permlane16_swap_b32 v{t + 1}, v{t + 3}")
            a(f"buffer_store_dwordx4 {vr(t, 4)}, v13, s[{S_OUT}:{S_OUT+3}], s3 offen offset:{pr * 64} {self.store_mod}")
        if self.prof:
            a("s_waitcnt vmcnt(0)")
            self.pstamp(a, 4)
            self.pflush(a, 2, 8, S_WV, f"s[{S_WS}:{S_WS+3}]")
        a.label(f"{n}_end")
        a("s_endpgm")
        a.label(f"{n}_last")
        nv = 208 if self.prof else 152
        return kernel_header(n) + a.text() + kernel_desc(n, nv, nv)
if __name__ == "__main__":
    k = K3b("x"); k.gen(); print(k.plan)
```

```python
import sys
import hx
from k1d import K1d
from k2d import K2d as K2c, LDS_K2
from k3b import K3b, LDS_K3
from kpf import KPF
HDR = open("gated_mix__softmax_full_mha__linear_kernel_hedgehog__prompt.s.ref").read().split("; Override launch geometry")[0]
def build(k1=None, k2=None, k3=None, pf=None, cp=True):
    k1 = dict(k1 or {}); k2 = dict(k2 or dict(store_mod="sc1")); k3 = dict(k3 or dict(wd=4, od=3))
    if cp:
        k1["code"] = ("qkv_kernel", "outp_kernel_last", 65536)
        k2["code"] = ("attn_kernel", "attn_kernel_last", 16384)
        k3["code"] = ("outp_kernel", "outp_kernel_last", 16384)
    s = HDR
    s += "; Launches: QKV projections (+ gate, branch-B feature map of k), attention / linear attention, output projection.\n"
    if pf: s += "; @launch kernel=warm_kernel grid=(256,1,1) block=(256,1,1) lds=0\n"
    s += "; @launch kernel=qkv_kernel grid=(256,1,1) block=(256,1,1) lds=163840\n"
    s += f"; @launch kernel=attn_kernel grid=(256,1,1) block=(512,1,1) lds={LDS_K2}\n"
    s += f"; @launch kernel=outp_kernel grid=(256,1,1) block=(512,1,1) lds={LDS_K3}\n"
    s += '.amdgcn_target "amdgcn-amd-amdhsa--gfx950"\n.text\n'
    if pf: s += KPF("warm_kernel", pf).gen()
    s += K1d("qkv_kernel", **k1).gen()
    s += K2c("attn_kernel", **k2).gen()
    s += K3b("outp_kernel", **k3).gen()
    return s
BEST = dict(k1=dict(store_mod="sc1", pfin=1, pfstart=0, pf_first=2, rd_slots=[2 + (i * 45) // 28 for i in range(28)], dma_slots=[4, 9, 15, 21, 27, 33, 39, 45]),
            k2=dict(store_mod="sc1", sched=2), k3=dict(wd=4, od=3, store_mod="nt"))
def variant(**over):
    d = {k: dict(v) for k, v in BEST.items()}
    for k, v in over.items():
        if k == "all":
            for kk in d: d[kk].update(v)
        else: d[k].update(v)
    return build(**d)
if __name__ == "__main__":
    open("../probe/best.s", "w").write(variant())
    for mb in (64, 128, 208):
        open(f"../probe/ws{mb}.s", "w").write(variant(all=dict(wsbase=mb << 20)))
```

```python
K1 = dict(store_mod="sc1", pfin=1, pfstart=0, pf_first=2, rd_slots=[2 + (i * 45) // 28 for i in range(28)], dma_slots=[4, 9, 15, 21, 27, 33, 39, 45])
K2 = dict(store_mod="sc1", sched=2)
K3 = dict(wd=4, od=3, store_mod="nt")
K23 = dict(store_mod="sc1", sched=2, wd=4, od=3, out_mod="nt", prio=2)
K1W = dict(store_mod="sc1", pf_per_unit=3, split_dma=True, dma_gap=4, pfwo=False)
```

```python
from asmlib import *
from layout import *
from prof import Prof
from dbgstamp import dbg_setup, dbg_stamp

XST, NX = 16384, 3
WRING, WSL, NW = 49152, 24576, 4
L_WP = WRING + NW * WSL
LDS_K1 = 163840
ACC = 64
def acc(sg, ft, tk): return ACC + ((sg * 2 + ft) * 4 + tk) * 4
def fX(p, tk): return p * 64 + tk * 4
def fW(p, sg, ft): return p * 64 + 16 + (sg * 2 + ft) * 4
A_DUMMY, A_PF = 128, 152
V_XO, V_WO, V_XR, V_WR, V_PF, V_WR2 = 1, 5, 12, 14, 16, 26
S_X, S_W, S_WS, S_WP, S_GW = 8, 12, 16, 60, 64
S_MT, S_HP, S_WV, S_SOX, S_SOW, S_XDST, S_WDST, S_XRD, S_XDL, S_WRD, S_WDL, S_CNT, S_W8K, S_W3K = range(20, 34)
S_CWM, S_CXM, S_PF, S_PFO, S_PFS, S_TOK, S_HD, S_TH = 54, 55, 72, 76, 77, 78, 79, 88

class K1d(Prof):
    V_PROF = 60
    def __init__(self, name, prof=False, store_mod="sc1", pfwo=True, pfin=2, epi=True, bulk=True, code=None, dbg=None, ldw="", ldx="", pf_first=0, pfstart=None, order=0, diag=(), static=True, rd_slots=None, dma_slots=None, wsbase=0):
        self.name, self.prof, self.store_mod, self.pfwo, self.pfin, self.epi = name, prof, store_mod, pfwo, pfin, epi
        self.bulk = bulk and pfin > 0
        self.code = code
        self.wsbase = wsbase
        self.dbg = dbg
        self.ldw, self.ldx = ldw, ldx
        self.pf_first = pf_first
        self.order = order
        self.static = static
        self.rd_slots = rd_slots or list(range(1, 29))
        self.dma_slots = dma_slots or [30, 32, 34, 36, 38, 40, 42, 44]
        self.diag = set(diag)
        self.pfstart = pfin if pfstart is None else pfstart

    def mfmas(self, p):
        if self.order == 0: seq = [(tk, sg, ft) for tk in range(4) for sg in range(6) for ft in range(2)]
        elif self.order == 1: seq = [(tk, sg, ft) for tk in range(4) for sg in (0, 1, 3, 4, 2, 5) for ft in range(2)]
        elif self.order == 2: seq = [(tk, sg, ft) for sg in range(6) for ft in range(2) for tk in range(4)]
        elif self.order == 3: seq = [(tk, sg, ft) for sg in range(6) for ft in range(2) for tk in (range(4) if ft == 0 else range(3, -1, -1))]
        out = []
        for tk, sg, ft in seq:
            d = vr(acc(sg, ft, tk), 4)
            x, w = ar(fX(p, tk), 4), ar(fW(p, sg, ft), 4)
            a, b = (x, w) if sg % 3 == 2 else (w, x)
            out.append(f"v_mfma_f32_16x16x32_bf16 {d}, {a}, {b}, {d}")
        return out

    def rd(self, p, k2):
        xs = [f"ds_read_b128 {ar(fX(p, tk), 4)}, v{V_XR + k2} offset:{tk * 2048}" for tk in range(4)]
        w = [f"ds_read_b64_tr_b16 {ar(fW(p, sg, ft) + 2 * q, 2)}, v{V_WR + ft} offset:{sg * 4096 + q * 512}"
             for sg in range(6) for ft in range(2) for q in range(2)]
        return [xs[0]] + w + xs[1:]

    def dmaW(self):
        g = []
        for j in range(6):
            ins = []
            if j == 0: ins += [f"s_add_u32 m0, s{S_WDST}, s{S_W3K}", f"s_add_u32 s{S_WDST}, s{S_WDST}, {WSL}"]
            if j == 4: ins += ["s_add_u32 m0, m0, 4096", f"s_cmp_eq_u32 s{S_WDST}, {WRING + NW * WSL}", f"s_cselect_b32 s{S_WDST}, {WRING}, s{S_WDST}"]
            ins.append(f"buffer_load_dwordx4 v{V_WO + j}, s[{S_W}:{S_W+3}], s{S_SOW} offen offset:{(j & 3) * 1024} {self.ldw} lds")
            if j == 5: ins.append(f"s_add_u32 s{S_SOW}, s{S_SOW}, {32 * 6144}")
            g.append(ins)
        return g

    def dmaX(self, half):
        g = []
        for n in range(2):
            ins = []
            if n == 0:
                ins += [f"s_add_u32 m0, s{S_XDST}, s{S_W8K}"] + ([f"s_add_u32 m0, m0, 2048"] if half else []) + ["s_nop 0"]
            ins.append(f"buffer_load_dwordx4 v{V_XO + half * 2 + n}, s[{S_X}:{S_X+3}], s{S_SOX} offen offset:{n * 1024} {self.ldx} lds")
            if n == 1 and half == 1:
                ins += [f"s_add_u32 s{S_SOX}, s{S_SOX}, 128", f"s_add_u32 s{S_XDST}, s{S_XDST}, {XST}",
                        f"s_cmp_eq_u32 s{S_XDST}, {NX * XST}", f"s_cselect_b32 s{S_XDST}, 0, s{S_XDST}"]
            g.append(ins)
        return g

    def pf(self, bulk=False):
        if not self.pfin or (self.bulk and not bulk): return []
        return [[f"buffer_load_dwordx4 a[{A_PF}:{A_PF+3}], v{V_PF}, s[{S_PF}:{S_PF+3}], s{S_PFO} offen",
                 f"s_add_u32 s{S_PFO}, s{S_PFO}, s{S_PFS}"]]

    def wadv(self):
        return [f"s_add_u32 s{S_WRD}, s{S_WRD}, 1", f"s_cmp_eq_u32 s{S_WRD}, {NW}",
                f"s_cselect_b32 s{S_WDL}, s{S_CWM}, {WSL}", f"s_cselect_b32 s{S_WRD}, 0, s{S_WRD}",
                f"v_add_u32 v{V_WR}, s{S_WDL}, v{V_WR}", f"v_add_u32 v{V_WR + 1}, s{S_WDL}, v{V_WR + 1}"]
    def xdelta(self):
        return [f"s_add_u32 s{S_XRD}, s{S_XRD}, 1", f"s_cmp_eq_u32 s{S_XRD}, {NX}",
                f"s_cselect_b32 s{S_XDL}, s{S_CXM}, {XST}", f"s_cselect_b32 s{S_XRD}, 0, s{S_XRD}"]
    def xadv(self, k2):
        return [f"v_add_u32 v{V_XR + k2}, s{S_XDL}, v{V_XR + k2}"]

    def unit(self, a, p, reads, bar, dmas, pre=(), post=()):
        a("s_waitcnt lgkmcnt(0)")
        fill = []
        ins = list(pre)
        if bar is not None:
            ins += [f"s_waitcnt vmcnt({bar})", "s_barrier"]
        fill.append((0, ins))
        for i, r in enumerate(reads):
            fill.append((1 + i, [r]))
        for i, d in enumerate(dmas):
            fill.append((min(30 + 2 * i, 46), d))
        fill.append((47, list(post)))
        seq = interleave(self.mfmas(p), fill)
        D = self.diag
        if "nosalu" in D: seq = [l for l in seq if not l.startswith(("s_add", "s_cmp", "s_csel", "v_add", "s_nop"))]
        if "nodma" in D: seq = [l for l in seq if not l.startswith(("buffer_load", "s_waitcnt vm"))]
        if "nordw" in D: seq = [l for l in seq if not l.startswith("ds_read_b64_tr")]
        if "nordx" in D: seq = [l for l in seq if not l.startswith("ds_read_b128")]
        if "nobar" in D: seq = [l for l in seq if not l.startswith("s_barrier")]
        for l in seq:
            a(l)

    def iteration(self, a, g_odd, g_even, w_odd, w_even, last=False, pf=False):
        odd = (self.dmaW() + self.dmaX(1)) if g_odd else []
        even = self.dmaW() if g_even == "W" else (self.dmaW() + self.dmaX(0) + (self.pf() if pf else [])) if g_even else []
        self.unit(a, 0, self.rd(1, 1), w_odd, odd, pre=self.wadv() + self.xdelta() + self.xadv(0), post=self.xadv(1))
        if last:
            self.unit(a, 1, [], None, [])
        else:
            self.unit(a, 1, self.rd(0, 0), w_even, even, pre=self.wadv())

    def gen(self):
        a = Asm()
        n = self.name
        a("s_cmp_ge_u32 s2, 256")
        a(f"s_cbranch_scc1 {n}_end")
        self.pstamp(a, 0)
        a("s_load_dwordx4 s[44:47], s[0:1], 0")
        a("s_load_dwordx2 s[48:49], s[0:1], 32")
        a("s_load_dwordx2 s[52:53], s[0:1], 80")
        a("s_load_dwordx2 s[56:57], s[0:1], 40")
        a("s_load_dwordx2 s[58:59], s[0:1], 56")
        if self.code:
            first, last, nbytes = self.code
            code_prefetch(a, n, first, last, 4, 62, 58, 90)(-(-nbytes // 16384))
        a("s_and_b32 s3, s2, 7")
        a("s_lshr_b32 s4, s2, 3")
        a("s_and_b32 s5, s3, 1")
        a("s_lshl_b32 s5, s5, 3")
        a("s_and_b32 s6, s4, 7")
        a(f"s_add_u32 s{S_MT}, s5, s6")
        a("s_lshr_b32 s5, s3, 1")
        a("s_lshl_b32 s5, s5, 2")
        a("s_lshr_b32 s6, s4, 3")
        a(f"s_add_u32 s{S_HP}, s5, s6")
        a("v_lshrrev_b32 v17, 6, v0")
        a("v_and_b32 v18, 63, v0")
        a("v_lshrrev_b32 v19, 3, v18")
        a(f"v_readfirstlane_b32 s{S_WV}, v17")
        a("v_and_b32 v20, 7, v18")
        a("v_lshrrev_b32 v21, 4, v18")
        a(f"s_lshl_b32 s3, s{S_MT}, 7")
        a(f"s_lshl_b32 s4, s{S_WV}, 5")
        a("s_add_u32 s3, s3, s4")
        a("v_add_u32 v22, s3, v19")
        a("v_lshlrev_b32 v22, 11, v22")
        a("v_xor_b32 v23, v20, v21")
        a("v_xor_b32 v24, 4, v23")
        a("v_lshl_add_u32 v23, v23, 4, v22")
        a("v_lshl_add_u32 v24, v24, 4, v22")
        for nn in range(4):
            a(f"v_add_u32 v{V_XO + nn}, {nn * 16384 - (nn & 1) * 1024}, v{23 if nn % 2 == 0 else 24}")
        a("v_and_b32 v23, 1, v21")
        a("v_lshlrev_b32 v23, 1, v23")
        a("v_xor_b32 v23, v23, v20")
        a("s_mov_b32 s3, 6144")
        a("v_mul_lo_u32 v24, v19, s3")
        a(f"s_lshl_b32 s4, s{S_HP}, 7")
        a("v_add_u32 v24, s4, v24")
        a("v_lshl_add_u32 v26, v23, 4, v24")
        a("v_xor_b32 v25, 4, v23")
        a("v_lshl_add_u32 v25, v25, 4, v24")
        a(f"s_and_b32 s5, s{S_WV}, 1")
        a("s_cmp_eq_u32 s5, 0")
        for j in range(6):
            off = [((6 * par + j) >> 2) * 2048 + ((6 * par + j) & 3) * 8 * 6144 - (j & 3) * 1024 for par in range(2)]
            a(f"s_mov_b32 s3, {off[1]}")
            a(f"s_cselect_b32 s3, {off[0]}, s3")
            a(f"v_add_u32 v{V_WO + j}, s3, v{26 if j % 2 == 0 else 25}")
        a(f"s_lshl_b32 s{S_W8K}, s{S_WV}, 12")
        a(f"s_mul_i32 s{S_W3K}, s{S_WV}, 6144")
        a(f"s_and_b32 s{S_TH}, s{S_WV}, 1")
        a(f"s_lshr_b32 s3, s{S_WV}, 1")
        a(f"s_lshl_b32 s{S_HD}, s{S_HP}, 1")
        a(f"s_add_u32 s{S_HD}, s{S_HD}, s3")
        a(f"s_mov_b32 s{S_CWM}, {(-(NW - 1) * WSL) & 0xffffffff}")
        a(f"s_mov_b32 s{S_CXM}, {(-(NX - 1) * XST) & 0xffffffff}")
        a(f"s_mov_b32 s{S_SOX}, 0")
        a(f"s_mov_b32 s{S_SOW}, 0")
        a(f"s_mov_b32 s{S_XDST}, 0")
        a(f"s_mov_b32 s{S_WDST}, {WRING}")
        a(f"s_mov_b32 s{S_XRD}, 0")
        a(f"s_mov_b32 s{S_WRD}, 0")
        a("s_waitcnt lgkmcnt(0)")
        srd(a, S_X, 44, 2048 * 2048)
        a(f"s_cmp_lt_u32 s{S_WV}, 2")
        a("s_cselect_b32 s6, s46, s48")
        a("s_cselect_b32 s7, s47, s49")
        srd(a, S_W, 6, 1024 * 6144)
        ws_shift(a, 52, self.wsbase)
        srd(a, S_WS, 52, 0x10000000 - self.wsbase)
        srd(a, S_WP, 56, 65536)
        srd(a, S_GW, 58, 2048)
        self.zero_flags(a)
        self.side_loads(a)
        for k in range(self.pf_first):
            for l in self.pf(bulk=True)[0]: a(l)
        pro = self.dmaX(0) + self.dmaW() + self.dmaX(1) + self.dmaW() + self.dmaX(0) + self.dmaW() + self.dmaX(1)
        for grp in pro:
            for l in grp:
                if l.startswith("buffer_load"): a("s_nop 0")
                a(l)
        self.pstamp(a, 1)
        npf = 0
        if self.bulk:
            npf = 16 - self.pfstart - self.pf_first
            for k in range(npf):
                for l in self.pf(bulk=True)[0]: a(l)
        self.addr_reads(a)
        for r in range(ACC, 256):
            a(f"v_mov_b32 v{r}, 0")
        a(f"s_waitcnt vmcnt({26 + npf + self.pf_first})")
        self.gate_compute(a)
        npf += 1
        a(f"s_waitcnt vmcnt({16 + npf})")
        a("s_barrier")
        self.pstamp(a, 2)
        if self.static:
            for l in self.s_rd(0, 0): a(l)
            for grp in self.s_group(0):
                for l in grp:
                    if l.startswith("buffer_load"): a("s_nop 0")
                    a(l)
            self.static_loop(a, npf)
        else:
            for l in self.rd(0, 0): a(l)
            for grp in self.dmaW() + self.dmaX(0) + self.pf():
                for l in grp:
                    if l.startswith("buffer_load"): a("s_nop 0")
                    a(l)
            e = 1 if (self.pfin and not self.bulk) else 0
            first = 16 + npf
            self.iteration(a, True, True, first, first, pf=True)
            a(f"s_mov_b32 s{S_CNT}, 12")
            a(".p2align 6")
            a.label(f"{n}_loop")
            self.iteration(a, True, True, 16 + e, 16 + e, pf=True)
            a(f"s_sub_u32 s{S_CNT}, s{S_CNT}, 1")
            a(f"s_cmp_lg_u32 s{S_CNT}, 0")
            a(f"s_cbranch_scc1 {n}_loop")
            self.iteration(a, True, "W", 16, 16)
            self.iteration(a, False, False, 14, 6)
            self.iteration(a, False, False, 0, 0, last=True)
        self.pstamp(a, 3)
        if self.epi:
            self.epilogue(a)
        if self.prof:
            self.pstamp(a, 6)
            a("s_waitcnt vmcnt(0)")
            self.pstamp(a, 7)
            self.pflush(a, 0, 4, S_WV, f"s[{S_WS}:{S_WS+3}]")
        a.label(f"{n}_end")
        a("s_endpgm")
        a.label(f"{n}_last")
        nag = A_PF + 4
        return kernel_header(n) + a.text() + kernel_desc(n, 256 + nag, 256)

    def s_rd(self, p, u):
        xo = ((u >> 1) % NX) * XST
        xs = [f"ds_read_b128 {ar(fX(p, tk), 4)}, v{V_XR + (u & 1)} offset:{xo + tk * 2048}" for tk in range(4)]
        slot = u % NW
        base = V_WR if slot < 2 else V_WR2
        w = [f"ds_read_b64_tr_b16 {ar(fW(p, sg, ft) + 2 * q, 2)}, v{base + ft} offset:{(slot & 1) * WSL + sg * 4096 + q * 512}"
             for sg in range(6) for ft in range(2) for q in range(2)]
        return [xs[0]] + w + xs[1:]
    def s_dmaW(self, uw):
        g = []
        for j in range(6):
            ins = []
            if j == 0: ins += [f"s_add_u32 m0, s{S_W3K}, {WRING + (uw % NW) * WSL}", f"s_mov_b32 s{S_SOW}, {uw * 32 * 6144}"]
            if j == 4: ins += [f"s_add_u32 m0, s{S_W3K}, {WRING + (uw % NW) * WSL + 4096}", "s_nop 0"]
            ins.append(f"buffer_load_dwordx4 v{V_WO + j}, s[{S_W}:{S_W+3}], s{S_SOW} offen offset:{(j & 3) * 1024} {self.ldw} lds")
            g.append(ins)
        return g
    def s_dmaX(self, sx, half):
        g = []
        for n in range(2):
            ins = []
            if n == 0: ins += [f"s_add_u32 m0, s{S_W8K}, {(sx % NX) * XST + half * 2048}", f"s_mov_b32 s{S_SOX}, {sx * 128}"]
            ins.append(f"buffer_load_dwordx4 v{V_XO + half * 2 + n}, s[{S_X}:{S_X+3}], s{S_SOX} offen offset:{n * 1024} {self.ldx} lds")
            g.append(ins)
        return g
    def s_group(self, v):
        g = []
        if v + 3 < 32: g += self.s_dmaW(v + 3)
        if v // 2 + 2 < 16: g += self.s_dmaX(v // 2 + 2, v & 1)
        return g
    def static_loop(self, a, extra_first):
        q = []
        size = lambda v: len(self.s_group(v))
        for u in range(32):
            a("s_waitcnt lgkmcnt(0)")
            fill = []
            if u < 31:
                v = u + 1
                allowed = size(v - 2) + size(v - 1) if v >= 2 else None
                if v == 1: allowed = 8 + size(0) + extra_first
                elif v == 2: allowed = size(0) + size(1) + extra_first
                fill.append((0, [f"s_waitcnt vmcnt({allowed})", "s_barrier"]))
                slots = self.rd_slots
                for i, r in enumerate(self.s_rd((u + 1) & 1, u + 1)):
                    fill.append((slots[i], [r]))
                for i, d in enumerate(self.s_group(v)):
                    fill.append((self.dma_slots[i], d))
            seq = interleave(self.mfmas(u & 1), fill)
            for l in seq: a(l)

    def addr_reads(self, a):
        a("v_and_b32 v19, 15, v18")
        a("v_lshlrev_b32 v19, 7, v19")
        a(f"s_lshl_b32 s3, s{S_TH}, 13")
        a("v_add_u32 v19, s3, v19")
        a("v_lshrrev_b32 v20, 4, v18")
        a("v_bfe_u32 v21, v18, 1, 3")
        for k2 in range(2):
            a(f"v_add_u32 v22, {4 * k2}, v20")
            a("v_xor_b32 v22, v22, v21")
            a(f"v_lshl_add_u32 v{V_XR + k2}, v22, 4, v19")
        a("v_bfe_u32 v21, v18, 2, 2")
        a("v_lshl_add_u32 v22, v20, 3, v21")
        a("v_lshlrev_b32 v22, 7, v22")
        a("v_and_b32 v24, 1, v18")
        a("v_lshl_add_u32 v22, v24, 3, v22")
        a("v_bfe_u32 v24, v18, 1, 1")
        a(f"s_lshr_b32 s3, s{S_WV}, 1")
        a("s_lshl_b32 s3, s3, 2")
        a("v_add_u32 v24, s3, v24")
        a("v_and_b32 v23, 2, v21")
        a("v_bfe_u32 v25, v18, 4, 1")
        a("v_lshl_or_b32 v23, v25, 2, v23")
        for ft in range(2):
            a(f"v_add_u32 v25, {2 * ft}, v24")
            a("v_xor_b32 v25, v25, v23")
            a("v_lshl_add_u32 v25, v25, 4, v22")
            a(f"v_add_u32 v{V_WR + ft}, {WRING}, v25")
            a(f"v_add_u32 v{V_WR2 + ft}, {WRING + 2 * WSL}, v25")

    def zero_flags(self, a):
        n = self.name
        a("s_cmp_ge_u32 s2, 8")
        a(f"s_cbranch_scc1 {n}_noflag")
        a(f"s_cmp_lg_u32 s{S_WV}, 0")
        a(f"s_cbranch_scc1 {n}_noflag")
        a("s_lshl_b32 s3, s2, 12")
        a(f"s_add_u32 s3, s3, {WS_FLAG}")
        a("v_lshlrev_b32 v19, 2, v18")
        a("v_mov_b32 v20, 0")
        a(f"buffer_store_dword v20, v19, s[{S_WS}:{S_WS+3}], s3 offen sc1")
        a.label(f"{n}_noflag")

    def side_loads(self, a):
        n_side = 0
        a("v_lshlrev_b32 v19, 4, v18")
        a(f"s_lshl_b32 s3, s{S_HP}, 12")
        a(f"s_lshl_b32 s5, s{S_WV}, 10")
        a("s_add_u32 s3, s3, s5")
        a(f"s_add_u32 m0, s5, {L_WP}")
        a("s_nop 0")
        a(f"buffer_load_dwordx4 v19, s[{S_WP}:{S_WP+3}], s3 offen lds"); n_side += 1
        a("v_lshlrev_b32 v19, 5, v18")
        d = A_DUMMY
        a(f"buffer_load_dwordx4 a[{d}:{d+3}], v19, s[{S_GW}:{S_GW+3}], 0 offen")
        a(f"buffer_load_dwordx4 a[{d+4}:{d+7}], v19, s[{S_GW}:{S_GW+3}], 0 offen offset:16"); n_side += 2
        a(f"s_lshl_b32 s3, s{S_MT}, 7")
        a(f"s_lshl_b32 s4, s{S_HP}, 3")
        a("s_add_u32 s3, s3, s4")
        a(f"s_lshl_b32 s4, s{S_WV}, 1")
        a(f"s_add_u32 s{S_TOK}, s3, s4")
        a(f"s_lshl_b32 s3, s{S_TOK}, 11")
        for i in range(2):
            a(f"buffer_load_dwordx4 a[{d+8+8*i}:{d+11+8*i}], v19, s[{S_X}:{S_X+3}], s3 offen offset:{i * 2048}")
            a(f"buffer_load_dwordx4 a[{d+12+8*i}:{d+15+8*i}], v19, s[{S_X}:{S_X+3}], s3 offen offset:{i * 2048 + 16}"); n_side += 2
        self.n_side = n_side
        if self.pfin:
            D = self.pfstart
            a(f"s_mul_i32 s3, s2, 3")
            a(f"s_add_u32 s3, s3, s{S_WV}")
            a("s_cmp_ge_u32 s3, 384")
            a("s_cselect_b32 s4, 384, 0")
            a("s_cselect_b32 s6, s48, s46")
            a("s_cselect_b32 s7, s49, s47")
            a("s_sub_u32 s3, s3, s4")
            a("s_lshl_b32 s3, s3, 10")
            a("s_lshl_b32 s4, s2, 14")
            a(f"s_cmp_eq_u32 s{S_WV}, 3")
            a("s_cselect_b32 s6, s44, s6")
            a("s_cselect_b32 s7, s45, s7")
            a("s_cselect_b32 s3, s4, s3")
            a(f"s_mov_b32 s5, {64 * 6144}")
            a(f"s_cselect_b32 s{S_PFS}, 128, s5")
            a(f"s_mov_b32 s5, {1024 * 6144}")
            a(f"s_cselect_b32 s{S_PF+2}, {2048 * 2048}, s5")
            a(f"s_mul_i32 s4, s{S_PFS}, {D}")
            a(f"s_add_u32 s{S_PFO}, s3, s4")
            a(f"s_mov_b32 s{S_PF}, s6")
            a(f"s_and_b32 s{S_PF+1}, s7, 0xffff")
            a(f"s_mov_b32 s{S_PF+3}, 0x00020000")
            a("v_lshlrev_b32 v19, 4, v18")
            a("v_lshrrev_b32 v20, 3, v18")
            a("v_lshlrev_b32 v20, 11, v20")
            a("v_and_b32 v21, 7, v18")
            a("v_lshl_add_u32 v20, v21, 4, v20")
            a(f"s_cmp_eq_u32 s{S_WV}, 3")
            a("s_cselect_b64 vcc, -1, 0")
            a(f"v_cndmask_b32 v{V_PF}, v19, v20, vcc")

    def gate_compute(self, a):
        d = A_DUMMY
        for r in range(24): a(f"v_accvgpr_read_b32 v{32 + r}, a{d + r}")
        for i in range(2): a(f"v_mov_b32 v{24 + i}, 0")
        for k in range(8):
            for i in range(2):
                a(f"v_dot2_f32_bf16 v{24 + i}, v{40 + 8 * i + k}, v{32 + k}, v{24 + i}")
        for ctl in ("quad_perm:[1,0,3,2]", "quad_perm:[2,3,0,1]", "row_half_mirror", "row_mirror"):
            a("s_nop 1")
            for i in range(2):
                a(f"v_add_f32_dpp v{24 + i}, v{24 + i}, v{24 + i} {ctl} row_mask:0xf bank_mask:0xf")
        for sw in ("v_permlane16_swap_b32", "v_permlane32_swap_b32"):
            for i in range(2): a(f"v_mov_b32 v{28 + i}, v{24 + i}")
            a("s_nop 1")
            for i in range(2): a(f"{sw} v{24 + i}, v{28 + i}")
            a("s_nop 1")
            for i in range(2): a(f"v_add_f32 v{24 + i}, v{24 + i}, v{28 + i}")
        a("v_and_b32 v28, 1, v18")
        a("v_cmp_eq_u32 vcc, 1, v28")
        a("s_nop 1")
        a("v_cndmask_b32 v24, v24, v25, vcc")
        a(f"v_mul_f32 v24, {f32bits(-LOG2E)}, v24")
        a("v_exp_f32 v24, v24")
        a("s_nop 0")
        a("v_add_f32 v24, 1.0, v24")
        a("v_rcp_f32 v24, v24")
        a("v_lshlrev_b32 v28, 2, v18")
        a(f"s_lshl_b32 s3, s{S_TOK}, 2")
        a(f"s_add_u32 s3, s3, {WS_G}")
        a("s_mov_b64 exec, 3")
        a(f"buffer_store_dword v24, v28, s[{S_WS}:{S_WS+3}], s3 offen {self.store_mod}")
        a("s_mov_b64 exec, -1")

    def prefetch_wo(self, a):
        a("s_load_dwordx2 s[80:81], s[0:1], 16")
        a("s_load_dwordx2 s[82:83], s[0:1], 48")
        a("s_lshl_b32 s3, s2, 13")
        a(f"s_lshl_b32 s4, s{S_WV}, 11")
        a("s_add_u32 s3, s3, s4")
        a("s_waitcnt lgkmcnt(0)")
        for k, p in enumerate((80, 82)):
            srd(a, 84, p, 2097152)
            for i in range(2):
                a(f"buffer_load_dwordx4 a[{96 + 8 * k + 4 * i}:{96 + 8 * k + 4 * i + 3}], v15, s[84:87], s3 offen offset:{i * 1024}")

    def epilogue(self, a):
        ws = f"s[{S_WS}:{S_WS+3}]"
        sm = self.store_mod
        RS = 136
        a("v_and_b32 v18, 63, v0")
        a("v_lshrrev_b32 v19, 4, v18")
        a("v_and_b32 v20, 15, v18")
        a("v_bfe_u32 v21, v18, 2, 2")
        a("v_lshl_add_u32 v21, v19, 2, v21")
        a(f"v_mul_u32_u24 v23, {RS}, v21")
        a("v_lshlrev_b32 v21, 6, v21")
        a("v_and_b32 v22, 3, v18")
        a("v_lshl_add_u32 v21, v22, 3, v21")
        a(f"s_lshr_b32 s3, s{S_WV}, 1")
        a("s_lshl_b32 s3, s3, 11")
        a(f"s_add_u32 s3, s3, {L_WP}")
        a("v_add_u32 v21, s3, v21")
        for ft in range(2):
            for q in range(2):
                a(f"ds_read_b64_tr_b16 {ar(4 * ft + 2 * q, 2)}, v21 offset:{q * 1024 + ft * 32}")
        a(f"s_mul_i32 s3, s{S_WV}, {64 * RS}")
        a("v_lshl_add_u32 v23, v22, 3, v23")
        a("v_add_u32 v23, s3, v23")
        a(f"v_mul_u32_u24 v22, {RS}, v20")
        a("v_lshl_add_u32 v22, v19, 3, v22")
        a("v_add_u32 v22, s3, v22")
        a("v_mov_b32 v24, 0x3f803f80")
        for r in range(4): a(f"v_accvgpr_write_b32 a{8 + r}, v24")
        def pack(b0, b1):
            return [f"v_cvt_pk_bf16_f32 v{b0}, v{b0}, v{b0 + 1}", f"v_cvt_pk_bf16_f32 v{b0 + 1}, v{b0 + 2}, v{b0 + 3}",
                    f"v_cvt_pk_bf16_f32 v{b0 + 2}, v{b1}, v{b1 + 1}", f"v_cvt_pk_bf16_f32 v{b0 + 3}, v{b1 + 2}, v{b1 + 3}"]
        KB = lambda t: acc(4, 0, t)
        VB = lambda dt, T: acc(5, dt, 2 * T)
        for tk in range(4):
            for l in pack(acc(4, 0, tk), acc(4, 1, tk)): a(l)
        for tk in range(4):
            for l in pack(acc(3, 0, tk), acc(3, 1, tk)): a(l)
        a(f"s_lshl_b32 s3, s{S_HD}, 17")
        a(f"s_lshl_b32 s4, s{S_MT}, 2")
        a(f"s_lshl_b32 s5, s{S_TH}, 1")
        a("s_add_u32 s4, s4, s5")
        a("s_lshl_b32 s4, s4, 11")
        a("s_add_u32 s38, s3, s4")
        a(f"s_add_u32 s39, s38, {4 << 20}")
        a(f"s_add_u32 s42, s38, {8 << 20}")
        a(f"s_lshl_b32 s4, s{S_MT}, 3")
        a(f"s_lshl_b32 s5, s{S_TH}, 2")
        a("s_add_u32 s4, s4, s5")
        a("s_lshl_b32 s4, s4, 10")
        a("s_add_u32 s43, s3, s4")
        a(f"s_add_u32 s43, s43, {WS_QB}")
        a("v_lshrrev_b32 v21, 1, v19")
        a("v_lshlrev_b32 v21, 10, v21")
        a("v_and_b32 v24, 1, v19")
        a("v_lshl_add_u32 v21, v24, 9, v21")
        a("v_lshl_add_u32 v17, v20, 4, v21")
        a("v_and_b32 v24, 7, v20")
        a("v_lshrrev_b32 v25, 3, v20")
        a("v_lshl_add_u32 v24, v25, 4, v24")
        a("v_lshl_add_u32 v16, v24, 4, v21")
        a("v_lshlrev_b32 v15, 4, v18")
        l2e = f32bits(LOG2E)
        c = f32bits(LOG2E / 32 ** 0.5)
        a(f"s_mov_b32 s36, {l2e}")
        a(f"s_mov_b32 s37, {l2e}")
        a(f"s_mov_b32 s40, {f32bits(-LOG2E)}")
        a(f"s_mov_b32 s41, {f32bits(-LOG2E)}")
        a(f"s_mov_b32 s6, {c}")
        a(f"s_mov_b32 s7, {c}")
        a("s_waitcnt lgkmcnt(0)")
        a("s_barrier")
        self.pstamp(a, 4)
        P = lambda t, i: (208 if t < 2 else 176) + 8 * (t & 1) + i
        EP = lambda t, i: (80 if t < 2 else 112) + 8 * (t & 1) + i
        BP = lambda t: 24 + 4 * t
        BM = lambda t: 40 + 4 * t
        SS = lambda t, sg: (132 if sg == 0 else 228) + 8 * t
        mx, mn, tm = (lambda t: 2 + 2 * t), (lambda t: (10, 12, 14, 62)[t]), (lambda t: 56 + t)
        T4 = range(4)
        main = []
        for t in T4:
            for ft in range(2):
                main.append(f"v_mfma_f32_16x16x32_bf16 {vr(P(t, 4 * ft), 4)}, {ar(4 * ft, 4)}, {vr(KB(t), 4)}, 0")
        side = []
        for tk in range(4):
            side.append((pack(acc(1, 0, tk), acc(1, 1, tk)),
                         f"buffer_store_dwordx4 {vr(acc(1, 0, tk), 4)}, v16, {ws}, s39 offen offset:{(tk >> 1) * 2048 + (tk & 1) * 128} {sm}"))
        for T in range(2):
            for ft in range(2):
                side.append((pack(acc(2, ft, 2 * T), acc(2, ft, 2 * T + 1)),
                             f"buffer_store_dwordx4 {vr(acc(2, ft, 2 * T), 4)}, v17, {ws}, s42 offen offset:{T * 2048 + ft * 256} {sm}"))
        for tk in range(4):
            mul = [f"v_pk_mul_f32 {vr(acc(0, ft, tk) + h, 2)}, {vr(acc(0, ft, tk) + h, 2)}, s[6:7]" for ft in range(2) for h in (0, 2)]
            side.append((mul + pack(acc(0, 0, tk), acc(0, 1, tk)),
                         f"buffer_store_dwordx4 {vr(acc(0, 0, tk), 4)}, v17, {ws}, s38 offen offset:{(tk >> 1) * 2048 + (tk & 1) * 256} {sm}"))
        for tk in range(4):
            side.append(([],
                         f"buffer_store_dwordx4 {vr(acc(3, 0, tk), 4)}, v15, {ws}, s43 offen offset:{tk * 1024} {sm}"))
        for l in main: a(l)
        for ins, st in side:
            for l in ins: a(l)
        for dt in range(2):
            for T in range(2):
                for l in pack(acc(5, dt, 2 * T), acc(5, dt, 2 * T + 1)): a(l)
        stores = [st for ins, st in side]
        body = []
        B = body.append
        for t in T4:
            B(f"v_max3_f32 v{mx(t)}, v{P(t,0)}, v{P(t,1)}, v{P(t,2)}")
            B(f"v_min3_f32 v{mn(t)}, v{P(t,0)}, v{P(t,1)}, v{P(t,2)}")
        for i in (3, 5):
            for t in T4:
                B(f"v_max3_f32 v{mx(t)}, v{mx(t)}, v{P(t,i)}, v{P(t,i+1)}")
                B(f"v_min3_f32 v{mn(t)}, v{mn(t)}, v{P(t,i)}, v{P(t,i+1)}")
        for t in T4:
            B(f"v_max_f32 v{mx(t)}, v{mx(t)}, v{P(t,7)}")
            B(f"v_min_f32 v{mn(t)}, v{mn(t)}, v{P(t,7)}")
        for t in T4: B(f"v_sub_f32 v{mn(t)}, 0, v{mn(t)}")
        B("s_nop 1")
        for t in T4: B(f"v_permlane32_swap_b32 v{mx(t)}, v{mn(t)}")
        B("s_nop 1")
        for t in T4: B(f"v_max_f32 v{mx(t)}, v{mx(t)}, v{mn(t)}")
        for t in T4: B(f"v_mov_b32 v{tm(t)}, v{mx(t)}")
        B("s_nop 1")
        for t in T4: B(f"v_permlane16_swap_b32 v{mx(t)}, v{tm(t)}")
        B("s_nop 1")
        for t in T4: B(f"v_max_f32 v{mx(t)}, v{mx(t)}, v{tm(t)}")
        for t in T4: B(f"v_mov_b32 v{mn(t)}, v{mx(t)}")
        B("s_nop 1")
        for t in T4: B(f"v_permlane32_swap_b32 v{mx(t)}, v{mn(t)}")
        B("s_nop 1")
        for t in T4:
            B(f"v_mul_f32 v{mx(t)}, s40, v{mx(t)}")
            B(f"v_mul_f32 v{mn(t)}, s40, v{mn(t)}")
        for t in T4:
            for i in range(0, 8, 2):
                B(f"v_pk_fma_f32 {vr(EP(t,i), 2)}, {vr(P(t,i), 2)}, s[36:37], {vr(mx(t), 2)} op_sel_hi:[1,1,0]")
                B(f"v_pk_fma_f32 {vr(P(t,i), 2)}, {vr(P(t,i), 2)}, s[40:41], {vr(mn(t), 2)} op_sel_hi:[1,1,0]")
        for t in T4:
            for i in range(8):
                B(f"v_exp_f32 v{EP(t,i)}, v{EP(t,i)}")
                B(f"v_exp_f32 v{P(t,i)}, v{P(t,i)}")
        B("s_nop 0")
        for t in T4:
            for k in range(4):
                B(f"v_cvt_pk_bf16_f32 v{BP(t) + k}, v{EP(t,2*k)}, v{EP(t,2*k+1)}")
                B(f"v_cvt_pk_bf16_f32 v{BM(t) + k}, v{P(t,2*k)}, v{P(t,2*k+1)}")
        B("s_nop 1")
        for t in T4:
            B(f"v_mfma_f32_16x16x32_bf16 {vr(SS(t, 0), 4)}, {ar(8, 4)}, {vr(BP(t), 4)}, 0")
            B(f"v_mfma_f32_16x16x32_bf16 {vr(SS(t, 1), 4)}, {ar(8, 4)}, {vr(BM(t), 4)}, 0")
        B("s_nop 7")
        for t in T4:
            B(f"v_rcp_f32 v{SS(t, 0)}, v{SS(t, 0)}")
            B(f"v_rcp_f32 v{SS(t, 1)}, v{SS(t, 1)}")
        B("s_nop 0")
        for t in T4:
            for i in range(0, 8, 2):
                B(f"v_pk_mul_f32 {vr(EP(t,i), 2)}, {vr(EP(t,i), 2)}, {vr(SS(t, 0), 2)} op_sel_hi:[1,0]")
                B(f"v_pk_mul_f32 {vr(P(t,i), 2)}, {vr(P(t,i), 2)}, {vr(SS(t, 1), 2)} op_sel_hi:[1,0]")
        for t in T4:
            for k in range(4):
                B(f"v_cvt_pk_bf16_f32 v{BP(t) + k}, v{EP(t,2*k)}, v{EP(t,2*k+1)}")
                B(f"v_cvt_pk_bf16_f32 v{BM(t) + k}, v{P(t,2*k)}, v{P(t,2*k+1)}")
            row = t * 16 * RS
            for ft in range(2):
                B(f"ds_write_b64 v22, {vr(BP(t) + 2 * ft, 2)} offset:{row + ft * 32}")
                B(f"ds_write_b64 v22, {vr(BM(t) + 2 * ft, 2)} offset:{row + 64 + ft * 32}")
        step = len(body) // (len(stores) + 1)
        out, k = [], 0
        for i, l in enumerate(body):
            out.append(l)
            nxt = body[i + 1] if i + 1 < len(body) else ""
            if k < len(stores) and i >= (k + 1) * step - step // 2 and not l.startswith("s_nop") and not nxt.startswith(("s_nop", "v_permlane", "v_mfma")):
                out.append(stores[k]); k += 1
        out += stores[k:]
        for l in out: a(l)
        self.pstamp(a, 5)
        if self.pfwo: self.prefetch_wo(a)
        a("s_waitcnt lgkmcnt(0)")
        AF, KV = 16, 48
        for sf in range(4):
            for T in range(2):
                for q in range(2):
                    a(f"ds_read_b64_tr_b16 {ar(AF + (sf * 2 + T) * 4 + 2 * q, 2)}, v23 offset:{(32 * T + 16 * q) * RS + sf * 32}")
        XB = 40960
        a(f"s_mul_i32 s3, s{S_WV}, 12288")
        a(f"s_add_u32 s3, s3, {XB}")
        a("v_add_u32 v20, s3, v15")
        a(f"s_and_b32 s4, s{S_WV}, 2")
        a(f"s_mul_i32 s4, s4, 12288")
        a(f"s_mul_i32 s5, s{S_TH}, 6144")
        a("s_add_u32 s4, s4, s5")
        a(f"s_add_u32 s4, s4, {XB}")
        a("v_add_u32 v21, s4, v15")
        for sf in range(4):
            a(f"s_waitcnt lgkmcnt({(3 - sf) * 4})")
            for T in range(2):
                A = ar(AF + (sf * 2 + T) * 4, 4)
                for dt in range(3):
                    d = ar(KV + (sf * 3 + dt) * 4, 4)
                    Bop = vr(VB(dt, T), 4) if dt < 2 else ar(8, 4)
                    a(f"v_mfma_f32_16x16x32_bf16 {d}, {A}, {Bop}, {d if T else 0}")
        a(f"s_lshl_b32 s3, s{S_HD}, 4")
        a(f"s_add_u32 s3, s3, s{S_MT}")
        a("s_lshl_b32 s3, s3, 14")
        a(f"s_add_u32 s3, s3, {WS_KVP}")
        a(f"s_lshl_b32 s4, s{S_TH}, 12")
        a("s_add_u32 s4, s4, s3")
        a(f"s_lshl_b32 s6, s{S_TH}, 7")
        a("s_add_u32 s6, s6, s3")
        a("s_add_u32 s6, s6, 8192")
        a("v_lshlrev_b32 v19, 4, v19")
        for k in range(12): a(f"ds_write_b128 v20, {ar(KV + 4 * k, 4)} offset:{k * 1024}")
        a("s_waitcnt lgkmcnt(0)")
        a("s_barrier")
        for w in range(2):
            for k in range(6):
                a(f"ds_read_b128 {vr(24 + (w * 6 + k) * 4, 4) if w == 0 else vr(80 + k * 4 if k < 4 else 112 + (k - 4) * 4, 4)}, v21 offset:{w * 12288 + k * 1024}")
        a("s_waitcnt lgkmcnt(0)")
        oth = lambda i: (80 + i if i < 16 else 112 + i - 16)
        for i in range(0, 24, 2):
            a(f"v_pk_add_f32 {vr(24 + i, 2)}, {vr(24 + i, 2)}, {vr(oth(i), 2)}")
        for ft in range(2):
            for dt in range(2):
                a(f"buffer_store_dwordx4 {vr(24 + (ft * 3 + dt) * 4, 4)}, v15, {ws}, s4 offen offset:{(ft * 2 + dt) * 1024} {sm}")
            a(f"buffer_store_dwordx4 {vr(24 + (ft * 3 + 2) * 4, 4)}, v19, {ws}, s6 offen offset:{ft * 64} {sm}")
```

```python
from asmlib import *
from layout import *
import k2d
from k2d import K2d, S_WS, S_WV, S_QG, S_KH, S_QB, S_H, V_LANE16

NSLOT, SLOT = 8, 16384
LDS_K23 = max(k2d.LDS_K2, NSLOT * SLOT)
V_WO = 247
V_WRA, V_WRB, V_WRH = 4, 8, 140
FW, ACC, FO = 16, 48, 80
S_WA, S_WB, S_OUT, S_DBG = 12, 16, 52, 56
S_MT, S_NT, S_SOO, S_SOW, S_W2K, S_OB = 60, 61, 62, 63, 64, 65
SPIN_LIMIT = 1 << 22

class K23(K2d):
    def __init__(self, name, wd=4, od=3, out_mod="nt", touch=False, sleep=2, **kw):
        super().__init__(name, **kw)
        self.wd, self.od, self.out_mod, self.touch = wd, od, out_mod, touch
        self.sleep = sleep

    def dma_w(self, st):
        srd_ = S_WA if st < 8 else S_WB
        return [f"s_add_u32 m0, s{S_W2K}, {(st % NSLOT) * SLOT}", f"s_mov_b32 s{S_SOW}, {(st & 7) << 18}",
                f"buffer_load_dwordx4 v{V_WO}, s[{srd_}:{srd_+3}], s{S_SOW} offen lds",
                f"buffer_load_dwordx4 v{V_WO + 1}, s[{srd_}:{srd_+3}], s{S_SOW} offen offset:1024 lds"]

    def load_o(self, st):
        buf = st % self.od
        r = []
        for b in range(2):
            r += [f"s_add_u32 s{S_SOO}, s{S_OB}, {(4 * st + 2 * b) * 131072}",
                  f"buffer_load_dwordx4 {vr(FO + 16 * buf + 8 * b, 4)}, v{V_LANE16}, s[{S_WS}:{S_WS+3}], s{S_SOO} offen sc1",
                  f"buffer_load_dwordx4 {vr(FO + 16 * buf + 8 * b + 4, 4)}, v{V_LANE16}, s[{S_WS}:{S_WS+3}], s{S_SOO} offen offset:1024 sc1"]
        return r

    def rd_w(self, st, b):
        part, slot = st >> 3, st % NSLOT
        base = V_WRH if slot >= 4 else (V_WRA if part == 0 else V_WRB)
        qoff = 1024 if part == 0 else 2048
        return [f"ds_read_b64_tr_b16 {vr(FW + 16 * b + 4 * ct + 2 * q, 2)}, v{base + ct} offset:{(slot & 3) * SLOT + b * 8192 + q * qoff}"
                for ct in range(4) for q in range(2)]

    def omfmas(self, buf, b):
        return [f"v_mfma_f32_16x16x32_bf16 {vr(ACC + (i * 4 + ct) * 4, 4)}, {vr(FW + 16 * b + 4 * ct, 4)}, {vr(FO + 16 * buf + 8 * b + 4 * i, 4)}, {vr(ACC + (i * 4 + ct) * 4, 4)}"
                for ct in range(4) for i in range(2)]

    def ostage(self, a, st, issue_w, issue_o, vm_mid, vm_top, last=False):
        buf = st % self.od
        a(f"s_waitcnt vmcnt({vm_top}) lgkmcnt(0)")
        for l in interleave(self.omfmas(buf, 0), [(i, [r]) for i, r in enumerate(self.rd_w(st, 1))]): a(l)
        a("s_waitcnt lgkmcnt(0)")
        m = self.omfmas(buf, 1)
        if last:
            for l in m: a(l)
            return
        pre = []
        if st + 1 in (4, 12):
            nxt = V_WRA if (st + 1) >> 3 == 0 else V_WRB
            pre = [f"v_add_u32 v{V_WRH + c}, {4 * SLOT}, v{nxt + c}" for c in range(4)]
        fill = [(0, pre + [f"s_waitcnt vmcnt({vm_mid})", "s_barrier"])]
        for i, r in enumerate(self.rd_w(st + 1, 0)): fill.append((1 + i * 6 // 8, [r]))
        fill.append((7, self.dma_w(st + self.wd) if issue_w else []))
        for l in interleave(m, fill): a(l)
        if issue_o:
            for l in self.load_o(st + self.od): a(l)

    def entry_extra(self, a):
        a("s_load_dwordx2 s[66:67], s[0:1], 16")
        a("s_load_dwordx2 s[68:69], s[0:1], 48")
        a("s_load_dwordx2 s[72:73], s[0:1], 64")

    def after_decision(self, a):
        assert self.wd <= 4
        a("s_and_b32 s3, s2, 7")
        a("s_lshr_b32 s6, s2, 3")
        a("s_lshr_b32 s7, s3, 1")
        a("s_lshl_b32 s7, s7, 2")
        a(f"s_and_b32 s{S_MT}, s6, 3")
        a(f"s_add_u32 s{S_MT}, s{S_MT}, s7")
        a("s_and_b32 s7, s3, 1")
        a("s_lshl_b32 s7, s7, 3")
        a(f"s_lshr_b32 s{S_NT}, s6, 2")
        a(f"s_add_u32 s{S_NT}, s{S_NT}, s7")
        srd(a, S_WA, 66, 2097152)
        srd(a, S_WB, 68, 2097152)
        srd(a, S_OUT, 72, 4194304)
        t0, t1, t2 = 240, 241, 242
        a(f"v_and_b32 v{t0}, 63, v0")
        a(f"v_lshrrev_b32 v{t1}, 3, v{t0}")
        a(f"v_and_b32 v{t2}, 7, v{t0}")
        a(f"v_bfe_u32 v{t0}, v{t0}, 4, 2")
        a(f"v_lshlrev_b32 v{t0}, 1, v{t0}")
        a(f"v_xor_b32 v{t2}, v{t2}, v{t0}")
        a(f"v_lshlrev_b32 v{t1}, 11, v{t1}")
        a(f"v_lshl_add_u32 v{t1}, v{t2}, 4, v{t1}")
        a(f"s_lshl_b32 s3, s{S_NT}, 7")
        a(f"v_add_u32 v{t1}, s3, v{t1}")
        a(f"s_lshl_b32 s3, s{S_WV}, 15")
        a(f"v_add_u32 v{V_WO}, s3, v{t1}")
        a(f"s_add_u32 s3, s3, {16384 - 1024}")
        a(f"v_add_u32 v{V_WO + 1}, s3, v{t1}")
        a(f"s_lshl_b32 s{S_W2K}, s{S_WV}, 11")
        for st in range(self.wd):
            for l in self.dma_w(st): a(l)

    def project(self, a):
        n = self.name
        WD, OD = self.wd, self.od
        a("s_waitcnt vmcnt(0)")
        a("s_barrier")
        self.pstamp(a, 6)
        a(f"s_cmp_lg_u32 s{S_WV}, 0")
        a(f"s_cbranch_scc1 {n}_nosig")
        a("s_mov_b64 exec, 1")
        a(f"s_lshl_b32 s3, s{S_QB}, 12")
        a(f"s_lshl_b32 s6, s{S_H}, 2")
        a("s_add_u32 s3, s3, s6")
        a(f"s_add_u32 s3, s3, {WS_FLAG}")
        a("v_mov_b32 v2, 0")
        a("v_mov_b32 v3, 1")
        a(f"buffer_store_dword v3, v2, s[{S_WS}:{S_WS+3}], s3 offen sc1")
        a("s_mov_b64 exec, 0xffffffff")
        a(f"s_lshr_b32 s3, s{S_MT}, 1")
        a("s_lshl_b32 s3, s3, 12")
        a(f"s_add_u32 s3, s3, {WS_FLAG}")
        a("v_and_b32 v2, 31, v0")
        a("v_lshlrev_b32 v2, 2, v2")
        a(f"s_mov_b32 s6, {SPIN_LIMIT}")
        a.label(f"{n}_poll")
        a(f"buffer_load_dword v3, v2, s[{S_WS}:{S_WS+3}], s3 offen sc1")
        a("s_waitcnt vmcnt(0)")
        a("v_cmp_eq_u32 vcc, 1, v3")
        a("s_sub_u32 s6, s6, 1")
        a("s_cmp_eq_u32 s6, 0")
        a(f"s_cbranch_scc1 {n}_got")
        a("s_cmp_eq_u32 vcc_lo, -1")
        a(f"s_cbranch_scc1 {n}_got")
        a(f"s_sleep {self.sleep}")
        a(f"s_branch {n}_poll")
        a.label(f"{n}_got")
        a("s_mov_b64 exec, -1")
        a.label(f"{n}_nosig")
        a("v_and_b32 v12, 63, v0")
        a(f"s_lshl_b32 s3, s{S_MT}, 3")
        a(f"s_lshl_b32 s6, s{S_QG}, 1")
        a("s_add_u32 s3, s3, s6")
        a("s_lshl_b32 s3, s3, 10")
        a(f"s_lshl_b32 s6, s{S_KH}, 17")
        a("s_add_u32 s3, s3, s6")
        a(f"s_add_u32 s{S_OB}, s3, {WS_O}")
        a("v_lshrrev_b32 v13, 4, v12")
        a("v_bfe_u32 v14, v12, 2, 2")
        a("v_and_b32 v15, 1, v13")
        a("v_lshrrev_b32 v16, 1, v14")
        a("v_lshl_add_u32 v16, v15, 1, v16")
        a("v_lshlrev_b32 v16, 1, v16")
        a("v_bfe_u32 v17, v12, 1, 1")
        a("v_and_b32 v18, 1, v12")
        a("v_lshlrev_b32 v18, 3, v18")
        a(f"s_lshl_b32 s3, s{S_KH}, 12")
        a("v_add_u32 v18, s3, v18")
        a("v_lshrrev_b32 v19, 1, v13")
        a("v_lshlrev_b32 v19, 4, v19")
        a("v_lshl_add_u32 v19, v15, 2, v19")
        a("v_add_u32 v19, v19, v14")
        a("v_lshl_add_u32 v20, v13, 2, v14")
        for ct in range(4):
            a(f"v_add_u32 v21, {2 * ct}, v17")
            a("v_xor_b32 v21, v21, v16")
            a("v_lshl_add_u32 v21, v21, 4, v18")
            a(f"v_lshl_add_u32 v{V_WRA + ct}, v19, 7, v21")
            a(f"v_lshl_add_u32 v{V_WRB + ct}, v20, 7, v21")
        for r in range(32): a(f"v_mov_b32 v{ACC + r}, 0")
        a("s_barrier")
        self.pstamp(a, 7)
        q = []
        for s in range(OD):
            for l in self.load_o(s): a(l)
            q += [("o", s)] * 4
        for l in self.rd_w(0, 0): a(l)
        def allowed(tag):
            idx = max((i for i, t in enumerate(q) if t == tag), default=None)
            return len(q) if idx is None else len(q) - 1 - idx
        for s in range(16):
            top = allowed(("o", s))
            mid = allowed(("W", s + 1)) if s < 15 else 0
            iw, io = s + WD < 16, s + OD < 16
            self.ostage(a, s, iw, io, min(mid, 63), min(top, 63), last=(s == 15))
            if iw: q += [("W", s + WD)] * 2
            if io: q += [("o", s + OD)] * 4
        self.pstamp(a, 8)
        a("s_barrier")
        a(f"s_lshl_b32 s3, s{S_WV}, 12")
        a(f"v_add_u32 v2, s3, v{V_LANE16}")
        a(f"s_xor_b32 s3, s{S_WV}, 4")
        a("s_lshl_b32 s3, s3, 12")
        a(f"v_add_u32 v3, s3, v{V_LANE16}")
        a(f"s_cmp_eq_u32 s{S_KH}, 0")
        a("s_nop 7")
        a(f"s_cbranch_scc1 {n}_k0")
        for k in range(4): a(f"ds_write_b128 v2, {vr(ACC + 4 * k, 4)} offset:{k * 1024}")
        a("s_waitcnt lgkmcnt(0)")
        for r in range(16): a(f"v_mov_b32 v{ACC + r}, v{ACC + 16 + r}")
        a(f"s_branch {n}_k1")
        a.label(f"{n}_k0")
        for k in range(4): a(f"ds_write_b128 v2, {vr(ACC + 16 + 4 * k, 4)} offset:{k * 1024}")
        a.label(f"{n}_k1")
        a("s_waitcnt lgkmcnt(0)")
        a("s_barrier")
        for k in range(4): a(f"ds_read_b128 {vr(FW + 4 * k, 4)}, v3 offset:{k * 1024}")
        a("v_and_b32 v13, 15, v12")
        a(f"s_lshl_b32 s3, s{S_MT}, 7")
        a(f"s_lshl_b32 s6, s{S_QG}, 5")
        a("s_add_u32 s3, s3, s6")
        a(f"s_lshl_b32 s6, s{S_KH}, 4")
        a("s_add_u32 s3, s3, s6")
        a("v_add_u32 v13, s3, v13")
        a("v_lshlrev_b32 v13, 11, v13")
        a("v_bfe_u32 v14, v12, 4, 1")
        a("v_lshl_add_u32 v13, v14, 5, v13")
        a("v_lshrrev_b32 v14, 5, v12")
        a("v_lshl_add_u32 v13, v14, 4, v13")
        a(f"s_lshl_b32 s3, s{S_NT}, 7")
        a("s_waitcnt lgkmcnt(0)")
        for r in range(0, 16, 2):
            a(f"v_pk_add_f32 {vr(ACC + r, 2)}, {vr(ACC + r, 2)}, {vr(FW + r, 2)}")
        for pr in range(2):
            t = FW + 16 + 4 * pr
            for i2 in range(2):
                b = ACC + (pr * 2 + i2) * 4
                a(f"v_cvt_pk_bf16_f32 v{t + 2 * i2}, v{b}, v{b + 1}")
                a(f"v_cvt_pk_bf16_f32 v{t + 2 * i2 + 1}, v{b + 2}, v{b + 3}")
            a("s_nop 1")
            a(f"v_permlane16_swap_b32 v{t}, v{t + 2}")
            a(f"v_permlane16_swap_b32 v{t + 1}, v{t + 3}")
            a(f"buffer_store_dwordx4 {vr(t, 4)}, v13, s[{S_OUT}:{S_OUT+3}], s3 offen offset:{pr * 64} {self.out_mod}")
```

```python
from asmlib import *
from layout import *
from prof import Prof
from dbgstamp import dbg_setup, dbg_stamp

MARGIN = 90.0
TPS, TPW = 8, 4
STG = TPS * 4096
LDS_MISC = 2 * STG
L_KV, L_Z, L_WP, L_VOTE, L_SPARE = 0, 4096, 6144, 8192, 8448
L_XO = LDS_MISC + 8448 + 1024
LDS_K2 = L_XO + 8 * 5120

V_LANE16, V_T0, V_T1, V_T2, V_T3, V_G, V_RD = 1, 2, 3, 4, 5, 6, 7
VQ, VC, VS, VP, VKF, VVF, VO, VL, VONE = 8, 24, 56, 88, 96, 112, 128, 160, 168
S_WS, S_K, S_V = 8, 12, 16
S_H, S_QB, S_WV, S_SOFF, S_CNT, S_MODE, S_WOFF, S_QG, S_KH = 20, 21, 22, 23, 24, 25, 26, 27, 32
S_KVP, S_PKV, S_PZ = 44, 48, 49
VKA, VPT, VQB, VGB, V_ZOFF = 176, 184, 200, 244, 246

class K2d(Prof):
    V_PROF = 250
    def __init__(self, name, prof=False, store_mod="nt", force_fallback=False, margin=MARGIN, sched=1, bapply=True, prio=0, diag=(), code=None, dbg=None, wsbase=0):
        self.name, self.prof, self.store_mod = name, prof, store_mod
        self.force_fallback, self.margin, self.sched, self.bapply, self.prio = force_fallback, margin, sched, bapply, prio
        self.diag = set(diag)
        self.code = code
        self.wsbase = wsbase
        self.dbg = dbg

    def dma_piece(self, slot, i):
        kv, n = i >> 1, i & 1
        srd_ = S_K if kv == 0 else S_V
        ins = []
        if n == 0:
            ins += [f"s_add_u32 m0, s{S_WOFF}, {slot * STG + kv * (STG // 2)}", "s_nop 0"]
        ins.append(f"buffer_load_dwordx4 v{V_LANE16}, s[{srd_}:{srd_+3}], s{S_SOFF} offen offset:{n * 1024} lds")
        if i == 3:
            ins.append(f"s_add_u32 s{S_SOFF}, s{S_SOFF}, {STG // 2}")
        return ins
    def dma_stage(self, slot):
        return [l for i in range(4) for l in self.dma_piece(slot, i)]

    @staticmethod
    def koff(j): return (j // TPW) * STG + (j % TPW) * 2048
    def rdK(self, j):
        b = VKF + 8 * (j & 1); j %= 2 * TPW
        return [f"ds_read_b128 {vr(b + 4 * st, 4)}, v{V_RD} offset:{self.koff(j) + st * 1024}" for st in range(2)]
    def rdV(self, j):
        b = VVF + 8 * (j & 1); j %= 2 * TPW
        return [f"ds_read_b128 {vr(b + 4 * st, 4)}, v{V_RD} offset:{self.koff(j) + STG // 2 + st * 1024}" for st in range(2)]

    def unit(self, a, j, qt):
        u = 2 * j + qt
        s, sn = VS + 16 * (u & 1), VS + 16 * ((u + 1) & 1)
        jn, qn = (j + (qt == 1), qt ^ 1)
        kn = VKF + 8 * (jn & 1)
        jp, qp = (j - (qt == 0), qt ^ 1)
        v, vp = VVF + 8 * (j & 1), VVF + 8 * (jp & 1)
        e = lambda r: f"v_exp_f32 v{s + r}, v{s + r}"
        c = lambda k: f"v_cvt_pk_bf16_f32 v{VP + k}, v{s + 2 * k}, v{s + 2 * k + 1}"
        O, Op, Lq, Lp = VO + 16 * qt, VO + 16 * qp, VL + 4 * qt, VL + 4 * qp
        Sa = f"v_mfma_f32_32x32x16_bf16 {vr(sn, 16)}, {vr(kn, 4)}, {vr(VQ + 8 * qn, 4)}, {vr(VC + 16 * qn, 16)}"
        Sb = f"v_mfma_f32_32x32x16_bf16 {vr(sn, 16)}, {vr(kn + 4, 4)}, {vr(VQ + 8 * qn + 4, 4)}, {vr(sn, 16)}"
        PVa = f"v_mfma_f32_32x32x16_bf16 {vr(O, 16)}, {vr(v, 4)}, {vr(VP, 4)}, {vr(O, 16)}"
        PVb = f"v_mfma_f32_32x32x16_bf16 {vr(Op, 16)}, {vr(vp + 4, 4)}, {vr(VP + 4, 4)}, {vr(Op, 16)}"
        La = f"v_mfma_f32_16x16x32_bf16 {vr(Lq, 4)}, {vr(VONE, 4)}, {vr(VP, 4)}, {vr(Lq, 4)}"
        Lb = f"v_mfma_f32_16x16x32_bf16 {vr(Lp, 4)}, {vr(VONE, 4)}, {vr(VP + 4, 4)}, {vr(Lp, 4)}"
        rd = self.rdK(j + 1) if qt == 0 else self.rdV(j + 1)
        top = ["s_waitcnt lgkmcnt(0)"]
        jj = j % TPW
        if jj == TPW - 1 and qt == 0:
            top += ["s_waitcnt vmcnt(0)", "s_barrier"]
            if self.bapply: top += self.part_add() + self.part_loads()
        k = (2 * jj + qt - 2 * (TPW - 1)) % (2 * TPW)
        dm = []
        if k < 4:
            dm = self.dma_piece((((j + 1) // TPW) + 1) & 1, k)
        r0, r1 = rd[:1], rd[1:]
        if self.sched == 1:
            seq = (top + [e(0)] + r0 + [e(1)] + r1 + [e(2), e(3), Sa, c(0), c(1), e(4), e(5), Lb, e(6), e(7), c(2), c(3), Sb,
                   e(8)] + dm + [e(9), e(10), e(11), PVb, c(4), c(5), e(12), e(13), PVa, e(14), e(15), c(6), c(7), La])
        elif self.sched == 2:
            seq = (top + r0 + r1 + [e(0), e(1), e(2), e(3), Sa, c(0), c(1), e(4), e(5), Lb, e(6), e(7), c(2), c(3), Sb] + dm +
                   [e(8), e(9), e(10), e(11), PVb, c(4), c(5), e(12), e(13), PVa, e(14), e(15), c(6), c(7), La])
        D = self.diag
        if "nord" in D: seq = [l for l in seq if not l.startswith("ds_read")]
        if "noL" in D: seq = [l for l in seq if "16x16x32" not in l]
        for l in seq: a(l)

    def halfmax(self, a, x, t):
        a(f"v_mov_b32 v{t}, v{x}")
        a("s_nop 1")
        a(f"v_permlane32_swap_b32 v{x}, v{t}")
        a("s_nop 1")
        a(f"v_max_f32 v{x}, v{x}, v{t}")

    NT = 2
    def part_loads(self):
        kvp = f"s[{S_KVP}:{S_KVP+3}]"
        r = []
        for b in range(2):
            r += [f"buffer_load_dwordx4 {vr(VPT + 8 * b, 4)}, v{V_LANE16}, {kvp}, s{S_PKV} offen",
                  f"buffer_load_dwordx4 {vr(VPT + 8 * b + 4, 4)}, v{V_ZOFF}, {kvp}, s{S_PZ} offen",
                  f"s_add_u32 s{S_PKV}, s{S_PKV}, {KVP_STRIDE}", f"s_add_u32 s{S_PZ}, s{S_PZ}, {KVP_STRIDE}"]
        return r
    def part_add(self):
        return [f"v_pk_add_f32 {vr(VKA + r, 2)}, {vr(VKA + r, 2)}, {vr(VPT + 8 * b + r, 2)}" for b in range(2) for r in range(0, 8, 2)]
    def part_reset(self):
        return ([f"s_lshl_b32 s{S_PKV}, s{S_WV}, 10", f"s_and_b32 s{S_PZ}, s{S_WV}, 3", f"s_lshl_b32 s{S_PZ}, s{S_PZ}, 6",
                 f"s_add_u32 s{S_PZ}, s{S_PZ}, 8192"] + [f"v_mov_b32 v{VKA + r}, 0" for r in range(8)])

    def b_loads(self, a):
        ws = f"s[{S_WS}:{S_WS+3}]"
        a(f"s_lshl_b32 s6, s{S_QB}, 4")
        a(f"s_lshl_b32 s7, s{S_WV}, 1")
        a("s_add_u32 s6, s6, s7")
        a("s_lshl_b32 s7, s6, 10")
        a(f"s_lshl_b32 s3, s{S_H}, 17")
        a("s_add_u32 s7, s7, s3")
        a(f"s_add_u32 s7, s7, {WS_QB}")
        for t in range(self.NT):
            a(f"buffer_load_dwordx4 {vr(VQB + 4 * t, 4)}, v{V_LANE16}, {ws}, s7 offen offset:{t * 1024}")
        a("s_lshl_b32 s7, s6, 6")
        a(f"s_add_u32 s7, s7, {WS_G}")
        a(f"v_and_b32 v{V_T0}, 15, v{V_T1}")
        a(f"v_lshlrev_b32 v{V_T0}, 2, v{V_T0}")
        for t in range(self.NT):
            a(f"buffer_load_dword v{VGB + t}, v{V_T0}, {ws}, s7 offen offset:{t * 64}")
        a(f"s_lshl_b32 s6, s{S_H}, 11")
        a(f"s_lshl_b32 s7, s{S_WV}, 10")
        a("s_add_u32 s6, s6, s7")
        a(f"s_cmp_ge_u32 s{S_WV}, 2")
        a("s_cselect_b32 s6, 0x10000, s6")
        a(f"s_cselect_b32 s7, {L_SPARE - L_WP}, s7")
        a(f"s_add_u32 m0, s7, {LDS_MISC + L_WP}")
        a("s_nop 0")
        a(f"buffer_load_dwordx4 v{V_LANE16}, s[28:31], s6 offen lds")

    def b_publish(self, a):
        for k in range(4):
            a(f"v_cvt_pk_bf16_f32 v{VPT + k}, v{VKA + 2 * k}, v{VKA + 2 * k + 1}")
        a(f"v_and_b32 v{V_T1}, 63, v0")
        a(f"v_lshlrev_b32 v{V_T0}, 3, v{V_T1}")
        a(f"v_add_u32 v{V_T0}, {LDS_MISC}, v{V_T0}")
        a(f"s_lshl_b32 s6, s{S_WV}, 9")
        a(f"v_add_u32 v{V_T3}, s6, v{V_T0}")
        a(f"ds_write_b64 v{V_T3}, {vr(VPT, 2)} offset:{L_KV}")
        a(f"s_and_b32 s6, s{S_WV}, 3")
        a(f"s_lshl_b32 s6, s6, 9")
        a(f"v_add_u32 v{V_T3}, s6, v{V_T0}")
        a(f"ds_write_b64 v{V_T3}, {vr(VPT + 2, 2)} offset:{L_Z}")

    def b_apply(self, a):
        ws = f"s[{S_WS}:{S_WS+3}]"
        NT = self.NT
        a(f"v_and_b32 v{V_T1}, 63, v0")
        a(f"v_lshlrev_b32 v{V_T0}, 3, v{V_T1}")
        a(f"v_add_u32 v{V_T0}, {LDS_MISC}, v{V_T0}")
        for sg in range(2):
            for dt in range(2):
                for ft in range(2):
                    t = (sg * 2 + ft) * 2 + dt
                    a(f"ds_read_b64 {vr(24 + (sg * 2 + dt) * 4 + 2 * ft, 2)}, v{V_T0} offset:{L_KV + t * 512}")
            for ft in range(2):
                a(f"ds_read_b64 {vr(40 + sg * 4 + 2 * ft, 2)}, v{V_T0} offset:{L_Z + (sg * 2 + ft) * 512}")
        a(f"v_lshrrev_b32 v{V_T2}, 4, v{V_T1}")
        a(f"v_bfe_u32 v{V_T3}, v{V_T1}, 2, 2")
        a(f"v_lshl_add_u32 v{V_T2}, v{V_T2}, 2, v{V_T3}")
        a(f"v_lshlrev_b32 v{V_T2}, 6, v{V_T2}")
        a(f"v_and_b32 v{V_T3}, 3, v{V_T1}")
        a(f"v_lshl_add_u32 v{V_T2}, v{V_T3}, 3, v{V_T2}")
        a(f"v_add_u32 v{V_T2}, {LDS_MISC}, v{V_T2}")
        for ft in range(2):
            for q in range(2):
                a(f"ds_read_b64_tr_b16 {vr(48 + 4 * ft + 2 * q, 2)}, v{V_T2} offset:{L_WP + q * 1024 + ft * 32}")
        a(f"v_mov_b32 v56, 0x3f803f80")
        for r in range(1, 4): a(f"v_mov_b32 v{56 + r}, v56")
        a("s_waitcnt lgkmcnt(0)")
        for t in range(NT):
            for ft in range(2):
                a(f"v_mfma_f32_16x16x32_bf16 {vr(64 + 8 * t + 4 * ft, 4)}, {vr(48 + 4 * ft, 4)}, {vr(VQB + 4 * t, 4)}, 0")
        a("s_nop 7")
        P = lambda t, i: 64 + 8 * t + i
        MX, MN, TM = 96, 100, 104
        T = range(NT)
        for t in T:
            a(f"v_max3_f32 v{MX+2*t}, v{P(t,0)}, v{P(t,1)}, v{P(t,2)}")
            a(f"v_min3_f32 v{MN+2*t}, v{P(t,0)}, v{P(t,1)}, v{P(t,2)}")
        for i in (3, 5):
            for t in T:
                a(f"v_max3_f32 v{MX+2*t}, v{MX+2*t}, v{P(t,i)}, v{P(t,i+1)}")
                a(f"v_min3_f32 v{MN+2*t}, v{MN+2*t}, v{P(t,i)}, v{P(t,i+1)}")
        for t in T:
            a(f"v_max_f32 v{MX+2*t}, v{MX+2*t}, v{P(t,7)}")
            a(f"v_min_f32 v{MN+2*t}, v{MN+2*t}, v{P(t,7)}")
        for t in T: a(f"v_sub_f32 v{MN+2*t}, 0, v{MN+2*t}")
        a("s_nop 1")
        for t in T: a(f"v_permlane32_swap_b32 v{MX+2*t}, v{MN+2*t}")
        a("s_nop 1")
        for t in T: a(f"v_max_f32 v{MX+2*t}, v{MX+2*t}, v{MN+2*t}")
        for t in T: a(f"v_mov_b32 v{TM+2*t}, v{MX+2*t}")
        a("s_nop 1")
        for t in T: a(f"v_permlane16_swap_b32 v{MX+2*t}, v{TM+2*t}")
        a("s_nop 1")
        for t in T: a(f"v_max_f32 v{MX+2*t}, v{MX+2*t}, v{TM+2*t}")
        for t in T: a(f"v_mov_b32 v{MN+2*t}, v{MX+2*t}")
        a("s_nop 1")
        for t in T: a(f"v_permlane32_swap_b32 v{MX+2*t}, v{MN+2*t}")
        a("s_nop 1")
        EP = lambda t, i: 176 + 8 * t + i
        a(f"s_mov_b32 s36, {f32bits(LOG2E)}")
        a(f"s_mov_b32 s37, {f32bits(LOG2E)}")
        a(f"s_mov_b32 s38, {f32bits(-LOG2E)}")
        a(f"s_mov_b32 s39, {f32bits(-LOG2E)}")
        for t in T:
            a(f"v_mul_f32 v{MX+2*t}, s38, v{MX+2*t}")
            a(f"v_mul_f32 v{MN+2*t}, s38, v{MN+2*t}")
        for t in T:
            for i in range(0, 8, 2):
                a(f"v_pk_fma_f32 {vr(EP(t,i), 2)}, {vr(P(t,i), 2)}, s[36:37], {vr(MX+2*t, 2)} op_sel_hi:[1,1,0]")
                a(f"v_pk_fma_f32 {vr(P(t,i), 2)}, {vr(P(t,i), 2)}, s[38:39], {vr(MN+2*t, 2)} op_sel_hi:[1,1,0]")
        for t in T:
            for i in range(8):
                a(f"v_exp_f32 v{EP(t,i)}, v{EP(t,i)}")
                a(f"v_exp_f32 v{P(t,i)}, v{P(t,i)}")
        BP, BM = 96, 112
        if hasattr(self, "b_mid"): self.b_mid(a)
        a("s_nop 0")
        for t in T:
            for k in range(4):
                a(f"v_cvt_pk_bf16_f32 v{BP + 4*t + k}, v{EP(t,2*k)}, v{EP(t,2*k+1)}")
                a(f"v_cvt_pk_bf16_f32 v{BM + 4*t + k}, v{P(t,2*k)}, v{P(t,2*k+1)}")
        a("s_nop 1")
        for t in T:
            R = 176 + 32 * t
            bp, bm = vr(BP + 4 * t, 4), vr(BM + 4 * t, 4)
            for dt in range(2):
                a(f"v_mfma_f32_16x16x32_bf16 {vr(R + 4 * dt, 4)}, {vr(24 + 4 * dt, 4)}, {bp}, 0")
                a(f"v_mfma_f32_16x16x32_bf16 {vr(R + 8 + 4 * dt, 4)}, {vr(32 + 4 * dt, 4)}, {bm}, 0")
            a(f"v_mfma_f32_16x16x32_bf16 {vr(R + 16, 4)}, {vr(40, 4)}, {bp}, 0")
            a(f"v_mfma_f32_16x16x32_bf16 {vr(R + 20, 4)}, {vr(44, 4)}, {bm}, 0")
            a(f"v_mfma_f32_16x16x32_bf16 {vr(R + 24, 4)}, {vr(56, 4)}, {bp}, 0")
            a(f"v_mfma_f32_16x16x32_bf16 {vr(R + 28, 4)}, {vr(56, 4)}, {bm}, 0")
        a("s_nop 7")
        for t in T:
            R = 176 + 32 * t
            a(f"v_rcp_f32 v{R + 24}, v{R + 24}")
            a(f"v_rcp_f32 v{R + 28}, v{R + 28}")
        a("s_nop 0")
        for t in T:
            R = 176 + 32 * t
            a(f"v_mul_f32 v{R + 16}, v{R + 16}, v{R + 24}")
            a(f"v_sub_f32 v{R + 17}, 1.0, v{VGB + t}")
            a(f"v_fma_f32 v{R + 16}, v{R + 20}, v{R + 28}, v{R + 16}")
            a(f"v_add_f32 v{R + 16}, {f32bits(1e-6)}, v{R + 16}")
        for t in T:
            a(f"v_rcp_f32 v{176 + 32 * t + 16}, v{176 + 32 * t + 16}")
        a("s_nop 0")
        for t in T:
            R = 176 + 32 * t
            a(f"v_mul_f32 v{R + 16}, v{R + 16}, v{R + 17}")
            a(f"v_mul_f32 v{R + 24}, v{R + 24}, v{R + 16}")
            a(f"v_mul_f32 v{R + 28}, v{R + 28}, v{R + 16}")
        for t in T:
            R = 176 + 32 * t
            for i in range(8): a(f"v_mul_f32 v{R + i}, v{R + i}, v{R + 24}")
            for i in range(8): a(f"v_fma_f32 v{R + i}, v{R + 8 + i}, v{R + 28}, v{R + i}")
        for t in T:
            R = 176 + 32 * t
            for k in range(4):
                a(f"v_cvt_pk_bf16_f32 v{R + 20 + k}, v{R + 2 * k}, v{R + 2 * k + 1}")
            a(f"s_lshl_b32 s6, s{S_QB}, 4")
            a(f"s_lshl_b32 s7, s{S_WV}, 1")
            a("s_add_u32 s6, s6, s7")
            a(f"s_add_u32 s6, s6, {t}")
            a("s_lshl_b32 s6, s6, 10")
            a(f"s_lshl_b32 s7, s{S_H}, 17")
            a("s_add_u32 s6, s6, s7")
            a(f"s_add_u32 s6, s6, {WS_O + 32 * 131072}")
            a(f"buffer_store_dwordx4 {vr(R + 20, 4)}, v{V_LANE16}, {ws}, s6 offen {self.store_mod}")

    def gen(self):
        a = Asm()
        n = self.name
        ws = f"s[{S_WS}:{S_WS+3}]"
        a("s_cmp_ge_u32 s2, 256")
        a(f"s_cbranch_scc1 {n}_end")
        self.pstamp(a, 0)
        if self.code:
            first, last, nbytes = self.code
            code_prefetch(a, n, first, last, 8, 240, 242, 90)(-(-nbytes // 32768))
        a("s_load_dwordx2 s[4:5], s[0:1], 80")
        a("s_load_dwordx2 s[34:35], s[0:1], 40")
        if hasattr(self, "entry_extra"): self.entry_extra(a)
        a("s_and_b32 s3, s2, 7")
        a("s_lshr_b32 s6, s2, 3")
        a(f"s_lshl_b32 s{S_H}, s3, 2")
        a("s_lshr_b32 s7, s6, 3")
        a(f"s_add_u32 s{S_H}, s{S_H}, s7")
        a(f"s_and_b32 s{S_QB}, s6, 7")
        a("v_lshrrev_b32 v2, 6, v0")
        a(f"v_and_b32 v{V_T1}, 63, v0")
        a(f"v_lshlrev_b32 v{V_LANE16}, 4, v{V_T1}")
        a(f"v_readfirstlane_b32 s{S_WV}, v2")
        a("s_waitcnt lgkmcnt(0)")
        ws_shift(a, 4, self.wsbase)
        srd(a, S_WS, 4, 0x10000000 - self.wsbase)
        srd(a, 28, 34, 65536)
        a(f"s_lshl_b32 s3, s{S_H}, 17")
        for S, off in ((S_K, WS_KA), (S_V, WS_VA)):
            a(f"s_add_u32 s6, s3, {off}")
            a(f"s_add_u32 s{S}, s4, s6")
            a(f"s_addc_u32 s{S+1}, s5, 0")
            a(f"s_and_b32 s{S+1}, s{S+1}, 0xffff")
            a(f"s_mov_b32 s{S+2}, 131072")
            a(f"s_mov_b32 s{S+3}, 0x00020000")
        a(f"s_lshl_b32 s{S_WOFF}, s{S_WV}, 11")
        a(f"s_and_b32 s{S_QG}, s{S_WV}, 3")
        a(f"s_lshr_b32 s{S_KH}, s{S_WV}, 2")
        a(f"s_lshl_b32 s6, s{S_KH}, 13")
        a(f"v_add_u32 v{V_RD}, s6, v{V_LANE16}")
        a(f"s_lshl_b32 s6, s{S_QB}, 3")
        a(f"s_lshl_b32 s7, s{S_QG}, 1")
        a("s_add_u32 s6, s6, s7")
        a("s_lshl_b32 s7, s6, 11")
        a(f"s_lshl_b32 s3, s{S_H}, 17")
        a("s_add_u32 s7, s7, s3")
        a(f"s_add_u32 s7, s7, {WS_QA}")
        a(f"s_mov_b32 s{S_MODE}, 0")
        a(f"s_mov_b32 s{S_SOFF}, s{S_WOFF}")
        for l in self.dma_piece(0, 0) + self.dma_piece(0, 1): a(l)
        for i in range(4):
            a(f"buffer_load_dwordx4 {vr(VQ + 4 * i, 4)}, v{V_LANE16}, {ws}, s7 offen offset:{i * 1024}")
        for l in self.dma_piece(0, 2) + self.dma_piece(0, 3): a(l)
        a(f"s_add_u32 s6, s6, s{S_KH}")
        a("s_lshl_b32 s7, s6, 7")
        a(f"s_add_u32 s7, s7, {WS_G}")
        a(f"v_and_b32 v{V_T0}, 31, v{V_T1}")
        a(f"v_lshlrev_b32 v{V_T0}, 2, v{V_T0}")
        a(f"buffer_load_dword v{V_G}, v{V_T0}, {ws}, s7 offen")
        nbg = 1
        if self.bapply:
            a(f"s_lshl_b32 s6, s{S_H}, 18")
            a(f"s_add_u32 s6, s6, {WS_KVP}")
            a(f"s_add_u32 s{S_KVP}, s4, s6")
            a(f"s_addc_u32 s{S_KVP+1}, s5, 0")
            a(f"s_and_b32 s{S_KVP+1}, s{S_KVP+1}, 0xffff")
            a(f"s_mov_b32 s{S_KVP+2}, {NKVP * KVP_STRIDE}")
            a(f"s_mov_b32 s{S_KVP+3}, 0x00020000")
            a(f"v_lshrrev_b32 v{V_ZOFF}, 4, v{V_T1}")
            a(f"v_lshlrev_b32 v{V_ZOFF}, 4, v{V_ZOFF}")
            for l in self.part_reset(): a(l)
            for r in range(16): a(f"v_mov_b32 v{VPT + r}, 0")
        self.nbg = nbg
        self.pstamp(a, 1)
        a(f"v_lshrrev_b32 v{V_T0}, 4, v{V_T1}")
        a(f"v_lshrrev_b32 v{V_T2}, 2, v{V_T1}")
        a(f"v_xor_b32 v{V_T0}, v{V_T0}, v{V_T2}")
        a(f"v_and_b32 v{V_T0}, 1, v{V_T0}")
        a(f"v_mov_b32 v{V_T2}, 0x3f803f80")
        a(f"v_cmp_eq_u32 vcc, 0, v{V_T0}")
        a("s_nop 1")
        a(f"v_cndmask_b32 v{VONE}, 0, v{V_T2}, vcc")
        for r in range(1, 4): a(f"v_mov_b32 v{VONE + r}, v{VONE}")
        if hasattr(self, "early_setup"): self.early_setup(a)
        a(f"s_waitcnt vmcnt({self.nbg})")
        a(f"s_branch {n}_first")
        a.label(f"{n}_restart")
        a(f"s_mov_b32 s{S_SOFF}, s{S_WOFF}")
        for l in self.dma_stage(0): a(l)
        if self.bapply:
            for l in self.part_reset(): a(l)
            for r in range(16): a(f"v_mov_b32 v{VPT + r}, 0")
        a("s_waitcnt vmcnt(0)")
        a.label(f"{n}_first")
        for r in range(32): a(f"v_mov_b32 v{VO + r}, 0")
        for r in range(8): a(f"v_mov_b32 v{VL + r}, 0")
        for r in range(8): a(f"v_mov_b32 v{VP + r}, 0")
        for r in range(4): a(f"v_mov_b32 v{VVF + 8 + 4 + r}, 0")
        a("s_barrier")
        self.pstamp(a, 2)
        for l in self.dma_piece(1, 0) + self.dma_piece(1, 1): a(l)
        if self.bapply:
            a(f"s_cmp_lg_u32 s{S_MODE}, 0")
            a(f"s_cbranch_scc1 {n}_nobl")
            self.b_loads(a)
            a.label(f"{n}_nobl")
        a(f"s_cmp_lg_u32 s{S_MODE}, 0")
        a(f"s_cbranch_scc1 {n}_havemax")
        a(f"ds_read_b128 {vr(VKF, 4)}, v{V_LANE16}")
        a(f"ds_read_b128 {vr(VKF + 4, 4)}, v{V_LANE16} offset:1024")
        a("s_waitcnt lgkmcnt(0)")
        for qt in range(2):
            s = VS + 16 * qt
            a(f"v_mfma_f32_32x32x16_bf16 {vr(s, 16)}, {vr(VKF, 4)}, {vr(VQ + 8 * qt, 4)}, 0")
            a(f"v_mfma_f32_32x32x16_bf16 {vr(s, 16)}, {vr(VKF + 4, 4)}, {vr(VQ + 8 * qt + 4, 4)}, {vr(s, 16)}")
        a("s_nop 15")
        for qt in range(2):
            s, x = VS + 16 * qt, V_T0 + 2 * qt
            a(f"v_max3_f32 v{x}, v{s}, v{s + 1}, v{s + 2}")
            for r in range(3, 15, 2):
                a(f"v_max3_f32 v{x}, v{x}, v{s + r}, v{s + r + 1}")
            a(f"v_max_f32 v{x}, v{x}, v{s + 15}")
        for qt in range(2):
            x = V_T0 + 2 * qt
            self.halfmax(a, x, V_T3)
            a(f"v_add_f32 v{x}, {f32bits(self.margin)}, v{x}")
            a(f"v_sub_f32 v{VC + 16 * qt}, 0, v{x}")
            for r in range(1, 16): a(f"v_mov_b32 v{VC + 16 * qt + r}, v{VC + 16 * qt}")
        a.label(f"{n}_havemax")
        for l in self.rdK(0) + self.rdV(0): a(l)
        a("s_waitcnt lgkmcnt(0)")
        a(f"v_mfma_f32_32x32x16_bf16 {vr(VS, 16)}, {vr(VKF, 4)}, {vr(VQ, 4)}, {vr(VC, 16)}")
        a(f"v_mfma_f32_32x32x16_bf16 {vr(VS, 16)}, {vr(VKF + 4, 4)}, {vr(VQ + 4, 4)}, {vr(VS, 16)}")
        a("s_nop 7")
        a(f"s_mov_b32 s{S_CNT}, {32 // (2 * TPW)}")
        if self.prio:
            a(f"s_cmp_ge_u32 s{S_WV}, 4")
            a(f"s_cbranch_scc0 {n}_noprio")
            a("s_setprio 1")
            a.label(f"{n}_noprio")
        self.pstamp(a, 3)
        a("s_nop 3")
        a(".p2align 6")
        a.label(f"{n}_loop")
        for j in range(2 * TPW):
            for qt in range(2):
                self.unit(a, j, qt)
        a(f"s_sub_u32 s{S_CNT}, s{S_CNT}, 1")
        a(f"s_cmp_lg_u32 s{S_CNT}, 0")
        a(f"s_cbranch_scc1 {n}_loop")
        a("s_nop 1")
        a(f"v_mfma_f32_32x32x16_bf16 {vr(VO + 16, 16)}, {vr(VVF + 8 + 4, 4)}, {vr(VP + 4, 4)}, {vr(VO + 16, 16)}")
        a(f"v_mfma_f32_16x16x32_bf16 {vr(VL + 4, 4)}, {vr(VONE, 4)}, {vr(VP + 4, 4)}, {vr(VL + 4, 4)}")
        if self.prio: a("s_setprio 0")
        self.pstamp(a, 4)
        a("s_waitcnt vmcnt(0) lgkmcnt(0)")
        if self.bapply:
            for l in self.part_add(): a(l)
        a("s_nop 15")
        a(f"s_mov_b32 s3, 0")
        if not self.diag:
            a(f"v_mul_f32 v{V_T0}, {f32bits(256.0)}, v{VL}")
            a(f"v_mul_f32 v{V_T2}, {f32bits(256.0)}, v{VL + 4}")
            a(f"v_mul_f32 v{V_T0}, 0, v{V_T0}")
            a(f"v_fma_f32 v{V_T0}, v{V_T2}, 0, v{V_T0}")
            for r in range(32): a(f"v_fma_f32 v{V_T0}, v{VO + r}, 0, v{V_T0}")
            if self.force_fallback:
                a(f"v_mov_b32 v{V_T0}, 0x7fc00000")
            a(f"v_cmp_u_f32 vcc, v{V_T0}, v{V_T0}")
            a(f"s_or_b32 s3, vcc_lo, vcc_hi")
            a(f"s_cmp_lg_u32 s3, 0")
            a(f"s_cselect_b32 s3, 1, 0")
        a(f"v_mov_b32 v{V_T0}, s3")
        a(f"s_lshl_b32 s6, s{S_WV}, 2")
        a(f"s_add_u32 s6, s6, {LDS_MISC + L_VOTE}")
        a(f"v_mov_b32 v{V_T2}, s6")
        a(f"ds_write_b32 v{V_T2}, v{V_T0}")
        a(f"s_mul_i32 s6, s{S_WV}, {5 * 1024}")
        a(f"s_add_u32 s6, s6, {L_XO}")
        a(f"v_add_u32 v{V_T2}, s6, v{V_LANE16}")
        a(f"s_cmp_eq_u32 s{S_KH}, 0")
        a(f"s_cbranch_scc1 {n}_give1")
        for qt, lab in ((0, ""), (1, f"{n}_give1")):
            if lab: a.label(lab)
            for k in range(4):
                a(f"ds_write_b128 v{V_T2}, {vr(VO + 16 * qt + 4 * k, 4)} offset:{k * 1024}")
            a(f"ds_write_b128 v{V_T2}, {vr(VL + 4 * qt, 4)} offset:4096")
            if qt == 0: a(f"s_branch {n}_gave")
        a.label(f"{n}_gave")
        if self.bapply: self.b_publish(a)
        a("s_waitcnt lgkmcnt(0)")
        a("s_barrier")
        a(f"v_mov_b32 v{V_T0}, {LDS_MISC + L_VOTE}")
        a(f"ds_read_b128 v[216:219], v{V_T0}")
        a(f"ds_read_b128 v[220:223], v{V_T0} offset:16")
        a(f"s_xor_b32 s6, s{S_WV}, 4")
        a(f"s_mul_i32 s6, s6, {5 * 1024}")
        a(f"s_add_u32 s6, s6, {L_XO}")
        a(f"v_add_u32 v{V_T2}, s6, v{V_LANE16}")
        for k in range(4):
            a(f"ds_read_b128 {vr(VS + 4 * k, 4)}, v{V_T2} offset:{k * 1024}")
        a(f"ds_read_b128 {vr(VS + 16, 4)}, v{V_T2} offset:4096")
        a("s_waitcnt lgkmcnt(5)")
        a("v_or3_b32 v216, v216, v217, v218")
        a("v_or3_b32 v216, v216, v219, v220")
        a("v_or3_b32 v216, v216, v221, v222")
        a("v_or_b32 v216, v216, v223")
        a("s_nop 0")
        a("v_readfirstlane_b32 s3, v216")
        a(f"s_sub_u32 s6, 1, s{S_MODE}")
        a("s_and_b32 s3, s3, s6")
        a("s_cmp_eq_u32 s3, 0")
        a(f"s_cbranch_scc1 {n}_fin")
        a("s_waitcnt lgkmcnt(0)")
        a("s_barrier")
        a(f"s_mov_b32 s{S_SOFF}, s{S_WOFF}")
        a(f"s_mov_b32 s{S_CNT}, {64 // TPS}")
        a(f"v_mov_b32 v{V_T0}, 0xff800000")
        a(f"v_mov_b32 v{V_T2}, 0xff800000")
        a.label(f"{n}_maxloop")
        for l in self.dma_stage(0): a(l)
        a("s_waitcnt vmcnt(0)")
        a("s_barrier")
        for j in range(TPS):
            a(f"ds_read_b128 {vr(VKF, 4)}, v{V_LANE16} offset:{j * 2048}")
            a(f"ds_read_b128 {vr(VKF + 4, 4)}, v{V_LANE16} offset:{j * 2048 + 1024}")
            a("s_waitcnt lgkmcnt(0)")
            for qt in range(2):
                s = VS + 16 * qt
                a(f"v_mfma_f32_32x32x16_bf16 {vr(s, 16)}, {vr(VKF, 4)}, {vr(VQ + 8 * qt, 4)}, 0")
                a(f"v_mfma_f32_32x32x16_bf16 {vr(s, 16)}, {vr(VKF + 4, 4)}, {vr(VQ + 8 * qt + 4, 4)}, {vr(s, 16)}")
            a("s_nop 15")
            for qt in range(2):
                s, x = VS + 16 * qt, V_T0 + 2 * qt
                for r in range(0, 16, 2):
                    a(f"v_max3_f32 v{x}, v{x}, v{s + r}, v{s + r + 1}")
        a("s_barrier")
        a(f"s_sub_u32 s{S_CNT}, s{S_CNT}, 1")
        a(f"s_cmp_lg_u32 s{S_CNT}, 0")
        a(f"s_cbranch_scc1 {n}_maxloop")
        for qt in range(2):
            x = V_T0 + 2 * qt
            self.halfmax(a, x, V_T3)
            a(f"v_sub_f32 v{VC + 16 * qt}, 0, v{x}")
            for r in range(1, 16): a(f"v_mov_b32 v{VC + 16 * qt + r}, v{VC + 16 * qt}")
        a(f"s_mov_b32 s{S_MODE}, 1")
        a(f"s_branch {n}_restart")
        a.label(f"{n}_fin")
        if hasattr(self, "after_decision"): self.after_decision(a)
        a(f"s_cmp_eq_u32 s{S_KH}, 0")
        a(f"s_cbranch_scc1 {n}_keep0")
        for r in range(16): a(f"v_mov_b32 v{VO + r}, v{VO + 16 + r}")
        a(f"v_mov_b32 v{VL}, v{VL + 4}")
        a.label(f"{n}_keep0")
        a(f"v_and_b32 v{V_T1}, 63, v0")
        a(f"v_bfe_u32 v{V_T0}, v{V_T1}, 4, 1")
        a(f"v_lshlrev_b32 v{V_T0}, 10, v{V_T0}")
        a(f"v_lshrrev_b32 v{V_T2}, 5, v{V_T1}")
        a(f"v_lshl_add_u32 v{V_T0}, v{V_T2}, 8, v{V_T0}")
        a(f"v_and_b32 v{V_T2}, 15, v{V_T1}")
        a(f"v_lshl_add_u32 v{V_T0}, v{V_T2}, 4, v{V_T0}")
        a("s_waitcnt lgkmcnt(0)")
        a(f"v_add_f32 v{VL}, v{VL}, v{VS + 16}")
        a(f"v_rcp_f32 v{V_T2}, v{VL}")
        for r in range(16): a(f"v_add_f32 v{VO + r}, v{VO + r}, v{VS + r}")
        a(f"v_mul_f32 v{V_T2}, v{V_T2}, v{V_G}")
        for r in range(16): a(f"v_mul_f32 v{VO + r}, v{V_T2}, v{VO + r}")
        for k in range(8): a(f"v_cvt_pk_bf16_f32 v{VS + k}, v{VO + 2 * k}, v{VO + 2 * k + 1}")
        a(f"s_lshl_b32 s6, s{S_QB}, 3")
        a(f"s_lshl_b32 s7, s{S_QG}, 1")
        a("s_add_u32 s6, s6, s7")
        a(f"s_add_u32 s6, s6, s{S_KH}")
        a("s_lshl_b32 s6, s6, 11")
        a(f"s_lshl_b32 s7, s{S_H}, 17")
        a("s_add_u32 s6, s6, s7")
        a(f"s_add_u32 s6, s6, {WS_O}")
        a(f"buffer_store_dwordx4 {vr(VS, 4)}, v{V_T0}, {ws}, s6 offen {self.store_mod}")
        a(f"buffer_store_dwordx4 {vr(VS + 4, 4)}, v{V_T0}, {ws}, s6 offen offset:512 {self.store_mod}")
        self.pstamp(a, 5)
        if self.bapply:
            self.b_apply(a)
        last = 6
        if hasattr(self, "project"):
            self.project(a); last = 9
        if self.prof:
            a("s_waitcnt vmcnt(0)")
            self.pstamp(a, last)
            self.pflush(a, 1, 8, S_WV, ws)
        a.label(f"{n}_end")
        a("s_endpgm")
        a.label(f"{n}_last")
        return kernel_header(n) + a.text() + kernel_desc(n, 256, 256)
```

```python
import sys
import cfg
from k1d import K1d
from k2d import K2d, LDS_K2
from k3b import K3b, LDS_K3
from k23 import K23, LDS_K23
HDR = open("gated_mix__softmax_full_mha__linear_kernel_hedgehog__prompt.s.ref").read().split("; Override launch geometry")[0]
def build(k1=None, k2=None, k3=None, k23=None):
    k1 = dict(cfg.K1, **(k1 or {}))
    s = HDR
    if k23 is not None:
        k23 = dict(cfg.K23, **k23)
        k1["code"] = ("qkv_kernel", "attn_kernel_last", 65536)
        k23["code"] = ("attn_kernel", "attn_kernel_last", 32768)
        s += "; Launch 1: QKV projections of both branches, gate, feature map of k with kv / z partial sums.\n"
        s += "; Launch 2: softmax attention, linear-attention read-out, then the output projection (flag hand-off between workgroups).\n"
        s += "; @launch kernel=qkv_kernel grid=(256,1,1) block=(256,1,1) lds=163840\n"
        s += f"; @launch kernel=attn_kernel grid=(256,1,1) block=(512,1,1) lds={LDS_K23}\n"
        s += '.amdgcn_target "amdgcn-amd-amdhsa--gfx950"\n.text\n'
        s += K1d("qkv_kernel", **k1).gen()
        s += K23("attn_kernel", **k23).gen()
        return s
    k2 = dict(cfg.K2, **(k2 or {})); k3 = dict(cfg.K3, **(k3 or {}))
    k1["code"] = ("qkv_kernel", "outp_kernel_last", 65536)
    k2["code"] = ("attn_kernel", "attn_kernel_last", 16384)
    k3["code"] = ("outp_kernel", "outp_kernel_last", 16384)
    s += "; Launches: QKV projections (+ gate, branch-B feature map of k), attention / linear attention, output projection.\n"
    s += "; @launch kernel=qkv_kernel grid=(256,1,1) block=(256,1,1) lds=163840\n"
    s += f"; @launch kernel=attn_kernel grid=(256,1,1) block=(512,1,1) lds={LDS_K2}\n"
    s += f"; @launch kernel=outp_kernel grid=(256,1,1) block=(512,1,1) lds={LDS_K3}\n"
    s += '.amdgcn_target "amdgcn-amd-amdhsa--gfx950"\n.text\n'
    s += K1d("qkv_kernel", **k1).gen()
    s += K2d("attn_kernel", **k2).gen()
    s += K3b("outp_kernel", **k3).gen()
    return s
if __name__ == "__main__":
    open("../probe/sep.s", "w").write(build())
    open("../probe/fused.s", "w").write(build(k23={}))
```

```python
from asmlib import *
from layout import *
import k2d
from k2d import K2d, S_WS, S_WV, S_QG, S_KH, S_QB, S_H, V_LANE16

NSLOT, SLOT = 8, 16384
LDS_K23 = max(k2d.LDS_K2, NSLOT * SLOT)
V_WO = 247
V_WRA, V_WRB, V_WRH = 4, 8, 140
FW, ACC, FO = 16, 48, 80
S_WA, S_WB, S_OUT = 76, 80, 52
S_MT, S_NT, S_SOO, S_SOW, S_W2K, S_OB, S_FOWN, S_FWAIT = 60, 61, 62, 63, 64, 65, 70, 71
V_F = 144
SPIN_LIMIT = 1 << 22

class K23(K2d):
    def __init__(self, name, wd=4, od=3, out_mod="nt", touch=False, sleep=2, **kw):
        super().__init__(name, **kw)
        self.wd, self.od, self.out_mod, self.touch = wd, od, out_mod, touch
        self.sleep = sleep

    def dma_w(self, st):
        srd_ = S_WA if st < 8 else S_WB
        return [f"s_add_u32 m0, s{S_W2K}, {(st % NSLOT) * SLOT}", f"s_mov_b32 s{S_SOW}, {(st & 7) << 18}",
                f"buffer_load_dwordx4 v{V_WO}, s[{srd_}:{srd_+3}], s{S_SOW} offen lds",
                f"buffer_load_dwordx4 v{V_WO + 1}, s[{srd_}:{srd_+3}], s{S_SOW} offen offset:1024 lds"]

    def load_o(self, st):
        buf = st % self.od
        r = []
        for b in range(2):
            r += [f"s_add_u32 s{S_SOO}, s{S_OB}, {(4 * st + 2 * b) * 131072}",
                  f"buffer_load_dwordx4 {vr(FO + 16 * buf + 8 * b, 4)}, v{V_LANE16}, s[{S_WS}:{S_WS+3}], s{S_SOO} offen sc1",
                  f"buffer_load_dwordx4 {vr(FO + 16 * buf + 8 * b + 4, 4)}, v{V_LANE16}, s[{S_WS}:{S_WS+3}], s{S_SOO} offen offset:1024 sc1"]
        return r

    def rd_w(self, st, b):
        part, slot = st >> 3, st % NSLOT
        base = V_WRH if slot >= 4 else (V_WRA if part == 0 else V_WRB)
        qoff = 1024 if part == 0 else 2048
        return [f"ds_read_b64_tr_b16 {vr(FW + 16 * b + 4 * ct + 2 * q, 2)}, v{base + ct} offset:{(slot & 3) * SLOT + b * 8192 + q * qoff}"
                for ct in range(4) for q in range(2)]

    def omfmas(self, buf, b):
        return [f"v_mfma_f32_16x16x32_bf16 {vr(ACC + (i * 4 + ct) * 4, 4)}, {vr(FW + 16 * b + 4 * ct, 4)}, {vr(FO + 16 * buf + 8 * b + 4 * i, 4)}, {vr(ACC + (i * 4 + ct) * 4, 4)}"
                for ct in range(4) for i in range(2)]

    def ostage(self, a, st, issue_w, issue_o, vm_mid, vm_top, last=False):
        buf = st % self.od
        a(f"s_waitcnt vmcnt({vm_top}) lgkmcnt(0)")
        for l in interleave(self.omfmas(buf, 0), [(i, [r]) for i, r in enumerate(self.rd_w(st, 1))]): a(l)
        a("s_waitcnt lgkmcnt(0)")
        m = self.omfmas(buf, 1)
        if last:
            for l in m: a(l)
            return
        pre = []
        if st + 1 in (4, 12):
            nxt = V_WRA if (st + 1) >> 3 == 0 else V_WRB
            pre = [f"v_add_u32 v{V_WRH + c}, {4 * SLOT}, v{nxt + c}" for c in range(4)]
        extra = Asm()
        if st == 8 - self.od - 1: self.poll(extra, 1, "pollB")
        fill = [(0, pre + [l.strip() for l in extra.lines] + [f"s_waitcnt vmcnt({vm_mid})", "s_barrier"])]
        for i, r in enumerate(self.rd_w(st + 1, 0)): fill.append((1 + i * 6 // 8, [r]))
        fill.append((7, self.dma_w(st + self.wd) if issue_w else []))
        for l in interleave(m, fill): a(l)
        if issue_o:
            for l in self.load_o(st + self.od): a(l)

    def entry_extra(self, a):
        a("s_load_dwordx2 s[66:67], s[0:1], 16")
        a("s_load_dwordx2 s[68:69], s[0:1], 48")
        a("s_load_dwordx2 s[72:73], s[0:1], 64")

    def early_setup(self, a):
        a("s_and_b32 s3, s2, 7")
        a("s_lshr_b32 s6, s2, 3")
        a("s_lshr_b32 s7, s3, 1")
        a("s_lshl_b32 s7, s7, 2")
        a(f"s_and_b32 s{S_MT}, s6, 3")
        a(f"s_add_u32 s{S_MT}, s{S_MT}, s7")
        a("s_and_b32 s7, s3, 1")
        a("s_lshl_b32 s7, s7, 3")
        a(f"s_lshr_b32 s{S_NT}, s6, 2")
        a(f"s_add_u32 s{S_NT}, s{S_NT}, s7")
        srd(a, S_WA, 66, 2097152)
        srd(a, S_WB, 68, 2097152)
        srd(a, S_OUT, 72, 4194304)
        t0, t1, t2 = 216, 217, 218
        a(f"v_and_b32 v{t0}, 63, v0")
        a(f"v_lshrrev_b32 v{t1}, 3, v{t0}")
        a(f"v_and_b32 v{t2}, 7, v{t0}")
        a(f"v_bfe_u32 v{t0}, v{t0}, 4, 2")
        a(f"v_lshlrev_b32 v{t0}, 1, v{t0}")
        a(f"v_xor_b32 v{t2}, v{t2}, v{t0}")
        a(f"v_lshlrev_b32 v{t1}, 11, v{t1}")
        a(f"v_lshl_add_u32 v{t1}, v{t2}, 4, v{t1}")
        a(f"s_lshl_b32 s3, s{S_NT}, 7")
        a(f"v_add_u32 v{t1}, s3, v{t1}")
        a(f"s_lshl_b32 s3, s{S_WV}, 15")
        a(f"v_add_u32 v{V_WO}, s3, v{t1}")
        a(f"s_add_u32 s3, s3, {16384 - 1024}")
        a(f"v_add_u32 v{V_WO + 1}, s3, v{t1}")
        a(f"s_lshl_b32 s{S_W2K}, s{S_WV}, 11")
        a(f"s_lshl_b32 s3, s{S_MT}, 3")
        a(f"s_lshl_b32 s6, s{S_QG}, 1")
        a("s_add_u32 s3, s3, s6")
        a("s_lshl_b32 s3, s3, 10")
        a(f"s_lshl_b32 s6, s{S_KH}, 17")
        a("s_add_u32 s3, s3, s6")
        a(f"s_add_u32 s{S_OB}, s3, {WS_O}")
        a(f"s_lshl_b32 s3, s{S_QB}, 12")
        a(f"s_lshl_b32 s6, s{S_H}, 2")
        a("s_add_u32 s3, s3, s6")
        a(f"s_add_u32 s{S_FOWN}, s3, {WS_FLAG}")
        a(f"s_lshr_b32 s3, s{S_MT}, 1")
        a("s_lshl_b32 s3, s3, 12")
        a(f"s_add_u32 s{S_FWAIT}, s3, {WS_FLAG}")

    def after_decision(self, a):
        assert self.wd <= 4
        for st in range(self.wd):
            for l in self.dma_w(st): a(l)

    def signal(self, a, part, tag):
        n = self.name
        a(f"s_cmp_lg_u32 s{S_WV}, 0")
        a(f"s_cbranch_scc1 {n}_{tag}")
        a("s_mov_b64 exec, 1")
        a(f"v_mov_b32 v{V_F}, {128 * part}")
        a(f"v_mov_b32 v{V_F + 1}, 1")
        a(f"buffer_store_dword v{V_F + 1}, v{V_F}, s[{S_WS}:{S_WS+3}], s{S_FOWN} offen sc1")
        a("s_mov_b64 exec, -1")
        a.label(f"{n}_{tag}")

    def poll(self, a, part, tag):
        n = self.name
        a(f"s_cmp_lg_u32 s{S_WV}, 0")
        a(f"s_cbranch_scc1 {n}_{tag}_skip")
        a(f"v_and_b32 v{V_F}, 31, v0")
        a(f"v_lshlrev_b32 v{V_F}, 2, v{V_F}")
        a(f"s_mov_b32 s6, {SPIN_LIMIT}")
        a.label(f"{n}_{tag}")
        a(f"buffer_load_dword v{V_F + 1}, v{V_F}, s[{S_WS}:{S_WS+3}], s{S_FWAIT} offen offset:{128 * part} sc1")
        a("s_waitcnt vmcnt(0)")
        a(f"v_cmp_eq_u32 vcc, 1, v{V_F + 1}")
        a("s_sub_u32 s6, s6, 1")
        a("s_cmp_eq_u32 s6, 0")
        a(f"s_cbranch_scc1 {n}_{tag}_skip")
        a("s_cmp_eq_u32 vcc_lo, -1")
        a(f"s_cbranch_scc1 {n}_{tag}_skip")
        a(f"s_sleep {self.sleep}")
        a(f"s_branch {n}_{tag}")
        a.label(f"{n}_{tag}_skip")

    def b_mid(self, a):
        a("s_waitcnt vmcnt(0)")
        a("s_barrier")
        self.signal(a, 0, "sigA")

    def project(self, a):
        n = self.name
        WD, OD = self.wd, self.od
        self.pstamp(a, 6)
        self.poll(a, 0, "pollA")
        a("v_and_b32 v12, 63, v0")
        a("v_lshrrev_b32 v13, 4, v12")
        a("v_bfe_u32 v14, v12, 2, 2")
        a("v_and_b32 v15, 1, v13")
        a("v_lshrrev_b32 v16, 1, v14")
        a("v_lshl_add_u32 v16, v15, 1, v16")
        a("v_lshlrev_b32 v16, 1, v16")
        a("v_bfe_u32 v17, v12, 1, 1")
        a("v_and_b32 v18, 1, v12")
        a("v_lshlrev_b32 v18, 3, v18")
        a(f"s_lshl_b32 s3, s{S_KH}, 12")
        a("v_add_u32 v18, s3, v18")
        a("v_lshrrev_b32 v19, 1, v13")
        a("v_lshlrev_b32 v19, 4, v19")
        a("v_lshl_add_u32 v19, v15, 2, v19")
        a("v_add_u32 v19, v19, v14")
        a("v_lshl_add_u32 v20, v13, 2, v14")
        for ct in range(4):
            a(f"v_add_u32 v21, {2 * ct}, v17")
            a("v_xor_b32 v21, v21, v16")
            a("v_lshl_add_u32 v21, v21, 4, v18")
            a(f"v_lshl_add_u32 v{V_WRA + ct}, v19, 7, v21")
            a(f"v_lshl_add_u32 v{V_WRB + ct}, v20, 7, v21")
        for r in range(32): a(f"v_mov_b32 v{ACC + r}, 0")
        a("s_waitcnt vmcnt(0)")
        a("s_barrier")
        self.signal(a, 1, "sigB")
        self.pstamp(a, 7)
        q = []
        for s in range(OD):
            for l in self.load_o(s): a(l)
            q += [("o", s)] * 4
        for l in self.rd_w(0, 0): a(l)
        def allowed(tag):
            idx = max((i for i, t in enumerate(q) if t == tag), default=None)
            return len(q) if idx is None else len(q) - 1 - idx
        for s in range(16):
            top = allowed(("o", s))
            mid = allowed(("W", s + 1)) if s < 15 else 0
            iw, io = s + WD < 16, s + OD < 16
            self.ostage(a, s, iw, io, min(mid, 63), min(top, 63), last=(s == 15))
            if iw: q += [("W", s + WD)] * 2
            if io: q += [("o", s + OD)] * 4
        self.pstamp(a, 8)
        a("s_barrier")
        a(f"s_lshl_b32 s3, s{S_WV}, 12")
        a(f"v_add_u32 v2, s3, v{V_LANE16}")
        a(f"s_xor_b32 s3, s{S_WV}, 4")
        a("s_lshl_b32 s3, s3, 12")
        a(f"v_add_u32 v3, s3, v{V_LANE16}")
        a(f"s_cmp_eq_u32 s{S_KH}, 0")
        a("s_nop 7")
        a(f"s_cbranch_scc1 {n}_k0")
        for k in range(4): a(f"ds_write_b128 v2, {vr(ACC + 4 * k, 4)} offset:{k * 1024}")
        a("s_waitcnt lgkmcnt(0)")
        for r in range(16): a(f"v_mov_b32 v{ACC + r}, v{ACC + 16 + r}")
        a(f"s_branch {n}_k1")
        a.label(f"{n}_k0")
        for k in range(4): a(f"ds_write_b128 v2, {vr(ACC + 16 + 4 * k, 4)} offset:{k * 1024}")
        a.label(f"{n}_k1")
        a("s_waitcnt lgkmcnt(0)")
        a("s_barrier")
        for k in range(4): a(f"ds_read_b128 {vr(FW + 4 * k, 4)}, v3 offset:{k * 1024}")
        a("v_and_b32 v13, 15, v12")
        a(f"s_lshl_b32 s3, s{S_MT}, 7")
        a(f"s_lshl_b32 s6, s{S_QG}, 5")
        a("s_add_u32 s3, s3, s6")
        a(f"s_lshl_b32 s6, s{S_KH}, 4")
        a("s_add_u32 s3, s3, s6")
        a("v_add_u32 v13, s3, v13")
        a("v_lshlrev_b32 v13, 11, v13")
        a("v_bfe_u32 v14, v12, 4, 1")
        a("v_lshl_add_u32 v13, v14, 5, v13")
        a("v_lshrrev_b32 v14, 5, v12")
        a("v_lshl_add_u32 v13, v14, 4, v13")
        a(f"s_lshl_b32 s3, s{S_NT}, 7")
        a("s_waitcnt lgkmcnt(0)")
        for r in range(0, 16, 2):
            a(f"v_pk_add_f32 {vr(ACC + r, 2)}, {vr(ACC + r, 2)}, {vr(FW + r, 2)}")
        for pr in range(2):
            t = FW + 16 + 4 * pr
            for i2 in range(2):
                b = ACC + (pr * 2 + i2) * 4
                a(f"v_cvt_pk_bf16_f32 v{t + 2 * i2}, v{b}, v{b + 1}")
                a(f"v_cvt_pk_bf16_f32 v{t + 2 * i2 + 1}, v{b + 2}, v{b + 3}")
            a("s_nop 1")
            a(f"v_permlane16_swap_b32 v{t}, v{t + 2}")
            a(f"v_permlane16_swap_b32 v{t + 1}, v{t + 3}")
            a(f"buffer_store_dwordx4 {vr(t, 4)}, v13, s[{S_OUT}:{S_OUT+3}], s3 offen offset:{pr * 64} {self.out_mod}")
```

```python
from asmlib import *
from layout import *
from prof import Prof

XST, NX = 16384, 3
WRING, WSL, NW = 49152, 24576, 4
L_WP = WRING + NW * WSL
LDS_K1 = 163840
ACC = 64
def acc(sg, ft, tk): return ACC + ((sg * 2 + ft) * 4 + tk) * 4
FR = 160
def fX(p, tk): return FR + p * 40 + tk * 4
def fW(p, sg, ft): return FR + p * 40 + 16 + (sg * 2 + ft) * 4
V_XO, V_WO, V_XR, V_WR, V_WR2, V_PF = 1, 5, 12, 14, 16, 18
S_X, S_W, S_WS, S_WP, S_GW = 8, 12, 16, 60, 64
S_MT, S_HP, S_WV, S_SOX, S_SOW, S_W4K, S_W6K, S_TH, S_HH, S_BR, S_HD, S_ST = range(20, 32)
S_PF, S_PFO, S_PFS, S_TOK = 72, 76, 77, 78

class K1w(Prof):
    V_PROF = 250
    def __init__(self, name, prof=False, store_mod="sc1", code=None, rd_slots=None, pf=True, pf_per_unit=2, epi=True, pfwo=True, wsbase=0, prio=0, pf_first=4, dma_gap=2, split_dma=False):
        self.name, self.prof, self.store_mod, self.code = name, prof, store_mod, code
        self.pf_first, self.dma_gap, self.split_dma = pf_first, dma_gap, split_dma
        self.rd_slots = rd_slots or [1 + (i * 22) // 16 for i in range(16)]
        self.pf, self.pf_per_unit, self.epi, self.pfwo, self.wsbase, self.prio = pf, pf_per_unit, epi, pfwo, wsbase, prio

    def mfmas(self, p):
        out = []
        for tk in range(4):
            for sg in range(3):
                for ft in range(2):
                    d = vr(acc(sg, ft, tk), 4)
                    x, w = vr(fX(p, tk), 4), vr(fW(p, sg, ft), 4)
                    a, b = (x, w) if sg == 2 else (w, x)
                    out.append(f"v_mfma_f32_16x16x32_bf16 {d}, {a}, {b}, {d}")
        return out

    def rd(self, p, u):
        xo = ((u >> 1) % NX) * XST
        xs = [f"ds_read_b128 {vr(fX(p, tk), 4)}, v{V_XR + (u & 1)} offset:{xo + tk * 2048}" for tk in range(4)]
        slot = u % NW
        base = V_WR if slot < 2 else V_WR2
        w = [f"ds_read_b64_tr_b16 {vr(fW(p, sg, ft) + 2 * q, 2)}, v{base + ft} offset:{(slot & 1) * WSL + sg * 4096 + q * 512}"
             for sg in range(3) for ft in range(2) for q in range(2)]
        return [xs[0]] + w + xs[1:]

    def dmaW(self, uw):
        r = [f"s_add_u32 m0, s{S_W6K}, {WRING + (uw % NW) * WSL}", f"s_mov_b32 s{S_SOW}, {uw * 32 * 6144}"]
        for j in range(6):
            if j == 4: r += [f"s_add_u32 m0, s{S_W6K}, {WRING + (uw % NW) * WSL + 4096}", "s_nop 0"]
            r.append(f"buffer_load_dwordx4 v{V_WO + j}, s[{S_W}:{S_W+3}], s{S_SOW} offen offset:{(j & 3) * 1024} lds")
        return r
    def dmaX(self, sx, half):
        r = [f"s_add_u32 m0, s{S_W4K}, {(sx % NX) * XST + half * 2048}", f"s_mov_b32 s{S_SOX}, {sx * 128}"]
        for n in range(2):
            r.append(f"buffer_load_dwordx4 v{V_XO + half * 2 + n}, s[{S_X}:{S_X+3}], s{S_SOX} offen offset:{n * 1024} lds")
        return r
    def group(self, v):
        g, n = [], 0
        if 0 <= v + 3 < 32: g += self.dmaW(v + 3); n += 6
        if 0 <= v // 2 + 2 < 16: g += self.dmaX(v // 2 + 2, v & 1); n += 2
        return g, n
    def pf_load(self):
        return [f"buffer_load_dwordx4 v[{244}:{247}], v{V_PF}, s[{S_PF}:{S_PF+3}], s{S_PFO} offen", f"s_add_u32 s{S_PFO}, s{S_PFO}, s{S_PFS}"]

    def role_block(self, a, tag, stager, other):
        n = self.name
        if not stager and not other: return []
        r = [f"s_cmp_lg_u32 s{S_ST}, 0"]
        if other:
            r += [f"s_cbranch_scc0 {n}_{tag}_o"] + stager + [f"s_branch {n}_{tag}_e", f"{n}_{tag}_o:"] + other + [f"{n}_{tag}_e:"]
        else:
            r += [f"s_cbranch_scc0 {n}_{tag}_e"] + stager + [f"{n}_{tag}_e:"]
        return r

    def main_loop(self, a, extra_first):
        size = lambda v: self.group(v)[1]
        npf_left = self.npf
        for u in range(32):
            a("s_waitcnt lgkmcnt(0)")
            fill = []
            if u < 31:
                v = u + 1
                allowed = size(v - 2) + size(v - 1) + (extra_first if v <= 2 else 0) if v >= 2 else 8 + size(0) + extra_first
                fill.append((0, self.role_block(a, f"w{u}", [f"s_waitcnt vmcnt({allowed})"], []) + ["s_barrier"]))
                for i, r in enumerate(self.rd((u + 1) & 1, u + 1)):
                    fill.append((self.rd_slots[i], [r]))
                g, n = self.group(v)
                k = min(self.pf_per_unit, npf_left); npf_left -= k
                other = [l for _ in range(k) for l in self.pf_load()]
                if self.split_dma and g:
                    cut = next((i for i, l in enumerate(g) if f"s{S_W4K}" in l), len(g))
                    fill.append((self.dma_gap, self.role_block(a, f"d{u}", g[:cut], other)))
                    fill.append((self.dma_gap + 10, self.role_block(a, f"e{u}", g[cut:], [])))
                else:
                    fill.append((self.dma_gap, self.role_block(a, f"d{u}", g, other)))
            for l in interleave(self.mfmas(u & 1), fill): a(l)

    def gen(self):
        a = Asm()
        n = self.name
        a("s_cmp_ge_u32 s2, 256")
        a(f"s_cbranch_scc1 {n}_end")
        self.pstamp(a, 0)
        if self.code:
            first, last, nbytes = self.code
            code_prefetch(a, n, first, last, 8, 252, 254, 90)(-(-nbytes // 32768))
        self.body(a)
        if self.prof:
            self.pstamp(a, 6)
            a("s_waitcnt vmcnt(0)")
            self.pstamp(a, 7)
            self.pflush(a, 0, 8, S_WV, f"s[{S_WS}:{S_WS+3}]")
        a.label(f"{n}_end")
        a("s_endpgm")
        a.label(f"{n}_last")
        return kernel_header(n) + a.text() + kernel_desc(n, 256, 256)

    def body(self, a):
        n = self.name
        a("s_load_dwordx4 s[44:47], s[0:1], 0")
        a("s_load_dwordx2 s[48:49], s[0:1], 32")
        a("s_load_dwordx2 s[52:53], s[0:1], 80")
        a("s_load_dwordx2 s[56:57], s[0:1], 40")
        a("s_load_dwordx2 s[58:59], s[0:1], 56")
        a("s_and_b32 s3, s2, 7")
        a("s_lshr_b32 s4, s2, 3")
        a("s_and_b32 s5, s3, 1")
        a("s_lshl_b32 s5, s5, 3")
        a("s_and_b32 s6, s4, 7")
        a(f"s_add_u32 s{S_MT}, s5, s6")
        a("s_lshr_b32 s5, s3, 1")
        a("s_lshl_b32 s5, s5, 2")
        a("s_lshr_b32 s6, s4, 3")
        a(f"s_add_u32 s{S_HP}, s5, s6")
        a("v_lshrrev_b32 v20, 6, v0")
        a("v_and_b32 v19, 63, v0")
        a("v_lshrrev_b32 v21, 3, v19")
        a(f"v_readfirstlane_b32 s{S_WV}, v20")
        a("v_and_b32 v22, 7, v19")
        a("v_lshrrev_b32 v23, 4, v19")
        a(f"s_and_b32 s{S_TH}, s{S_WV}, 1")
        a(f"s_bfe_u32 s{S_HH}, s{S_WV}, 0x10001")
        a(f"s_lshr_b32 s{S_BR}, s{S_WV}, 2")
        a(f"s_xor_b32 s{S_ST}, s{S_BR}, 1")
        a(f"s_and_b32 s7, s{S_WV}, 3")
        a(f"s_lshl_b32 s{S_HD}, s{S_HP}, 1")
        a(f"s_add_u32 s{S_HD}, s{S_HD}, s{S_HH}")
        a(f"s_lshl_b32 s3, s{S_MT}, 7")
        a("s_lshl_b32 s4, s7, 5")
        a("s_add_u32 s3, s3, s4")
        a("v_add_u32 v24, s3, v21")
        a("v_lshlrev_b32 v24, 11, v24")
        a("v_xor_b32 v25, v22, v23")
        a("v_xor_b32 v26, 4, v25")
        a("v_lshl_add_u32 v25, v25, 4, v24")
        a("v_lshl_add_u32 v26, v26, 4, v24")
        for nn in range(4):
            a(f"v_add_u32 v{V_XO + nn}, {nn * 16384 - (nn & 1) * 1024}, v{25 if nn % 2 == 0 else 26}")
        a("v_and_b32 v25, 1, v23")
        a("v_lshlrev_b32 v25, 1, v25")
        a("v_xor_b32 v25, v25, v22")
        a("s_mov_b32 s3, 6144")
        a("v_mul_lo_u32 v26, v21, s3")
        a(f"s_lshl_b32 s4, s{S_HP}, 7")
        a("v_add_u32 v26, s4, v26")
        a("v_lshl_add_u32 v28, v25, 4, v26")
        a("v_xor_b32 v27, 4, v25")
        a("v_lshl_add_u32 v27, v27, 4, v26")
        a("s_and_b32 s5, s7, 1")
        a("s_cmp_eq_u32 s5, 0")
        for j in range(6):
            off = [((6 * par + j) >> 2) * 2048 + ((6 * par + j) & 3) * 8 * 6144 - (j & 3) * 1024 for par in range(2)]
            a(f"s_mov_b32 s3, {off[1]}")
            a(f"s_cselect_b32 s3, {off[0]}, s3")
            a(f"v_add_u32 v{V_WO + j}, s3, v{28 if j % 2 == 0 else 27}")
        a(f"s_lshl_b32 s{S_W4K}, s7, 12")
        a(f"s_mul_i32 s{S_W6K}, s7, 6144")
        a("s_waitcnt lgkmcnt(0)")
        srd(a, S_X, 44, 2048 * 2048)
        a("s_cmp_lt_u32 s7, 2")
        a("s_cselect_b32 s4, s46, s48")
        a("s_cselect_b32 s5, s47, s49")
        srd(a, S_W, 4, 1024 * 6144)
        ws_shift(a, 52, self.wsbase)
        srd(a, S_WS, 52, 0x10000000 - self.wsbase)
        pro = self.dmaX(0, 0) + self.dmaW(0) + self.dmaX(0, 1) + self.dmaW(1) + self.dmaX(1, 0) + self.dmaW(2) + self.dmaX(1, 1)
        a(f"s_cmp_lg_u32 s{S_ST}, 0")
        a(f"s_cbranch_scc0 {n}_side")
        for l in pro: a(l)
        a(f"s_branch {n}_joined")
        a.label(f"{n}_side")
        self.side(a)
        a.label(f"{n}_joined")
        self.pstamp(a, 1)
        self.addr_reads(a)
        for r in range(96): a(f"v_mov_b32 v{ACC + r}, 0")
        for l in self.role_block(a, "b0", ["s_waitcnt vmcnt(16)"], self.gate_lines()): a(l)
        a("s_barrier")
        self.pstamp(a, 2)
        for l in self.rd(0, 0): a(l)
        g, _ = self.group(0)
        for l in self.role_block(a, "g0", g, []): a(l)
        if self.prio:
            a(f"s_cmp_lg_u32 s{S_ST}, 0")
            a(f"s_cbranch_scc1 {n}_np")
            a("s_setprio 1")
            a.label(f"{n}_np")
        self.main_loop(a, 0)
        if self.prio: a("s_setprio 0")
        self.pstamp(a, 3)
        if self.epi: self.epilogue(a)

    def addr_reads(self, a):
        a("v_and_b32 v20, 15, v19")
        a("v_lshlrev_b32 v20, 7, v20")
        a(f"s_lshl_b32 s3, s{S_TH}, 13")
        a("v_add_u32 v20, s3, v20")
        a("v_lshrrev_b32 v21, 4, v19")
        a("v_bfe_u32 v22, v19, 1, 3")
        for k2 in range(2):
            a(f"v_add_u32 v23, {4 * k2}, v21")
            a("v_xor_b32 v23, v23, v22")
            a(f"v_lshl_add_u32 v{V_XR + k2}, v23, 4, v20")
        a("v_bfe_u32 v22, v19, 2, 2")
        a("v_lshl_add_u32 v23, v21, 3, v22")
        a("v_lshlrev_b32 v23, 7, v23")
        a("v_and_b32 v24, 1, v19")
        a("v_lshl_add_u32 v23, v24, 3, v23")
        a("v_bfe_u32 v24, v19, 1, 1")
        a(f"s_lshl_b32 s3, s{S_HH}, 2")
        a("v_add_u32 v24, s3, v24")
        a("v_and_b32 v25, 2, v22")
        a("v_bfe_u32 v26, v19, 4, 1")
        a("v_lshl_or_b32 v25, v26, 2, v25")
        a(f"s_mul_i32 s3, s{S_BR}, 12288")
        a(f"s_add_u32 s3, s3, {WRING}")
        for ft in range(2):
            a(f"v_add_u32 v26, {2 * ft}, v24")
            a("v_xor_b32 v26, v26, v25")
            a("v_lshl_add_u32 v26, v26, 4, v23")
            a(f"v_add_u32 v{V_WR + ft}, s3, v26")
            a(f"v_add_u32 v{V_WR2 + ft}, {2 * WSL}, v{V_WR + ft}")

    def side(self, a):
        n = self.name
        ws = f"s[{S_WS}:{S_WS+3}]"
        srd(a, S_WP, 56, 65536)
        srd(a, S_GW, 58, 2048)
        a(f"s_and_b32 s7, s{S_WV}, 3")
        self.npf = 16 if self.pf else 0
        if self.pf:
            a("s_mul_i32 s3, s2, 3")
            a("s_add_u32 s3, s3, s7")
            a("s_cmp_ge_u32 s3, 384")
            a("s_cselect_b32 s4, 384, 0")
            a("s_cselect_b32 s80, s48, s46")
            a("s_cselect_b32 s81, s49, s47")
            a("s_sub_u32 s3, s3, s4")
            a("s_lshl_b32 s3, s3, 10")
            a("s_lshl_b32 s4, s2, 14")
            a("s_cmp_eq_u32 s7, 3")
            a("s_cselect_b32 s80, s44, s80")
            a("s_cselect_b32 s81, s45, s81")
            a(f"s_cselect_b32 s{S_PFO}, s4, s3")
            a(f"s_mov_b32 s5, {64 * 6144}")
            a(f"s_cselect_b32 s{S_PFS}, 128, s5")
            a(f"s_mov_b32 s5, {1024 * 6144}")
            a(f"s_cselect_b32 s{S_PF+2}, {2048 * 2048}, s5")
            a(f"s_mov_b32 s{S_PF}, s80")
            a(f"s_and_b32 s{S_PF+1}, s81, 0xffff")
            a(f"s_mov_b32 s{S_PF+3}, 0x00020000")
            a("v_lshlrev_b32 v20, 4, v19")
            a("v_lshrrev_b32 v21, 3, v19")
            a("v_lshlrev_b32 v21, 11, v21")
            a("v_and_b32 v22, 7, v19")
            a("v_lshl_add_u32 v21, v22, 4, v21")
            a("s_cmp_eq_u32 s7, 3")
            a("s_cselect_b64 vcc, -1, 0")
            a(f"v_cndmask_b32 v{V_PF}, v20, v21, vcc")
        a("v_lshlrev_b32 v20, 5, v19")
        a(f"buffer_load_dwordx4 v[160:163], v20, s[{S_GW}:{S_GW+3}], 0 offen")
        a(f"buffer_load_dwordx4 v[164:167], v20, s[{S_GW}:{S_GW+3}], 0 offen offset:16")
        a(f"s_lshl_b32 s3, s{S_MT}, 7")
        a(f"s_lshl_b32 s4, s{S_HP}, 3")
        a("s_add_u32 s3, s3, s4")
        a("s_lshl_b32 s4, s7, 1")
        a(f"s_add_u32 s{S_TOK}, s3, s4")
        a(f"s_lshl_b32 s3, s{S_TOK}, 11")
        for i in range(2):
            a(f"buffer_load_dwordx4 v[{168+8*i}:{171+8*i}], v20, s[{S_X}:{S_X+3}], s3 offen offset:{i * 2048}")
            a(f"buffer_load_dwordx4 v[{172+8*i}:{175+8*i}], v20, s[{S_X}:{S_X+3}], s3 offen offset:{i * 2048 + 16}")
        a("v_lshlrev_b32 v20, 4, v19")
        a(f"s_lshl_b32 s3, s{S_HP}, 12")
        a("s_lshl_b32 s5, s7, 10")
        a("s_add_u32 s3, s3, s5")
        a(f"s_add_u32 m0, s5, {L_WP}")
        a("s_nop 0")
        a(f"buffer_load_dwordx4 v20, s[{S_WP}:{S_WP+3}], s3 offen lds")
        a("s_cmp_ge_u32 s2, 8")
        a(f"s_cbranch_scc1 {n}_noflag")
        a(f"s_cmp_lg_u32 s{S_WV}, 4")
        a(f"s_cbranch_scc1 {n}_noflag")
        a("s_lshl_b32 s3, s2, 12")
        a(f"s_add_u32 s3, s3, {WS_FLAG}")
        a("v_lshlrev_b32 v20, 2, v19")
        a("v_mov_b32 v21, 0")
        a(f"buffer_store_dword v21, v20, {ws}, s3 offen sc1")
        a.label(f"{n}_noflag")
        self.npf_first = min(self.pf_first, self.npf)
        for k in range(self.npf_first):
            for l in self.pf_load(): a(l)
        self.npf -= self.npf_first

    def gate_lines(self):
        b = Asm()
        b(f"s_waitcnt vmcnt({self.npf_first + 1})")
        for i in range(2): b(f"v_mov_b32 v{24 + i}, 0")
        for k in range(8):
            for i in range(2):
                b(f"v_dot2_f32_bf16 v{24 + i}, v{168 + 8 * i + k}, v{160 + k}, v{24 + i}")
        for ctl in ("quad_perm:[1,0,3,2]", "quad_perm:[2,3,0,1]", "row_half_mirror", "row_mirror"):
            b("s_nop 1")
            for i in range(2):
                b(f"v_add_f32_dpp v{24 + i}, v{24 + i}, v{24 + i} {ctl} row_mask:0xf bank_mask:0xf")
        for sw in ("v_permlane16_swap_b32", "v_permlane32_swap_b32"):
            for i in range(2): b(f"v_mov_b32 v{28 + i}, v{24 + i}")
            b("s_nop 1")
            for i in range(2): b(f"{sw} v{24 + i}, v{28 + i}")
            b("s_nop 1")
            for i in range(2): b(f"v_add_f32 v{24 + i}, v{24 + i}, v{28 + i}")
        b("v_and_b32 v28, 1, v19")
        b("v_cmp_eq_u32 vcc, 1, v28")
        b("s_nop 1")
        b("v_cndmask_b32 v24, v24, v25, vcc")
        b(f"v_mul_f32 v24, {f32bits(-LOG2E)}, v24")
        b("v_exp_f32 v24, v24")
        b("s_nop 0")
        b("v_add_f32 v24, 1.0, v24")
        b("v_rcp_f32 v24, v24")
        b("v_lshlrev_b32 v28, 2, v19")
        b(f"s_lshl_b32 s3, s{S_TOK}, 2")
        b(f"s_add_u32 s3, s3, {WS_G}")
        b("s_mov_b64 exec, 3")
        b(f"buffer_store_dword v24, v28, s[{S_WS}:{S_WS+3}], s3 offen {self.store_mod}")
        b("s_mov_b64 exec, -1")
        return [l.strip() for l in b.lines]

    def epilogue(self, a):
        n = self.name
        a("s_waitcnt vmcnt(0)")
        a("s_barrier")
        a(f"s_cmp_lg_u32 s{S_BR}, 0")
        a(f"s_cbranch_scc1 {n}_epiB")
        self.epilogue_A(a)
        a(f"s_branch {n}_epidone")
        a.label(f"{n}_epiB")
        self.epilogue_B(a)
        a.label(f"{n}_epidone")

    @staticmethod
    def pack(b0, b1):
        return [f"v_cvt_pk_bf16_f32 v{b0}, v{b0}, v{b0 + 1}", f"v_cvt_pk_bf16_f32 v{b0 + 1}, v{b0 + 2}, v{b0 + 3}",
                f"v_cvt_pk_bf16_f32 v{b0 + 2}, v{b1}, v{b1 + 1}", f"v_cvt_pk_bf16_f32 v{b0 + 3}, v{b1 + 2}, v{b1 + 3}"]

    def epilogue_A(self, a):
        ws, sm = f"s[{S_WS}:{S_WS+3}]", self.store_mod
        a("v_lshrrev_b32 v21, 4, v19")
        a("v_and_b32 v20, 15, v19")
        a(f"s_lshl_b32 s3, s{S_HD}, 17")
        a(f"s_lshl_b32 s4, s{S_MT}, 2")
        a(f"s_lshl_b32 s5, s{S_TH}, 1")
        a("s_add_u32 s4, s4, s5")
        a("s_lshl_b32 s4, s4, 11")
        a("s_add_u32 s38, s3, s4")
        a(f"s_add_u32 s39, s38, {4 << 20}")
        a(f"s_add_u32 s42, s38, {8 << 20}")
        a("v_lshrrev_b32 v22, 1, v21")
        a("v_lshlrev_b32 v22, 10, v22")
        a("v_and_b32 v24, 1, v21")
        a("v_lshl_add_u32 v22, v24, 9, v22")
        a("v_lshl_add_u32 v17, v20, 4, v22")
        a("v_and_b32 v24, 7, v20")
        a("v_lshrrev_b32 v25, 3, v20")
        a("v_lshl_add_u32 v24, v25, 4, v24")
        a("v_lshl_add_u32 v16, v24, 4, v22")
        c = f32bits(LOG2E / 32 ** 0.5)
        a(f"s_mov_b32 s6, {c}")
        a(f"s_mov_b32 s7, {c}")
        for tk in range(4):
            for l in self.pack(acc(1, 0, tk), acc(1, 1, tk)): a(l)
            a(f"buffer_store_dwordx4 {vr(acc(1, 0, tk), 4)}, v16, {ws}, s39 offen offset:{(tk >> 1) * 2048 + (tk & 1) * 128} {sm}")
        for T in range(2):
            for ft in range(2):
                for l in self.pack(acc(2, ft, 2 * T), acc(2, ft, 2 * T + 1)): a(l)
                a(f"buffer_store_dwordx4 {vr(acc(2, ft, 2 * T), 4)}, v17, {ws}, s42 offen offset:{T * 2048 + ft * 256} {sm}")
        for tk in range(4):
            for ft in range(2):
                for h in (0, 2):
                    a(f"v_pk_mul_f32 {vr(acc(0, ft, tk) + h, 2)}, {vr(acc(0, ft, tk) + h, 2)}, s[6:7]")
            for l in self.pack(acc(0, 0, tk), acc(0, 1, tk)): a(l)
            a(f"buffer_store_dwordx4 {vr(acc(0, 0, tk), 4)}, v17, {ws}, s38 offen offset:{(tk >> 1) * 2048 + (tk & 1) * 256} {sm}")
        self.pstamp(a, 4)
        if self.pfwo: self.prefetch_wo(a)
        a("s_waitcnt vmcnt(0)")
        self.pstamp(a, 5)
        a("s_barrier")
        self.after_E2_A(a)

    def after_E2_A(self, a): pass
    def after_E2_B(self, a): pass

    def prefetch_wo(self, a):
        a("s_load_dwordx2 s[80:81], s[0:1], 16")
        a("s_load_dwordx2 s[82:83], s[0:1], 48")
        a("v_lshlrev_b32 v15, 4, v19")
        a("s_lshl_b32 s3, s2, 13")
        a(f"s_lshl_b32 s4, s{S_WV}, 11")
        a("s_add_u32 s3, s3, s4")
        a("s_waitcnt lgkmcnt(0)")
        for k, p in enumerate((80, 82)):
            srd(a, 84, p, 2097152)
            for i in range(2):
                a(f"buffer_load_dwordx4 v[{160 + 8 * k + 4 * i}:{163 + 8 * k + 4 * i}], v15, s[84:87], s3 offen offset:{i * 1024}")

    def epilogue_B(self, a):
        ws, sm = f"s[{S_WS}:{S_WS+3}]", self.store_mod
        RS = 136
        a("v_lshrrev_b32 v21, 4, v19")
        a("v_and_b32 v20, 15, v19")
        a(f"s_and_b32 s7, s{S_WV}, 3")
        a("v_bfe_u32 v22, v19, 2, 2")
        a("v_lshl_add_u32 v22, v21, 2, v22")
        a(f"v_mul_u32_u24 v23, {RS}, v22")
        a("v_lshlrev_b32 v22, 6, v22")
        a("v_and_b32 v24, 3, v19")
        a("v_lshl_add_u32 v22, v24, 3, v22")
        a(f"s_lshl_b32 s3, s{S_HH}, 11")
        a(f"s_add_u32 s3, s3, {L_WP}")
        a("v_add_u32 v22, s3, v22")
        a(f"s_mul_i32 s3, s7, {64 * RS}")
        a("v_lshl_add_u32 v23, v24, 3, v23")
        a("v_add_u32 v23, s3, v23")
        a(f"v_mul_u32_u24 v18, {RS}, v20")
        a("v_lshl_add_u32 v18, v21, 3, v18")
        a("v_add_u32 v18, s3, v18")
        a("v_lshlrev_b32 v15, 4, v19")
        KB = lambda t: acc(1, 0, t)
        VB = lambda dt, T: acc(2, dt, 2 * T)
        for tk in range(4):
            for l in self.pack(acc(1, 0, tk), acc(1, 1, tk)): a(l)
        for tk in range(4):
            for l in self.pack(acc(0, 0, tk), acc(0, 1, tk)): a(l)
        a(f"s_lshl_b32 s3, s{S_HD}, 17")
        a(f"s_lshl_b32 s4, s{S_MT}, 3")
        a(f"s_lshl_b32 s5, s{S_TH}, 2")
        a("s_add_u32 s4, s4, s5")
        a("s_lshl_b32 s4, s4, 10")
        a("s_add_u32 s43, s3, s4")
        a(f"s_add_u32 s43, s43, {WS_QB}")
        WPF, ONES = 48, 56
        for ft in range(2):
            for q in range(2):
                a(f"ds_read_b64_tr_b16 {vr(WPF + 4 * ft + 2 * q, 2)}, v22 offset:{q * 1024 + ft * 32}")
        a(f"v_mov_b32 v{ONES}, 0x3f803f80")
        for r in range(1, 4): a(f"v_mov_b32 v{ONES + r}, v{ONES}")
        for dt in range(2):
            for T in range(2):
                for l in self.pack(acc(2, dt, 2 * T), acc(2, dt, 2 * T + 1)): a(l)
        l2e = f32bits(LOG2E)
        a(f"s_mov_b32 s36, {l2e}")
        a(f"s_mov_b32 s37, {l2e}")
        a(f"s_mov_b32 s40, {f32bits(-LOG2E)}")
        a(f"s_mov_b32 s41, {f32bits(-LOG2E)}")
        a("s_waitcnt lgkmcnt(0)")
        P = lambda t, i: 160 + 8 * t + i
        EP = lambda t, i: 192 + 8 * t + i
        BP = lambda t: 80 + 4 * t
        BM = lambda t: 112 + 4 * t
        SS = lambda t, sg: (132 + 8 * t) if sg == 0 else (224 + 4 * t)
        mx, mn, tm = (lambda t: 24 + 2 * t), (lambda t: 32 + 2 * t), (lambda t: 40 + t)
        T4 = range(4)
        for t in T4:
            for ft in range(2):
                a(f"v_mfma_f32_16x16x32_bf16 {vr(P(t, 4 * ft), 4)}, {vr(WPF + 4 * ft, 4)}, {vr(KB(t), 4)}, 0")
        stores = [f"buffer_store_dwordx4 {vr(acc(0, 0, tk), 4)}, v15, {ws}, s43 offen offset:{tk * 1024} {sm}" for tk in range(4)]
        a("s_nop 7")
        B = a
        for t in T4:
            B(f"v_max3_f32 v{mx(t)}, v{P(t,0)}, v{P(t,1)}, v{P(t,2)}")
            B(f"v_min3_f32 v{mn(t)}, v{P(t,0)}, v{P(t,1)}, v{P(t,2)}")
        for i in (3, 5):
            for t in T4:
                B(f"v_max3_f32 v{mx(t)}, v{mx(t)}, v{P(t,i)}, v{P(t,i+1)}")
                B(f"v_min3_f32 v{mn(t)}, v{mn(t)}, v{P(t,i)}, v{P(t,i+1)}")
        for t in T4:
            B(f"v_max_f32 v{mx(t)}, v{mx(t)}, v{P(t,7)}")
            B(f"v_min_f32 v{mn(t)}, v{mn(t)}, v{P(t,7)}")
        for t in T4: B(f"v_sub_f32 v{mn(t)}, 0, v{mn(t)}")
        B("s_nop 1")
        for t in T4: B(f"v_permlane32_swap_b32 v{mx(t)}, v{mn(t)}")
        B("s_nop 1")
        for t in T4: B(f"v_max_f32 v{mx(t)}, v{mx(t)}, v{mn(t)}")
        for t in T4: B(f"v_mov_b32 v{tm(t)}, v{mx(t)}")
        B("s_nop 1")
        for t in T4: B(f"v_permlane16_swap_b32 v{mx(t)}, v{tm(t)}")
        B("s_nop 1")
        for t in T4: B(f"v_max_f32 v{mx(t)}, v{mx(t)}, v{tm(t)}")
        for t in T4: B(f"v_mov_b32 v{mn(t)}, v{mx(t)}")
        B("s_nop 1")
        for t in T4: B(f"v_permlane32_swap_b32 v{mx(t)}, v{mn(t)}")
        B("s_nop 1")
        for t in T4:
            B(f"v_mul_f32 v{mx(t)}, s40, v{mx(t)}")
            B(f"v_mul_f32 v{mn(t)}, s40, v{mn(t)}")
        for t in T4:
            for i in range(0, 8, 2):
                B(f"v_pk_fma_f32 {vr(EP(t,i), 2)}, {vr(P(t,i), 2)}, s[36:37], {vr(mx(t), 2)} op_sel_hi:[1,1,0]")
                B(f"v_pk_fma_f32 {vr(P(t,i), 2)}, {vr(P(t,i), 2)}, s[40:41], {vr(mn(t), 2)} op_sel_hi:[1,1,0]")
        for t in T4:
            for i in range(8):
                B(f"v_exp_f32 v{EP(t,i)}, v{EP(t,i)}")
                B(f"v_exp_f32 v{P(t,i)}, v{P(t,i)}")
        B("s_nop 0")
        for t in T4:
            for k in range(4):
                B(f"v_cvt_pk_bf16_f32 v{BP(t) + k}, v{EP(t,2*k)}, v{EP(t,2*k+1)}")
                B(f"v_cvt_pk_bf16_f32 v{BM(t) + k}, v{P(t,2*k)}, v{P(t,2*k+1)}")
        B("s_nop 1")
        for t in T4:
            B(f"v_mfma_f32_16x16x32_bf16 {vr(SS(t, 0), 4)}, {vr(ONES, 4)}, {vr(BP(t), 4)}, 0")
            B(f"v_mfma_f32_16x16x32_bf16 {vr(SS(t, 1), 4)}, {vr(ONES, 4)}, {vr(BM(t), 4)}, 0")
        for st in stores: B(st)
        B("s_nop 3")
        for t in T4:
            B(f"v_rcp_f32 v{SS(t, 0)}, v{SS(t, 0)}")
            B(f"v_rcp_f32 v{SS(t, 1)}, v{SS(t, 1)}")
        B("s_nop 0")
        for t in T4:
            for i in range(0, 8, 2):
                B(f"v_pk_mul_f32 {vr(EP(t,i), 2)}, {vr(EP(t,i), 2)}, {vr(SS(t, 0), 2)} op_sel_hi:[1,0]")
                B(f"v_pk_mul_f32 {vr(P(t,i), 2)}, {vr(P(t,i), 2)}, {vr(SS(t, 1), 2)} op_sel_hi:[1,0]")
        for t in T4:
            for k in range(4):
                B(f"v_cvt_pk_bf16_f32 v{BP(t) + k}, v{EP(t,2*k)}, v{EP(t,2*k+1)}")
                B(f"v_cvt_pk_bf16_f32 v{BM(t) + k}, v{P(t,2*k)}, v{P(t,2*k+1)}")
            row = t * 16 * RS
            for ft in range(2):
                B(f"ds_write_b64 v18, {vr(BP(t) + 2 * ft, 2)} offset:{row + ft * 32}")
                B(f"ds_write_b64 v18, {vr(BM(t) + 2 * ft, 2)} offset:{row + 64 + ft * 32}")
        self.pstamp(a, 4)
        a("s_waitcnt lgkmcnt(0)")
        AF, KV = 160, 192
        for sf in range(4):
            for T in range(2):
                for q in range(2):
                    a(f"ds_read_b64_tr_b16 {vr(AF + (sf * 2 + T) * 4 + 2 * q, 2)}, v23 offset:{(32 * T + 16 * q) * RS + sf * 32}")
        XB = 40960
        a(f"s_mul_i32 s3, s7, 12288")
        a(f"s_add_u32 s3, s3, {XB}")
        a("v_add_u32 v20, s3, v15")
        a("s_and_b32 s4, s7, 2")
        a("s_mul_i32 s4, s4, 12288")
        a(f"s_mul_i32 s5, s{S_TH}, 6144")
        a("s_add_u32 s4, s4, s5")
        a(f"s_add_u32 s4, s4, {XB}")
        a("v_add_u32 v22, s4, v15")
        for sf in range(4):
            a(f"s_waitcnt lgkmcnt({(3 - sf) * 4})")
            for T in range(2):
                A = vr(AF + (sf * 2 + T) * 4, 4)
                for dt in range(3):
                    d = vr(KV + (sf * 3 + dt) * 4, 4)
                    Bop = vr(VB(dt, T), 4) if dt < 2 else vr(ONES, 4)
                    a(f"v_mfma_f32_16x16x32_bf16 {d}, {A}, {Bop}, {d if T else 0}")
        a(f"s_lshl_b32 s3, s{S_HD}, 4")
        a(f"s_add_u32 s3, s3, s{S_MT}")
        a("s_lshl_b32 s3, s3, 14")
        a(f"s_add_u32 s3, s3, {WS_KVP}")
        a(f"s_lshl_b32 s4, s{S_TH}, 12")
        a("s_add_u32 s4, s4, s3")
        a(f"s_lshl_b32 s6, s{S_TH}, 7")
        a("s_add_u32 s6, s6, s3")
        a("s_add_u32 s6, s6, 8192")
        a("v_lshlrev_b32 v21, 4, v21")
        for k in range(12): a(f"ds_write_b128 v20, {vr(KV + 4 * k, 4)} offset:{k * 1024}")
        a("s_waitcnt lgkmcnt(0)")
        self.pstamp(a, 5)
        a("s_barrier")
        for w in range(2):
            for k in range(6):
                a(f"ds_read_b128 {vr(160 + (w * 6 + k) * 4, 4)}, v22 offset:{w * 12288 + k * 1024}")
        a("s_waitcnt lgkmcnt(0)")
        for i in range(0, 24, 2):
            a(f"v_pk_add_f32 {vr(160 + i, 2)}, {vr(160 + i, 2)}, {vr(184 + i, 2)}")
        for ft in range(2):
            for dt in range(2):
                a(f"buffer_store_dwordx4 {vr(160 + (ft * 3 + dt) * 4, 4)}, v15, {ws}, s4 offen offset:{(ft * 2 + dt) * 1024} {sm}")
            a(f"buffer_store_dwordx4 {vr(160 + (ft * 3 + 2) * 4, 4)}, v21, {ws}, s6 offen offset:{ft * 64} {sm}")
        self.after_E2_B(a)
```

```python
from asmlib import *
from layout import *
import k2d
from k2d import K2d, S_WS, S_WV, S_QG, S_KH, S_QB, S_H, V_LANE16

NSLOT, SLOT = 8, 16384
LDS_K23 = max(k2d.LDS_K2, NSLOT * SLOT)
V_WO = 247
V_WRA, V_WRB, V_WRH = 4, 8, 140
FW, ACC, FO = 16, 48, 80
S_WA, S_WB, S_OUT = 76, 80, 52
S_MT, S_NT, S_SOO, S_SOW, S_W2K, S_OB, S_FOWN, S_FWAIT = 60, 61, 62, 63, 64, 65, 70, 71
V_F = 144
S_TSRD, S_TCH, V_TD = 84, 88, 208
SPIN_LIMIT = 1 << 22

class K23(K2d):
    def __init__(self, name, wd=4, od=3, out_mod="nt", touch=False, sleep=2, old="sc1", **kw):
        super().__init__(name, **kw)
        self.wd, self.od, self.out_mod, self.touch = wd, od, out_mod, touch
        self.sleep = sleep
        self.old = old

    def dma_w(self, st):
        srd_ = S_WA if st < 8 else S_WB
        return [f"s_add_u32 m0, s{S_W2K}, {(st % NSLOT) * SLOT}", f"s_mov_b32 s{S_SOW}, {(st & 7) << 18}",
                f"buffer_load_dwordx4 v{V_WO}, s[{srd_}:{srd_+3}], s{S_SOW} offen lds",
                f"buffer_load_dwordx4 v{V_WO + 1}, s[{srd_}:{srd_+3}], s{S_SOW} offen offset:1024 lds"]

    def load_o(self, st):
        buf = st % self.od
        r = []
        for b in range(2):
            r += [f"s_add_u32 s{S_SOO}, s{S_OB}, {(4 * st + 2 * b) * 131072}",
                  f"buffer_load_dwordx4 {vr(FO + 16 * buf + 8 * b, 4)}, v{V_LANE16}, s[{S_WS}:{S_WS+3}], s{S_SOO} offen {self.old}",
                  f"buffer_load_dwordx4 {vr(FO + 16 * buf + 8 * b + 4, 4)}, v{V_LANE16}, s[{S_WS}:{S_WS+3}], s{S_SOO} offen offset:1024 {self.old}"]
        return r

    def rd_w(self, st, b):
        part, slot = st >> 3, st % NSLOT
        base = V_WRH if slot >= 4 else (V_WRA if part == 0 else V_WRB)
        qoff = 1024 if part == 0 else 2048
        return [f"ds_read_b64_tr_b16 {vr(FW + 16 * b + 4 * ct + 2 * q, 2)}, v{base + ct} offset:{(slot & 3) * SLOT + b * 8192 + q * qoff}"
                for ct in range(4) for q in range(2)]

    def omfmas(self, buf, b):
        return [f"v_mfma_f32_16x16x32_bf16 {vr(ACC + (i * 4 + ct) * 4, 4)}, {vr(FW + 16 * b + 4 * ct, 4)}, {vr(FO + 16 * buf + 8 * b + 4 * i, 4)}, {vr(ACC + (i * 4 + ct) * 4, 4)}"
                for ct in range(4) for i in range(2)]

    def ostage(self, a, st, issue_w, issue_o, vm_mid, vm_top, last=False):
        buf = st % self.od
        a(f"s_waitcnt vmcnt({vm_top}) lgkmcnt(0)")
        for l in interleave(self.omfmas(buf, 0), [(i, [r]) for i, r in enumerate(self.rd_w(st, 1))]): a(l)
        a("s_waitcnt lgkmcnt(0)")
        m = self.omfmas(buf, 1)
        if last:
            for l in m: a(l)
            return
        pre = []
        if st + 1 in (4, 12):
            nxt = V_WRA if (st + 1) >> 3 == 0 else V_WRB
            pre = [f"v_add_u32 v{V_WRH + c}, {4 * SLOT}, v{nxt + c}" for c in range(4)]
        extra = Asm()
        if st == 8 - self.od - 1: self.poll(extra, 1, "pollB")
        fill = [(0, pre + [l.strip() for l in extra.lines] + [f"s_waitcnt vmcnt({vm_mid})", "s_barrier"])]
        for i, r in enumerate(self.rd_w(st + 1, 0)): fill.append((1 + i * 6 // 8, [r]))
        fill.append((7, self.dma_w(st + self.wd) if issue_w else []))
        for l in interleave(m, fill): a(l)
        if issue_o:
            for l in self.load_o(st + self.od): a(l)

    def entry_extra(self, a):
        a("s_load_dwordx2 s[66:67], s[0:1], 16")
        a("s_load_dwordx2 s[68:69], s[0:1], 48")
        a("s_load_dwordx2 s[72:73], s[0:1], 64")

    def early_setup(self, a):
        a("s_and_b32 s3, s2, 7")
        a("s_lshr_b32 s6, s2, 3")
        a("s_lshr_b32 s7, s3, 1")
        a("s_lshl_b32 s7, s7, 2")
        a(f"s_and_b32 s{S_MT}, s6, 3")
        a(f"s_add_u32 s{S_MT}, s{S_MT}, s7")
        a("s_and_b32 s7, s3, 1")
        a("s_lshl_b32 s7, s7, 3")
        a(f"s_lshr_b32 s{S_NT}, s6, 2")
        a(f"s_add_u32 s{S_NT}, s{S_NT}, s7")
        srd(a, S_WA, 66, 2097152)
        srd(a, S_WB, 68, 2097152)
        srd(a, S_OUT, 72, 4194304)
        t0, t1, t2 = 216, 217, 218
        a(f"v_and_b32 v{t0}, 63, v0")
        a(f"v_lshrrev_b32 v{t1}, 3, v{t0}")
        a(f"v_and_b32 v{t2}, 7, v{t0}")
        a(f"v_bfe_u32 v{t0}, v{t0}, 4, 2")
        a(f"v_lshlrev_b32 v{t0}, 1, v{t0}")
        a(f"v_xor_b32 v{t2}, v{t2}, v{t0}")
        a(f"v_lshlrev_b32 v{t1}, 11, v{t1}")
        a(f"v_lshl_add_u32 v{t1}, v{t2}, 4, v{t1}")
        a(f"s_lshl_b32 s3, s{S_NT}, 7")
        a(f"v_add_u32 v{t1}, s3, v{t1}")
        a(f"s_lshl_b32 s3, s{S_WV}, 15")
        a(f"v_add_u32 v{V_WO}, s3, v{t1}")
        a(f"s_add_u32 s3, s3, {16384 - 1024}")
        a(f"v_add_u32 v{V_WO + 1}, s3, v{t1}")
        a(f"s_lshl_b32 s{S_W2K}, s{S_WV}, 11")
        a(f"s_lshl_b32 s3, s{S_MT}, 3")
        a(f"s_lshl_b32 s6, s{S_QG}, 1")
        a("s_add_u32 s3, s3, s6")
        a("s_lshl_b32 s3, s3, 10")
        a(f"s_lshl_b32 s6, s{S_KH}, 17")
        a("s_add_u32 s3, s3, s6")
        a(f"s_add_u32 s{S_OB}, s3, {WS_O}")
        a(f"s_lshl_b32 s3, s{S_QB}, 12")
        a(f"s_lshl_b32 s6, s{S_H}, 2")
        a("s_add_u32 s3, s3, s6")
        a(f"s_add_u32 s{S_FOWN}, s3, {WS_FLAG}")
        a(f"s_lshr_b32 s3, s{S_MT}, 1")
        a("s_lshl_b32 s3, s3, 12")
        a(f"s_add_u32 s{S_FWAIT}, s3, {WS_FLAG}")
        if self.touch: self.touch_setup(a)

    def touch_setup(self, a):
        a("s_and_b32 s3, s2, 1")
        a("s_lshl_b32 s3, s3, 10")
        a("s_lshr_b32 s6, s2, 3")
        a("s_and_b32 s7, s6, 15")
        a("s_lshl_b32 s7, s7, 6")
        a(f"s_lshl_b32 s89, s{S_WV}, 3")
        a("s_add_u32 s7, s7, s89")
        a("s_lshl_b32 s7, s7, 11")
        a(f"s_add_u32 s{S_TCH}, s7, s3")
        a("s_cmp_lt_u32 s6, 16")
        a(f"s_cselect_b32 s{S_TSRD}, s66, s68")
        a(f"s_cselect_b32 s{S_TSRD+1}, s67, s69")
        a(f"s_and_b32 s{S_TSRD+1}, s{S_TSRD+1}, 0xffff")
        a(f"s_mov_b32 s{S_TSRD+2}, 2097152")
        a(f"s_mov_b32 s{S_TSRD+3}, 0x00020000")
    def touch_lines(self):
        if not self.touch: return []
        return [f"buffer_load_dwordx4 v[{V_TD}:{V_TD+3}], v{V_LANE16}, s[{S_TSRD}:{S_TSRD+3}], s{S_TCH} offen", f"s_add_u32 s{S_TCH}, s{S_TCH}, 2048"]

    def after_decision(self, a):
        assert self.wd <= 4
        for st in range(self.wd):
            for l in self.dma_w(st): a(l)

    def signal(self, a, part, tag):
        n = self.name
        a(f"s_cmp_lg_u32 s{S_WV}, 0")
        a(f"s_cbranch_scc1 {n}_{tag}")
        a("s_mov_b64 exec, 1")
        a(f"v_mov_b32 v{V_F}, {128 * part}")
        a(f"v_mov_b32 v{V_F + 1}, 1")
        a(f"buffer_store_dword v{V_F + 1}, v{V_F}, s[{S_WS}:{S_WS+3}], s{S_FOWN} offen sc1")
        a("s_mov_b64 exec, -1")
        a.label(f"{n}_{tag}")

    def poll(self, a, part, tag):
        n = self.name
        a(f"s_cmp_lg_u32 s{S_WV}, 0")
        a(f"s_cbranch_scc1 {n}_{tag}_skip")
        a(f"v_and_b32 v{V_F}, 31, v0")
        a(f"v_lshlrev_b32 v{V_F}, 2, v{V_F}")
        a(f"s_mov_b32 s6, {SPIN_LIMIT}")
        a.label(f"{n}_{tag}")
        a(f"buffer_load_dword v{V_F + 1}, v{V_F}, s[{S_WS}:{S_WS+3}], s{S_FWAIT} offen offset:{128 * part} sc1")
        a("s_waitcnt vmcnt(0)")
        a(f"v_cmp_eq_u32 vcc, 1, v{V_F + 1}")
        a("s_sub_u32 s6, s6, 1")
        a("s_cmp_eq_u32 s6, 0")
        a(f"s_cbranch_scc1 {n}_{tag}_skip")
        a("s_cmp_eq_u32 vcc_lo, -1")
        a(f"s_cbranch_scc1 {n}_{tag}_skip")
        a(f"s_sleep {self.sleep}")
        a(f"s_branch {n}_{tag}")
        a.label(f"{n}_{tag}_skip")

    def b_mid(self, a):
        a("s_waitcnt vmcnt(0)")
        a("s_barrier")
        self.signal(a, 0, "sigA")

    def project(self, a):
        n = self.name
        WD, OD = self.wd, self.od
        self.pstamp(a, 6)
        self.poll(a, 0, "pollA")
        a("v_and_b32 v12, 63, v0")
        a("v_lshrrev_b32 v13, 4, v12")
        a("v_bfe_u32 v14, v12, 2, 2")
        a("v_and_b32 v15, 1, v13")
        a("v_lshrrev_b32 v16, 1, v14")
        a("v_lshl_add_u32 v16, v15, 1, v16")
        a("v_lshlrev_b32 v16, 1, v16")
        a("v_bfe_u32 v17, v12, 1, 1")
        a("v_and_b32 v18, 1, v12")
        a("v_lshlrev_b32 v18, 3, v18")
        a(f"s_lshl_b32 s3, s{S_KH}, 12")
        a("v_add_u32 v18, s3, v18")
        a("v_lshrrev_b32 v19, 1, v13")
        a("v_lshlrev_b32 v19, 4, v19")
        a("v_lshl_add_u32 v19, v15, 2, v19")
        a("v_add_u32 v19, v19, v14")
        a("v_lshl_add_u32 v20, v13, 2, v14")
        for ct in range(4):
            a(f"v_add_u32 v21, {2 * ct}, v17")
            a("v_xor_b32 v21, v21, v16")
            a("v_lshl_add_u32 v21, v21, 4, v18")
            a(f"v_lshl_add_u32 v{V_WRA + ct}, v19, 7, v21")
            a(f"v_lshl_add_u32 v{V_WRB + ct}, v20, 7, v21")
        for r in range(32): a(f"v_mov_b32 v{ACC + r}, 0")
        a("s_waitcnt vmcnt(0)")
        a("s_barrier")
        self.signal(a, 1, "sigB")
        self.pstamp(a, 7)
        q = []
        for s in range(OD):
            for l in self.load_o(s): a(l)
            q += [("o", s)] * 4
        for l in self.rd_w(0, 0): a(l)
        def allowed(tag):
            idx = max((i for i, t in enumerate(q) if t == tag), default=None)
            return len(q) if idx is None else len(q) - 1 - idx
        for s in range(16):
            top = allowed(("o", s))
            mid = allowed(("W", s + 1)) if s < 15 else 0
            iw, io = s + WD < 16, s + OD < 16
            self.ostage(a, s, iw, io, min(mid, 63), min(top, 63), last=(s == 15))
            if iw: q += [("W", s + WD)] * 2
            if io: q += [("o", s + OD)] * 4
        self.pstamp(a, 8)
        a("s_barrier")
        a(f"s_lshl_b32 s3, s{S_WV}, 12")
        a(f"v_add_u32 v2, s3, v{V_LANE16}")
        a(f"s_xor_b32 s3, s{S_WV}, 4")
        a("s_lshl_b32 s3, s3, 12")
        a(f"v_add_u32 v3, s3, v{V_LANE16}")
        a(f"s_cmp_eq_u32 s{S_KH}, 0")
        a("s_nop 7")
        a(f"s_cbranch_scc1 {n}_k0")
        for k in range(4): a(f"ds_write_b128 v2, {vr(ACC + 4 * k, 4)} offset:{k * 1024}")
        a("s_waitcnt lgkmcnt(0)")
        for r in range(16): a(f"v_mov_b32 v{ACC + r}, v{ACC + 16 + r}")
        a(f"s_branch {n}_k1")
        a.label(f"{n}_k0")
        for k in range(4): a(f"ds_write_b128 v2, {vr(ACC + 16 + 4 * k, 4)} offset:{k * 1024}")
        a.label(f"{n}_k1")
        a("s_waitcnt lgkmcnt(0)")
        a("s_barrier")
        for k in range(4): a(f"ds_read_b128 {vr(FW + 4 * k, 4)}, v3 offset:{k * 1024}")
        a("v_and_b32 v13, 15, v12")
        a(f"s_lshl_b32 s3, s{S_MT}, 7")
        a(f"s_lshl_b32 s6, s{S_QG}, 5")
        a("s_add_u32 s3, s3, s6")
        a(f"s_lshl_b32 s6, s{S_KH}, 4")
        a("s_add_u32 s3, s3, s6")
        a("v_add_u32 v13, s3, v13")
        a("v_lshlrev_b32 v13, 11, v13")
        a("v_bfe_u32 v14, v12, 4, 1")
        a("v_lshl_add_u32 v13, v14, 5, v13")
        a("v_lshrrev_b32 v14, 5, v12")
        a("v_lshl_add_u32 v13, v14, 4, v13")
        a(f"s_lshl_b32 s3, s{S_NT}, 7")
        a("s_waitcnt lgkmcnt(0)")
        for r in range(0, 16, 2):
            a(f"v_pk_add_f32 {vr(ACC + r, 2)}, {vr(ACC + r, 2)}, {vr(FW + r, 2)}")
        for pr in range(2):
            t = FW + 16 + 4 * pr
            for i2 in range(2):
                b = ACC + (pr * 2 + i2) * 4
                a(f"v_cvt_pk_bf16_f32 v{t + 2 * i2}, v{b}, v{b + 1}")
                a(f"v_cvt_pk_bf16_f32 v{t + 2 * i2 + 1}, v{b + 2}, v{b + 3}")
            a("s_nop 1")
            a(f"v_permlane16_swap_b32 v{t}, v{t + 2}")
            a(f"v_permlane16_swap_b32 v{t + 1}, v{t + 3}")
            a(f"buffer_store_dwordx4 {vr(t, 4)}, v13, s[{S_OUT}:{S_OUT+3}], s3 offen offset:{pr * 64} {self.out_mod}")
```

```python
from asmlib import *
from layout import *
from prof import Prof
from dbgstamp import dbg_setup, dbg_stamp

MARGIN = 90.0
TPS, TPW = 8, 4
STG = TPS * 4096
LDS_MISC = 2 * STG
L_KV, L_Z, L_WP, L_VOTE, L_SPARE = 0, 4096, 6144, 8192, 8448
L_XO = LDS_MISC + 8448 + 1024
LDS_K2 = L_XO + 8 * 5120

V_LANE16, V_T0, V_T1, V_T2, V_T3, V_G, V_RD = 1, 2, 3, 4, 5, 6, 7
VQ, VC, VS, VP, VKF, VVF, VO, VL, VONE = 8, 24, 56, 88, 96, 112, 128, 160, 168
S_WS, S_K, S_V = 8, 12, 16
S_H, S_QB, S_WV, S_SOFF, S_CNT, S_MODE, S_WOFF, S_QG, S_KH = 20, 21, 22, 23, 24, 25, 26, 27, 32
S_KVP, S_PKV, S_PZ = 44, 48, 49
VKA, VPT, VQB, VGB, V_ZOFF = 176, 184, 200, 244, 246

class K2d(Prof):
    V_PROF = 250
    def __init__(self, name, prof=False, store_mod="nt", force_fallback=False, margin=MARGIN, sched=1, bapply=True, prio=0, diag=(), code=None, dbg=None, wsbase=0):
        self.name, self.prof, self.store_mod = name, prof, store_mod
        self.force_fallback, self.margin, self.sched, self.bapply, self.prio = force_fallback, margin, sched, bapply, prio
        self.diag = set(diag)
        self.code = code
        self.wsbase = wsbase
        self.dbg = dbg

    def dma_piece(self, slot, i):
        kv, n = i >> 1, i & 1
        srd_ = S_K if kv == 0 else S_V
        ins = []
        if n == 0:
            ins += [f"s_add_u32 m0, s{S_WOFF}, {slot * STG + kv * (STG // 2)}", "s_nop 0"]
        ins.append(f"buffer_load_dwordx4 v{V_LANE16}, s[{srd_}:{srd_+3}], s{S_SOFF} offen offset:{n * 1024} lds")
        if i == 3:
            ins.append(f"s_add_u32 s{S_SOFF}, s{S_SOFF}, {STG // 2}")
        return ins
    def dma_stage(self, slot):
        return [l for i in range(4) for l in self.dma_piece(slot, i)]

    @staticmethod
    def koff(j): return (j // TPW) * STG + (j % TPW) * 2048
    def rdK(self, j):
        b = VKF + 8 * (j & 1); j %= 2 * TPW
        return [f"ds_read_b128 {vr(b + 4 * st, 4)}, v{V_RD} offset:{self.koff(j) + st * 1024}" for st in range(2)]
    def rdV(self, j):
        b = VVF + 8 * (j & 1); j %= 2 * TPW
        return [f"ds_read_b128 {vr(b + 4 * st, 4)}, v{V_RD} offset:{self.koff(j) + STG // 2 + st * 1024}" for st in range(2)]

    def unit(self, a, j, qt):
        u = 2 * j + qt
        s, sn = VS + 16 * (u & 1), VS + 16 * ((u + 1) & 1)
        jn, qn = (j + (qt == 1), qt ^ 1)
        kn = VKF + 8 * (jn & 1)
        jp, qp = (j - (qt == 0), qt ^ 1)
        v, vp = VVF + 8 * (j & 1), VVF + 8 * (jp & 1)
        e = lambda r: f"v_exp_f32 v{s + r}, v{s + r}"
        c = lambda k: f"v_cvt_pk_bf16_f32 v{VP + k}, v{s + 2 * k}, v{s + 2 * k + 1}"
        O, Op, Lq, Lp = VO + 16 * qt, VO + 16 * qp, VL + 4 * qt, VL + 4 * qp
        Sa = f"v_mfma_f32_32x32x16_bf16 {vr(sn, 16)}, {vr(kn, 4)}, {vr(VQ + 8 * qn, 4)}, {vr(VC + 16 * qn, 16)}"
        Sb = f"v_mfma_f32_32x32x16_bf16 {vr(sn, 16)}, {vr(kn + 4, 4)}, {vr(VQ + 8 * qn + 4, 4)}, {vr(sn, 16)}"
        PVa = f"v_mfma_f32_32x32x16_bf16 {vr(O, 16)}, {vr(v, 4)}, {vr(VP, 4)}, {vr(O, 16)}"
        PVb = f"v_mfma_f32_32x32x16_bf16 {vr(Op, 16)}, {vr(vp + 4, 4)}, {vr(VP + 4, 4)}, {vr(Op, 16)}"
        La = f"v_mfma_f32_16x16x32_bf16 {vr(Lq, 4)}, {vr(VONE, 4)}, {vr(VP, 4)}, {vr(Lq, 4)}"
        Lb = f"v_mfma_f32_16x16x32_bf16 {vr(Lp, 4)}, {vr(VONE, 4)}, {vr(VP + 4, 4)}, {vr(Lp, 4)}"
        rd = self.rdK(j + 1) if qt == 0 else self.rdV(j + 1)
        top = ["s_waitcnt lgkmcnt(0)"]
        jj = j % TPW
        if jj == TPW - 1 and qt == 0:
            top += ["s_waitcnt vmcnt(0)", "s_barrier"]
            if self.bapply: top += self.part_add() + self.part_loads()
            if hasattr(self, "touch_lines"): top += self.touch_lines()
        k = (2 * jj + qt - 2 * (TPW - 1)) % (2 * TPW)
        dm = []
        if k < 4:
            dm = self.dma_piece((((j + 1) // TPW) + 1) & 1, k)
        r0, r1 = rd[:1], rd[1:]
        if self.sched == 1:
            seq = (top + [e(0)] + r0 + [e(1)] + r1 + [e(2), e(3), Sa, c(0), c(1), e(4), e(5), Lb, e(6), e(7), c(2), c(3), Sb,
                   e(8)] + dm + [e(9), e(10), e(11), PVb, c(4), c(5), e(12), e(13), PVa, e(14), e(15), c(6), c(7), La])
        elif self.sched == 2:
            seq = (top + r0 + r1 + [e(0), e(1), e(2), e(3), Sa, c(0), c(1), e(4), e(5), Lb, e(6), e(7), c(2), c(3), Sb] + dm +
                   [e(8), e(9), e(10), e(11), PVb, c(4), c(5), e(12), e(13), PVa, e(14), e(15), c(6), c(7), La])
        D = self.diag
        if "nord" in D: seq = [l for l in seq if not l.startswith("ds_read")]
        if "noL" in D: seq = [l for l in seq if "16x16x32" not in l]
        for l in seq: a(l)

    def halfmax(self, a, x, t):
        a(f"v_mov_b32 v{t}, v{x}")
        a("s_nop 1")
        a(f"v_permlane32_swap_b32 v{x}, v{t}")
        a("s_nop 1")
        a(f"v_max_f32 v{x}, v{x}, v{t}")

    NT = 2
    def part_loads(self):
        kvp = f"s[{S_KVP}:{S_KVP+3}]"
        r = []
        for b in range(2):
            r += [f"buffer_load_dwordx4 {vr(VPT + 8 * b, 4)}, v{V_LANE16}, {kvp}, s{S_PKV} offen",
                  f"buffer_load_dwordx4 {vr(VPT + 8 * b + 4, 4)}, v{V_ZOFF}, {kvp}, s{S_PZ} offen",
                  f"s_add_u32 s{S_PKV}, s{S_PKV}, {KVP_STRIDE}", f"s_add_u32 s{S_PZ}, s{S_PZ}, {KVP_STRIDE}"]
        return r
    def part_add(self):
        return [f"v_pk_add_f32 {vr(VKA + r, 2)}, {vr(VKA + r, 2)}, {vr(VPT + 8 * b + r, 2)}" for b in range(2) for r in range(0, 8, 2)]
    def part_reset(self):
        return ([f"s_lshl_b32 s{S_PKV}, s{S_WV}, 10", f"s_and_b32 s{S_PZ}, s{S_WV}, 3", f"s_lshl_b32 s{S_PZ}, s{S_PZ}, 6",
                 f"s_add_u32 s{S_PZ}, s{S_PZ}, 8192"] + [f"v_mov_b32 v{VKA + r}, 0" for r in range(8)])

    def b_loads(self, a):
        ws = f"s[{S_WS}:{S_WS+3}]"
        a(f"s_lshl_b32 s6, s{S_QB}, 4")
        a(f"s_lshl_b32 s7, s{S_WV}, 1")
        a("s_add_u32 s6, s6, s7")
        a("s_lshl_b32 s7, s6, 10")
        a(f"s_lshl_b32 s3, s{S_H}, 17")
        a("s_add_u32 s7, s7, s3")
        a(f"s_add_u32 s7, s7, {WS_QB}")
        for t in range(self.NT):
            a(f"buffer_load_dwordx4 {vr(VQB + 4 * t, 4)}, v{V_LANE16}, {ws}, s7 offen offset:{t * 1024}")
        a("s_lshl_b32 s7, s6, 6")
        a(f"s_add_u32 s7, s7, {WS_G}")
        a(f"v_and_b32 v{V_T0}, 15, v{V_T1}")
        a(f"v_lshlrev_b32 v{V_T0}, 2, v{V_T0}")
        for t in range(self.NT):
            a(f"buffer_load_dword v{VGB + t}, v{V_T0}, {ws}, s7 offen offset:{t * 64}")
        a(f"s_lshl_b32 s6, s{S_H}, 11")
        a(f"s_lshl_b32 s7, s{S_WV}, 10")
        a("s_add_u32 s6, s6, s7")
        a(f"s_cmp_ge_u32 s{S_WV}, 2")
        a("s_cselect_b32 s6, 0x10000, s6")
        a(f"s_cselect_b32 s7, {L_SPARE - L_WP}, s7")
        a(f"s_add_u32 m0, s7, {LDS_MISC + L_WP}")
        a("s_nop 0")
        a(f"buffer_load_dwordx4 v{V_LANE16}, s[28:31], s6 offen lds")

    def b_publish(self, a):
        for k in range(4):
            a(f"v_cvt_pk_bf16_f32 v{VPT + k}, v{VKA + 2 * k}, v{VKA + 2 * k + 1}")
        a(f"v_and_b32 v{V_T1}, 63, v0")
        a(f"v_lshlrev_b32 v{V_T0}, 3, v{V_T1}")
        a(f"v_add_u32 v{V_T0}, {LDS_MISC}, v{V_T0}")
        a(f"s_lshl_b32 s6, s{S_WV}, 9")
        a(f"v_add_u32 v{V_T3}, s6, v{V_T0}")
        a(f"ds_write_b64 v{V_T3}, {vr(VPT, 2)} offset:{L_KV}")
        a(f"s_and_b32 s6, s{S_WV}, 3")
        a(f"s_lshl_b32 s6, s6, 9")
        a(f"v_add_u32 v{V_T3}, s6, v{V_T0}")
        a(f"ds_write_b64 v{V_T3}, {vr(VPT + 2, 2)} offset:{L_Z}")

    def b_apply(self, a):
        ws = f"s[{S_WS}:{S_WS+3}]"
        NT = self.NT
        a(f"v_and_b32 v{V_T1}, 63, v0")
        a(f"v_lshlrev_b32 v{V_T0}, 3, v{V_T1}")
        a(f"v_add_u32 v{V_T0}, {LDS_MISC}, v{V_T0}")
        for sg in range(2):
            for dt in range(2):
                for ft in range(2):
                    t = (sg * 2 + ft) * 2 + dt
                    a(f"ds_read_b64 {vr(24 + (sg * 2 + dt) * 4 + 2 * ft, 2)}, v{V_T0} offset:{L_KV + t * 512}")
            for ft in range(2):
                a(f"ds_read_b64 {vr(40 + sg * 4 + 2 * ft, 2)}, v{V_T0} offset:{L_Z + (sg * 2 + ft) * 512}")
        a(f"v_lshrrev_b32 v{V_T2}, 4, v{V_T1}")
        a(f"v_bfe_u32 v{V_T3}, v{V_T1}, 2, 2")
        a(f"v_lshl_add_u32 v{V_T2}, v{V_T2}, 2, v{V_T3}")
        a(f"v_lshlrev_b32 v{V_T2}, 6, v{V_T2}")
        a(f"v_and_b32 v{V_T3}, 3, v{V_T1}")
        a(f"v_lshl_add_u32 v{V_T2}, v{V_T3}, 3, v{V_T2}")
        a(f"v_add_u32 v{V_T2}, {LDS_MISC}, v{V_T2}")
        for ft in range(2):
            for q in range(2):
                a(f"ds_read_b64_tr_b16 {vr(48 + 4 * ft + 2 * q, 2)}, v{V_T2} offset:{L_WP + q * 1024 + ft * 32}")
        a(f"v_mov_b32 v56, 0x3f803f80")
        for r in range(1, 4): a(f"v_mov_b32 v{56 + r}, v56")
        a("s_waitcnt lgkmcnt(0)")
        for t in range(NT):
            for ft in range(2):
                a(f"v_mfma_f32_16x16x32_bf16 {vr(64 + 8 * t + 4 * ft, 4)}, {vr(48 + 4 * ft, 4)}, {vr(VQB + 4 * t, 4)}, 0")
        a("s_nop 7")
        P = lambda t, i: 64 + 8 * t + i
        MX, MN, TM = 96, 100, 104
        T = range(NT)
        for t in T:
            a(f"v_max3_f32 v{MX+2*t}, v{P(t,0)}, v{P(t,1)}, v{P(t,2)}")
            a(f"v_min3_f32 v{MN+2*t}, v{P(t,0)}, v{P(t,1)}, v{P(t,2)}")
        for i in (3, 5):
            for t in T:
                a(f"v_max3_f32 v{MX+2*t}, v{MX+2*t}, v{P(t,i)}, v{P(t,i+1)}")
                a(f"v_min3_f32 v{MN+2*t}, v{MN+2*t}, v{P(t,i)}, v{P(t,i+1)}")
        for t in T:
            a(f"v_max_f32 v{MX+2*t}, v{MX+2*t}, v{P(t,7)}")
            a(f"v_min_f32 v{MN+2*t}, v{MN+2*t}, v{P(t,7)}")
        for t in T: a(f"v_sub_f32 v{MN+2*t}, 0, v{MN+2*t}")
        a("s_nop 1")
        for t in T: a(f"v_permlane32_swap_b32 v{MX+2*t}, v{MN+2*t}")
        a("s_nop 1")
        for t in T: a(f"v_max_f32 v{MX+2*t}, v{MX+2*t}, v{MN+2*t}")
        for t in T: a(f"v_mov_b32 v{TM+2*t}, v{MX+2*t}")
        a("s_nop 1")
        for t in T: a(f"v_permlane16_swap_b32 v{MX+2*t}, v{TM+2*t}")
        a("s_nop 1")
        for t in T: a(f"v_max_f32 v{MX+2*t}, v{MX+2*t}, v{TM+2*t}")
        for t in T: a(f"v_mov_b32 v{MN+2*t}, v{MX+2*t}")
        a("s_nop 1")
        for t in T: a(f"v_permlane32_swap_b32 v{MX+2*t}, v{MN+2*t}")
        a("s_nop 1")
        EP = lambda t, i: 176 + 8 * t + i
        a(f"s_mov_b32 s36, {f32bits(LOG2E)}")
        a(f"s_mov_b32 s37, {f32bits(LOG2E)}")
        a(f"s_mov_b32 s38, {f32bits(-LOG2E)}")
        a(f"s_mov_b32 s39, {f32bits(-LOG2E)}")
        for t in T:
            a(f"v_mul_f32 v{MX+2*t}, s38, v{MX+2*t}")
            a(f"v_mul_f32 v{MN+2*t}, s38, v{MN+2*t}")
        for t in T:
            for i in range(0, 8, 2):
                a(f"v_pk_fma_f32 {vr(EP(t,i), 2)}, {vr(P(t,i), 2)}, s[36:37], {vr(MX+2*t, 2)} op_sel_hi:[1,1,0]")
                a(f"v_pk_fma_f32 {vr(P(t,i), 2)}, {vr(P(t,i), 2)}, s[38:39], {vr(MN+2*t, 2)} op_sel_hi:[1,1,0]")
        for t in T:
            for i in range(8):
                a(f"v_exp_f32 v{EP(t,i)}, v{EP(t,i)}")
                a(f"v_exp_f32 v{P(t,i)}, v{P(t,i)}")
        BP, BM = 96, 112
        if hasattr(self, "b_mid"): self.b_mid(a)
        a("s_nop 0")
        for t in T:
            for k in range(4):
                a(f"v_cvt_pk_bf16_f32 v{BP + 4*t + k}, v{EP(t,2*k)}, v{EP(t,2*k+1)}")
                a(f"v_cvt_pk_bf16_f32 v{BM + 4*t + k}, v{P(t,2*k)}, v{P(t,2*k+1)}")
        a("s_nop 1")
        for t in T:
            R = 176 + 32 * t
            bp, bm = vr(BP + 4 * t, 4), vr(BM + 4 * t, 4)
            for dt in range(2):
                a(f"v_mfma_f32_16x16x32_bf16 {vr(R + 4 * dt, 4)}, {vr(24 + 4 * dt, 4)}, {bp}, 0")
                a(f"v_mfma_f32_16x16x32_bf16 {vr(R + 8 + 4 * dt, 4)}, {vr(32 + 4 * dt, 4)}, {bm}, 0")
            a(f"v_mfma_f32_16x16x32_bf16 {vr(R + 16, 4)}, {vr(40, 4)}, {bp}, 0")
            a(f"v_mfma_f32_16x16x32_bf16 {vr(R + 20, 4)}, {vr(44, 4)}, {bm}, 0")
            a(f"v_mfma_f32_16x16x32_bf16 {vr(R + 24, 4)}, {vr(56, 4)}, {bp}, 0")
            a(f"v_mfma_f32_16x16x32_bf16 {vr(R + 28, 4)}, {vr(56, 4)}, {bm}, 0")
        a("s_nop 7")
        for t in T:
            R = 176 + 32 * t
            a(f"v_rcp_f32 v{R + 24}, v{R + 24}")
            a(f"v_rcp_f32 v{R + 28}, v{R + 28}")
        a("s_nop 0")
        for t in T:
            R = 176 + 32 * t
            a(f"v_mul_f32 v{R + 16}, v{R + 16}, v{R + 24}")
            a(f"v_sub_f32 v{R + 17}, 1.0, v{VGB + t}")
            a(f"v_fma_f32 v{R + 16}, v{R + 20}, v{R + 28}, v{R + 16}")
            a(f"v_add_f32 v{R + 16}, {f32bits(1e-6)}, v{R + 16}")
        for t in T:
            a(f"v_rcp_f32 v{176 + 32 * t + 16}, v{176 + 32 * t + 16}")
        a("s_nop 0")
        for t in T:
            R = 176 + 32 * t
            a(f"v_mul_f32 v{R + 16}, v{R + 16}, v{R + 17}")
            a(f"v_mul_f32 v{R + 24}, v{R + 24}, v{R + 16}")
            a(f"v_mul_f32 v{R + 28}, v{R + 28}, v{R + 16}")
        for t in T:
            R = 176 + 32 * t
            for i in range(8): a(f"v_mul_f32 v{R + i}, v{R + i}, v{R + 24}")
            for i in range(8): a(f"v_fma_f32 v{R + i}, v{R + 8 + i}, v{R + 28}, v{R + i}")
        for t in T:
            R = 176 + 32 * t
            for k in range(4):
                a(f"v_cvt_pk_bf16_f32 v{R + 20 + k}, v{R + 2 * k}, v{R + 2 * k + 1}")
            a(f"s_lshl_b32 s6, s{S_QB}, 4")
            a(f"s_lshl_b32 s7, s{S_WV}, 1")
            a("s_add_u32 s6, s6, s7")
            a(f"s_add_u32 s6, s6, {t}")
            a("s_lshl_b32 s6, s6, 10")
            a(f"s_lshl_b32 s7, s{S_H}, 17")
            a("s_add_u32 s6, s6, s7")
            a(f"s_add_u32 s6, s6, {WS_O + 32 * 131072}")
            a(f"buffer_store_dwordx4 {vr(R + 20, 4)}, v{V_LANE16}, {ws}, s6 offen {self.store_mod}")

    def gen(self):
        a = Asm()
        n = self.name
        ws = f"s[{S_WS}:{S_WS+3}]"
        a("s_cmp_ge_u32 s2, 256")
        a(f"s_cbranch_scc1 {n}_end")
        self.pstamp(a, 0)
        a("s_load_dwordx2 s[4:5], s[0:1], 80")
        a("s_load_dwordx2 s[34:35], s[0:1], 40")
        if hasattr(self, "entry_extra"): self.entry_extra(a)
        if self.code:
            first, last, nbytes = self.code
            code_prefetch(a, n, first, last, 8, 240, 242, 90)(-(-nbytes // 32768))
        a("s_and_b32 s3, s2, 7")
        a("s_lshr_b32 s6, s2, 3")
        a(f"s_lshl_b32 s{S_H}, s3, 2")
        a("s_lshr_b32 s7, s6, 3")
        a(f"s_add_u32 s{S_H}, s{S_H}, s7")
        a(f"s_and_b32 s{S_QB}, s6, 7")
        a("v_lshrrev_b32 v2, 6, v0")
        a(f"v_and_b32 v{V_T1}, 63, v0")
        a(f"v_lshlrev_b32 v{V_LANE16}, 4, v{V_T1}")
        a(f"v_readfirstlane_b32 s{S_WV}, v2")
        a("s_waitcnt lgkmcnt(0)")
        ws_shift(a, 4, self.wsbase)
        srd(a, S_WS, 4, 0x10000000 - self.wsbase)
        srd(a, 28, 34, 65536)
        a(f"s_lshl_b32 s3, s{S_H}, 17")
        for S, off in ((S_K, WS_KA), (S_V, WS_VA)):
            a(f"s_add_u32 s6, s3, {off}")
            a(f"s_add_u32 s{S}, s4, s6")
            a(f"s_addc_u32 s{S+1}, s5, 0")
            a(f"s_and_b32 s{S+1}, s{S+1}, 0xffff")
            a(f"s_mov_b32 s{S+2}, 131072")
            a(f"s_mov_b32 s{S+3}, 0x00020000")
        a(f"s_lshl_b32 s{S_WOFF}, s{S_WV}, 11")
        a(f"s_and_b32 s{S_QG}, s{S_WV}, 3")
        a(f"s_lshr_b32 s{S_KH}, s{S_WV}, 2")
        a(f"s_lshl_b32 s6, s{S_KH}, 13")
        a(f"v_add_u32 v{V_RD}, s6, v{V_LANE16}")
        a(f"s_lshl_b32 s6, s{S_QB}, 3")
        a(f"s_lshl_b32 s7, s{S_QG}, 1")
        a("s_add_u32 s6, s6, s7")
        a("s_lshl_b32 s7, s6, 11")
        a(f"s_lshl_b32 s3, s{S_H}, 17")
        a("s_add_u32 s7, s7, s3")
        a(f"s_add_u32 s7, s7, {WS_QA}")
        a(f"s_mov_b32 s{S_MODE}, 0")
        a(f"s_mov_b32 s{S_SOFF}, s{S_WOFF}")
        for l in self.dma_piece(0, 0) + self.dma_piece(0, 1): a(l)
        for i in range(4):
            a(f"buffer_load_dwordx4 {vr(VQ + 4 * i, 4)}, v{V_LANE16}, {ws}, s7 offen offset:{i * 1024}")
        for l in self.dma_piece(0, 2) + self.dma_piece(0, 3): a(l)
        a(f"s_add_u32 s6, s6, s{S_KH}")
        a("s_lshl_b32 s7, s6, 7")
        a(f"s_add_u32 s7, s7, {WS_G}")
        a(f"v_and_b32 v{V_T0}, 31, v{V_T1}")
        a(f"v_lshlrev_b32 v{V_T0}, 2, v{V_T0}")
        a(f"buffer_load_dword v{V_G}, v{V_T0}, {ws}, s7 offen")
        nbg = 1
        if self.bapply:
            a(f"s_lshl_b32 s6, s{S_H}, 18")
            a(f"s_add_u32 s6, s6, {WS_KVP}")
            a(f"s_add_u32 s{S_KVP}, s4, s6")
            a(f"s_addc_u32 s{S_KVP+1}, s5, 0")
            a(f"s_and_b32 s{S_KVP+1}, s{S_KVP+1}, 0xffff")
            a(f"s_mov_b32 s{S_KVP+2}, {NKVP * KVP_STRIDE}")
            a(f"s_mov_b32 s{S_KVP+3}, 0x00020000")
            a(f"v_lshrrev_b32 v{V_ZOFF}, 4, v{V_T1}")
            a(f"v_lshlrev_b32 v{V_ZOFF}, 4, v{V_ZOFF}")
            for l in self.part_reset(): a(l)
            for r in range(16): a(f"v_mov_b32 v{VPT + r}, 0")
        self.nbg = nbg
        self.pstamp(a, 1)
        a(f"v_lshrrev_b32 v{V_T0}, 4, v{V_T1}")
        a(f"v_lshrrev_b32 v{V_T2}, 2, v{V_T1}")
        a(f"v_xor_b32 v{V_T0}, v{V_T0}, v{V_T2}")
        a(f"v_and_b32 v{V_T0}, 1, v{V_T0}")
        a(f"v_mov_b32 v{V_T2}, 0x3f803f80")
        a(f"v_cmp_eq_u32 vcc, 0, v{V_T0}")
        a("s_nop 1")
        a(f"v_cndmask_b32 v{VONE}, 0, v{V_T2}, vcc")
        for r in range(1, 4): a(f"v_mov_b32 v{VONE + r}, v{VONE}")
        if hasattr(self, "early_setup"): self.early_setup(a)
        a(f"s_waitcnt vmcnt({self.nbg})")
        a(f"s_branch {n}_first")
        a.label(f"{n}_restart")
        a(f"s_mov_b32 s{S_SOFF}, s{S_WOFF}")
        for l in self.dma_stage(0): a(l)
        if self.bapply:
            for l in self.part_reset(): a(l)
            for r in range(16): a(f"v_mov_b32 v{VPT + r}, 0")
        a("s_waitcnt vmcnt(0)")
        a.label(f"{n}_first")
        for r in range(32): a(f"v_mov_b32 v{VO + r}, 0")
        for r in range(8): a(f"v_mov_b32 v{VL + r}, 0")
        for r in range(8): a(f"v_mov_b32 v{VP + r}, 0")
        for r in range(4): a(f"v_mov_b32 v{VVF + 8 + 4 + r}, 0")
        a("s_barrier")
        self.pstamp(a, 2)
        for l in self.dma_piece(1, 0) + self.dma_piece(1, 1): a(l)
        if self.bapply:
            a(f"s_cmp_lg_u32 s{S_MODE}, 0")
            a(f"s_cbranch_scc1 {n}_nobl")
            self.b_loads(a)
            a.label(f"{n}_nobl")
        a(f"s_cmp_lg_u32 s{S_MODE}, 0")
        a(f"s_cbranch_scc1 {n}_havemax")
        a(f"ds_read_b128 {vr(VKF, 4)}, v{V_LANE16}")
        a(f"ds_read_b128 {vr(VKF + 4, 4)}, v{V_LANE16} offset:1024")
        a("s_waitcnt lgkmcnt(0)")
        for qt in range(2):
            s = VS + 16 * qt
            a(f"v_mfma_f32_32x32x16_bf16 {vr(s, 16)}, {vr(VKF, 4)}, {vr(VQ + 8 * qt, 4)}, 0")
            a(f"v_mfma_f32_32x32x16_bf16 {vr(s, 16)}, {vr(VKF + 4, 4)}, {vr(VQ + 8 * qt + 4, 4)}, {vr(s, 16)}")
        a("s_nop 15")
        for qt in range(2):
            s, x = VS + 16 * qt, V_T0 + 2 * qt
            a(f"v_max3_f32 v{x}, v{s}, v{s + 1}, v{s + 2}")
            for r in range(3, 15, 2):
                a(f"v_max3_f32 v{x}, v{x}, v{s + r}, v{s + r + 1}")
            a(f"v_max_f32 v{x}, v{x}, v{s + 15}")
        for qt in range(2):
            x = V_T0 + 2 * qt
            self.halfmax(a, x, V_T3)
            a(f"v_add_f32 v{x}, {f32bits(self.margin)}, v{x}")
            a(f"v_sub_f32 v{VC + 16 * qt}, 0, v{x}")
            for r in range(1, 16): a(f"v_mov_b32 v{VC + 16 * qt + r}, v{VC + 16 * qt}")
        a.label(f"{n}_havemax")
        for l in self.rdK(0) + self.rdV(0): a(l)
        a("s_waitcnt lgkmcnt(0)")
        a(f"v_mfma_f32_32x32x16_bf16 {vr(VS, 16)}, {vr(VKF, 4)}, {vr(VQ, 4)}, {vr(VC, 16)}")
        a(f"v_mfma_f32_32x32x16_bf16 {vr(VS, 16)}, {vr(VKF + 4, 4)}, {vr(VQ + 4, 4)}, {vr(VS, 16)}")
        a("s_nop 7")
        a(f"s_mov_b32 s{S_CNT}, {32 // (2 * TPW)}")
        if self.prio:
            a(f"s_cmp_ge_u32 s{S_WV}, 4")
            a(f"s_cbranch_scc0 {n}_noprio")
            a("s_setprio 1")
            a.label(f"{n}_noprio")
        self.pstamp(a, 3)
        a("s_nop 3")
        a(".p2align 6")
        a.label(f"{n}_loop")
        for j in range(2 * TPW):
            for qt in range(2):
                self.unit(a, j, qt)
        a(f"s_sub_u32 s{S_CNT}, s{S_CNT}, 1")
        a(f"s_cmp_lg_u32 s{S_CNT}, 0")
        a(f"s_cbranch_scc1 {n}_loop")
        a("s_nop 1")
        a(f"v_mfma_f32_32x32x16_bf16 {vr(VO + 16, 16)}, {vr(VVF + 8 + 4, 4)}, {vr(VP + 4, 4)}, {vr(VO + 16, 16)}")
        a(f"v_mfma_f32_16x16x32_bf16 {vr(VL + 4, 4)}, {vr(VONE, 4)}, {vr(VP + 4, 4)}, {vr(VL + 4, 4)}")
        if self.prio: a("s_setprio 0")
        self.pstamp(a, 4)
        a("s_waitcnt vmcnt(0) lgkmcnt(0)")
        if self.bapply:
            for l in self.part_add(): a(l)
        a("s_nop 15")
        a(f"s_mov_b32 s3, 0")
        if not self.diag:
            a(f"v_mul_f32 v{V_T0}, {f32bits(256.0)}, v{VL}")
            a(f"v_mul_f32 v{V_T2}, {f32bits(256.0)}, v{VL + 4}")
            a(f"v_mul_f32 v{V_T0}, 0, v{V_T0}")
            a(f"v_fma_f32 v{V_T0}, v{V_T2}, 0, v{V_T0}")
            for r in range(32): a(f"v_fma_f32 v{V_T0}, v{VO + r}, 0, v{V_T0}")
            if self.force_fallback:
                a(f"v_mov_b32 v{V_T0}, 0x7fc00000")
            a(f"v_cmp_u_f32 vcc, v{V_T0}, v{V_T0}")
            a(f"s_or_b32 s3, vcc_lo, vcc_hi")
            a(f"s_cmp_lg_u32 s3, 0")
            a(f"s_cselect_b32 s3, 1, 0")
        a(f"v_mov_b32 v{V_T0}, s3")
        a(f"s_lshl_b32 s6, s{S_WV}, 2")
        a(f"s_add_u32 s6, s6, {LDS_MISC + L_VOTE}")
        a(f"v_mov_b32 v{V_T2}, s6")
        a(f"ds_write_b32 v{V_T2}, v{V_T0}")
        a(f"s_mul_i32 s6, s{S_WV}, {5 * 1024}")
        a(f"s_add_u32 s6, s6, {L_XO}")
        a(f"v_add_u32 v{V_T2}, s6, v{V_LANE16}")
        a(f"s_cmp_eq_u32 s{S_KH}, 0")
        a(f"s_cbranch_scc1 {n}_give1")
        for qt, lab in ((0, ""), (1, f"{n}_give1")):
            if lab: a.label(lab)
            for k in range(4):
                a(f"ds_write_b128 v{V_T2}, {vr(VO + 16 * qt + 4 * k, 4)} offset:{k * 1024}")
            a(f"ds_write_b128 v{V_T2}, {vr(VL + 4 * qt, 4)} offset:4096")
            if qt == 0: a(f"s_branch {n}_gave")
        a.label(f"{n}_gave")
        if self.bapply: self.b_publish(a)
        a("s_waitcnt lgkmcnt(0)")
        a("s_barrier")
        a(f"v_mov_b32 v{V_T0}, {LDS_MISC + L_VOTE}")
        a(f"ds_read_b128 v[216:219], v{V_T0}")
        a(f"ds_read_b128 v[220:223], v{V_T0} offset:16")
        a(f"s_xor_b32 s6, s{S_WV}, 4")
        a(f"s_mul_i32 s6, s6, {5 * 1024}")
        a(f"s_add_u32 s6, s6, {L_XO}")
        a(f"v_add_u32 v{V_T2}, s6, v{V_LANE16}")
        for k in range(4):
            a(f"ds_read_b128 {vr(VS + 4 * k, 4)}, v{V_T2} offset:{k * 1024}")
        a(f"ds_read_b128 {vr(VS + 16, 4)}, v{V_T2} offset:4096")
        a("s_waitcnt lgkmcnt(5)")
        a("v_or3_b32 v216, v216, v217, v218")
        a("v_or3_b32 v216, v216, v219, v220")
        a("v_or3_b32 v216, v216, v221, v222")
        a("v_or_b32 v216, v216, v223")
        a("s_nop 0")
        a("v_readfirstlane_b32 s3, v216")
        a(f"s_sub_u32 s6, 1, s{S_MODE}")
        a("s_and_b32 s3, s3, s6")
        a("s_cmp_eq_u32 s3, 0")
        a(f"s_cbranch_scc1 {n}_fin")
        a("s_waitcnt lgkmcnt(0)")
        a("s_barrier")
        a(f"s_mov_b32 s{S_SOFF}, s{S_WOFF}")
        a(f"s_mov_b32 s{S_CNT}, {64 // TPS}")
        a(f"v_mov_b32 v{V_T0}, 0xff800000")
        a(f"v_mov_b32 v{V_T2}, 0xff800000")
        a.label(f"{n}_maxloop")
        for l in self.dma_stage(0): a(l)
        a("s_waitcnt vmcnt(0)")
        a("s_barrier")
        for j in range(TPS):
            a(f"ds_read_b128 {vr(VKF, 4)}, v{V_LANE16} offset:{j * 2048}")
            a(f"ds_read_b128 {vr(VKF + 4, 4)}, v{V_LANE16} offset:{j * 2048 + 1024}")
            a("s_waitcnt lgkmcnt(0)")
            for qt in range(2):
                s = VS + 16 * qt
                a(f"v_mfma_f32_32x32x16_bf16 {vr(s, 16)}, {vr(VKF, 4)}, {vr(VQ + 8 * qt, 4)}, 0")
                a(f"v_mfma_f32_32x32x16_bf16 {vr(s, 16)}, {vr(VKF + 4, 4)}, {vr(VQ + 8 * qt + 4, 4)}, {vr(s, 16)}")
            a("s_nop 15")
            for qt in range(2):
                s, x = VS + 16 * qt, V_T0 + 2 * qt
                for r in range(0, 16, 2):
                    a(f"v_max3_f32 v{x}, v{x}, v{s + r}, v{s + r + 1}")
        a("s_barrier")
        a(f"s_sub_u32 s{S_CNT}, s{S_CNT}, 1")
        a(f"s_cmp_lg_u32 s{S_CNT}, 0")
        a(f"s_cbranch_scc1 {n}_maxloop")
        for qt in range(2):
            x = V_T0 + 2 * qt
            self.halfmax(a, x, V_T3)
            a(f"v_sub_f32 v{VC + 16 * qt}, 0, v{x}")
            for r in range(1, 16): a(f"v_mov_b32 v{VC + 16 * qt + r}, v{VC + 16 * qt}")
        a(f"s_mov_b32 s{S_MODE}, 1")
        a(f"s_branch {n}_restart")
        a.label(f"{n}_fin")
        if hasattr(self, "after_decision"): self.after_decision(a)
        a(f"s_cmp_eq_u32 s{S_KH}, 0")
        a(f"s_cbranch_scc1 {n}_keep0")
        for r in range(16): a(f"v_mov_b32 v{VO + r}, v{VO + 16 + r}")
        a(f"v_mov_b32 v{VL}, v{VL + 4}")
        a.label(f"{n}_keep0")
        a(f"v_and_b32 v{V_T1}, 63, v0")
        a(f"v_bfe_u32 v{V_T0}, v{V_T1}, 4, 1")
        a(f"v_lshlrev_b32 v{V_T0}, 10, v{V_T0}")
        a(f"v_lshrrev_b32 v{V_T2}, 5, v{V_T1}")
        a(f"v_lshl_add_u32 v{V_T0}, v{V_T2}, 8, v{V_T0}")
        a(f"v_and_b32 v{V_T2}, 15, v{V_T1}")
        a(f"v_lshl_add_u32 v{V_T0}, v{V_T2}, 4, v{V_T0}")
        a("s_waitcnt lgkmcnt(0)")
        a(f"v_add_f32 v{VL}, v{VL}, v{VS + 16}")
        a(f"v_rcp_f32 v{V_T2}, v{VL}")
        for r in range(16): a(f"v_add_f32 v{VO + r}, v{VO + r}, v{VS + r}")
        a(f"v_mul_f32 v{V_T2}, v{V_T2}, v{V_G}")
        for r in range(16): a(f"v_mul_f32 v{VO + r}, v{V_T2}, v{VO + r}")
        for k in range(8): a(f"v_cvt_pk_bf16_f32 v{VS + k}, v{VO + 2 * k}, v{VO + 2 * k + 1}")
        a(f"s_lshl_b32 s6, s{S_QB}, 3")
        a(f"s_lshl_b32 s7, s{S_QG}, 1")
        a("s_add_u32 s6, s6, s7")
        a(f"s_add_u32 s6, s6, s{S_KH}")
        a("s_lshl_b32 s6, s6, 11")
        a(f"s_lshl_b32 s7, s{S_H}, 17")
        a("s_add_u32 s6, s6, s7")
        a(f"s_add_u32 s6, s6, {WS_O}")
        a(f"buffer_store_dwordx4 {vr(VS, 4)}, v{V_T0}, {ws}, s6 offen {self.store_mod}")
        a(f"buffer_store_dwordx4 {vr(VS + 4, 4)}, v{V_T0}, {ws}, s6 offen offset:512 {self.store_mod}")
        self.pstamp(a, 5)
        if self.bapply:
            self.b_apply(a)
        last = 6
        if hasattr(self, "project"):
            self.project(a); last = 9
        if self.prof:
            a("s_waitcnt vmcnt(0)")
            self.pstamp(a, last)
            self.pflush(a, 1, 8, S_WV, ws)
        a.label(f"{n}_end")
        a("s_endpgm")
        a.label(f"{n}_last")
        return kernel_header(n) + a.text() + kernel_desc(n, 256, 256)
```

```python
import sys
import cfg
from k1d import K1d
from k2d import K2d, LDS_K2
from k3b import K3b, LDS_K3
from k23 import K23, LDS_K23
from k1w import K1w
HDR = open("gated_mix__softmax_full_mha__linear_kernel_hedgehog__prompt.s.ref").read().split("; Override launch geometry")[0]
def build(k1=None, k2=None, k3=None, k23=None, k1w=None):
    k1 = dict(cfg.K1, **(k1 or {}))
    s = HDR
    if k23 is not None:
        k23 = dict(cfg.K23, **k23)
        k1["code"] = ("qkv_kernel", "attn_kernel_last", 65536)
        k23["code"] = ("attn_kernel", "attn_kernel_last", 32768)
        s += "; Launch 1: QKV projections of both branches, gate, feature map of k with kv / z partial sums.\n"
        s += "; Launch 2: softmax attention, linear-attention read-out, then the output projection (flag hand-off between workgroups).\n"
        s += f"; @launch kernel=qkv_kernel grid=(256,1,1) block=({512 if k1w is not None else 256},1,1) lds=163840\n"
        s += f"; @launch kernel=attn_kernel grid=(256,1,1) block=(512,1,1) lds={LDS_K23}\n"
        s += '.amdgcn_target "amdgcn-amd-amdhsa--gfx950"\n.text\n'
        if k1w is not None:
            s += K1w("qkv_kernel", code=k1["code"], **dict(cfg.K1W, **k1w)).gen()
        else:
            s += K1d("qkv_kernel", **k1).gen()
        s += K23("attn_kernel", **k23).gen()
        return s
    k2 = dict(cfg.K2, **(k2 or {})); k3 = dict(cfg.K3, **(k3 or {}))
    k1["code"] = ("qkv_kernel", "outp_kernel_last", 65536)
    k2["code"] = ("attn_kernel", "attn_kernel_last", 16384)
    k3["code"] = ("outp_kernel", "outp_kernel_last", 16384)
    s += "; Launches: QKV projections (+ gate, branch-B feature map of k), attention / linear attention, output projection.\n"
    s += "; @launch kernel=qkv_kernel grid=(256,1,1) block=(256,1,1) lds=163840\n"
    s += f"; @launch kernel=attn_kernel grid=(256,1,1) block=(512,1,1) lds={LDS_K2}\n"
    s += f"; @launch kernel=outp_kernel grid=(256,1,1) block=(512,1,1) lds={LDS_K3}\n"
    s += '.amdgcn_target "amdgcn-amd-amdhsa--gfx950"\n.text\n'
    s += K1d("qkv_kernel", **k1).gen()
    s += K2d("attn_kernel", **k2).gen()
    s += K3b("outp_kernel", **k3).gen()
    return s
if __name__ == "__main__":
    open("../probe/fused.s", "w").write(build(k23={}))
    open("../probe/w8.s", "w").write(build(k23={}, k1w={}))
    open("../probe/w8t.s", "w").write(build(k23=dict(touch=True), k1w={}))
```

```python
from asmlib import *
from layout import *
from prof import Prof

XST, NX = 16384, 3
WRING, WSL, NW = 49152, 24576, 4
L_WP = WRING + NW * WSL
LDS_K1 = 163840
ACC = 64
def acc(sg, ft, tk): return ACC + ((sg * 2 + ft) * 4 + tk) * 4
FR = 160
def fX(p, tk): return FR + p * 40 + tk * 4
def fW(p, sg, ft): return FR + p * 40 + 16 + (sg * 2 + ft) * 4
V_XO, V_WO, V_XR, V_WR, V_WR2, V_PF = 1, 5, 12, 14, 16, 18
S_X, S_W, S_WS, S_WP, S_GW = 8, 12, 16, 60, 64
S_MT, S_HP, S_WV, S_SOX, S_SOW, S_W4K, S_W6K, S_TH, S_HH, S_BR, S_HD, S_ST = range(20, 32)
S_PF, S_PFO, S_PFS, S_TOK = 72, 76, 77, 78

class K1w(Prof):
    V_PROF = 250
    def __init__(self, name, prof=False, store_mod="sc1", code=None, rd_slots=None, pf=True, pf_per_unit=2, epi=True, pfwo=True, wsbase=0, prio=0, pf_first=4, dma_gap=2, split_dma=False):
        self.name, self.prof, self.store_mod, self.code = name, prof, store_mod, code
        self.pf_first, self.dma_gap, self.split_dma = pf_first, dma_gap, split_dma
        self.defer = False
        self.rd_slots = rd_slots or [1 + (i * 22) // 16 for i in range(16)]
        self.pf, self.pf_per_unit, self.epi, self.pfwo, self.wsbase, self.prio = pf, pf_per_unit, epi, pfwo, wsbase, prio

    def mfmas(self, p):
        out = []
        for tk in range(4):
            for sg in range(3):
                for ft in range(2):
                    d = vr(acc(sg, ft, tk), 4)
                    x, w = vr(fX(p, tk), 4), vr(fW(p, sg, ft), 4)
                    a, b = (x, w) if sg == 2 else (w, x)
                    out.append(f"v_mfma_f32_16x16x32_bf16 {d}, {a}, {b}, {d}")
        return out

    def rd(self, p, u):
        xo = ((u >> 1) % NX) * XST
        xs = [f"ds_read_b128 {vr(fX(p, tk), 4)}, v{V_XR + (u & 1)} offset:{xo + tk * 2048}" for tk in range(4)]
        slot = u % NW
        base = V_WR if slot < 2 else V_WR2
        w = [f"ds_read_b64_tr_b16 {vr(fW(p, sg, ft) + 2 * q, 2)}, v{base + ft} offset:{(slot & 1) * WSL + sg * 4096 + q * 512}"
             for sg in range(3) for ft in range(2) for q in range(2)]
        return [xs[0]] + w + xs[1:]

    def dmaW(self, uw):
        r = [f"s_add_u32 m0, s{S_W6K}, {WRING + (uw % NW) * WSL}", f"s_mov_b32 s{S_SOW}, {uw * 32 * 6144}"]
        for j in range(6):
            if j == 4: r += [f"s_add_u32 m0, s{S_W6K}, {WRING + (uw % NW) * WSL + 4096}", "s_nop 0"]
            r.append(f"buffer_load_dwordx4 v{V_WO + j}, s[{S_W}:{S_W+3}], s{S_SOW} offen offset:{(j & 3) * 1024} lds")
        return r
    def dmaX(self, sx, half):
        r = [f"s_add_u32 m0, s{S_W4K}, {(sx % NX) * XST + half * 2048}", f"s_mov_b32 s{S_SOX}, {sx * 128}"]
        for n in range(2):
            r.append(f"buffer_load_dwordx4 v{V_XO + half * 2 + n}, s[{S_X}:{S_X+3}], s{S_SOX} offen offset:{n * 1024} lds")
        return r
    def group(self, v):
        g, n = [], 0
        if 0 <= v + 3 < 32: g += self.dmaW(v + 3); n += 6
        if 0 <= v // 2 + 2 < 16: g += self.dmaX(v // 2 + 2, v & 1); n += 2
        return g, n
    def pf_load(self):
        return [f"buffer_load_dwordx4 v[{244}:{247}], v{V_PF}, s[{S_PF}:{S_PF+3}], s{S_PFO} offen", f"s_add_u32 s{S_PFO}, s{S_PFO}, s{S_PFS}"]

    def role_block(self, a, tag, stager, other):
        n = self.name
        if not stager and not other: return []
        r = [f"s_cmp_lg_u32 s{S_ST}, 0"]
        if other:
            r += [f"s_cbranch_scc0 {n}_{tag}_o"] + stager + [f"s_branch {n}_{tag}_e", f"{n}_{tag}_o:"] + other + [f"{n}_{tag}_e:"]
        else:
            r += [f"s_cbranch_scc0 {n}_{tag}_e"] + stager + [f"{n}_{tag}_e:"]
        return r

    def main_loop(self, a, extra_first):
        size = lambda v: self.group(v)[1]
        npf_left = self.npf
        for u in range(32):
            a("s_waitcnt lgkmcnt(0)")
            fill = []
            if u < 31:
                v = u + 1
                allowed = size(v - 2) + size(v - 1) + (extra_first if v <= 2 else 0) if v >= 2 else 8 + size(0) + extra_first
                fill.append((0, self.role_block(a, f"w{u}", [f"s_waitcnt vmcnt({allowed})"], []) + ["s_barrier"]))
                for i, r in enumerate(self.rd((u + 1) & 1, u + 1)):
                    fill.append((self.rd_slots[i], [r]))
                g, n = self.group(v)
                k = min(self.pf_per_unit, npf_left); npf_left -= k
                other = [l for _ in range(k) for l in self.pf_load()] + self.unit_extra(u)
                if self.split_dma and g:
                    cut = next((i for i, l in enumerate(g) if f"s{S_W4K}" in l), len(g))
                    fill.append((self.dma_gap, self.role_block(a, f"d{u}", g[:cut], other)))
                    fill.append((self.dma_gap + 10, self.role_block(a, f"e{u}", g[cut:], [])))
                else:
                    fill.append((self.dma_gap, self.role_block(a, f"d{u}", g, other)))
            for l in interleave(self.mfmas(u & 1), fill): a(l)

    def gen(self):
        a = Asm()
        n = self.name
        a("s_cmp_ge_u32 s2, 256")
        a(f"s_cbranch_scc1 {n}_end")
        self.pstamp(a, 0)
        if self.code:
            first, last, nbytes = self.code
            code_prefetch(a, n, first, last, 8, 252, 254, 90)(-(-nbytes // 32768))
        self.body(a)
        if self.prof:
            self.pstamp(a, 6)
            a("s_waitcnt vmcnt(0)")
            self.pstamp(a, 7)
            self.pflush(a, 0, 8, S_WV, f"s[{S_WS}:{S_WS+3}]")
        a.label(f"{n}_end")
        a("s_endpgm")
        a.label(f"{n}_last")
        return kernel_header(n) + a.text() + kernel_desc(n, 256, 256)

    def body(self, a):
        n = self.name
        a("s_load_dwordx4 s[44:47], s[0:1], 0")
        a("s_load_dwordx2 s[48:49], s[0:1], 32")
        a("s_load_dwordx2 s[52:53], s[0:1], 80")
        a("s_load_dwordx2 s[56:57], s[0:1], 40")
        a("s_load_dwordx2 s[58:59], s[0:1], 56")
        a("s_and_b32 s3, s2, 7")
        a("s_lshr_b32 s4, s2, 3")
        a("s_and_b32 s5, s3, 1")
        a("s_lshl_b32 s5, s5, 3")
        a("s_and_b32 s6, s4, 7")
        a(f"s_add_u32 s{S_MT}, s5, s6")
        a("s_lshr_b32 s5, s3, 1")
        a("s_lshl_b32 s5, s5, 2")
        a("s_lshr_b32 s6, s4, 3")
        a(f"s_add_u32 s{S_HP}, s5, s6")
        a("v_lshrrev_b32 v20, 6, v0")
        a("v_and_b32 v19, 63, v0")
        a("v_lshrrev_b32 v21, 3, v19")
        a(f"v_readfirstlane_b32 s{S_WV}, v20")
        a("v_and_b32 v22, 7, v19")
        a("v_lshrrev_b32 v23, 4, v19")
        a(f"s_and_b32 s{S_TH}, s{S_WV}, 1")
        a(f"s_bfe_u32 s{S_HH}, s{S_WV}, 0x10001")
        a(f"s_lshr_b32 s{S_BR}, s{S_WV}, 2")
        a(f"s_xor_b32 s{S_ST}, s{S_BR}, 1")
        a(f"s_and_b32 s7, s{S_WV}, 3")
        a(f"s_lshl_b32 s{S_HD}, s{S_HP}, 1")
        a(f"s_add_u32 s{S_HD}, s{S_HD}, s{S_HH}")
        a(f"s_lshl_b32 s3, s{S_MT}, 7")
        a("s_lshl_b32 s4, s7, 5")
        a("s_add_u32 s3, s3, s4")
        a("v_add_u32 v24, s3, v21")
        a("v_lshlrev_b32 v24, 11, v24")
        a("v_xor_b32 v25, v22, v23")
        a("v_xor_b32 v26, 4, v25")
        a("v_lshl_add_u32 v25, v25, 4, v24")
        a("v_lshl_add_u32 v26, v26, 4, v24")
        for nn in range(4):
            a(f"v_add_u32 v{V_XO + nn}, {nn * 16384 - (nn & 1) * 1024}, v{25 if nn % 2 == 0 else 26}")
        a("v_and_b32 v25, 1, v23")
        a("v_lshlrev_b32 v25, 1, v25")
        a("v_xor_b32 v25, v25, v22")
        a("s_mov_b32 s3, 6144")
        a("v_mul_lo_u32 v26, v21, s3")
        a(f"s_lshl_b32 s4, s{S_HP}, 7")
        a("v_add_u32 v26, s4, v26")
        a("v_lshl_add_u32 v28, v25, 4, v26")
        a("v_xor_b32 v27, 4, v25")
        a("v_lshl_add_u32 v27, v27, 4, v26")
        a("s_and_b32 s5, s7, 1")
        a("s_cmp_eq_u32 s5, 0")
        for j in range(6):
            off = [((6 * par + j) >> 2) * 2048 + ((6 * par + j) & 3) * 8 * 6144 - (j & 3) * 1024 for par in range(2)]
            a(f"s_mov_b32 s3, {off[1]}")
            a(f"s_cselect_b32 s3, {off[0]}, s3")
            a(f"v_add_u32 v{V_WO + j}, s3, v{28 if j % 2 == 0 else 27}")
        a(f"s_lshl_b32 s{S_W4K}, s7, 12")
        a(f"s_mul_i32 s{S_W6K}, s7, 6144")
        a("s_waitcnt lgkmcnt(0)")
        srd(a, S_X, 44, 2048 * 2048)
        a("s_cmp_lt_u32 s7, 2")
        a("s_cselect_b32 s4, s46, s48")
        a("s_cselect_b32 s5, s47, s49")
        srd(a, S_W, 4, 1024 * 6144)
        ws_shift(a, 52, self.wsbase)
        srd(a, S_WS, 52, 0x10000000 - self.wsbase)
        pro = self.dmaX(0, 0) + self.dmaW(0) + self.dmaX(0, 1) + self.dmaW(1) + self.dmaX(1, 0) + self.dmaW(2) + self.dmaX(1, 1)
        a(f"s_cmp_lg_u32 s{S_ST}, 0")
        a(f"s_cbranch_scc0 {n}_side")
        for l in pro: a(l)
        a(f"s_branch {n}_joined")
        a.label(f"{n}_side")
        self.side(a)
        a.label(f"{n}_joined")
        self.pstamp(a, 1)
        self.addr_reads(a)
        for r in range(96): a(f"v_mov_b32 v{ACC + r}, 0")
        for l in self.role_block(a, "b0", ["s_waitcnt vmcnt(16)"], self.gate_lines()): a(l)
        a("s_barrier")
        self.pstamp(a, 2)
        for l in self.rd(0, 0): a(l)
        g, _ = self.group(0)
        for l in self.role_block(a, "g0", g, []): a(l)
        if self.prio:
            a(f"s_cmp_lg_u32 s{S_ST}, 0")
            a(f"s_cbranch_scc1 {n}_np")
            a("s_setprio 1")
            a.label(f"{n}_np")
        self.main_loop(a, 0)
        if self.prio: a("s_setprio 0")
        self.pstamp(a, 3)
        if self.epi: self.epilogue(a)

    def addr_reads(self, a):
        a("v_and_b32 v20, 15, v19")
        a("v_lshlrev_b32 v20, 7, v20")
        a(f"s_lshl_b32 s3, s{S_TH}, 13")
        a("v_add_u32 v20, s3, v20")
        a("v_lshrrev_b32 v21, 4, v19")
        a("v_bfe_u32 v22, v19, 1, 3")
        for k2 in range(2):
            a(f"v_add_u32 v23, {4 * k2}, v21")
            a("v_xor_b32 v23, v23, v22")
            a(f"v_lshl_add_u32 v{V_XR + k2}, v23, 4, v20")
        a("v_bfe_u32 v22, v19, 2, 2")
        a("v_lshl_add_u32 v23, v21, 3, v22")
        a("v_lshlrev_b32 v23, 7, v23")
        a("v_and_b32 v24, 1, v19")
        a("v_lshl_add_u32 v23, v24, 3, v23")
        a("v_bfe_u32 v24, v19, 1, 1")
        a(f"s_lshl_b32 s3, s{S_HH}, 2")
        a("v_add_u32 v24, s3, v24")
        a("v_and_b32 v25, 2, v22")
        a("v_bfe_u32 v26, v19, 4, 1")
        a("v_lshl_or_b32 v25, v26, 2, v25")
        a(f"s_mul_i32 s3, s{S_BR}, 12288")
        a(f"s_add_u32 s3, s3, {WRING}")
        for ft in range(2):
            a(f"v_add_u32 v26, {2 * ft}, v24")
            a("v_xor_b32 v26, v26, v25")
            a("v_lshl_add_u32 v26, v26, 4, v23")
            a(f"v_add_u32 v{V_WR + ft}, s3, v26")
            a(f"v_add_u32 v{V_WR2 + ft}, {2 * WSL}, v{V_WR + ft}")

    def side(self, a):
        n = self.name
        ws = f"s[{S_WS}:{S_WS+3}]"
        srd(a, S_WP, 56, 65536)
        srd(a, S_GW, 58, 2048)
        a(f"s_and_b32 s7, s{S_WV}, 3")
        self.npf = 16 if self.pf else 0
        if self.pf:
            a("s_mul_i32 s3, s2, 3")
            a("s_add_u32 s3, s3, s7")
            a("s_cmp_ge_u32 s3, 384")
            a("s_cselect_b32 s4, 384, 0")
            a("s_cselect_b32 s80, s48, s46")
            a("s_cselect_b32 s81, s49, s47")
            a("s_sub_u32 s3, s3, s4")
            a("s_lshl_b32 s3, s3, 10")
            a("s_lshl_b32 s4, s2, 14")
            a("s_cmp_eq_u32 s7, 3")
            a("s_cselect_b32 s80, s44, s80")
            a("s_cselect_b32 s81, s45, s81")
            a(f"s_cselect_b32 s{S_PFO}, s4, s3")
            a(f"s_mov_b32 s5, {64 * 6144}")
            a(f"s_cselect_b32 s{S_PFS}, 128, s5")
            a(f"s_mov_b32 s5, {1024 * 6144}")
            a(f"s_cselect_b32 s{S_PF+2}, {2048 * 2048}, s5")
            a(f"s_mov_b32 s{S_PF}, s80")
            a(f"s_and_b32 s{S_PF+1}, s81, 0xffff")
            a(f"s_mov_b32 s{S_PF+3}, 0x00020000")
            a("v_lshlrev_b32 v20, 4, v19")
            a("v_lshrrev_b32 v21, 3, v19")
            a("v_lshlrev_b32 v21, 11, v21")
            a("v_and_b32 v22, 7, v19")
            a("v_lshl_add_u32 v21, v22, 4, v21")
            a("s_cmp_eq_u32 s7, 3")
            a("s_cselect_b64 vcc, -1, 0")
            a(f"v_cndmask_b32 v{V_PF}, v20, v21, vcc")
        a("v_lshlrev_b32 v20, 5, v19")
        a(f"buffer_load_dwordx4 v[160:163], v20, s[{S_GW}:{S_GW+3}], 0 offen")
        a(f"buffer_load_dwordx4 v[164:167], v20, s[{S_GW}:{S_GW+3}], 0 offen offset:16")
        a(f"s_lshl_b32 s3, s{S_MT}, 7")
        a(f"s_lshl_b32 s4, s{S_HP}, 3")
        a("s_add_u32 s3, s3, s4")
        a("s_lshl_b32 s4, s7, 1")
        a(f"s_add_u32 s{S_TOK}, s3, s4")
        a(f"s_lshl_b32 s3, s{S_TOK}, 11")
        for i in range(2):
            a(f"buffer_load_dwordx4 v[{168+8*i}:{171+8*i}], v20, s[{S_X}:{S_X+3}], s3 offen offset:{i * 2048}")
            a(f"buffer_load_dwordx4 v[{172+8*i}:{175+8*i}], v20, s[{S_X}:{S_X+3}], s3 offen offset:{i * 2048 + 16}")
        a("v_lshlrev_b32 v20, 4, v19")
        a(f"s_lshl_b32 s3, s{S_HP}, 12")
        a("s_lshl_b32 s5, s7, 10")
        a("s_add_u32 s3, s3, s5")
        a(f"s_add_u32 m0, s5, {L_WP}")
        a("s_nop 0")
        a(f"buffer_load_dwordx4 v20, s[{S_WP}:{S_WP+3}], s3 offen lds")
        self.clear_flags(a)
        self.npf_first = min(self.pf_first, self.npf)
        for k in range(self.npf_first):
            for l in self.pf_load(): a(l)
        self.npf -= self.npf_first

    def clear_flags(self, a):
        n = self.name
        a("s_cmp_ge_u32 s2, 8")
        a(f"s_cbranch_scc1 {n}_noflag")
        a(f"s_cmp_lg_u32 s{S_WV}, 4")
        a(f"s_cbranch_scc1 {n}_noflag")
        a("s_lshl_b32 s3, s2, 12")
        a(f"s_add_u32 s3, s3, {WS_FLAG}")
        a("v_lshlrev_b32 v20, 2, v19")
        a("v_mov_b32 v21, 0")
        a(f"buffer_store_dword v21, v20, s[{S_WS}:{S_WS+3}], s3 offen sc1")
        a.label(f"{n}_noflag")
    def unit_extra(self, u): return []

    def gate_lines(self):
        b = Asm()
        b(f"s_waitcnt vmcnt({self.npf_first + 1})")
        for i in range(2): b(f"v_mov_b32 v{24 + i}, 0")
        for k in range(8):
            for i in range(2):
                b(f"v_dot2_f32_bf16 v{24 + i}, v{168 + 8 * i + k}, v{160 + k}, v{24 + i}")
        for ctl in ("quad_perm:[1,0,3,2]", "quad_perm:[2,3,0,1]", "row_half_mirror", "row_mirror"):
            b("s_nop 1")
            for i in range(2):
                b(f"v_add_f32_dpp v{24 + i}, v{24 + i}, v{24 + i} {ctl} row_mask:0xf bank_mask:0xf")
        for sw in ("v_permlane16_swap_b32", "v_permlane32_swap_b32"):
            for i in range(2): b(f"v_mov_b32 v{28 + i}, v{24 + i}")
            b("s_nop 1")
            for i in range(2): b(f"{sw} v{24 + i}, v{28 + i}")
            b("s_nop 1")
            for i in range(2): b(f"v_add_f32 v{24 + i}, v{24 + i}, v{28 + i}")
        b("v_and_b32 v28, 1, v19")
        b("v_cmp_eq_u32 vcc, 1, v28")
        b("s_nop 1")
        b("v_cndmask_b32 v24, v24, v25, vcc")
        b(f"v_mul_f32 v24, {f32bits(-LOG2E)}, v24")
        b("v_exp_f32 v24, v24")
        b("s_nop 0")
        b("v_add_f32 v24, 1.0, v24")
        b("v_rcp_f32 v24, v24")
        b("v_lshlrev_b32 v28, 2, v19")
        b(f"s_lshl_b32 s3, s{S_TOK}, 2")
        b(f"s_add_u32 s3, s3, {WS_G}")
        b("s_mov_b64 exec, 3")
        b(f"buffer_store_dword v24, v28, s[{S_WS}:{S_WS+3}], s3 offen {self.store_mod}")
        b("s_mov_b64 exec, -1")
        return [l.strip() for l in b.lines]

    def epilogue(self, a):
        n = self.name
        a("s_waitcnt vmcnt(0)")
        a("s_barrier")
        a(f"s_cmp_lg_u32 s{S_BR}, 0")
        a(f"s_cbranch_scc1 {n}_epiB")
        self.epilogue_A(a)
        a(f"s_branch {n}_epidone")
        a.label(f"{n}_epiB")
        self.epilogue_B(a)
        a.label(f"{n}_epidone")

    @staticmethod
    def pack(b0, b1):
        return [f"v_cvt_pk_bf16_f32 v{b0}, v{b0}, v{b0 + 1}", f"v_cvt_pk_bf16_f32 v{b0 + 1}, v{b0 + 2}, v{b0 + 3}",
                f"v_cvt_pk_bf16_f32 v{b0 + 2}, v{b1}, v{b1 + 1}", f"v_cvt_pk_bf16_f32 v{b0 + 3}, v{b1 + 2}, v{b1 + 3}"]

    def epilogue_A(self, a):
        ws, sm = f"s[{S_WS}:{S_WS+3}]", self.store_mod
        a("v_lshrrev_b32 v21, 4, v19")
        a("v_and_b32 v20, 15, v19")
        a(f"s_lshl_b32 s3, s{S_HD}, 17")
        a(f"s_lshl_b32 s4, s{S_MT}, 2")
        a(f"s_lshl_b32 s5, s{S_TH}, 1")
        a("s_add_u32 s4, s4, s5")
        a("s_lshl_b32 s4, s4, 11")
        a("s_add_u32 s38, s3, s4")
        a(f"s_add_u32 s39, s38, {4 << 20}")
        a(f"s_add_u32 s42, s38, {8 << 20}")
        a("v_lshrrev_b32 v22, 1, v21")
        a("v_lshlrev_b32 v22, 10, v22")
        a("v_and_b32 v24, 1, v21")
        a("v_lshl_add_u32 v22, v24, 9, v22")
        a("v_lshl_add_u32 v17, v20, 4, v22")
        a("v_and_b32 v24, 7, v20")
        a("v_lshrrev_b32 v25, 3, v20")
        a("v_lshl_add_u32 v24, v25, 4, v24")
        a("v_lshl_add_u32 v16, v24, 4, v22")
        c = f32bits(LOG2E / 32 ** 0.5)
        a(f"s_mov_b32 s6, {c}")
        a(f"s_mov_b32 s7, {c}")
        for tk in range(4):
            for l in self.pack(acc(1, 0, tk), acc(1, 1, tk)): a(l)
            a(f"buffer_store_dwordx4 {vr(acc(1, 0, tk), 4)}, v16, {ws}, s39 offen offset:{(tk >> 1) * 2048 + (tk & 1) * 128} {sm}")
        for T in range(2):
            for ft in range(2):
                for l in self.pack(acc(2, ft, 2 * T), acc(2, ft, 2 * T + 1)): a(l)
                a(f"buffer_store_dwordx4 {vr(acc(2, ft, 2 * T), 4)}, v17, {ws}, s42 offen offset:{T * 2048 + ft * 256} {sm}")
        for tk in range(4):
            for ft in range(2):
                for h in (0, 2):
                    a(f"v_pk_mul_f32 {vr(acc(0, ft, tk) + h, 2)}, {vr(acc(0, ft, tk) + h, 2)}, s[6:7]")
            for l in self.pack(acc(0, 0, tk), acc(0, 1, tk)): a(l)
            a(f"buffer_store_dwordx4 {vr(acc(0, 0, tk), 4)}, v17, {ws}, s38 offen offset:{(tk >> 1) * 2048 + (tk & 1) * 256} {sm}")
        self.pstamp(a, 4)
        if self.pfwo: self.prefetch_wo(a)
        self.before_drain_A(a)
        a("s_waitcnt vmcnt(0)")
        self.pstamp(a, 5)
        a("s_barrier")
        self.after_E2_A(a)

    def before_drain_A(self, a): pass
    def after_E2_A(self, a): pass
    def after_E2_B(self, a): pass

    def prefetch_wo(self, a):
        a("s_load_dwordx2 s[80:81], s[0:1], 16")
        a("s_load_dwordx2 s[82:83], s[0:1], 48")
        a("v_lshlrev_b32 v15, 4, v19")
        a("s_lshl_b32 s3, s2, 13")
        a(f"s_lshl_b32 s4, s{S_WV}, 11")
        a("s_add_u32 s3, s3, s4")
        a("s_waitcnt lgkmcnt(0)")
        for k, p in enumerate((80, 82)):
            srd(a, 84, p, 2097152)
            for i in range(2):
                a(f"buffer_load_dwordx4 v[{160 + 8 * k + 4 * i}:{163 + 8 * k + 4 * i}], v15, s[84:87], s3 offen offset:{i * 1024}")

    def epilogue_B(self, a):
        ws, sm = f"s[{S_WS}:{S_WS+3}]", self.store_mod
        RS = 136
        a("v_lshrrev_b32 v21, 4, v19")
        a("v_and_b32 v20, 15, v19")
        a(f"s_and_b32 s7, s{S_WV}, 3")
        a("v_bfe_u32 v22, v19, 2, 2")
        a("v_lshl_add_u32 v22, v21, 2, v22")
        a(f"v_mul_u32_u24 v23, {RS}, v22")
        a("v_lshlrev_b32 v22, 6, v22")
        a("v_and_b32 v24, 3, v19")
        a("v_lshl_add_u32 v22, v24, 3, v22")
        a(f"s_lshl_b32 s3, s{S_HH}, 11")
        a(f"s_add_u32 s3, s3, {L_WP}")
        a("v_add_u32 v22, s3, v22")
        a(f"s_mul_i32 s3, s7, {64 * RS}")
        a("v_lshl_add_u32 v23, v24, 3, v23")
        a("v_add_u32 v23, s3, v23")
        a(f"v_mul_u32_u24 v18, {RS}, v20")
        a("v_lshl_add_u32 v18, v21, 3, v18")
        a("v_add_u32 v18, s3, v18")
        a("v_lshlrev_b32 v15, 4, v19")
        KB = lambda t: acc(1, 0, t)
        VB = lambda dt, T: acc(2, dt, 2 * T)
        for tk in range(4):
            for l in self.pack(acc(1, 0, tk), acc(1, 1, tk)): a(l)
        for tk in range(4):
            for l in self.pack(acc(0, 0, tk), acc(0, 1, tk)): a(l)
        a(f"s_lshl_b32 s3, s{S_HD}, 17")
        a(f"s_lshl_b32 s4, s{S_MT}, 3")
        a(f"s_lshl_b32 s5, s{S_TH}, 2")
        a("s_add_u32 s4, s4, s5")
        a("s_lshl_b32 s4, s4, 10")
        a("s_add_u32 s43, s3, s4")
        a(f"s_add_u32 s43, s43, {WS_QB}")
        WPF, ONES = 48, 56
        for ft in range(2):
            for q in range(2):
                a(f"ds_read_b64_tr_b16 {vr(WPF + 4 * ft + 2 * q, 2)}, v22 offset:{q * 1024 + ft * 32}")
        a(f"v_mov_b32 v{ONES}, 0x3f803f80")
        for r in range(1, 4): a(f"v_mov_b32 v{ONES + r}, v{ONES}")
        for dt in range(2):
            for T in range(2):
                for l in self.pack(acc(2, dt, 2 * T), acc(2, dt, 2 * T + 1)): a(l)
        l2e = f32bits(LOG2E)
        a(f"s_mov_b32 s36, {l2e}")
        a(f"s_mov_b32 s37, {l2e}")
        a(f"s_mov_b32 s40, {f32bits(-LOG2E)}")
        a(f"s_mov_b32 s41, {f32bits(-LOG2E)}")
        a("s_waitcnt lgkmcnt(0)")
        P = lambda t, i: 160 + 8 * t + i
        EP = lambda t, i: 192 + 8 * t + i
        BP = lambda t: 80 + 4 * t
        BM = lambda t: 112 + 4 * t
        SS = lambda t, sg: (132 + 8 * t) if sg == 0 else (224 + 4 * t)
        mx, mn, tm = (lambda t: 24 + 2 * t), (lambda t: 32 + 2 * t), (lambda t: 40 + t)
        T4 = range(4)
        for t in T4:
            for ft in range(2):
                a(f"v_mfma_f32_16x16x32_bf16 {vr(P(t, 4 * ft), 4)}, {vr(WPF + 4 * ft, 4)}, {vr(KB(t), 4)}, 0")
        stores = [f"buffer_store_dwordx4 {vr(acc(0, 0, tk), 4)}, v15, {ws}, s43 offen offset:{tk * 1024} {sm}" for tk in range(4)]
        a("s_nop 7")
        B = a
        for t in T4:
            B(f"v_max3_f32 v{mx(t)}, v{P(t,0)}, v{P(t,1)}, v{P(t,2)}")
            B(f"v_min3_f32 v{mn(t)}, v{P(t,0)}, v{P(t,1)}, v{P(t,2)}")
        for i in (3, 5):
            for t in T4:
                B(f"v_max3_f32 v{mx(t)}, v{mx(t)}, v{P(t,i)}, v{P(t,i+1)}")
                B(f"v_min3_f32 v{mn(t)}, v{mn(t)}, v{P(t,i)}, v{P(t,i+1)}")
        for t in T4:
            B(f"v_max_f32 v{mx(t)}, v{mx(t)}, v{P(t,7)}")
            B(f"v_min_f32 v{mn(t)}, v{mn(t)}, v{P(t,7)}")
        for t in T4: B(f"v_sub_f32 v{mn(t)}, 0, v{mn(t)}")
        B("s_nop 1")
        for t in T4: B(f"v_permlane32_swap_b32 v{mx(t)}, v{mn(t)}")
        B("s_nop 1")
        for t in T4: B(f"v_max_f32 v{mx(t)}, v{mx(t)}, v{mn(t)}")
        for t in T4: B(f"v_mov_b32 v{tm(t)}, v{mx(t)}")
        B("s_nop 1")
        for t in T4: B(f"v_permlane16_swap_b32 v{mx(t)}, v{tm(t)}")
        B("s_nop 1")
        for t in T4: B(f"v_max_f32 v{mx(t)}, v{mx(t)}, v{tm(t)}")
        for t in T4: B(f"v_mov_b32 v{mn(t)}, v{mx(t)}")
        B("s_nop 1")
        for t in T4: B(f"v_permlane32_swap_b32 v{mx(t)}, v{mn(t)}")
        B("s_nop 1")
        for t in T4:
            B(f"v_mul_f32 v{mx(t)}, s40, v{mx(t)}")
            B(f"v_mul_f32 v{mn(t)}, s40, v{mn(t)}")
        for t in T4:
            for i in range(0, 8, 2):
                B(f"v_pk_fma_f32 {vr(EP(t,i), 2)}, {vr(P(t,i), 2)}, s[36:37], {vr(mx(t), 2)} op_sel_hi:[1,1,0]")
                B(f"v_pk_fma_f32 {vr(P(t,i), 2)}, {vr(P(t,i), 2)}, s[40:41], {vr(mn(t), 2)} op_sel_hi:[1,1,0]")
        for t in T4:
            for i in range(8):
                B(f"v_exp_f32 v{EP(t,i)}, v{EP(t,i)}")
                B(f"v_exp_f32 v{P(t,i)}, v{P(t,i)}")
        B("s_nop 0")
        for t in T4:
            for k in range(4):
                B(f"v_cvt_pk_bf16_f32 v{BP(t) + k}, v{EP(t,2*k)}, v{EP(t,2*k+1)}")
                B(f"v_cvt_pk_bf16_f32 v{BM(t) + k}, v{P(t,2*k)}, v{P(t,2*k+1)}")
        B("s_nop 1")
        for t in T4:
            B(f"v_mfma_f32_16x16x32_bf16 {vr(SS(t, 0), 4)}, {vr(ONES, 4)}, {vr(BP(t), 4)}, 0")
            B(f"v_mfma_f32_16x16x32_bf16 {vr(SS(t, 1), 4)}, {vr(ONES, 4)}, {vr(BM(t), 4)}, 0")
        if not self.defer:
            for st in stores: B(st)
            B("s_nop 3")
        else:
            B("s_nop 7")
        for t in T4:
            B(f"v_rcp_f32 v{SS(t, 0)}, v{SS(t, 0)}")
            B(f"v_rcp_f32 v{SS(t, 1)}, v{SS(t, 1)}")
        B("s_nop 0")
        for t in T4:
            for i in range(0, 8, 2):
                B(f"v_pk_mul_f32 {vr(EP(t,i), 2)}, {vr(EP(t,i), 2)}, {vr(SS(t, 0), 2)} op_sel_hi:[1,0]")
                B(f"v_pk_mul_f32 {vr(P(t,i), 2)}, {vr(P(t,i), 2)}, {vr(SS(t, 1), 2)} op_sel_hi:[1,0]")
        for t in T4:
            for k in range(4):
                B(f"v_cvt_pk_bf16_f32 v{BP(t) + k}, v{EP(t,2*k)}, v{EP(t,2*k+1)}")
                B(f"v_cvt_pk_bf16_f32 v{BM(t) + k}, v{P(t,2*k)}, v{P(t,2*k+1)}")
            row = t * 16 * RS
            for ft in range(2):
                B(f"ds_write_b64 v18, {vr(BP(t) + 2 * ft, 2)} offset:{row + ft * 32}")
                B(f"ds_write_b64 v18, {vr(BM(t) + 2 * ft, 2)} offset:{row + 64 + ft * 32}")
        self.pstamp(a, 4)
        a("s_waitcnt lgkmcnt(0)")
        AF, KV = 160, 192
        for sf in range(4):
            for T in range(2):
                for q in range(2):
                    a(f"ds_read_b64_tr_b16 {vr(AF + (sf * 2 + T) * 4 + 2 * q, 2)}, v23 offset:{(32 * T + 16 * q) * RS + sf * 32}")
        XB = 40960
        a(f"s_mul_i32 s3, s7, 12288")
        a(f"s_add_u32 s3, s3, {XB}")
        a("v_add_u32 v20, s3, v15")
        a("s_and_b32 s4, s7, 2")
        a("s_mul_i32 s4, s4, 12288")
        a(f"s_mul_i32 s5, s{S_TH}, 6144")
        a("s_add_u32 s4, s4, s5")
        a(f"s_add_u32 s4, s4, {XB}")
        a("v_add_u32 v22, s4, v15")
        for sf in range(4):
            a(f"s_waitcnt lgkmcnt({(3 - sf) * 4})")
            for T in range(2):
                A = vr(AF + (sf * 2 + T) * 4, 4)
                for dt in range(3):
                    d = vr(KV + (sf * 3 + dt) * 4, 4)
                    Bop = vr(VB(dt, T), 4) if dt < 2 else vr(ONES, 4)
                    a(f"v_mfma_f32_16x16x32_bf16 {d}, {A}, {Bop}, {d if T else 0}")
        a(f"s_lshl_b32 s3, s{S_HD}, 4")
        a(f"s_add_u32 s3, s3, s{S_MT}")
        a("s_lshl_b32 s3, s3, 14")
        a(f"s_add_u32 s3, s3, {WS_KVP}")
        a(f"s_lshl_b32 s4, s{S_TH}, 12")
        a("s_add_u32 s4, s4, s3")
        a(f"s_lshl_b32 s6, s{S_TH}, 7")
        a("s_add_u32 s6, s6, s3")
        a("s_add_u32 s6, s6, 8192")
        a("v_lshlrev_b32 v21, 4, v21")
        for k in range(12): a(f"ds_write_b128 v20, {vr(KV + 4 * k, 4)} offset:{k * 1024}")
        a("s_waitcnt lgkmcnt(0)")
        self.pstamp(a, 5)
        a("s_barrier")
        for w in range(2):
            for k in range(6):
                a(f"ds_read_b128 {vr(160 + (w * 6 + k) * 4, 4)}, v22 offset:{w * 12288 + k * 1024}")
        a("s_waitcnt lgkmcnt(0)")
        if self.defer:
            for i in range(22, -1, -2):
                a(f"v_pk_add_f32 {vr(192 + i, 2)}, {vr(160 + i, 2)}, {vr(184 + i, 2)}")
            for i in range(16): a(f"v_mov_b32 v{224 + i}, v{64 + i}")
        else:
            for i in range(0, 24, 2):
                a(f"v_pk_add_f32 {vr(160 + i, 2)}, {vr(160 + i, 2)}, {vr(184 + i, 2)}")
        if self.defer:
            a("s_mov_b32 s92, s43")
            a("s_mov_b32 s93, s4")
            a("s_mov_b32 s94, s6")
        else:
            for ft in range(2):
                for dt in range(2):
                    a(f"buffer_store_dwordx4 {vr(160 + (ft * 3 + dt) * 4, 4)}, v15, {ws}, s4 offen offset:{(ft * 2 + dt) * 1024} {sm}")
                a(f"buffer_store_dwordx4 {vr(160 + (ft * 3 + 2) * 4, 4)}, v21, {ws}, s6 offen offset:{ft * 64} {sm}")
        self.after_E2_B(a)
```

```python
from asmlib import *
from layout import *
from prof import Prof
from dbgstamp import dbg_setup, dbg_stamp

MARGIN = 90.0
TPS, TPW = 8, 4
STG = TPS * 4096
LDS_MISC = 2 * STG
L_KV, L_Z, L_WP, L_VOTE, L_SPARE = 0, 4096, 6144, 8192, 8448
L_XO = LDS_MISC + 8448 + 1024
LDS_K2 = L_XO + 8 * 5120

V_LANE16, V_T0, V_T1, V_T2, V_T3, V_G, V_RD = 1, 2, 3, 4, 5, 6, 7
VQ, VC, VS, VP, VKF, VVF, VO, VL, VONE = 8, 24, 56, 88, 96, 112, 128, 160, 168
S_WS, S_K, S_V = 8, 12, 16
S_H, S_QB, S_WV, S_SOFF, S_CNT, S_MODE, S_WOFF, S_QG, S_KH = 20, 21, 22, 23, 24, 25, 26, 27, 32
S_KVP, S_PKV, S_PZ = 44, 48, 49
VKA, VPT, VQB, VGB, V_ZOFF = 176, 184, 224, 244, 246

class K2d(Prof):
    V_PROF = 250
    def __init__(self, name, prof=False, store_mod="nt", force_fallback=False, margin=MARGIN, sched=1, bapply=True, prio=0, diag=(), code=None, dbg=None, wsbase=0):
        self.name, self.prof, self.store_mod = name, prof, store_mod
        self.force_fallback, self.margin, self.sched, self.bapply, self.prio = force_fallback, margin, sched, bapply, prio
        self.diag = set(diag)
        self.code = code
        self.npb = 2
        self.hmod = ''
        self.wsbase = wsbase
        self.dbg = dbg

    def dma_piece(self, slot, i):
        kv, n = i >> 1, i & 1
        srd_ = S_K if kv == 0 else S_V
        ins = []
        if n == 0:
            ins += [f"s_add_u32 m0, s{S_WOFF}, {slot * STG + kv * (STG // 2)}", "s_nop 0"]
        ins.append(f"buffer_load_dwordx4 v{V_LANE16}, s[{srd_}:{srd_+3}], s{S_SOFF} offen offset:{n * 1024} {self.hmod} lds")
        if i == 3:
            ins.append(f"s_add_u32 s{S_SOFF}, s{S_SOFF}, {STG // 2}")
        return ins
    def dma_stage(self, slot):
        return [l for i in range(4) for l in self.dma_piece(slot, i)]

    @staticmethod
    def koff(j): return (j // TPW) * STG + (j % TPW) * 2048
    def rdK(self, j):
        b = VKF + 8 * (j & 1); j %= 2 * TPW
        return [f"ds_read_b128 {vr(b + 4 * st, 4)}, v{V_RD} offset:{self.koff(j) + st * 1024}" for st in range(2)]
    def rdV(self, j):
        b = VVF + 8 * (j & 1); j %= 2 * TPW
        return [f"ds_read_b128 {vr(b + 4 * st, 4)}, v{V_RD} offset:{self.koff(j) + STG // 2 + st * 1024}" for st in range(2)]

    def unit(self, a, j, qt):
        u = 2 * j + qt
        s, sn = VS + 16 * (u & 1), VS + 16 * ((u + 1) & 1)
        jn, qn = (j + (qt == 1), qt ^ 1)
        kn = VKF + 8 * (jn & 1)
        jp, qp = (j - (qt == 0), qt ^ 1)
        v, vp = VVF + 8 * (j & 1), VVF + 8 * (jp & 1)
        e = lambda r: f"v_exp_f32 v{s + r}, v{s + r}"
        c = lambda k: f"v_cvt_pk_bf16_f32 v{VP + k}, v{s + 2 * k}, v{s + 2 * k + 1}"
        O, Op, Lq, Lp = VO + 16 * qt, VO + 16 * qp, VL + 4 * qt, VL + 4 * qp
        Sa = f"v_mfma_f32_32x32x16_bf16 {vr(sn, 16)}, {vr(kn, 4)}, {vr(VQ + 8 * qn, 4)}, {vr(VC + 16 * qn, 16)}"
        Sb = f"v_mfma_f32_32x32x16_bf16 {vr(sn, 16)}, {vr(kn + 4, 4)}, {vr(VQ + 8 * qn + 4, 4)}, {vr(sn, 16)}"
        PVa = f"v_mfma_f32_32x32x16_bf16 {vr(O, 16)}, {vr(v, 4)}, {vr(VP, 4)}, {vr(O, 16)}"
        PVb = f"v_mfma_f32_32x32x16_bf16 {vr(Op, 16)}, {vr(vp + 4, 4)}, {vr(VP + 4, 4)}, {vr(Op, 16)}"
        La = f"v_mfma_f32_16x16x32_bf16 {vr(Lq, 4)}, {vr(VONE, 4)}, {vr(VP, 4)}, {vr(Lq, 4)}"
        Lb = f"v_mfma_f32_16x16x32_bf16 {vr(Lp, 4)}, {vr(VONE, 4)}, {vr(VP + 4, 4)}, {vr(Lp, 4)}"
        rd = self.rdK(j + 1) if qt == 0 else self.rdV(j + 1)
        top = ["s_waitcnt lgkmcnt(0)"]
        jj = j % TPW
        if jj == TPW - 1 and qt == 0:
            if hasattr(self, "switch_code"):
                top += self.switch_code(j)
            else:
                top += ["s_waitcnt vmcnt(0)", "s_barrier"]
                if self.bapply: top += self.part_add() + self.part_loads()
                if hasattr(self, "touch_lines"): top += self.touch_lines()
        if hasattr(self, "first_iter_issue") and j == TPW + 1 and qt == 0: top += self.first_iter_issue()
        k = (2 * jj + qt - 2 * (TPW - 1)) % (2 * TPW)
        dm = []
        if k < 4:
            dm = self.dma_piece((((j + 1) // TPW) + 1) & 1, k)
        r0, r1 = rd[:1], rd[1:]
        if self.sched == 1:
            seq = (top + [e(0)] + r0 + [e(1)] + r1 + [e(2), e(3), Sa, c(0), c(1), e(4), e(5), Lb, e(6), e(7), c(2), c(3), Sb,
                   e(8)] + dm + [e(9), e(10), e(11), PVb, c(4), c(5), e(12), e(13), PVa, e(14), e(15), c(6), c(7), La])
        elif self.sched == 2:
            seq = (top + r0 + r1 + [e(0), e(1), e(2), e(3), Sa, c(0), c(1), e(4), e(5), Lb, e(6), e(7), c(2), c(3), Sb] + dm +
                   [e(8), e(9), e(10), e(11), PVb, c(4), c(5), e(12), e(13), PVa, e(14), e(15), c(6), c(7), La])
        D = self.diag
        if "nord" in D: seq = [l for l in seq if not l.startswith("ds_read")]
        if "noL" in D: seq = [l for l in seq if "16x16x32" not in l]
        for l in seq: a(l)

    def halfmax(self, a, x, t):
        a(f"v_mov_b32 v{t}, v{x}")
        a("s_nop 1")
        a(f"v_permlane32_swap_b32 v{x}, v{t}")
        a("s_nop 1")
        a(f"v_max_f32 v{x}, v{x}, v{t}")

    NT = 2
    def part_loads(self):
        kvp = f"s[{S_KVP}:{S_KVP+3}]"
        r = []
        for b in range(self.npb):
            r += [f"buffer_load_dwordx4 {vr(VPT + 8 * b, 4)}, v{V_LANE16}, {kvp}, s{S_PKV} offen {self.hmod}",
                  f"buffer_load_dwordx4 {vr(VPT + 8 * b + 4, 4)}, v{V_ZOFF}, {kvp}, s{S_PZ} offen {self.hmod}",
                  f"s_add_u32 s{S_PKV}, s{S_PKV}, {KVP_STRIDE}", f"s_add_u32 s{S_PZ}, s{S_PZ}, {KVP_STRIDE}"]
        return r
    def part_add(self):
        return [f"v_pk_add_f32 {vr(VKA + r, 2)}, {vr(VKA + r, 2)}, {vr(VPT + 8 * b + r, 2)}" for b in range(self.npb) for r in range(0, 8, 2)]
    def part_reset(self):
        return ([f"s_lshl_b32 s{S_PKV}, s{S_WV}, 10", f"s_and_b32 s{S_PZ}, s{S_WV}, 3", f"s_lshl_b32 s{S_PZ}, s{S_PZ}, 6",
                 f"s_add_u32 s{S_PZ}, s{S_PZ}, 8192"] + [f"v_mov_b32 v{VKA + r}, 0" for r in range(8)])

    def b_loads(self, a):
        ws = f"s[{S_WS}:{S_WS+3}]"
        a(f"s_lshl_b32 s6, s{S_QB}, 4")
        a(f"s_lshl_b32 s7, s{S_WV}, 1")
        a("s_add_u32 s6, s6, s7")
        a("s_lshl_b32 s7, s6, 10")
        a(f"s_lshl_b32 s3, s{S_H}, 17")
        a("s_add_u32 s7, s7, s3")
        a(f"s_add_u32 s7, s7, {WS_QB}")
        for t in range(self.NT):
            a(f"buffer_load_dwordx4 {vr(VQB + 4 * t, 4)}, v{V_LANE16}, {ws}, s7 offen offset:{t * 1024} {self.hmod}")
        a("s_lshl_b32 s7, s6, 6")
        a(f"s_add_u32 s7, s7, {WS_G}")
        a(f"v_and_b32 v{V_T0}, 15, v{V_T1}")
        a(f"v_lshlrev_b32 v{V_T0}, 2, v{V_T0}")
        for t in range(self.NT):
            a(f"buffer_load_dword v{VGB + t}, v{V_T0}, {ws}, s7 offen offset:{t * 64} {self.hmod}")
        a(f"s_lshl_b32 s6, s{S_H}, 11")
        a(f"s_lshl_b32 s7, s{S_WV}, 10")
        a("s_add_u32 s6, s6, s7")
        a(f"s_cmp_ge_u32 s{S_WV}, 2")
        a("s_cselect_b32 s6, 0x10000, s6")
        a(f"s_cselect_b32 s7, {L_SPARE - L_WP}, s7")
        a(f"s_add_u32 m0, s7, {LDS_MISC + L_WP}")
        a("s_nop 0")
        a(f"buffer_load_dwordx4 v{V_LANE16}, s[28:31], s6 offen lds")

    def b_publish(self, a):
        for k in range(4):
            a(f"v_cvt_pk_bf16_f32 v{VPT + k}, v{VKA + 2 * k}, v{VKA + 2 * k + 1}")
        a(f"v_and_b32 v{V_T1}, 63, v0")
        a(f"v_lshlrev_b32 v{V_T0}, 3, v{V_T1}")
        a(f"v_add_u32 v{V_T0}, {LDS_MISC}, v{V_T0}")
        a(f"s_lshl_b32 s6, s{S_WV}, 9")
        a(f"v_add_u32 v{V_T3}, s6, v{V_T0}")
        a(f"ds_write_b64 v{V_T3}, {vr(VPT, 2)} offset:{L_KV}")
        a(f"s_and_b32 s6, s{S_WV}, 3")
        a(f"s_lshl_b32 s6, s6, 9")
        a(f"v_add_u32 v{V_T3}, s6, v{V_T0}")
        a(f"ds_write_b64 v{V_T3}, {vr(VPT + 2, 2)} offset:{L_Z}")

    def b_apply(self, a):
        ws = f"s[{S_WS}:{S_WS+3}]"
        NT = self.NT
        a(f"v_and_b32 v{V_T1}, 63, v0")
        a(f"v_lshlrev_b32 v{V_T0}, 3, v{V_T1}")
        a(f"v_add_u32 v{V_T0}, {LDS_MISC}, v{V_T0}")
        for sg in range(2):
            for dt in range(2):
                for ft in range(2):
                    t = (sg * 2 + ft) * 2 + dt
                    a(f"ds_read_b64 {vr(24 + (sg * 2 + dt) * 4 + 2 * ft, 2)}, v{V_T0} offset:{L_KV + t * 512}")
            for ft in range(2):
                a(f"ds_read_b64 {vr(40 + sg * 4 + 2 * ft, 2)}, v{V_T0} offset:{L_Z + (sg * 2 + ft) * 512}")
        a(f"v_lshrrev_b32 v{V_T2}, 4, v{V_T1}")
        a(f"v_bfe_u32 v{V_T3}, v{V_T1}, 2, 2")
        a(f"v_lshl_add_u32 v{V_T2}, v{V_T2}, 2, v{V_T3}")
        a(f"v_lshlrev_b32 v{V_T2}, 6, v{V_T2}")
        a(f"v_and_b32 v{V_T3}, 3, v{V_T1}")
        a(f"v_lshl_add_u32 v{V_T2}, v{V_T3}, 3, v{V_T2}")
        a(f"v_add_u32 v{V_T2}, {LDS_MISC}, v{V_T2}")
        for ft in range(2):
            for q in range(2):
                a(f"ds_read_b64_tr_b16 {vr(48 + 4 * ft + 2 * q, 2)}, v{V_T2} offset:{L_WP + q * 1024 + ft * 32}")
        a(f"v_mov_b32 v56, 0x3f803f80")
        for r in range(1, 4): a(f"v_mov_b32 v{56 + r}, v56")
        a("s_waitcnt lgkmcnt(0)")
        for t in range(NT):
            for ft in range(2):
                a(f"v_mfma_f32_16x16x32_bf16 {vr(64 + 8 * t + 4 * ft, 4)}, {vr(48 + 4 * ft, 4)}, {vr(VQB + 4 * t, 4)}, 0")
        a("s_nop 7")
        P = lambda t, i: 64 + 8 * t + i
        MX, MN, TM = 96, 100, 104
        T = range(NT)
        for t in T:
            a(f"v_max3_f32 v{MX+2*t}, v{P(t,0)}, v{P(t,1)}, v{P(t,2)}")
            a(f"v_min3_f32 v{MN+2*t}, v{P(t,0)}, v{P(t,1)}, v{P(t,2)}")
        for i in (3, 5):
            for t in T:
                a(f"v_max3_f32 v{MX+2*t}, v{MX+2*t}, v{P(t,i)}, v{P(t,i+1)}")
                a(f"v_min3_f32 v{MN+2*t}, v{MN+2*t}, v{P(t,i)}, v{P(t,i+1)}")
        for t in T:
            a(f"v_max_f32 v{MX+2*t}, v{MX+2*t}, v{P(t,7)}")
            a(f"v_min_f32 v{MN+2*t}, v{MN+2*t}, v{P(t,7)}")
        for t in T: a(f"v_sub_f32 v{MN+2*t}, 0, v{MN+2*t}")
        a("s_nop 1")
        for t in T: a(f"v_permlane32_swap_b32 v{MX+2*t}, v{MN+2*t}")
        a("s_nop 1")
        for t in T: a(f"v_max_f32 v{MX+2*t}, v{MX+2*t}, v{MN+2*t}")
        for t in T: a(f"v_mov_b32 v{TM+2*t}, v{MX+2*t}")
        a("s_nop 1")
        for t in T: a(f"v_permlane16_swap_b32 v{MX+2*t}, v{TM+2*t}")
        a("s_nop 1")
        for t in T: a(f"v_max_f32 v{MX+2*t}, v{MX+2*t}, v{TM+2*t}")
        for t in T: a(f"v_mov_b32 v{MN+2*t}, v{MX+2*t}")
        a("s_nop 1")
        for t in T: a(f"v_permlane32_swap_b32 v{MX+2*t}, v{MN+2*t}")
        a("s_nop 1")
        EP = lambda t, i: 176 + 8 * t + i
        a(f"s_mov_b32 s36, {f32bits(LOG2E)}")
        a(f"s_mov_b32 s37, {f32bits(LOG2E)}")
        a(f"s_mov_b32 s38, {f32bits(-LOG2E)}")
        a(f"s_mov_b32 s39, {f32bits(-LOG2E)}")
        for t in T:
            a(f"v_mul_f32 v{MX+2*t}, s38, v{MX+2*t}")
            a(f"v_mul_f32 v{MN+2*t}, s38, v{MN+2*t}")
        for t in T:
            for i in range(0, 8, 2):
                a(f"v_pk_fma_f32 {vr(EP(t,i), 2)}, {vr(P(t,i), 2)}, s[36:37], {vr(MX+2*t, 2)} op_sel_hi:[1,1,0]")
                a(f"v_pk_fma_f32 {vr(P(t,i), 2)}, {vr(P(t,i), 2)}, s[38:39], {vr(MN+2*t, 2)} op_sel_hi:[1,1,0]")
        for t in T:
            for i in range(8):
                a(f"v_exp_f32 v{EP(t,i)}, v{EP(t,i)}")
                a(f"v_exp_f32 v{P(t,i)}, v{P(t,i)}")
        BP, BM = 96, 112
        if hasattr(self, "b_mid"): self.b_mid(a)
        a("s_nop 0")
        for t in T:
            for k in range(4):
                a(f"v_cvt_pk_bf16_f32 v{BP + 4*t + k}, v{EP(t,2*k)}, v{EP(t,2*k+1)}")
                a(f"v_cvt_pk_bf16_f32 v{BM + 4*t + k}, v{P(t,2*k)}, v{P(t,2*k+1)}")
        a("s_nop 1")
        for t in T:
            R = 176 + 32 * t
            bp, bm = vr(BP + 4 * t, 4), vr(BM + 4 * t, 4)
            for dt in range(2):
                a(f"v_mfma_f32_16x16x32_bf16 {vr(R + 4 * dt, 4)}, {vr(24 + 4 * dt, 4)}, {bp}, 0")
                a(f"v_mfma_f32_16x16x32_bf16 {vr(R + 8 + 4 * dt, 4)}, {vr(32 + 4 * dt, 4)}, {bm}, 0")
            a(f"v_mfma_f32_16x16x32_bf16 {vr(R + 16, 4)}, {vr(40, 4)}, {bp}, 0")
            a(f"v_mfma_f32_16x16x32_bf16 {vr(R + 20, 4)}, {vr(44, 4)}, {bm}, 0")
            a(f"v_mfma_f32_16x16x32_bf16 {vr(R + 24, 4)}, {vr(56, 4)}, {bp}, 0")
            a(f"v_mfma_f32_16x16x32_bf16 {vr(R + 28, 4)}, {vr(56, 4)}, {bm}, 0")
        a("s_nop 7")
        for t in T:
            R = 176 + 32 * t
            a(f"v_rcp_f32 v{R + 24}, v{R + 24}")
            a(f"v_rcp_f32 v{R + 28}, v{R + 28}")
        a("s_nop 0")
        for t in T:
            R = 176 + 32 * t
            a(f"v_mul_f32 v{R + 16}, v{R + 16}, v{R + 24}")
            a(f"v_sub_f32 v{R + 17}, 1.0, v{VGB + t}")
            a(f"v_fma_f32 v{R + 16}, v{R + 20}, v{R + 28}, v{R + 16}")
            a(f"v_add_f32 v{R + 16}, {f32bits(1e-6)}, v{R + 16}")
        for t in T:
            a(f"v_rcp_f32 v{176 + 32 * t + 16}, v{176 + 32 * t + 16}")
        a("s_nop 0")
        for t in T:
            R = 176 + 32 * t
            a(f"v_mul_f32 v{R + 16}, v{R + 16}, v{R + 17}")
            a(f"v_mul_f32 v{R + 24}, v{R + 24}, v{R + 16}")
            a(f"v_mul_f32 v{R + 28}, v{R + 28}, v{R + 16}")
        for t in T:
            R = 176 + 32 * t
            for i in range(8): a(f"v_mul_f32 v{R + i}, v{R + i}, v{R + 24}")
            for i in range(8): a(f"v_fma_f32 v{R + i}, v{R + 8 + i}, v{R + 28}, v{R + i}")
        for t in T:
            R = 176 + 32 * t
            for k in range(4):
                a(f"v_cvt_pk_bf16_f32 v{R + 20 + k}, v{R + 2 * k}, v{R + 2 * k + 1}")
            a(f"s_lshl_b32 s6, s{S_QB}, 4")
            a(f"s_lshl_b32 s7, s{S_WV}, 1")
            a("s_add_u32 s6, s6, s7")
            a(f"s_add_u32 s6, s6, {t}")
            a("s_lshl_b32 s6, s6, 10")
            a(f"s_lshl_b32 s7, s{S_H}, 17")
            a("s_add_u32 s6, s6, s7")
            a(f"s_add_u32 s6, s6, {WS_O + 32 * 131072}")
            a(f"buffer_store_dwordx4 {vr(R + 20, 4)}, v{V_LANE16}, {ws}, s6 offen {self.store_mod}")

    def gen(self):
        a = Asm()
        n = self.name
        a("s_cmp_ge_u32 s2, 256")
        a(f"s_cbranch_scc1 {n}_end")
        self.pstamp(a, 0)
        self.body(a, True)
        a.label(f"{n}_end")
        a("s_endpgm")
        a.label(f"{n}_last")
        return kernel_header(n) + a.text() + kernel_desc(n, 256, 256)

    def body(self, a, standalone):
        self.setup(a, standalone)
        self.rest(a)

    def setup(self, a, standalone):
        n = self.name
        ws = f"s[{S_WS}:{S_WS+3}]"
        a("s_load_dwordx2 s[4:5], s[0:1], 80")
        a("s_load_dwordx2 s[34:35], s[0:1], 40")
        if hasattr(self, "entry_extra"): self.entry_extra(a)
        if self.code and standalone:
            first, last, nbytes = self.code
            code_prefetch(a, n, first, last, 8, 240, 242, 90)(-(-nbytes // 32768))
        a("s_and_b32 s3, s2, 7")
        a("s_lshr_b32 s6, s2, 3")
        a(f"s_lshl_b32 s{S_H}, s3, 2")
        a("s_lshr_b32 s7, s6, 3")
        a(f"s_add_u32 s{S_H}, s{S_H}, s7")
        a(f"s_and_b32 s{S_QB}, s6, 7")
        a("v_lshrrev_b32 v2, 6, v0")
        a(f"v_and_b32 v{V_T1}, 63, v0")
        a(f"v_lshlrev_b32 v{V_LANE16}, 4, v{V_T1}")
        a(f"v_readfirstlane_b32 s{S_WV}, v2")
        a("s_waitcnt lgkmcnt(0)")
        ws_shift(a, 4, self.wsbase)
        srd(a, S_WS, 4, 0x10000000 - self.wsbase)
        srd(a, 28, 34, 65536)
        a(f"s_lshl_b32 s3, s{S_H}, 17")
        for S, off in ((S_K, WS_KA), (S_V, WS_VA)):
            a(f"s_add_u32 s6, s3, {off}")
            a(f"s_add_u32 s{S}, s4, s6")
            a(f"s_addc_u32 s{S+1}, s5, 0")
            a(f"s_and_b32 s{S+1}, s{S+1}, 0xffff")
            a(f"s_mov_b32 s{S+2}, 131072")
            a(f"s_mov_b32 s{S+3}, 0x00020000")
        a(f"s_lshl_b32 s{S_WOFF}, s{S_WV}, 11")
        a(f"s_and_b32 s{S_QG}, s{S_WV}, 3")
        a(f"s_lshr_b32 s{S_KH}, s{S_WV}, 2")
        a(f"s_lshl_b32 s6, s{S_KH}, 13")
        a(f"v_add_u32 v{V_RD}, s6, v{V_LANE16}")
        a(f"s_lshl_b32 s6, s{S_QB}, 3")
        a(f"s_lshl_b32 s7, s{S_QG}, 1")
        a("s_add_u32 s6, s6, s7")
        a("s_lshl_b32 s7, s6, 11")
        a(f"s_lshl_b32 s3, s{S_H}, 17")
        a("s_add_u32 s7, s7, s3")
        a(f"s_add_u32 s7, s7, {WS_QA}")
        a(f"s_mov_b32 s{S_MODE}, 0")
        a(f"s_mov_b32 s{S_SOFF}, s{S_WOFF}")

    def rest(self, a):
        n = self.name
        ws = f"s[{S_WS}:{S_WS+3}]"
        if hasattr(self, "pre_loads"): self.pre_loads(a)
        for l in self.dma_piece(0, 0) + self.dma_piece(0, 1): a(l)
        for i in range(4):
            a(f"buffer_load_dwordx4 {vr(VQ + 4 * i, 4)}, v{V_LANE16}, {ws}, s7 offen offset:{i * 1024} {self.hmod}")
        for l in self.dma_piece(0, 2) + self.dma_piece(0, 3): a(l)
        a(f"s_add_u32 s6, s6, s{S_KH}")
        a("s_lshl_b32 s7, s6, 7")
        a(f"s_add_u32 s7, s7, {WS_G}")
        a(f"v_and_b32 v{V_T0}, 31, v{V_T1}")
        a(f"v_lshlrev_b32 v{V_T0}, 2, v{V_T0}")
        a(f"buffer_load_dword v{V_G}, v{V_T0}, {ws}, s7 offen {self.hmod}")
        nbg = 1
        if self.bapply:
            a(f"s_lshl_b32 s6, s{S_H}, 18")
            a(f"s_add_u32 s6, s6, {WS_KVP}")
            a(f"s_add_u32 s{S_KVP}, s4, s6")
            a(f"s_addc_u32 s{S_KVP+1}, s5, 0")
            a(f"s_and_b32 s{S_KVP+1}, s{S_KVP+1}, 0xffff")
            a(f"s_mov_b32 s{S_KVP+2}, {NKVP * KVP_STRIDE}")
            a(f"s_mov_b32 s{S_KVP+3}, 0x00020000")
            a(f"v_lshrrev_b32 v{V_ZOFF}, 4, v{V_T1}")
            a(f"v_lshlrev_b32 v{V_ZOFF}, 4, v{V_ZOFF}")
            for l in self.part_reset(): a(l)
            if not hasattr(self, "deferred_stores"):
                for r in range(8 * self.npb): a(f"v_mov_b32 v{VPT + r}, 0")
        self.nbg = nbg
        self.pstamp(a, 1)
        a(f"v_lshrrev_b32 v{V_T0}, 4, v{V_T1}")
        a(f"v_lshrrev_b32 v{V_T2}, 2, v{V_T1}")
        a(f"v_xor_b32 v{V_T0}, v{V_T0}, v{V_T2}")
        a(f"v_and_b32 v{V_T0}, 1, v{V_T0}")
        a(f"v_mov_b32 v{V_T2}, 0x3f803f80")
        a(f"v_cmp_eq_u32 vcc, 0, v{V_T0}")
        a("s_nop 1")
        a(f"v_cndmask_b32 v{VONE}, 0, v{V_T2}, vcc")
        for r in range(1, 4): a(f"v_mov_b32 v{VONE + r}, v{VONE}")
        if hasattr(self, "early_setup"): self.early_setup(a)
        if hasattr(self, "first_wait"): self.first_wait(a)
        else: a(f"s_waitcnt vmcnt({self.nbg})")
        a(f"s_branch {n}_first")
        a.label(f"{n}_restart")
        a(f"s_mov_b32 s{S_SOFF}, s{S_WOFF}")
        for l in self.dma_stage(0): a(l)
        if self.bapply:
            for l in self.part_reset(): a(l)
            for r in range(8 * self.npb): a(f"v_mov_b32 v{VPT + r}, 0")
        a("s_waitcnt vmcnt(0)")
        a.label(f"{n}_first")
        for r in range(32): a(f"v_mov_b32 v{VO + r}, 0")
        for r in range(8): a(f"v_mov_b32 v{VL + r}, 0")
        for r in range(8): a(f"v_mov_b32 v{VP + r}, 0")
        for r in range(4): a(f"v_mov_b32 v{VVF + 8 + 4 + r}, 0")
        a("s_barrier")
        self.pstamp(a, 2)
        for l in self.dma_piece(1, 0) + self.dma_piece(1, 1): a(l)
        if hasattr(self, "deferred_stores"): self.deferred_stores(a)
        if self.bapply and not hasattr(self, "switch_code"):
            a(f"s_cmp_lg_u32 s{S_MODE}, 0")
            a(f"s_cbranch_scc1 {n}_nobl")
            self.b_loads(a)
            a.label(f"{n}_nobl")
        a(f"s_cmp_lg_u32 s{S_MODE}, 0")
        a(f"s_cbranch_scc1 {n}_havemax")
        a(f"ds_read_b128 {vr(VKF, 4)}, v{V_LANE16}")
        a(f"ds_read_b128 {vr(VKF + 4, 4)}, v{V_LANE16} offset:1024")
        a("s_waitcnt lgkmcnt(0)")
        for qt in range(2):
            s = VS + 16 * qt
            a(f"v_mfma_f32_32x32x16_bf16 {vr(s, 16)}, {vr(VKF, 4)}, {vr(VQ + 8 * qt, 4)}, 0")
            a(f"v_mfma_f32_32x32x16_bf16 {vr(s, 16)}, {vr(VKF + 4, 4)}, {vr(VQ + 8 * qt + 4, 4)}, {vr(s, 16)}")
        a("s_nop 15")
        for qt in range(2):
            s, x = VS + 16 * qt, V_T0 + 2 * qt
            a(f"v_max3_f32 v{x}, v{s}, v{s + 1}, v{s + 2}")
            for r in range(3, 15, 2):
                a(f"v_max3_f32 v{x}, v{x}, v{s + r}, v{s + r + 1}")
            a(f"v_max_f32 v{x}, v{x}, v{s + 15}")
        for qt in range(2):
            x = V_T0 + 2 * qt
            self.halfmax(a, x, V_T3)
            a(f"v_add_f32 v{x}, {f32bits(self.margin)}, v{x}")
            a(f"v_sub_f32 v{VC + 16 * qt}, 0, v{x}")
            for r in range(1, 16): a(f"v_mov_b32 v{VC + 16 * qt + r}, v{VC + 16 * qt}")
        a.label(f"{n}_havemax")
        for l in self.rdK(0) + self.rdV(0): a(l)
        a("s_waitcnt lgkmcnt(0)")
        a(f"v_mfma_f32_32x32x16_bf16 {vr(VS, 16)}, {vr(VKF, 4)}, {vr(VQ, 4)}, {vr(VC, 16)}")
        a(f"v_mfma_f32_32x32x16_bf16 {vr(VS, 16)}, {vr(VKF + 4, 4)}, {vr(VQ + 4, 4)}, {vr(VS, 16)}")
        a("s_nop 7")
        a(f"s_mov_b32 s{S_CNT}, {32 // (2 * TPW)}")
        if self.prio:
            a(f"s_cmp_ge_u32 s{S_WV}, 4")
            a(f"s_cbranch_scc0 {n}_noprio")
            a("s_setprio 1")
            a.label(f"{n}_noprio")
        self.pstamp(a, 3)
        a("s_nop 3")
        a(".p2align 6")
        a.label(f"{n}_loop")
        for j in range(2 * TPW):
            for qt in range(2):
                self.unit(a, j, qt)
        a(f"s_sub_u32 s{S_CNT}, s{S_CNT}, 1")
        a(f"s_cmp_lg_u32 s{S_CNT}, 0")
        a(f"s_cbranch_scc1 {n}_loop")
        a("s_nop 1")
        a(f"v_mfma_f32_32x32x16_bf16 {vr(VO + 16, 16)}, {vr(VVF + 8 + 4, 4)}, {vr(VP + 4, 4)}, {vr(VO + 16, 16)}")
        a(f"v_mfma_f32_16x16x32_bf16 {vr(VL + 4, 4)}, {vr(VONE, 4)}, {vr(VP + 4, 4)}, {vr(VL + 4, 4)}")
        if self.prio: a("s_setprio 0")
        self.pstamp(a, 4)
        a("s_waitcnt vmcnt(0) lgkmcnt(0)")
        if self.bapply:
            for l in self.part_add(): a(l)
        a("s_nop 15")
        a(f"s_mov_b32 s3, 0")
        if not self.diag:
            a(f"v_mul_f32 v{V_T0}, {f32bits(256.0)}, v{VL}")
            a(f"v_mul_f32 v{V_T2}, {f32bits(256.0)}, v{VL + 4}")
            a(f"v_mul_f32 v{V_T0}, 0, v{V_T0}")
            a(f"v_fma_f32 v{V_T0}, v{V_T2}, 0, v{V_T0}")
            for r in range(32): a(f"v_fma_f32 v{V_T0}, v{VO + r}, 0, v{V_T0}")
            if self.force_fallback:
                a(f"v_mov_b32 v{V_T0}, 0x7fc00000")
            a(f"v_cmp_u_f32 vcc, v{V_T0}, v{V_T0}")
            a(f"s_or_b32 s3, vcc_lo, vcc_hi")
            a(f"s_cmp_lg_u32 s3, 0")
            a(f"s_cselect_b32 s3, 1, 0")
        a(f"v_mov_b32 v{V_T0}, s3")
        a(f"s_lshl_b32 s6, s{S_WV}, 2")
        a(f"s_add_u32 s6, s6, {LDS_MISC + L_VOTE}")
        a(f"v_mov_b32 v{V_T2}, s6")
        a(f"ds_write_b32 v{V_T2}, v{V_T0}")
        a(f"s_mul_i32 s6, s{S_WV}, {5 * 1024}")
        a(f"s_add_u32 s6, s6, {L_XO}")
        a(f"v_add_u32 v{V_T2}, s6, v{V_LANE16}")
        a(f"s_cmp_eq_u32 s{S_KH}, 0")
        a(f"s_cbranch_scc1 {n}_give1")
        for qt, lab in ((0, ""), (1, f"{n}_give1")):
            if lab: a.label(lab)
            for k in range(4):
                a(f"ds_write_b128 v{V_T2}, {vr(VO + 16 * qt + 4 * k, 4)} offset:{k * 1024}")
            a(f"ds_write_b128 v{V_T2}, {vr(VL + 4 * qt, 4)} offset:4096")
            if qt == 0: a(f"s_branch {n}_gave")
        a.label(f"{n}_gave")
        if self.bapply: self.b_publish(a)
        a("s_waitcnt lgkmcnt(0)")
        a("s_barrier")
        a(f"v_mov_b32 v{V_T0}, {LDS_MISC + L_VOTE}")
        a(f"ds_read_b128 v[216:219], v{V_T0}")
        a(f"ds_read_b128 v[220:223], v{V_T0} offset:16")
        a(f"s_xor_b32 s6, s{S_WV}, 4")
        a(f"s_mul_i32 s6, s6, {5 * 1024}")
        a(f"s_add_u32 s6, s6, {L_XO}")
        a(f"v_add_u32 v{V_T2}, s6, v{V_LANE16}")
        for k in range(4):
            a(f"ds_read_b128 {vr(VS + 4 * k, 4)}, v{V_T2} offset:{k * 1024}")
        a(f"ds_read_b128 {vr(VS + 16, 4)}, v{V_T2} offset:4096")
        a("s_waitcnt lgkmcnt(5)")
        a("v_or3_b32 v216, v216, v217, v218")
        a("v_or3_b32 v216, v216, v219, v220")
        a("v_or3_b32 v216, v216, v221, v222")
        a("v_or_b32 v216, v216, v223")
        a("s_nop 0")
        a("v_readfirstlane_b32 s3, v216")
        a(f"s_sub_u32 s6, 1, s{S_MODE}")
        a("s_and_b32 s3, s3, s6")
        a("s_cmp_eq_u32 s3, 0")
        a(f"s_cbranch_scc1 {n}_fin")
        a("s_waitcnt lgkmcnt(0)")
        a("s_barrier")
        a(f"s_mov_b32 s{S_SOFF}, s{S_WOFF}")
        a(f"s_mov_b32 s{S_CNT}, {64 // TPS}")
        a(f"v_mov_b32 v{V_T0}, 0xff800000")
        a(f"v_mov_b32 v{V_T2}, 0xff800000")
        a.label(f"{n}_maxloop")
        for l in self.dma_stage(0): a(l)
        a("s_waitcnt vmcnt(0)")
        a("s_barrier")
        for j in range(TPS):
            a(f"ds_read_b128 {vr(VKF, 4)}, v{V_LANE16} offset:{j * 2048}")
            a(f"ds_read_b128 {vr(VKF + 4, 4)}, v{V_LANE16} offset:{j * 2048 + 1024}")
            a("s_waitcnt lgkmcnt(0)")
            for qt in range(2):
                s = VS + 16 * qt
                a(f"v_mfma_f32_32x32x16_bf16 {vr(s, 16)}, {vr(VKF, 4)}, {vr(VQ + 8 * qt, 4)}, 0")
                a(f"v_mfma_f32_32x32x16_bf16 {vr(s, 16)}, {vr(VKF + 4, 4)}, {vr(VQ + 8 * qt + 4, 4)}, {vr(s, 16)}")
            a("s_nop 15")
            for qt in range(2):
                s, x = VS + 16 * qt, V_T0 + 2 * qt
                for r in range(0, 16, 2):
                    a(f"v_max3_f32 v{x}, v{x}, v{s + r}, v{s + r + 1}")
        a("s_barrier")
        a(f"s_sub_u32 s{S_CNT}, s{S_CNT}, 1")
        a(f"s_cmp_lg_u32 s{S_CNT}, 0")
        a(f"s_cbranch_scc1 {n}_maxloop")
        for qt in range(2):
            x = V_T0 + 2 * qt
            self.halfmax(a, x, V_T3)
            a(f"v_sub_f32 v{VC + 16 * qt}, 0, v{x}")
            for r in range(1, 16): a(f"v_mov_b32 v{VC + 16 * qt + r}, v{VC + 16 * qt}")
        a(f"s_mov_b32 s{S_MODE}, 1")
        a(f"s_branch {n}_restart")
        a.label(f"{n}_fin")
        if hasattr(self, "after_decision"): self.after_decision(a)
        a(f"s_cmp_eq_u32 s{S_KH}, 0")
        a(f"s_cbranch_scc1 {n}_keep0")
        for r in range(16): a(f"v_mov_b32 v{VO + r}, v{VO + 16 + r}")
        a(f"v_mov_b32 v{VL}, v{VL + 4}")
        a.label(f"{n}_keep0")
        a(f"v_and_b32 v{V_T1}, 63, v0")
        a(f"v_bfe_u32 v{V_T0}, v{V_T1}, 4, 1")
        a(f"v_lshlrev_b32 v{V_T0}, 10, v{V_T0}")
        a(f"v_lshrrev_b32 v{V_T2}, 5, v{V_T1}")
        a(f"v_lshl_add_u32 v{V_T0}, v{V_T2}, 8, v{V_T0}")
        a(f"v_and_b32 v{V_T2}, 15, v{V_T1}")
        a(f"v_lshl_add_u32 v{V_T0}, v{V_T2}, 4, v{V_T0}")
        a("s_waitcnt lgkmcnt(0)")
        a(f"v_add_f32 v{VL}, v{VL}, v{VS + 16}")
        a(f"v_rcp_f32 v{V_T2}, v{VL}")
        for r in range(16): a(f"v_add_f32 v{VO + r}, v{VO + r}, v{VS + r}")
        a(f"v_mul_f32 v{V_T2}, v{V_T2}, v{V_G}")
        for r in range(16): a(f"v_mul_f32 v{VO + r}, v{V_T2}, v{VO + r}")
        for k in range(8): a(f"v_cvt_pk_bf16_f32 v{VS + k}, v{VO + 2 * k}, v{VO + 2 * k + 1}")
        a(f"s_lshl_b32 s6, s{S_QB}, 3")
        a(f"s_lshl_b32 s7, s{S_QG}, 1")
        a("s_add_u32 s6, s6, s7")
        a(f"s_add_u32 s6, s6, s{S_KH}")
        a("s_lshl_b32 s6, s6, 11")
        a(f"s_lshl_b32 s7, s{S_H}, 17")
        a("s_add_u32 s6, s6, s7")
        a(f"s_add_u32 s6, s6, {WS_O}")
        a(f"buffer_store_dwordx4 {vr(VS, 4)}, v{V_T0}, {ws}, s6 offen {self.store_mod}")
        a(f"buffer_store_dwordx4 {vr(VS + 4, 4)}, v{V_T0}, {ws}, s6 offen offset:512 {self.store_mod}")
        self.pstamp(a, 5)
        if self.bapply:
            self.b_apply(a)
        last = 6
        if hasattr(self, "project"):
            self.project(a); last = 9
        if self.prof:
            a("s_waitcnt vmcnt(0)")
            self.pstamp(a, last)
            self.pflush(a, 1, 8, S_WV, ws)
```

```python
from asmlib import *
from layout import *
import k1w, k2d, k23
from k1w import K1w
from k23 import K23, SPIN_LIMIT
from prof import Prof

F1, F2 = WS_FLAG + (32 << 10), WS_FLAG + (36 << 10)
S_DBG1 = 84
S_OWN = 95
LDS_ALL = 163840

class Phase1(K1w):
    STAMP = {2: 1, 3: 2, 5: 3}
    def pstamp(self, a, idx, vreg=None):
        if idx in self.STAMP: Prof.pstamp(self, a, self.STAMP[idx], vreg)
    def clear_flags(self, a):
        n = self.name
        ws = f"s[{k1w.S_WS}:{k1w.S_WS+3}]"
        a("s_load_dwordx2 s[96:97], s[0:1], 72") if not self.prof else a("s_load_dwordx2 s[100:101], s[0:1], 72")
        a(f"s_cmp_lg_u32 s{k1w.S_WV}, 4")
        a(f"s_cbranch_scc1 {n}_noflag")
        a("s_and_b32 s3, s2, 7")
        a("s_lshr_b32 s4, s2, 3")
        a("s_lshl_b32 s3, s3, 2")
        a("s_lshr_b32 s5, s4, 3")
        a("s_add_u32 s3, s3, s5")
        a("s_and_b32 s4, s4, 7")
        a("s_lshl_b32 s4, s4, 12")
        a("s_lshl_b32 s3, s3, 2")
        a("s_add_u32 s3, s3, s4")
        a(f"s_add_u32 s3, s3, {WS_FLAG}")
        a(f"s_lshl_b32 s4, s{k1w.S_HP}, 7")
        a(f"s_lshl_b32 s5, s{k1w.S_MT}, 2")
        a("s_add_u32 s4, s4, s5")
        a(f"s_add_u32 s5, s4, {F1}")
        a(f"s_add_u32 s4, s4, {F2}")
        a("v_mov_b32 v20, s3")
        a("v_writelane_b32 v20, s5, 1")
        a("v_writelane_b32 v20, s4, 2")
        a("s_add_u32 s3, s3, 128")
        a("v_writelane_b32 v20, s3, 3")
        a("v_mov_b32 v21, 0")
        a("s_mov_b64 exec, 15")
        a(f"buffer_store_dword v21, v20, {ws}, 0 offen sc1")
        a("s_mov_b64 exec, -1")
        a.label(f"{n}_noflag")
    def unit_extra(self, u):
        n = self.name
        p = 100 if self.prof else 96
        dsc = [f"s_mov_b32 s{S_DBG1}, s{p}", f"s_and_b32 s{S_DBG1+1}, s{p+1}, 0xffff", f"s_mov_b32 s{S_DBG1+2}, 256", f"s_mov_b32 s{S_DBG1+3}, 0x00020000"]
        if u == 11:
            return ["s_waitcnt vmcnt(0)"]
        if u == 12:
            return ([f"s_cmp_lg_u32 s{k1w.S_WV}, 4", f"s_cbranch_scc1 {n}_nocnt", "s_waitcnt lgkmcnt(0)"] + dsc +
                    ["s_and_b32 s3, s2, 7", "s_lshl_b32 s3, s3, 5", "s_mov_b64 exec, 1", "v_mov_b32 v20, s3", "v_mov_b32 v21, 1",
                     f"buffer_atomic_add v21, v20, s[{S_DBG1}:{S_DBG1+3}], 0 offen", "s_mov_b64 exec, -1", f"{n}_nocnt:"])
        if u == 26:
            return ([f"s_cmp_lg_u32 s{k1w.S_WV}, 5", f"s_cbranch_scc1 {n}_nochk", "s_waitcnt lgkmcnt(0)"] + dsc +
                    ["s_mov_b64 exec, 0xff", "v_and_b32 v20, 7, v0", "v_lshlrev_b32 v20, 5, v20", f"s_mov_b32 s3, {SPIN_LIMIT}",
                     f"{n}_clr:", f"buffer_load_dword v21, v20, s[{S_DBG1}:{S_DBG1+3}], 0 offen sc1", "s_waitcnt vmcnt(0)",
                     "v_cmp_eq_u32 vcc, 32, v21", "s_sub_u32 s3, s3, 1", "s_cmp_eq_u32 s3, 0", f"s_cbranch_scc1 {n}_clrdone",
                     "s_cmp_eq_u64 vcc, exec", f"s_cbranch_scc1 {n}_clrdone", "s_sleep 2", f"s_branch {n}_clr",
                     f"{n}_clrdone:", "s_mov_b64 exec, -1", f"{n}_nochk:"])
        return []
    def keep_owner(self, a):
        a(f"s_lshl_b32 s{S_OWN}, s{k1w.S_HP}, 7")
        a(f"s_lshl_b32 s3, s{k1w.S_MT}, 2")
        a(f"s_add_u32 s{S_OWN}, s{S_OWN}, s3")
    def before_drain_A(self, a):
        self.keep_owner(a)
        self.owner.setup(a, False)
    def after_E2_B(self, a):
        self.keep_owner(a)
        self.owner.setup(a, False)
    def after_E2_A(self, a):
        n = self.name
        a(f"s_cmp_lg_u32 s{k1w.S_WV}, 0")
        a(f"s_cbranch_scc1 {n}_nof1")
        a(f"s_add_u32 s3, s{S_OWN}, {F1}")
        a("s_mov_b64 exec, 1")
        a("v_mov_b32 v20, 0")
        a("v_mov_b32 v21, 1")
        a(f"buffer_store_dword v21, v20, s[{k2d.S_WS}:{k2d.S_WS+3}], s3 offen sc1")
        a("s_mov_b64 exec, -1")
        a.label(f"{n}_nof1")

class KAll(K23):
    STAMP = {1: 5, 2: 6, 3: 7, 4: 8, 5: 9, 6: 10, 7: 11, 8: 12, 9: 13}
    def __init__(self, name, k1=None, **kw):
        super().__init__(name, **kw)
        self.hmod = "sc1"
        self.p1 = Phase1(name + "_p1", prof=self.prof, **(k1 or {}))
        self.p1.owner = self
        self.p1.defer = True
        self.npb = 3
    def pstamp(self, a, idx, vreg=None):
        if idx == 0: Prof.pstamp(self, a, 0, vreg)
        elif idx in self.STAMP: Prof.pstamp(self, a, self.STAMP[idx], vreg)

    def spin(self, a, tag, load, check):
        n = self.name
        a(f"s_mov_b32 s36, {SPIN_LIMIT}")
        a.label(f"{n}_{tag}")
        for l in load: a(l)
        a("s_waitcnt vmcnt(0)")
        for l in check: a(l)
        a("s_sub_u32 s36, s36, 1")
        a("s_cmp_eq_u32 s36, 0")
        a(f"s_cbranch_scc1 {n}_{tag}_done")
        a("s_cmp_eq_u64 vcc, exec")
        a(f"s_cbranch_scc1 {n}_{tag}_done")
        a(f"s_sleep {self.sleep}")
        a(f"s_branch {n}_{tag}")
        a.label(f"{n}_{tag}_done")

    def line_of_pair(self, base):
        return [f"s_lshr_b32 s37, s{k2d.S_H}, 1", "s_lshl_b32 s37, s37, 7", f"s_add_u32 s37, s37, {base}"]

    def poll_pair(self, a, base, tag):
        ws = f"s[{k2d.S_WS}:{k2d.S_WS+3}]"
        for l in self.line_of_pair(base): a(l)
        a("s_mov_b64 exec, 0xffff")
        a("v_and_b32 v216, 15, v0")
        a("v_lshlrev_b32 v216, 2, v216")
        self.spin(a, tag, [f"buffer_load_dword v217, v216, {ws}, s37 offen sc1"], ["v_cmp_eq_u32 vcc, 1, v217"])
        a("s_mov_b64 exec, -1")

    def pre_loads(self, a):
        n = self.name
        a(f"s_cmp_lg_u32 s{k2d.S_WV}, 0")
        a(f"s_cbranch_scc1 {n}_w1")
        self.poll_pair(a, F1, "f1")
        a.label(f"{n}_w1")
        a("s_barrier")
        Prof.pstamp(self, a, 4)

    def deferred_stores(self, a):
        n = self.name
        ws, sm = f"s[{k2d.S_WS}:{k2d.S_WS+3}]", self.store_mod
        a(f"s_cmp_lg_u32 s{k2d.S_MODE}, 0")
        a(f"s_cbranch_scc1 {n}_nods")
        a(f"s_cmp_lt_u32 s{k2d.S_WV}, 4")
        a(f"s_cbranch_scc1 {n}_nods")
        for tk in range(4):
            a(f"buffer_store_dwordx4 {vr(224 + 4 * tk, 4)}, v{k2d.V_LANE16}, {ws}, s92 offen offset:{tk * 1024} {sm}")
        for ft in range(2):
            for dt in range(2):
                a(f"buffer_store_dwordx4 {vr(192 + (ft * 3 + dt) * 4, 4)}, v{k2d.V_LANE16}, {ws}, s93 offen offset:{(ft * 2 + dt) * 1024} {sm}")
            a(f"buffer_store_dwordx4 {vr(192 + (ft * 3 + 2) * 4, 4)}, v{k2d.V_ZOFF}, {ws}, s94 offen offset:{ft * 64} {sm}")
        a.label(f"{n}_nods")

    def first_wait(self, a):
        a("s_waitcnt vmcnt(1)")

    def raise_f2(self):
        n = self.name
        return [f"s_add_u32 s36, s{S_OWN}, {F2}", "s_mov_b64 exec, 1", "v_mov_b32 v216, 0", "v_mov_b32 v217, 1",
                f"buffer_store_dword v217, v216, s[{k2d.S_WS}:{k2d.S_WS+3}], s36 offen sc1", "s_mov_b64 exec, -1"]

    def switch_code(self, j):
        first_sw = j == k2d.TPW - 1
        bg = self.part_add() + self.part_loads()
        if first_sw:
            n = self.name
            return (["s_waitcnt vmcnt(0)", "s_barrier"] + self.first_only("r2", True, self.raise_f2()) +
                    [f"s_cmp_eq_u32 s{k2d.S_CNT}, {32 // (2 * k2d.TPW)}", f"s_cbranch_scc1 {n}_nobg"] + bg + [f"{n}_nobg:"] + self.touch_lines())
        n = self.name
        cnt0 = 32 // (2 * k2d.TPW)
        add = [f"s_cmp_eq_u32 s{k2d.S_CNT}, {cnt0}", f"s_cbranch_scc1 {n}_noadd"] + self.part_add() + [f"{n}_noadd:"]
        return ["s_waitcnt vmcnt(0)"] + self.first_iter_pre() + ["s_barrier"] + self.first_iter_post() + add + self.part_loads() + self.touch_lines()

    def first_only(self, tag, wave0, lines):
        n = self.name
        r = [f"s_cmp_lg_u32 s{k2d.S_CNT}, {32 // (2 * k2d.TPW)}", f"s_cbranch_scc1 {n}_{tag}"]
        if wave0: r += [f"s_cmp_lg_u32 s{k2d.S_WV}, 0", f"s_cbranch_scc1 {n}_{tag}"]
        return r + lines + [f"{n}_{tag}:"]
    def first_iter_issue(self):
        ws = f"s[{k2d.S_WS}:{k2d.S_WS+3}]"
        return self.first_only("i2", True, self.line_of_pair(F2) + ["v_and_b32 v216, 15, v0", "v_lshlrev_b32 v216, 2, v216",
                               f"buffer_load_dword v217, v216, {ws}, s37 offen sc1"])
    def first_iter_pre(self):
        n = self.name
        ws = f"s[{k2d.S_WS}:{k2d.S_WS+3}]"
        return self.first_only("c2", True, [f"s_mov_b32 s36, {SPIN_LIMIT}", f"{n}_c2l:", "v_cmp_eq_u32 vcc, 1, v217",
                                "s_sub_u32 s36, s36, 1", "s_cmp_eq_u32 s36, 0", f"s_cbranch_scc1 {n}_c2",
                                "s_cmp_eq_u64 vcc, exec", f"s_cbranch_scc1 {n}_c2",
                                f"buffer_load_dword v217, v216, {ws}, s37 offen sc1", "s_waitcnt vmcnt(0)", f"s_branch {n}_c2l"])
    def first_iter_post(self):
        b = Asm()
        self.b_loads(b)
        return self.first_only("b2", False, [l.strip() for l in b.lines])

    def gen(self):
        a = Asm()
        n = self.name
        a("s_cmp_ge_u32 s2, 256")
        a(f"s_cbranch_scc1 {n}_end")
        self.pstamp(a, 0)
        p1 = self.p1
        a("s_load_dwordx4 s[44:47], s[0:1], 0")
        if self.code:
            first, last, nbytes = self.code
            code_prefetch(a, n, first, last, 8, 252, 254, 90)(-(-nbytes // 32768))
        p1.body(a)
        self.rest(a)
        a.label(f"{n}_end")
        a("s_endpgm")
        a.label(f"{n}_last")
        return kernel_header(n) + a.text() + kernel_desc(n, 256, 256)
```

```python
import sys
import cfg
from k1d import K1d
from k2d import K2d, LDS_K2
from k3b import K3b, LDS_K3
from k23 import K23, LDS_K23
from k1w import K1w
from kall import KAll, LDS_ALL
KNAME = 'gated_mix__softmax_full_mha__linear_kernel_hedgehog__prompt_kernel'
HDR = open("gated_mix__softmax_full_mha__linear_kernel_hedgehog__prompt.s.ref").read().split("; Override launch geometry")[0]
def build(k1=None, k2=None, k3=None, k23=None, k1w=None):
    k1 = dict(cfg.K1, **(k1 or {}))
    s = HDR
    if k23 is not None:
        k23 = dict(cfg.K23, **k23)
        k1["code"] = ("qkv_kernel", "attn_kernel_last", 65536)
        k23["code"] = ("attn_kernel", "attn_kernel_last", 32768)
        s += "; Launch 1: QKV projections of both branches, gate, feature map of k with kv / z partial sums.\n"
        s += "; Launch 2: softmax attention, linear-attention read-out, then the output projection (flag hand-off between workgroups).\n"
        s += f"; @launch kernel=qkv_kernel grid=(256,1,1) block=({512 if k1w is not None else 256},1,1) lds=163840\n"
        s += f"; @launch kernel=attn_kernel grid=(256,1,1) block=(512,1,1) lds={LDS_K23}\n"
        s += '.amdgcn_target "amdgcn-amd-amdhsa--gfx950"\n.text\n'
        if k1w is not None:
            s += K1w("qkv_kernel", code=k1["code"], **dict(cfg.K1W, **k1w)).gen()
        else:
            s += K1d("qkv_kernel", **k1).gen()
        s += K23("attn_kernel", **k23).gen()
        return s
    k2 = dict(cfg.K2, **(k2 or {})); k3 = dict(cfg.K3, **(k3 or {}))
    k1["code"] = ("qkv_kernel", "outp_kernel_last", 65536)
    k2["code"] = ("attn_kernel", "attn_kernel_last", 16384)
    k3["code"] = ("outp_kernel", "outp_kernel_last", 16384)
    s += "; Launches: QKV projections (+ gate, branch-B feature map of k), attention / linear attention, output projection.\n"
    s += "; @launch kernel=qkv_kernel grid=(256,1,1) block=(256,1,1) lds=163840\n"
    s += f"; @launch kernel=attn_kernel grid=(256,1,1) block=(512,1,1) lds={LDS_K2}\n"
    s += f"; @launch kernel=outp_kernel grid=(256,1,1) block=(512,1,1) lds={LDS_K3}\n"
    s += '.amdgcn_target "amdgcn-amd-amdhsa--gfx950"\n.text\n'
    s += K1d("qkv_kernel", **k1).gen()
    s += K2d("attn_kernel", **k2).gen()
    s += K3b("outp_kernel", **k3).gen()
    return s
DESC = """;
"""
def build_one(k1=None, **kw):
    k = dict(cfg.K23, touch=True); k.update(kw)
    k["code"] = (KNAME, KNAME + "_last", 65536)
    s = HDR
    s += DESC
    s += f"; @launch grid=(256,1,1) block=(512,1,1) lds={LDS_ALL}\n"
    s += '.amdgcn_target "amdgcn-amd-amdhsa--gfx950"\n.text\n'
    s += KAll(KNAME, k1=dict(cfg.K1W, **(k1 or {})), **k).gen()
    return s
if __name__ == "__main__":
    open("../probe/two.s", "w").write(build(k23=dict(touch=True), k1w={}))
    open("../probe/one.s", "w").write(build_one())
    open("../probe/one_s8.s", "w").write(build_one(sleep=8))
```

```python
from asmlib import *
from layout import *
from prof import Prof
from dbgstamp import dbg_setup, dbg_stamp

MARGIN = 90.0
TPS, TPW = 8, 4
STG = TPS * 4096
LDS_MISC = 2 * STG
L_KV, L_Z, L_WP, L_VOTE, L_SPARE = 0, 4096, 6144, 8192, 8448
L_XO = LDS_MISC + 8448 + 1024
LDS_K2 = L_XO + 8 * 5120

V_LANE16, V_T0, V_T1, V_T2, V_T3, V_G, V_RD = 1, 2, 3, 4, 5, 6, 7
VQ, VC, VS, VP, VKF, VVF, VO, VL, VONE = 8, 24, 56, 88, 96, 112, 128, 160, 168
S_WS, S_K, S_V = 8, 12, 16
S_H, S_QB, S_WV, S_SOFF, S_CNT, S_MODE, S_WOFF, S_QG, S_KH = 20, 21, 22, 23, 24, 25, 26, 27, 32
S_KVP, S_PKV, S_PZ = 44, 48, 49
VKA, VPT, VQB, VGB, V_ZOFF = 176, 184, 224, 244, 246

class K2d(Prof):
    V_PROF = 250
    def __init__(self, name, prof=False, store_mod="nt", force_fallback=False, margin=MARGIN, sched=1, bapply=True, prio=0, diag=(), code=None, dbg=None, wsbase=0):
        self.name, self.prof, self.store_mod = name, prof, store_mod
        self.force_fallback, self.margin, self.sched, self.bapply, self.prio = force_fallback, margin, sched, bapply, prio
        self.diag = set(diag)
        self.code = code
        self.npb = 2
        self.hmod = ''
        self.wsbase = wsbase
        self.dbg = dbg

    def dma_piece(self, slot, i):
        kv, n = i >> 1, i & 1
        srd_ = S_K if kv == 0 else S_V
        ins = []
        if n == 0:
            ins += [f"s_add_u32 m0, s{S_WOFF}, {slot * STG + kv * (STG // 2)}", "s_nop 0"]
        ins.append(f"buffer_load_dwordx4 v{V_LANE16}, s[{srd_}:{srd_+3}], s{S_SOFF} offen offset:{n * 1024} {self.hmod} lds")
        if i == 3:
            ins.append(f"s_add_u32 s{S_SOFF}, s{S_SOFF}, {STG // 2}")
        return ins
    def dma_stage(self, slot):
        return [l for i in range(4) for l in self.dma_piece(slot, i)]

    @staticmethod
    def koff(j): return (j // TPW) * STG + (j % TPW) * 2048
    def rdK(self, j):
        b = VKF + 8 * (j & 1); j %= 2 * TPW
        return [f"ds_read_b128 {vr(b + 4 * st, 4)}, v{V_RD} offset:{self.koff(j) + st * 1024}" for st in range(2)]
    def rdV(self, j):
        b = VVF + 8 * (j & 1); j %= 2 * TPW
        return [f"ds_read_b128 {vr(b + 4 * st, 4)}, v{V_RD} offset:{self.koff(j) + STG // 2 + st * 1024}" for st in range(2)]

    def unit(self, a, j, qt):
        u = 2 * j + qt
        s, sn = VS + 16 * (u & 1), VS + 16 * ((u + 1) & 1)
        jn, qn = (j + (qt == 1), qt ^ 1)
        kn = VKF + 8 * (jn & 1)
        jp, qp = (j - (qt == 0), qt ^ 1)
        v, vp = VVF + 8 * (j & 1), VVF + 8 * (jp & 1)
        e = lambda r: f"v_exp_f32 v{s + r}, v{s + r}"
        c = lambda k: f"v_cvt_pk_bf16_f32 v{VP + k}, v{s + 2 * k}, v{s + 2 * k + 1}"
        O, Op, Lq, Lp = VO + 16 * qt, VO + 16 * qp, VL + 4 * qt, VL + 4 * qp
        Sa = f"v_mfma_f32_32x32x16_bf16 {vr(sn, 16)}, {vr(kn, 4)}, {vr(VQ + 8 * qn, 4)}, {vr(VC + 16 * qn, 16)}"
        Sb = f"v_mfma_f32_32x32x16_bf16 {vr(sn, 16)}, {vr(kn + 4, 4)}, {vr(VQ + 8 * qn + 4, 4)}, {vr(sn, 16)}"
        PVa = f"v_mfma_f32_32x32x16_bf16 {vr(O, 16)}, {vr(v, 4)}, {vr(VP, 4)}, {vr(O, 16)}"
        PVb = f"v_mfma_f32_32x32x16_bf16 {vr(Op, 16)}, {vr(vp + 4, 4)}, {vr(VP + 4, 4)}, {vr(Op, 16)}"
        La = f"v_mfma_f32_16x16x32_bf16 {vr(Lq, 4)}, {vr(VONE, 4)}, {vr(VP, 4)}, {vr(Lq, 4)}"
        Lb = f"v_mfma_f32_16x16x32_bf16 {vr(Lp, 4)}, {vr(VONE, 4)}, {vr(VP + 4, 4)}, {vr(Lp, 4)}"
        rd = self.rdK(j + 1) if qt == 0 else self.rdV(j + 1)
        top = ["s_waitcnt lgkmcnt(0)"]
        jj = j % TPW
        if jj == TPW - 1 and qt == 0:
            if hasattr(self, "switch_code"):
                top += self.switch_code(j)
            else:
                top += ["s_waitcnt vmcnt(0)", "s_barrier"]
                if self.bapply: top += self.part_add() + self.part_loads()
                if hasattr(self, "touch_lines"): top += self.touch_lines()
        if hasattr(self, "first_iter_issue") and j == 1 and qt == 0 and self.pass_idx == 1: top += self.first_iter_issue()
        k = (2 * jj + qt - 2 * (TPW - 1)) % (2 * TPW)
        dm = []
        if k < 4:
            dm = self.dma_piece((((j + 1) // TPW) + 1) & 1, k)
        if hasattr(self, "unit_hook"): dm = dm + self.unit_hook(j, qt)
        r0, r1 = rd[:1], rd[1:]
        if self.sched == 1:
            seq = (top + [e(0)] + r0 + [e(1)] + r1 + [e(2), e(3), Sa, c(0), c(1), e(4), e(5), Lb, e(6), e(7), c(2), c(3), Sb,
                   e(8)] + dm + [e(9), e(10), e(11), PVb, c(4), c(5), e(12), e(13), PVa, e(14), e(15), c(6), c(7), La])
        elif self.sched == 2:
            seq = (top + r0 + r1 + [e(0), e(1), e(2), e(3), Sa, c(0), c(1), e(4), e(5), Lb, e(6), e(7), c(2), c(3), Sb] + dm +
                   [e(8), e(9), e(10), e(11), PVb, c(4), c(5), e(12), e(13), PVa, e(14), e(15), c(6), c(7), La])
        elif self.sched == 3:
            seq = (top + r0 + r1 + [Sa, e(0), e(1), e(2), e(3), Lb, c(0), c(1), e(4), e(5), Sb, e(6), e(7), c(2), c(3), PVb] + dm +
                   [e(8), e(9), e(10), e(11), PVa, c(4), c(5), e(12), e(13), La, e(14), e(15), c(6), c(7)])
        elif self.sched == 4:
            seq = (top + [e(0), e(1)] + r0 + [e(2), e(3), Sa] + r1 + [c(0), c(1), e(4), e(5), e(6), e(7), Sb, c(2), c(3), Lb] + dm +
                   [e(8), e(9), e(10), e(11), PVb, c(4), c(5), e(12), e(13), PVa, e(14), e(15), c(6), c(7), La])
        D = self.diag
        if "nord" in D: seq = [l for l in seq if not l.startswith("ds_read")]
        if "noL" in D: seq = [l for l in seq if "16x16x32" not in l]
        for l in seq: a(l)

    def halfmax(self, a, x, t):
        a(f"v_mov_b32 v{t}, v{x}")
        a("s_nop 1")
        a(f"v_permlane32_swap_b32 v{x}, v{t}")
        a("s_nop 1")
        a(f"v_max_f32 v{x}, v{x}, v{t}")

    NT = 2
    def part_loads(self):
        kvp = f"s[{S_KVP}:{S_KVP+3}]"
        r = []
        for b in range(self.npb):
            r += [f"buffer_load_dwordx4 {vr(VPT + 8 * b, 4)}, v{V_LANE16}, {kvp}, s{S_PKV} offen {self.hmod}",
                  f"buffer_load_dwordx4 {vr(VPT + 8 * b + 4, 4)}, v{V_ZOFF}, {kvp}, s{S_PZ} offen {self.hmod}",
                  f"s_add_u32 s{S_PKV}, s{S_PKV}, {KVP_STRIDE}", f"s_add_u32 s{S_PZ}, s{S_PZ}, {KVP_STRIDE}"]
        return r
    def part_add(self):
        return [f"v_pk_add_f32 {vr(VKA + r, 2)}, {vr(VKA + r, 2)}, {vr(VPT + 8 * b + r, 2)}" for b in range(self.npb) for r in range(0, 8, 2)]
    def part_reset(self):
        return ([f"s_lshl_b32 s{S_PKV}, s{S_WV}, 10", f"s_and_b32 s{S_PZ}, s{S_WV}, 3", f"s_lshl_b32 s{S_PZ}, s{S_PZ}, 6",
                 f"s_add_u32 s{S_PZ}, s{S_PZ}, 8192"] + [f"v_mov_b32 v{VKA + r}, 0" for r in range(8)])

    def b_loads(self, a):
        ws = f"s[{S_WS}:{S_WS+3}]"
        a(f"s_lshl_b32 s6, s{S_QB}, 4")
        a(f"s_lshl_b32 s7, s{S_WV}, 1")
        a("s_add_u32 s6, s6, s7")
        a("s_lshl_b32 s7, s6, 10")
        a(f"s_lshl_b32 s3, s{S_H}, 17")
        a("s_add_u32 s7, s7, s3")
        a(f"s_add_u32 s7, s7, {WS_QB}")
        for t in range(self.NT):
            a(f"buffer_load_dwordx4 {vr(VQB + 4 * t, 4)}, v{V_LANE16}, {ws}, s7 offen offset:{t * 1024} {self.hmod}")
        a("s_lshl_b32 s7, s6, 6")
        a(f"s_add_u32 s7, s7, {WS_G}")
        a(f"v_and_b32 v{V_T0}, 15, v{V_T1}")
        a(f"v_lshlrev_b32 v{V_T0}, 2, v{V_T0}")
        for t in range(self.NT):
            a(f"buffer_load_dword v{VGB + t}, v{V_T0}, {ws}, s7 offen offset:{t * 64} {self.hmod}")
        a(f"s_lshl_b32 s6, s{S_H}, 11")
        a(f"s_lshl_b32 s7, s{S_WV}, 10")
        a("s_add_u32 s6, s6, s7")
        a(f"s_cmp_ge_u32 s{S_WV}, 2")
        a("s_cselect_b32 s6, 0x10000, s6")
        a(f"s_cselect_b32 s7, {L_SPARE - L_WP}, s7")
        a(f"s_add_u32 m0, s7, {LDS_MISC + L_WP}")
        a("s_nop 0")
        a(f"buffer_load_dwordx4 v{V_LANE16}, s[28:31], s6 offen lds")

    def b_publish(self, a):
        for k in range(4):
            a(f"v_cvt_pk_bf16_f32 v{VPT + k}, v{VKA + 2 * k}, v{VKA + 2 * k + 1}")
        a(f"v_and_b32 v{V_T1}, 63, v0")
        a(f"v_lshlrev_b32 v{V_T0}, 3, v{V_T1}")
        a(f"v_add_u32 v{V_T0}, {LDS_MISC}, v{V_T0}")
        a(f"s_lshl_b32 s6, s{S_WV}, 9")
        a(f"v_add_u32 v{V_T3}, s6, v{V_T0}")
        a(f"ds_write_b64 v{V_T3}, {vr(VPT, 2)} offset:{L_KV}")
        a(f"s_and_b32 s6, s{S_WV}, 3")
        a(f"s_lshl_b32 s6, s6, 9")
        a(f"v_add_u32 v{V_T3}, s6, v{V_T0}")
        a(f"ds_write_b64 v{V_T3}, {vr(VPT + 2, 2)} offset:{L_Z}")

    def b_apply(self, a):
        ws = f"s[{S_WS}:{S_WS+3}]"
        NT = self.NT
        a(f"v_and_b32 v{V_T1}, 63, v0")
        a(f"v_lshlrev_b32 v{V_T0}, 3, v{V_T1}")
        a(f"v_add_u32 v{V_T0}, {LDS_MISC}, v{V_T0}")
        for sg in range(2):
            for dt in range(2):
                for ft in range(2):
                    t = (sg * 2 + ft) * 2 + dt
                    a(f"ds_read_b64 {vr(24 + (sg * 2 + dt) * 4 + 2 * ft, 2)}, v{V_T0} offset:{L_KV + t * 512}")
            for ft in range(2):
                a(f"ds_read_b64 {vr(40 + sg * 4 + 2 * ft, 2)}, v{V_T0} offset:{L_Z + (sg * 2 + ft) * 512}")
        a(f"v_lshrrev_b32 v{V_T2}, 4, v{V_T1}")
        a(f"v_bfe_u32 v{V_T3}, v{V_T1}, 2, 2")
        a(f"v_lshl_add_u32 v{V_T2}, v{V_T2}, 2, v{V_T3}")
        a(f"v_lshlrev_b32 v{V_T2}, 6, v{V_T2}")
        a(f"v_and_b32 v{V_T3}, 3, v{V_T1}")
        a(f"v_lshl_add_u32 v{V_T2}, v{V_T3}, 3, v{V_T2}")
        a(f"v_add_u32 v{V_T2}, {LDS_MISC}, v{V_T2}")
        for ft in range(2):
            for q in range(2):
                a(f"ds_read_b64_tr_b16 {vr(48 + 4 * ft + 2 * q, 2)}, v{V_T2} offset:{L_WP + q * 1024 + ft * 32}")
        a(f"v_mov_b32 v56, 0x3f803f80")
        for r in range(1, 4): a(f"v_mov_b32 v{56 + r}, v56")
        a("s_waitcnt lgkmcnt(0)")
        for t in range(NT):
            for ft in range(2):
                a(f"v_mfma_f32_16x16x32_bf16 {vr(64 + 8 * t + 4 * ft, 4)}, {vr(48 + 4 * ft, 4)}, {vr(VQB + 4 * t, 4)}, 0")
        a("s_nop 7")
        P = lambda t, i: 64 + 8 * t + i
        MX, MN, TM = 96, 100, 104
        T = range(NT)
        for t in T:
            a(f"v_max3_f32 v{MX+2*t}, v{P(t,0)}, v{P(t,1)}, v{P(t,2)}")
            a(f"v_min3_f32 v{MN+2*t}, v{P(t,0)}, v{P(t,1)}, v{P(t,2)}")
        for i in (3, 5):
            for t in T:
                a(f"v_max3_f32 v{MX+2*t}, v{MX+2*t}, v{P(t,i)}, v{P(t,i+1)}")
                a(f"v_min3_f32 v{MN+2*t}, v{MN+2*t}, v{P(t,i)}, v{P(t,i+1)}")
        for t in T:
            a(f"v_max_f32 v{MX+2*t}, v{MX+2*t}, v{P(t,7)}")
            a(f"v_min_f32 v{MN+2*t}, v{MN+2*t}, v{P(t,7)}")
        for t in T: a(f"v_sub_f32 v{MN+2*t}, 0, v{MN+2*t}")
        a("s_nop 1")
        for t in T: a(f"v_permlane32_swap_b32 v{MX+2*t}, v{MN+2*t}")
        a("s_nop 1")
        for t in T: a(f"v_max_f32 v{MX+2*t}, v{MX+2*t}, v{MN+2*t}")
        for t in T: a(f"v_mov_b32 v{TM+2*t}, v{MX+2*t}")
        a("s_nop 1")
        for t in T: a(f"v_permlane16_swap_b32 v{MX+2*t}, v{TM+2*t}")
        a("s_nop 1")
        for t in T: a(f"v_max_f32 v{MX+2*t}, v{MX+2*t}, v{TM+2*t}")
        for t in T: a(f"v_mov_b32 v{MN+2*t}, v{MX+2*t}")
        a("s_nop 1")
        for t in T: a(f"v_permlane32_swap_b32 v{MX+2*t}, v{MN+2*t}")
        a("s_nop 1")
        EP = lambda t, i: 176 + 8 * t + i
        a(f"s_mov_b32 s36, {f32bits(LOG2E)}")
        a(f"s_mov_b32 s37, {f32bits(LOG2E)}")
        a(f"s_mov_b32 s38, {f32bits(-LOG2E)}")
        a(f"s_mov_b32 s39, {f32bits(-LOG2E)}")
        for t in T:
            a(f"v_mul_f32 v{MX+2*t}, s38, v{MX+2*t}")
            a(f"v_mul_f32 v{MN+2*t}, s38, v{MN+2*t}")
        for t in T:
            for i in range(0, 8, 2):
                a(f"v_pk_fma_f32 {vr(EP(t,i), 2)}, {vr(P(t,i), 2)}, s[36:37], {vr(MX+2*t, 2)} op_sel_hi:[1,1,0]")
                a(f"v_pk_fma_f32 {vr(P(t,i), 2)}, {vr(P(t,i), 2)}, s[38:39], {vr(MN+2*t, 2)} op_sel_hi:[1,1,0]")
        for t in T:
            for i in range(8):
                a(f"v_exp_f32 v{EP(t,i)}, v{EP(t,i)}")
                a(f"v_exp_f32 v{P(t,i)}, v{P(t,i)}")
        BP, BM = 96, 112
        if hasattr(self, "b_mid"): self.b_mid(a)
        a("s_nop 0")
        for t in T:
            for k in range(4):
                a(f"v_cvt_pk_bf16_f32 v{BP + 4*t + k}, v{EP(t,2*k)}, v{EP(t,2*k+1)}")
                a(f"v_cvt_pk_bf16_f32 v{BM + 4*t + k}, v{P(t,2*k)}, v{P(t,2*k+1)}")
        a("s_nop 1")
        for t in T:
            R = 176 + 32 * t
            bp, bm = vr(BP + 4 * t, 4), vr(BM + 4 * t, 4)
            for dt in range(2):
                a(f"v_mfma_f32_16x16x32_bf16 {vr(R + 4 * dt, 4)}, {vr(24 + 4 * dt, 4)}, {bp}, 0")
                a(f"v_mfma_f32_16x16x32_bf16 {vr(R + 8 + 4 * dt, 4)}, {vr(32 + 4 * dt, 4)}, {bm}, 0")
            a(f"v_mfma_f32_16x16x32_bf16 {vr(R + 16, 4)}, {vr(40, 4)}, {bp}, 0")
            a(f"v_mfma_f32_16x16x32_bf16 {vr(R + 20, 4)}, {vr(44, 4)}, {bm}, 0")
            a(f"v_mfma_f32_16x16x32_bf16 {vr(R + 24, 4)}, {vr(56, 4)}, {bp}, 0")
            a(f"v_mfma_f32_16x16x32_bf16 {vr(R + 28, 4)}, {vr(56, 4)}, {bm}, 0")
        a("s_nop 7")
        for t in T:
            R = 176 + 32 * t
            a(f"v_rcp_f32 v{R + 24}, v{R + 24}")
            a(f"v_rcp_f32 v{R + 28}, v{R + 28}")
        a("s_nop 0")
        for t in T:
            R = 176 + 32 * t
            a(f"v_mul_f32 v{R + 16}, v{R + 16}, v{R + 24}")
            a(f"v_sub_f32 v{R + 17}, 1.0, v{VGB + t}")
            a(f"v_fma_f32 v{R + 16}, v{R + 20}, v{R + 28}, v{R + 16}")
            a(f"v_add_f32 v{R + 16}, {f32bits(1e-6)}, v{R + 16}")
        for t in T:
            a(f"v_rcp_f32 v{176 + 32 * t + 16}, v{176 + 32 * t + 16}")
        a("s_nop 0")
        for t in T:
            R = 176 + 32 * t
            a(f"v_mul_f32 v{R + 16}, v{R + 16}, v{R + 17}")
            a(f"v_mul_f32 v{R + 24}, v{R + 24}, v{R + 16}")
            a(f"v_mul_f32 v{R + 28}, v{R + 28}, v{R + 16}")
        for t in T:
            R = 176 + 32 * t
            for i in range(8): a(f"v_mul_f32 v{R + i}, v{R + i}, v{R + 24}")
            for i in range(8): a(f"v_fma_f32 v{R + i}, v{R + 8 + i}, v{R + 28}, v{R + i}")
        for t in T:
            R = 176 + 32 * t
            for k in range(4):
                a(f"v_cvt_pk_bf16_f32 v{R + 20 + k}, v{R + 2 * k}, v{R + 2 * k + 1}")
            a(f"s_lshl_b32 s6, s{S_QB}, 4")
            a(f"s_lshl_b32 s7, s{S_WV}, 1")
            a("s_add_u32 s6, s6, s7")
            a(f"s_add_u32 s6, s6, {t}")
            a("s_lshl_b32 s6, s6, 10")
            a(f"s_lshl_b32 s7, s{S_H}, 17")
            a("s_add_u32 s6, s6, s7")
            a(f"s_add_u32 s6, s6, {WS_O + 32 * 131072}")
            a(f"buffer_store_dwordx4 {vr(R + 20, 4)}, v{V_LANE16}, {ws}, s6 offen {self.store_mod}")

    def gen(self):
        a = Asm()
        n = self.name
        a("s_cmp_ge_u32 s2, 256")
        a(f"s_cbranch_scc1 {n}_end")
        self.pstamp(a, 0)
        self.body(a, True)
        a.label(f"{n}_end")
        a("s_endpgm")
        a.label(f"{n}_last")
        return kernel_header(n) + a.text() + kernel_desc(n, 256, 256)

    def body(self, a, standalone):
        self.setup(a, standalone)
        self.rest(a)

    def setup(self, a, standalone):
        n = self.name
        ws = f"s[{S_WS}:{S_WS+3}]"
        a("s_load_dwordx2 s[4:5], s[0:1], 80")
        a("s_load_dwordx2 s[34:35], s[0:1], 40")
        if hasattr(self, "entry_extra"): self.entry_extra(a)
        if self.code and standalone:
            first, last, nbytes = self.code
            code_prefetch(a, n, first, last, 8, 240, 242, 90)(-(-nbytes // 32768))
        a("s_and_b32 s3, s2, 7")
        a("s_lshr_b32 s6, s2, 3")
        a(f"s_lshl_b32 s{S_H}, s3, 2")
        a("s_lshr_b32 s7, s6, 3")
        a(f"s_add_u32 s{S_H}, s{S_H}, s7")
        a(f"s_and_b32 s{S_QB}, s6, 7")
        a("v_lshrrev_b32 v2, 6, v0")
        a(f"v_and_b32 v{V_T1}, 63, v0")
        a(f"v_lshlrev_b32 v{V_LANE16}, 4, v{V_T1}")
        a(f"v_readfirstlane_b32 s{S_WV}, v2")
        a("s_waitcnt lgkmcnt(0)")
        ws_shift(a, 4, self.wsbase)
        srd(a, S_WS, 4, 0x10000000 - self.wsbase)
        srd(a, 28, 34, 65536)
        a(f"s_lshl_b32 s3, s{S_H}, 17")
        for S, off in ((S_K, WS_KA), (S_V, WS_VA)):
            a(f"s_add_u32 s6, s3, {off}")
            a(f"s_add_u32 s{S}, s4, s6")
            a(f"s_addc_u32 s{S+1}, s5, 0")
            a(f"s_and_b32 s{S+1}, s{S+1}, 0xffff")
            a(f"s_mov_b32 s{S+2}, 131072")
            a(f"s_mov_b32 s{S+3}, 0x00020000")
        a(f"s_lshl_b32 s{S_WOFF}, s{S_WV}, 11")
        a(f"s_and_b32 s{S_QG}, s{S_WV}, 3")
        a(f"s_lshr_b32 s{S_KH}, s{S_WV}, 2")
        a(f"s_lshl_b32 s6, s{S_KH}, 13")
        a(f"v_add_u32 v{V_RD}, s6, v{V_LANE16}")
        a(f"s_lshl_b32 s6, s{S_QB}, 3")
        a(f"s_lshl_b32 s7, s{S_QG}, 1")
        a("s_add_u32 s6, s6, s7")
        a("s_lshl_b32 s7, s6, 11")
        a(f"s_lshl_b32 s3, s{S_H}, 17")
        a("s_add_u32 s7, s7, s3")
        a(f"s_add_u32 s7, s7, {WS_QA}")
        a(f"s_mov_b32 s{S_MODE}, 0")
        a(f"s_mov_b32 s{S_SOFF}, s{S_WOFF}")

    def rest(self, a):
        n = self.name
        ws = f"s[{S_WS}:{S_WS+3}]"
        if hasattr(self, "pre_loads"): self.pre_loads(a)
        for l in self.dma_piece(0, 0) + self.dma_piece(0, 1): a(l)
        for i in range(4):
            a(f"buffer_load_dwordx4 {vr(VQ + 4 * i, 4)}, v{V_LANE16}, {ws}, s7 offen offset:{i * 1024} {self.hmod}")
        for l in self.dma_piece(0, 2) + self.dma_piece(0, 3): a(l)
        a(f"s_add_u32 s6, s6, s{S_KH}")
        a("s_lshl_b32 s7, s6, 7")
        a(f"s_add_u32 s7, s7, {WS_G}")
        a(f"v_and_b32 v{V_T0}, 31, v{V_T1}")
        a(f"v_lshlrev_b32 v{V_T0}, 2, v{V_T0}")
        a(f"buffer_load_dword v{V_G}, v{V_T0}, {ws}, s7 offen {self.hmod}")
        nbg = 1
        if self.bapply:
            a(f"s_lshl_b32 s6, s{S_H}, 18")
            a(f"s_add_u32 s6, s6, {WS_KVP}")
            a(f"s_add_u32 s{S_KVP}, s4, s6")
            a(f"s_addc_u32 s{S_KVP+1}, s5, 0")
            a(f"s_and_b32 s{S_KVP+1}, s{S_KVP+1}, 0xffff")
            a(f"s_mov_b32 s{S_KVP+2}, {NKVP * KVP_STRIDE}")
            a(f"s_mov_b32 s{S_KVP+3}, 0x00020000")
            a(f"v_lshrrev_b32 v{V_ZOFF}, 4, v{V_T1}")
            a(f"v_lshlrev_b32 v{V_ZOFF}, 4, v{V_ZOFF}")
            for l in self.part_reset(): a(l)
            if not hasattr(self, "deferred_stores"):
                for r in range(8 * self.npb): a(f"v_mov_b32 v{VPT + r}, 0")
        self.nbg = nbg
        self.pstamp(a, 1)
        a(f"v_lshrrev_b32 v{V_T0}, 4, v{V_T1}")
        a(f"v_lshrrev_b32 v{V_T2}, 2, v{V_T1}")
        a(f"v_xor_b32 v{V_T0}, v{V_T0}, v{V_T2}")
        a(f"v_and_b32 v{V_T0}, 1, v{V_T0}")
        a(f"v_mov_b32 v{V_T2}, 0x3f803f80")
        a(f"v_cmp_eq_u32 vcc, 0, v{V_T0}")
        a("s_nop 1")
        a(f"v_cndmask_b32 v{VONE}, 0, v{V_T2}, vcc")
        for r in range(1, 4): a(f"v_mov_b32 v{VONE + r}, v{VONE}")
        if hasattr(self, "early_setup"): self.early_setup(a)
        if hasattr(self, "first_wait"): self.first_wait(a)
        else: a(f"s_waitcnt vmcnt({self.nbg})")
        a(f"s_branch {n}_first")
        a.label(f"{n}_restart")
        a(f"s_mov_b32 s{S_SOFF}, s{S_WOFF}")
        for l in self.dma_stage(0): a(l)
        if self.bapply:
            for l in self.part_reset(): a(l)
            for r in range(8 * self.npb): a(f"v_mov_b32 v{VPT + r}, 0")
        a("s_waitcnt vmcnt(0)")
        a.label(f"{n}_first")
        for r in range(32): a(f"v_mov_b32 v{VO + r}, 0")
        for r in range(8): a(f"v_mov_b32 v{VL + r}, 0")
        for r in range(8): a(f"v_mov_b32 v{VP + r}, 0")
        for r in range(4): a(f"v_mov_b32 v{VVF + 8 + 4 + r}, 0")
        a("s_barrier")
        self.pstamp(a, 2)
        for l in self.dma_piece(1, 0) + self.dma_piece(1, 1): a(l)
        if hasattr(self, "deferred_stores"): self.deferred_stores(a)
        if self.bapply and not hasattr(self, "switch_code"):
            a(f"s_cmp_lg_u32 s{S_MODE}, 0")
            a(f"s_cbranch_scc1 {n}_nobl")
            self.b_loads(a)
            a.label(f"{n}_nobl")
        a(f"s_cmp_lg_u32 s{S_MODE}, 0")
        a(f"s_cbranch_scc1 {n}_havemax")
        a(f"ds_read_b128 {vr(VKF, 4)}, v{V_LANE16}")
        a(f"ds_read_b128 {vr(VKF + 4, 4)}, v{V_LANE16} offset:1024")
        a("s_waitcnt lgkmcnt(0)")
        for qt in range(2):
            s = VS + 16 * qt
            a(f"v_mfma_f32_32x32x16_bf16 {vr(s, 16)}, {vr(VKF, 4)}, {vr(VQ + 8 * qt, 4)}, 0")
            a(f"v_mfma_f32_32x32x16_bf16 {vr(s, 16)}, {vr(VKF + 4, 4)}, {vr(VQ + 8 * qt + 4, 4)}, {vr(s, 16)}")
        a("s_nop 15")
        for qt in range(2):
            s, x = VS + 16 * qt, V_T0 + 2 * qt
            a(f"v_max3_f32 v{x}, v{s}, v{s + 1}, v{s + 2}")
            for r in range(3, 15, 2):
                a(f"v_max3_f32 v{x}, v{x}, v{s + r}, v{s + r + 1}")
            a(f"v_max_f32 v{x}, v{x}, v{s + 15}")
        for qt in range(2):
            x = V_T0 + 2 * qt
            self.halfmax(a, x, V_T3)
            a(f"v_add_f32 v{x}, {f32bits(self.margin)}, v{x}")
            a(f"v_sub_f32 v{VC + 16 * qt}, 0, v{x}")
            for r in range(1, 16): a(f"v_mov_b32 v{VC + 16 * qt + r}, v{VC + 16 * qt}")
        a.label(f"{n}_havemax")
        for l in self.rdK(0) + self.rdV(0): a(l)
        a("s_waitcnt lgkmcnt(0)")
        a(f"v_mfma_f32_32x32x16_bf16 {vr(VS, 16)}, {vr(VKF, 4)}, {vr(VQ, 4)}, {vr(VC, 16)}")
        a(f"v_mfma_f32_32x32x16_bf16 {vr(VS, 16)}, {vr(VKF + 4, 4)}, {vr(VQ + 4, 4)}, {vr(VS, 16)}")
        a("s_nop 7")
        a(f"s_mov_b32 s{S_CNT}, {32 // (2 * TPW)}")
        if self.prio:
            a(f"s_cmp_ge_u32 s{S_WV}, 4")
            a(f"s_cbranch_scc0 {n}_noprio")
            a("s_setprio 1")
            a.label(f"{n}_noprio")
        self.pstamp(a, 3)
        a("s_nop 3")
        npeel = getattr(self, "peel", 0)
        for p in range(npeel):
            self.pass_idx = p
            for j in range(2 * TPW):
                for qt in range(2):
                    self.unit(a, j, qt)
        if npeel:
            self.pass_idx = None
            a(f"s_mov_b32 s{S_CNT}, {32 // (2 * TPW) - npeel}")
        a(".p2align 6")
        a.label(f"{n}_loop")
        for j in range(2 * TPW):
            for qt in range(2):
                self.unit(a, j, qt)
        a(f"s_sub_u32 s{S_CNT}, s{S_CNT}, 1")
        a(f"s_cmp_lg_u32 s{S_CNT}, 0")
        a(f"s_cbranch_scc1 {n}_loop")
        a("s_nop 1")
        a(f"v_mfma_f32_32x32x16_bf16 {vr(VO + 16, 16)}, {vr(VVF + 8 + 4, 4)}, {vr(VP + 4, 4)}, {vr(VO + 16, 16)}")
        a(f"v_mfma_f32_16x16x32_bf16 {vr(VL + 4, 4)}, {vr(VONE, 4)}, {vr(VP + 4, 4)}, {vr(VL + 4, 4)}")
        if self.prio: a("s_setprio 0")
        self.pstamp(a, 4)
        a("s_waitcnt vmcnt(0) lgkmcnt(0)")
        if self.bapply:
            for l in self.part_add(): a(l)
        a("s_nop 15")
        a(f"s_mov_b32 s3, 0")
        if not self.diag:
            a(f"v_mul_f32 v{V_T0}, {f32bits(256.0)}, v{VL}")
            a(f"v_mul_f32 v{V_T2}, {f32bits(256.0)}, v{VL + 4}")
            a(f"v_mul_f32 v{V_T0}, 0, v{V_T0}")
            a(f"v_fma_f32 v{V_T0}, v{V_T2}, 0, v{V_T0}")
            for r in range(32): a(f"v_fma_f32 v{V_T0}, v{VO + r}, 0, v{V_T0}")
            if self.force_fallback:
                a(f"v_mov_b32 v{V_T0}, 0x7fc00000")
            a(f"v_cmp_u_f32 vcc, v{V_T0}, v{V_T0}")
            a(f"s_or_b32 s3, vcc_lo, vcc_hi")
            a(f"s_cmp_lg_u32 s3, 0")
            a(f"s_cselect_b32 s3, 1, 0")
        a(f"v_mov_b32 v{V_T0}, s3")
        a(f"s_lshl_b32 s6, s{S_WV}, 2")
        a(f"s_add_u32 s6, s6, {LDS_MISC + L_VOTE}")
        a(f"v_mov_b32 v{V_T2}, s6")
        a(f"ds_write_b32 v{V_T2}, v{V_T0}")
        a(f"s_mul_i32 s6, s{S_WV}, {5 * 1024}")
        a(f"s_add_u32 s6, s6, {L_XO}")
        a(f"v_add_u32 v{V_T2}, s6, v{V_LANE16}")
        a(f"s_cmp_eq_u32 s{S_KH}, 0")
        a(f"s_cbranch_scc1 {n}_give1")
        for qt, lab in ((0, ""), (1, f"{n}_give1")):
            if lab: a.label(lab)
            for k in range(4):
                a(f"ds_write_b128 v{V_T2}, {vr(VO + 16 * qt + 4 * k, 4)} offset:{k * 1024}")
            a(f"ds_write_b128 v{V_T2}, {vr(VL + 4 * qt, 4)} offset:4096")
            if qt == 0: a(f"s_branch {n}_gave")
        a.label(f"{n}_gave")
        if self.bapply: self.b_publish(a)
        a("s_waitcnt lgkmcnt(0)")
        a("s_barrier")
        a(f"v_mov_b32 v{V_T0}, {LDS_MISC + L_VOTE}")
        a(f"ds_read_b128 v[216:219], v{V_T0}")
        a(f"ds_read_b128 v[220:223], v{V_T0} offset:16")
        a(f"s_xor_b32 s6, s{S_WV}, 4")
        a(f"s_mul_i32 s6, s6, {5 * 1024}")
        a(f"s_add_u32 s6, s6, {L_XO}")
        a(f"v_add_u32 v{V_T2}, s6, v{V_LANE16}")
        for k in range(4):
            a(f"ds_read_b128 {vr(VS + 4 * k, 4)}, v{V_T2} offset:{k * 1024}")
        a(f"ds_read_b128 {vr(VS + 16, 4)}, v{V_T2} offset:4096")
        a("s_waitcnt lgkmcnt(5)")
        a("v_or3_b32 v216, v216, v217, v218")
        a("v_or3_b32 v216, v216, v219, v220")
        a("v_or3_b32 v216, v216, v221, v222")
        a("v_or_b32 v216, v216, v223")
        a("s_nop 0")
        a("v_readfirstlane_b32 s3, v216")
        a(f"s_sub_u32 s6, 1, s{S_MODE}")
        a("s_and_b32 s3, s3, s6")
        a("s_cmp_eq_u32 s3, 0")
        a(f"s_cbranch_scc1 {n}_fin")
        a("s_waitcnt lgkmcnt(0)")
        a("s_barrier")
        a(f"s_mov_b32 s{S_SOFF}, s{S_WOFF}")
        a(f"s_mov_b32 s{S_CNT}, {64 // TPS}")
        a(f"v_mov_b32 v{V_T0}, 0xff800000")
        a(f"v_mov_b32 v{V_T2}, 0xff800000")
        a.label(f"{n}_maxloop")
        for l in self.dma_stage(0): a(l)
        a("s_waitcnt vmcnt(0)")
        a("s_barrier")
        for j in range(TPS):
            a(f"ds_read_b128 {vr(VKF, 4)}, v{V_LANE16} offset:{j * 2048}")
            a(f"ds_read_b128 {vr(VKF + 4, 4)}, v{V_LANE16} offset:{j * 2048 + 1024}")
            a("s_waitcnt lgkmcnt(0)")
            for qt in range(2):
                s = VS + 16 * qt
                a(f"v_mfma_f32_32x32x16_bf16 {vr(s, 16)}, {vr(VKF, 4)}, {vr(VQ + 8 * qt, 4)}, 0")
                a(f"v_mfma_f32_32x32x16_bf16 {vr(s, 16)}, {vr(VKF + 4, 4)}, {vr(VQ + 8 * qt + 4, 4)}, {vr(s, 16)}")
            a("s_nop 15")
            for qt in range(2):
                s, x = VS + 16 * qt, V_T0 + 2 * qt
                for r in range(0, 16, 2):
                    a(f"v_max3_f32 v{x}, v{x}, v{s + r}, v{s + r + 1}")
        a("s_barrier")
        a(f"s_sub_u32 s{S_CNT}, s{S_CNT}, 1")
        a(f"s_cmp_lg_u32 s{S_CNT}, 0")
        a(f"s_cbranch_scc1 {n}_maxloop")
        for qt in range(2):
            x = V_T0 + 2 * qt
            self.halfmax(a, x, V_T3)
            a(f"v_sub_f32 v{VC + 16 * qt}, 0, v{x}")
            for r in range(1, 16): a(f"v_mov_b32 v{VC + 16 * qt + r}, v{VC + 16 * qt}")
        a(f"s_mov_b32 s{S_MODE}, 1")
        a(f"s_branch {n}_restart")
        a.label(f"{n}_fin")
        if hasattr(self, "after_decision"): self.after_decision(a)
        a(f"s_cmp_eq_u32 s{S_KH}, 0")
        a(f"s_cbranch_scc1 {n}_keep0")
        for r in range(16): a(f"v_mov_b32 v{VO + r}, v{VO + 16 + r}")
        a(f"v_mov_b32 v{VL}, v{VL + 4}")
        a.label(f"{n}_keep0")
        a(f"v_and_b32 v{V_T1}, 63, v0")
        a(f"v_bfe_u32 v{V_T0}, v{V_T1}, 4, 1")
        a(f"v_lshlrev_b32 v{V_T0}, 10, v{V_T0}")
        a(f"v_lshrrev_b32 v{V_T2}, 5, v{V_T1}")
        a(f"v_lshl_add_u32 v{V_T0}, v{V_T2}, 8, v{V_T0}")
        a(f"v_and_b32 v{V_T2}, 15, v{V_T1}")
        a(f"v_lshl_add_u32 v{V_T0}, v{V_T2}, 4, v{V_T0}")
        a("s_waitcnt lgkmcnt(0)")
        a(f"v_add_f32 v{VL}, v{VL}, v{VS + 16}")
        a(f"v_rcp_f32 v{V_T2}, v{VL}")
        for r in range(16): a(f"v_add_f32 v{VO + r}, v{VO + r}, v{VS + r}")
        a(f"v_mul_f32 v{V_T2}, v{V_T2}, v{V_G}")
        for r in range(16): a(f"v_mul_f32 v{VO + r}, v{V_T2}, v{VO + r}")
        for k in range(8): a(f"v_cvt_pk_bf16_f32 v{VS + k}, v{VO + 2 * k}, v{VO + 2 * k + 1}")
        a(f"s_lshl_b32 s6, s{S_QB}, 3")
        a(f"s_lshl_b32 s7, s{S_QG}, 1")
        a("s_add_u32 s6, s6, s7")
        a(f"s_add_u32 s6, s6, s{S_KH}")
        a("s_lshl_b32 s6, s6, 11")
        a(f"s_lshl_b32 s7, s{S_H}, 17")
        a("s_add_u32 s6, s6, s7")
        a(f"s_add_u32 s6, s6, {WS_O}")
        a(f"buffer_store_dwordx4 {vr(VS, 4)}, v{V_T0}, {ws}, s6 offen {self.store_mod}")
        a(f"buffer_store_dwordx4 {vr(VS + 4, 4)}, v{V_T0}, {ws}, s6 offen offset:512 {self.store_mod}")
        self.pstamp(a, 5)
        if self.bapply:
            self.b_apply(a)
        last = 6
        if hasattr(self, "project"):
            self.project(a); last = 9
        if self.prof:
            a("s_waitcnt vmcnt(0)")
            self.pstamp(a, last)
            self.pflush(a, 1, 8, S_WV, ws)
```

```python
from asmlib import *
from layout import *
import k1w, k2d, k23
from k1w import K1w
from k23 import K23, SPIN_LIMIT
from prof import Prof

F1, F2 = WS_FLAG + (32 << 10), WS_FLAG + (36 << 10)
S_DBG1 = 84
S_OWN, S_DEF = 95, 50
LDS_ALL = 163840

class Phase1(K1w):
    STAMP = {2: 1, 3: 2, 5: 3}
    def pstamp(self, a, idx, vreg=None):
        if idx in self.STAMP: Prof.pstamp(self, a, self.STAMP[idx], vreg)
    def clear_flags(self, a):
        n = self.name
        ws = f"s[{k1w.S_WS}:{k1w.S_WS+3}]"
        a("s_load_dwordx2 s[96:97], s[0:1], 72") if not self.prof else a("s_load_dwordx2 s[100:101], s[0:1], 72")
        a(f"s_cmp_lg_u32 s{k1w.S_WV}, 4")
        a(f"s_cbranch_scc1 {n}_noflag")
        a("s_and_b32 s3, s2, 7")
        a("s_lshr_b32 s4, s2, 3")
        a("s_lshl_b32 s3, s3, 2")
        a("s_lshr_b32 s5, s4, 3")
        a("s_add_u32 s3, s3, s5")
        a("s_and_b32 s4, s4, 7")
        a("s_lshl_b32 s4, s4, 12")
        a("s_lshl_b32 s3, s3, 2")
        a("s_add_u32 s3, s3, s4")
        a(f"s_add_u32 s3, s3, {WS_FLAG}")
        a(f"s_lshl_b32 s4, s{k1w.S_HP}, 7")
        a(f"s_lshl_b32 s5, s{k1w.S_MT}, 2")
        a("s_add_u32 s4, s4, s5")
        a(f"s_add_u32 s5, s4, {F1}")
        a(f"s_add_u32 s4, s4, {F2}")
        a("v_mov_b32 v20, s3")
        a("v_writelane_b32 v20, s5, 1")
        a("v_writelane_b32 v20, s4, 2")
        a("s_add_u32 s3, s3, 128")
        a("v_writelane_b32 v20, s3, 3")
        a("v_mov_b32 v21, 0")
        a("s_mov_b64 exec, 15")
        a(f"buffer_store_dword v21, v20, {ws}, 0 offen sc1")
        a("s_mov_b64 exec, -1")
        a.label(f"{n}_noflag")
    def unit_extra(self, u):
        n = self.name
        p = 100 if self.prof else 96
        dsc = [f"s_mov_b32 s{S_DBG1}, s{p}", f"s_and_b32 s{S_DBG1+1}, s{p+1}, 0xffff", f"s_mov_b32 s{S_DBG1+2}, 256", f"s_mov_b32 s{S_DBG1+3}, 0x00020000"]
        if u == 11:
            return ["s_waitcnt vmcnt(0)"]
        if u == 12:
            return ([f"s_cmp_lg_u32 s{k1w.S_WV}, 4", f"s_cbranch_scc1 {n}_nocnt", "s_waitcnt lgkmcnt(0)"] + dsc +
                    ["s_and_b32 s3, s2, 7", "s_lshl_b32 s3, s3, 5", "s_mov_b64 exec, 1", "v_mov_b32 v20, s3", "v_mov_b32 v21, 1",
                     f"buffer_atomic_add v21, v20, s[{S_DBG1}:{S_DBG1+3}], 0 offen", "s_mov_b64 exec, -1", f"{n}_nocnt:"])
        if u == 26:
            return ([f"s_cmp_lg_u32 s{k1w.S_WV}, 5", f"s_cbranch_scc1 {n}_nochk", "s_waitcnt lgkmcnt(0)"] + dsc +
                    ["s_mov_b64 exec, 0xff", "v_and_b32 v20, 7, v0", "v_lshlrev_b32 v20, 5, v20", f"s_mov_b32 s3, {SPIN_LIMIT}",
                     f"{n}_clr:", f"buffer_load_dword v21, v20, s[{S_DBG1}:{S_DBG1+3}], 0 offen sc1", "s_waitcnt vmcnt(0)",
                     "v_cmp_le_u32 vcc, 32, v21", "s_sub_u32 s3, s3, 1", "s_cmp_eq_u32 s3, 0", f"s_cbranch_scc1 {n}_clrdone",
                     "s_cmp_eq_u64 vcc, exec", f"s_cbranch_scc1 {n}_clrdone", "s_sleep 2", f"s_branch {n}_clr",
                     f"{n}_clrdone:", "s_mov_b64 exec, -1", f"{n}_nochk:"])
        return []
    def keep_owner(self, a):
        a(f"s_lshl_b32 s{S_OWN}, s{k1w.S_HP}, 7")
        a(f"s_lshl_b32 s3, s{k1w.S_MT}, 2")
        a(f"s_add_u32 s{S_OWN}, s{S_OWN}, s3")
    def before_drain_A(self, a):
        self.keep_owner(a)
        self.owner.setup(a, False)
    def after_E2_B(self, a):
        self.keep_owner(a)
        self.owner.setup(a, False)
    def after_E2_A(self, a):
        n = self.name
        a(f"s_cmp_lg_u32 s{k1w.S_WV}, 0")
        a(f"s_cbranch_scc1 {n}_nof1")
        a(f"s_add_u32 s3, s{S_OWN}, {F1}")
        a("s_mov_b64 exec, 1")
        a("v_mov_b32 v20, 0")
        a("v_mov_b32 v21, 1")
        a(f"buffer_store_dword v21, v20, s[{k2d.S_WS}:{k2d.S_WS+3}], s3 offen sc1")
        a("s_mov_b64 exec, -1")
        a.label(f"{n}_nof1")

class KAll(K23):
    STAMP = {1: 5, 2: 6, 3: 7, 4: 8, 5: 9, 6: 10, 7: 11, 8: 12, 9: 13}
    def __init__(self, name, k1=None, hmod="sc1", acquire=False, **kw):
        super().__init__(name, **kw)
        self.hmod, self.acquire = hmod, acquire
        self.p1 = Phase1(name + "_p1", prof=self.prof, **(k1 or {}))
        self.peel, self.pass_idx = 2, None
        self.p1.owner = self
        self.p1.defer = True
        self.npb = 3
    def pstamp(self, a, idx, vreg=None):
        if idx == 0: Prof.pstamp(self, a, 0, vreg)
        elif idx in self.STAMP: Prof.pstamp(self, a, self.STAMP[idx], vreg)

    def spin(self, a, tag, load, check):
        n = self.name
        a(f"s_mov_b32 s36, {SPIN_LIMIT}")
        a.label(f"{n}_{tag}")
        for l in load: a(l)
        a("s_waitcnt vmcnt(0)")
        for l in check: a(l)
        a("s_sub_u32 s36, s36, 1")
        a("s_cmp_eq_u32 s36, 0")
        a(f"s_cbranch_scc1 {n}_{tag}_done")
        a("s_cmp_eq_u64 vcc, exec")
        a(f"s_cbranch_scc1 {n}_{tag}_done")
        a(f"s_sleep {self.sleep}")
        a(f"s_branch {n}_{tag}")
        a.label(f"{n}_{tag}_done")

    def line_of_pair(self, base):
        return [f"s_lshr_b32 s37, s{k2d.S_H}, 1", "s_lshl_b32 s37, s37, 7", f"s_add_u32 s37, s37, {base}"]

    def poll_pair(self, a, base, tag):
        ws = f"s[{k2d.S_WS}:{k2d.S_WS+3}]"
        for l in self.line_of_pair(base): a(l)
        a("s_mov_b64 exec, 0xffff")
        a("v_and_b32 v216, 15, v0")
        a("v_lshlrev_b32 v216, 2, v216")
        self.spin(a, tag, [f"buffer_load_dword v217, v216, {ws}, s37 offen sc1"], ["v_cmp_eq_u32 vcc, 1, v217"])
        a("s_mov_b64 exec, -1")

    def pre_loads(self, a):
        n = self.name
        a(f"s_cmp_lg_u32 s{k2d.S_WV}, 0")
        a(f"s_cbranch_scc1 {n}_w1")
        self.poll_pair(a, F1, "f1")
        if self.acquire:
            a("buffer_inv sc1")
            a("s_waitcnt vmcnt(0)")
        a.label(f"{n}_w1")
        a("s_barrier")
        Prof.pstamp(self, a, 4)

    def deferred_list(self):
        ws, sm = f"s[{k2d.S_WS}:{k2d.S_WS+3}]", self.store_mod
        r = [f"buffer_store_dwordx4 {vr(224 + 4 * tk, 4)}, v{k2d.V_LANE16}, {ws}, s92 offen offset:{tk * 1024} {sm}" for tk in range(4)]
        for ft in range(2):
            for dt in range(2):
                r.append(f"buffer_store_dwordx4 {vr(192 + (ft * 3 + dt) * 4, 4)}, v{k2d.V_LANE16}, {ws}, s93 offen offset:{(ft * 2 + dt) * 1024} {sm}")
            r.append(f"buffer_store_dwordx4 {vr(192 + (ft * 3 + 2) * 4, 4)}, v{k2d.V_ZOFF}, {ws}, s94 offen offset:{ft * 64} {sm}")
        return r

    def deferred_stores(self, a):
        a(f"s_lshr_b32 s{S_DEF}, s{k2d.S_WV}, 2")
        a(f"s_cmp_lg_u32 s{k2d.S_MODE}, 0")
        a(f"s_cselect_b32 s{S_DEF}, 0, s{S_DEF}")

    def unit_hook(self, j, qt):
        u = 2 * j + qt
        if u >= 5 or self.pass_idx != 0: return []
        n = self.name
        return [f"s_cmp_eq_u32 s{S_DEF}, 0", f"s_cbranch_scc1 {n}_ds{u}"] + self.deferred_list()[2 * u:2 * u + 2] + [f"{n}_ds{u}:"]

    def first_wait(self, a):
        a("s_waitcnt vmcnt(1)")

    def raise_f2(self):
        n = self.name
        return [f"s_add_u32 s36, s{S_OWN}, {F2}", "s_mov_b64 exec, 1", "v_mov_b32 v216, 0", "v_mov_b32 v217, 1",
                f"buffer_store_dword v217, v216, s[{k2d.S_WS}:{k2d.S_WS+3}], s36 offen sc1", "s_mov_b64 exec, -1"]

    def switch_code(self, j):
        n = self.name
        first = j == k2d.TPW - 1
        if self.pass_idx == 0 and first:
            return [f"s_cmp_eq_u32 s{S_DEF}, 0", f"s_cbranch_scc1 {n}_sw1a", "s_waitcnt vmcnt(8)", f"s_branch {n}_sw1b",
                    f"{n}_sw1a:", "s_waitcnt vmcnt(0)", f"{n}_sw1b:", "s_barrier"] + self.touch_lines()
        if self.pass_idx == 0:
            return ["s_waitcnt vmcnt(0)", "s_barrier"] + self.wave0_only("r2", self.raise_f2()) + self.touch_lines()
        if self.pass_idx == 1 and first:
            return ["s_waitcnt vmcnt(0)"] + self.first_iter_pre() + ["s_barrier"] + self.first_iter_post() + self.part_loads() + self.touch_lines()
        return ["s_waitcnt vmcnt(0)", "s_barrier"] + self.part_add() + self.part_loads() + self.touch_lines()

    def wave0_only(self, tag, lines):
        n = self.name
        return [f"s_cmp_lg_u32 s{k2d.S_WV}, 0", f"s_cbranch_scc1 {n}_{tag}"] + lines + [f"{n}_{tag}:"]
    def first_only(self, tag, wave0, lines):
        return self.wave0_only(tag, lines) if wave0 else lines
    def first_iter_issue(self):
        ws = f"s[{k2d.S_WS}:{k2d.S_WS+3}]"
        return self.first_only("i2", True, self.line_of_pair(F2) + ["v_and_b32 v216, 15, v0", "v_lshlrev_b32 v216, 2, v216",
                               f"buffer_load_dword v217, v216, {ws}, s37 offen sc1"])
    def first_iter_pre(self):
        n = self.name
        ws = f"s[{k2d.S_WS}:{k2d.S_WS+3}]"
        return self.first_only("c2", True, [f"s_mov_b32 s36, {SPIN_LIMIT}", f"{n}_c2l:", "v_cmp_eq_u32 vcc, 1, v217",
                                "s_sub_u32 s36, s36, 1", "s_cmp_eq_u32 s36, 0", f"s_cbranch_scc1 {n}_c2",
                                "s_cmp_eq_u64 vcc, exec", f"s_cbranch_scc1 {n}_c2",
                                f"buffer_load_dword v217, v216, {ws}, s37 offen sc1", "s_waitcnt vmcnt(0)", f"s_branch {n}_c2l"])
    def first_iter_post(self):
        b = Asm()
        self.b_loads(b)
        return self.first_only("b2", False, [l.strip() for l in b.lines])

    def gen(self):
        a = Asm()
        n = self.name
        a("s_cmp_ge_u32 s2, 256")
        a(f"s_cbranch_scc1 {n}_end")
        self.pstamp(a, 0)
        p1 = self.p1
        a("s_load_dwordx4 s[44:47], s[0:1], 0")
        if self.code:
            first, last, nbytes = self.code
            code_prefetch(a, n, first, last, 8, 252, 254, 90)(-(-nbytes // 32768))
        p1.body(a)
        self.rest(a)
        a.label(f"{n}_end")
        a("s_endpgm")
        a.label(f"{n}_last")
        return kernel_header(n) + a.text() + kernel_desc(n, 256, 256)
```

```python
from asmlib import *
from layout import *
from prof import Prof

XST, NX = 16384, 3
WRING, WSL, NW = 49152, 24576, 4
L_WP = WRING + NW * WSL
LDS_K1 = 163840
ACC = 64
def acc(sg, ft, tk): return ACC + ((sg * 2 + ft) * 4 + tk) * 4
FR = 160
def fX(p, tk): return FR + p * 40 + tk * 4
def fW(p, sg, ft): return FR + p * 40 + 16 + (sg * 2 + ft) * 4
V_XO, V_WO, V_XR, V_WR, V_WR2, V_PF = 1, 5, 12, 14, 16, 18
S_X, S_W, S_WS, S_WP, S_GW = 8, 12, 16, 60, 64
S_MT, S_HP, S_WV, S_SOX, S_SOW, S_W4K, S_W6K, S_TH, S_HH, S_BR, S_HD, S_ST = range(20, 32)
S_PF, S_PFO, S_PFS, S_TOK = 72, 76, 77, 78

class K1w(Prof):
    V_PROF = 250
    def __init__(self, name, prof=False, store_mod="sc1", code=None, rd_slots=None, pf=True, pf_per_unit=2, epi=True, pfwo=True, wsbase=0, prio=0, pf_first=4, dma_gap=2, split_dma=False, pf_start=0, gate_unit=None, hold=0, m32=False, pfwo_unit=14):
        self.name, self.prof, self.store_mod, self.code = name, prof, store_mod, code
        self.pf_first, self.dma_gap, self.split_dma = pf_first, dma_gap, split_dma
        self.defer = False
        self.pf_start = pf_start
        self.gate_unit = gate_unit
        self.m32 = m32
        self.pfwo_unit = pfwo_unit
        self.hold = hold
        self.rd_slots = rd_slots or [1 + (i * 22) // 16 for i in range(16)]
        self.pf, self.pf_per_unit, self.epi, self.pfwo, self.wsbase, self.prio = pf, pf_per_unit, epi, pfwo, wsbase, prio

    def mfmas(self, p):
        if self.m32:
            out = []
            for k2 in range(2):
                for tt in range(2):
                    for sg in range(3):
                        d = vr(ACC + (tt * 3 + sg) * 16, 16)
                        out += [f"v_mfma_f32_32x32x16_bf16 {d}, {vr(fW(p, sg, k2), 4)}, {vr(fX(p, tt * 2 + k2), 4)}, {d}", "s_nop 0"]
            return out
        out = []
        for tk in range(4):
            for sg in range(3):
                for ft in range(2):
                    d = vr(acc(sg, ft, tk), 4)
                    x, w = vr(fX(p, tk), 4), vr(fW(p, sg, ft), 4)
                    a, b = (x, w) if sg == 2 else (w, x)
                    out.append(f"v_mfma_f32_16x16x32_bf16 {d}, {a}, {b}, {d}")
        return out

    def rd(self, p, u):
        xo = ((u >> 1) % NX) * XST
        xs = [f"ds_read_b128 {vr(fX(p, tk), 4)}, v{V_XR + (u & 1)} offset:{xo + tk * 2048}" for tk in range(4)]
        slot = u % NW
        base = V_WR if slot < 2 else V_WR2
        w = [f"ds_read_b64_tr_b16 {vr(fW(p, sg, ft) + 2 * q, 2)}, v{base + ft} offset:{(slot & 1) * WSL + sg * 4096 + q * 512}"
             for sg in range(3) for ft in range(2) for q in range(2)]
        return [xs[0]] + w + xs[1:]

    def dmaW(self, uw):
        r = [f"s_add_u32 m0, s{S_W6K}, {WRING + (uw % NW) * WSL}", f"s_mov_b32 s{S_SOW}, {uw * 32 * 6144}"]
        for j in range(6):
            if j == 4: r += [f"s_add_u32 m0, s{S_W6K}, {WRING + (uw % NW) * WSL + 4096}", "s_nop 0"]
            r.append(f"buffer_load_dwordx4 v{V_WO + j}, s[{S_W}:{S_W+3}], s{S_SOW} offen offset:{(j & 3) * 1024} lds")
        return r
    def dmaX(self, sx, half):
        r = [f"s_add_u32 m0, s{S_W4K}, {(sx % NX) * XST + half * 2048}", f"s_mov_b32 s{S_SOX}, {sx * 128}"]
        for n in range(2):
            r.append(f"buffer_load_dwordx4 v{V_XO + half * 2 + n}, s[{S_X}:{S_X+3}], s{S_SOX} offen offset:{n * 1024} lds")
        return r
    def group(self, v):
        g, n = [], 0
        if 0 <= v + 3 < 32: g += self.dmaW(v + 3); n += 6
        if 0 <= v // 2 + 2 < 16: g += self.dmaX(v // 2 + 2, v & 1); n += 2
        return g, n
    def pf_load(self):
        return [f"buffer_load_dwordx4 v[{244}:{247}], v{V_PF}, s[{S_PF}:{S_PF+3}], s{S_PFO} offen", f"s_add_u32 s{S_PFO}, s{S_PFO}, s{S_PFS}"]

    def role_block(self, a, tag, stager, other):
        n = self.name
        if not stager and not other: return []
        r = [f"s_cmp_lg_u32 s{S_ST}, 0"]
        if other:
            r += [f"s_cbranch_scc0 {n}_{tag}_o"] + stager + [f"s_branch {n}_{tag}_e", f"{n}_{tag}_o:"] + other + [f"{n}_{tag}_e:"]
        else:
            r += [f"s_cbranch_scc0 {n}_{tag}_e"] + stager + [f"{n}_{tag}_e:"]
        return r

    def main_loop(self, a, extra_first):
        size = lambda v: self.group(v)[1]
        npf_left = self.npf
        for u in range(32):
            a("s_waitcnt lgkmcnt(0)")
            fill = []
            if u < 31:
                v = u + 1
                allowed = size(v - 2) + size(v - 1) + (extra_first if v <= 2 else 0) if v >= 2 else 8 + size(0) + extra_first
                fill.append((0, self.role_block(a, f"w{u}", [f"s_waitcnt vmcnt({allowed})"], []) + ["s_barrier"]))
                for i, r in enumerate(self.rd((u + 1) & 1, u + 1)):
                    fill.append((self.rd_slots[i], [r]))
                g, n = self.group(v)
                k = min(self.pf_per_unit, npf_left); npf_left -= k
                other = [l for _ in range(k) for l in self.pf_load()]
                if u == self.gate_unit:
                    issued = (0 if self.hold else self.npf_first) + (self.npf - npf_left)
                    other = other + self.gate_lines(min(issued + 1, 63))
                if self.pfwo and self.pfwo_unit is not None and u in (self.pfwo_unit, self.pfwo_unit + 2):
                    other = other + self.pfwo_lines(0 if u == self.pfwo_unit else 1)
                other = other + self.unit_extra(u)
                if self.split_dma and g:
                    cut = next((i for i, l in enumerate(g) if f"s{S_W4K}" in l), len(g))
                    fill.append((self.dma_gap, self.role_block(a, f"d{u}", g[:cut], other)))
                    fill.append((self.dma_gap + 10, self.role_block(a, f"e{u}", g[cut:], [])))
                else:
                    fill.append((self.dma_gap, self.role_block(a, f"d{u}", g, other)))
            for l in interleave(self.mfmas(u & 1), fill): a(l)

    def gen(self):
        a = Asm()
        n = self.name
        a("s_cmp_ge_u32 s2, 256")
        a(f"s_cbranch_scc1 {n}_end")
        self.pstamp(a, 0)
        if self.code:
            first, last, nbytes = self.code
            code_prefetch(a, n, first, last, 8, 252, 254, 90)(-(-nbytes // 32768))
        self.body(a)
        if self.prof:
            self.pstamp(a, 6)
            a("s_waitcnt vmcnt(0)")
            self.pstamp(a, 7)
            self.pflush(a, 0, 8, S_WV, f"s[{S_WS}:{S_WS+3}]")
        a.label(f"{n}_end")
        a("s_endpgm")
        a.label(f"{n}_last")
        return kernel_header(n) + a.text() + kernel_desc(n, 256, 256)

    def body(self, a):
        n = self.name
        a("s_load_dwordx4 s[44:47], s[0:1], 0")
        a("s_load_dwordx2 s[48:49], s[0:1], 32")
        a("s_load_dwordx2 s[52:53], s[0:1], 80")
        a("s_load_dwordx2 s[56:57], s[0:1], 40")
        a("s_load_dwordx2 s[58:59], s[0:1], 56")
        a("s_load_dwordx2 s[32:33], s[0:1], 16")
        a("s_load_dwordx2 s[34:35], s[0:1], 48")
        a("s_and_b32 s3, s2, 7")
        a("s_lshr_b32 s4, s2, 3")
        a("s_and_b32 s5, s3, 1")
        a("s_lshl_b32 s5, s5, 3")
        a("s_and_b32 s6, s4, 7")
        a(f"s_add_u32 s{S_MT}, s5, s6")
        a("s_lshr_b32 s5, s3, 1")
        a("s_lshl_b32 s5, s5, 2")
        a("s_lshr_b32 s6, s4, 3")
        a(f"s_add_u32 s{S_HP}, s5, s6")
        a("v_lshrrev_b32 v20, 6, v0")
        a("v_and_b32 v19, 63, v0")
        a("v_lshrrev_b32 v21, 3, v19")
        a(f"v_readfirstlane_b32 s{S_WV}, v20")
        a("v_and_b32 v22, 7, v19")
        a("v_lshrrev_b32 v23, 4, v19")
        a(f"s_and_b32 s{S_TH}, s{S_WV}, 1")
        a(f"s_bfe_u32 s{S_HH}, s{S_WV}, 0x10001")
        a(f"s_lshr_b32 s{S_BR}, s{S_WV}, 2")
        a(f"s_xor_b32 s{S_ST}, s{S_BR}, 1")
        a(f"s_and_b32 s7, s{S_WV}, 3")
        a(f"s_lshl_b32 s{S_HD}, s{S_HP}, 1")
        a(f"s_add_u32 s{S_HD}, s{S_HD}, s{S_HH}")
        a(f"s_lshl_b32 s3, s{S_MT}, 7")
        a("s_lshl_b32 s4, s7, 5")
        a("s_add_u32 s3, s3, s4")
        a("v_add_u32 v24, s3, v21")
        a("v_lshlrev_b32 v24, 11, v24")
        a("v_xor_b32 v25, v22, v23")
        a("v_xor_b32 v26, 4, v25")
        a("v_lshl_add_u32 v25, v25, 4, v24")
        a("v_lshl_add_u32 v26, v26, 4, v24")
        for nn in range(4):
            a(f"v_add_u32 v{V_XO + nn}, {nn * 16384 - (nn & 1) * 1024}, v{25 if nn % 2 == 0 else 26}")
        a("v_and_b32 v25, 1, v23")
        a("v_lshlrev_b32 v25, 1, v25")
        a("v_xor_b32 v25, v25, v22")
        a("s_mov_b32 s3, 6144")
        a("v_mul_lo_u32 v26, v21, s3")
        a(f"s_lshl_b32 s4, s{S_HP}, 7")
        a("v_add_u32 v26, s4, v26")
        a("v_lshl_add_u32 v28, v25, 4, v26")
        a("v_xor_b32 v27, 4, v25")
        a("v_lshl_add_u32 v27, v27, 4, v26")
        a("s_and_b32 s5, s7, 1")
        a("s_cmp_eq_u32 s5, 0")
        for j in range(6):
            off = [((6 * par + j) >> 2) * 2048 + ((6 * par + j) & 3) * 8 * 6144 - (j & 3) * 1024 for par in range(2)]
            a(f"s_mov_b32 s3, {off[1]}")
            a(f"s_cselect_b32 s3, {off[0]}, s3")
            a(f"v_add_u32 v{V_WO + j}, s3, v{28 if j % 2 == 0 else 27}")
        a(f"s_lshl_b32 s{S_W4K}, s7, 12")
        a(f"s_mul_i32 s{S_W6K}, s7, 6144")
        self.pstamp(a, 8)
        a("s_waitcnt lgkmcnt(0)")
        self.pstamp(a, 9)
        srd(a, S_X, 44, 2048 * 2048)
        a("s_cmp_lt_u32 s7, 2")
        a("s_cselect_b32 s4, s46, s48")
        a("s_cselect_b32 s5, s47, s49")
        srd(a, S_W, 4, 1024 * 6144)
        ws_shift(a, 52, self.wsbase)
        srd(a, S_WS, 52, 0x10000000 - self.wsbase)
        pro = self.dmaX(0, 0) + self.dmaW(0) + self.dmaX(0, 1) + self.dmaW(1) + self.dmaX(1, 0) + self.dmaW(2) + self.dmaX(1, 1)
        a(f"s_cmp_lg_u32 s{S_ST}, 0")
        a(f"s_cbranch_scc0 {n}_side")
        if self.hold: a("s_barrier")
        for l in pro: a(l)
        self.pf_setup(a)
        a(f"s_branch {n}_joined")
        a.label(f"{n}_side")
        self.side(a)
        a.label(f"{n}_joined")
        self.pstamp(a, 1)
        self.start_extra(a)
        self.addr_reads(a)
        for r in range(96): a(f"v_mov_b32 v{ACC + r}, 0")
        early = self.gate_unit is None
        for l in self.role_block(a, "b0", ["s_waitcnt vmcnt(16)"], self.gate_lines(1 if self.hold else self.npf_first + 1) if early else []): a(l)
        a("s_barrier")
        self.pstamp(a, 2)
        for l in self.rd(0, 0): a(l)
        g, _ = self.group(0)
        for l in self.role_block(a, "g0", g, []): a(l)
        if self.prio:
            a(f"s_cmp_lg_u32 s{S_ST}, 0")
            a(f"s_cbranch_scc1 {n}_np")
            a("s_setprio 1")
            a.label(f"{n}_np")
        self.main_loop(a, 0)
        if self.prio: a("s_setprio 0")
        self.pstamp(a, 3)
        if self.epi: self.epilogue(a)

    def addr_reads(self, a):
        a("v_and_b32 v20, 15, v19")
        a("v_lshlrev_b32 v20, 7, v20")
        a(f"s_lshl_b32 s3, s{S_TH}, 13")
        a("v_add_u32 v20, s3, v20")
        a("v_lshrrev_b32 v21, 4, v19")
        a("v_bfe_u32 v22, v19, 1, 3")
        for k2 in range(2):
            a(f"v_add_u32 v23, {4 * k2}, v21")
            a("v_xor_b32 v23, v23, v22")
            a(f"v_lshl_add_u32 v{V_XR + k2}, v23, 4, v20")
        a("v_bfe_u32 v22, v19, 2, 2")
        a("v_lshl_add_u32 v23, v21, 3, v22")
        a("v_lshlrev_b32 v23, 7, v23")
        a("v_and_b32 v24, 1, v19")
        a("v_lshl_add_u32 v23, v24, 3, v23")
        a("v_bfe_u32 v24, v19, 1, 1")
        a(f"s_lshl_b32 s3, s{S_HH}, 2")
        a("v_add_u32 v24, s3, v24")
        a("v_and_b32 v25, 2, v22")
        a("v_bfe_u32 v26, v19, 4, 1")
        a("v_lshl_or_b32 v25, v26, 2, v25")
        a(f"s_mul_i32 s3, s{S_BR}, 12288")
        a(f"s_add_u32 s3, s3, {WRING}")
        for ft in range(2):
            a(f"v_add_u32 v26, {2 * ft}, v24")
            a("v_xor_b32 v26, v26, v25")
            a("v_lshl_add_u32 v26, v26, 4, v23")
            a(f"v_add_u32 v{V_WR + ft}, s3, v26")
            a(f"v_add_u32 v{V_WR2 + ft}, {2 * WSL}, v{V_WR + ft}")

    def side(self, a):
        n = self.name
        ws = f"s[{S_WS}:{S_WS+3}]"
        srd(a, S_WP, 56, 65536)
        srd(a, S_GW, 58, 2048)
        a(f"s_and_b32 s7, s{S_WV}, 3")
        self.pf_setup(a)
        if self.hold:
            self.npf_first = min(self.pf_first, self.npf)
            for k in range(self.npf_first):
                for l in self.pf_load(): a(l)
            a(f"s_waitcnt vmcnt({self.npf_first - self.hold})")
            a("s_barrier")
        a("v_lshlrev_b32 v20, 5, v19")
        a(f"buffer_load_dwordx4 v[32:35], v20, s[{S_GW}:{S_GW+3}], 0 offen")
        a(f"buffer_load_dwordx4 v[36:39], v20, s[{S_GW}:{S_GW+3}], 0 offen offset:16")
        a(f"s_lshl_b32 s3, s{S_MT}, 7")
        a(f"s_lshl_b32 s4, s{S_HP}, 3")
        a("s_add_u32 s3, s3, s4")
        a("s_lshl_b32 s4, s7, 1")
        a(f"s_add_u32 s{S_TOK}, s3, s4")
        a(f"s_lshl_b32 s3, s{S_TOK}, 11")
        for i in range(2):
            a(f"buffer_load_dwordx4 v[{40+8*i}:{43+8*i}], v20, s[{S_X}:{S_X+3}], s3 offen offset:{i * 2048}")
            a(f"buffer_load_dwordx4 v[{44+8*i}:{47+8*i}], v20, s[{S_X}:{S_X+3}], s3 offen offset:{i * 2048 + 16}")
        a("v_lshlrev_b32 v20, 4, v19")
        a(f"s_lshl_b32 s3, s{S_HP}, 12")
        a("s_lshl_b32 s5, s7, 10")
        a("s_add_u32 s3, s3, s5")
        a(f"s_add_u32 m0, s5, {L_WP}")
        a("s_nop 0")
        a(f"buffer_load_dwordx4 v20, s[{S_WP}:{S_WP+3}], s3 offen lds")
        self.clear_flags(a)
        if not self.hold:
            self.npf_first = min(self.pf_first, self.npf)
            for k in range(self.npf_first):
                for l in self.pf_load(): a(l)
        self.npf -= self.npf_first

    def pf_setup(self, a):
        a(f"s_and_b32 s7, s{S_WV}, 3")
        self.npf = 16 - self.pf_start if self.pf else 0
        if self.pf:
            a("s_mul_i32 s3, s2, 3")
            a("s_add_u32 s3, s3, s7")
            a("s_cmp_ge_u32 s3, 384")
            a("s_cselect_b32 s4, 384, 0")
            a("s_cselect_b32 s80, s48, s46")
            a("s_cselect_b32 s81, s49, s47")
            a("s_sub_u32 s3, s3, s4")
            a("s_lshl_b32 s3, s3, 10")
            a("s_lshl_b32 s4, s2, 14")
            a("s_cmp_eq_u32 s7, 3")
            a("s_cselect_b32 s80, s44, s80")
            a("s_cselect_b32 s81, s45, s81")
            a(f"s_cselect_b32 s{S_PFO}, s4, s3")
            a(f"s_mov_b32 s5, {64 * 6144}")
            a(f"s_cselect_b32 s{S_PFS}, 128, s5")
            a(f"s_mov_b32 s5, {1024 * 6144}")
            a(f"s_cselect_b32 s{S_PF+2}, {2048 * 2048}, s5")
            if self.pf_start:
                a(f"s_mul_i32 s5, s{S_PFS}, {self.pf_start}")
                a(f"s_add_u32 s{S_PFO}, s{S_PFO}, s5")
            a(f"s_mov_b32 s{S_PF}, s80")
            a(f"s_and_b32 s{S_PF+1}, s81, 0xffff")
            a(f"s_mov_b32 s{S_PF+3}, 0x00020000")
            a("v_lshlrev_b32 v20, 4, v19")
            a("v_lshrrev_b32 v21, 3, v19")
            a("v_lshlrev_b32 v21, 11, v21")
            a("v_and_b32 v22, 7, v19")
            a("v_lshl_add_u32 v21, v22, 4, v21")
            a("s_cmp_eq_u32 s7, 3")
            a("s_cselect_b64 vcc, -1, 0")
            a(f"v_cndmask_b32 v{V_PF}, v20, v21, vcc")

    def clear_flags(self, a):
        n = self.name
        a("s_cmp_ge_u32 s2, 8")
        a(f"s_cbranch_scc1 {n}_noflag")
        a(f"s_cmp_lg_u32 s{S_WV}, 4")
        a(f"s_cbranch_scc1 {n}_noflag")
        a("s_lshl_b32 s3, s2, 12")
        a(f"s_add_u32 s3, s3, {WS_FLAG}")
        a("v_lshlrev_b32 v20, 2, v19")
        a("v_mov_b32 v21, 0")
        a(f"buffer_store_dword v21, v20, s[{S_WS}:{S_WS+3}], s3 offen sc1")
        a.label(f"{n}_noflag")
    def unit_extra(self, u): return []

    def gate_lines(self, wait=None):
        b = Asm()
        if wait is not None: b(f"s_waitcnt vmcnt({wait})")
        for i in range(2): b(f"v_mov_b32 v{24 + i}, 0")
        for k in range(8):
            for i in range(2):
                b(f"v_dot2_f32_bf16 v{24 + i}, v{40 + 8 * i + k}, v{32 + k}, v{24 + i}")
        for ctl in ("quad_perm:[1,0,3,2]", "quad_perm:[2,3,0,1]", "row_half_mirror", "row_mirror"):
            b("s_nop 1")
            for i in range(2):
                b(f"v_add_f32_dpp v{24 + i}, v{24 + i}, v{24 + i} {ctl} row_mask:0xf bank_mask:0xf")
        for sw in ("v_permlane16_swap_b32", "v_permlane32_swap_b32"):
            for i in range(2): b(f"v_mov_b32 v{28 + i}, v{24 + i}")
            b("s_nop 1")
            for i in range(2): b(f"{sw} v{24 + i}, v{28 + i}")
            b("s_nop 1")
            for i in range(2): b(f"v_add_f32 v{24 + i}, v{24 + i}, v{28 + i}")
        b("v_and_b32 v28, 1, v19")
        b("v_cmp_eq_u32 vcc, 1, v28")
        b("s_nop 1")
        b("v_cndmask_b32 v24, v24, v25, vcc")
        b(f"v_mul_f32 v24, {f32bits(-LOG2E)}, v24")
        b("v_exp_f32 v24, v24")
        b("s_nop 0")
        b("v_add_f32 v24, 1.0, v24")
        b("v_rcp_f32 v24, v24")
        b("v_lshlrev_b32 v28, 2, v19")
        b(f"s_lshl_b32 s3, s{S_TOK}, 2")
        b(f"s_add_u32 s3, s3, {WS_G}")
        b("s_mov_b64 exec, 3")
        b(f"buffer_store_dword v24, v28, s[{S_WS}:{S_WS+3}], s3 offen {self.store_mod}")
        b("s_mov_b64 exec, -1")
        return [l.strip() for l in b.lines]

    def epilogue(self, a):
        n = self.name
        a("s_waitcnt vmcnt(0)")
        a("s_barrier")
        a(f"s_cmp_lg_u32 s{S_BR}, 0")
        a(f"s_cbranch_scc1 {n}_epiB")
        self.epilogue_A(a)
        a(f"s_branch {n}_epidone")
        a.label(f"{n}_epiB")
        self.epilogue_B(a)
        a.label(f"{n}_epidone")

    @staticmethod
    def pack(b0, b1):
        return [f"v_cvt_pk_bf16_f32 v{b0}, v{b0}, v{b0 + 1}", f"v_cvt_pk_bf16_f32 v{b0 + 1}, v{b0 + 2}, v{b0 + 3}",
                f"v_cvt_pk_bf16_f32 v{b0 + 2}, v{b1}, v{b1 + 1}", f"v_cvt_pk_bf16_f32 v{b0 + 3}, v{b1 + 2}, v{b1 + 3}"]

    def epilogue_A(self, a):
        ws, sm = f"s[{S_WS}:{S_WS+3}]", self.store_mod
        a("v_lshrrev_b32 v21, 4, v19")
        a("v_and_b32 v20, 15, v19")
        a(f"s_lshl_b32 s3, s{S_HD}, 17")
        a(f"s_lshl_b32 s4, s{S_MT}, 2")
        a(f"s_lshl_b32 s5, s{S_TH}, 1")
        a("s_add_u32 s4, s4, s5")
        a("s_lshl_b32 s4, s4, 11")
        a("s_add_u32 s38, s3, s4")
        a(f"s_add_u32 s39, s38, {4 << 20}")
        a(f"s_add_u32 s42, s38, {8 << 20}")
        a("v_lshrrev_b32 v22, 1, v21")
        a("v_lshlrev_b32 v22, 10, v22")
        a("v_and_b32 v24, 1, v21")
        a("v_lshl_add_u32 v22, v24, 9, v22")
        a("v_lshl_add_u32 v17, v20, 4, v22")
        a("v_and_b32 v24, 7, v20")
        a("v_lshrrev_b32 v25, 3, v20")
        a("v_lshl_add_u32 v24, v25, 4, v24")
        a("v_lshl_add_u32 v16, v24, 4, v22")
        c = f32bits(LOG2E / 32 ** 0.5)
        a(f"s_mov_b32 s6, {c}")
        a(f"s_mov_b32 s7, {c}")
        for tk in range(4):
            for l in self.pack(acc(1, 0, tk), acc(1, 1, tk)): a(l)
            a(f"buffer_store_dwordx4 {vr(acc(1, 0, tk), 4)}, v16, {ws}, s39 offen offset:{(tk >> 1) * 2048 + (tk & 1) * 128} {sm}")
        for T in range(2):
            for ft in range(2):
                for l in self.pack(acc(2, ft, 2 * T), acc(2, ft, 2 * T + 1)): a(l)
                a(f"buffer_store_dwordx4 {vr(acc(2, ft, 2 * T), 4)}, v17, {ws}, s42 offen offset:{T * 2048 + ft * 256} {sm}")
        for tk in range(4):
            for ft in range(2):
                for h in (0, 2):
                    a(f"v_pk_mul_f32 {vr(acc(0, ft, tk) + h, 2)}, {vr(acc(0, ft, tk) + h, 2)}, s[6:7]")
            for l in self.pack(acc(0, 0, tk), acc(0, 1, tk)): a(l)
            a(f"buffer_store_dwordx4 {vr(acc(0, 0, tk), 4)}, v17, {ws}, s38 offen offset:{(tk >> 1) * 2048 + (tk & 1) * 256} {sm}")
        self.pstamp(a, 4)
        if self.pfwo and self.pfwo_unit is None: self.prefetch_wo(a)
        self.before_drain_A(a)
        a("s_waitcnt vmcnt(0)")
        self.pstamp(a, 5)
        self.after_drain_A(a)
        a("s_barrier")
        self.after_E2_A(a)

    def before_drain_A(self, a): pass
    def after_drain_A(self, a): pass
    def start_extra(self, a): pass
    def after_E2_A(self, a): pass
    def after_E2_B(self, a): pass

    def pfwo_lines(self, k):
        p = 32 + 2 * k
        return ["s_lshl_b32 s3, s2, 13", f"s_and_b32 s4, s{S_WV}, 3", "s_lshl_b32 s4, s4, 11", "s_add_u32 s3, s3, s4",
                f"s_mov_b32 s84, s{p}", f"s_and_b32 s85, s{p + 1}, 0xffff", "s_mov_b32 s86, 2097152", "s_mov_b32 s87, 0x00020000",
                "v_lshlrev_b32 v20, 4, v19",
                "buffer_load_dwordx4 v[244:247], v20, s[84:87], s3 offen", "buffer_load_dwordx4 v[244:247], v20, s[84:87], s3 offen offset:1024"]

    def prefetch_wo(self, a):
        a("s_load_dwordx2 s[80:81], s[0:1], 16")
        a("s_load_dwordx2 s[82:83], s[0:1], 48")
        a("v_lshlrev_b32 v15, 4, v19")
        a("s_lshl_b32 s3, s2, 13")
        a(f"s_lshl_b32 s4, s{S_WV}, 11")
        a("s_add_u32 s3, s3, s4")
        a("s_waitcnt lgkmcnt(0)")
        for k, p in enumerate((80, 82)):
            srd(a, 84, p, 2097152)
            for i in range(2):
                a(f"buffer_load_dwordx4 v[{160 + 8 * k + 4 * i}:{163 + 8 * k + 4 * i}], v15, s[84:87], s3 offen offset:{i * 1024}")

    def epilogue_B(self, a):
        ws, sm = f"s[{S_WS}:{S_WS+3}]", self.store_mod
        RS = 136
        a("v_lshrrev_b32 v21, 4, v19")
        a("v_and_b32 v20, 15, v19")
        a(f"s_and_b32 s7, s{S_WV}, 3")
        a("v_bfe_u32 v22, v19, 2, 2")
        a("v_lshl_add_u32 v22, v21, 2, v22")
        a(f"v_mul_u32_u24 v23, {RS}, v22")
        a("v_lshlrev_b32 v22, 6, v22")
        a("v_and_b32 v24, 3, v19")
        a("v_lshl_add_u32 v22, v24, 3, v22")
        a(f"s_lshl_b32 s3, s{S_HH}, 11")
        a(f"s_add_u32 s3, s3, {L_WP}")
        a("v_add_u32 v22, s3, v22")
        a(f"s_mul_i32 s3, s7, {64 * RS}")
        a("v_lshl_add_u32 v23, v24, 3, v23")
        a("v_add_u32 v23, s3, v23")
        a(f"v_mul_u32_u24 v18, {RS}, v20")
        a("v_lshl_add_u32 v18, v21, 3, v18")
        a("v_add_u32 v18, s3, v18")
        a("v_lshlrev_b32 v15, 4, v19")
        KB = lambda t: acc(1, 0, t)
        VB = lambda dt, T: acc(2, dt, 2 * T)
        for tk in range(4):
            for l in self.pack(acc(1, 0, tk), acc(1, 1, tk)): a(l)
        for tk in range(4):
            for l in self.pack(acc(0, 0, tk), acc(0, 1, tk)): a(l)
        a(f"s_lshl_b32 s3, s{S_HD}, 17")
        a(f"s_lshl_b32 s4, s{S_MT}, 3")
        a(f"s_lshl_b32 s5, s{S_TH}, 2")
        a("s_add_u32 s4, s4, s5")
        a("s_lshl_b32 s4, s4, 10")
        a("s_add_u32 s43, s3, s4")
        a(f"s_add_u32 s43, s43, {WS_QB}")
        WPF, ONES = 48, 56
        for ft in range(2):
            for q in range(2):
                a(f"ds_read_b64_tr_b16 {vr(WPF + 4 * ft + 2 * q, 2)}, v22 offset:{q * 1024 + ft * 32}")
        a(f"v_mov_b32 v{ONES}, 0x3f803f80")
        for r in range(1, 4): a(f"v_mov_b32 v{ONES + r}, v{ONES}")
        for dt in range(2):
            for T in range(2):
                for l in self.pack(acc(2, dt, 2 * T), acc(2, dt, 2 * T + 1)): a(l)
        l2e = f32bits(LOG2E)
        a(f"s_mov_b32 s36, {l2e}")
        a(f"s_mov_b32 s37, {l2e}")
        a(f"s_mov_b32 s40, {f32bits(-LOG2E)}")
        a(f"s_mov_b32 s41, {f32bits(-LOG2E)}")
        a("s_waitcnt lgkmcnt(0)")
        P = lambda t, i: 160 + 8 * t + i
        EP = lambda t, i: 192 + 8 * t + i
        BP = lambda t: 80 + 4 * t
        BM = lambda t: 112 + 4 * t
        SS = lambda t, sg: (132 + 8 * t) if sg == 0 else (224 + 4 * t)
        mx, mn, tm = (lambda t: 24 + 2 * t), (lambda t: 32 + 2 * t), (lambda t: 40 + t)
        T4 = range(4)
        for t in T4:
            for ft in range(2):
                a(f"v_mfma_f32_16x16x32_bf16 {vr(P(t, 4 * ft), 4)}, {vr(WPF + 4 * ft, 4)}, {vr(KB(t), 4)}, 0")
        stores = [f"buffer_store_dwordx4 {vr(acc(0, 0, tk), 4)}, v15, {ws}, s43 offen offset:{tk * 1024} {sm}" for tk in range(4)]
        a("s_nop 7")
        B = a
        for t in T4:
            B(f"v_max3_f32 v{mx(t)}, v{P(t,0)}, v{P(t,1)}, v{P(t,2)}")
            B(f"v_min3_f32 v{mn(t)}, v{P(t,0)}, v{P(t,1)}, v{P(t,2)}")
        for i in (3, 5):
            for t in T4:
                B(f"v_max3_f32 v{mx(t)}, v{mx(t)}, v{P(t,i)}, v{P(t,i+1)}")
                B(f"v_min3_f32 v{mn(t)}, v{mn(t)}, v{P(t,i)}, v{P(t,i+1)}")
        for t in T4:
            B(f"v_max_f32 v{mx(t)}, v{mx(t)}, v{P(t,7)}")
            B(f"v_min_f32 v{mn(t)}, v{mn(t)}, v{P(t,7)}")
        for t in T4: B(f"v_sub_f32 v{mn(t)}, 0, v{mn(t)}")
        B("s_nop 1")
        for t in T4: B(f"v_permlane32_swap_b32 v{mx(t)}, v{mn(t)}")
        B("s_nop 1")
        for t in T4: B(f"v_max_f32 v{mx(t)}, v{mx(t)}, v{mn(t)}")
        for t in T4: B(f"v_mov_b32 v{tm(t)}, v{mx(t)}")
        B("s_nop 1")
        for t in T4: B(f"v_permlane16_swap_b32 v{mx(t)}, v{tm(t)}")
        B("s_nop 1")
        for t in T4: B(f"v_max_f32 v{mx(t)}, v{mx(t)}, v{tm(t)}")
        for t in T4: B(f"v_mov_b32 v{mn(t)}, v{mx(t)}")
        B("s_nop 1")
        for t in T4: B(f"v_permlane32_swap_b32 v{mx(t)}, v{mn(t)}")
        B("s_nop 1")
        for t in T4:
            B(f"v_mul_f32 v{mx(t)}, s40, v{mx(t)}")
            B(f"v_mul_f32 v{mn(t)}, s40, v{mn(t)}")
        for t in T4:
            for i in range(0, 8, 2):
                B(f"v_pk_fma_f32 {vr(EP(t,i), 2)}, {vr(P(t,i), 2)}, s[36:37], {vr(mx(t), 2)} op_sel_hi:[1,1,0]")
                B(f"v_pk_fma_f32 {vr(P(t,i), 2)}, {vr(P(t,i), 2)}, s[40:41], {vr(mn(t), 2)} op_sel_hi:[1,1,0]")
        for t in T4:
            for i in range(8):
                B(f"v_exp_f32 v{EP(t,i)}, v{EP(t,i)}")
                B(f"v_exp_f32 v{P(t,i)}, v{P(t,i)}")
        B("s_nop 0")
        for t in T4:
            for k in range(4):
                B(f"v_cvt_pk_bf16_f32 v{BP(t) + k}, v{EP(t,2*k)}, v{EP(t,2*k+1)}")
                B(f"v_cvt_pk_bf16_f32 v{BM(t) + k}, v{P(t,2*k)}, v{P(t,2*k+1)}")
        B("s_nop 1")
        for t in T4:
            B(f"v_mfma_f32_16x16x32_bf16 {vr(SS(t, 0), 4)}, {vr(ONES, 4)}, {vr(BP(t), 4)}, 0")
            B(f"v_mfma_f32_16x16x32_bf16 {vr(SS(t, 1), 4)}, {vr(ONES, 4)}, {vr(BM(t), 4)}, 0")
        if not self.defer:
            for st in stores: B(st)
            B("s_nop 3")
        else:
            B("s_nop 7")
        for t in T4:
            B(f"v_rcp_f32 v{SS(t, 0)}, v{SS(t, 0)}")
            B(f"v_rcp_f32 v{SS(t, 1)}, v{SS(t, 1)}")
        B("s_nop 0")
        for t in T4:
            for i in range(0, 8, 2):
                B(f"v_pk_mul_f32 {vr(EP(t,i), 2)}, {vr(EP(t,i), 2)}, {vr(SS(t, 0), 2)} op_sel_hi:[1,0]")
                B(f"v_pk_mul_f32 {vr(P(t,i), 2)}, {vr(P(t,i), 2)}, {vr(SS(t, 1), 2)} op_sel_hi:[1,0]")
        for t in T4:
            for k in range(4):
                B(f"v_cvt_pk_bf16_f32 v{BP(t) + k}, v{EP(t,2*k)}, v{EP(t,2*k+1)}")
                B(f"v_cvt_pk_bf16_f32 v{BM(t) + k}, v{P(t,2*k)}, v{P(t,2*k+1)}")
            row = t * 16 * RS
            for ft in range(2):
                B(f"ds_write_b64 v18, {vr(BP(t) + 2 * ft, 2)} offset:{row + ft * 32}")
                B(f"ds_write_b64 v18, {vr(BM(t) + 2 * ft, 2)} offset:{row + 64 + ft * 32}")
        self.pstamp(a, 4)
        a("s_waitcnt lgkmcnt(0)")
        AF, KV = 160, 192
        for sf in range(4):
            for T in range(2):
                for q in range(2):
                    a(f"ds_read_b64_tr_b16 {vr(AF + (sf * 2 + T) * 4 + 2 * q, 2)}, v23 offset:{(32 * T + 16 * q) * RS + sf * 32}")
        XB = 40960
        a(f"s_mul_i32 s3, s7, 12288")
        a(f"s_add_u32 s3, s3, {XB}")
        a("v_add_u32 v20, s3, v15")
        a("s_and_b32 s4, s7, 2")
        a("s_mul_i32 s4, s4, 12288")
        a(f"s_mul_i32 s5, s{S_TH}, 6144")
        a("s_add_u32 s4, s4, s5")
        a(f"s_add_u32 s4, s4, {XB}")
        a("v_add_u32 v22, s4, v15")
        for sf in range(4):
            a(f"s_waitcnt lgkmcnt({(3 - sf) * 4})")
            for T in range(2):
                A = vr(AF + (sf * 2 + T) * 4, 4)
                for dt in range(3):
                    d = vr(KV + (sf * 3 + dt) * 4, 4)
                    Bop = vr(VB(dt, T), 4) if dt < 2 else vr(ONES, 4)
                    a(f"v_mfma_f32_16x16x32_bf16 {d}, {A}, {Bop}, {d if T else 0}")
        a(f"s_lshl_b32 s3, s{S_HD}, 4")
        a(f"s_add_u32 s3, s3, s{S_MT}")
        a("s_lshl_b32 s3, s3, 14")
        a(f"s_add_u32 s3, s3, {WS_KVP}")
        a(f"s_lshl_b32 s4, s{S_TH}, 12")
        a("s_add_u32 s4, s4, s3")
        a(f"s_lshl_b32 s6, s{S_TH}, 7")
        a("s_add_u32 s6, s6, s3")
        a("s_add_u32 s6, s6, 8192")
        a("v_lshlrev_b32 v21, 4, v21")
        for k in range(12): a(f"ds_write_b128 v20, {vr(KV + 4 * k, 4)} offset:{k * 1024}")
        a("s_waitcnt lgkmcnt(0)")
        self.pstamp(a, 5)
        a("s_barrier")
        for w in range(2):
            for k in range(6):
                a(f"ds_read_b128 {vr(160 + (w * 6 + k) * 4, 4)}, v22 offset:{w * 12288 + k * 1024}")
        a("s_waitcnt lgkmcnt(0)")
        if self.defer:
            for i in range(22, -1, -2):
                a(f"v_pk_add_f32 {vr(192 + i, 2)}, {vr(160 + i, 2)}, {vr(184 + i, 2)}")
            for i in range(16): a(f"v_mov_b32 v{224 + i}, v{64 + i}")
        else:
            for i in range(0, 24, 2):
                a(f"v_pk_add_f32 {vr(160 + i, 2)}, {vr(160 + i, 2)}, {vr(184 + i, 2)}")
        if self.defer:
            a("s_mov_b32 s92, s43")
            a("s_mov_b32 s93, s4")
            a("s_mov_b32 s94, s6")
        else:
            for ft in range(2):
                for dt in range(2):
                    a(f"buffer_store_dwordx4 {vr(160 + (ft * 3 + dt) * 4, 4)}, v15, {ws}, s4 offen offset:{(ft * 2 + dt) * 1024} {sm}")
                a(f"buffer_store_dwordx4 {vr(160 + (ft * 3 + 2) * 4, 4)}, v21, {ws}, s6 offen offset:{ft * 64} {sm}")
        self.after_E2_B(a)
```

```python
from asmlib import *
from layout import *
from prof import Prof
from dbgstamp import dbg_setup, dbg_stamp

MARGIN = 90.0
TPS, TPW = 8, 4
STG = TPS * 4096
LDS_MISC = 2 * STG
L_KV, L_Z, L_WP, L_VOTE, L_SPARE = 0, 4096, 6144, 8192, 8448
L_XO = LDS_MISC + 8448 + 1024
LDS_K2 = L_XO + 8 * 5120

V_LANE16, V_T0, V_T1, V_T2, V_T3, V_G, V_RD = 1, 2, 3, 4, 5, 6, 7
VQ, VC, VS, VP, VKF, VVF, VO, VL, VONE = 8, 24, 56, 88, 96, 112, 128, 160, 168
S_WS, S_K, S_V = 8, 12, 16
S_H, S_QB, S_WV, S_SOFF, S_CNT, S_MODE, S_WOFF, S_QG, S_KH = 20, 21, 22, 23, 24, 25, 26, 27, 32
S_KVP, S_PKV, S_PZ = 44, 48, 49
VKA, VPT, VQB, VGB, V_ZOFF = 176, 184, 224, 244, 246

class K2d(Prof):
    V_PROF = 250
    def __init__(self, name, prof=False, store_mod="nt", force_fallback=False, margin=MARGIN, sched=1, bapply=True, prio=0, diag=(), code=None, dbg=None, wsbase=0):
        self.name, self.prof, self.store_mod = name, prof, store_mod
        self.force_fallback, self.margin, self.sched, self.bapply, self.prio = force_fallback, margin, sched, bapply, prio
        self.diag = set(diag)
        self.code = code
        self.npb = 2
        self.hmod = ''
        self.wsbase = wsbase
        self.dbg = dbg

    def dma_piece(self, slot, i):
        kv, n = i >> 1, i & 1
        srd_ = S_K if kv == 0 else S_V
        ins = []
        if n == 0:
            ins += [f"s_add_u32 m0, s{S_WOFF}, {slot * STG + kv * (STG // 2)}", "s_nop 0"]
        ins.append(f"buffer_load_dwordx4 v{V_LANE16}, s[{srd_}:{srd_+3}], s{S_SOFF} offen offset:{n * 1024} {self.hmod} lds")
        if i == 3:
            ins.append(f"s_add_u32 s{S_SOFF}, s{S_SOFF}, {STG // 2}")
        return ins
    def dma_stage(self, slot):
        return [l for i in range(4) for l in self.dma_piece(slot, i)]

    @staticmethod
    def koff(j): return (j // TPW) * STG + (j % TPW) * 2048
    def rdK(self, j):
        b = VKF + 8 * (j & 1); j %= 2 * TPW
        return [f"ds_read_b128 {vr(b + 4 * st, 4)}, v{V_RD} offset:{self.koff(j) + st * 1024}" for st in range(2)]
    def rdV(self, j):
        b = VVF + 8 * (j & 1); j %= 2 * TPW
        return [f"ds_read_b128 {vr(b + 4 * st, 4)}, v{V_RD} offset:{self.koff(j) + STG // 2 + st * 1024}" for st in range(2)]

    def unit(self, a, j, qt):
        u = 2 * j + qt
        s, sn = VS + 16 * (u & 1), VS + 16 * ((u + 1) & 1)
        jn, qn = (j + (qt == 1), qt ^ 1)
        kn = VKF + 8 * (jn & 1)
        jp, qp = (j - (qt == 0), qt ^ 1)
        v, vp = VVF + 8 * (j & 1), VVF + 8 * (jp & 1)
        e = lambda r: f"v_exp_f32 v{s + r}, v{s + r}"
        c = lambda k: f"v_cvt_pk_bf16_f32 v{VP + k}, v{s + 2 * k}, v{s + 2 * k + 1}"
        O, Op, Lq, Lp = VO + 16 * qt, VO + 16 * qp, VL + 4 * qt, VL + 4 * qp
        Sa = f"v_mfma_f32_32x32x16_bf16 {vr(sn, 16)}, {vr(kn, 4)}, {vr(VQ + 8 * qn, 4)}, {vr(VC + 16 * qn, 16)}"
        Sb = f"v_mfma_f32_32x32x16_bf16 {vr(sn, 16)}, {vr(kn + 4, 4)}, {vr(VQ + 8 * qn + 4, 4)}, {vr(sn, 16)}"
        PVa = f"v_mfma_f32_32x32x16_bf16 {vr(O, 16)}, {vr(v, 4)}, {vr(VP, 4)}, {vr(O, 16)}"
        PVb = f"v_mfma_f32_32x32x16_bf16 {vr(Op, 16)}, {vr(vp + 4, 4)}, {vr(VP + 4, 4)}, {vr(Op, 16)}"
        La = f"v_mfma_f32_16x16x32_bf16 {vr(Lq, 4)}, {vr(VONE, 4)}, {vr(VP, 4)}, {vr(Lq, 4)}"
        Lb = f"v_mfma_f32_16x16x32_bf16 {vr(Lp, 4)}, {vr(VONE, 4)}, {vr(VP + 4, 4)}, {vr(Lp, 4)}"
        rd = self.rdK(j + 1) if qt == 0 else self.rdV(j + 1)
        top = ["s_waitcnt lgkmcnt(0)"]
        jj = j % TPW
        if jj == TPW - 1 and qt == 0:
            if hasattr(self, "switch_code"):
                top += self.switch_code(j)
            else:
                top += ["s_waitcnt vmcnt(0)", "s_barrier"]
                if self.bapply: top += self.part_add() + self.part_loads()
                if hasattr(self, "touch_lines"): top += self.touch_lines()
        if hasattr(self, "first_iter_issue") and j == 1 and qt == 0 and self.pass_idx == 1: top += self.first_iter_issue()
        k = (2 * jj + qt - 2 * (TPW - 1)) % (2 * TPW)
        dm = []
        if k < 4:
            dm = self.dma_piece((((j + 1) // TPW) + 1) & 1, k)
        if hasattr(self, "unit_hook"): dm = dm + self.unit_hook(j, qt)
        r0, r1 = rd[:1], rd[1:]
        if self.sched == 1:
            seq = (top + [e(0)] + r0 + [e(1)] + r1 + [e(2), e(3), Sa, c(0), c(1), e(4), e(5), Lb, e(6), e(7), c(2), c(3), Sb,
                   e(8)] + dm + [e(9), e(10), e(11), PVb, c(4), c(5), e(12), e(13), PVa, e(14), e(15), c(6), c(7), La])
        elif self.sched == 2:
            seq = (top + r0 + r1 + [e(0), e(1), e(2), e(3), Sa, c(0), c(1), e(4), e(5), Lb, e(6), e(7), c(2), c(3), Sb] + dm +
                   [e(8), e(9), e(10), e(11), PVb, c(4), c(5), e(12), e(13), PVa, e(14), e(15), c(6), c(7), La])
        elif self.sched == 3:
            seq = (top + r0 + r1 + [Sa, e(0), e(1), e(2), e(3), Lb, c(0), c(1), e(4), e(5), Sb, e(6), e(7), c(2), c(3), PVb] + dm +
                   [e(8), e(9), e(10), e(11), PVa, c(4), c(5), e(12), e(13), La, e(14), e(15), c(6), c(7)])
        elif self.sched == 4:
            seq = (top + [e(0), e(1)] + r0 + [e(2), e(3), Sa] + r1 + [c(0), c(1), e(4), e(5), e(6), e(7), Sb, c(2), c(3), Lb] + dm +
                   [e(8), e(9), e(10), e(11), PVb, c(4), c(5), e(12), e(13), PVa, e(14), e(15), c(6), c(7), La])
        elif self.sched in (5, 6, 7):
            PVb_now = f"v_mfma_f32_32x32x16_bf16 {vr(O, 16)}, {vr(v + 4, 4)}, {vr(VP + 4, 4)}, {vr(O, 16)}"
            Lb_now = f"v_mfma_f32_16x16x32_bf16 {vr(Lq, 4)}, {vr(VONE, 4)}, {vr(VP + 4, 4)}, {vr(Lq, 4)}"
            valu = [e(0), e(1), e(2), e(3), c(0), e(4), c(1), e(5), e(6), e(7), c(2), e(8), c(3), e(9), e(10), e(11), c(4), e(12), c(5), e(13), e(14), e(15), "s_nop 0", c(6), c(7)]
            if self.sched == 5:
                seq = top + r0 + r1 + valu + dm + [Sa, Sb, PVa, La, PVb_now, Lb_now, "s_nop 7"]
            elif self.sched == 6:
                seq = top + r0 + r1 + valu[:8] + [Sa] + valu[8:16] + [Sb] + valu[16:] + dm + ["s_nop 1", PVa, La, PVb_now, Lb_now]
            else:
                seq = top + r0 + r1 + [Sa] + valu[:4] + [Sb] + valu[4:] + dm + ["s_nop 1", PVa, PVb_now, La, Lb_now]
        D = self.diag
        if "nord" in D: seq = [l for l in seq if not l.startswith("ds_read")]
        if "noL" in D: seq = [l for l in seq if "16x16x32" not in l]
        for l in seq: a(l)

    def halfmax(self, a, x, t):
        a(f"v_mov_b32 v{t}, v{x}")
        a("s_nop 1")
        a(f"v_permlane32_swap_b32 v{x}, v{t}")
        a("s_nop 1")
        a(f"v_max_f32 v{x}, v{x}, v{t}")

    NT = 2
    def part_loads(self):
        kvp = f"s[{S_KVP}:{S_KVP+3}]"
        r = []
        for b in range(self.npb):
            r += [f"buffer_load_dwordx4 {vr(VPT + 8 * b, 4)}, v{V_LANE16}, {kvp}, s{S_PKV} offen {self.hmod}",
                  f"buffer_load_dwordx4 {vr(VPT + 8 * b + 4, 4)}, v{V_ZOFF}, {kvp}, s{S_PZ} offen {self.hmod}",
                  f"s_add_u32 s{S_PKV}, s{S_PKV}, {KVP_STRIDE}", f"s_add_u32 s{S_PZ}, s{S_PZ}, {KVP_STRIDE}"]
        return r
    def part_add(self):
        return [f"v_pk_add_f32 {vr(VKA + r, 2)}, {vr(VKA + r, 2)}, {vr(VPT + 8 * b + r, 2)}" for b in range(self.npb) for r in range(0, 8, 2)]
    def part_reset(self):
        return ([f"s_lshl_b32 s{S_PKV}, s{S_WV}, 10", f"s_and_b32 s{S_PZ}, s{S_WV}, 3", f"s_lshl_b32 s{S_PZ}, s{S_PZ}, 6",
                 f"s_add_u32 s{S_PZ}, s{S_PZ}, 8192"] + [f"v_mov_b32 v{VKA + r}, 0" for r in range(8)])

    def b_loads(self, a):
        ws = f"s[{S_WS}:{S_WS+3}]"
        a(f"s_lshl_b32 s6, s{S_QB}, 4")
        a(f"s_lshl_b32 s7, s{S_WV}, 1")
        a("s_add_u32 s6, s6, s7")
        a("s_lshl_b32 s7, s6, 10")
        a(f"s_lshl_b32 s3, s{S_H}, 17")
        a("s_add_u32 s7, s7, s3")
        a(f"s_add_u32 s7, s7, {WS_QB}")
        for t in range(self.NT):
            a(f"buffer_load_dwordx4 {vr(VQB + 4 * t, 4)}, v{V_LANE16}, {ws}, s7 offen offset:{t * 1024} {self.hmod}")
        a("s_lshl_b32 s7, s6, 6")
        a(f"s_add_u32 s7, s7, {WS_G}")
        a(f"v_and_b32 v{V_T0}, 15, v{V_T1}")
        a(f"v_lshlrev_b32 v{V_T0}, 2, v{V_T0}")
        for t in range(self.NT):
            a(f"buffer_load_dword v{VGB + t}, v{V_T0}, {ws}, s7 offen offset:{t * 64} {self.hmod}")
        a(f"s_lshl_b32 s6, s{S_H}, 11")
        a(f"s_lshl_b32 s7, s{S_WV}, 10")
        a("s_add_u32 s6, s6, s7")
        a(f"s_cmp_ge_u32 s{S_WV}, 2")
        a("s_cselect_b32 s6, 0x10000, s6")
        a(f"s_cselect_b32 s7, {L_SPARE - L_WP}, s7")
        a(f"s_add_u32 m0, s7, {LDS_MISC + L_WP}")
        a("s_nop 0")
        a(f"buffer_load_dwordx4 v{V_LANE16}, s[28:31], s6 offen lds")

    def b_publish(self, a):
        for k in range(4):
            a(f"v_cvt_pk_bf16_f32 v{VPT + k}, v{VKA + 2 * k}, v{VKA + 2 * k + 1}")
        a(f"v_and_b32 v{V_T1}, 63, v0")
        a(f"v_lshlrev_b32 v{V_T0}, 3, v{V_T1}")
        a(f"v_add_u32 v{V_T0}, {LDS_MISC}, v{V_T0}")
        a(f"s_lshl_b32 s6, s{S_WV}, 9")
        a(f"v_add_u32 v{V_T3}, s6, v{V_T0}")
        a(f"ds_write_b64 v{V_T3}, {vr(VPT, 2)} offset:{L_KV}")
        a(f"s_and_b32 s6, s{S_WV}, 3")
        a(f"s_lshl_b32 s6, s6, 9")
        a(f"v_add_u32 v{V_T3}, s6, v{V_T0}")
        a(f"ds_write_b64 v{V_T3}, {vr(VPT + 2, 2)} offset:{L_Z}")

    def b_apply(self, a):
        ws = f"s[{S_WS}:{S_WS+3}]"
        NT = self.NT
        a(f"v_and_b32 v{V_T1}, 63, v0")
        a(f"v_lshlrev_b32 v{V_T0}, 3, v{V_T1}")
        a(f"v_add_u32 v{V_T0}, {LDS_MISC}, v{V_T0}")
        for sg in range(2):
            for dt in range(2):
                for ft in range(2):
                    t = (sg * 2 + ft) * 2 + dt
                    a(f"ds_read_b64 {vr(24 + (sg * 2 + dt) * 4 + 2 * ft, 2)}, v{V_T0} offset:{L_KV + t * 512}")
            for ft in range(2):
                a(f"ds_read_b64 {vr(40 + sg * 4 + 2 * ft, 2)}, v{V_T0} offset:{L_Z + (sg * 2 + ft) * 512}")
        a(f"v_lshrrev_b32 v{V_T2}, 4, v{V_T1}")
        a(f"v_bfe_u32 v{V_T3}, v{V_T1}, 2, 2")
        a(f"v_lshl_add_u32 v{V_T2}, v{V_T2}, 2, v{V_T3}")
        a(f"v_lshlrev_b32 v{V_T2}, 6, v{V_T2}")
        a(f"v_and_b32 v{V_T3}, 3, v{V_T1}")
        a(f"v_lshl_add_u32 v{V_T2}, v{V_T3}, 3, v{V_T2}")
        a(f"v_add_u32 v{V_T2}, {LDS_MISC}, v{V_T2}")
        for ft in range(2):
            for q in range(2):
                a(f"ds_read_b64_tr_b16 {vr(48 + 4 * ft + 2 * q, 2)}, v{V_T2} offset:{L_WP + q * 1024 + ft * 32}")
        a(f"v_mov_b32 v56, 0x3f803f80")
        for r in range(1, 4): a(f"v_mov_b32 v{56 + r}, v56")
        a("s_waitcnt lgkmcnt(0)")
        for t in range(NT):
            for ft in range(2):
                a(f"v_mfma_f32_16x16x32_bf16 {vr(64 + 8 * t + 4 * ft, 4)}, {vr(48 + 4 * ft, 4)}, {vr(VQB + 4 * t, 4)}, 0")
        a("s_nop 7")
        P = lambda t, i: 64 + 8 * t + i
        MX, MN, TM = 96, 100, 104
        T = range(NT)
        for t in T:
            a(f"v_max3_f32 v{MX+2*t}, v{P(t,0)}, v{P(t,1)}, v{P(t,2)}")
            a(f"v_min3_f32 v{MN+2*t}, v{P(t,0)}, v{P(t,1)}, v{P(t,2)}")
        for i in (3, 5):
            for t in T:
                a(f"v_max3_f32 v{MX+2*t}, v{MX+2*t}, v{P(t,i)}, v{P(t,i+1)}")
                a(f"v_min3_f32 v{MN+2*t}, v{MN+2*t}, v{P(t,i)}, v{P(t,i+1)}")
        for t in T:
            a(f"v_max_f32 v{MX+2*t}, v{MX+2*t}, v{P(t,7)}")
            a(f"v_min_f32 v{MN+2*t}, v{MN+2*t}, v{P(t,7)}")
        for t in T: a(f"v_sub_f32 v{MN+2*t}, 0, v{MN+2*t}")
        a("s_nop 1")
        for t in T: a(f"v_permlane32_swap_b32 v{MX+2*t}, v{MN+2*t}")
        a("s_nop 1")
        for t in T: a(f"v_max_f32 v{MX+2*t}, v{MX+2*t}, v{MN+2*t}")
        for t in T: a(f"v_mov_b32 v{TM+2*t}, v{MX+2*t}")
        a("s_nop 1")
        for t in T: a(f"v_permlane16_swap_b32 v{MX+2*t}, v{TM+2*t}")
        a("s_nop 1")
        for t in T: a(f"v_max_f32 v{MX+2*t}, v{MX+2*t}, v{TM+2*t}")
        for t in T: a(f"v_mov_b32 v{MN+2*t}, v{MX+2*t}")
        a("s_nop 1")
        for t in T: a(f"v_permlane32_swap_b32 v{MX+2*t}, v{MN+2*t}")
        a("s_nop 1")
        EP = lambda t, i: 176 + 8 * t + i
        a(f"s_mov_b32 s36, {f32bits(LOG2E)}")
        a(f"s_mov_b32 s37, {f32bits(LOG2E)}")
        a(f"s_mov_b32 s38, {f32bits(-LOG2E)}")
        a(f"s_mov_b32 s39, {f32bits(-LOG2E)}")
        for t in T:
            a(f"v_mul_f32 v{MX+2*t}, s38, v{MX+2*t}")
            a(f"v_mul_f32 v{MN+2*t}, s38, v{MN+2*t}")
        for t in T:
            for i in range(0, 8, 2):
                a(f"v_pk_fma_f32 {vr(EP(t,i), 2)}, {vr(P(t,i), 2)}, s[36:37], {vr(MX+2*t, 2)} op_sel_hi:[1,1,0]")
                a(f"v_pk_fma_f32 {vr(P(t,i), 2)}, {vr(P(t,i), 2)}, s[38:39], {vr(MN+2*t, 2)} op_sel_hi:[1,1,0]")
        for t in T:
            for i in range(8):
                a(f"v_exp_f32 v{EP(t,i)}, v{EP(t,i)}")
                a(f"v_exp_f32 v{P(t,i)}, v{P(t,i)}")
        BP, BM = 96, 112
        if hasattr(self, "b_mid"): self.b_mid(a)
        a("s_nop 0")
        for t in T:
            for k in range(4):
                a(f"v_cvt_pk_bf16_f32 v{BP + 4*t + k}, v{EP(t,2*k)}, v{EP(t,2*k+1)}")
                a(f"v_cvt_pk_bf16_f32 v{BM + 4*t + k}, v{P(t,2*k)}, v{P(t,2*k+1)}")
        a("s_nop 1")
        for t in T:
            R = 176 + 32 * t
            bp, bm = vr(BP + 4 * t, 4), vr(BM + 4 * t, 4)
            for dt in range(2):
                a(f"v_mfma_f32_16x16x32_bf16 {vr(R + 4 * dt, 4)}, {vr(24 + 4 * dt, 4)}, {bp}, 0")
                a(f"v_mfma_f32_16x16x32_bf16 {vr(R + 8 + 4 * dt, 4)}, {vr(32 + 4 * dt, 4)}, {bm}, 0")
            a(f"v_mfma_f32_16x16x32_bf16 {vr(R + 16, 4)}, {vr(40, 4)}, {bp}, 0")
            a(f"v_mfma_f32_16x16x32_bf16 {vr(R + 20, 4)}, {vr(44, 4)}, {bm}, 0")
            a(f"v_mfma_f32_16x16x32_bf16 {vr(R + 24, 4)}, {vr(56, 4)}, {bp}, 0")
            a(f"v_mfma_f32_16x16x32_bf16 {vr(R + 28, 4)}, {vr(56, 4)}, {bm}, 0")
        a("s_nop 7")
        for t in T:
            R = 176 + 32 * t
            a(f"v_rcp_f32 v{R + 24}, v{R + 24}")
            a(f"v_rcp_f32 v{R + 28}, v{R + 28}")
        a("s_nop 0")
        for t in T:
            R = 176 + 32 * t
            a(f"v_mul_f32 v{R + 16}, v{R + 16}, v{R + 24}")
            a(f"v_sub_f32 v{R + 17}, 1.0, v{VGB + t}")
            a(f"v_fma_f32 v{R + 16}, v{R + 20}, v{R + 28}, v{R + 16}")
            a(f"v_add_f32 v{R + 16}, {f32bits(1e-6)}, v{R + 16}")
        for t in T:
            a(f"v_rcp_f32 v{176 + 32 * t + 16}, v{176 + 32 * t + 16}")
        a("s_nop 0")
        for t in T:
            R = 176 + 32 * t
            a(f"v_mul_f32 v{R + 16}, v{R + 16}, v{R + 17}")
            a(f"v_mul_f32 v{R + 24}, v{R + 24}, v{R + 16}")
            a(f"v_mul_f32 v{R + 28}, v{R + 28}, v{R + 16}")
        for t in T:
            R = 176 + 32 * t
            for i in range(8): a(f"v_mul_f32 v{R + i}, v{R + i}, v{R + 24}")
            for i in range(8): a(f"v_fma_f32 v{R + i}, v{R + 8 + i}, v{R + 28}, v{R + i}")
        for t in T:
            R = 176 + 32 * t
            for k in range(4):
                a(f"v_cvt_pk_bf16_f32 v{R + 20 + k}, v{R + 2 * k}, v{R + 2 * k + 1}")
            a(f"s_lshl_b32 s6, s{S_QB}, 4")
            a(f"s_lshl_b32 s7, s{S_WV}, 1")
            a("s_add_u32 s6, s6, s7")
            a(f"s_add_u32 s6, s6, {t}")
            a("s_lshl_b32 s6, s6, 10")
            a(f"s_lshl_b32 s7, s{S_H}, 17")
            a("s_add_u32 s6, s6, s7")
            a(f"s_add_u32 s6, s6, {WS_O + 32 * 131072}")
            a(f"buffer_store_dwordx4 {vr(R + 20, 4)}, v{V_LANE16}, {ws}, s6 offen {self.store_mod}")

    def gen(self):
        a = Asm()
        n = self.name
        a("s_cmp_ge_u32 s2, 256")
        a(f"s_cbranch_scc1 {n}_end")
        self.pstamp(a, 0)
        self.body(a, True)
        a.label(f"{n}_end")
        a("s_endpgm")
        a.label(f"{n}_last")
        return kernel_header(n) + a.text() + kernel_desc(n, 256, 256)

    def body(self, a, standalone):
        self.setup(a, standalone)
        self.rest(a)

    def setup(self, a, standalone):
        n = self.name
        ws = f"s[{S_WS}:{S_WS+3}]"
        a("s_load_dwordx2 s[4:5], s[0:1], 80")
        a("s_load_dwordx2 s[34:35], s[0:1], 40")
        if hasattr(self, "entry_extra"): self.entry_extra(a)
        if self.code and standalone:
            first, last, nbytes = self.code
            code_prefetch(a, n, first, last, 8, 240, 242, 90)(-(-nbytes // 32768))
        a("s_and_b32 s3, s2, 7")
        a("s_lshr_b32 s6, s2, 3")
        a(f"s_lshl_b32 s{S_H}, s3, 2")
        a("s_lshr_b32 s7, s6, 3")
        a(f"s_add_u32 s{S_H}, s{S_H}, s7")
        a(f"s_and_b32 s{S_QB}, s6, 7")
        a("v_lshrrev_b32 v2, 6, v0")
        a(f"v_and_b32 v{V_T1}, 63, v0")
        a(f"v_lshlrev_b32 v{V_LANE16}, 4, v{V_T1}")
        a(f"v_readfirstlane_b32 s{S_WV}, v2")
        a("s_waitcnt lgkmcnt(0)")
        ws_shift(a, 4, self.wsbase)
        srd(a, S_WS, 4, 0x10000000 - self.wsbase)
        srd(a, 28, 34, 65536)
        a(f"s_lshl_b32 s3, s{S_H}, 17")
        for S, off in ((S_K, WS_KA), (S_V, WS_VA)):
            a(f"s_add_u32 s6, s3, {off}")
            a(f"s_add_u32 s{S}, s4, s6")
            a(f"s_addc_u32 s{S+1}, s5, 0")
            a(f"s_and_b32 s{S+1}, s{S+1}, 0xffff")
            a(f"s_mov_b32 s{S+2}, 131072")
            a(f"s_mov_b32 s{S+3}, 0x00020000")
        a(f"s_lshl_b32 s{S_WOFF}, s{S_WV}, 11")
        a(f"s_and_b32 s{S_QG}, s{S_WV}, 3")
        a(f"s_lshr_b32 s{S_KH}, s{S_WV}, 2")
        a(f"s_lshl_b32 s6, s{S_KH}, 13")
        a(f"v_add_u32 v{V_RD}, s6, v{V_LANE16}")
        a(f"s_lshl_b32 s6, s{S_QB}, 3")
        a(f"s_lshl_b32 s7, s{S_QG}, 1")
        a("s_add_u32 s6, s6, s7")
        a("s_lshl_b32 s7, s6, 11")
        a(f"s_lshl_b32 s3, s{S_H}, 17")
        a("s_add_u32 s7, s7, s3")
        a(f"s_add_u32 s7, s7, {WS_QA}")
        a(f"s_mov_b32 s{S_MODE}, 0")
        a(f"s_mov_b32 s{S_SOFF}, s{S_WOFF}")

    def rest(self, a):
        n = self.name
        ws = f"s[{S_WS}:{S_WS+3}]"
        if hasattr(self, "pre_loads"): self.pre_loads(a)
        for l in self.dma_piece(0, 0) + self.dma_piece(0, 1): a(l)
        for i in range(4):
            a(f"buffer_load_dwordx4 {vr(VQ + 4 * i, 4)}, v{V_LANE16}, {ws}, s7 offen offset:{i * 1024} {self.hmod}")
        for l in self.dma_piece(0, 2) + self.dma_piece(0, 3): a(l)
        a(f"s_add_u32 s6, s6, s{S_KH}")
        a("s_lshl_b32 s7, s6, 7")
        a(f"s_add_u32 s7, s7, {WS_G}")
        a(f"v_and_b32 v{V_T0}, 31, v{V_T1}")
        a(f"v_lshlrev_b32 v{V_T0}, 2, v{V_T0}")
        a(f"buffer_load_dword v{V_G}, v{V_T0}, {ws}, s7 offen {self.hmod}")
        nbg = 1
        if self.bapply:
            a(f"s_lshl_b32 s6, s{S_H}, 18")
            a(f"s_add_u32 s6, s6, {WS_KVP}")
            a(f"s_add_u32 s{S_KVP}, s4, s6")
            a(f"s_addc_u32 s{S_KVP+1}, s5, 0")
            a(f"s_and_b32 s{S_KVP+1}, s{S_KVP+1}, 0xffff")
            a(f"s_mov_b32 s{S_KVP+2}, {NKVP * KVP_STRIDE}")
            a(f"s_mov_b32 s{S_KVP+3}, 0x00020000")
            a(f"v_lshrrev_b32 v{V_ZOFF}, 4, v{V_T1}")
            a(f"v_lshlrev_b32 v{V_ZOFF}, 4, v{V_ZOFF}")
            for l in self.part_reset(): a(l)
            if not hasattr(self, "deferred_stores"):
                for r in range(8 * self.npb): a(f"v_mov_b32 v{VPT + r}, 0")
        self.nbg = nbg
        self.pstamp(a, 1)
        a(f"v_lshrrev_b32 v{V_T0}, 4, v{V_T1}")
        a(f"v_lshrrev_b32 v{V_T2}, 2, v{V_T1}")
        a(f"v_xor_b32 v{V_T0}, v{V_T0}, v{V_T2}")
        a(f"v_and_b32 v{V_T0}, 1, v{V_T0}")
        a(f"v_mov_b32 v{V_T2}, 0x3f803f80")
        a(f"v_cmp_eq_u32 vcc, 0, v{V_T0}")
        a("s_nop 1")
        a(f"v_cndmask_b32 v{VONE}, 0, v{V_T2}, vcc")
        for r in range(1, 4): a(f"v_mov_b32 v{VONE + r}, v{VONE}")
        if hasattr(self, "early_setup"): self.early_setup(a)
        if hasattr(self, "first_wait"): self.first_wait(a)
        else: a(f"s_waitcnt vmcnt({self.nbg})")
        a(f"s_branch {n}_first")
        a.label(f"{n}_restart")
        a(f"s_mov_b32 s{S_SOFF}, s{S_WOFF}")
        for l in self.dma_stage(0): a(l)
        if self.bapply:
            for l in self.part_reset(): a(l)
            for r in range(8 * self.npb): a(f"v_mov_b32 v{VPT + r}, 0")
        a("s_waitcnt vmcnt(0)")
        a.label(f"{n}_first")
        for r in range(32): a(f"v_mov_b32 v{VO + r}, 0")
        for r in range(8): a(f"v_mov_b32 v{VL + r}, 0")
        for r in range(8): a(f"v_mov_b32 v{VP + r}, 0")
        for r in range(4): a(f"v_mov_b32 v{VVF + 8 + 4 + r}, 0")
        a("s_barrier")
        self.pstamp(a, 2)
        for l in self.dma_piece(1, 0) + self.dma_piece(1, 1): a(l)
        if hasattr(self, "deferred_stores"): self.deferred_stores(a)
        if self.bapply and not hasattr(self, "switch_code"):
            a(f"s_cmp_lg_u32 s{S_MODE}, 0")
            a(f"s_cbranch_scc1 {n}_nobl")
            self.b_loads(a)
            a.label(f"{n}_nobl")
        a(f"s_cmp_lg_u32 s{S_MODE}, 0")
        a(f"s_cbranch_scc1 {n}_havemax")
        a(f"ds_read_b128 {vr(VKF, 4)}, v{V_LANE16}")
        a(f"ds_read_b128 {vr(VKF + 4, 4)}, v{V_LANE16} offset:1024")
        a("s_waitcnt lgkmcnt(0)")
        for qt in range(2):
            s = VS + 16 * qt
            a(f"v_mfma_f32_32x32x16_bf16 {vr(s, 16)}, {vr(VKF, 4)}, {vr(VQ + 8 * qt, 4)}, 0")
            a(f"v_mfma_f32_32x32x16_bf16 {vr(s, 16)}, {vr(VKF + 4, 4)}, {vr(VQ + 8 * qt + 4, 4)}, {vr(s, 16)}")
        a("s_nop 15")
        for qt in range(2):
            s, x = VS + 16 * qt, V_T0 + 2 * qt
            a(f"v_max3_f32 v{x}, v{s}, v{s + 1}, v{s + 2}")
            for r in range(3, 15, 2):
                a(f"v_max3_f32 v{x}, v{x}, v{s + r}, v{s + r + 1}")
            a(f"v_max_f32 v{x}, v{x}, v{s + 15}")
        for qt in range(2):
            x = V_T0 + 2 * qt
            self.halfmax(a, x, V_T3)
            a(f"v_add_f32 v{x}, {f32bits(self.margin)}, v{x}")
            a(f"v_sub_f32 v{VC + 16 * qt}, 0, v{x}")
            for r in range(1, 16): a(f"v_mov_b32 v{VC + 16 * qt + r}, v{VC + 16 * qt}")
        a.label(f"{n}_havemax")
        for l in self.rdK(0) + self.rdV(0): a(l)
        a("s_waitcnt lgkmcnt(0)")
        a(f"v_mfma_f32_32x32x16_bf16 {vr(VS, 16)}, {vr(VKF, 4)}, {vr(VQ, 4)}, {vr(VC, 16)}")
        a(f"v_mfma_f32_32x32x16_bf16 {vr(VS, 16)}, {vr(VKF + 4, 4)}, {vr(VQ + 4, 4)}, {vr(VS, 16)}")
        a("s_nop 7")
        a(f"s_mov_b32 s{S_CNT}, {32 // (2 * TPW)}")
        if self.prio:
            a(f"s_cmp_ge_u32 s{S_WV}, 4")
            a(f"s_cbranch_scc0 {n}_noprio")
            a("s_setprio 1")
            a.label(f"{n}_noprio")
        self.pstamp(a, 3)
        a("s_nop 3")
        npeel = getattr(self, "peel", 0)
        for p in range(npeel):
            self.pass_idx = p
            for j in range(2 * TPW):
                for qt in range(2):
                    self.unit(a, j, qt)
        if npeel:
            self.pass_idx = None
            a(f"s_mov_b32 s{S_CNT}, {32 // (2 * TPW) - npeel}")
        a(".p2align 6")
        a.label(f"{n}_loop")
        for j in range(2 * TPW):
            for qt in range(2):
                self.unit(a, j, qt)
        a(f"s_sub_u32 s{S_CNT}, s{S_CNT}, 1")
        a(f"s_cmp_lg_u32 s{S_CNT}, 0")
        a(f"s_cbranch_scc1 {n}_loop")
        a("s_nop 1")
        if self.sched < 5:
            a(f"v_mfma_f32_32x32x16_bf16 {vr(VO + 16, 16)}, {vr(VVF + 8 + 4, 4)}, {vr(VP + 4, 4)}, {vr(VO + 16, 16)}")
            a(f"v_mfma_f32_16x16x32_bf16 {vr(VL + 4, 4)}, {vr(VONE, 4)}, {vr(VP + 4, 4)}, {vr(VL + 4, 4)}")
        if self.prio: a("s_setprio 0")
        self.pstamp(a, 4)
        a("s_waitcnt vmcnt(0) lgkmcnt(0)")
        if self.bapply:
            for l in self.part_add(): a(l)
        a("s_nop 15")
        a(f"s_mov_b32 s3, 0")
        if not self.diag:
            a(f"v_mul_f32 v{V_T0}, {f32bits(256.0)}, v{VL}")
            a(f"v_mul_f32 v{V_T2}, {f32bits(256.0)}, v{VL + 4}")
            a(f"v_mul_f32 v{V_T0}, 0, v{V_T0}")
            a(f"v_fma_f32 v{V_T0}, v{V_T2}, 0, v{V_T0}")
            for r in range(32): a(f"v_fma_f32 v{V_T0}, v{VO + r}, 0, v{V_T0}")
            if self.force_fallback:
                a(f"v_mov_b32 v{V_T0}, 0x7fc00000")
            a(f"v_cmp_u_f32 vcc, v{V_T0}, v{V_T0}")
            a(f"s_or_b32 s3, vcc_lo, vcc_hi")
            a(f"s_cmp_lg_u32 s3, 0")
            a(f"s_cselect_b32 s3, 1, 0")
        a(f"v_mov_b32 v{V_T0}, s3")
        a(f"s_lshl_b32 s6, s{S_WV}, 2")
        a(f"s_add_u32 s6, s6, {LDS_MISC + L_VOTE}")
        a(f"v_mov_b32 v{V_T2}, s6")
        a(f"ds_write_b32 v{V_T2}, v{V_T0}")
        a(f"s_mul_i32 s6, s{S_WV}, {5 * 1024}")
        a(f"s_add_u32 s6, s6, {L_XO}")
        a(f"v_add_u32 v{V_T2}, s6, v{V_LANE16}")
        a(f"s_cmp_eq_u32 s{S_KH}, 0")
        a(f"s_cbranch_scc1 {n}_give1")
        for qt, lab in ((0, ""), (1, f"{n}_give1")):
            if lab: a.label(lab)
            for k in range(4):
                a(f"ds_write_b128 v{V_T2}, {vr(VO + 16 * qt + 4 * k, 4)} offset:{k * 1024}")
            a(f"ds_write_b128 v{V_T2}, {vr(VL + 4 * qt, 4)} offset:4096")
            if qt == 0: a(f"s_branch {n}_gave")
        a.label(f"{n}_gave")
        if self.bapply: self.b_publish(a)
        a("s_waitcnt lgkmcnt(0)")
        a("s_barrier")
        a(f"v_mov_b32 v{V_T0}, {LDS_MISC + L_VOTE}")
        a(f"ds_read_b128 v[216:219], v{V_T0}")
        a(f"ds_read_b128 v[220:223], v{V_T0} offset:16")
        a(f"s_xor_b32 s6, s{S_WV}, 4")
        a(f"s_mul_i32 s6, s6, {5 * 1024}")
        a(f"s_add_u32 s6, s6, {L_XO}")
        a(f"v_add_u32 v{V_T2}, s6, v{V_LANE16}")
        for k in range(4):
            a(f"ds_read_b128 {vr(VS + 4 * k, 4)}, v{V_T2} offset:{k * 1024}")
        a(f"ds_read_b128 {vr(VS + 16, 4)}, v{V_T2} offset:4096")
        a("s_waitcnt lgkmcnt(5)")
        a("v_or3_b32 v216, v216, v217, v218")
        a("v_or3_b32 v216, v216, v219, v220")
        a("v_or3_b32 v216, v216, v221, v222")
        a("v_or_b32 v216, v216, v223")
        a("s_nop 0")
        a("v_readfirstlane_b32 s3, v216")
        a(f"s_sub_u32 s6, 1, s{S_MODE}")
        a("s_and_b32 s3, s3, s6")
        a("s_cmp_eq_u32 s3, 0")
        a(f"s_cbranch_scc1 {n}_fin")
        a("s_waitcnt lgkmcnt(0)")
        a("s_barrier")
        a(f"s_mov_b32 s{S_SOFF}, s{S_WOFF}")
        a(f"s_mov_b32 s{S_CNT}, {64 // TPS}")
        a(f"v_mov_b32 v{V_T0}, 0xff800000")
        a(f"v_mov_b32 v{V_T2}, 0xff800000")
        a.label(f"{n}_maxloop")
        for l in self.dma_stage(0): a(l)
        a("s_waitcnt vmcnt(0)")
        a("s_barrier")
        for j in range(TPS):
            a(f"ds_read_b128 {vr(VKF, 4)}, v{V_LANE16} offset:{j * 2048}")
            a(f"ds_read_b128 {vr(VKF + 4, 4)}, v{V_LANE16} offset:{j * 2048 + 1024}")
            a("s_waitcnt lgkmcnt(0)")
            for qt in range(2):
                s = VS + 16 * qt
                a(f"v_mfma_f32_32x32x16_bf16 {vr(s, 16)}, {vr(VKF, 4)}, {vr(VQ + 8 * qt, 4)}, 0")
                a(f"v_mfma_f32_32x32x16_bf16 {vr(s, 16)}, {vr(VKF + 4, 4)}, {vr(VQ + 8 * qt + 4, 4)}, {vr(s, 16)}")
            a("s_nop 15")
            for qt in range(2):
                s, x = VS + 16 * qt, V_T0 + 2 * qt
                for r in range(0, 16, 2):
                    a(f"v_max3_f32 v{x}, v{x}, v{s + r}, v{s + r + 1}")
        a("s_barrier")
        a(f"s_sub_u32 s{S_CNT}, s{S_CNT}, 1")
        a(f"s_cmp_lg_u32 s{S_CNT}, 0")
        a(f"s_cbranch_scc1 {n}_maxloop")
        for qt in range(2):
            x = V_T0 + 2 * qt
            self.halfmax(a, x, V_T3)
            a(f"v_sub_f32 v{VC + 16 * qt}, 0, v{x}")
            for r in range(1, 16): a(f"v_mov_b32 v{VC + 16 * qt + r}, v{VC + 16 * qt}")
        a(f"s_mov_b32 s{S_MODE}, 1")
        a(f"s_branch {n}_restart")
        a.label(f"{n}_fin")
        if hasattr(self, "after_decision"): self.after_decision(a)
        a(f"s_cmp_eq_u32 s{S_KH}, 0")
        a(f"s_cbranch_scc1 {n}_keep0")
        for r in range(16): a(f"v_mov_b32 v{VO + r}, v{VO + 16 + r}")
        a(f"v_mov_b32 v{VL}, v{VL + 4}")
        a.label(f"{n}_keep0")
        a(f"v_and_b32 v{V_T1}, 63, v0")
        a(f"v_bfe_u32 v{V_T0}, v{V_T1}, 4, 1")
        a(f"v_lshlrev_b32 v{V_T0}, 10, v{V_T0}")
        a(f"v_lshrrev_b32 v{V_T2}, 5, v{V_T1}")
        a(f"v_lshl_add_u32 v{V_T0}, v{V_T2}, 8, v{V_T0}")
        a(f"v_and_b32 v{V_T2}, 15, v{V_T1}")
        a(f"v_lshl_add_u32 v{V_T0}, v{V_T2}, 4, v{V_T0}")
        a("s_waitcnt lgkmcnt(0)")
        a(f"v_add_f32 v{VL}, v{VL}, v{VS + 16}")
        a(f"v_rcp_f32 v{V_T2}, v{VL}")
        for r in range(16): a(f"v_add_f32 v{VO + r}, v{VO + r}, v{VS + r}")
        a(f"v_mul_f32 v{V_T2}, v{V_T2}, v{V_G}")
        for r in range(16): a(f"v_mul_f32 v{VO + r}, v{V_T2}, v{VO + r}")
        for k in range(8): a(f"v_cvt_pk_bf16_f32 v{VS + k}, v{VO + 2 * k}, v{VO + 2 * k + 1}")
        a(f"s_lshl_b32 s6, s{S_QB}, 3")
        a(f"s_lshl_b32 s7, s{S_QG}, 1")
        a("s_add_u32 s6, s6, s7")
        a(f"s_add_u32 s6, s6, s{S_KH}")
        a("s_lshl_b32 s6, s6, 11")
        a(f"s_lshl_b32 s7, s{S_H}, 17")
        a("s_add_u32 s6, s6, s7")
        a(f"s_add_u32 s6, s6, {WS_O}")
        a(f"buffer_store_dwordx4 {vr(VS, 4)}, v{V_T0}, {ws}, s6 offen {self.store_mod}")
        a(f"buffer_store_dwordx4 {vr(VS + 4, 4)}, v{V_T0}, {ws}, s6 offen offset:512 {self.store_mod}")
        self.pstamp(a, 5)
        if self.bapply:
            self.b_apply(a)
        last = 6
        if hasattr(self, "project"):
            self.project(a); last = 9
        if self.prof:
            a("s_waitcnt vmcnt(0)")
            self.pstamp(a, last)
            self.pflush(a, 1, 8, S_WV, ws)
```

```python
from asmlib import *
from layout import *
import k1w, k2d, k23
from k1w import K1w
from k23 import K23, SPIN_LIMIT
from prof import Prof

F1, F2 = WS_FLAG + (32 << 10), WS_FLAG + (36 << 10)
S_DBG1 = 84
S_OWN, S_DEF = 95, 50
L_CNT = 163840 - 64
LDS_ALL = 163840

class Phase1(K1w):
    STAMP = {2: 1, 3: 2, 5: 3}
    STAMP_START = {8: 1, 9: 2, 1: 3, 2: 4}
    def pstamp(self, a, idx, vreg=None):
        m = self.STAMP_START if getattr(self, "startprof", False) else self.STAMP
        if idx in m: Prof.pstamp(self, a, m[idx], vreg)
    def clear_flags(self, a):
        n = self.name
        ws = f"s[{k1w.S_WS}:{k1w.S_WS+3}]"
        a(f"s_cmp_lg_u32 s{k1w.S_WV}, 4")
        a(f"s_cbranch_scc1 {n}_noflag")
        a("s_and_b32 s3, s2, 7")
        a("s_lshr_b32 s4, s2, 3")
        a("s_lshl_b32 s3, s3, 2")
        a("s_lshr_b32 s5, s4, 3")
        a("s_add_u32 s3, s3, s5")
        a("s_and_b32 s4, s4, 7")
        a("s_lshl_b32 s4, s4, 12")
        a("s_lshl_b32 s3, s3, 2")
        a("s_add_u32 s3, s3, s4")
        a(f"s_add_u32 s3, s3, {WS_FLAG}")
        a(f"s_lshl_b32 s4, s{k1w.S_HP}, 7")
        a(f"s_lshl_b32 s5, s{k1w.S_MT}, 2")
        a("s_add_u32 s4, s4, s5")
        a(f"s_add_u32 s5, s4, {F1}")
        a(f"s_add_u32 s4, s4, {F2}")
        a("v_mov_b32 v20, s3")
        a("v_writelane_b32 v20, s5, 1")
        a("v_writelane_b32 v20, s4, 2")
        a("s_add_u32 s3, s3, 128")
        a("v_writelane_b32 v20, s3, 3")
        a("v_mov_b32 v21, 0")
        a("s_mov_b64 exec, 15")
        a(f"buffer_store_dword v21, v20, {ws}, 0 offen sc1")
        a("s_mov_b64 exec, -1")
        a.label(f"{n}_noflag")
    def unit_extra(self, u):
        n = self.name
        p = 100
        dsc = [f"s_mov_b32 s{S_DBG1}, s{p}", f"s_and_b32 s{S_DBG1+1}, s{p+1}, 0xffff", f"s_mov_b32 s{S_DBG1+2}, 256", f"s_mov_b32 s{S_DBG1+3}, 0x00020000"]
        if u == 11:
            return ["s_waitcnt vmcnt(0)"]
        if u == 12:
            return ([f"s_cmp_lg_u32 s{k1w.S_WV}, 4", f"s_cbranch_scc1 {n}_nocnt", "s_waitcnt lgkmcnt(0)"] + dsc +
                    ["s_and_b32 s3, s2, 7", "s_lshl_b32 s3, s3, 5", "s_mov_b64 exec, 1", "v_mov_b32 v20, s3", "v_mov_b32 v21, 1",
                     f"buffer_atomic_add v21, v20, s[{S_DBG1}:{S_DBG1+3}], 0 offen", "s_mov_b64 exec, -1", f"{n}_nocnt:"])
        if u == 26:
            return ([f"s_cmp_lg_u32 s{k1w.S_WV}, 5", f"s_cbranch_scc1 {n}_nochk", "s_waitcnt lgkmcnt(0)"] + dsc +
                    ["s_mov_b64 exec, 0xff", "v_and_b32 v20, 7, v0", "v_lshlrev_b32 v20, 5, v20", f"s_mov_b32 s3, {SPIN_LIMIT}",
                     f"{n}_clr:", f"buffer_load_dword v21, v20, s[{S_DBG1}:{S_DBG1+3}], 0 offen sc1", "s_waitcnt vmcnt(0)",
                     "v_cmp_le_u32 vcc, 32, v21", "s_sub_u32 s3, s3, 1", "s_cmp_eq_u32 s3, 0", f"s_cbranch_scc1 {n}_clrdone",
                     "s_cmp_eq_u64 vcc, exec", f"s_cbranch_scc1 {n}_clrdone", "s_sleep 2", f"s_branch {n}_clr",
                     f"{n}_clrdone:", "s_mov_b64 exec, -1", f"{n}_nochk:"])
        return []
    def keep_owner(self, a):
        a(f"s_lshl_b32 s{S_OWN}, s{k1w.S_HP}, 7")
        a(f"s_lshl_b32 s3, s{k1w.S_MT}, 2")
        a(f"s_add_u32 s{S_OWN}, s{S_OWN}, s3")
    def before_drain_A(self, a):
        self.keep_owner(a)
        self.owner.setup(a, False)
    def after_E2_B(self, a):
        self.keep_owner(a)
        self.owner.setup(a, False)
    def start_extra(self, a):
        a(f"v_mov_b32 v20, {L_CNT}")
        a("v_mov_b32 v21, 0")
        a("ds_write_b32 v20, v21")
    def after_drain_A(self, a):
        n = self.name
        a("s_mov_b64 exec, 1")
        a(f"v_mov_b32 v20, {L_CNT}")
        a("v_mov_b32 v21, 1")
        a("ds_add_rtn_u32 v21, v20, v21")
        a("s_waitcnt lgkmcnt(0)")
        a("v_readfirstlane_b32 s3, v21")
        a("s_cmp_lg_u32 s3, 3")
        a(f"s_cbranch_scc1 {n}_nof1")
        a(f"s_add_u32 s3, s{S_OWN}, {F1}")
        a("v_mov_b32 v20, 0")
        a("v_mov_b32 v21, 1")
        a(f"buffer_store_dword v21, v20, s[{k2d.S_WS}:{k2d.S_WS+3}], s3 offen sc1")
        a.label(f"{n}_nof1")
        a("s_mov_b64 exec, -1")
    def after_E2_A(self, a):
        n = self.name
        a(f"s_cmp_lg_u32 s{k2d.S_WV}, 0")
        a(f"s_cbranch_scc1 {n}_w1")
        self.owner.poll_pair(a, F1, "f1")
        a.label(f"{n}_w1")

class KAll(K23):
    STAMP = {1: 5, 2: 6, 3: 7, 4: 8, 5: 9, 6: 10, 7: 11, 8: 12, 9: 13}
    def __init__(self, name, k1=None, hmod="sc1", acquire=False, startprof=False, **kw):
        super().__init__(name, **kw)
        self.hmod, self.acquire = hmod, acquire
        self.p1 = Phase1(name + "_p1", prof=self.prof, **(k1 or {}))
        self.peel, self.pass_idx = 2, None
        self.p1.owner = self
        self.p1.startprof = startprof
        if startprof: self.STAMP = {4: 8, 9: 13}
        self.p1.defer = True
        self.npb = 3
    def pstamp(self, a, idx, vreg=None):
        if idx == 0: Prof.pstamp(self, a, 0, vreg)
        elif idx in self.STAMP: Prof.pstamp(self, a, self.STAMP[idx], vreg)

    def spin(self, a, tag, load, check):
        n = self.name
        a(f"s_mov_b32 s36, {SPIN_LIMIT}")
        a.label(f"{n}_{tag}")
        for l in load: a(l)
        a("s_waitcnt vmcnt(0)")
        for l in check: a(l)
        a("s_sub_u32 s36, s36, 1")
        a("s_cmp_eq_u32 s36, 0")
        a(f"s_cbranch_scc1 {n}_{tag}_done")
        a("s_cmp_eq_u64 vcc, exec")
        a(f"s_cbranch_scc1 {n}_{tag}_done")
        a(f"s_sleep {self.sleep}")
        a(f"s_branch {n}_{tag}")
        a.label(f"{n}_{tag}_done")

    def line_of_pair(self, base):
        return [f"s_lshr_b32 s37, s{k2d.S_H}, 1", "s_lshl_b32 s37, s37, 7", f"s_add_u32 s37, s37, {base}"]

    def poll_pair(self, a, base, tag):
        ws = f"s[{k2d.S_WS}:{k2d.S_WS+3}]"
        for l in self.line_of_pair(base): a(l)
        a("s_mov_b64 exec, 0xffff")
        a("v_and_b32 v216, 15, v0")
        a("v_lshlrev_b32 v216, 2, v216")
        self.spin(a, tag, [f"buffer_load_dword v217, v216, {ws}, s37 offen sc1"], ["v_cmp_eq_u32 vcc, 1, v217"])
        a("s_mov_b64 exec, -1")

    def pre_loads(self, a):
        a("s_barrier")
        if not self.p1.startprof: Prof.pstamp(self, a, 4)

    def deferred_list(self):
        ws, sm = f"s[{k2d.S_WS}:{k2d.S_WS+3}]", self.store_mod
        r = [f"buffer_store_dwordx4 {vr(224 + 4 * tk, 4)}, v{k2d.V_LANE16}, {ws}, s92 offen offset:{tk * 1024} {sm}" for tk in range(4)]
        for ft in range(2):
            for dt in range(2):
                r.append(f"buffer_store_dwordx4 {vr(192 + (ft * 3 + dt) * 4, 4)}, v{k2d.V_LANE16}, {ws}, s93 offen offset:{(ft * 2 + dt) * 1024} {sm}")
            r.append(f"buffer_store_dwordx4 {vr(192 + (ft * 3 + 2) * 4, 4)}, v{k2d.V_ZOFF}, {ws}, s94 offen offset:{ft * 64} {sm}")
        return r

    def deferred_stores(self, a):
        a(f"s_lshr_b32 s{S_DEF}, s{k2d.S_WV}, 2")
        a(f"s_cmp_lg_u32 s{k2d.S_MODE}, 0")
        a(f"s_cselect_b32 s{S_DEF}, 0, s{S_DEF}")

    def unit_hook(self, j, qt):
        u = 2 * j + qt
        if u >= 5 or self.pass_idx != 0: return []
        n = self.name
        return [f"s_cmp_eq_u32 s{S_DEF}, 0", f"s_cbranch_scc1 {n}_ds{u}"] + self.deferred_list()[2 * u:2 * u + 2] + [f"{n}_ds{u}:"]

    def first_wait(self, a):
        a(f"s_waitcnt vmcnt({2 if self.warm_out else 1})")

    def raise_f2(self):
        n = self.name
        return [f"s_add_u32 s36, s{S_OWN}, {F2}", "s_mov_b64 exec, 1", "v_mov_b32 v216, 0", "v_mov_b32 v217, 1",
                f"buffer_store_dword v217, v216, s[{k2d.S_WS}:{k2d.S_WS+3}], s36 offen sc1", "s_mov_b64 exec, -1"]

    def switch_code(self, j):
        n = self.name
        first = j == k2d.TPW - 1
        if self.pass_idx == 0 and first:
            return [f"s_cmp_eq_u32 s{S_DEF}, 0", f"s_cbranch_scc1 {n}_sw1a", "s_waitcnt vmcnt(8)", f"s_branch {n}_sw1b",
                    f"{n}_sw1a:", "s_waitcnt vmcnt(0)", f"{n}_sw1b:", "s_barrier"] + self.touch_lines()
        if self.pass_idx == 0:
            return ["s_waitcnt vmcnt(0)", "s_barrier"] + self.wave0_only("r2", self.raise_f2()) + self.touch_lines()
        if self.pass_idx == 1 and first:
            return ["s_waitcnt vmcnt(0)"] + self.first_iter_pre() + ["s_barrier"] + self.first_iter_post() + self.part_loads() + self.touch_lines()
        return ["s_waitcnt vmcnt(0)", "s_barrier"] + self.part_add() + self.part_loads() + self.touch_lines()

    def wave0_only(self, tag, lines):
        n = self.name
        return [f"s_cmp_lg_u32 s{k2d.S_WV}, 0", f"s_cbranch_scc1 {n}_{tag}"] + lines + [f"{n}_{tag}:"]
    def first_only(self, tag, wave0, lines):
        return self.wave0_only(tag, lines) if wave0 else lines
    def first_iter_issue(self):
        ws = f"s[{k2d.S_WS}:{k2d.S_WS+3}]"
        return self.first_only("i2", True, self.line_of_pair(F2) + ["v_and_b32 v216, 15, v0", "v_lshlrev_b32 v216, 2, v216",
                               f"buffer_load_dword v217, v216, {ws}, s37 offen sc1"])
    def first_iter_pre(self):
        n = self.name
        ws = f"s[{k2d.S_WS}:{k2d.S_WS+3}]"
        return self.first_only("c2", True, [f"s_mov_b32 s36, {SPIN_LIMIT}", f"{n}_c2l:", "v_cmp_eq_u32 vcc, 1, v217",
                                "s_sub_u32 s36, s36, 1", "s_cmp_eq_u32 s36, 0", f"s_cbranch_scc1 {n}_c2",
                                "s_cmp_eq_u64 vcc, exec", f"s_cbranch_scc1 {n}_c2",
                                f"buffer_load_dword v217, v216, {ws}, s37 offen sc1", "s_waitcnt vmcnt(0)", f"s_branch {n}_c2l"])
    def first_iter_post(self):
        b = Asm()
        self.b_loads(b)
        return self.first_only("b2", False, [l.strip() for l in b.lines])

    def gen(self):
        a = Asm()
        n = self.name
        a("s_cmp_ge_u32 s2, 256")
        a(f"s_cbranch_scc1 {n}_end")
        self.pstamp(a, 0)
        p1 = self.p1
        a("s_load_dwordx2 s[100:101], s[0:1], 72")
        if self.code:
            first, last, nbytes = self.code
            code_prefetch(a, n, first, last, 8, 252, 254, 90)(-(-nbytes // 32768))
        p1.body(a)
        self.rest(a)
        a.label(f"{n}_end")
        a("s_endpgm")
        a.label(f"{n}_last")
        return kernel_header(n) + a.text() + kernel_desc(n, 256, 256)
```

```python
from asmlib import *
from layout import *
from prof import Prof

XST, NX = 16384, 3
WRING, WSL, NW = 49152, 24576, 4
L_WP = WRING + NW * WSL
LDS_K1 = 163840
ACC = 64
def acc(sg, ft, tk): return ACC + ((sg * 2 + ft) * 4 + tk) * 4
FR = 160
def fX(p, tk): return FR + p * 40 + tk * 4
def fW(p, sg, ft): return FR + p * 40 + 16 + (sg * 2 + ft) * 4
V_XO, V_WO, V_XR, V_WR, V_WR2, V_PF = 1, 5, 12, 14, 16, 18
S_X, S_W, S_WS, S_WP, S_GW = 8, 12, 16, 60, 64
S_MT, S_HP, S_WV, S_SOX, S_SOW, S_W4K, S_W6K, S_TH, S_HH, S_BR, S_HD, S_ST = range(20, 32)
S_PF, S_PFO, S_PFS, S_TOK = 72, 76, 77, 78

class K1w(Prof):
    V_PROF = 250
    def __init__(self, name, prof=False, store_mod="sc1", code=None, rd_slots=None, pf=True, pf_per_unit=2, epi=True, pfwo=True, wsbase=0, prio=0, pf_first=4, dma_gap=2, split_dma=False, pf_start=0, gate_unit=None, hold=0, m32=False, pfwo_unit=14, diag=()):
        self.name, self.prof, self.store_mod, self.code = name, prof, store_mod, code
        self.pf_first, self.dma_gap, self.split_dma = pf_first, dma_gap, split_dma
        self.defer = False
        self.pf_start = pf_start
        self.gate_unit = gate_unit
        self.m32 = m32
        self.diag = set(diag)
        self.pfwo_unit = pfwo_unit
        self.hold = hold
        self.rd_slots = rd_slots or [1 + (i * 22) // 16 for i in range(16)]
        self.pf, self.pf_per_unit, self.epi, self.pfwo, self.wsbase, self.prio = pf, pf_per_unit, epi, pfwo, wsbase, prio

    def mfmas(self, p):
        if self.m32:
            out = []
            for k2 in range(2):
                for tt in range(2):
                    for sg in range(3):
                        d = vr(ACC + (tt * 3 + sg) * 16, 16)
                        out += [f"v_mfma_f32_32x32x16_bf16 {d}, {vr(fW(p, sg, k2), 4)}, {vr(fX(p, tt * 2 + k2), 4)}, {d}", "s_nop 0"]
            return out
        out = []
        for tk in range(4):
            for sg in range(3):
                for ft in range(2):
                    d = vr(acc(sg, ft, tk), 4)
                    x, w = vr(fX(p, tk), 4), vr(fW(p, sg, ft), 4)
                    a, b = (x, w) if sg == 2 else (w, x)
                    out.append(f"v_mfma_f32_16x16x32_bf16 {d}, {a}, {b}, {d}")
        return out

    def rd(self, p, u):
        xo = ((u >> 1) % NX) * XST
        xs = [f"ds_read_b128 {vr(fX(p, tk), 4)}, v{V_XR + (u & 1)} offset:{xo + tk * 2048}" for tk in range(4)]
        slot = u % NW
        base = V_WR if slot < 2 else V_WR2
        w = [f"ds_read_b64_tr_b16 {vr(fW(p, sg, ft) + 2 * q, 2)}, v{base + ft} offset:{(slot & 1) * WSL + sg * 4096 + q * 512}"
             for sg in range(3) for ft in range(2) for q in range(2)]
        return [xs[0]] + w + xs[1:]

    def dmaW(self, uw):
        r = [f"s_add_u32 m0, s{S_W6K}, {WRING + (uw % NW) * WSL}", f"s_mov_b32 s{S_SOW}, {uw * 32 * 6144}"]
        for j in range(6):
            if j == 4: r += [f"s_add_u32 m0, s{S_W6K}, {WRING + (uw % NW) * WSL + 4096}", "s_nop 0"]
            r.append(f"buffer_load_dwordx4 v{V_WO + j}, s[{S_W}:{S_W+3}], s{S_SOW} offen offset:{(j & 3) * 1024} lds")
        return r
    def dmaX(self, sx, half):
        r = [f"s_add_u32 m0, s{S_W4K}, {(sx % NX) * XST + half * 2048}", f"s_mov_b32 s{S_SOX}, {sx * 128}"]
        for n in range(2):
            r.append(f"buffer_load_dwordx4 v{V_XO + half * 2 + n}, s[{S_X}:{S_X+3}], s{S_SOX} offen offset:{n * 1024} lds")
        return r
    def group(self, v):
        g, n = [], 0
        if 0 <= v + 3 < 32: g += self.dmaW(v + 3); n += 6
        if 0 <= v // 2 + 2 < 16: g += self.dmaX(v // 2 + 2, v & 1); n += 2
        return g, n
    def pf_load(self):
        return [f"buffer_load_dwordx4 v[{244}:{247}], v{V_PF}, s[{S_PF}:{S_PF+3}], s{S_PFO} offen", f"s_add_u32 s{S_PFO}, s{S_PFO}, s{S_PFS}"]

    def role_block(self, a, tag, stager, other):
        n = self.name
        if not stager and not other: return []
        r = [f"s_cmp_lg_u32 s{S_ST}, 0"]
        if other:
            r += [f"s_cbranch_scc0 {n}_{tag}_o"] + stager + [f"s_branch {n}_{tag}_e", f"{n}_{tag}_o:"] + other + [f"{n}_{tag}_e:"]
        else:
            r += [f"s_cbranch_scc0 {n}_{tag}_e"] + stager + [f"{n}_{tag}_e:"]
        return r

    def main_loop(self, a, extra_first):
        size = lambda v: self.group(v)[1]
        npf_left = self.npf
        for u in range(32):
            a("s_waitcnt lgkmcnt(0)")
            fill = []
            if u < 31:
                v = u + 1
                allowed = size(v - 2) + size(v - 1) + (extra_first if v <= 2 else 0) if v >= 2 else 8 + size(0) + extra_first
                fill.append((0, self.role_block(a, f"w{u}", [f"s_waitcnt vmcnt({allowed})"], []) + ["s_barrier"]))
                for i, r in enumerate(self.rd((u + 1) & 1, u + 1)):
                    fill.append((self.rd_slots[i], [r]))
                g, n = self.group(v)
                k = min(self.pf_per_unit, npf_left); npf_left -= k
                other = [l for _ in range(k) for l in self.pf_load()]
                if u == self.gate_unit:
                    issued = (0 if self.hold else self.npf_first) + (self.npf - npf_left)
                    other = other + self.gate_lines(min(issued + 1, 63))
                if self.pfwo and self.pfwo_unit is not None and u in (self.pfwo_unit, self.pfwo_unit + 2):
                    other = other + self.pfwo_lines(0 if u == self.pfwo_unit else 1)
                other = other + self.unit_extra(u)
                if self.split_dma and g:
                    cut = next((i for i, l in enumerate(g) if f"s{S_W4K}" in l), len(g))
                    fill.append((self.dma_gap, self.role_block(a, f"d{u}", g[:cut], other)))
                    fill.append((self.dma_gap + 10, self.role_block(a, f"e{u}", g[cut:], [])))
                else:
                    fill.append((self.dma_gap, self.role_block(a, f"d{u}", g, other)))
            seq = interleave(self.mfmas(u & 1), fill)
            D = self.diag
            if "nodma" in D: seq = [l for l in seq if not (l.startswith("buffer_load") and l.endswith("lds")) and not l.startswith("s_waitcnt vm")]
            if "nordw" in D: seq = [l for l in seq if not l.startswith("ds_read_b64_tr")]
            if "nordx" in D: seq = [l for l in seq if not l.startswith("ds_read_b128")]
            if "nobar" in D: seq = [l for l in seq if not l.startswith("s_barrier")]
            for l in seq: a(l)

    def gen(self):
        a = Asm()
        n = self.name
        a("s_cmp_ge_u32 s2, 256")
        a(f"s_cbranch_scc1 {n}_end")
        self.pstamp(a, 0)
        if self.code:
            first, last, nbytes = self.code
            code_prefetch(a, n, first, last, 8, 252, 254, 90)(-(-nbytes // 32768))
        self.body(a)
        if self.prof:
            self.pstamp(a, 6)
            a("s_waitcnt vmcnt(0)")
            self.pstamp(a, 7)
            self.pflush(a, 0, 8, S_WV, f"s[{S_WS}:{S_WS+3}]")
        a.label(f"{n}_end")
        a("s_endpgm")
        a.label(f"{n}_last")
        return kernel_header(n) + a.text() + kernel_desc(n, 256, 256)

    def body(self, a):
        n = self.name
        a("s_load_dwordx4 s[44:47], s[0:1], 0")
        a("s_load_dwordx2 s[48:49], s[0:1], 32")
        a("s_load_dwordx2 s[52:53], s[0:1], 80")
        a("s_load_dwordx2 s[56:57], s[0:1], 40")
        a("s_load_dwordx2 s[58:59], s[0:1], 56")
        a("s_load_dwordx2 s[32:33], s[0:1], 16")
        a("s_load_dwordx2 s[34:35], s[0:1], 48")
        a("s_and_b32 s3, s2, 7")
        a("s_lshr_b32 s4, s2, 3")
        a("s_and_b32 s5, s3, 1")
        a("s_lshl_b32 s5, s5, 3")
        a("s_and_b32 s6, s4, 7")
        a(f"s_add_u32 s{S_MT}, s5, s6")
        a("s_lshr_b32 s5, s3, 1")
        a("s_lshl_b32 s5, s5, 2")
        a("s_lshr_b32 s6, s4, 3")
        a(f"s_add_u32 s{S_HP}, s5, s6")
        a("v_lshrrev_b32 v20, 6, v0")
        a("v_and_b32 v19, 63, v0")
        a("v_lshrrev_b32 v21, 3, v19")
        a(f"v_readfirstlane_b32 s{S_WV}, v20")
        a("v_and_b32 v22, 7, v19")
        a("v_lshrrev_b32 v23, 4, v19")
        a(f"s_and_b32 s{S_TH}, s{S_WV}, 1")
        a(f"s_bfe_u32 s{S_HH}, s{S_WV}, 0x10001")
        a(f"s_lshr_b32 s{S_BR}, s{S_WV}, 2")
        a(f"s_xor_b32 s{S_ST}, s{S_BR}, 1")
        a(f"s_and_b32 s7, s{S_WV}, 3")
        a(f"s_lshl_b32 s{S_HD}, s{S_HP}, 1")
        a(f"s_add_u32 s{S_HD}, s{S_HD}, s{S_HH}")
        a(f"s_lshl_b32 s3, s{S_MT}, 7")
        a("s_lshl_b32 s4, s7, 5")
        a("s_add_u32 s3, s3, s4")
        a("v_add_u32 v24, s3, v21")
        a("v_lshlrev_b32 v24, 11, v24")
        a("v_xor_b32 v25, v22, v23")
        a("v_xor_b32 v26, 4, v25")
        a("v_lshl_add_u32 v25, v25, 4, v24")
        a("v_lshl_add_u32 v26, v26, 4, v24")
        for nn in range(4):
            a(f"v_add_u32 v{V_XO + nn}, {nn * 16384 - (nn & 1) * 1024}, v{25 if nn % 2 == 0 else 26}")
        a("v_and_b32 v25, 1, v23")
        a("v_lshlrev_b32 v25, 1, v25")
        a("v_xor_b32 v25, v25, v22")
        a("s_mov_b32 s3, 6144")
        a("v_mul_lo_u32 v26, v21, s3")
        a(f"s_lshl_b32 s4, s{S_HP}, 7")
        a("v_add_u32 v26, s4, v26")
        a("v_lshl_add_u32 v28, v25, 4, v26")
        a("v_xor_b32 v27, 4, v25")
        a("v_lshl_add_u32 v27, v27, 4, v26")
        a("s_and_b32 s5, s7, 1")
        a("s_cmp_eq_u32 s5, 0")
        for j in range(6):
            off = [((6 * par + j) >> 2) * 2048 + ((6 * par + j) & 3) * 8 * 6144 - (j & 3) * 1024 for par in range(2)]
            a(f"s_mov_b32 s3, {off[1]}")
            a(f"s_cselect_b32 s3, {off[0]}, s3")
            a(f"v_add_u32 v{V_WO + j}, s3, v{28 if j % 2 == 0 else 27}")
        a(f"s_lshl_b32 s{S_W4K}, s7, 12")
        a(f"s_mul_i32 s{S_W6K}, s7, 6144")
        self.pstamp(a, 8)
        a("s_waitcnt lgkmcnt(0)")
        self.pstamp(a, 9)
        srd(a, S_X, 44, 2048 * 2048)
        a("s_cmp_lt_u32 s7, 2")
        a("s_cselect_b32 s4, s46, s48")
        a("s_cselect_b32 s5, s47, s49")
        srd(a, S_W, 4, 1024 * 6144)
        ws_shift(a, 52, self.wsbase)
        srd(a, S_WS, 52, 0x10000000 - self.wsbase)
        pro = self.dmaX(0, 0) + self.dmaW(0) + self.dmaX(0, 1) + self.dmaW(1) + self.dmaX(1, 0) + self.dmaW(2) + self.dmaX(1, 1)
        a(f"s_cmp_lg_u32 s{S_ST}, 0")
        a(f"s_cbranch_scc0 {n}_side")
        if self.hold: a("s_barrier")
        for l in pro: a(l)
        self.pf_setup(a)
        a(f"s_branch {n}_joined")
        a.label(f"{n}_side")
        self.side(a)
        a.label(f"{n}_joined")
        self.pstamp(a, 1)
        self.start_extra(a)
        self.addr_reads(a)
        for r in range(96): a(f"v_mov_b32 v{ACC + r}, 0")
        early = self.gate_unit is None
        for l in self.role_block(a, "b0", ["s_waitcnt vmcnt(16)"], self.gate_lines(1 if self.hold else self.npf_first + 1) if early else []): a(l)
        a("s_barrier")
        self.pstamp(a, 2)
        for l in self.rd(0, 0): a(l)
        g, _ = self.group(0)
        for l in self.role_block(a, "g0", g, []): a(l)
        if self.prio:
            a(f"s_cmp_lg_u32 s{S_ST}, 0")
            a(f"s_cbranch_scc{1 if self.prio == 1 else 0} {n}_np")
            a("s_setprio 1")
            a.label(f"{n}_np")
        self.main_loop(a, 0)
        if self.prio: a("s_setprio 0")
        self.pstamp(a, 3)
        if self.epi: self.epilogue(a)

    def addr_reads(self, a):
        a("v_and_b32 v20, 15, v19")
        a("v_lshlrev_b32 v20, 7, v20")
        a(f"s_lshl_b32 s3, s{S_TH}, 13")
        a("v_add_u32 v20, s3, v20")
        a("v_lshrrev_b32 v21, 4, v19")
        a("v_bfe_u32 v22, v19, 1, 3")
        for k2 in range(2):
            a(f"v_add_u32 v23, {4 * k2}, v21")
            a("v_xor_b32 v23, v23, v22")
            a(f"v_lshl_add_u32 v{V_XR + k2}, v23, 4, v20")
        a("v_bfe_u32 v22, v19, 2, 2")
        a("v_lshl_add_u32 v23, v21, 3, v22")
        a("v_lshlrev_b32 v23, 7, v23")
        a("v_and_b32 v24, 1, v19")
        a("v_lshl_add_u32 v23, v24, 3, v23")
        a("v_bfe_u32 v24, v19, 1, 1")
        a(f"s_lshl_b32 s3, s{S_HH}, 2")
        a("v_add_u32 v24, s3, v24")
        a("v_and_b32 v25, 2, v22")
        a("v_bfe_u32 v26, v19, 4, 1")
        a("v_lshl_or_b32 v25, v26, 2, v25")
        a(f"s_mul_i32 s3, s{S_BR}, 12288")
        a(f"s_add_u32 s3, s3, {WRING}")
        for ft in range(2):
            a(f"v_add_u32 v26, {2 * ft}, v24")
            a("v_xor_b32 v26, v26, v25")
            a("v_lshl_add_u32 v26, v26, 4, v23")
            a(f"v_add_u32 v{V_WR + ft}, s3, v26")
            a(f"v_add_u32 v{V_WR2 + ft}, {2 * WSL}, v{V_WR + ft}")

    def side(self, a):
        n = self.name
        ws = f"s[{S_WS}:{S_WS+3}]"
        srd(a, S_WP, 56, 65536)
        srd(a, S_GW, 58, 2048)
        a(f"s_and_b32 s7, s{S_WV}, 3")
        self.pf_setup(a)
        if self.hold:
            self.npf_first = min(self.pf_first, self.npf)
            for k in range(self.npf_first):
                for l in self.pf_load(): a(l)
            a(f"s_waitcnt vmcnt({self.npf_first - self.hold})")
            a("s_barrier")
        a("v_lshlrev_b32 v20, 5, v19")
        a(f"buffer_load_dwordx4 v[32:35], v20, s[{S_GW}:{S_GW+3}], 0 offen")
        a(f"buffer_load_dwordx4 v[36:39], v20, s[{S_GW}:{S_GW+3}], 0 offen offset:16")
        a(f"s_lshl_b32 s3, s{S_MT}, 7")
        a(f"s_lshl_b32 s4, s{S_HP}, 3")
        a("s_add_u32 s3, s3, s4")
        a("s_lshl_b32 s4, s7, 1")
        a(f"s_add_u32 s{S_TOK}, s3, s4")
        a(f"s_lshl_b32 s3, s{S_TOK}, 11")
        for i in range(2):
            a(f"buffer_load_dwordx4 v[{40+8*i}:{43+8*i}], v20, s[{S_X}:{S_X+3}], s3 offen offset:{i * 2048}")
            a(f"buffer_load_dwordx4 v[{44+8*i}:{47+8*i}], v20, s[{S_X}:{S_X+3}], s3 offen offset:{i * 2048 + 16}")
        a("v_lshlrev_b32 v20, 4, v19")
        a(f"s_lshl_b32 s3, s{S_HP}, 12")
        a("s_lshl_b32 s5, s7, 10")
        a("s_add_u32 s3, s3, s5")
        a(f"s_add_u32 m0, s5, {L_WP}")
        a("s_nop 0")
        a(f"buffer_load_dwordx4 v20, s[{S_WP}:{S_WP+3}], s3 offen lds")
        self.clear_flags(a)
        if not self.hold:
            self.npf_first = min(self.pf_first, self.npf)
            for k in range(self.npf_first):
                for l in self.pf_load(): a(l)
        self.npf -= self.npf_first

    def pf_setup(self, a):
        a(f"s_and_b32 s7, s{S_WV}, 3")
        self.npf = 16 - self.pf_start if self.pf else 0
        if self.pf:
            a("s_mul_i32 s3, s2, 3")
            a("s_add_u32 s3, s3, s7")
            a("s_cmp_ge_u32 s3, 384")
            a("s_cselect_b32 s4, 384, 0")
            a("s_cselect_b32 s80, s48, s46")
            a("s_cselect_b32 s81, s49, s47")
            a("s_sub_u32 s3, s3, s4")
            a("s_lshl_b32 s3, s3, 10")
            a("s_lshl_b32 s4, s2, 14")
            a("s_cmp_eq_u32 s7, 3")
            a("s_cselect_b32 s80, s44, s80")
            a("s_cselect_b32 s81, s45, s81")
            a(f"s_cselect_b32 s{S_PFO}, s4, s3")
            a(f"s_mov_b32 s5, {64 * 6144}")
            a(f"s_cselect_b32 s{S_PFS}, 128, s5")
            a(f"s_mov_b32 s5, {1024 * 6144}")
            a(f"s_cselect_b32 s{S_PF+2}, {2048 * 2048}, s5")
            if self.pf_start:
                a(f"s_mul_i32 s5, s{S_PFS}, {self.pf_start}")
                a(f"s_add_u32 s{S_PFO}, s{S_PFO}, s5")
            a(f"s_mov_b32 s{S_PF}, s80")
            a(f"s_and_b32 s{S_PF+1}, s81, 0xffff")
            a(f"s_mov_b32 s{S_PF+3}, 0x00020000")
            a("v_lshlrev_b32 v20, 4, v19")
            a("v_lshrrev_b32 v21, 3, v19")
            a("v_lshlrev_b32 v21, 11, v21")
            a("v_and_b32 v22, 7, v19")
            a("v_lshl_add_u32 v21, v22, 4, v21")
            a("s_cmp_eq_u32 s7, 3")
            a("s_cselect_b64 vcc, -1, 0")
            a(f"v_cndmask_b32 v{V_PF}, v20, v21, vcc")

    def clear_flags(self, a):
        n = self.name
        a("s_cmp_ge_u32 s2, 8")
        a(f"s_cbranch_scc1 {n}_noflag")
        a(f"s_cmp_lg_u32 s{S_WV}, 4")
        a(f"s_cbranch_scc1 {n}_noflag")
        a("s_lshl_b32 s3, s2, 12")
        a(f"s_add_u32 s3, s3, {WS_FLAG}")
        a("v_lshlrev_b32 v20, 2, v19")
        a("v_mov_b32 v21, 0")
        a(f"buffer_store_dword v21, v20, s[{S_WS}:{S_WS+3}], s3 offen sc1")
        a.label(f"{n}_noflag")
    def unit_extra(self, u): return []

    def gate_lines(self, wait=None):
        b = Asm()
        if wait is not None: b(f"s_waitcnt vmcnt({wait})")
        for i in range(2): b(f"v_mov_b32 v{24 + i}, 0")
        for k in range(8):
            for i in range(2):
                b(f"v_dot2_f32_bf16 v{24 + i}, v{40 + 8 * i + k}, v{32 + k}, v{24 + i}")
        for ctl in ("quad_perm:[1,0,3,2]", "quad_perm:[2,3,0,1]", "row_half_mirror", "row_mirror"):
            b("s_nop 1")
            for i in range(2):
                b(f"v_add_f32_dpp v{24 + i}, v{24 + i}, v{24 + i} {ctl} row_mask:0xf bank_mask:0xf")
        for sw in ("v_permlane16_swap_b32", "v_permlane32_swap_b32"):
            for i in range(2): b(f"v_mov_b32 v{28 + i}, v{24 + i}")
            b("s_nop 1")
            for i in range(2): b(f"{sw} v{24 + i}, v{28 + i}")
            b("s_nop 1")
            for i in range(2): b(f"v_add_f32 v{24 + i}, v{24 + i}, v{28 + i}")
        b("v_and_b32 v28, 1, v19")
        b("v_cmp_eq_u32 vcc, 1, v28")
        b("s_nop 1")
        b("v_cndmask_b32 v24, v24, v25, vcc")
        b(f"v_mul_f32 v24, {f32bits(-LOG2E)}, v24")
        b("v_exp_f32 v24, v24")
        b("s_nop 0")
        b("v_add_f32 v24, 1.0, v24")
        b("v_rcp_f32 v24, v24")
        b("v_lshlrev_b32 v28, 2, v19")
        b(f"s_lshl_b32 s3, s{S_TOK}, 2")
        b(f"s_add_u32 s3, s3, {WS_G}")
        b("s_mov_b64 exec, 3")
        b(f"buffer_store_dword v24, v28, s[{S_WS}:{S_WS+3}], s3 offen {self.store_mod}")
        b("s_mov_b64 exec, -1")
        return [l.strip() for l in b.lines]

    def epilogue(self, a):
        n = self.name
        a("s_waitcnt vmcnt(0)")
        a("s_barrier")
        a(f"s_cmp_lg_u32 s{S_BR}, 0")
        a(f"s_cbranch_scc1 {n}_epiB")
        self.epilogue_A(a)
        a(f"s_branch {n}_epidone")
        a.label(f"{n}_epiB")
        self.epilogue_B(a)
        a.label(f"{n}_epidone")

    @staticmethod
    def pack(b0, b1):
        return [f"v_cvt_pk_bf16_f32 v{b0}, v{b0}, v{b0 + 1}", f"v_cvt_pk_bf16_f32 v{b0 + 1}, v{b0 + 2}, v{b0 + 3}",
                f"v_cvt_pk_bf16_f32 v{b0 + 2}, v{b1}, v{b1 + 1}", f"v_cvt_pk_bf16_f32 v{b0 + 3}, v{b1 + 2}, v{b1 + 3}"]

    def epilogue_A(self, a):
        ws, sm = f"s[{S_WS}:{S_WS+3}]", self.store_mod
        a("v_lshrrev_b32 v21, 4, v19")
        a("v_and_b32 v20, 15, v19")
        a(f"s_lshl_b32 s3, s{S_HD}, 17")
        a(f"s_lshl_b32 s4, s{S_MT}, 2")
        a(f"s_lshl_b32 s5, s{S_TH}, 1")
        a("s_add_u32 s4, s4, s5")
        a("s_lshl_b32 s4, s4, 11")
        a("s_add_u32 s38, s3, s4")
        a(f"s_add_u32 s39, s38, {4 << 20}")
        a(f"s_add_u32 s42, s38, {8 << 20}")
        a("v_lshrrev_b32 v22, 1, v21")
        a("v_lshlrev_b32 v22, 10, v22")
        a("v_and_b32 v24, 1, v21")
        a("v_lshl_add_u32 v22, v24, 9, v22")
        a("v_lshl_add_u32 v17, v20, 4, v22")
        a("v_and_b32 v24, 7, v20")
        a("v_lshrrev_b32 v25, 3, v20")
        a("v_lshl_add_u32 v24, v25, 4, v24")
        a("v_lshl_add_u32 v16, v24, 4, v22")
        c = f32bits(LOG2E / 32 ** 0.5)
        a(f"s_mov_b32 s6, {c}")
        a(f"s_mov_b32 s7, {c}")
        for tk in range(4):
            for l in self.pack(acc(1, 0, tk), acc(1, 1, tk)): a(l)
            a(f"buffer_store_dwordx4 {vr(acc(1, 0, tk), 4)}, v16, {ws}, s39 offen offset:{(tk >> 1) * 2048 + (tk & 1) * 128} {sm}")
        for T in range(2):
            for ft in range(2):
                for l in self.pack(acc(2, ft, 2 * T), acc(2, ft, 2 * T + 1)): a(l)
                a(f"buffer_store_dwordx4 {vr(acc(2, ft, 2 * T), 4)}, v17, {ws}, s42 offen offset:{T * 2048 + ft * 256} {sm}")
        for tk in range(4):
            for ft in range(2):
                for h in (0, 2):
                    a(f"v_pk_mul_f32 {vr(acc(0, ft, tk) + h, 2)}, {vr(acc(0, ft, tk) + h, 2)}, s[6:7]")
            for l in self.pack(acc(0, 0, tk), acc(0, 1, tk)): a(l)
            a(f"buffer_store_dwordx4 {vr(acc(0, 0, tk), 4)}, v17, {ws}, s38 offen offset:{(tk >> 1) * 2048 + (tk & 1) * 256} {sm}")
        self.pstamp(a, 4)
        if self.pfwo and self.pfwo_unit is None: self.prefetch_wo(a)
        self.before_drain_A(a)
        a("s_waitcnt vmcnt(0)")
        self.pstamp(a, 5)
        self.after_drain_A(a)
        a("s_barrier")
        self.after_E2_A(a)

    def before_drain_A(self, a): pass
    def after_drain_A(self, a): pass
    def start_extra(self, a): pass
    def after_E2_A(self, a): pass
    def after_E2_B(self, a): pass

    def pfwo_lines(self, k):
        p = 32 + 2 * k
        return ["s_lshl_b32 s3, s2, 13", f"s_and_b32 s4, s{S_WV}, 3", "s_lshl_b32 s4, s4, 11", "s_add_u32 s3, s3, s4",
                f"s_mov_b32 s84, s{p}", f"s_and_b32 s85, s{p + 1}, 0xffff", "s_mov_b32 s86, 2097152", "s_mov_b32 s87, 0x00020000",
                "v_lshlrev_b32 v20, 4, v19",
                "buffer_load_dwordx4 v[244:247], v20, s[84:87], s3 offen", "buffer_load_dwordx4 v[244:247], v20, s[84:87], s3 offen offset:1024"]

    def prefetch_wo(self, a):
        a("s_load_dwordx2 s[80:81], s[0:1], 16")
        a("s_load_dwordx2 s[82:83], s[0:1], 48")
        a("v_lshlrev_b32 v15, 4, v19")
        a("s_lshl_b32 s3, s2, 13")
        a(f"s_lshl_b32 s4, s{S_WV}, 11")
        a("s_add_u32 s3, s3, s4")
        a("s_waitcnt lgkmcnt(0)")
        for k, p in enumerate((80, 82)):
            srd(a, 84, p, 2097152)
            for i in range(2):
                a(f"buffer_load_dwordx4 v[{160 + 8 * k + 4 * i}:{163 + 8 * k + 4 * i}], v15, s[84:87], s3 offen offset:{i * 1024}")

    def epilogue_B(self, a):
        ws, sm = f"s[{S_WS}:{S_WS+3}]", self.store_mod
        RS = 136
        a("v_lshrrev_b32 v21, 4, v19")
        a("v_and_b32 v20, 15, v19")
        a(f"s_and_b32 s7, s{S_WV}, 3")
        a("v_bfe_u32 v22, v19, 2, 2")
        a("v_lshl_add_u32 v22, v21, 2, v22")
        a(f"v_mul_u32_u24 v23, {RS}, v22")
        a("v_lshlrev_b32 v22, 6, v22")
        a("v_and_b32 v24, 3, v19")
        a("v_lshl_add_u32 v22, v24, 3, v22")
        a(f"s_lshl_b32 s3, s{S_HH}, 11")
        a(f"s_add_u32 s3, s3, {L_WP}")
        a("v_add_u32 v22, s3, v22")
        a(f"s_mul_i32 s3, s7, {64 * RS}")
        a("v_lshl_add_u32 v23, v24, 3, v23")
        a("v_add_u32 v23, s3, v23")
        a(f"v_mul_u32_u24 v18, {RS}, v20")
        a("v_lshl_add_u32 v18, v21, 3, v18")
        a("v_add_u32 v18, s3, v18")
        a("v_lshlrev_b32 v15, 4, v19")
        KB = lambda t: acc(1, 0, t)
        VB = lambda dt, T: acc(2, dt, 2 * T)
        for tk in range(4):
            for l in self.pack(acc(1, 0, tk), acc(1, 1, tk)): a(l)
        for tk in range(4):
            for l in self.pack(acc(0, 0, tk), acc(0, 1, tk)): a(l)
        a(f"s_lshl_b32 s3, s{S_HD}, 17")
        a(f"s_lshl_b32 s4, s{S_MT}, 3")
        a(f"s_lshl_b32 s5, s{S_TH}, 2")
        a("s_add_u32 s4, s4, s5")
        a("s_lshl_b32 s4, s4, 10")
        a("s_add_u32 s43, s3, s4")
        a(f"s_add_u32 s43, s43, {WS_QB}")
        WPF, ONES = 48, 56
        for ft in range(2):
            for q in range(2):
                a(f"ds_read_b64_tr_b16 {vr(WPF + 4 * ft + 2 * q, 2)}, v22 offset:{q * 1024 + ft * 32}")
        a(f"v_mov_b32 v{ONES}, 0x3f803f80")
        for r in range(1, 4): a(f"v_mov_b32 v{ONES + r}, v{ONES}")
        for dt in range(2):
            for T in range(2):
                for l in self.pack(acc(2, dt, 2 * T), acc(2, dt, 2 * T + 1)): a(l)
        l2e = f32bits(LOG2E)
        a(f"s_mov_b32 s36, {l2e}")
        a(f"s_mov_b32 s37, {l2e}")
        a(f"s_mov_b32 s40, {f32bits(-LOG2E)}")
        a(f"s_mov_b32 s41, {f32bits(-LOG2E)}")
        a("s_waitcnt lgkmcnt(0)")
        P = lambda t, i: 160 + 8 * t + i
        EP = lambda t, i: 192 + 8 * t + i
        BP = lambda t: 80 + 4 * t
        BM = lambda t: 112 + 4 * t
        SS = lambda t, sg: (132 + 8 * t) if sg == 0 else (224 + 4 * t)
        mx, mn, tm = (lambda t: 24 + 2 * t), (lambda t: 32 + 2 * t), (lambda t: 40 + t)
        T4 = range(4)
        for t in T4:
            for ft in range(2):
                a(f"v_mfma_f32_16x16x32_bf16 {vr(P(t, 4 * ft), 4)}, {vr(WPF + 4 * ft, 4)}, {vr(KB(t), 4)}, 0")
        stores = [f"buffer_store_dwordx4 {vr(acc(0, 0, tk), 4)}, v15, {ws}, s43 offen offset:{tk * 1024} {sm}" for tk in range(4)]
        a("s_nop 7")
        B = a
        for t in T4:
            B(f"v_max3_f32 v{mx(t)}, v{P(t,0)}, v{P(t,1)}, v{P(t,2)}")
            B(f"v_min3_f32 v{mn(t)}, v{P(t,0)}, v{P(t,1)}, v{P(t,2)}")
        for i in (3, 5):
            for t in T4:
                B(f"v_max3_f32 v{mx(t)}, v{mx(t)}, v{P(t,i)}, v{P(t,i+1)}")
                B(f"v_min3_f32 v{mn(t)}, v{mn(t)}, v{P(t,i)}, v{P(t,i+1)}")
        for t in T4:
            B(f"v_max_f32 v{mx(t)}, v{mx(t)}, v{P(t,7)}")
            B(f"v_min_f32 v{mn(t)}, v{mn(t)}, v{P(t,7)}")
        for t in T4: B(f"v_sub_f32 v{mn(t)}, 0, v{mn(t)}")
        B("s_nop 1")
        for t in T4: B(f"v_permlane32_swap_b32 v{mx(t)}, v{mn(t)}")
        B("s_nop 1")
        for t in T4: B(f"v_max_f32 v{mx(t)}, v{mx(t)}, v{mn(t)}")
        for t in T4: B(f"v_mov_b32 v{tm(t)}, v{mx(t)}")
        B("s_nop 1")
        for t in T4: B(f"v_permlane16_swap_b32 v{mx(t)}, v{tm(t)}")
        B("s_nop 1")
        for t in T4: B(f"v_max_f32 v{mx(t)}, v{mx(t)}, v{tm(t)}")
        for t in T4: B(f"v_mov_b32 v{mn(t)}, v{mx(t)}")
        B("s_nop 1")
        for t in T4: B(f"v_permlane32_swap_b32 v{mx(t)}, v{mn(t)}")
        B("s_nop 1")
        for t in T4:
            B(f"v_mul_f32 v{mx(t)}, s40, v{mx(t)}")
            B(f"v_mul_f32 v{mn(t)}, s40, v{mn(t)}")
        for t in T4:
            for i in range(0, 8, 2):
                B(f"v_pk_fma_f32 {vr(EP(t,i), 2)}, {vr(P(t,i), 2)}, s[36:37], {vr(mx(t), 2)} op_sel_hi:[1,1,0]")
                B(f"v_pk_fma_f32 {vr(P(t,i), 2)}, {vr(P(t,i), 2)}, s[40:41], {vr(mn(t), 2)} op_sel_hi:[1,1,0]")
        for t in T4:
            for i in range(8):
                B(f"v_exp_f32 v{EP(t,i)}, v{EP(t,i)}")
                B(f"v_exp_f32 v{P(t,i)}, v{P(t,i)}")
        B("s_nop 0")
        for t in T4:
            for k in range(4):
                B(f"v_cvt_pk_bf16_f32 v{BP(t) + k}, v{EP(t,2*k)}, v{EP(t,2*k+1)}")
                B(f"v_cvt_pk_bf16_f32 v{BM(t) + k}, v{P(t,2*k)}, v{P(t,2*k+1)}")
        B("s_nop 1")
        for t in T4:
            B(f"v_mfma_f32_16x16x32_bf16 {vr(SS(t, 0), 4)}, {vr(ONES, 4)}, {vr(BP(t), 4)}, 0")
            B(f"v_mfma_f32_16x16x32_bf16 {vr(SS(t, 1), 4)}, {vr(ONES, 4)}, {vr(BM(t), 4)}, 0")
        if not self.defer:
            for st in stores: B(st)
            B("s_nop 3")
        else:
            B("s_nop 7")
        for t in T4:
            B(f"v_rcp_f32 v{SS(t, 0)}, v{SS(t, 0)}")
            B(f"v_rcp_f32 v{SS(t, 1)}, v{SS(t, 1)}")
        B("s_nop 0")
        for t in T4:
            for i in range(0, 8, 2):
                B(f"v_pk_mul_f32 {vr(EP(t,i), 2)}, {vr(EP(t,i), 2)}, {vr(SS(t, 0), 2)} op_sel_hi:[1,0]")
                B(f"v_pk_mul_f32 {vr(P(t,i), 2)}, {vr(P(t,i), 2)}, {vr(SS(t, 1), 2)} op_sel_hi:[1,0]")
        for t in T4:
            for k in range(4):
                B(f"v_cvt_pk_bf16_f32 v{BP(t) + k}, v{EP(t,2*k)}, v{EP(t,2*k+1)}")
                B(f"v_cvt_pk_bf16_f32 v{BM(t) + k}, v{P(t,2*k)}, v{P(t,2*k+1)}")
            row = t * 16 * RS
            for ft in range(2):
                B(f"ds_write_b64 v18, {vr(BP(t) + 2 * ft, 2)} offset:{row + ft * 32}")
                B(f"ds_write_b64 v18, {vr(BM(t) + 2 * ft, 2)} offset:{row + 64 + ft * 32}")
        self.pstamp(a, 4)
        a("s_waitcnt lgkmcnt(0)")
        AF, KV = 160, 192
        for sf in range(4):
            for T in range(2):
                for q in range(2):
                    a(f"ds_read_b64_tr_b16 {vr(AF + (sf * 2 + T) * 4 + 2 * q, 2)}, v23 offset:{(32 * T + 16 * q) * RS + sf * 32}")
        XB = 40960
        a(f"s_mul_i32 s3, s7, 12288")
        a(f"s_add_u32 s3, s3, {XB}")
        a("v_add_u32 v20, s3, v15")
        a("s_and_b32 s4, s7, 2")
        a("s_mul_i32 s4, s4, 12288")
        a(f"s_mul_i32 s5, s{S_TH}, 6144")
        a("s_add_u32 s4, s4, s5")
        a(f"s_add_u32 s4, s4, {XB}")
        a("v_add_u32 v22, s4, v15")
        for sf in range(4):
            a(f"s_waitcnt lgkmcnt({(3 - sf) * 4})")
            for T in range(2):
                A = vr(AF + (sf * 2 + T) * 4, 4)
                for dt in range(3):
                    d = vr(KV + (sf * 3 + dt) * 4, 4)
                    Bop = vr(VB(dt, T), 4) if dt < 2 else vr(ONES, 4)
                    a(f"v_mfma_f32_16x16x32_bf16 {d}, {A}, {Bop}, {d if T else 0}")
        a(f"s_lshl_b32 s3, s{S_HD}, 4")
        a(f"s_add_u32 s3, s3, s{S_MT}")
        a("s_lshl_b32 s3, s3, 14")
        a(f"s_add_u32 s3, s3, {WS_KVP}")
        a(f"s_lshl_b32 s4, s{S_TH}, 12")
        a("s_add_u32 s4, s4, s3")
        a(f"s_lshl_b32 s6, s{S_TH}, 7")
        a("s_add_u32 s6, s6, s3")
        a("s_add_u32 s6, s6, 8192")
        a("v_lshlrev_b32 v21, 4, v21")
        for k in range(12): a(f"ds_write_b128 v20, {vr(KV + 4 * k, 4)} offset:{k * 1024}")
        a("s_waitcnt lgkmcnt(0)")
        self.pstamp(a, 5)
        a("s_barrier")
        for w in range(2):
            for k in range(6):
                a(f"ds_read_b128 {vr(160 + (w * 6 + k) * 4, 4)}, v22 offset:{w * 12288 + k * 1024}")
        a("s_waitcnt lgkmcnt(0)")
        if self.defer:
            for i in range(22, -1, -2):
                a(f"v_pk_add_f32 {vr(192 + i, 2)}, {vr(160 + i, 2)}, {vr(184 + i, 2)}")
            for i in range(16): a(f"v_mov_b32 v{224 + i}, v{64 + i}")
        else:
            for i in range(0, 24, 2):
                a(f"v_pk_add_f32 {vr(160 + i, 2)}, {vr(160 + i, 2)}, {vr(184 + i, 2)}")
        if self.defer:
            a("s_mov_b32 s92, s43")
            a("s_mov_b32 s93, s4")
            a("s_mov_b32 s94, s6")
        else:
            for ft in range(2):
                for dt in range(2):
                    a(f"buffer_store_dwordx4 {vr(160 + (ft * 3 + dt) * 4, 4)}, v15, {ws}, s4 offen offset:{(ft * 2 + dt) * 1024} {sm}")
                a(f"buffer_store_dwordx4 {vr(160 + (ft * 3 + 2) * 4, 4)}, v21, {ws}, s6 offen offset:{ft * 64} {sm}")
        self.after_E2_B(a)
```

```python
from asmlib import *
from layout import *
import k2d
from k2d import K2d, S_WS, S_WV, S_QG, S_KH, S_QB, S_H, V_LANE16

NSLOT, SLOT = 8, 16384
LDS_K23 = max(k2d.LDS_K2, NSLOT * SLOT)
V_WO = 247
V_WRA, V_WRB, V_WRH = 4, 8, 12
FW, ACC, FO = 16, 48, 80
S_WA, S_WB, S_OUT = 76, 80, 52
S_MT, S_NT, S_SOO, S_SOW, S_W2K, S_OB, S_FOWN, S_FWAIT = 60, 61, 62, 63, 64, 65, 70, 71
V_F = 200
V_WARM = 243
S_TSRD, S_TCH, V_TD = 84, 88, 208
SPIN_LIMIT = 1 << 22

class K23(K2d):
    def __init__(self, name, wd=4, od=3, out_mod="nt", touch=False, sleep=2, old="sc1", warm_out=False, **kw):
        super().__init__(name, **kw)
        self.wd, self.od, self.out_mod, self.touch = wd, od, out_mod, touch
        self.sleep = sleep
        self.old = old
        self.warm_out = warm_out

    def dma_w(self, st):
        srd_ = S_WA if st < 8 else S_WB
        return [f"s_add_u32 m0, s{S_W2K}, {(st % NSLOT) * SLOT}", f"s_mov_b32 s{S_SOW}, {(st & 7) << 18}",
                f"buffer_load_dwordx4 v{V_WO}, s[{srd_}:{srd_+3}], s{S_SOW} offen lds",
                f"buffer_load_dwordx4 v{V_WO + 1}, s[{srd_}:{srd_+3}], s{S_SOW} offen offset:1024 lds"]

    def load_o(self, st):
        buf = st % self.od
        r = []
        for b in range(2):
            r += [f"s_add_u32 s{S_SOO}, s{S_OB}, {(4 * st + 2 * b) * 131072}",
                  f"buffer_load_dwordx4 {vr(FO + 16 * buf + 8 * b, 4)}, v{V_LANE16}, s[{S_WS}:{S_WS+3}], s{S_SOO} offen {self.old}",
                  f"buffer_load_dwordx4 {vr(FO + 16 * buf + 8 * b + 4, 4)}, v{V_LANE16}, s[{S_WS}:{S_WS+3}], s{S_SOO} offen offset:1024 {self.old}"]
        return r

    def rd_w(self, st, b):
        part, slot = st >> 3, st % NSLOT
        base = V_WRH if slot >= 4 else (V_WRA if part == 0 else V_WRB)
        qoff = 1024 if part == 0 else 2048
        return [f"ds_read_b64_tr_b16 {vr(FW + 16 * b + 4 * ct + 2 * q, 2)}, v{base + ct} offset:{(slot & 3) * SLOT + b * 8192 + q * qoff}"
                for ct in range(4) for q in range(2)]

    def omfmas(self, buf, b):
        return [f"v_mfma_f32_16x16x32_bf16 {vr(ACC + (i * 4 + ct) * 4, 4)}, {vr(FW + 16 * b + 4 * ct, 4)}, {vr(FO + 16 * buf + 8 * b + 4 * i, 4)}, {vr(ACC + (i * 4 + ct) * 4, 4)}"
                for ct in range(4) for i in range(2)]

    def ostage(self, a, st, issue_w, issue_o, vm_mid, vm_top, last=False):
        buf = st % self.od
        a(f"s_waitcnt vmcnt({vm_top}) lgkmcnt(0)")
        for l in interleave(self.omfmas(buf, 0), [(i, [r]) for i, r in enumerate(self.rd_w(st, 1))]): a(l)
        a("s_waitcnt lgkmcnt(0)")
        m = self.omfmas(buf, 1)
        if last:
            for l in m: a(l)
            return
        pre = []
        if st + 1 in (4, 12):
            nxt = V_WRA if (st + 1) >> 3 == 0 else V_WRB
            pre = [f"v_add_u32 v{V_WRH + c}, {4 * SLOT}, v{nxt + c}" for c in range(4)]
        extra = Asm()
        if st == 8 - self.od - 1: self.poll(extra, 1, "pollB")
        fill = [(0, pre + [l.strip() for l in extra.lines] + [f"s_waitcnt vmcnt({vm_mid})", "s_barrier"])]
        for i, r in enumerate(self.rd_w(st + 1, 0)): fill.append((1 + i * 6 // 8, [r]))
        fill.append((7, self.dma_w(st + self.wd) if issue_w else []))
        for l in interleave(m, fill): a(l)
        if issue_o:
            for l in self.load_o(st + self.od): a(l)

    def entry_extra(self, a):
        a("s_load_dwordx2 s[66:67], s[0:1], 16")
        a("s_load_dwordx2 s[68:69], s[0:1], 48")
        a("s_load_dwordx2 s[72:73], s[0:1], 64")

    def early_setup(self, a):
        a("s_and_b32 s3, s2, 7")
        a("s_lshr_b32 s6, s2, 3")
        a("s_lshr_b32 s7, s3, 1")
        a("s_lshl_b32 s7, s7, 2")
        a(f"s_and_b32 s{S_MT}, s6, 3")
        a(f"s_add_u32 s{S_MT}, s{S_MT}, s7")
        a("s_and_b32 s7, s3, 1")
        a("s_lshl_b32 s7, s7, 3")
        a(f"s_lshr_b32 s{S_NT}, s6, 2")
        a(f"s_add_u32 s{S_NT}, s{S_NT}, s7")
        srd(a, S_WA, 66, 2097152)
        srd(a, S_WB, 68, 2097152)
        srd(a, S_OUT, 72, 4194304)
        t0, t1, t2 = 216, 217, 218
        a(f"v_and_b32 v{t0}, 63, v0")
        a(f"v_lshrrev_b32 v{t1}, 3, v{t0}")
        a(f"v_and_b32 v{t2}, 7, v{t0}")
        a(f"v_bfe_u32 v{t0}, v{t0}, 4, 2")
        a(f"v_lshlrev_b32 v{t0}, 1, v{t0}")
        a(f"v_xor_b32 v{t2}, v{t2}, v{t0}")
        a(f"v_lshlrev_b32 v{t1}, 11, v{t1}")
        a(f"v_lshl_add_u32 v{t1}, v{t2}, 4, v{t1}")
        a(f"s_lshl_b32 s3, s{S_NT}, 7")
        a(f"v_add_u32 v{t1}, s3, v{t1}")
        a(f"s_lshl_b32 s3, s{S_WV}, 15")
        a(f"v_add_u32 v{V_WO}, s3, v{t1}")
        a(f"s_add_u32 s3, s3, {16384 - 1024}")
        a(f"v_add_u32 v{V_WO + 1}, s3, v{t1}")
        a(f"s_lshl_b32 s{S_W2K}, s{S_WV}, 11")
        a(f"s_lshl_b32 s3, s{S_MT}, 3")
        a(f"s_lshl_b32 s6, s{S_QG}, 1")
        a("s_add_u32 s3, s3, s6")
        a("s_lshl_b32 s3, s3, 10")
        a(f"s_lshl_b32 s6, s{S_KH}, 17")
        a("s_add_u32 s3, s3, s6")
        a(f"s_add_u32 s{S_OB}, s3, {WS_O}")
        a(f"s_lshl_b32 s3, s{S_QB}, 12")
        a(f"s_lshl_b32 s6, s{S_H}, 2")
        a("s_add_u32 s3, s3, s6")
        a(f"s_add_u32 s{S_FOWN}, s3, {WS_FLAG}")
        a(f"s_lshr_b32 s3, s{S_MT}, 1")
        a("s_lshl_b32 s3, s3, 12")
        a(f"s_add_u32 s{S_FWAIT}, s3, {WS_FLAG}")
        if self.touch: self.touch_setup(a)
        if self.warm_out:
            a(f"v_and_b32 v{t0}, 63, v0")
            a(f"v_lshlrev_b32 v{t0}, 12, v{t0}")
            a(f"s_lshl_b32 s3, s{S_MT}, 18")
            a(f"s_lshl_b32 s6, s{S_NT}, 7")
            a("s_add_u32 s3, s3, s6")
            a(f"buffer_load_dword v{V_WARM}, v{t0}, s[{S_OUT}:{S_OUT+3}], s3 offen nt")

    def touch_setup(self, a):
        a("s_and_b32 s3, s2, 1")
        a("s_lshl_b32 s3, s3, 10")
        a("s_lshr_b32 s6, s2, 3")
        a("s_and_b32 s7, s6, 15")
        a("s_lshl_b32 s7, s7, 6")
        a(f"s_lshl_b32 s89, s{S_WV}, 3")
        a("s_add_u32 s7, s7, s89")
        a("s_lshl_b32 s7, s7, 11")
        a(f"s_add_u32 s{S_TCH}, s7, s3")
        a("s_cmp_lt_u32 s6, 16")
        a(f"s_cselect_b32 s{S_TSRD}, s66, s68")
        a(f"s_cselect_b32 s{S_TSRD+1}, s67, s69")
        a(f"s_and_b32 s{S_TSRD+1}, s{S_TSRD+1}, 0xffff")
        a(f"s_mov_b32 s{S_TSRD+2}, 2097152")
        a(f"s_mov_b32 s{S_TSRD+3}, 0x00020000")
    def touch_lines(self):
        if not self.touch: return []
        return [f"buffer_load_dwordx4 v[{V_TD}:{V_TD+3}], v{V_LANE16}, s[{S_TSRD}:{S_TSRD+3}], s{S_TCH} offen", f"s_add_u32 s{S_TCH}, s{S_TCH}, 2048"]

    def after_decision(self, a):
        assert self.wd <= 4
        for st in range(self.wd):
            for l in self.dma_w(st): a(l)

    def signal(self, a, part, tag):
        n = self.name
        a(f"s_cmp_lg_u32 s{S_WV}, 0")
        a(f"s_cbranch_scc1 {n}_{tag}")
        a("s_mov_b64 exec, 1")
        a(f"v_mov_b32 v{V_F}, {128 * part}")
        a(f"v_mov_b32 v{V_F + 1}, 1")
        a(f"buffer_store_dword v{V_F + 1}, v{V_F}, s[{S_WS}:{S_WS+3}], s{S_FOWN} offen sc1")
        a("s_mov_b64 exec, -1")
        a.label(f"{n}_{tag}")

    def poll(self, a, part, tag):
        n = self.name
        a(f"s_cmp_lg_u32 s{S_WV}, 0")
        a(f"s_cbranch_scc1 {n}_{tag}_skip")
        a(f"v_and_b32 v{V_F}, 31, v0")
        a(f"v_lshlrev_b32 v{V_F}, 2, v{V_F}")
        a(f"s_mov_b32 s6, {SPIN_LIMIT}")
        a.label(f"{n}_{tag}")
        a(f"buffer_load_dword v{V_F + 1}, v{V_F}, s[{S_WS}:{S_WS+3}], s{S_FWAIT} offen offset:{128 * part} sc1")
        a("s_waitcnt vmcnt(0)")
        a(f"v_cmp_eq_u32 vcc, 1, v{V_F + 1}")
        a("s_sub_u32 s6, s6, 1")
        a("s_cmp_eq_u32 s6, 0")
        a(f"s_cbranch_scc1 {n}_{tag}_skip")
        a("s_cmp_eq_u32 vcc_lo, -1")
        a(f"s_cbranch_scc1 {n}_{tag}_skip")
        a(f"s_sleep {self.sleep}")
        a(f"s_branch {n}_{tag}")
        a.label(f"{n}_{tag}_skip")

    def b_mid(self, a):
        a("s_waitcnt vmcnt(0)")
        a("s_barrier")
        self.signal(a, 0, "sigA")

    def project(self, a):
        n = self.name
        WD, OD = self.wd, self.od
        self.pstamp(a, 6)
        self.poll(a, 0, "pollA")
        a("v_and_b32 v202, 63, v0")
        a("v_lshrrev_b32 v13, 4, v202")
        a("v_bfe_u32 v14, v202, 2, 2")
        a("v_and_b32 v15, 1, v13")
        a("v_lshrrev_b32 v16, 1, v14")
        a("v_lshl_add_u32 v16, v15, 1, v16")
        a("v_lshlrev_b32 v16, 1, v16")
        a("v_bfe_u32 v17, v202, 1, 1")
        a("v_and_b32 v18, 1, v202")
        a("v_lshlrev_b32 v18, 3, v18")
        a(f"s_lshl_b32 s3, s{S_KH}, 12")
        a("v_add_u32 v18, s3, v18")
        a("v_lshrrev_b32 v19, 1, v13")
        a("v_lshlrev_b32 v19, 4, v19")
        a("v_lshl_add_u32 v19, v15, 2, v19")
        a("v_add_u32 v19, v19, v14")
        a("v_lshl_add_u32 v20, v13, 2, v14")
        for ct in range(4):
            a(f"v_add_u32 v21, {2 * ct}, v17")
            a("v_xor_b32 v21, v21, v16")
            a("v_lshl_add_u32 v21, v21, 4, v18")
            a(f"v_lshl_add_u32 v{V_WRA + ct}, v19, 7, v21")
            a(f"v_lshl_add_u32 v{V_WRB + ct}, v20, 7, v21")
        for r in range(32): a(f"v_mov_b32 v{ACC + r}, 0")
        a("s_waitcnt vmcnt(0)")
        a("s_barrier")
        self.signal(a, 1, "sigB")
        self.pstamp(a, 7)
        q = []
        for s in range(OD):
            for l in self.load_o(s): a(l)
            q += [("o", s)] * 4
        for l in self.rd_w(0, 0): a(l)
        def allowed(tag):
            idx = max((i for i, t in enumerate(q) if t == tag), default=None)
            return len(q) if idx is None else len(q) - 1 - idx
        for s in range(16):
            top = allowed(("o", s))
            mid = allowed(("W", s + 1)) if s < 15 else 0
            iw, io = s + WD < 16, s + OD < 16
            self.ostage(a, s, iw, io, min(mid, 63), min(top, 63), last=(s == 15))
            if iw: q += [("W", s + WD)] * 2
            if io: q += [("o", s + OD)] * 4
        self.pstamp(a, 8)
        a(f"s_lshl_b32 s3, s{S_WV}, 12")
        a(f"v_add_u32 v2, s3, v{V_LANE16}")
        a(f"s_xor_b32 s3, s{S_WV}, 4")
        a("s_lshl_b32 s3, s3, 12")
        a(f"v_add_u32 v3, s3, v{V_LANE16}")
        a(f"s_cmp_eq_u32 s{S_KH}, 0")
        a("s_nop 7")
        a(f"s_cbranch_scc1 {n}_k0")
        for k in range(4): a(f"ds_write_b128 v2, {vr(ACC + 4 * k, 4)} offset:{k * 1024}")
        a("s_waitcnt lgkmcnt(0)")
        for r in range(16): a(f"v_mov_b32 v{ACC + r}, v{ACC + 16 + r}")
        a(f"s_branch {n}_k1")
        a.label(f"{n}_k0")
        for k in range(4): a(f"ds_write_b128 v2, {vr(ACC + 16 + 4 * k, 4)} offset:{k * 1024}")
        a.label(f"{n}_k1")
        a("s_waitcnt lgkmcnt(0)")
        a("s_barrier")
        for k in range(4): a(f"ds_read_b128 {vr(FW + 4 * k, 4)}, v3 offset:{k * 1024}")
        a("v_and_b32 v203, 15, v202")
        a(f"s_lshl_b32 s3, s{S_MT}, 7")
        a(f"s_lshl_b32 s6, s{S_QG}, 5")
        a("s_add_u32 s3, s3, s6")
        a(f"s_lshl_b32 s6, s{S_KH}, 4")
        a("s_add_u32 s3, s3, s6")
        a("v_add_u32 v203, s3, v203")
        a("v_lshlrev_b32 v203, 11, v203")
        a("v_bfe_u32 v204, v202, 4, 1")
        a("v_lshl_add_u32 v203, v204, 5, v203")
        a("v_lshrrev_b32 v204, 5, v202")
        a("v_lshl_add_u32 v203, v204, 4, v203")
        a(f"s_lshl_b32 s3, s{S_NT}, 7")
        a("s_waitcnt lgkmcnt(0)")
        for r in range(0, 16, 2):
            a(f"v_pk_add_f32 {vr(ACC + r, 2)}, {vr(ACC + r, 2)}, {vr(FW + r, 2)}")
        for pr in range(2):
            t = FW + 16 + 4 * pr
            for i2 in range(2):
                b = ACC + (pr * 2 + i2) * 4
                a(f"v_cvt_pk_bf16_f32 v{t + 2 * i2}, v{b}, v{b + 1}")
                a(f"v_cvt_pk_bf16_f32 v{t + 2 * i2 + 1}, v{b + 2}, v{b + 3}")
            a("s_nop 1")
            a(f"v_permlane16_swap_b32 v{t}, v{t + 2}")
            a(f"v_permlane16_swap_b32 v{t + 1}, v{t + 3}")
            a(f"buffer_store_dwordx4 {vr(t, 4)}, v203, s[{S_OUT}:{S_OUT+3}], s3 offen offset:{pr * 64} {self.out_mod}")
```

```python
from asmlib import *
from layout import *
from prof import Prof

XST, NX = 16384, 3
WRING, WSL, NW = 49152, 24576, 4
L_WP = WRING + NW * WSL
LDS_K1 = 163840
ACC = 64
def acc(sg, ft, tk): return ACC + ((sg * 2 + ft) * 4 + tk) * 4
FR = 160
def fX(p, tk): return FR + p * 40 + tk * 4
def fW(p, sg, ft): return FR + p * 40 + 16 + (sg * 2 + ft) * 4
V_XO, V_WO, V_XR, V_WR, V_WR2, V_PF = 1, 5, 12, 14, 16, 18
S_X, S_W, S_WS, S_WP, S_GW = 8, 12, 16, 60, 64
S_MT, S_HP, S_WV, S_SOX, S_SOW, S_W4K, S_W6K, S_TH, S_HH, S_BR, S_HD, S_ST = range(20, 32)
S_PF, S_PFO, S_PFS, S_TOK = 72, 76, 77, 78

class K1w(Prof):
    V_PROF = 250
    def __init__(self, name, prof=False, store_mod="sc1", code=None, rd_slots=None, pf=True, pf_per_unit=2, epi=True, pfwo=True, wsbase=0, prio=0, pf_first=4, dma_gap=2, split_dma=False, pf_start=0, gate_unit=None, hold=0, m32=False, pfwo_unit=14, diag=(), touch=0):
        self.name, self.prof, self.store_mod, self.code = name, prof, store_mod, code
        self.pf_first, self.dma_gap, self.split_dma = pf_first, dma_gap, split_dma
        self.defer = False
        self.pf_start = pf_start
        self.gate_unit = gate_unit
        self.m32 = m32
        self.touch = touch
        self.diag = set(diag)
        self.pfwo_unit = pfwo_unit
        self.hold = hold
        self.rd_slots = rd_slots or [1 + (i * 22) // 16 for i in range(16)]
        self.pf, self.pf_per_unit, self.epi, self.pfwo, self.wsbase, self.prio = pf, pf_per_unit, epi, pfwo, wsbase, prio

    def mfmas(self, p):
        if self.m32:
            out = []
            for k2 in range(2):
                for tt in range(2):
                    for sg in range(3):
                        d = vr(ACC + (tt * 3 + sg) * 16, 16)
                        out += [f"v_mfma_f32_32x32x16_bf16 {d}, {vr(fW(p, sg, k2), 4)}, {vr(fX(p, tt * 2 + k2), 4)}, {d}", "s_nop 0"]
            return out
        out = []
        for tk in range(4):
            for sg in range(3):
                for ft in range(2):
                    d = vr(acc(sg, ft, tk), 4)
                    x, w = vr(fX(p, tk), 4), vr(fW(p, sg, ft), 4)
                    a, b = (x, w) if sg == 2 else (w, x)
                    out.append(f"v_mfma_f32_16x16x32_bf16 {d}, {a}, {b}, {d}")
        return out

    def rd(self, p, u):
        xo = ((u >> 1) % NX) * XST
        xs = [f"ds_read_b128 {vr(fX(p, tk), 4)}, v{V_XR + (u & 1)} offset:{xo + tk * 2048}" for tk in range(4)]
        slot = u % NW
        base = V_WR if slot < 2 else V_WR2
        w = [f"ds_read_b64_tr_b16 {vr(fW(p, sg, ft) + 2 * q, 2)}, v{base + ft} offset:{(slot & 1) * WSL + sg * 4096 + q * 512}"
             for sg in range(3) for ft in range(2) for q in range(2)]
        return [xs[0]] + w + xs[1:]

    def dmaW(self, uw):
        r = [f"s_add_u32 m0, s{S_W6K}, {WRING + (uw % NW) * WSL}", f"s_mov_b32 s{S_SOW}, {uw * 32 * 6144}"]
        for j in range(6):
            if j == 4: r += [f"s_add_u32 m0, s{S_W6K}, {WRING + (uw % NW) * WSL + 4096}", "s_nop 0"]
            r.append(f"buffer_load_dwordx4 v{V_WO + j}, s[{S_W}:{S_W+3}], s{S_SOW} offen offset:{(j & 3) * 1024} lds")
        return r
    def dmaX(self, sx, half):
        r = [f"s_add_u32 m0, s{S_W4K}, {(sx % NX) * XST + half * 2048}", f"s_mov_b32 s{S_SOX}, {sx * 128}"]
        for n in range(2):
            r.append(f"buffer_load_dwordx4 v{V_XO + half * 2 + n}, s[{S_X}:{S_X+3}], s{S_SOX} offen offset:{n * 1024} lds")
        return r
    def group(self, v):
        g, n = [], 0
        if 0 <= v + 3 < 32: g += self.dmaW(v + 3); n += 6
        if 0 <= v // 2 + 2 < 16: g += self.dmaX(v // 2 + 2, v & 1); n += 2
        return g, n
    def pf_load(self):
        if self.touch:
            return [f"buffer_load_dword v244, v{V_PF}, s[{S_PF}:{S_PF+3}], s{S_PFO} offen", f"s_add_u32 s{S_PFO}, s{S_PFO}, s{S_PFS}"]
        return [f"buffer_load_dwordx4 v[{244}:{247}], v{V_PF}, s[{S_PF}:{S_PF+3}], s{S_PFO} offen", f"s_add_u32 s{S_PFO}, s{S_PFO}, s{S_PFS}"]

    def role_block(self, a, tag, stager, other):
        n = self.name
        if not stager and not other: return []
        r = [f"s_cmp_lg_u32 s{S_ST}, 0"]
        if other:
            r += [f"s_cbranch_scc0 {n}_{tag}_o"] + stager + [f"s_branch {n}_{tag}_e", f"{n}_{tag}_o:"] + other + [f"{n}_{tag}_e:"]
        else:
            r += [f"s_cbranch_scc0 {n}_{tag}_e"] + stager + [f"{n}_{tag}_e:"]
        return r

    def main_loop(self, a, extra_first):
        size = lambda v: self.group(v)[1]
        npf_left = self.npf
        for u in range(32):
            a("s_waitcnt lgkmcnt(0)")
            fill = []
            if u < 31:
                v = u + 1
                allowed = size(v - 2) + size(v - 1) + (extra_first if v <= 2 else 0) if v >= 2 else 8 + size(0) + extra_first
                fill.append((0, self.role_block(a, f"w{u}", [f"s_waitcnt vmcnt({allowed})"], []) + ["s_barrier"]))
                for i, r in enumerate(self.rd((u + 1) & 1, u + 1)):
                    fill.append((self.rd_slots[i], [r]))
                g, n = self.group(v)
                k = min(self.pf_per_unit, npf_left); npf_left -= k
                other = [l for _ in range(k) for l in self.pf_load()]
                if u == self.gate_unit:
                    issued = (0 if self.hold else self.npf_first) + (self.npf - npf_left)
                    other = other + self.gate_lines(min(issued + 1, 63))
                if self.pfwo and self.pfwo_unit is not None and u in (self.pfwo_unit, self.pfwo_unit + 2):
                    other = other + self.pfwo_lines(0 if u == self.pfwo_unit else 1)
                other = other + self.unit_extra(u)
                if self.split_dma and g:
                    cut = next((i for i, l in enumerate(g) if f"s{S_W4K}" in l), len(g))
                    fill.append((self.dma_gap, self.role_block(a, f"d{u}", g[:cut], other)))
                    fill.append((self.dma_gap + 10, self.role_block(a, f"e{u}", g[cut:], [])))
                else:
                    fill.append((self.dma_gap, self.role_block(a, f"d{u}", g, other)))
            seq = interleave(self.mfmas(u & 1), fill)
            D = self.diag
            if "nodma" in D: seq = [l for l in seq if not (l.startswith("buffer_load") and l.endswith("lds")) and not l.startswith("s_waitcnt vm")]
            if "nordw" in D: seq = [l for l in seq if not l.startswith("ds_read_b64_tr")]
            if "nordx" in D: seq = [l for l in seq if not l.startswith("ds_read_b128")]
            if "nobar" in D: seq = [l for l in seq if not l.startswith("s_barrier")]
            for l in seq: a(l)

    def gen(self):
        a = Asm()
        n = self.name
        a("s_cmp_ge_u32 s2, 256")
        a(f"s_cbranch_scc1 {n}_end")
        self.pstamp(a, 0)
        if self.code:
            first, last, nbytes = self.code
            code_prefetch(a, n, first, last, 8, 252, 254, 90)(-(-nbytes // 32768))
        self.body(a)
        if self.prof:
            self.pstamp(a, 6)
            a("s_waitcnt vmcnt(0)")
            self.pstamp(a, 7)
            self.pflush(a, 0, 8, S_WV, f"s[{S_WS}:{S_WS+3}]")
        a.label(f"{n}_end")
        a("s_endpgm")
        a.label(f"{n}_last")
        return kernel_header(n) + a.text() + kernel_desc(n, 256, 256)

    def body(self, a):
        n = self.name
        a("s_load_dwordx4 s[44:47], s[0:1], 0")
        a("s_load_dwordx2 s[48:49], s[0:1], 32")
        a("s_load_dwordx2 s[52:53], s[0:1], 80")
        a("s_load_dwordx2 s[56:57], s[0:1], 40")
        a("s_load_dwordx2 s[58:59], s[0:1], 56")
        a("s_load_dwordx2 s[32:33], s[0:1], 16")
        a("s_load_dwordx2 s[34:35], s[0:1], 48")
        a("s_and_b32 s3, s2, 7")
        a("s_lshr_b32 s4, s2, 3")
        a("s_and_b32 s5, s3, 1")
        a("s_lshl_b32 s5, s5, 3")
        a("s_and_b32 s6, s4, 7")
        a(f"s_add_u32 s{S_MT}, s5, s6")
        a("s_lshr_b32 s5, s3, 1")
        a("s_lshl_b32 s5, s5, 2")
        a("s_lshr_b32 s6, s4, 3")
        a(f"s_add_u32 s{S_HP}, s5, s6")
        a("v_lshrrev_b32 v20, 6, v0")
        a("v_and_b32 v19, 63, v0")
        a("v_lshrrev_b32 v21, 3, v19")
        a(f"v_readfirstlane_b32 s{S_WV}, v20")
        a("v_and_b32 v22, 7, v19")
        a("v_lshrrev_b32 v23, 4, v19")
        a(f"s_and_b32 s{S_TH}, s{S_WV}, 1")
        a(f"s_bfe_u32 s{S_HH}, s{S_WV}, 0x10001")
        a(f"s_lshr_b32 s{S_BR}, s{S_WV}, 2")
        a(f"s_xor_b32 s{S_ST}, s{S_BR}, 1")
        a(f"s_and_b32 s7, s{S_WV}, 3")
        a(f"s_lshl_b32 s{S_HD}, s{S_HP}, 1")
        a(f"s_add_u32 s{S_HD}, s{S_HD}, s{S_HH}")
        a(f"s_lshl_b32 s3, s{S_MT}, 7")
        a("s_lshl_b32 s4, s7, 5")
        a("s_add_u32 s3, s3, s4")
        a("v_add_u32 v24, s3, v21")
        a("v_lshlrev_b32 v24, 11, v24")
        a("v_xor_b32 v25, v22, v23")
        a("v_xor_b32 v26, 4, v25")
        a("v_lshl_add_u32 v25, v25, 4, v24")
        a("v_lshl_add_u32 v26, v26, 4, v24")
        for nn in range(4):
            a(f"v_add_u32 v{V_XO + nn}, {nn * 16384 - (nn & 1) * 1024}, v{25 if nn % 2 == 0 else 26}")
        a("v_and_b32 v25, 1, v23")
        a("v_lshlrev_b32 v25, 1, v25")
        a("v_xor_b32 v25, v25, v22")
        a("s_mov_b32 s3, 6144")
        a("v_mul_lo_u32 v26, v21, s3")
        a(f"s_lshl_b32 s4, s{S_HP}, 7")
        a("v_add_u32 v26, s4, v26")
        a("v_lshl_add_u32 v28, v25, 4, v26")
        a("v_xor_b32 v27, 4, v25")
        a("v_lshl_add_u32 v27, v27, 4, v26")
        a("s_and_b32 s5, s7, 1")
        a("s_cmp_eq_u32 s5, 0")
        for j in range(6):
            off = [((6 * par + j) >> 2) * 2048 + ((6 * par + j) & 3) * 8 * 6144 - (j & 3) * 1024 for par in range(2)]
            a(f"s_mov_b32 s3, {off[1]}")
            a(f"s_cselect_b32 s3, {off[0]}, s3")
            a(f"v_add_u32 v{V_WO + j}, s3, v{28 if j % 2 == 0 else 27}")
        a(f"s_lshl_b32 s{S_W4K}, s7, 12")
        a(f"s_mul_i32 s{S_W6K}, s7, 6144")
        self.pstamp(a, 8)
        a("s_waitcnt lgkmcnt(0)")
        self.pstamp(a, 9)
        srd(a, S_X, 44, 2048 * 2048)
        a("s_cmp_lt_u32 s7, 2")
        a("s_cselect_b32 s4, s46, s48")
        a("s_cselect_b32 s5, s47, s49")
        srd(a, S_W, 4, 1024 * 6144)
        ws_shift(a, 52, self.wsbase)
        srd(a, S_WS, 52, 0x10000000 - self.wsbase)
        pro = self.dmaX(0, 0) + self.dmaW(0) + self.dmaX(0, 1) + self.dmaW(1) + self.dmaX(1, 0) + self.dmaW(2) + self.dmaX(1, 1)
        a(f"s_cmp_lg_u32 s{S_ST}, 0")
        a(f"s_cbranch_scc0 {n}_side")
        if self.hold: a("s_barrier")
        for l in pro: a(l)
        self.pf_setup(a)
        a(f"s_branch {n}_joined")
        a.label(f"{n}_side")
        self.side(a)
        a.label(f"{n}_joined")
        self.pstamp(a, 1)
        self.start_extra(a)
        self.addr_reads(a)
        for r in range(96): a(f"v_mov_b32 v{ACC + r}, 0")
        early = self.gate_unit is None
        for l in self.role_block(a, "b0", ["s_waitcnt vmcnt(16)"], self.gate_lines(1 if self.hold else self.npf_first + 1) if early else []): a(l)
        a("s_barrier")
        self.pstamp(a, 2)
        for l in self.rd(0, 0): a(l)
        g, _ = self.group(0)
        for l in self.role_block(a, "g0", g, []): a(l)
        if self.prio:
            a(f"s_cmp_lg_u32 s{S_ST}, 0")
            a(f"s_cbranch_scc{1 if self.prio == 1 else 0} {n}_np")
            a("s_setprio 1")
            a.label(f"{n}_np")
        self.main_loop(a, 0)
        if self.prio: a("s_setprio 0")
        self.pstamp(a, 3)
        if self.epi: self.epilogue(a)

    def addr_reads(self, a):
        a("v_and_b32 v20, 15, v19")
        a("v_lshlrev_b32 v20, 7, v20")
        a(f"s_lshl_b32 s3, s{S_TH}, 13")
        a("v_add_u32 v20, s3, v20")
        a("v_lshrrev_b32 v21, 4, v19")
        a("v_bfe_u32 v22, v19, 1, 3")
        for k2 in range(2):
            a(f"v_add_u32 v23, {4 * k2}, v21")
            a("v_xor_b32 v23, v23, v22")
            a(f"v_lshl_add_u32 v{V_XR + k2}, v23, 4, v20")
        a("v_bfe_u32 v22, v19, 2, 2")
        a("v_lshl_add_u32 v23, v21, 3, v22")
        a("v_lshlrev_b32 v23, 7, v23")
        a("v_and_b32 v24, 1, v19")
        a("v_lshl_add_u32 v23, v24, 3, v23")
        a("v_bfe_u32 v24, v19, 1, 1")
        a(f"s_lshl_b32 s3, s{S_HH}, 2")
        a("v_add_u32 v24, s3, v24")
        a("v_and_b32 v25, 2, v22")
        a("v_bfe_u32 v26, v19, 4, 1")
        a("v_lshl_or_b32 v25, v26, 2, v25")
        a(f"s_mul_i32 s3, s{S_BR}, 12288")
        a(f"s_add_u32 s3, s3, {WRING}")
        for ft in range(2):
            a(f"v_add_u32 v26, {2 * ft}, v24")
            a("v_xor_b32 v26, v26, v25")
            a("v_lshl_add_u32 v26, v26, 4, v23")
            a(f"v_add_u32 v{V_WR + ft}, s3, v26")
            a(f"v_add_u32 v{V_WR2 + ft}, {2 * WSL}, v{V_WR + ft}")

    def side(self, a):
        n = self.name
        ws = f"s[{S_WS}:{S_WS+3}]"
        srd(a, S_WP, 56, 65536)
        srd(a, S_GW, 58, 2048)
        a(f"s_and_b32 s7, s{S_WV}, 3")
        self.pf_setup(a)
        if self.hold:
            self.npf_first = min(self.pf_first, self.npf)
            for k in range(self.npf_first):
                for l in self.pf_load(): a(l)
            a(f"s_waitcnt vmcnt({self.npf_first - self.hold})")
            a("s_barrier")
        a("v_lshlrev_b32 v20, 5, v19")
        a(f"buffer_load_dwordx4 v[32:35], v20, s[{S_GW}:{S_GW+3}], 0 offen")
        a(f"buffer_load_dwordx4 v[36:39], v20, s[{S_GW}:{S_GW+3}], 0 offen offset:16")
        a(f"s_lshl_b32 s3, s{S_MT}, 7")
        a(f"s_lshl_b32 s4, s{S_HP}, 3")
        a("s_add_u32 s3, s3, s4")
        a("s_lshl_b32 s4, s7, 1")
        a(f"s_add_u32 s{S_TOK}, s3, s4")
        a(f"s_lshl_b32 s3, s{S_TOK}, 11")
        for i in range(2):
            a(f"buffer_load_dwordx4 v[{40+8*i}:{43+8*i}], v20, s[{S_X}:{S_X+3}], s3 offen offset:{i * 2048}")
            a(f"buffer_load_dwordx4 v[{44+8*i}:{47+8*i}], v20, s[{S_X}:{S_X+3}], s3 offen offset:{i * 2048 + 16}")
        a("v_lshlrev_b32 v20, 4, v19")
        a(f"s_lshl_b32 s3, s{S_HP}, 12")
        a("s_lshl_b32 s5, s7, 10")
        a("s_add_u32 s3, s3, s5")
        a(f"s_add_u32 m0, s5, {L_WP}")
        a("s_nop 0")
        a(f"buffer_load_dwordx4 v20, s[{S_WP}:{S_WP+3}], s3 offen lds")
        self.clear_flags(a)
        if not self.hold:
            self.npf_first = min(self.pf_first, self.npf)
            for k in range(self.npf_first):
                for l in self.pf_load(): a(l)
        self.npf -= self.npf_first

    def pf_setup(self, a):
        a(f"s_and_b32 s7, s{S_WV}, 3")
        self.npf = 16 - self.pf_start if self.pf else 0
        if self.pf:
            a("s_mul_i32 s3, s2, 3")
            a("s_add_u32 s3, s3, s7")
            a("s_cmp_ge_u32 s3, 384")
            a("s_cselect_b32 s4, 384, 0")
            a("s_cselect_b32 s80, s48, s46")
            a("s_cselect_b32 s81, s49, s47")
            a("s_sub_u32 s3, s3, s4")
            a("s_lshl_b32 s3, s3, 10")
            a("s_lshl_b32 s4, s2, 14")
            a("s_cmp_eq_u32 s7, 3")
            a("s_cselect_b32 s80, s44, s80")
            a("s_cselect_b32 s81, s45, s81")
            a(f"s_cselect_b32 s{S_PFO}, s4, s3")
            a(f"s_mov_b32 s5, {64 * 6144}")
            a(f"s_cselect_b32 s{S_PFS}, 128, s5")
            a(f"s_mov_b32 s5, {1024 * 6144}")
            a(f"s_cselect_b32 s{S_PF+2}, {2048 * 2048}, s5")
            if self.pf_start:
                a(f"s_mul_i32 s5, s{S_PFS}, {self.pf_start}")
                a(f"s_add_u32 s{S_PFO}, s{S_PFO}, s5")
            a(f"s_mov_b32 s{S_PF}, s80")
            a(f"s_and_b32 s{S_PF+1}, s81, 0xffff")
            a(f"s_mov_b32 s{S_PF+3}, 0x00020000")
            if self.touch:
                per = 1024 // self.touch
                nst = 64 // per
                sh = per.bit_length() - 1
                a(f"v_lshrrev_b32 v20, {sh}, v19")
                a(f"v_mul_lo_u32 v20, v20, s{S_PFS}")
                a(f"v_and_b32 v22, {per - 1}, v19")
                a(f"v_mul_u32_u24 v21, {self.touch}, v22")
                a("v_add_u32 v21, v21, v20")
                lpr = 128 // self.touch
                a(f"v_lshrrev_b32 v23, {lpr.bit_length() - 1}, v22")
                a("v_lshlrev_b32 v23, 11, v23")
                a(f"v_and_b32 v22, {lpr - 1}, v22")
                a(f"v_mul_u32_u24 v22, {self.touch}, v22")
                a("v_add3_u32 v20, v23, v22, v20")
                a("s_cmp_eq_u32 s7, 3")
                a("s_cselect_b64 vcc, -1, 0")
                a(f"v_cndmask_b32 v{V_PF}, v21, v20, vcc")
                a(f"s_mul_i32 s{S_PFS}, s{S_PFS}, {nst}")
                self.npf = (16 - self.pf_start + nst - 1) // nst
            else:
                a("v_lshlrev_b32 v20, 4, v19")
                a("v_lshrrev_b32 v21, 3, v19")
                a("v_lshlrev_b32 v21, 11, v21")
                a("v_and_b32 v22, 7, v19")
                a("v_lshl_add_u32 v21, v22, 4, v21")
                a("s_cmp_eq_u32 s7, 3")
                a("s_cselect_b64 vcc, -1, 0")
                a(f"v_cndmask_b32 v{V_PF}, v20, v21, vcc")

    def clear_flags(self, a):
        n = self.name
        a("s_cmp_ge_u32 s2, 8")
        a(f"s_cbranch_scc1 {n}_noflag")
        a(f"s_cmp_lg_u32 s{S_WV}, 4")
        a(f"s_cbranch_scc1 {n}_noflag")
        a("s_lshl_b32 s3, s2, 12")
        a(f"s_add_u32 s3, s3, {WS_FLAG}")
        a("v_lshlrev_b32 v20, 2, v19")
        a("v_mov_b32 v21, 0")
        a(f"buffer_store_dword v21, v20, s[{S_WS}:{S_WS+3}], s3 offen sc1")
        a.label(f"{n}_noflag")
    def unit_extra(self, u): return []

    def gate_lines(self, wait=None):
        b = Asm()
        if wait is not None: b(f"s_waitcnt vmcnt({wait})")
        for i in range(2): b(f"v_mov_b32 v{24 + i}, 0")
        for k in range(8):
            for i in range(2):
                b(f"v_dot2_f32_bf16 v{24 + i}, v{40 + 8 * i + k}, v{32 + k}, v{24 + i}")
        for ctl in ("quad_perm:[1,0,3,2]", "quad_perm:[2,3,0,1]", "row_half_mirror", "row_mirror"):
            b("s_nop 1")
            for i in range(2):
                b(f"v_add_f32_dpp v{24 + i}, v{24 + i}, v{24 + i} {ctl} row_mask:0xf bank_mask:0xf")
        for sw in ("v_permlane16_swap_b32", "v_permlane32_swap_b32"):
            for i in range(2): b(f"v_mov_b32 v{28 + i}, v{24 + i}")
            b("s_nop 1")
            for i in range(2): b(f"{sw} v{24 + i}, v{28 + i}")
            b("s_nop 1")
            for i in range(2): b(f"v_add_f32 v{24 + i}, v{24 + i}, v{28 + i}")
        b("v_and_b32 v28, 1, v19")
        b("v_cmp_eq_u32 vcc, 1, v28")
        b("s_nop 1")
        b("v_cndmask_b32 v24, v24, v25, vcc")
        b(f"v_mul_f32 v24, {f32bits(-LOG2E)}, v24")
        b("v_exp_f32 v24, v24")
        b("s_nop 0")
        b("v_add_f32 v24, 1.0, v24")
        b("v_rcp_f32 v24, v24")
        b("v_lshlrev_b32 v28, 2, v19")
        b(f"s_lshl_b32 s3, s{S_TOK}, 2")
        b(f"s_add_u32 s3, s3, {WS_G}")
        b("s_mov_b64 exec, 3")
        b(f"buffer_store_dword v24, v28, s[{S_WS}:{S_WS+3}], s3 offen {self.store_mod}")
        b("s_mov_b64 exec, -1")
        return [l.strip() for l in b.lines]

    def epilogue(self, a):
        n = self.name
        a("s_waitcnt vmcnt(0)")
        a("s_barrier")
        a(f"s_cmp_lg_u32 s{S_BR}, 0")
        a(f"s_cbranch_scc1 {n}_epiB")
        self.epilogue_A(a)
        a(f"s_branch {n}_epidone")
        a.label(f"{n}_epiB")
        self.epilogue_B(a)
        a.label(f"{n}_epidone")

    @staticmethod
    def pack(b0, b1):
        return [f"v_cvt_pk_bf16_f32 v{b0}, v{b0}, v{b0 + 1}", f"v_cvt_pk_bf16_f32 v{b0 + 1}, v{b0 + 2}, v{b0 + 3}",
                f"v_cvt_pk_bf16_f32 v{b0 + 2}, v{b1}, v{b1 + 1}", f"v_cvt_pk_bf16_f32 v{b0 + 3}, v{b1 + 2}, v{b1 + 3}"]

    def epilogue_A(self, a):
        ws, sm = f"s[{S_WS}:{S_WS+3}]", self.store_mod
        a("v_lshrrev_b32 v21, 4, v19")
        a("v_and_b32 v20, 15, v19")
        a(f"s_lshl_b32 s3, s{S_HD}, 17")
        a(f"s_lshl_b32 s4, s{S_MT}, 2")
        a(f"s_lshl_b32 s5, s{S_TH}, 1")
        a("s_add_u32 s4, s4, s5")
        a("s_lshl_b32 s4, s4, 11")
        a("s_add_u32 s38, s3, s4")
        a(f"s_add_u32 s39, s38, {4 << 20}")
        a(f"s_add_u32 s42, s38, {8 << 20}")
        a("v_lshrrev_b32 v22, 1, v21")
        a("v_lshlrev_b32 v22, 10, v22")
        a("v_and_b32 v24, 1, v21")
        a("v_lshl_add_u32 v22, v24, 9, v22")
        a("v_lshl_add_u32 v17, v20, 4, v22")
        a("v_and_b32 v24, 7, v20")
        a("v_lshrrev_b32 v25, 3, v20")
        a("v_lshl_add_u32 v24, v25, 4, v24")
        a("v_lshl_add_u32 v16, v24, 4, v22")
        c = f32bits(LOG2E / 32 ** 0.5)
        a(f"s_mov_b32 s6, {c}")
        a(f"s_mov_b32 s7, {c}")
        for tk in range(4):
            for l in self.pack(acc(1, 0, tk), acc(1, 1, tk)): a(l)
            a(f"buffer_store_dwordx4 {vr(acc(1, 0, tk), 4)}, v16, {ws}, s39 offen offset:{(tk >> 1) * 2048 + (tk & 1) * 128} {sm}")
        for T in range(2):
            for ft in range(2):
                for l in self.pack(acc(2, ft, 2 * T), acc(2, ft, 2 * T + 1)): a(l)
                a(f"buffer_store_dwordx4 {vr(acc(2, ft, 2 * T), 4)}, v17, {ws}, s42 offen offset:{T * 2048 + ft * 256} {sm}")
        for tk in range(4):
            for ft in range(2):
                for h in (0, 2):
                    a(f"v_pk_mul_f32 {vr(acc(0, ft, tk) + h, 2)}, {vr(acc(0, ft, tk) + h, 2)}, s[6:7]")
            for l in self.pack(acc(0, 0, tk), acc(0, 1, tk)): a(l)
            a(f"buffer_store_dwordx4 {vr(acc(0, 0, tk), 4)}, v17, {ws}, s38 offen offset:{(tk >> 1) * 2048 + (tk & 1) * 256} {sm}")
        self.pstamp(a, 4)
        if self.pfwo and self.pfwo_unit is None: self.prefetch_wo(a)
        self.before_drain_A(a)
        a("s_waitcnt vmcnt(0)")
        self.pstamp(a, 5)
        self.after_drain_A(a)
        a("s_barrier")
        self.after_E2_A(a)

    def before_drain_A(self, a): pass
    def after_drain_A(self, a): pass
    def start_extra(self, a): pass
    def after_E2_A(self, a): pass
    def after_E2_B(self, a): pass

    def pfwo_lines(self, k):
        p = 32 + 2 * k
        return ["s_lshl_b32 s3, s2, 13", f"s_and_b32 s4, s{S_WV}, 3", "s_lshl_b32 s4, s4, 11", "s_add_u32 s3, s3, s4",
                f"s_mov_b32 s84, s{p}", f"s_and_b32 s85, s{p + 1}, 0xffff", "s_mov_b32 s86, 2097152", "s_mov_b32 s87, 0x00020000",
                "v_lshlrev_b32 v20, 4, v19",
                "buffer_load_dwordx4 v[244:247], v20, s[84:87], s3 offen", "buffer_load_dwordx4 v[244:247], v20, s[84:87], s3 offen offset:1024"]

    def prefetch_wo(self, a):
        a("s_load_dwordx2 s[80:81], s[0:1], 16")
        a("s_load_dwordx2 s[82:83], s[0:1], 48")
        a("v_lshlrev_b32 v15, 4, v19")
        a("s_lshl_b32 s3, s2, 13")
        a(f"s_lshl_b32 s4, s{S_WV}, 11")
        a("s_add_u32 s3, s3, s4")
        a("s_waitcnt lgkmcnt(0)")
        for k, p in enumerate((80, 82)):
            srd(a, 84, p, 2097152)
            for i in range(2):
                a(f"buffer_load_dwordx4 v[{160 + 8 * k + 4 * i}:{163 + 8 * k + 4 * i}], v15, s[84:87], s3 offen offset:{i * 1024}")

    def epilogue_B(self, a):
        ws, sm = f"s[{S_WS}:{S_WS+3}]", self.store_mod
        RS = 136
        a("v_lshrrev_b32 v21, 4, v19")
        a("v_and_b32 v20, 15, v19")
        a(f"s_and_b32 s7, s{S_WV}, 3")
        a("v_bfe_u32 v22, v19, 2, 2")
        a("v_lshl_add_u32 v22, v21, 2, v22")
        a(f"v_mul_u32_u24 v23, {RS}, v22")
        a("v_lshlrev_b32 v22, 6, v22")
        a("v_and_b32 v24, 3, v19")
        a("v_lshl_add_u32 v22, v24, 3, v22")
        a(f"s_lshl_b32 s3, s{S_HH}, 11")
        a(f"s_add_u32 s3, s3, {L_WP}")
        a("v_add_u32 v22, s3, v22")
        a(f"s_mul_i32 s3, s7, {64 * RS}")
        a("v_lshl_add_u32 v23, v24, 3, v23")
        a("v_add_u32 v23, s3, v23")
        a(f"v_mul_u32_u24 v18, {RS}, v20")
        a("v_lshl_add_u32 v18, v21, 3, v18")
        a("v_add_u32 v18, s3, v18")
        a("v_lshlrev_b32 v15, 4, v19")
        KB = lambda t: acc(1, 0, t)
        VB = lambda dt, T: acc(2, dt, 2 * T)
        for tk in range(4):
            for l in self.pack(acc(1, 0, tk), acc(1, 1, tk)): a(l)
        for tk in range(4):
            for l in self.pack(acc(0, 0, tk), acc(0, 1, tk)): a(l)
        a(f"s_lshl_b32 s3, s{S_HD}, 17")
        a(f"s_lshl_b32 s4, s{S_MT}, 3")
        a(f"s_lshl_b32 s5, s{S_TH}, 2")
        a("s_add_u32 s4, s4, s5")
        a("s_lshl_b32 s4, s4, 10")
        a("s_add_u32 s43, s3, s4")
        a(f"s_add_u32 s43, s43, {WS_QB}")
        WPF, ONES = 48, 56
        for ft in range(2):
            for q in range(2):
                a(f"ds_read_b64_tr_b16 {vr(WPF + 4 * ft + 2 * q, 2)}, v22 offset:{q * 1024 + ft * 32}")
        a(f"v_mov_b32 v{ONES}, 0x3f803f80")
        for r in range(1, 4): a(f"v_mov_b32 v{ONES + r}, v{ONES}")
        for dt in range(2):
            for T in range(2):
                for l in self.pack(acc(2, dt, 2 * T), acc(2, dt, 2 * T + 1)): a(l)
        l2e = f32bits(LOG2E)
        a(f"s_mov_b32 s36, {l2e}")
        a(f"s_mov_b32 s37, {l2e}")
        a(f"s_mov_b32 s40, {f32bits(-LOG2E)}")
        a(f"s_mov_b32 s41, {f32bits(-LOG2E)}")
        a("s_waitcnt lgkmcnt(0)")
        P = lambda t, i: 160 + 8 * t + i
        EP = lambda t, i: 192 + 8 * t + i
        BP = lambda t: 80 + 4 * t
        BM = lambda t: 112 + 4 * t
        SS = lambda t, sg: (132 + 8 * t) if sg == 0 else (224 + 4 * t)
        mx, mn, tm = (lambda t: 24 + 2 * t), (lambda t: 32 + 2 * t), (lambda t: 40 + t)
        T4 = range(4)
        for t in T4:
            for ft in range(2):
                a(f"v_mfma_f32_16x16x32_bf16 {vr(P(t, 4 * ft), 4)}, {vr(WPF + 4 * ft, 4)}, {vr(KB(t), 4)}, 0")
        stores = [f"buffer_store_dwordx4 {vr(acc(0, 0, tk), 4)}, v15, {ws}, s43 offen offset:{tk * 1024} {sm}" for tk in range(4)]
        a("s_nop 7")
        B = a
        for t in T4:
            B(f"v_max3_f32 v{mx(t)}, v{P(t,0)}, v{P(t,1)}, v{P(t,2)}")
            B(f"v_min3_f32 v{mn(t)}, v{P(t,0)}, v{P(t,1)}, v{P(t,2)}")
        for i in (3, 5):
            for t in T4:
                B(f"v_max3_f32 v{mx(t)}, v{mx(t)}, v{P(t,i)}, v{P(t,i+1)}")
                B(f"v_min3_f32 v{mn(t)}, v{mn(t)}, v{P(t,i)}, v{P(t,i+1)}")
        for t in T4:
            B(f"v_max_f32 v{mx(t)}, v{mx(t)}, v{P(t,7)}")
            B(f"v_min_f32 v{mn(t)}, v{mn(t)}, v{P(t,7)}")
        for t in T4: B(f"v_sub_f32 v{mn(t)}, 0, v{mn(t)}")
        B("s_nop 1")
        for t in T4: B(f"v_permlane32_swap_b32 v{mx(t)}, v{mn(t)}")
        B("s_nop 1")
        for t in T4: B(f"v_max_f32 v{mx(t)}, v{mx(t)}, v{mn(t)}")
        for t in T4: B(f"v_mov_b32 v{tm(t)}, v{mx(t)}")
        B("s_nop 1")
        for t in T4: B(f"v_permlane16_swap_b32 v{mx(t)}, v{tm(t)}")
        B("s_nop 1")
        for t in T4: B(f"v_max_f32 v{mx(t)}, v{mx(t)}, v{tm(t)}")
        for t in T4: B(f"v_mov_b32 v{mn(t)}, v{mx(t)}")
        B("s_nop 1")
        for t in T4: B(f"v_permlane32_swap_b32 v{mx(t)}, v{mn(t)}")
        B("s_nop 1")
        for t in T4:
            B(f"v_mul_f32 v{mx(t)}, s40, v{mx(t)}")
            B(f"v_mul_f32 v{mn(t)}, s40, v{mn(t)}")
        for t in T4:
            for i in range(0, 8, 2):
                B(f"v_pk_fma_f32 {vr(EP(t,i), 2)}, {vr(P(t,i), 2)}, s[36:37], {vr(mx(t), 2)} op_sel_hi:[1,1,0]")
                B(f"v_pk_fma_f32 {vr(P(t,i), 2)}, {vr(P(t,i), 2)}, s[40:41], {vr(mn(t), 2)} op_sel_hi:[1,1,0]")
        for t in T4:
            for i in range(8):
                B(f"v_exp_f32 v{EP(t,i)}, v{EP(t,i)}")
                B(f"v_exp_f32 v{P(t,i)}, v{P(t,i)}")
        B("s_nop 0")
        for t in T4:
            for k in range(4):
                B(f"v_cvt_pk_bf16_f32 v{BP(t) + k}, v{EP(t,2*k)}, v{EP(t,2*k+1)}")
                B(f"v_cvt_pk_bf16_f32 v{BM(t) + k}, v{P(t,2*k)}, v{P(t,2*k+1)}")
        B("s_nop 1")
        for t in T4:
            B(f"v_mfma_f32_16x16x32_bf16 {vr(SS(t, 0), 4)}, {vr(ONES, 4)}, {vr(BP(t), 4)}, 0")
            B(f"v_mfma_f32_16x16x32_bf16 {vr(SS(t, 1), 4)}, {vr(ONES, 4)}, {vr(BM(t), 4)}, 0")
        if not self.defer:
            for st in stores: B(st)
            B("s_nop 3")
        else:
            B("s_nop 7")
        for t in T4:
            B(f"v_rcp_f32 v{SS(t, 0)}, v{SS(t, 0)}")
            B(f"v_rcp_f32 v{SS(t, 1)}, v{SS(t, 1)}")
        B("s_nop 0")
        for t in T4:
            for i in range(0, 8, 2):
                B(f"v_pk_mul_f32 {vr(EP(t,i), 2)}, {vr(EP(t,i), 2)}, {vr(SS(t, 0), 2)} op_sel_hi:[1,0]")
                B(f"v_pk_mul_f32 {vr(P(t,i), 2)}, {vr(P(t,i), 2)}, {vr(SS(t, 1), 2)} op_sel_hi:[1,0]")
        for t in T4:
            for k in range(4):
                B(f"v_cvt_pk_bf16_f32 v{BP(t) + k}, v{EP(t,2*k)}, v{EP(t,2*k+1)}")
                B(f"v_cvt_pk_bf16_f32 v{BM(t) + k}, v{P(t,2*k)}, v{P(t,2*k+1)}")
            row = t * 16 * RS
            for ft in range(2):
                B(f"ds_write_b64 v18, {vr(BP(t) + 2 * ft, 2)} offset:{row + ft * 32}")
                B(f"ds_write_b64 v18, {vr(BM(t) + 2 * ft, 2)} offset:{row + 64 + ft * 32}")
        self.pstamp(a, 4)
        a("s_waitcnt lgkmcnt(0)")
        AF, KV = 160, 192
        for sf in range(4):
            for T in range(2):
                for q in range(2):
                    a(f"ds_read_b64_tr_b16 {vr(AF + (sf * 2 + T) * 4 + 2 * q, 2)}, v23 offset:{(32 * T + 16 * q) * RS + sf * 32}")
        XB = 40960
        a(f"s_mul_i32 s3, s7, 12288")
        a(f"s_add_u32 s3, s3, {XB}")
        a("v_add_u32 v20, s3, v15")
        a("s_and_b32 s4, s7, 2")
        a("s_mul_i32 s4, s4, 12288")
        a(f"s_mul_i32 s5, s{S_TH}, 6144")
        a("s_add_u32 s4, s4, s5")
        a(f"s_add_u32 s4, s4, {XB}")
        a("v_add_u32 v22, s4, v15")
        for sf in range(4):
            a(f"s_waitcnt lgkmcnt({(3 - sf) * 4})")
            for T in range(2):
                A = vr(AF + (sf * 2 + T) * 4, 4)
                for dt in range(3):
                    d = vr(KV + (sf * 3 + dt) * 4, 4)
                    Bop = vr(VB(dt, T), 4) if dt < 2 else vr(ONES, 4)
                    a(f"v_mfma_f32_16x16x32_bf16 {d}, {A}, {Bop}, {d if T else 0}")
        a(f"s_lshl_b32 s3, s{S_HD}, 4")
        a(f"s_add_u32 s3, s3, s{S_MT}")
        a("s_lshl_b32 s3, s3, 14")
        a(f"s_add_u32 s3, s3, {WS_KVP}")
        a(f"s_lshl_b32 s4, s{S_TH}, 12")
        a("s_add_u32 s4, s4, s3")
        a(f"s_lshl_b32 s6, s{S_TH}, 7")
        a("s_add_u32 s6, s6, s3")
        a("s_add_u32 s6, s6, 8192")
        a("v_lshlrev_b32 v21, 4, v21")
        for k in range(12): a(f"ds_write_b128 v20, {vr(KV + 4 * k, 4)} offset:{k * 1024}")
        a("s_waitcnt lgkmcnt(0)")
        self.pstamp(a, 5)
        a("s_barrier")
        for w in range(2):
            for k in range(6):
                a(f"ds_read_b128 {vr(160 + (w * 6 + k) * 4, 4)}, v22 offset:{w * 12288 + k * 1024}")
        a("s_waitcnt lgkmcnt(0)")
        if self.defer:
            for i in range(22, -1, -2):
                a(f"v_pk_add_f32 {vr(192 + i, 2)}, {vr(160 + i, 2)}, {vr(184 + i, 2)}")
            for i in range(16): a(f"v_mov_b32 v{224 + i}, v{64 + i}")
        else:
            for i in range(0, 24, 2):
                a(f"v_pk_add_f32 {vr(160 + i, 2)}, {vr(160 + i, 2)}, {vr(184 + i, 2)}")
        if self.defer:
            a("s_mov_b32 s92, s43")
            a("s_mov_b32 s93, s4")
            a("s_mov_b32 s94, s6")
        else:
            for ft in range(2):
                for dt in range(2):
                    a(f"buffer_store_dwordx4 {vr(160 + (ft * 3 + dt) * 4, 4)}, v15, {ws}, s4 offen offset:{(ft * 2 + dt) * 1024} {sm}")
                a(f"buffer_store_dwordx4 {vr(160 + (ft * 3 + 2) * 4, 4)}, v21, {ws}, s6 offen offset:{ft * 64} {sm}")
        self.after_E2_B(a)
```

```python
from asmlib import *
from layout import *
from prof import Prof
from dbgstamp import dbg_setup, dbg_stamp

MARGIN = 90.0
TPS, TPW = 8, 4
STG = TPS * 4096
LDS_MISC = 2 * STG
L_KV, L_Z, L_WP, L_VOTE, L_SPARE = 0, 4096, 6144, 8192, 8448
L_XO = LDS_MISC + 8448 + 1024
LDS_K2 = L_XO + 8 * 5120

V_LANE16, V_T0, V_T1, V_T2, V_T3, V_G, V_RD = 1, 2, 3, 4, 5, 6, 7
VQ, VC, VS, VP, VKF, VVF, VO, VL, VONE = 8, 24, 56, 88, 96, 112, 128, 160, 168
S_WS, S_K, S_V = 8, 12, 16
S_H, S_QB, S_WV, S_SOFF, S_CNT, S_MODE, S_WOFF, S_QG, S_KH = 20, 21, 22, 23, 24, 25, 26, 27, 32
S_KVP, S_PKV, S_PZ = 44, 48, 49
VKA, VPT, VQB, VGB, V_ZOFF = 176, 184, 224, 244, 246

class K2d(Prof):
    V_PROF = 250
    def __init__(self, name, prof=False, store_mod="nt", force_fallback=False, margin=MARGIN, sched=1, bapply=True, prio=0, diag=(), code=None, dbg=None, wsbase=0):
        self.name, self.prof, self.store_mod = name, prof, store_mod
        self.force_fallback, self.margin, self.sched, self.bapply, self.prio = force_fallback, margin, sched, bapply, prio
        self.diag = set(diag)
        self.code = code
        self.npb = 2
        self.hmod = ''
        self.wsbase = wsbase
        self.dbg = dbg

    def dma_piece(self, slot, i):
        kv, n = i >> 1, i & 1
        srd_ = S_K if kv == 0 else S_V
        ins = []
        if n == 0:
            ins += [f"s_add_u32 m0, s{S_WOFF}, {slot * STG + kv * (STG // 2)}", "s_nop 0"]
        ins.append(f"buffer_load_dwordx4 v{V_LANE16}, s[{srd_}:{srd_+3}], s{S_SOFF} offen offset:{n * 1024} {self.hmod} lds")
        if i == 3:
            ins.append(f"s_add_u32 s{S_SOFF}, s{S_SOFF}, {STG // 2}")
        return ins
    def dma_stage(self, slot):
        return [l for i in range(4) for l in self.dma_piece(slot, i)]

    @staticmethod
    def koff(j): return (j // TPW) * STG + (j % TPW) * 2048
    def rdK(self, j):
        b = VKF + 8 * (j & 1); j %= 2 * TPW
        return [f"ds_read_b128 {vr(b + 4 * st, 4)}, v{V_RD} offset:{self.koff(j) + st * 1024}" for st in range(2)]
    def rdV(self, j):
        b = VVF + 8 * (j & 1); j %= 2 * TPW
        return [f"ds_read_b128 {vr(b + 4 * st, 4)}, v{V_RD} offset:{self.koff(j) + STG // 2 + st * 1024}" for st in range(2)]

    def unit(self, a, j, qt):
        u = 2 * j + qt
        s, sn = VS + 16 * (u & 1), VS + 16 * ((u + 1) & 1)
        jn, qn = (j + (qt == 1), qt ^ 1)
        kn = VKF + 8 * (jn & 1)
        jp, qp = (j - (qt == 0), qt ^ 1)
        v, vp = VVF + 8 * (j & 1), VVF + 8 * (jp & 1)
        e = lambda r: f"v_exp_f32 v{s + r}, v{s + r}"
        c = lambda k: f"v_cvt_pk_bf16_f32 v{VP + k}, v{s + 2 * k}, v{s + 2 * k + 1}"
        O, Op, Lq, Lp = VO + 16 * qt, VO + 16 * qp, VL + 4 * qt, VL + 4 * qp
        Sa = f"v_mfma_f32_32x32x16_bf16 {vr(sn, 16)}, {vr(kn, 4)}, {vr(VQ + 8 * qn, 4)}, {vr(VC + 16 * qn, 16)}"
        Sb = f"v_mfma_f32_32x32x16_bf16 {vr(sn, 16)}, {vr(kn + 4, 4)}, {vr(VQ + 8 * qn + 4, 4)}, {vr(sn, 16)}"
        PVa = f"v_mfma_f32_32x32x16_bf16 {vr(O, 16)}, {vr(v, 4)}, {vr(VP, 4)}, {vr(O, 16)}"
        PVb = f"v_mfma_f32_32x32x16_bf16 {vr(Op, 16)}, {vr(vp + 4, 4)}, {vr(VP + 4, 4)}, {vr(Op, 16)}"
        La = f"v_mfma_f32_16x16x32_bf16 {vr(Lq, 4)}, {vr(VONE, 4)}, {vr(VP, 4)}, {vr(Lq, 4)}"
        Lb = f"v_mfma_f32_16x16x32_bf16 {vr(Lp, 4)}, {vr(VONE, 4)}, {vr(VP + 4, 4)}, {vr(Lp, 4)}"
        rd = self.rdK(j + 1) if qt == 0 else self.rdV(j + 1)
        top = ["s_waitcnt lgkmcnt(0)"]
        jj = j % TPW
        if jj == TPW - 1 and qt == 0:
            if hasattr(self, "switch_code"):
                top += self.switch_code(j)
            else:
                top += ["s_waitcnt vmcnt(0)", "s_barrier"]
                if self.bapply: top += self.part_add() + self.part_loads()
                if hasattr(self, "touch_lines"): top += self.touch_lines()
        if hasattr(self, "first_iter_issue") and j == 1 and qt == 0 and self.pass_idx == 1: top += self.first_iter_issue()
        k = (2 * jj + qt - 2 * (TPW - 1)) % (2 * TPW)
        dm = []
        if k < 4:
            dm = self.dma_piece((((j + 1) // TPW) + 1) & 1, k)
        if hasattr(self, "unit_hook"): dm = dm + self.unit_hook(j, qt)
        r0, r1 = rd[:1], rd[1:]
        if self.sched == 1:
            seq = (top + [e(0)] + r0 + [e(1)] + r1 + [e(2), e(3), Sa, c(0), c(1), e(4), e(5), Lb, e(6), e(7), c(2), c(3), Sb,
                   e(8)] + dm + [e(9), e(10), e(11), PVb, c(4), c(5), e(12), e(13), PVa, e(14), e(15), c(6), c(7), La])
        elif self.sched == 2:
            seq = (top + r0 + r1 + [e(0), e(1), e(2), e(3), Sa, c(0), c(1), e(4), e(5), Lb, e(6), e(7), c(2), c(3), Sb] + dm +
                   [e(8), e(9), e(10), e(11), PVb, c(4), c(5), e(12), e(13), PVa, e(14), e(15), c(6), c(7), La])
        elif self.sched == 3:
            seq = (top + r0 + r1 + [Sa, e(0), e(1), e(2), e(3), Lb, c(0), c(1), e(4), e(5), Sb, e(6), e(7), c(2), c(3), PVb] + dm +
                   [e(8), e(9), e(10), e(11), PVa, c(4), c(5), e(12), e(13), La, e(14), e(15), c(6), c(7)])
        elif self.sched == 4:
            seq = (top + [e(0), e(1)] + r0 + [e(2), e(3), Sa] + r1 + [c(0), c(1), e(4), e(5), e(6), e(7), Sb, c(2), c(3), Lb] + dm +
                   [e(8), e(9), e(10), e(11), PVb, c(4), c(5), e(12), e(13), PVa, e(14), e(15), c(6), c(7), La])
        elif self.sched in (5, 6, 7):
            PVb_now = f"v_mfma_f32_32x32x16_bf16 {vr(O, 16)}, {vr(v + 4, 4)}, {vr(VP + 4, 4)}, {vr(O, 16)}"
            Lb_now = f"v_mfma_f32_16x16x32_bf16 {vr(Lq, 4)}, {vr(VONE, 4)}, {vr(VP + 4, 4)}, {vr(Lq, 4)}"
            valu = [e(0), e(1), e(2), e(3), c(0), e(4), c(1), e(5), e(6), e(7), c(2), e(8), c(3), e(9), e(10), e(11), c(4), e(12), c(5), e(13), e(14), e(15), "s_nop 0", c(6), c(7)]
            if self.sched == 5:
                seq = top + r0 + r1 + valu + dm + [Sa, Sb, PVa, La, PVb_now, Lb_now, "s_nop 7"]
            elif self.sched == 6:
                seq = top + r0 + r1 + valu[:8] + [Sa] + valu[8:16] + [Sb] + valu[16:] + dm + ["s_nop 1", PVa, La, PVb_now, Lb_now]
            else:
                seq = top + r0 + r1 + [Sa] + valu[:4] + [Sb] + valu[4:] + dm + ["s_nop 1", PVa, PVb_now, La, Lb_now]
        D = self.diag
        if "nord" in D: seq = [l for l in seq if not l.startswith("ds_read")]
        if "noL" in D: seq = [l for l in seq if "16x16x32" not in l]
        for l in seq: a(l)

    def halfmax(self, a, x, t):
        a(f"v_mov_b32 v{t}, v{x}")
        a("s_nop 1")
        a(f"v_permlane32_swap_b32 v{x}, v{t}")
        a("s_nop 1")
        a(f"v_max_f32 v{x}, v{x}, v{t}")

    NT = 2
    def part_loads(self):
        kvp = f"s[{S_KVP}:{S_KVP+3}]"
        r = []
        for b in range(self.npb):
            r += [f"buffer_load_dwordx4 {vr(VPT + 8 * b, 4)}, v{V_LANE16}, {kvp}, s{S_PKV} offen {self.hmod}",
                  f"buffer_load_dwordx4 {vr(VPT + 8 * b + 4, 4)}, v{V_ZOFF}, {kvp}, s{S_PZ} offen {self.hmod}",
                  f"s_add_u32 s{S_PKV}, s{S_PKV}, {KVP_STRIDE}", f"s_add_u32 s{S_PZ}, s{S_PZ}, {KVP_STRIDE}"]
        return r
    def part_add(self):
        return [f"v_pk_add_f32 {vr(VKA + r, 2)}, {vr(VKA + r, 2)}, {vr(VPT + 8 * b + r, 2)}" for b in range(self.npb) for r in range(0, 8, 2)]
    def part_reset(self):
        return ([f"s_lshl_b32 s{S_PKV}, s{S_WV}, 10", f"s_and_b32 s{S_PZ}, s{S_WV}, 3", f"s_lshl_b32 s{S_PZ}, s{S_PZ}, 6",
                 f"s_add_u32 s{S_PZ}, s{S_PZ}, 8192"] + [f"v_mov_b32 v{VKA + r}, 0" for r in range(8)])

    def b_loads(self, a):
        ws = f"s[{S_WS}:{S_WS+3}]"
        a(f"s_lshl_b32 s6, s{S_QB}, 4")
        a(f"s_lshl_b32 s7, s{S_WV}, 1")
        a("s_add_u32 s6, s6, s7")
        a("s_lshl_b32 s7, s6, 10")
        a(f"s_lshl_b32 s3, s{S_H}, 17")
        a("s_add_u32 s7, s7, s3")
        a(f"s_add_u32 s7, s7, {WS_QB}")
        for t in range(self.NT):
            a(f"buffer_load_dwordx4 {vr(VQB + 4 * t, 4)}, v{V_LANE16}, {ws}, s7 offen offset:{t * 1024} {self.hmod}")
        a("s_lshl_b32 s7, s6, 6")
        a(f"s_add_u32 s7, s7, {WS_G}")
        a(f"v_and_b32 v{V_T0}, 15, v{V_T1}")
        a(f"v_lshlrev_b32 v{V_T0}, 2, v{V_T0}")
        for t in range(self.NT):
            a(f"buffer_load_dword v{VGB + t}, v{V_T0}, {ws}, s7 offen offset:{t * 64} {self.hmod}")
        a(f"s_lshl_b32 s6, s{S_H}, 11")
        a(f"s_lshl_b32 s7, s{S_WV}, 10")
        a("s_add_u32 s6, s6, s7")
        a(f"s_cmp_ge_u32 s{S_WV}, 2")
        a("s_cselect_b32 s6, 0x10000, s6")
        a(f"s_cselect_b32 s7, {L_SPARE - L_WP}, s7")
        a(f"s_add_u32 m0, s7, {LDS_MISC + L_WP}")
        a("s_nop 0")
        a(f"buffer_load_dwordx4 v{V_LANE16}, s[28:31], s6 offen lds")

    def b_publish(self, a):
        for k in range(4):
            a(f"v_cvt_pk_bf16_f32 v{VPT + k}, v{VKA + 2 * k}, v{VKA + 2 * k + 1}")
        a(f"v_and_b32 v{V_T1}, 63, v0")
        a(f"v_lshlrev_b32 v{V_T0}, 3, v{V_T1}")
        a(f"v_add_u32 v{V_T0}, {LDS_MISC}, v{V_T0}")
        a(f"s_lshl_b32 s6, s{S_WV}, 9")
        a(f"v_add_u32 v{V_T3}, s6, v{V_T0}")
        a(f"ds_write_b64 v{V_T3}, {vr(VPT, 2)} offset:{L_KV}")
        a(f"s_and_b32 s6, s{S_WV}, 3")
        a(f"s_lshl_b32 s6, s6, 9")
        a(f"v_add_u32 v{V_T3}, s6, v{V_T0}")
        a(f"ds_write_b64 v{V_T3}, {vr(VPT + 2, 2)} offset:{L_Z}")

    def b_apply(self, a):
        ws = f"s[{S_WS}:{S_WS+3}]"
        NT = self.NT
        a(f"v_and_b32 v{V_T1}, 63, v0")
        a(f"v_lshlrev_b32 v{V_T0}, 3, v{V_T1}")
        a(f"v_add_u32 v{V_T0}, {LDS_MISC}, v{V_T0}")
        for sg in range(2):
            for dt in range(2):
                for ft in range(2):
                    t = (sg * 2 + ft) * 2 + dt
                    a(f"ds_read_b64 {vr(24 + (sg * 2 + dt) * 4 + 2 * ft, 2)}, v{V_T0} offset:{L_KV + t * 512}")
            for ft in range(2):
                a(f"ds_read_b64 {vr(40 + sg * 4 + 2 * ft, 2)}, v{V_T0} offset:{L_Z + (sg * 2 + ft) * 512}")
        a(f"v_lshrrev_b32 v{V_T2}, 4, v{V_T1}")
        a(f"v_bfe_u32 v{V_T3}, v{V_T1}, 2, 2")
        a(f"v_lshl_add_u32 v{V_T2}, v{V_T2}, 2, v{V_T3}")
        a(f"v_lshlrev_b32 v{V_T2}, 6, v{V_T2}")
        a(f"v_and_b32 v{V_T3}, 3, v{V_T1}")
        a(f"v_lshl_add_u32 v{V_T2}, v{V_T3}, 3, v{V_T2}")
        a(f"v_add_u32 v{V_T2}, {LDS_MISC}, v{V_T2}")
        for ft in range(2):
            for q in range(2):
                a(f"ds_read_b64_tr_b16 {vr(48 + 4 * ft + 2 * q, 2)}, v{V_T2} offset:{L_WP + q * 1024 + ft * 32}")
        a(f"v_mov_b32 v56, 0x3f803f80")
        for r in range(1, 4): a(f"v_mov_b32 v{56 + r}, v56")
        a("s_waitcnt lgkmcnt(0)")
        for t in range(NT):
            for ft in range(2):
                a(f"v_mfma_f32_16x16x32_bf16 {vr(64 + 8 * t + 4 * ft, 4)}, {vr(48 + 4 * ft, 4)}, {vr(VQB + 4 * t, 4)}, 0")
        a("s_nop 7")
        P = lambda t, i: 64 + 8 * t + i
        MX, MN, TM = 96, 100, 104
        T = range(NT)
        for t in T:
            a(f"v_max3_f32 v{MX+2*t}, v{P(t,0)}, v{P(t,1)}, v{P(t,2)}")
            a(f"v_min3_f32 v{MN+2*t}, v{P(t,0)}, v{P(t,1)}, v{P(t,2)}")
        for i in (3, 5):
            for t in T:
                a(f"v_max3_f32 v{MX+2*t}, v{MX+2*t}, v{P(t,i)}, v{P(t,i+1)}")
                a(f"v_min3_f32 v{MN+2*t}, v{MN+2*t}, v{P(t,i)}, v{P(t,i+1)}")
        for t in T:
            a(f"v_max_f32 v{MX+2*t}, v{MX+2*t}, v{P(t,7)}")
            a(f"v_min_f32 v{MN+2*t}, v{MN+2*t}, v{P(t,7)}")
        for t in T: a(f"v_sub_f32 v{MN+2*t}, 0, v{MN+2*t}")
        a("s_nop 1")
        for t in T: a(f"v_permlane32_swap_b32 v{MX+2*t}, v{MN+2*t}")
        a("s_nop 1")
        for t in T: a(f"v_max_f32 v{MX+2*t}, v{MX+2*t}, v{MN+2*t}")
        for t in T: a(f"v_mov_b32 v{TM+2*t}, v{MX+2*t}")
        a("s_nop 1")
        for t in T: a(f"v_permlane16_swap_b32 v{MX+2*t}, v{TM+2*t}")
        a("s_nop 1")
        for t in T: a(f"v_max_f32 v{MX+2*t}, v{MX+2*t}, v{TM+2*t}")
        for t in T: a(f"v_mov_b32 v{MN+2*t}, v{MX+2*t}")
        a("s_nop 1")
        for t in T: a(f"v_permlane32_swap_b32 v{MX+2*t}, v{MN+2*t}")
        a("s_nop 1")
        EP = lambda t, i: 176 + 8 * t + i
        a(f"s_mov_b32 s36, {f32bits(LOG2E)}")
        a(f"s_mov_b32 s37, {f32bits(LOG2E)}")
        a(f"s_mov_b32 s38, {f32bits(-LOG2E)}")
        a(f"s_mov_b32 s39, {f32bits(-LOG2E)}")
        for t in T:
            a(f"v_mul_f32 v{MX+2*t}, s38, v{MX+2*t}")
            a(f"v_mul_f32 v{MN+2*t}, s38, v{MN+2*t}")
        for t in T:
            for i in range(0, 8, 2):
                a(f"v_pk_fma_f32 {vr(EP(t,i), 2)}, {vr(P(t,i), 2)}, s[36:37], {vr(MX+2*t, 2)} op_sel_hi:[1,1,0]")
                a(f"v_pk_fma_f32 {vr(P(t,i), 2)}, {vr(P(t,i), 2)}, s[38:39], {vr(MN+2*t, 2)} op_sel_hi:[1,1,0]")
        for t in T:
            for i in range(8):
                a(f"v_exp_f32 v{EP(t,i)}, v{EP(t,i)}")
                a(f"v_exp_f32 v{P(t,i)}, v{P(t,i)}")
        BP, BM = 96, 112
        if hasattr(self, "b_mid"): self.b_mid(a)
        a("s_nop 0")
        for t in T:
            for k in range(4):
                a(f"v_cvt_pk_bf16_f32 v{BP + 4*t + k}, v{EP(t,2*k)}, v{EP(t,2*k+1)}")
                a(f"v_cvt_pk_bf16_f32 v{BM + 4*t + k}, v{P(t,2*k)}, v{P(t,2*k+1)}")
        a("s_nop 1")
        for t in T:
            R = 176 + 32 * t
            bp, bm = vr(BP + 4 * t, 4), vr(BM + 4 * t, 4)
            for dt in range(2):
                a(f"v_mfma_f32_16x16x32_bf16 {vr(R + 4 * dt, 4)}, {vr(24 + 4 * dt, 4)}, {bp}, 0")
                a(f"v_mfma_f32_16x16x32_bf16 {vr(R + 8 + 4 * dt, 4)}, {vr(32 + 4 * dt, 4)}, {bm}, 0")
            a(f"v_mfma_f32_16x16x32_bf16 {vr(R + 16, 4)}, {vr(40, 4)}, {bp}, 0")
            a(f"v_mfma_f32_16x16x32_bf16 {vr(R + 20, 4)}, {vr(44, 4)}, {bm}, 0")
            a(f"v_mfma_f32_16x16x32_bf16 {vr(R + 24, 4)}, {vr(56, 4)}, {bp}, 0")
            a(f"v_mfma_f32_16x16x32_bf16 {vr(R + 28, 4)}, {vr(56, 4)}, {bm}, 0")
        a("s_nop 7")
        for t in T:
            R = 176 + 32 * t
            a(f"v_rcp_f32 v{R + 24}, v{R + 24}")
            a(f"v_rcp_f32 v{R + 28}, v{R + 28}")
        a("s_nop 0")
        for t in T:
            R = 176 + 32 * t
            a(f"v_mul_f32 v{R + 16}, v{R + 16}, v{R + 24}")
            a(f"v_sub_f32 v{R + 17}, 1.0, v{VGB + t}")
            a(f"v_fma_f32 v{R + 16}, v{R + 20}, v{R + 28}, v{R + 16}")
            a(f"v_add_f32 v{R + 16}, {f32bits(1e-6)}, v{R + 16}")
        for t in T:
            a(f"v_rcp_f32 v{176 + 32 * t + 16}, v{176 + 32 * t + 16}")
        a("s_nop 0")
        for t in T:
            R = 176 + 32 * t
            a(f"v_mul_f32 v{R + 16}, v{R + 16}, v{R + 17}")
            a(f"v_mul_f32 v{R + 24}, v{R + 24}, v{R + 16}")
            a(f"v_mul_f32 v{R + 28}, v{R + 28}, v{R + 16}")
        for t in T:
            R = 176 + 32 * t
            for i in range(8): a(f"v_mul_f32 v{R + i}, v{R + i}, v{R + 24}")
            for i in range(8): a(f"v_fma_f32 v{R + i}, v{R + 8 + i}, v{R + 28}, v{R + i}")
        for t in T:
            R = 176 + 32 * t
            for k in range(4):
                a(f"v_cvt_pk_bf16_f32 v{R + 20 + k}, v{R + 2 * k}, v{R + 2 * k + 1}")
            a(f"s_lshl_b32 s6, s{S_QB}, 4")
            a(f"s_lshl_b32 s7, s{S_WV}, 1")
            a("s_add_u32 s6, s6, s7")
            a(f"s_add_u32 s6, s6, {t}")
            a("s_lshl_b32 s6, s6, 10")
            a(f"s_lshl_b32 s7, s{S_H}, 17")
            a("s_add_u32 s6, s6, s7")
            a(f"s_add_u32 s6, s6, {WS_O + 32 * 131072}")
            a(f"buffer_store_dwordx4 {vr(R + 20, 4)}, v{V_LANE16}, {ws}, s6 offen {self.store_mod}")

    def gen(self):
        a = Asm()
        n = self.name
        a("s_cmp_ge_u32 s2, 256")
        a(f"s_cbranch_scc1 {n}_end")
        self.pstamp(a, 0)
        self.body(a, True)
        a.label(f"{n}_end")
        a("s_endpgm")
        a.label(f"{n}_last")
        return kernel_header(n) + a.text() + kernel_desc(n, 256, 256)

    def body(self, a, standalone):
        self.setup(a, standalone)
        self.rest(a)

    def setup(self, a, standalone):
        n = self.name
        ws = f"s[{S_WS}:{S_WS+3}]"
        a("s_load_dwordx2 s[4:5], s[0:1], 80")
        a("s_load_dwordx2 s[34:35], s[0:1], 40")
        if hasattr(self, "entry_extra"): self.entry_extra(a)
        if self.code and standalone:
            first, last, nbytes = self.code
            code_prefetch(a, n, first, last, 8, 240, 242, 90)(-(-nbytes // 32768))
        a("s_and_b32 s3, s2, 7")
        a("s_lshr_b32 s6, s2, 3")
        a(f"s_lshl_b32 s{S_H}, s3, 2")
        a("s_lshr_b32 s7, s6, 3")
        a(f"s_add_u32 s{S_H}, s{S_H}, s7")
        a(f"s_and_b32 s{S_QB}, s6, 7")
        a("v_lshrrev_b32 v2, 6, v0")
        a(f"v_and_b32 v{V_T1}, 63, v0")
        a(f"v_lshlrev_b32 v{V_LANE16}, 4, v{V_T1}")
        a(f"v_readfirstlane_b32 s{S_WV}, v2")
        a("s_waitcnt lgkmcnt(0)")
        ws_shift(a, 4, self.wsbase)
        srd(a, S_WS, 4, 0x10000000 - self.wsbase)
        srd(a, 28, 34, 65536)
        a(f"s_lshl_b32 s3, s{S_H}, 17")
        for S, off in ((S_K, WS_KA), (S_V, WS_VA)):
            a(f"s_add_u32 s6, s3, {off}")
            a(f"s_add_u32 s{S}, s4, s6")
            a(f"s_addc_u32 s{S+1}, s5, 0")
            a(f"s_and_b32 s{S+1}, s{S+1}, 0xffff")
            a(f"s_mov_b32 s{S+2}, 131072")
            a(f"s_mov_b32 s{S+3}, 0x00020000")
        a(f"s_lshl_b32 s{S_WOFF}, s{S_WV}, 11")
        a(f"s_and_b32 s{S_QG}, s{S_WV}, 3")
        a(f"s_lshr_b32 s{S_KH}, s{S_WV}, 2")
        a(f"s_lshl_b32 s6, s{S_KH}, 13")
        a(f"v_add_u32 v{V_RD}, s6, v{V_LANE16}")
        a(f"s_lshl_b32 s6, s{S_QB}, 3")
        a(f"s_lshl_b32 s7, s{S_QG}, 1")
        a("s_add_u32 s6, s6, s7")
        a("s_lshl_b32 s7, s6, 11")
        a(f"s_lshl_b32 s3, s{S_H}, 17")
        a("s_add_u32 s7, s7, s3")
        a(f"s_add_u32 s7, s7, {WS_QA}")
        a(f"s_mov_b32 s{S_MODE}, 0")
        a(f"s_mov_b32 s{S_SOFF}, s{S_WOFF}")

    def rest(self, a):
        n = self.name
        ws = f"s[{S_WS}:{S_WS+3}]"
        if hasattr(self, "pre_loads"): self.pre_loads(a)
        for l in self.dma_piece(0, 0) + self.dma_piece(0, 1): a(l)
        for i in range(4):
            a(f"buffer_load_dwordx4 {vr(VQ + 4 * i, 4)}, v{V_LANE16}, {ws}, s7 offen offset:{i * 1024} {self.hmod}")
        for l in self.dma_piece(0, 2) + self.dma_piece(0, 3): a(l)
        a(f"s_add_u32 s6, s6, s{S_KH}")
        a("s_lshl_b32 s7, s6, 7")
        a(f"s_add_u32 s7, s7, {WS_G}")
        a(f"v_and_b32 v{V_T0}, 31, v{V_T1}")
        a(f"v_lshlrev_b32 v{V_T0}, 2, v{V_T0}")
        a(f"buffer_load_dword v{V_G}, v{V_T0}, {ws}, s7 offen {self.hmod}")
        nbg = 1
        if self.bapply:
            a(f"s_lshl_b32 s6, s{S_H}, 18")
            a(f"s_add_u32 s6, s6, {WS_KVP}")
            a(f"s_add_u32 s{S_KVP}, s4, s6")
            a(f"s_addc_u32 s{S_KVP+1}, s5, 0")
            a(f"s_and_b32 s{S_KVP+1}, s{S_KVP+1}, 0xffff")
            a(f"s_mov_b32 s{S_KVP+2}, {NKVP * KVP_STRIDE}")
            a(f"s_mov_b32 s{S_KVP+3}, 0x00020000")
            a(f"v_lshrrev_b32 v{V_ZOFF}, 4, v{V_T1}")
            a(f"v_lshlrev_b32 v{V_ZOFF}, 4, v{V_ZOFF}")
            for l in self.part_reset(): a(l)
            if not hasattr(self, "deferred_stores"):
                for r in range(8 * self.npb): a(f"v_mov_b32 v{VPT + r}, 0")
        self.nbg = nbg
        self.pstamp(a, 1)
        a(f"v_lshrrev_b32 v{V_T0}, 4, v{V_T1}")
        a(f"v_lshrrev_b32 v{V_T2}, 2, v{V_T1}")
        a(f"v_xor_b32 v{V_T0}, v{V_T0}, v{V_T2}")
        a(f"v_and_b32 v{V_T0}, 1, v{V_T0}")
        a(f"v_mov_b32 v{V_T2}, 0x3f803f80")
        a(f"v_cmp_eq_u32 vcc, 0, v{V_T0}")
        a("s_nop 1")
        a(f"v_cndmask_b32 v{VONE}, 0, v{V_T2}, vcc")
        for r in range(1, 4): a(f"v_mov_b32 v{VONE + r}, v{VONE}")
        if hasattr(self, "early_setup"): self.early_setup(a)
        for r in range(32): a(f"v_mov_b32 v{VO + r}, 0")
        for r in range(8): a(f"v_mov_b32 v{VL + r}, 0")
        for r in range(8): a(f"v_mov_b32 v{VP + r}, 0")
        for r in range(4): a(f"v_mov_b32 v{VVF + 8 + 4 + r}, 0")
        if hasattr(self, "first_wait"): self.first_wait(a)
        else: a(f"s_waitcnt vmcnt({self.nbg})")
        a(f"s_branch {n}_first")
        a.label(f"{n}_restart")
        a(f"s_mov_b32 s{S_SOFF}, s{S_WOFF}")
        for l in self.dma_stage(0): a(l)
        if self.bapply:
            for l in self.part_reset(): a(l)
            for r in range(8 * self.npb): a(f"v_mov_b32 v{VPT + r}, 0")
        for r in range(32): a(f"v_mov_b32 v{VO + r}, 0")
        for r in range(8): a(f"v_mov_b32 v{VL + r}, 0")
        for r in range(8): a(f"v_mov_b32 v{VP + r}, 0")
        for r in range(4): a(f"v_mov_b32 v{VVF + 8 + 4 + r}, 0")
        a("s_waitcnt vmcnt(0)")
        a.label(f"{n}_first")
        a("s_barrier")
        self.pstamp(a, 2)
        for l in self.dma_piece(1, 0) + self.dma_piece(1, 1): a(l)
        if hasattr(self, "deferred_stores"): self.deferred_stores(a)
        if self.bapply and not hasattr(self, "switch_code"):
            a(f"s_cmp_lg_u32 s{S_MODE}, 0")
            a(f"s_cbranch_scc1 {n}_nobl")
            self.b_loads(a)
            a.label(f"{n}_nobl")
        a(f"ds_read_b128 {vr(VKF + 8, 4)}, v{V_LANE16}")
        a(f"ds_read_b128 {vr(VKF + 12, 4)}, v{V_LANE16} offset:1024")
        for l in self.rdK(0) + self.rdV(0): a(l)
        a(f"s_cmp_lg_u32 s{S_MODE}, 0")
        a(f"s_cbranch_scc1 {n}_havemax")
        a("s_waitcnt lgkmcnt(4)")
        for qt in range(2):
            s = VS + 16 * qt
            a(f"v_mfma_f32_32x32x16_bf16 {vr(s, 16)}, {vr(VKF + 8, 4)}, {vr(VQ + 8 * qt, 4)}, 0")
            a(f"v_mfma_f32_32x32x16_bf16 {vr(s, 16)}, {vr(VKF + 12, 4)}, {vr(VQ + 8 * qt + 4, 4)}, {vr(s, 16)}")
        a("s_nop 15")
        for qt in range(2):
            s, x = VS + 16 * qt, V_T0 + 2 * qt
            a(f"v_max3_f32 v{x}, v{s}, v{s + 1}, v{s + 2}")
            for r in range(3, 15, 2):
                a(f"v_max3_f32 v{x}, v{x}, v{s + r}, v{s + r + 1}")
            a(f"v_max_f32 v{x}, v{x}, v{s + 15}")
        for qt in range(2):
            x = V_T0 + 2 * qt
            self.halfmax(a, x, V_T3)
            a(f"v_add_f32 v{x}, {f32bits(self.margin)}, v{x}")
            a(f"v_sub_f32 v{VC + 16 * qt}, 0, v{x}")
            for r in range(1, 16): a(f"v_mov_b32 v{VC + 16 * qt + r}, v{VC + 16 * qt}")
        a.label(f"{n}_havemax")
        a("s_waitcnt lgkmcnt(0)")
        a(f"v_mfma_f32_32x32x16_bf16 {vr(VS, 16)}, {vr(VKF, 4)}, {vr(VQ, 4)}, {vr(VC, 16)}")
        a(f"v_mfma_f32_32x32x16_bf16 {vr(VS, 16)}, {vr(VKF + 4, 4)}, {vr(VQ + 4, 4)}, {vr(VS, 16)}")
        a("s_nop 7")
        a(f"s_mov_b32 s{S_CNT}, {32 // (2 * TPW)}")
        if self.prio:
            a(f"s_cmp_ge_u32 s{S_WV}, 4")
            a(f"s_cbranch_scc0 {n}_noprio")
            a("s_setprio 1")
            a.label(f"{n}_noprio")
        self.pstamp(a, 3)
        a("s_nop 3")
        npeel = getattr(self, "peel", 0)
        for p in range(npeel):
            self.pass_idx = p
            for j in range(2 * TPW):
                for qt in range(2):
                    self.unit(a, j, qt)
        if npeel:
            self.pass_idx = None
            a(f"s_mov_b32 s{S_CNT}, {32 // (2 * TPW) - npeel}")
        a(".p2align 6")
        a.label(f"{n}_loop")
        for j in range(2 * TPW):
            for qt in range(2):
                self.unit(a, j, qt)
        a(f"s_sub_u32 s{S_CNT}, s{S_CNT}, 1")
        a(f"s_cmp_lg_u32 s{S_CNT}, 0")
        a(f"s_cbranch_scc1 {n}_loop")
        a("s_nop 1")
        if self.sched < 5:
            a(f"v_mfma_f32_32x32x16_bf16 {vr(VO + 16, 16)}, {vr(VVF + 8 + 4, 4)}, {vr(VP + 4, 4)}, {vr(VO + 16, 16)}")
            a(f"v_mfma_f32_16x16x32_bf16 {vr(VL + 4, 4)}, {vr(VONE, 4)}, {vr(VP + 4, 4)}, {vr(VL + 4, 4)}")
        if self.prio: a("s_setprio 0")
        self.pstamp(a, 4)
        a("s_waitcnt vmcnt(0) lgkmcnt(0)")
        if self.bapply:
            for l in self.part_add(): a(l)
        a("s_nop 15")
        a(f"s_mov_b32 s3, 0")
        if not self.diag:
            a(f"v_mul_f32 v{V_T0}, {f32bits(256.0)}, v{VL}")
            a(f"v_mul_f32 v{V_T2}, {f32bits(256.0)}, v{VL + 4}")
            a(f"v_mul_f32 v{V_T0}, 0, v{V_T0}")
            a(f"v_fma_f32 v{V_T0}, v{V_T2}, 0, v{V_T0}")
            a(f"v_mov_b32 v216, 0")
            a(f"v_mov_b32 v217, 0")
            for r in range(0, 32, 2): a(f"v_pk_fma_f32 v[216:217], {vr(VO + r, 2)}, 0, v[216:217] op_sel_hi:[1,0,1]")
            a(f"v_add_f32 v{V_T0}, v{V_T0}, v216")
            a(f"v_add_f32 v{V_T0}, v{V_T0}, v217")
            if self.force_fallback:
                a(f"v_mov_b32 v{V_T0}, 0x7fc00000")
            a(f"v_cmp_u_f32 vcc, v{V_T0}, v{V_T0}")
            a(f"s_or_b32 s3, vcc_lo, vcc_hi")
            a(f"s_cmp_lg_u32 s3, 0")
            a(f"s_cselect_b32 s3, 1, 0")
        a(f"v_mov_b32 v{V_T0}, s3")
        a(f"s_lshl_b32 s6, s{S_WV}, 2")
        a(f"s_add_u32 s6, s6, {LDS_MISC + L_VOTE}")
        a(f"v_mov_b32 v{V_T2}, s6")
        a(f"ds_write_b32 v{V_T2}, v{V_T0}")
        a(f"s_mul_i32 s6, s{S_WV}, {5 * 1024}")
        a(f"s_add_u32 s6, s6, {L_XO}")
        a(f"v_add_u32 v{V_T2}, s6, v{V_LANE16}")
        a(f"s_cmp_eq_u32 s{S_KH}, 0")
        a(f"s_cbranch_scc1 {n}_give1")
        for qt, lab in ((0, ""), (1, f"{n}_give1")):
            if lab: a.label(lab)
            for k in range(4):
                a(f"ds_write_b128 v{V_T2}, {vr(VO + 16 * qt + 4 * k, 4)} offset:{k * 1024}")
            a(f"ds_write_b128 v{V_T2}, {vr(VL + 4 * qt, 4)} offset:4096")
            if qt == 0: a(f"s_branch {n}_gave")
        a.label(f"{n}_gave")
        if self.bapply: self.b_publish(a)
        a("s_waitcnt lgkmcnt(0)")
        a("s_barrier")
        a(f"v_mov_b32 v{V_T0}, {LDS_MISC + L_VOTE}")
        a(f"ds_read_b128 v[216:219], v{V_T0}")
        a(f"ds_read_b128 v[220:223], v{V_T0} offset:16")
        a(f"s_xor_b32 s6, s{S_WV}, 4")
        a(f"s_mul_i32 s6, s6, {5 * 1024}")
        a(f"s_add_u32 s6, s6, {L_XO}")
        a(f"v_add_u32 v{V_T2}, s6, v{V_LANE16}")
        for k in range(4):
            a(f"ds_read_b128 {vr(VS + 4 * k, 4)}, v{V_T2} offset:{k * 1024}")
        a(f"ds_read_b128 {vr(VS + 16, 4)}, v{V_T2} offset:4096")
        a("s_waitcnt lgkmcnt(5)")
        a("v_or3_b32 v216, v216, v217, v218")
        a("v_or3_b32 v216, v216, v219, v220")
        a("v_or3_b32 v216, v216, v221, v222")
        a("v_or_b32 v216, v216, v223")
        a("s_nop 0")
        a("v_readfirstlane_b32 s3, v216")
        a(f"s_sub_u32 s6, 1, s{S_MODE}")
        a("s_and_b32 s3, s3, s6")
        a("s_cmp_eq_u32 s3, 0")
        a(f"s_cbranch_scc1 {n}_fin")
        a("s_waitcnt lgkmcnt(0)")
        a("s_barrier")
        a(f"s_mov_b32 s{S_SOFF}, s{S_WOFF}")
        a(f"s_mov_b32 s{S_CNT}, {64 // TPS}")
        a(f"v_mov_b32 v{V_T0}, 0xff800000")
        a(f"v_mov_b32 v{V_T2}, 0xff800000")
        a.label(f"{n}_maxloop")
        for l in self.dma_stage(0): a(l)
        a("s_waitcnt vmcnt(0)")
        a("s_barrier")
        for j in range(TPS):
            a(f"ds_read_b128 {vr(VKF, 4)}, v{V_LANE16} offset:{j * 2048}")
            a(f"ds_read_b128 {vr(VKF + 4, 4)}, v{V_LANE16} offset:{j * 2048 + 1024}")
            a("s_waitcnt lgkmcnt(0)")
            for qt in range(2):
                s = VS + 16 * qt
                a(f"v_mfma_f32_32x32x16_bf16 {vr(s, 16)}, {vr(VKF, 4)}, {vr(VQ + 8 * qt, 4)}, 0")
                a(f"v_mfma_f32_32x32x16_bf16 {vr(s, 16)}, {vr(VKF + 4, 4)}, {vr(VQ + 8 * qt + 4, 4)}, {vr(s, 16)}")
            a("s_nop 15")
            for qt in range(2):
                s, x = VS + 16 * qt, V_T0 + 2 * qt
                for r in range(0, 16, 2):
                    a(f"v_max3_f32 v{x}, v{x}, v{s + r}, v{s + r + 1}")
        a("s_barrier")
        a(f"s_sub_u32 s{S_CNT}, s{S_CNT}, 1")
        a(f"s_cmp_lg_u32 s{S_CNT}, 0")
        a(f"s_cbranch_scc1 {n}_maxloop")
        for qt in range(2):
            x = V_T0 + 2 * qt
            self.halfmax(a, x, V_T3)
            a(f"v_sub_f32 v{VC + 16 * qt}, 0, v{x}")
            for r in range(1, 16): a(f"v_mov_b32 v{VC + 16 * qt + r}, v{VC + 16 * qt}")
        a(f"s_mov_b32 s{S_MODE}, 1")
        a(f"s_branch {n}_restart")
        a.label(f"{n}_fin")
        if hasattr(self, "after_decision"): self.after_decision(a)
        a(f"s_cmp_eq_u32 s{S_KH}, 0")
        a(f"s_cbranch_scc1 {n}_keep0")
        for r in range(16): a(f"v_mov_b32 v{VO + r}, v{VO + 16 + r}")
        a(f"v_mov_b32 v{VL}, v{VL + 4}")
        a.label(f"{n}_keep0")
        a(f"v_and_b32 v{V_T1}, 63, v0")
        a(f"v_bfe_u32 v{V_T0}, v{V_T1}, 4, 1")
        a(f"v_lshlrev_b32 v{V_T0}, 10, v{V_T0}")
        a(f"v_lshrrev_b32 v{V_T2}, 5, v{V_T1}")
        a(f"v_lshl_add_u32 v{V_T0}, v{V_T2}, 8, v{V_T0}")
        a(f"v_and_b32 v{V_T2}, 15, v{V_T1}")
        a(f"v_lshl_add_u32 v{V_T0}, v{V_T2}, 4, v{V_T0}")
        a("s_waitcnt lgkmcnt(0)")
        a(f"v_add_f32 v{VL}, v{VL}, v{VS + 16}")
        a(f"v_rcp_f32 v{V_T2}, v{VL}")
        for r in range(16): a(f"v_add_f32 v{VO + r}, v{VO + r}, v{VS + r}")
        a(f"v_mul_f32 v{V_T2}, v{V_T2}, v{V_G}")
        for r in range(16): a(f"v_mul_f32 v{VO + r}, v{V_T2}, v{VO + r}")
        for k in range(8): a(f"v_cvt_pk_bf16_f32 v{VS + k}, v{VO + 2 * k}, v{VO + 2 * k + 1}")
        a(f"s_lshl_b32 s6, s{S_QB}, 3")
        a(f"s_lshl_b32 s7, s{S_QG}, 1")
        a("s_add_u32 s6, s6, s7")
        a(f"s_add_u32 s6, s6, s{S_KH}")
        a("s_lshl_b32 s6, s6, 11")
        a(f"s_lshl_b32 s7, s{S_H}, 17")
        a("s_add_u32 s6, s6, s7")
        a(f"s_add_u32 s6, s6, {WS_O}")
        a(f"buffer_store_dwordx4 {vr(VS, 4)}, v{V_T0}, {ws}, s6 offen {self.store_mod}")
        a(f"buffer_store_dwordx4 {vr(VS + 4, 4)}, v{V_T0}, {ws}, s6 offen offset:512 {self.store_mod}")
        self.pstamp(a, 5)
        if self.bapply:
            self.b_apply(a)
        last = 6
        if hasattr(self, "project"):
            self.project(a); last = 9
        if self.prof:
            a("s_waitcnt vmcnt(0)")
            self.pstamp(a, last)
            self.pflush(a, 1, 8, S_WV, ws)
```

```python
from asmlib import *
from layout import *
from prof import Prof
from dbgstamp import dbg_setup, dbg_stamp

MARGIN = 90.0
TPS, TPW = 8, 4
STG = TPS * 4096
LDS_MISC = 2 * STG
L_KV, L_Z, L_WP, L_VOTE, L_SPARE = 0, 4096, 6144, 8192, 8448
L_XO = LDS_MISC + 8448 + 1024
LDS_K2 = L_XO + 8 * 5120

V_LANE16, V_T0, V_T1, V_T2, V_T3, V_G, V_RD = 1, 2, 3, 4, 5, 6, 7
VQ, VC, VS, VP, VKF, VVF, VO, VL, VONE = 8, 24, 56, 88, 96, 112, 128, 160, 168
S_WS, S_K, S_V = 8, 12, 16
S_H, S_QB, S_WV, S_SOFF, S_CNT, S_MODE, S_WOFF, S_QG, S_KH = 20, 21, 22, 23, 24, 25, 26, 27, 32
S_KVP, S_PKV, S_PZ = 44, 48, 49
VKA, VPT, VQB, VGB, V_ZOFF = 176, 184, 224, 244, 246

class K2d(Prof):
    V_PROF = 250
    def __init__(self, name, prof=False, store_mod="nt", force_fallback=False, margin=MARGIN, sched=1, bapply=True, prio=0, diag=(), code=None, dbg=None, wsbase=0):
        self.name, self.prof, self.store_mod = name, prof, store_mod
        self.force_fallback, self.margin, self.sched, self.bapply, self.prio = force_fallback, margin, sched, bapply, prio
        self.diag = set(diag)
        self.code = code
        self.npb = 2
        self.hmod = ''
        self.wsbase = wsbase
        self.dbg = dbg

    def dma_piece(self, slot, i):
        kv, n = i >> 1, i & 1
        srd_ = S_K if kv == 0 else S_V
        ins = []
        if n == 0:
            ins += [f"s_add_u32 m0, s{S_WOFF}, {slot * STG + kv * (STG // 2)}", "s_nop 0"]
        ins.append(f"buffer_load_dwordx4 v{V_LANE16}, s[{srd_}:{srd_+3}], s{S_SOFF} offen offset:{n * 1024} {self.hmod} lds")
        if i == 3:
            ins.append(f"s_add_u32 s{S_SOFF}, s{S_SOFF}, {STG // 2}")
        return ins
    def dma_stage(self, slot):
        return [l for i in range(4) for l in self.dma_piece(slot, i)]

    @staticmethod
    def koff(j): return (j // TPW) * STG + (j % TPW) * 2048
    def rdK(self, j):
        b = VKF + 8 * (j & 1); j %= 2 * TPW
        return [f"ds_read_b128 {vr(b + 4 * st, 4)}, v{V_RD} offset:{self.koff(j) + st * 1024}" for st in range(2)]
    def rdV(self, j):
        b = VVF + 8 * (j & 1); j %= 2 * TPW
        return [f"ds_read_b128 {vr(b + 4 * st, 4)}, v{V_RD} offset:{self.koff(j) + STG // 2 + st * 1024}" for st in range(2)]

    def unit(self, a, j, qt):
        u = 2 * j + qt
        s, sn = VS + 16 * (u & 1), VS + 16 * ((u + 1) & 1)
        jn, qn = (j + (qt == 1), qt ^ 1)
        kn = VKF + 8 * (jn & 1)
        jp, qp = (j - (qt == 0), qt ^ 1)
        v, vp = VVF + 8 * (j & 1), VVF + 8 * (jp & 1)
        e = lambda r: f"v_exp_f32 v{s + r}, v{s + r}"
        c = lambda k: f"v_cvt_pk_bf16_f32 v{VP + k}, v{s + 2 * k}, v{s + 2 * k + 1}"
        O, Op, Lq, Lp = VO + 16 * qt, VO + 16 * qp, VL + 4 * qt, VL + 4 * qp
        Sa = f"v_mfma_f32_32x32x16_bf16 {vr(sn, 16)}, {vr(kn, 4)}, {vr(VQ + 8 * qn, 4)}, {vr(VC + 16 * qn, 16)}"
        Sb = f"v_mfma_f32_32x32x16_bf16 {vr(sn, 16)}, {vr(kn + 4, 4)}, {vr(VQ + 8 * qn + 4, 4)}, {vr(sn, 16)}"
        PVa = f"v_mfma_f32_32x32x16_bf16 {vr(O, 16)}, {vr(v, 4)}, {vr(VP, 4)}, {vr(O, 16)}"
        PVb = f"v_mfma_f32_32x32x16_bf16 {vr(Op, 16)}, {vr(vp + 4, 4)}, {vr(VP + 4, 4)}, {vr(Op, 16)}"
        La = f"v_mfma_f32_16x16x32_bf16 {vr(Lq, 4)}, {vr(VONE, 4)}, {vr(VP, 4)}, {vr(Lq, 4)}"
        Lb = f"v_mfma_f32_16x16x32_bf16 {vr(Lp, 4)}, {vr(VONE, 4)}, {vr(VP + 4, 4)}, {vr(Lp, 4)}"
        rd = self.rdK(j + 1) if qt == 0 else self.rdV(j + 1)
        top = ["s_waitcnt lgkmcnt(0)"]
        jj = j % TPW
        if jj == TPW - 1 and qt == 0:
            if hasattr(self, "switch_code"):
                top += self.switch_code(j)
            else:
                top += ["s_waitcnt vmcnt(0)", "s_barrier"]
                if self.bapply: top += self.part_add() + self.part_loads()
                if hasattr(self, "touch_lines"): top += self.touch_lines()
        if hasattr(self, "first_iter_issue") and j == 1 and qt == 0 and self.pass_idx == 1: top += self.first_iter_issue()
        k = (2 * jj + qt - 2 * (TPW - 1)) % (2 * TPW)
        dm = []
        if k < 4:
            dm = self.dma_piece((((j + 1) // TPW) + 1) & 1, k)
        if self.prio >= 2:
            r = (2 * jj + qt - 2 * (TPW - 1)) % (2 * TPW)
            if self.prio == 2 and r % 2 == 0: top = top + [f"s_setprio {3 - r // 2}"]
            if self.prio == 3 and r in (0, 4): top = top + [f"s_setprio {1 - r // 4}"]
            if self.prio == 4 and r in (0, 3, 5, 7): top = top + [f"s_setprio {3 - (0, 3, 5, 7).index(r)}"]
        if hasattr(self, "unit_hook"): dm = dm + self.unit_hook(j, qt)
        r0, r1 = rd[:1], rd[1:]
        if self.sched == 1:
            seq = (top + [e(0)] + r0 + [e(1)] + r1 + [e(2), e(3), Sa, c(0), c(1), e(4), e(5), Lb, e(6), e(7), c(2), c(3), Sb,
                   e(8)] + dm + [e(9), e(10), e(11), PVb, c(4), c(5), e(12), e(13), PVa, e(14), e(15), c(6), c(7), La])
        elif self.sched == 2:
            seq = (top + r0 + r1 + [e(0), e(1), e(2), e(3), Sa, c(0), c(1), e(4), e(5), Lb, e(6), e(7), c(2), c(3), Sb] + dm +
                   [e(8), e(9), e(10), e(11), PVb, c(4), c(5), e(12), e(13), PVa, e(14), e(15), c(6), c(7), La])
        elif self.sched == 3:
            seq = (top + r0 + r1 + [Sa, e(0), e(1), e(2), e(3), Lb, c(0), c(1), e(4), e(5), Sb, e(6), e(7), c(2), c(3), PVb] + dm +
                   [e(8), e(9), e(10), e(11), PVa, c(4), c(5), e(12), e(13), La, e(14), e(15), c(6), c(7)])
        elif self.sched == 4:
            seq = (top + [e(0), e(1)] + r0 + [e(2), e(3), Sa] + r1 + [c(0), c(1), e(4), e(5), e(6), e(7), Sb, c(2), c(3), Lb] + dm +
                   [e(8), e(9), e(10), e(11), PVb, c(4), c(5), e(12), e(13), PVa, e(14), e(15), c(6), c(7), La])
        elif self.sched in (5, 6, 7):
            PVb_now = f"v_mfma_f32_32x32x16_bf16 {vr(O, 16)}, {vr(v + 4, 4)}, {vr(VP + 4, 4)}, {vr(O, 16)}"
            Lb_now = f"v_mfma_f32_16x16x32_bf16 {vr(Lq, 4)}, {vr(VONE, 4)}, {vr(VP + 4, 4)}, {vr(Lq, 4)}"
            valu = [e(0), e(1), e(2), e(3), c(0), e(4), c(1), e(5), e(6), e(7), c(2), e(8), c(3), e(9), e(10), e(11), c(4), e(12), c(5), e(13), e(14), e(15), "s_nop 0", c(6), c(7)]
            if self.sched == 5:
                seq = top + r0 + r1 + valu + dm + [Sa, Sb, PVa, La, PVb_now, Lb_now, "s_nop 7"]
            elif self.sched == 6:
                seq = top + r0 + r1 + valu[:8] + [Sa] + valu[8:16] + [Sb] + valu[16:] + dm + ["s_nop 1", PVa, La, PVb_now, Lb_now]
            else:
                seq = top + r0 + r1 + [Sa] + valu[:4] + [Sb] + valu[4:] + dm + ["s_nop 1", PVa, PVb_now, La, Lb_now]
        D = self.diag
        if "nord" in D: seq = [l for l in seq if not l.startswith("ds_read")]
        if "noL" in D: seq = [l for l in seq if "16x16x32" not in l]
        for l in seq: a(l)

    def halfmax(self, a, x, t):
        a(f"v_mov_b32 v{t}, v{x}")
        a("s_nop 1")
        a(f"v_permlane32_swap_b32 v{x}, v{t}")
        a("s_nop 1")
        a(f"v_max_f32 v{x}, v{x}, v{t}")

    NT = 2
    def part_loads(self):
        kvp = f"s[{S_KVP}:{S_KVP+3}]"
        r = []
        for b in range(self.npb):
            r += [f"buffer_load_dwordx4 {vr(VPT + 8 * b, 4)}, v{V_LANE16}, {kvp}, s{S_PKV} offen {self.hmod}",
                  f"buffer_load_dwordx4 {vr(VPT + 8 * b + 4, 4)}, v{V_ZOFF}, {kvp}, s{S_PZ} offen {self.hmod}",
                  f"s_add_u32 s{S_PKV}, s{S_PKV}, {KVP_STRIDE}", f"s_add_u32 s{S_PZ}, s{S_PZ}, {KVP_STRIDE}"]
        return r
    def part_add(self):
        return [f"v_pk_add_f32 {vr(VKA + r, 2)}, {vr(VKA + r, 2)}, {vr(VPT + 8 * b + r, 2)}" for b in range(self.npb) for r in range(0, 8, 2)]
    def part_reset(self):
        return ([f"s_lshl_b32 s{S_PKV}, s{S_WV}, 10", f"s_and_b32 s{S_PZ}, s{S_WV}, 3", f"s_lshl_b32 s{S_PZ}, s{S_PZ}, 6",
                 f"s_add_u32 s{S_PZ}, s{S_PZ}, 8192"] + [f"v_mov_b32 v{VKA + r}, 0" for r in range(8)])

    def b_loads(self, a):
        ws = f"s[{S_WS}:{S_WS+3}]"
        a(f"s_lshl_b32 s6, s{S_QB}, 4")
        a(f"s_lshl_b32 s7, s{S_WV}, 1")
        a("s_add_u32 s6, s6, s7")
        a("s_lshl_b32 s7, s6, 10")
        a(f"s_lshl_b32 s3, s{S_H}, 17")
        a("s_add_u32 s7, s7, s3")
        a(f"s_add_u32 s7, s7, {WS_QB}")
        for t in range(self.NT):
            a(f"buffer_load_dwordx4 {vr(VQB + 4 * t, 4)}, v{V_LANE16}, {ws}, s7 offen offset:{t * 1024} {self.hmod}")
        a("s_lshl_b32 s7, s6, 6")
        a(f"s_add_u32 s7, s7, {WS_G}")
        a(f"v_and_b32 v{V_T0}, 15, v{V_T1}")
        a(f"v_lshlrev_b32 v{V_T0}, 2, v{V_T0}")
        for t in range(self.NT):
            a(f"buffer_load_dword v{VGB + t}, v{V_T0}, {ws}, s7 offen offset:{t * 64} {self.hmod}")
        a(f"s_lshl_b32 s6, s{S_H}, 11")
        a(f"s_lshl_b32 s7, s{S_WV}, 10")
        a("s_add_u32 s6, s6, s7")
        a(f"s_cmp_ge_u32 s{S_WV}, 2")
        a("s_cselect_b32 s6, 0x10000, s6")
        a(f"s_cselect_b32 s7, {L_SPARE - L_WP}, s7")
        a(f"s_add_u32 m0, s7, {LDS_MISC + L_WP}")
        a("s_nop 0")
        a(f"buffer_load_dwordx4 v{V_LANE16}, s[28:31], s6 offen lds")

    def b_publish(self, a):
        for k in range(4):
            a(f"v_cvt_pk_bf16_f32 v{VPT + k}, v{VKA + 2 * k}, v{VKA + 2 * k + 1}")
        a(f"v_and_b32 v{V_T1}, 63, v0")
        a(f"v_lshlrev_b32 v{V_T0}, 3, v{V_T1}")
        a(f"v_add_u32 v{V_T0}, {LDS_MISC}, v{V_T0}")
        a(f"s_lshl_b32 s6, s{S_WV}, 9")
        a(f"v_add_u32 v{V_T3}, s6, v{V_T0}")
        a(f"ds_write_b64 v{V_T3}, {vr(VPT, 2)} offset:{L_KV}")
        a(f"s_and_b32 s6, s{S_WV}, 3")
        a(f"s_lshl_b32 s6, s6, 9")
        a(f"v_add_u32 v{V_T3}, s6, v{V_T0}")
        a(f"ds_write_b64 v{V_T3}, {vr(VPT + 2, 2)} offset:{L_Z}")

    def b_apply(self, a):
        ws = f"s[{S_WS}:{S_WS+3}]"
        NT = self.NT
        a(f"v_and_b32 v{V_T1}, 63, v0")
        a(f"v_lshlrev_b32 v{V_T0}, 3, v{V_T1}")
        a(f"v_add_u32 v{V_T0}, {LDS_MISC}, v{V_T0}")
        for sg in range(2):
            for dt in range(2):
                for ft in range(2):
                    t = (sg * 2 + ft) * 2 + dt
                    a(f"ds_read_b64 {vr(24 + (sg * 2 + dt) * 4 + 2 * ft, 2)}, v{V_T0} offset:{L_KV + t * 512}")
            for ft in range(2):
                a(f"ds_read_b64 {vr(40 + sg * 4 + 2 * ft, 2)}, v{V_T0} offset:{L_Z + (sg * 2 + ft) * 512}")
        a(f"v_lshrrev_b32 v{V_T2}, 4, v{V_T1}")
        a(f"v_bfe_u32 v{V_T3}, v{V_T1}, 2, 2")
        a(f"v_lshl_add_u32 v{V_T2}, v{V_T2}, 2, v{V_T3}")
        a(f"v_lshlrev_b32 v{V_T2}, 6, v{V_T2}")
        a(f"v_and_b32 v{V_T3}, 3, v{V_T1}")
        a(f"v_lshl_add_u32 v{V_T2}, v{V_T3}, 3, v{V_T2}")
        a(f"v_add_u32 v{V_T2}, {LDS_MISC}, v{V_T2}")
        for ft in range(2):
            for q in range(2):
                a(f"ds_read_b64_tr_b16 {vr(48 + 4 * ft + 2 * q, 2)}, v{V_T2} offset:{L_WP + q * 1024 + ft * 32}")
        a(f"v_mov_b32 v56, 0x3f803f80")
        for r in range(1, 4): a(f"v_mov_b32 v{56 + r}, v56")
        a("s_waitcnt lgkmcnt(0)")
        for t in range(NT):
            for ft in range(2):
                a(f"v_mfma_f32_16x16x32_bf16 {vr(64 + 8 * t + 4 * ft, 4)}, {vr(48 + 4 * ft, 4)}, {vr(VQB + 4 * t, 4)}, 0")
        a("s_nop 7")
        P = lambda t, i: 64 + 8 * t + i
        MX, MN, TM = 96, 100, 104
        T = range(NT)
        for t in T:
            a(f"v_max3_f32 v{MX+2*t}, v{P(t,0)}, v{P(t,1)}, v{P(t,2)}")
            a(f"v_min3_f32 v{MN+2*t}, v{P(t,0)}, v{P(t,1)}, v{P(t,2)}")
        for i in (3, 5):
            for t in T:
                a(f"v_max3_f32 v{MX+2*t}, v{MX+2*t}, v{P(t,i)}, v{P(t,i+1)}")
                a(f"v_min3_f32 v{MN+2*t}, v{MN+2*t}, v{P(t,i)}, v{P(t,i+1)}")
        for t in T:
            a(f"v_max_f32 v{MX+2*t}, v{MX+2*t}, v{P(t,7)}")
            a(f"v_min_f32 v{MN+2*t}, v{MN+2*t}, v{P(t,7)}")
        for t in T: a(f"v_sub_f32 v{MN+2*t}, 0, v{MN+2*t}")
        a("s_nop 1")
        for t in T: a(f"v_permlane32_swap_b32 v{MX+2*t}, v{MN+2*t}")
        a("s_nop 1")
        for t in T: a(f"v_max_f32 v{MX+2*t}, v{MX+2*t}, v{MN+2*t}")
        for t in T: a(f"v_mov_b32 v{TM+2*t}, v{MX+2*t}")
        a("s_nop 1")
        for t in T: a(f"v_permlane16_swap_b32 v{MX+2*t}, v{TM+2*t}")
        a("s_nop 1")
        for t in T: a(f"v_max_f32 v{MX+2*t}, v{MX+2*t}, v{TM+2*t}")
        for t in T: a(f"v_mov_b32 v{MN+2*t}, v{MX+2*t}")
        a("s_nop 1")
        for t in T: a(f"v_permlane32_swap_b32 v{MX+2*t}, v{MN+2*t}")
        a("s_nop 1")
        EP = lambda t, i: 176 + 8 * t + i
        a(f"s_mov_b32 s36, {f32bits(LOG2E)}")
        a(f"s_mov_b32 s37, {f32bits(LOG2E)}")
        a(f"s_mov_b32 s38, {f32bits(-LOG2E)}")
        a(f"s_mov_b32 s39, {f32bits(-LOG2E)}")
        for t in T:
            a(f"v_mul_f32 v{MX+2*t}, s38, v{MX+2*t}")
            a(f"v_mul_f32 v{MN+2*t}, s38, v{MN+2*t}")
        for t in T:
            for i in range(0, 8, 2):
                a(f"v_pk_fma_f32 {vr(EP(t,i), 2)}, {vr(P(t,i), 2)}, s[36:37], {vr(MX+2*t, 2)} op_sel_hi:[1,1,0]")
                a(f"v_pk_fma_f32 {vr(P(t,i), 2)}, {vr(P(t,i), 2)}, s[38:39], {vr(MN+2*t, 2)} op_sel_hi:[1,1,0]")
        for t in T:
            for i in range(8):
                a(f"v_exp_f32 v{EP(t,i)}, v{EP(t,i)}")
                a(f"v_exp_f32 v{P(t,i)}, v{P(t,i)}")
        BP, BM = 96, 112
        if hasattr(self, "b_mid"): self.b_mid(a)
        a("s_nop 0")
        for t in T:
            for k in range(4):
                a(f"v_cvt_pk_bf16_f32 v{BP + 4*t + k}, v{EP(t,2*k)}, v{EP(t,2*k+1)}")
                a(f"v_cvt_pk_bf16_f32 v{BM + 4*t + k}, v{P(t,2*k)}, v{P(t,2*k+1)}")
        a("s_nop 1")
        for t in T:
            R = 176 + 32 * t
            bp, bm = vr(BP + 4 * t, 4), vr(BM + 4 * t, 4)
            for dt in range(2):
                a(f"v_mfma_f32_16x16x32_bf16 {vr(R + 4 * dt, 4)}, {vr(24 + 4 * dt, 4)}, {bp}, 0")
                a(f"v_mfma_f32_16x16x32_bf16 {vr(R + 8 + 4 * dt, 4)}, {vr(32 + 4 * dt, 4)}, {bm}, 0")
            a(f"v_mfma_f32_16x16x32_bf16 {vr(R + 16, 4)}, {vr(40, 4)}, {bp}, 0")
            a(f"v_mfma_f32_16x16x32_bf16 {vr(R + 20, 4)}, {vr(44, 4)}, {bm}, 0")
            a(f"v_mfma_f32_16x16x32_bf16 {vr(R + 24, 4)}, {vr(56, 4)}, {bp}, 0")
            a(f"v_mfma_f32_16x16x32_bf16 {vr(R + 28, 4)}, {vr(56, 4)}, {bm}, 0")
        a("s_nop 7")
        for t in T:
            R = 176 + 32 * t
            a(f"v_rcp_f32 v{R + 24}, v{R + 24}")
            a(f"v_rcp_f32 v{R + 28}, v{R + 28}")
        a("s_nop 0")
        for t in T:
            R = 176 + 32 * t
            a(f"v_mul_f32 v{R + 16}, v{R + 16}, v{R + 24}")
            a(f"v_sub_f32 v{R + 17}, 1.0, v{VGB + t}")
            a(f"v_fma_f32 v{R + 16}, v{R + 20}, v{R + 28}, v{R + 16}")
            a(f"v_add_f32 v{R + 16}, {f32bits(1e-6)}, v{R + 16}")
        for t in T:
            a(f"v_rcp_f32 v{176 + 32 * t + 16}, v{176 + 32 * t + 16}")
        a("s_nop 0")
        for t in T:
            R = 176 + 32 * t
            a(f"v_mul_f32 v{R + 16}, v{R + 16}, v{R + 17}")
            a(f"v_mul_f32 v{R + 24}, v{R + 24}, v{R + 16}")
            a(f"v_mul_f32 v{R + 28}, v{R + 28}, v{R + 16}")
        for t in T:
            R = 176 + 32 * t
            for i in range(8): a(f"v_mul_f32 v{R + i}, v{R + i}, v{R + 24}")
            for i in range(8): a(f"v_fma_f32 v{R + i}, v{R + 8 + i}, v{R + 28}, v{R + i}")
        for t in T:
            R = 176 + 32 * t
            for k in range(4):
                a(f"v_cvt_pk_bf16_f32 v{R + 20 + k}, v{R + 2 * k}, v{R + 2 * k + 1}")
            a(f"s_lshl_b32 s6, s{S_QB}, 4")
            a(f"s_lshl_b32 s7, s{S_WV}, 1")
            a("s_add_u32 s6, s6, s7")
            a(f"s_add_u32 s6, s6, {t}")
            a("s_lshl_b32 s6, s6, 10")
            a(f"s_lshl_b32 s7, s{S_H}, 17")
            a("s_add_u32 s6, s6, s7")
            a(f"s_add_u32 s6, s6, {WS_O + 32 * 131072}")
            a(f"buffer_store_dwordx4 {vr(R + 20, 4)}, v{V_LANE16}, {ws}, s6 offen {self.store_mod}")

    def gen(self):
        a = Asm()
        n = self.name
        a("s_cmp_ge_u32 s2, 256")
        a(f"s_cbranch_scc1 {n}_end")
        self.pstamp(a, 0)
        self.body(a, True)
        a.label(f"{n}_end")
        a("s_endpgm")
        a.label(f"{n}_last")
        return kernel_header(n) + a.text() + kernel_desc(n, 256, 256)

    def body(self, a, standalone):
        self.setup(a, standalone)
        self.rest(a)

    def setup(self, a, standalone):
        n = self.name
        ws = f"s[{S_WS}:{S_WS+3}]"
        a("s_load_dwordx2 s[4:5], s[0:1], 80")
        a("s_load_dwordx2 s[34:35], s[0:1], 40")
        if hasattr(self, "entry_extra"): self.entry_extra(a)
        if self.code and standalone:
            first, last, nbytes = self.code
            code_prefetch(a, n, first, last, 8, 240, 242, 90)(-(-nbytes // 32768))
        a("s_and_b32 s3, s2, 7")
        a("s_lshr_b32 s6, s2, 3")
        a(f"s_lshl_b32 s{S_H}, s3, 2")
        a("s_lshr_b32 s7, s6, 3")
        a(f"s_add_u32 s{S_H}, s{S_H}, s7")
        a(f"s_and_b32 s{S_QB}, s6, 7")
        a("v_lshrrev_b32 v2, 6, v0")
        a(f"v_and_b32 v{V_T1}, 63, v0")
        a(f"v_lshlrev_b32 v{V_LANE16}, 4, v{V_T1}")
        a(f"v_readfirstlane_b32 s{S_WV}, v2")
        a("s_waitcnt lgkmcnt(0)")
        ws_shift(a, 4, self.wsbase)
        srd(a, S_WS, 4, 0x10000000 - self.wsbase)
        srd(a, 28, 34, 65536)
        a(f"s_lshl_b32 s3, s{S_H}, 17")
        for S, off in ((S_K, WS_KA), (S_V, WS_VA)):
            a(f"s_add_u32 s6, s3, {off}")
            a(f"s_add_u32 s{S}, s4, s6")
            a(f"s_addc_u32 s{S+1}, s5, 0")
            a(f"s_and_b32 s{S+1}, s{S+1}, 0xffff")
            a(f"s_mov_b32 s{S+2}, 131072")
            a(f"s_mov_b32 s{S+3}, 0x00020000")
        a(f"s_lshl_b32 s{S_WOFF}, s{S_WV}, 11")
        a(f"s_and_b32 s{S_QG}, s{S_WV}, 3")
        a(f"s_lshr_b32 s{S_KH}, s{S_WV}, 2")
        a(f"s_lshl_b32 s6, s{S_KH}, 13")
        a(f"v_add_u32 v{V_RD}, s6, v{V_LANE16}")
        a(f"s_lshl_b32 s6, s{S_QB}, 3")
        a(f"s_lshl_b32 s7, s{S_QG}, 1")
        a("s_add_u32 s6, s6, s7")
        a("s_lshl_b32 s7, s6, 11")
        a(f"s_lshl_b32 s3, s{S_H}, 17")
        a("s_add_u32 s7, s7, s3")
        a(f"s_add_u32 s7, s7, {WS_QA}")
        a(f"s_mov_b32 s{S_MODE}, 0")
        a(f"s_mov_b32 s{S_SOFF}, s{S_WOFF}")

    def rest(self, a):
        n = self.name
        ws = f"s[{S_WS}:{S_WS+3}]"
        if hasattr(self, "pre_loads"): self.pre_loads(a)
        for l in self.dma_piece(0, 0) + self.dma_piece(0, 1): a(l)
        for i in range(4):
            a(f"buffer_load_dwordx4 {vr(VQ + 4 * i, 4)}, v{V_LANE16}, {ws}, s7 offen offset:{i * 1024} {self.hmod}")
        for l in self.dma_piece(0, 2) + self.dma_piece(0, 3): a(l)
        a(f"s_add_u32 s6, s6, s{S_KH}")
        a("s_lshl_b32 s7, s6, 7")
        a(f"s_add_u32 s7, s7, {WS_G}")
        a(f"v_and_b32 v{V_T0}, 31, v{V_T1}")
        a(f"v_lshlrev_b32 v{V_T0}, 2, v{V_T0}")
        a(f"buffer_load_dword v{V_G}, v{V_T0}, {ws}, s7 offen {self.hmod}")
        nbg = 1
        if self.bapply:
            a(f"s_lshl_b32 s6, s{S_H}, 18")
            a(f"s_add_u32 s6, s6, {WS_KVP}")
            a(f"s_add_u32 s{S_KVP}, s4, s6")
            a(f"s_addc_u32 s{S_KVP+1}, s5, 0")
            a(f"s_and_b32 s{S_KVP+1}, s{S_KVP+1}, 0xffff")
            a(f"s_mov_b32 s{S_KVP+2}, {NKVP * KVP_STRIDE}")
            a(f"s_mov_b32 s{S_KVP+3}, 0x00020000")
            a(f"v_lshrrev_b32 v{V_ZOFF}, 4, v{V_T1}")
            a(f"v_lshlrev_b32 v{V_ZOFF}, 4, v{V_ZOFF}")
            for l in self.part_reset(): a(l)
            if not hasattr(self, "deferred_stores"):
                for r in range(8 * self.npb): a(f"v_mov_b32 v{VPT + r}, 0")
        self.nbg = nbg
        self.pstamp(a, 1)
        a(f"v_lshrrev_b32 v{V_T0}, 4, v{V_T1}")
        a(f"v_lshrrev_b32 v{V_T2}, 2, v{V_T1}")
        a(f"v_xor_b32 v{V_T0}, v{V_T0}, v{V_T2}")
        a(f"v_and_b32 v{V_T0}, 1, v{V_T0}")
        a(f"v_mov_b32 v{V_T2}, 0x3f803f80")
        a(f"v_cmp_eq_u32 vcc, 0, v{V_T0}")
        a("s_nop 1")
        a(f"v_cndmask_b32 v{VONE}, 0, v{V_T2}, vcc")
        for r in range(1, 4): a(f"v_mov_b32 v{VONE + r}, v{VONE}")
        if hasattr(self, "early_setup"): self.early_setup(a)
        for r in range(32): a(f"v_mov_b32 v{VO + r}, 0")
        for r in range(8): a(f"v_mov_b32 v{VL + r}, 0")
        for r in range(8): a(f"v_mov_b32 v{VP + r}, 0")
        for r in range(4): a(f"v_mov_b32 v{VVF + 8 + 4 + r}, 0")
        if hasattr(self, "first_wait"): self.first_wait(a)
        else: a(f"s_waitcnt vmcnt({self.nbg})")
        a(f"s_branch {n}_first")
        a.label(f"{n}_restart")
        a(f"s_mov_b32 s{S_SOFF}, s{S_WOFF}")
        for l in self.dma_stage(0): a(l)
        if self.bapply:
            for l in self.part_reset(): a(l)
            for r in range(8 * self.npb): a(f"v_mov_b32 v{VPT + r}, 0")
        for r in range(32): a(f"v_mov_b32 v{VO + r}, 0")
        for r in range(8): a(f"v_mov_b32 v{VL + r}, 0")
        for r in range(8): a(f"v_mov_b32 v{VP + r}, 0")
        for r in range(4): a(f"v_mov_b32 v{VVF + 8 + 4 + r}, 0")
        a("s_waitcnt vmcnt(0)")
        a.label(f"{n}_first")
        a("s_barrier")
        self.pstamp(a, 2)
        for l in self.dma_piece(1, 0) + self.dma_piece(1, 1): a(l)
        if hasattr(self, "deferred_stores"): self.deferred_stores(a)
        if self.bapply and not hasattr(self, "switch_code"):
            a(f"s_cmp_lg_u32 s{S_MODE}, 0")
            a(f"s_cbranch_scc1 {n}_nobl")
            self.b_loads(a)
            a.label(f"{n}_nobl")
        a(f"ds_read_b128 {vr(VKF + 8, 4)}, v{V_LANE16}")
        a(f"ds_read_b128 {vr(VKF + 12, 4)}, v{V_LANE16} offset:1024")
        for l in self.rdK(0) + self.rdV(0): a(l)
        a(f"s_cmp_lg_u32 s{S_MODE}, 0")
        a(f"s_cbranch_scc1 {n}_havemax")
        a("s_waitcnt lgkmcnt(4)")
        for qt in range(2):
            s = VS + 16 * qt
            a(f"v_mfma_f32_32x32x16_bf16 {vr(s, 16)}, {vr(VKF + 8, 4)}, {vr(VQ + 8 * qt, 4)}, 0")
            a(f"v_mfma_f32_32x32x16_bf16 {vr(s, 16)}, {vr(VKF + 12, 4)}, {vr(VQ + 8 * qt + 4, 4)}, {vr(s, 16)}")
        a("s_nop 15")
        for qt in range(2):
            s, x = VS + 16 * qt, V_T0 + 2 * qt
            a(f"v_max3_f32 v{x}, v{s}, v{s + 1}, v{s + 2}")
            for r in range(3, 15, 2):
                a(f"v_max3_f32 v{x}, v{x}, v{s + r}, v{s + r + 1}")
            a(f"v_max_f32 v{x}, v{x}, v{s + 15}")
        for qt in range(2):
            x = V_T0 + 2 * qt
            self.halfmax(a, x, V_T3)
            a(f"v_add_f32 v{x}, {f32bits(self.margin)}, v{x}")
            a(f"v_sub_f32 v{VC + 16 * qt}, 0, v{x}")
            for r in range(1, 16): a(f"v_mov_b32 v{VC + 16 * qt + r}, v{VC + 16 * qt}")
        a.label(f"{n}_havemax")
        a("s_waitcnt lgkmcnt(0)")
        a(f"v_mfma_f32_32x32x16_bf16 {vr(VS, 16)}, {vr(VKF, 4)}, {vr(VQ, 4)}, {vr(VC, 16)}")
        a(f"v_mfma_f32_32x32x16_bf16 {vr(VS, 16)}, {vr(VKF + 4, 4)}, {vr(VQ + 4, 4)}, {vr(VS, 16)}")
        a("s_nop 7")
        a(f"s_mov_b32 s{S_CNT}, {32 // (2 * TPW)}")
        if self.prio == 1:
            a(f"s_cmp_ge_u32 s{S_WV}, 4")
            a(f"s_cbranch_scc0 {n}_noprio")
            a("s_setprio 1")
            a.label(f"{n}_noprio")
        self.pstamp(a, 3)
        a("s_nop 3")
        npeel = getattr(self, "peel", 0)
        for p in range(npeel):
            self.pass_idx = p
            for j in range(2 * TPW):
                for qt in range(2):
                    self.unit(a, j, qt)
        if npeel:
            self.pass_idx = None
            a(f"s_mov_b32 s{S_CNT}, {32 // (2 * TPW) - npeel}")
        a(".p2align 6")
        a.label(f"{n}_loop")
        for j in range(2 * TPW):
            for qt in range(2):
                self.unit(a, j, qt)
        a(f"s_sub_u32 s{S_CNT}, s{S_CNT}, 1")
        a(f"s_cmp_lg_u32 s{S_CNT}, 0")
        a(f"s_cbranch_scc1 {n}_loop")
        a("s_nop 1")
        if self.sched < 5:
            a(f"v_mfma_f32_32x32x16_bf16 {vr(VO + 16, 16)}, {vr(VVF + 8 + 4, 4)}, {vr(VP + 4, 4)}, {vr(VO + 16, 16)}")
            a(f"v_mfma_f32_16x16x32_bf16 {vr(VL + 4, 4)}, {vr(VONE, 4)}, {vr(VP + 4, 4)}, {vr(VL + 4, 4)}")
        if self.prio: a("s_setprio 0")
        self.pstamp(a, 4)
        a("s_waitcnt vmcnt(0) lgkmcnt(0)")
        if self.bapply:
            for l in self.part_add(): a(l)
        a("s_nop 15")
        a(f"s_mov_b32 s3, 0")
        if not self.diag:
            a(f"v_mul_f32 v{V_T0}, {f32bits(256.0)}, v{VL}")
            a(f"v_mul_f32 v{V_T2}, {f32bits(256.0)}, v{VL + 4}")
            a(f"v_mul_f32 v{V_T0}, 0, v{V_T0}")
            a(f"v_fma_f32 v{V_T0}, v{V_T2}, 0, v{V_T0}")
            a(f"v_mov_b32 v216, 0")
            a(f"v_mov_b32 v217, 0")
            for r in range(0, 32, 2): a(f"v_pk_fma_f32 v[216:217], {vr(VO + r, 2)}, 0, v[216:217] op_sel_hi:[1,0,1]")
            a(f"v_add_f32 v{V_T0}, v{V_T0}, v216")
            a(f"v_add_f32 v{V_T0}, v{V_T0}, v217")
            if self.force_fallback:
                a(f"v_mov_b32 v{V_T0}, 0x7fc00000")
            a(f"v_cmp_u_f32 vcc, v{V_T0}, v{V_T0}")
            a(f"s_or_b32 s3, vcc_lo, vcc_hi")
            a(f"s_cmp_lg_u32 s3, 0")
            a(f"s_cselect_b32 s3, 1, 0")
        a(f"v_mov_b32 v{V_T0}, s3")
        a(f"s_lshl_b32 s6, s{S_WV}, 2")
        a(f"s_add_u32 s6, s6, {LDS_MISC + L_VOTE}")
        a(f"v_mov_b32 v{V_T2}, s6")
        a(f"ds_write_b32 v{V_T2}, v{V_T0}")
        a(f"s_mul_i32 s6, s{S_WV}, {5 * 1024}")
        a(f"s_add_u32 s6, s6, {L_XO}")
        a(f"v_add_u32 v{V_T2}, s6, v{V_LANE16}")
        a(f"s_cmp_eq_u32 s{S_KH}, 0")
        a(f"s_cbranch_scc1 {n}_give1")
        for qt, lab in ((0, ""), (1, f"{n}_give1")):
            if lab: a.label(lab)
            for k in range(4):
                a(f"ds_write_b128 v{V_T2}, {vr(VO + 16 * qt + 4 * k, 4)} offset:{k * 1024}")
            a(f"ds_write_b128 v{V_T2}, {vr(VL + 4 * qt, 4)} offset:4096")
            if qt == 0: a(f"s_branch {n}_gave")
        a.label(f"{n}_gave")
        if self.bapply: self.b_publish(a)
        a("s_waitcnt lgkmcnt(0)")
        a("s_barrier")
        a(f"v_mov_b32 v{V_T0}, {LDS_MISC + L_VOTE}")
        a(f"ds_read_b128 v[216:219], v{V_T0}")
        a(f"ds_read_b128 v[220:223], v{V_T0} offset:16")
        a(f"s_xor_b32 s6, s{S_WV}, 4")
        a(f"s_mul_i32 s6, s6, {5 * 1024}")
        a(f"s_add_u32 s6, s6, {L_XO}")
        a(f"v_add_u32 v{V_T2}, s6, v{V_LANE16}")
        for k in range(4):
            a(f"ds_read_b128 {vr(VS + 4 * k, 4)}, v{V_T2} offset:{k * 1024}")
        a(f"ds_read_b128 {vr(VS + 16, 4)}, v{V_T2} offset:4096")
        a("s_waitcnt lgkmcnt(5)")
        a("v_or3_b32 v216, v216, v217, v218")
        a("v_or3_b32 v216, v216, v219, v220")
        a("v_or3_b32 v216, v216, v221, v222")
        a("v_or_b32 v216, v216, v223")
        a("s_nop 0")
        a("v_readfirstlane_b32 s3, v216")
        a(f"s_sub_u32 s6, 1, s{S_MODE}")
        a("s_and_b32 s3, s3, s6")
        a("s_cmp_eq_u32 s3, 0")
        a(f"s_cbranch_scc1 {n}_fin")
        a("s_waitcnt lgkmcnt(0)")
        a("s_barrier")
        a(f"s_mov_b32 s{S_SOFF}, s{S_WOFF}")
        a(f"s_mov_b32 s{S_CNT}, {64 // TPS}")
        a(f"v_mov_b32 v{V_T0}, 0xff800000")
        a(f"v_mov_b32 v{V_T2}, 0xff800000")
        a.label(f"{n}_maxloop")
        for l in self.dma_stage(0): a(l)
        a("s_waitcnt vmcnt(0)")
        a("s_barrier")
        for j in range(TPS):
            a(f"ds_read_b128 {vr(VKF, 4)}, v{V_LANE16} offset:{j * 2048}")
            a(f"ds_read_b128 {vr(VKF + 4, 4)}, v{V_LANE16} offset:{j * 2048 + 1024}")
            a("s_waitcnt lgkmcnt(0)")
            for qt in range(2):
                s = VS + 16 * qt
                a(f"v_mfma_f32_32x32x16_bf16 {vr(s, 16)}, {vr(VKF, 4)}, {vr(VQ + 8 * qt, 4)}, 0")
                a(f"v_mfma_f32_32x32x16_bf16 {vr(s, 16)}, {vr(VKF + 4, 4)}, {vr(VQ + 8 * qt + 4, 4)}, {vr(s, 16)}")
            a("s_nop 15")
            for qt in range(2):
                s, x = VS + 16 * qt, V_T0 + 2 * qt
                for r in range(0, 16, 2):
                    a(f"v_max3_f32 v{x}, v{x}, v{s + r}, v{s + r + 1}")
        a("s_barrier")
        a(f"s_sub_u32 s{S_CNT}, s{S_CNT}, 1")
        a(f"s_cmp_lg_u32 s{S_CNT}, 0")
        a(f"s_cbranch_scc1 {n}_maxloop")
        for qt in range(2):
            x = V_T0 + 2 * qt
            self.halfmax(a, x, V_T3)
            a(f"v_sub_f32 v{VC + 16 * qt}, 0, v{x}")
            for r in range(1, 16): a(f"v_mov_b32 v{VC + 16 * qt + r}, v{VC + 16 * qt}")
        a(f"s_mov_b32 s{S_MODE}, 1")
        a(f"s_branch {n}_restart")
        a.label(f"{n}_fin")
        if hasattr(self, "after_decision"): self.after_decision(a)
        a(f"s_cmp_eq_u32 s{S_KH}, 0")
        a(f"s_cbranch_scc1 {n}_keep0")
        for r in range(16): a(f"v_mov_b32 v{VO + r}, v{VO + 16 + r}")
        a(f"v_mov_b32 v{VL}, v{VL + 4}")
        a.label(f"{n}_keep0")
        a(f"v_and_b32 v{V_T1}, 63, v0")
        a(f"v_bfe_u32 v{V_T0}, v{V_T1}, 4, 1")
        a(f"v_lshlrev_b32 v{V_T0}, 10, v{V_T0}")
        a(f"v_lshrrev_b32 v{V_T2}, 5, v{V_T1}")
        a(f"v_lshl_add_u32 v{V_T0}, v{V_T2}, 8, v{V_T0}")
        a(f"v_and_b32 v{V_T2}, 15, v{V_T1}")
        a(f"v_lshl_add_u32 v{V_T0}, v{V_T2}, 4, v{V_T0}")
        a("s_waitcnt lgkmcnt(0)")
        a(f"v_add_f32 v{VL}, v{VL}, v{VS + 16}")
        a(f"v_rcp_f32 v{V_T2}, v{VL}")
        for r in range(16): a(f"v_add_f32 v{VO + r}, v{VO + r}, v{VS + r}")
        a(f"v_mul_f32 v{V_T2}, v{V_T2}, v{V_G}")
        for r in range(16): a(f"v_mul_f32 v{VO + r}, v{V_T2}, v{VO + r}")
        for k in range(8): a(f"v_cvt_pk_bf16_f32 v{VS + k}, v{VO + 2 * k}, v{VO + 2 * k + 1}")
        a(f"s_lshl_b32 s6, s{S_QB}, 3")
        a(f"s_lshl_b32 s7, s{S_QG}, 1")
        a("s_add_u32 s6, s6, s7")
        a(f"s_add_u32 s6, s6, s{S_KH}")
        a("s_lshl_b32 s6, s6, 11")
        a(f"s_lshl_b32 s7, s{S_H}, 17")
        a("s_add_u32 s6, s6, s7")
        a(f"s_add_u32 s6, s6, {WS_O}")
        a(f"buffer_store_dwordx4 {vr(VS, 4)}, v{V_T0}, {ws}, s6 offen {self.store_mod}")
        a(f"buffer_store_dwordx4 {vr(VS + 4, 4)}, v{V_T0}, {ws}, s6 offen offset:512 {self.store_mod}")
        self.pstamp(a, 5)
        if self.bapply:
            self.b_apply(a)
        last = 6
        if hasattr(self, "project"):
            self.project(a); last = 9
        if self.prof:
            a("s_waitcnt vmcnt(0)")
            self.pstamp(a, last)
            self.pflush(a, 1, 8, S_WV, ws)
```

```python
from asmlib import *
from layout import *
from prof import Prof

XST, NX = 16384, 3
WRING, WSL, NW = 49152, 24576, 4
L_WP = WRING + NW * WSL
LDS_K1 = 163840
ACC = 64
def acc(sg, ft, tk): return ACC + ((sg * 2 + ft) * 4 + tk) * 4
FR = 160
def fX(p, tk): return FR + p * 40 + tk * 4
def fW(p, sg, ft): return FR + p * 40 + 16 + (sg * 2 + ft) * 4
V_XO, V_WO, V_XR, V_WR, V_WR2, V_PF = 1, 5, 12, 14, 16, 18
S_X, S_W, S_WS, S_WP, S_GW = 8, 12, 16, 60, 64
S_MT, S_HP, S_WV, S_SOX, S_SOW, S_W4K, S_W6K, S_TH, S_HH, S_BR, S_HD, S_ST = range(20, 32)
S_PF, S_PFO, S_PFS, S_TOK = 72, 76, 77, 78

class K1w(Prof):
    V_PROF = 250
    def __init__(self, name, prof=False, store_mod="sc1", code=None, rd_slots=None, pf=True, pf_per_unit=2, epi=True, pfwo=True, wsbase=0, prio=0, pf_first=4, dma_gap=2, split_dma=False, pf_start=0, gate_unit=None, hold=0, m32=False, pfwo_unit=14, diag=(), touch=0, late_side=None, lean=False, pf_after_hold=0):
        self.name, self.prof, self.store_mod, self.code = name, prof, store_mod, code
        self.pf_first, self.dma_gap, self.split_dma = pf_first, dma_gap, split_dma
        self.defer = False
        self.pf_start = pf_start
        self.gate_unit = gate_unit
        self.m32 = m32
        self.lean, self.pf_after_hold = lean, pf_after_hold
        self.late_side = late_side
        self.touch = touch
        self.diag = set(diag)
        self.pfwo_unit = pfwo_unit
        self.hold = hold
        self.rd_slots = rd_slots or [1 + (i * 22) // 16 for i in range(16)]
        self.pf, self.pf_per_unit, self.epi, self.pfwo, self.wsbase, self.prio = pf, pf_per_unit, epi, pfwo, wsbase, prio

    def mfmas(self, p):
        if self.m32:
            out = []
            for k2 in range(2):
                for tt in range(2):
                    for sg in range(3):
                        d = vr(ACC + (tt * 3 + sg) * 16, 16)
                        out += [f"v_mfma_f32_32x32x16_bf16 {d}, {vr(fW(p, sg, k2), 4)}, {vr(fX(p, tt * 2 + k2), 4)}, {d}", "s_nop 0"]
            return out
        out = []
        for tk in range(4):
            for sg in range(3):
                for ft in range(2):
                    d = vr(acc(sg, ft, tk), 4)
                    x, w = vr(fX(p, tk), 4), vr(fW(p, sg, ft), 4)
                    a, b = (x, w) if sg == 2 else (w, x)
                    out.append(f"v_mfma_f32_16x16x32_bf16 {d}, {a}, {b}, {d}")
        return out

    def rd(self, p, u):
        xo = ((u >> 1) % NX) * XST
        xs = [f"ds_read_b128 {vr(fX(p, tk), 4)}, v{V_XR + (u & 1)} offset:{xo + tk * 2048}" for tk in range(4)]
        slot = u % NW
        base = V_WR if slot < 2 else V_WR2
        w = [f"ds_read_b64_tr_b16 {vr(fW(p, sg, ft) + 2 * q, 2)}, v{base + ft} offset:{(slot & 1) * WSL + sg * 4096 + q * 512}"
             for sg in range(3) for ft in range(2) for q in range(2)]
        return [xs[0]] + w + xs[1:]

    def dmaW(self, uw):
        r = [f"s_add_u32 m0, s{S_W6K}, {WRING + (uw % NW) * WSL}", f"s_mov_b32 s{S_SOW}, {uw * 32 * 6144}"]
        for j in range(6):
            if j == 4: r += [f"s_add_u32 m0, s{S_W6K}, {WRING + (uw % NW) * WSL + 4096}", "s_nop 0"]
            r.append(f"buffer_load_dwordx4 v{V_WO + j}, s[{S_W}:{S_W+3}], s{S_SOW} offen offset:{(j & 3) * 1024} lds")
        return r
    def dmaX(self, sx, half):
        r = [f"s_add_u32 m0, s{S_W4K}, {(sx % NX) * XST + half * 2048}", f"s_mov_b32 s{S_SOX}, {sx * 128}"]
        for n in range(2):
            r.append(f"buffer_load_dwordx4 v{V_XO + half * 2 + n}, s[{S_X}:{S_X+3}], s{S_SOX} offen offset:{n * 1024} lds")
        return r
    def group(self, v):
        g, n = [], 0
        if 0 <= v + 3 < 32: g += self.dmaW(v + 3); n += 6
        if 0 <= v // 2 + 2 < 16: g += self.dmaX(v // 2 + 2, v & 1); n += 2
        return g, n
    def pf_load(self):
        if self.touch:
            return [f"buffer_load_dword v244, v{V_PF}, s[{S_PF}:{S_PF+3}], s{S_PFO} offen", f"s_add_u32 s{S_PFO}, s{S_PFO}, s{S_PFS}"]
        return [f"buffer_load_dwordx4 v[{244}:{247}], v{V_PF}, s[{S_PF}:{S_PF+3}], s{S_PFO} offen", f"s_add_u32 s{S_PFO}, s{S_PFO}, s{S_PFS}"]

    def role_block(self, a, tag, stager, other):
        n = self.name
        if not stager and not other: return []
        r = [f"s_cmp_lg_u32 s{S_ST}, 0"]
        if other:
            r += [f"s_cbranch_scc0 {n}_{tag}_o"] + stager + [f"s_branch {n}_{tag}_e", f"{n}_{tag}_o:"] + other + [f"{n}_{tag}_e:"]
        else:
            r += [f"s_cbranch_scc0 {n}_{tag}_e"] + stager + [f"{n}_{tag}_e:"]
        return r

    def main_loop(self, a, extra_first):
        size = lambda v: self.group(v)[1]
        npf_left = self.npf
        for u in range(32):
            a("s_waitcnt lgkmcnt(0)")
            fill = []
            if u < 31:
                v = u + 1
                allowed = size(v - 2) + size(v - 1) + (extra_first if v <= 2 else 0) if v >= 2 else 8 + size(0) + extra_first
                fill.append((0, self.role_block(a, f"w{u}", [f"s_waitcnt vmcnt({allowed})"], []) + ["s_barrier"]))
                for i, r in enumerate(self.rd((u + 1) & 1, u + 1)):
                    fill.append((self.rd_slots[i], [r]))
                g, n = self.group(v)
                k = min(self.pf_per_unit, npf_left); npf_left -= k
                other = [l for _ in range(k) for l in self.pf_load()]
                if self.late_side is not None and u == self.late_side:
                    b = Asm(); self.side_loads(b)
                    other = other + [l.strip() for l in b.lines]
                if self.late_side is not None and u == self.gate_unit:
                    other = other + self.gate_lines(1)
                elif u == self.gate_unit:
                    issued = (0 if self.hold else self.npf_first) + (self.npf - npf_left)
                    other = other + self.gate_lines(min(issued + 1, 63))
                if self.pfwo and self.pfwo_unit is not None and u in (self.pfwo_unit, self.pfwo_unit + 2):
                    other = other + self.pfwo_lines(0 if u == self.pfwo_unit else 1)
                other = other + self.unit_extra(u)
                if self.split_dma and g:
                    cut = next((i for i, l in enumerate(g) if f"s{S_W4K}" in l), len(g))
                    fill.append((self.dma_gap, self.role_block(a, f"d{u}", g[:cut], other)))
                    fill.append((self.dma_gap + 10, self.role_block(a, f"e{u}", g[cut:], [])))
                else:
                    fill.append((self.dma_gap, self.role_block(a, f"d{u}", g, other)))
            seq = interleave(self.mfmas(u & 1), fill)
            D = self.diag
            if "nodma" in D: seq = [l for l in seq if not (l.startswith("buffer_load") and l.endswith("lds")) and not l.startswith("s_waitcnt vm")]
            if "nordw" in D: seq = [l for l in seq if not l.startswith("ds_read_b64_tr")]
            if "nordx" in D: seq = [l for l in seq if not l.startswith("ds_read_b128")]
            if "nobar" in D: seq = [l for l in seq if not l.startswith("s_barrier")]
            for l in seq: a(l)

    def gen(self):
        a = Asm()
        n = self.name
        a("s_cmp_ge_u32 s2, 256")
        a(f"s_cbranch_scc1 {n}_end")
        self.pstamp(a, 0)
        if self.code:
            first, last, nbytes = self.code
            code_prefetch(a, n, first, last, 8, 252, 254, 90)(-(-nbytes // 32768))
        self.body(a)
        if self.prof:
            self.pstamp(a, 6)
            a("s_waitcnt vmcnt(0)")
            self.pstamp(a, 7)
            self.pflush(a, 0, 8, S_WV, f"s[{S_WS}:{S_WS+3}]")
        a.label(f"{n}_end")
        a("s_endpgm")
        a.label(f"{n}_last")
        return kernel_header(n) + a.text() + kernel_desc(n, 256, 256)

    def body(self, a):
        n = self.name
        a("s_load_dwordx4 s[44:47], s[0:1], 0")
        a("s_load_dwordx2 s[48:49], s[0:1], 32")
        a("s_load_dwordx2 s[52:53], s[0:1], 80")
        a("s_load_dwordx2 s[56:57], s[0:1], 40")
        a("s_load_dwordx2 s[58:59], s[0:1], 56")
        a("s_load_dwordx2 s[32:33], s[0:1], 16")
        a("s_load_dwordx2 s[34:35], s[0:1], 48")
        a("s_and_b32 s3, s2, 7")
        a("s_lshr_b32 s4, s2, 3")
        a("s_and_b32 s5, s3, 1")
        a("s_lshl_b32 s5, s5, 3")
        a("s_and_b32 s6, s4, 7")
        a(f"s_add_u32 s{S_MT}, s5, s6")
        a("s_lshr_b32 s5, s3, 1")
        a("s_lshl_b32 s5, s5, 2")
        a("s_lshr_b32 s6, s4, 3")
        a(f"s_add_u32 s{S_HP}, s5, s6")
        a("v_lshrrev_b32 v20, 6, v0")
        a("v_and_b32 v19, 63, v0")
        a("v_lshrrev_b32 v21, 3, v19")
        a(f"v_readfirstlane_b32 s{S_WV}, v20")
        a("v_and_b32 v22, 7, v19")
        a("v_lshrrev_b32 v23, 4, v19")
        a(f"s_and_b32 s{S_TH}, s{S_WV}, 1")
        a(f"s_bfe_u32 s{S_HH}, s{S_WV}, 0x10001")
        a(f"s_lshr_b32 s{S_BR}, s{S_WV}, 2")
        a(f"s_xor_b32 s{S_ST}, s{S_BR}, 1")
        a(f"s_and_b32 s7, s{S_WV}, 3")
        a(f"s_lshl_b32 s{S_HD}, s{S_HP}, 1")
        a(f"s_add_u32 s{S_HD}, s{S_HD}, s{S_HH}")
        a(f"s_lshl_b32 s3, s{S_MT}, 7")
        a("s_lshl_b32 s4, s7, 5")
        a("s_add_u32 s3, s3, s4")
        a("v_add_u32 v24, s3, v21")
        a("v_lshlrev_b32 v24, 11, v24")
        a("v_xor_b32 v25, v22, v23")
        a("v_xor_b32 v26, 4, v25")
        a("v_lshl_add_u32 v25, v25, 4, v24")
        a("v_lshl_add_u32 v26, v26, 4, v24")
        for nn in range(4):
            a(f"v_add_u32 v{V_XO + nn}, {nn * 16384 - (nn & 1) * 1024}, v{25 if nn % 2 == 0 else 26}")
        a("v_and_b32 v25, 1, v23")
        a("v_lshlrev_b32 v25, 1, v25")
        a("v_xor_b32 v25, v25, v22")
        a("s_mov_b32 s3, 6144")
        a("v_mul_lo_u32 v26, v21, s3")
        a(f"s_lshl_b32 s4, s{S_HP}, 7")
        a("v_add_u32 v26, s4, v26")
        a("v_lshl_add_u32 v28, v25, 4, v26")
        a("v_xor_b32 v27, 4, v25")
        a("v_lshl_add_u32 v27, v27, 4, v26")
        a("s_and_b32 s5, s7, 1")
        a("s_cmp_eq_u32 s5, 0")
        for j in range(6):
            off = [((6 * par + j) >> 2) * 2048 + ((6 * par + j) & 3) * 8 * 6144 - (j & 3) * 1024 for par in range(2)]
            a(f"s_mov_b32 s3, {off[1]}")
            a(f"s_cselect_b32 s3, {off[0]}, s3")
            a(f"v_add_u32 v{V_WO + j}, s3, v{28 if j % 2 == 0 else 27}")
        a(f"s_lshl_b32 s{S_W4K}, s7, 12")
        a(f"s_mul_i32 s{S_W6K}, s7, 6144")
        self.pstamp(a, 8)
        a("s_waitcnt lgkmcnt(0)")
        self.pstamp(a, 9)
        srd(a, S_X, 44, 2048 * 2048)
        a("s_cmp_lt_u32 s7, 2")
        a("s_cselect_b32 s4, s46, s48")
        a("s_cselect_b32 s5, s47, s49")
        srd(a, S_W, 4, 1024 * 6144)
        ws_shift(a, 52, self.wsbase)
        srd(a, S_WS, 52, 0x10000000 - self.wsbase)
        pro = self.dmaX(0, 0) + self.dmaW(0) + self.dmaX(0, 1)
        pro2 = self.dmaW(1) + self.dmaX(1, 0) + self.dmaW(2) + self.dmaX(1, 1)
        if not self.lean: pro, pro2 = pro + pro2, []
        a(f"s_cmp_lg_u32 s{S_ST}, 0")
        a(f"s_cbranch_scc0 {n}_side")
        if self.hold: a("s_barrier")
        for l in pro: a(l)
        self.pf_setup(a)
        a(f"s_branch {n}_joined")
        a.label(f"{n}_side")
        self.side(a)
        a.label(f"{n}_joined")
        self.pstamp(a, 1)
        self.start_extra(a)
        self.addr_reads(a)
        for r in range(96): a(f"v_mov_b32 v{ACC + r}, 0")
        early = self.gate_unit is None
        for l in self.role_block(a, "b0", [f"s_waitcnt vmcnt({0 if self.lean else 16})"], self.gate_lines(1 if self.hold else self.npf_first + 1) if early else []): a(l)
        a("s_barrier")
        self.pstamp(a, 2)
        for l in self.rd(0, 0): a(l)
        g, _ = self.group(0)
        for l in self.role_block(a, "g0", pro2 + g, []): a(l)
        if self.prio:
            a(f"s_cmp_lg_u32 s{S_ST}, 0")
            a(f"s_cbranch_scc{1 if self.prio == 1 else 0} {n}_np")
            a("s_setprio 1")
            a.label(f"{n}_np")
        self.main_loop(a, 0)
        if self.prio: a("s_setprio 0")
        self.pstamp(a, 3)
        if self.epi: self.epilogue(a)

    def addr_reads(self, a):
        a("v_and_b32 v20, 15, v19")
        a("v_lshlrev_b32 v20, 7, v20")
        a(f"s_lshl_b32 s3, s{S_TH}, 13")
        a("v_add_u32 v20, s3, v20")
        a("v_lshrrev_b32 v21, 4, v19")
        a("v_bfe_u32 v22, v19, 1, 3")
        for k2 in range(2):
            a(f"v_add_u32 v23, {4 * k2}, v21")
            a("v_xor_b32 v23, v23, v22")
            a(f"v_lshl_add_u32 v{V_XR + k2}, v23, 4, v20")
        a("v_bfe_u32 v22, v19, 2, 2")
        a("v_lshl_add_u32 v23, v21, 3, v22")
        a("v_lshlrev_b32 v23, 7, v23")
        a("v_and_b32 v24, 1, v19")
        a("v_lshl_add_u32 v23, v24, 3, v23")
        a("v_bfe_u32 v24, v19, 1, 1")
        a(f"s_lshl_b32 s3, s{S_HH}, 2")
        a("v_add_u32 v24, s3, v24")
        a("v_and_b32 v25, 2, v22")
        a("v_bfe_u32 v26, v19, 4, 1")
        a("v_lshl_or_b32 v25, v26, 2, v25")
        a(f"s_mul_i32 s3, s{S_BR}, 12288")
        a(f"s_add_u32 s3, s3, {WRING}")
        for ft in range(2):
            a(f"v_add_u32 v26, {2 * ft}, v24")
            a("v_xor_b32 v26, v26, v25")
            a("v_lshl_add_u32 v26, v26, 4, v23")
            a(f"v_add_u32 v{V_WR + ft}, s3, v26")
            a(f"v_add_u32 v{V_WR2 + ft}, {2 * WSL}, v{V_WR + ft}")

    def side(self, a):
        n = self.name
        ws = f"s[{S_WS}:{S_WS+3}]"
        a(f"s_and_b32 s7, s{S_WV}, 3")
        self.pf_setup(a)
        if self.hold:
            self.npf_first = min(self.pf_first, self.npf)
            for k in range(self.npf_first):
                for l in self.pf_load(): a(l)
            a(f"s_waitcnt vmcnt({self.npf_first - self.hold})")
            a("s_barrier")
            for k in range(self.pf_after_hold):
                for l in self.pf_load(): a(l)
            self.npf_first += self.pf_after_hold
        if self.late_side is None: self.side_loads(a)
        self.clear_flags(a)
        if not self.hold:
            self.npf_first = min(self.pf_first, self.npf)
            for k in range(self.npf_first):
                for l in self.pf_load(): a(l)
        self.npf -= self.npf_first

    def side_loads(self, a):
        srd(a, S_WP, 56, 65536)
        srd(a, S_GW, 58, 2048)
        a(f"s_and_b32 s7, s{S_WV}, 3")
        a("v_lshlrev_b32 v20, 5, v19")
        a(f"buffer_load_dwordx4 v[32:35], v20, s[{S_GW}:{S_GW+3}], 0 offen")
        a(f"buffer_load_dwordx4 v[36:39], v20, s[{S_GW}:{S_GW+3}], 0 offen offset:16")
        a(f"s_lshl_b32 s3, s{S_MT}, 7")
        a(f"s_lshl_b32 s4, s{S_HP}, 3")
        a("s_add_u32 s3, s3, s4")
        a("s_lshl_b32 s4, s7, 1")
        a(f"s_add_u32 s{S_TOK}, s3, s4")
        a(f"s_lshl_b32 s3, s{S_TOK}, 11")
        for i in range(2):
            a(f"buffer_load_dwordx4 v[{40+8*i}:{43+8*i}], v20, s[{S_X}:{S_X+3}], s3 offen offset:{i * 2048}")
            a(f"buffer_load_dwordx4 v[{44+8*i}:{47+8*i}], v20, s[{S_X}:{S_X+3}], s3 offen offset:{i * 2048 + 16}")
        a("v_lshlrev_b32 v20, 4, v19")
        a(f"s_lshl_b32 s3, s{S_HP}, 12")
        a("s_lshl_b32 s5, s7, 10")
        a("s_add_u32 s3, s3, s5")
        a(f"s_add_u32 m0, s5, {L_WP}")
        a("s_nop 0")
        a(f"buffer_load_dwordx4 v20, s[{S_WP}:{S_WP+3}], s3 offen lds")

    def pf_setup(self, a):
        a(f"s_and_b32 s7, s{S_WV}, 3")
        self.npf = 16 - self.pf_start if self.pf else 0
        if self.pf:
            a("s_mul_i32 s3, s2, 3")
            a("s_add_u32 s3, s3, s7")
            a("s_cmp_ge_u32 s3, 384")
            a("s_cselect_b32 s4, 384, 0")
            a("s_cselect_b32 s80, s48, s46")
            a("s_cselect_b32 s81, s49, s47")
            a("s_sub_u32 s3, s3, s4")
            a("s_lshl_b32 s3, s3, 10")
            a("s_lshl_b32 s4, s2, 14")
            a("s_cmp_eq_u32 s7, 3")
            a("s_cselect_b32 s80, s44, s80")
            a("s_cselect_b32 s81, s45, s81")
            a(f"s_cselect_b32 s{S_PFO}, s4, s3")
            a(f"s_mov_b32 s5, {64 * 6144}")
            a(f"s_cselect_b32 s{S_PFS}, 128, s5")
            a(f"s_mov_b32 s5, {1024 * 6144}")
            a(f"s_cselect_b32 s{S_PF+2}, {2048 * 2048}, s5")
            if self.pf_start:
                a(f"s_mul_i32 s5, s{S_PFS}, {self.pf_start}")
                a(f"s_add_u32 s{S_PFO}, s{S_PFO}, s5")
            a(f"s_mov_b32 s{S_PF}, s80")
            a(f"s_and_b32 s{S_PF+1}, s81, 0xffff")
            a(f"s_mov_b32 s{S_PF+3}, 0x00020000")
            if self.touch:
                per = 1024 // self.touch
                nst = 64 // per
                sh = per.bit_length() - 1
                a(f"v_lshrrev_b32 v20, {sh}, v19")
                a(f"v_mul_lo_u32 v20, v20, s{S_PFS}")
                a(f"v_and_b32 v22, {per - 1}, v19")
                a(f"v_mul_u32_u24 v21, {self.touch}, v22")
                a("v_add_u32 v21, v21, v20")
                lpr = 128 // self.touch
                a(f"v_lshrrev_b32 v23, {lpr.bit_length() - 1}, v22")
                a("v_lshlrev_b32 v23, 11, v23")
                a(f"v_and_b32 v22, {lpr - 1}, v22")
                a(f"v_mul_u32_u24 v22, {self.touch}, v22")
                a("v_add3_u32 v20, v23, v22, v20")
                a("s_cmp_eq_u32 s7, 3")
                a("s_cselect_b64 vcc, -1, 0")
                a(f"v_cndmask_b32 v{V_PF}, v21, v20, vcc")
                a(f"s_mul_i32 s{S_PFS}, s{S_PFS}, {nst}")
                self.npf = (16 - self.pf_start + nst - 1) // nst
            else:
                a("v_lshlrev_b32 v20, 4, v19")
                a("v_lshrrev_b32 v21, 3, v19")
                a("v_lshlrev_b32 v21, 11, v21")
                a("v_and_b32 v22, 7, v19")
                a("v_lshl_add_u32 v21, v22, 4, v21")
                a("s_cmp_eq_u32 s7, 3")
                a("s_cselect_b64 vcc, -1, 0")
                a(f"v_cndmask_b32 v{V_PF}, v20, v21, vcc")

    def clear_flags(self, a):
        n = self.name
        a("s_cmp_ge_u32 s2, 8")
        a(f"s_cbranch_scc1 {n}_noflag")
        a(f"s_cmp_lg_u32 s{S_WV}, 4")
        a(f"s_cbranch_scc1 {n}_noflag")
        a("s_lshl_b32 s3, s2, 12")
        a(f"s_add_u32 s3, s3, {WS_FLAG}")
        a("v_lshlrev_b32 v20, 2, v19")
        a("v_mov_b32 v21, 0")
        a(f"buffer_store_dword v21, v20, s[{S_WS}:{S_WS+3}], s3 offen sc1")
        a.label(f"{n}_noflag")
    def unit_extra(self, u): return []

    def gate_lines(self, wait=None):
        b = Asm()
        if wait is not None: b(f"s_waitcnt vmcnt({wait})")
        for i in range(2): b(f"v_mov_b32 v{24 + i}, 0")
        for k in range(8):
            for i in range(2):
                b(f"v_dot2_f32_bf16 v{24 + i}, v{40 + 8 * i + k}, v{32 + k}, v{24 + i}")
        for ctl in ("quad_perm:[1,0,3,2]", "quad_perm:[2,3,0,1]", "row_half_mirror", "row_mirror"):
            b("s_nop 1")
            for i in range(2):
                b(f"v_add_f32_dpp v{24 + i}, v{24 + i}, v{24 + i} {ctl} row_mask:0xf bank_mask:0xf")
        for sw in ("v_permlane16_swap_b32", "v_permlane32_swap_b32"):
            for i in range(2): b(f"v_mov_b32 v{28 + i}, v{24 + i}")
            b("s_nop 1")
            for i in range(2): b(f"{sw} v{24 + i}, v{28 + i}")
            b("s_nop 1")
            for i in range(2): b(f"v_add_f32 v{24 + i}, v{24 + i}, v{28 + i}")
        b("v_and_b32 v28, 1, v19")
        b("v_cmp_eq_u32 vcc, 1, v28")
        b("s_nop 1")
        b("v_cndmask_b32 v24, v24, v25, vcc")
        b(f"v_mul_f32 v24, {f32bits(-LOG2E)}, v24")
        b("v_exp_f32 v24, v24")
        b("s_nop 0")
        b("v_add_f32 v24, 1.0, v24")
        b("v_rcp_f32 v24, v24")
        b("v_lshlrev_b32 v28, 2, v19")
        b(f"s_lshl_b32 s3, s{S_TOK}, 2")
        b(f"s_add_u32 s3, s3, {WS_G}")
        b("s_mov_b64 exec, 3")
        b(f"buffer_store_dword v24, v28, s[{S_WS}:{S_WS+3}], s3 offen {self.store_mod}")
        b("s_mov_b64 exec, -1")
        return [l.strip() for l in b.lines]

    def epilogue(self, a):
        n = self.name
        a("s_waitcnt vmcnt(0)")
        a("s_barrier")
        a(f"s_cmp_lg_u32 s{S_BR}, 0")
        a(f"s_cbranch_scc1 {n}_epiB")
        self.epilogue_A(a)
        a(f"s_branch {n}_epidone")
        a.label(f"{n}_epiB")
        self.epilogue_B(a)
        a.label(f"{n}_epidone")

    @staticmethod
    def pack(b0, b1):
        return [f"v_cvt_pk_bf16_f32 v{b0}, v{b0}, v{b0 + 1}", f"v_cvt_pk_bf16_f32 v{b0 + 1}, v{b0 + 2}, v{b0 + 3}",
                f"v_cvt_pk_bf16_f32 v{b0 + 2}, v{b1}, v{b1 + 1}", f"v_cvt_pk_bf16_f32 v{b0 + 3}, v{b1 + 2}, v{b1 + 3}"]

    def epilogue_A(self, a):
        ws, sm = f"s[{S_WS}:{S_WS+3}]", self.store_mod
        a("v_lshrrev_b32 v21, 4, v19")
        a("v_and_b32 v20, 15, v19")
        a(f"s_lshl_b32 s3, s{S_HD}, 17")
        a(f"s_lshl_b32 s4, s{S_MT}, 2")
        a(f"s_lshl_b32 s5, s{S_TH}, 1")
        a("s_add_u32 s4, s4, s5")
        a("s_lshl_b32 s4, s4, 11")
        a("s_add_u32 s38, s3, s4")
        a(f"s_add_u32 s39, s38, {4 << 20}")
        a(f"s_add_u32 s42, s38, {8 << 20}")
        a("v_lshrrev_b32 v22, 1, v21")
        a("v_lshlrev_b32 v22, 10, v22")
        a("v_and_b32 v24, 1, v21")
        a("v_lshl_add_u32 v22, v24, 9, v22")
        a("v_lshl_add_u32 v17, v20, 4, v22")
        a("v_and_b32 v24, 7, v20")
        a("v_lshrrev_b32 v25, 3, v20")
        a("v_lshl_add_u32 v24, v25, 4, v24")
        a("v_lshl_add_u32 v16, v24, 4, v22")
        c = f32bits(LOG2E / 32 ** 0.5)
        a(f"s_mov_b32 s6, {c}")
        a(f"s_mov_b32 s7, {c}")
        for tk in range(4):
            for l in self.pack(acc(1, 0, tk), acc(1, 1, tk)): a(l)
            a(f"buffer_store_dwordx4 {vr(acc(1, 0, tk), 4)}, v16, {ws}, s39 offen offset:{(tk >> 1) * 2048 + (tk & 1) * 128} {sm}")
        for T in range(2):
            for ft in range(2):
                for l in self.pack(acc(2, ft, 2 * T), acc(2, ft, 2 * T + 1)): a(l)
                a(f"buffer_store_dwordx4 {vr(acc(2, ft, 2 * T), 4)}, v17, {ws}, s42 offen offset:{T * 2048 + ft * 256} {sm}")
        for tk in range(4):
            for ft in range(2):
                for h in (0, 2):
                    a(f"v_pk_mul_f32 {vr(acc(0, ft, tk) + h, 2)}, {vr(acc(0, ft, tk) + h, 2)}, s[6:7]")
            for l in self.pack(acc(0, 0, tk), acc(0, 1, tk)): a(l)
            a(f"buffer_store_dwordx4 {vr(acc(0, 0, tk), 4)}, v17, {ws}, s38 offen offset:{(tk >> 1) * 2048 + (tk & 1) * 256} {sm}")
        self.pstamp(a, 4)
        if self.pfwo and self.pfwo_unit is None: self.prefetch_wo(a)
        self.before_drain_A(a)
        a("s_waitcnt vmcnt(0)")
        self.pstamp(a, 5)
        self.after_drain_A(a)
        a("s_barrier")
        self.after_E2_A(a)

    def before_drain_A(self, a): pass
    def after_drain_A(self, a): pass
    def start_extra(self, a): pass
    def after_E2_A(self, a): pass
    def after_E2_B(self, a): pass

    def pfwo_lines(self, k):
        p = 32 + 2 * k
        return ["s_lshl_b32 s3, s2, 13", f"s_and_b32 s4, s{S_WV}, 3", "s_lshl_b32 s4, s4, 11", "s_add_u32 s3, s3, s4",
                f"s_mov_b32 s84, s{p}", f"s_and_b32 s85, s{p + 1}, 0xffff", "s_mov_b32 s86, 2097152", "s_mov_b32 s87, 0x00020000",
                "v_lshlrev_b32 v20, 4, v19",
                "buffer_load_dwordx4 v[244:247], v20, s[84:87], s3 offen", "buffer_load_dwordx4 v[244:247], v20, s[84:87], s3 offen offset:1024"]

    def prefetch_wo(self, a):
        a("s_load_dwordx2 s[80:81], s[0:1], 16")
        a("s_load_dwordx2 s[82:83], s[0:1], 48")
        a("v_lshlrev_b32 v15, 4, v19")
        a("s_lshl_b32 s3, s2, 13")
        a(f"s_lshl_b32 s4, s{S_WV}, 11")
        a("s_add_u32 s3, s3, s4")
        a("s_waitcnt lgkmcnt(0)")
        for k, p in enumerate((80, 82)):
            srd(a, 84, p, 2097152)
            for i in range(2):
                a(f"buffer_load_dwordx4 v[{160 + 8 * k + 4 * i}:{163 + 8 * k + 4 * i}], v15, s[84:87], s3 offen offset:{i * 1024}")

    def epilogue_B(self, a):
        ws, sm = f"s[{S_WS}:{S_WS+3}]", self.store_mod
        RS = 136
        a("v_lshrrev_b32 v21, 4, v19")
        a("v_and_b32 v20, 15, v19")
        a(f"s_and_b32 s7, s{S_WV}, 3")
        a("v_bfe_u32 v22, v19, 2, 2")
        a("v_lshl_add_u32 v22, v21, 2, v22")
        a(f"v_mul_u32_u24 v23, {RS}, v22")
        a("v_lshlrev_b32 v22, 6, v22")
        a("v_and_b32 v24, 3, v19")
        a("v_lshl_add_u32 v22, v24, 3, v22")
        a(f"s_lshl_b32 s3, s{S_HH}, 11")
        a(f"s_add_u32 s3, s3, {L_WP}")
        a("v_add_u32 v22, s3, v22")
        a(f"s_mul_i32 s3, s7, {64 * RS}")
        a("v_lshl_add_u32 v23, v24, 3, v23")
        a("v_add_u32 v23, s3, v23")
        a(f"v_mul_u32_u24 v18, {RS}, v20")
        a("v_lshl_add_u32 v18, v21, 3, v18")
        a("v_add_u32 v18, s3, v18")
        a("v_lshlrev_b32 v15, 4, v19")
        KB = lambda t: acc(1, 0, t)
        VB = lambda dt, T: acc(2, dt, 2 * T)
        for tk in range(4):
            for l in self.pack(acc(1, 0, tk), acc(1, 1, tk)): a(l)
        for tk in range(4):
            for l in self.pack(acc(0, 0, tk), acc(0, 1, tk)): a(l)
        a(f"s_lshl_b32 s3, s{S_HD}, 17")
        a(f"s_lshl_b32 s4, s{S_MT}, 3")
        a(f"s_lshl_b32 s5, s{S_TH}, 2")
        a("s_add_u32 s4, s4, s5")
        a("s_lshl_b32 s4, s4, 10")
        a("s_add_u32 s43, s3, s4")
        a(f"s_add_u32 s43, s43, {WS_QB}")
        WPF, ONES = 48, 56
        for ft in range(2):
            for q in range(2):
                a(f"ds_read_b64_tr_b16 {vr(WPF + 4 * ft + 2 * q, 2)}, v22 offset:{q * 1024 + ft * 32}")
        a(f"v_mov_b32 v{ONES}, 0x3f803f80")
        for r in range(1, 4): a(f"v_mov_b32 v{ONES + r}, v{ONES}")
        for dt in range(2):
            for T in range(2):
                for l in self.pack(acc(2, dt, 2 * T), acc(2, dt, 2 * T + 1)): a(l)
        l2e = f32bits(LOG2E)
        a(f"s_mov_b32 s36, {l2e}")
        a(f"s_mov_b32 s37, {l2e}")
        a(f"s_mov_b32 s40, {f32bits(-LOG2E)}")
        a(f"s_mov_b32 s41, {f32bits(-LOG2E)}")
        a("s_waitcnt lgkmcnt(0)")
        P = lambda t, i: 160 + 8 * t + i
        EP = lambda t, i: 192 + 8 * t + i
        BP = lambda t: 80 + 4 * t
        BM = lambda t: 112 + 4 * t
        SS = lambda t, sg: (132 + 8 * t) if sg == 0 else (224 + 4 * t)
        mx, mn, tm = (lambda t: 24 + 2 * t), (lambda t: 32 + 2 * t), (lambda t: 40 + t)
        T4 = range(4)
        for t in T4:
            for ft in range(2):
                a(f"v_mfma_f32_16x16x32_bf16 {vr(P(t, 4 * ft), 4)}, {vr(WPF + 4 * ft, 4)}, {vr(KB(t), 4)}, 0")
        stores = [f"buffer_store_dwordx4 {vr(acc(0, 0, tk), 4)}, v15, {ws}, s43 offen offset:{tk * 1024} {sm}" for tk in range(4)]
        a("s_nop 7")
        B = a
        for t in T4:
            B(f"v_max3_f32 v{mx(t)}, v{P(t,0)}, v{P(t,1)}, v{P(t,2)}")
            B(f"v_min3_f32 v{mn(t)}, v{P(t,0)}, v{P(t,1)}, v{P(t,2)}")
        for i in (3, 5):
            for t in T4:
                B(f"v_max3_f32 v{mx(t)}, v{mx(t)}, v{P(t,i)}, v{P(t,i+1)}")
                B(f"v_min3_f32 v{mn(t)}, v{mn(t)}, v{P(t,i)}, v{P(t,i+1)}")
        for t in T4:
            B(f"v_max_f32 v{mx(t)}, v{mx(t)}, v{P(t,7)}")
            B(f"v_min_f32 v{mn(t)}, v{mn(t)}, v{P(t,7)}")
        for t in T4: B(f"v_sub_f32 v{mn(t)}, 0, v{mn(t)}")
        B("s_nop 1")
        for t in T4: B(f"v_permlane32_swap_b32 v{mx(t)}, v{mn(t)}")
        B("s_nop 1")
        for t in T4: B(f"v_max_f32 v{mx(t)}, v{mx(t)}, v{mn(t)}")
        for t in T4: B(f"v_mov_b32 v{tm(t)}, v{mx(t)}")
        B("s_nop 1")
        for t in T4: B(f"v_permlane16_swap_b32 v{mx(t)}, v{tm(t)}")
        B("s_nop 1")
        for t in T4: B(f"v_max_f32 v{mx(t)}, v{mx(t)}, v{tm(t)}")
        for t in T4: B(f"v_mov_b32 v{mn(t)}, v{mx(t)}")
        B("s_nop 1")
        for t in T4: B(f"v_permlane32_swap_b32 v{mx(t)}, v{mn(t)}")
        B("s_nop 1")
        for t in T4:
            B(f"v_mul_f32 v{mx(t)}, s40, v{mx(t)}")
            B(f"v_mul_f32 v{mn(t)}, s40, v{mn(t)}")
        for t in T4:
            for i in range(0, 8, 2):
                B(f"v_pk_fma_f32 {vr(EP(t,i), 2)}, {vr(P(t,i), 2)}, s[36:37], {vr(mx(t), 2)} op_sel_hi:[1,1,0]")
                B(f"v_pk_fma_f32 {vr(P(t,i), 2)}, {vr(P(t,i), 2)}, s[40:41], {vr(mn(t), 2)} op_sel_hi:[1,1,0]")
        for t in T4:
            for i in range(8):
                B(f"v_exp_f32 v{EP(t,i)}, v{EP(t,i)}")
                B(f"v_exp_f32 v{P(t,i)}, v{P(t,i)}")
        B("s_nop 0")
        for t in T4:
            for k in range(4):
                B(f"v_cvt_pk_bf16_f32 v{BP(t) + k}, v{EP(t,2*k)}, v{EP(t,2*k+1)}")
                B(f"v_cvt_pk_bf16_f32 v{BM(t) + k}, v{P(t,2*k)}, v{P(t,2*k+1)}")
        B("s_nop 1")
        for t in T4:
            B(f"v_mfma_f32_16x16x32_bf16 {vr(SS(t, 0), 4)}, {vr(ONES, 4)}, {vr(BP(t), 4)}, 0")
            B(f"v_mfma_f32_16x16x32_bf16 {vr(SS(t, 1), 4)}, {vr(ONES, 4)}, {vr(BM(t), 4)}, 0")
        if not self.defer:
            for st in stores: B(st)
            B("s_nop 3")
        else:
            B("s_nop 7")
        for t in T4:
            B(f"v_rcp_f32 v{SS(t, 0)}, v{SS(t, 0)}")
            B(f"v_rcp_f32 v{SS(t, 1)}, v{SS(t, 1)}")
        B("s_nop 0")
        for t in T4:
            for i in range(0, 8, 2):
                B(f"v_pk_mul_f32 {vr(EP(t,i), 2)}, {vr(EP(t,i), 2)}, {vr(SS(t, 0), 2)} op_sel_hi:[1,0]")
                B(f"v_pk_mul_f32 {vr(P(t,i), 2)}, {vr(P(t,i), 2)}, {vr(SS(t, 1), 2)} op_sel_hi:[1,0]")
        for t in T4:
            for k in range(4):
                B(f"v_cvt_pk_bf16_f32 v{BP(t) + k}, v{EP(t,2*k)}, v{EP(t,2*k+1)}")
                B(f"v_cvt_pk_bf16_f32 v{BM(t) + k}, v{P(t,2*k)}, v{P(t,2*k+1)}")
            row = t * 16 * RS
            for ft in range(2):
                B(f"ds_write_b64 v18, {vr(BP(t) + 2 * ft, 2)} offset:{row + ft * 32}")
                B(f"ds_write_b64 v18, {vr(BM(t) + 2 * ft, 2)} offset:{row + 64 + ft * 32}")
        self.pstamp(a, 4)
        a("s_waitcnt lgkmcnt(0)")
        AF, KV = 160, 192
        for sf in range(4):
            for T in range(2):
                for q in range(2):
                    a(f"ds_read_b64_tr_b16 {vr(AF + (sf * 2 + T) * 4 + 2 * q, 2)}, v23 offset:{(32 * T + 16 * q) * RS + sf * 32}")
        XB = 40960
        a(f"s_mul_i32 s3, s7, 12288")
        a(f"s_add_u32 s3, s3, {XB}")
        a("v_add_u32 v20, s3, v15")
        a("s_and_b32 s4, s7, 2")
        a("s_mul_i32 s4, s4, 12288")
        a(f"s_mul_i32 s5, s{S_TH}, 6144")
        a("s_add_u32 s4, s4, s5")
        a(f"s_add_u32 s4, s4, {XB}")
        a("v_add_u32 v22, s4, v15")
        for sf in range(4):
            a(f"s_waitcnt lgkmcnt({(3 - sf) * 4})")
            for T in range(2):
                A = vr(AF + (sf * 2 + T) * 4, 4)
                for dt in range(3):
                    d = vr(KV + (sf * 3 + dt) * 4, 4)
                    Bop = vr(VB(dt, T), 4) if dt < 2 else vr(ONES, 4)
                    a(f"v_mfma_f32_16x16x32_bf16 {d}, {A}, {Bop}, {d if T else 0}")
        a(f"s_lshl_b32 s3, s{S_HD}, 4")
        a(f"s_add_u32 s3, s3, s{S_MT}")
        a("s_lshl_b32 s3, s3, 14")
        a(f"s_add_u32 s3, s3, {WS_KVP}")
        a(f"s_lshl_b32 s4, s{S_TH}, 12")
        a("s_add_u32 s4, s4, s3")
        a(f"s_lshl_b32 s6, s{S_TH}, 7")
        a("s_add_u32 s6, s6, s3")
        a("s_add_u32 s6, s6, 8192")
        a("v_lshlrev_b32 v21, 4, v21")
        for k in range(12): a(f"ds_write_b128 v20, {vr(KV + 4 * k, 4)} offset:{k * 1024}")
        a("s_waitcnt lgkmcnt(0)")
        self.pstamp(a, 5)
        a("s_barrier")
        for w in range(2):
            for k in range(6):
                a(f"ds_read_b128 {vr(160 + (w * 6 + k) * 4, 4)}, v22 offset:{w * 12288 + k * 1024}")
        a("s_waitcnt lgkmcnt(0)")
        if self.defer:
            for i in range(22, -1, -2):
                a(f"v_pk_add_f32 {vr(192 + i, 2)}, {vr(160 + i, 2)}, {vr(184 + i, 2)}")
            for i in range(16): a(f"v_mov_b32 v{224 + i}, v{64 + i}")
        else:
            for i in range(0, 24, 2):
                a(f"v_pk_add_f32 {vr(160 + i, 2)}, {vr(160 + i, 2)}, {vr(184 + i, 2)}")
        if self.defer:
            a("s_mov_b32 s92, s43")
            a("s_mov_b32 s93, s4")
            a("s_mov_b32 s94, s6")
        else:
            for ft in range(2):
                for dt in range(2):
                    a(f"buffer_store_dwordx4 {vr(160 + (ft * 3 + dt) * 4, 4)}, v15, {ws}, s4 offen offset:{(ft * 2 + dt) * 1024} {sm}")
                a(f"buffer_store_dwordx4 {vr(160 + (ft * 3 + 2) * 4, 4)}, v21, {ws}, s6 offen offset:{ft * 64} {sm}")
        self.after_E2_B(a)
```

```python
from asmlib import *
from layout import *
import k2d
from k2d import K2d, S_WS, S_WV, S_QG, S_KH, S_QB, S_H, V_LANE16

NSLOT, SLOT = 8, 16384
LDS_K23 = max(k2d.LDS_K2, NSLOT * SLOT)
V_WO = 247
V_WRA, V_WRB, V_WRH = 4, 8, 12
FW, ACC, FO = 16, 48, 80
S_WA, S_WB, S_OUT = 76, 80, 52
S_MT, S_NT, S_SOO, S_SOW, S_W2K, S_OB, S_FOWN, S_FWAIT = 60, 61, 62, 63, 64, 65, 70, 71
V_F = 200
V_WARM = 243
S_TSRD, S_TCH, V_TD = 84, 88, 208
S_ROT, S_MSK = 51, 33
SPIN_LIMIT = 1 << 22

class K23(K2d):
    def __init__(self, name, wd=4, od=3, out_mod="nt", touch=False, sleep=2, old="sc1", warm_out=False, rot=False, **kw):
        super().__init__(name, **kw)
        self.wd, self.od, self.out_mod, self.touch = wd, od, out_mod, touch
        self.sleep = sleep
        self.old = old
        self.warm_out = warm_out
        self.rot = rot

    def sigma(self, st, dst):
        return [f"s_add_u32 s{dst}, s{S_ROT}, {st & 7}", f"s_and_b32 s{dst}, s{dst}, 7"]

    def dma_w(self, st):
        srd_ = S_WA if st < 8 else S_WB
        if self.rot: off = self.sigma(st, S_SOW) + [f"s_lshl_b32 s{S_SOW}, s{S_SOW}, 18"]
        else: off = [f"s_mov_b32 s{S_SOW}, {(st & 7) << 18}"]
        return [f"s_add_u32 m0, s{S_W2K}, {(st % NSLOT) * SLOT}"] + off + [
                f"buffer_load_dwordx4 v{V_WO}, s[{srd_}:{srd_+3}], s{S_SOW} offen lds",
                f"buffer_load_dwordx4 v{V_WO + 1}, s[{srd_}:{srd_+3}], s{S_SOW} offen offset:1024 lds"]

    def load_o(self, st):
        buf = st % self.od
        r = []
        if self.rot:
            r += self.sigma(st, S_SOO) + [f"s_lshl_b32 s{S_SOO}, s{S_SOO}, 19", f"s_add_u32 s{S_SOO}, s{S_SOO}, s{S_OB}"]
            if st >= 8: r.append(f"s_add_u32 s{S_SOO}, s{S_SOO}, {32 * 131072}")
        for b in range(2):
            if self.rot: step = [f"s_add_u32 s{S_SOO}, s{S_SOO}, {2 * 131072}"] if b else []
            else: step = [f"s_add_u32 s{S_SOO}, s{S_OB}, {(4 * st + 2 * b) * 131072}"]
            r += step + [
                  f"buffer_load_dwordx4 {vr(FO + 16 * buf + 8 * b, 4)}, v{V_LANE16}, s[{S_WS}:{S_WS+3}], s{S_SOO} offen {self.old}",
                  f"buffer_load_dwordx4 {vr(FO + 16 * buf + 8 * b + 4, 4)}, v{V_LANE16}, s[{S_WS}:{S_WS+3}], s{S_SOO} offen offset:1024 {self.old}"]
        return r

    def rd_w(self, st, b):
        part, slot = st >> 3, st % NSLOT
        base = V_WRH if slot >= 4 else (V_WRA if part == 0 else V_WRB)
        qoff = 1024 if part == 0 else 2048
        return [f"ds_read_b64_tr_b16 {vr(FW + 16 * b + 4 * ct + 2 * q, 2)}, v{base + ct} offset:{(slot & 3) * SLOT + b * 8192 + q * qoff}"
                for ct in range(4) for q in range(2)]

    def omfmas(self, buf, b):
        return [f"v_mfma_f32_16x16x32_bf16 {vr(ACC + (i * 4 + ct) * 4, 4)}, {vr(FW + 16 * b + 4 * ct, 4)}, {vr(FO + 16 * buf + 8 * b + 4 * i, 4)}, {vr(ACC + (i * 4 + ct) * 4, 4)}"
                for ct in range(4) for i in range(2)]

    def ostage(self, a, st, issue_w, issue_o, vm_mid, vm_top, last=False):
        buf = st % self.od
        a(f"s_waitcnt vmcnt({vm_top}) lgkmcnt(0)")
        for l in interleave(self.omfmas(buf, 0), [(i, [r]) for i, r in enumerate(self.rd_w(st, 1))]): a(l)
        a("s_waitcnt lgkmcnt(0)")
        m = self.omfmas(buf, 1)
        if last:
            for l in m: a(l)
            return
        pre = []
        if st + 1 in (4, 12):
            nxt = V_WRA if (st + 1) >> 3 == 0 else V_WRB
            pre = [f"v_add_u32 v{V_WRH + c}, {4 * SLOT}, v{nxt + c}" for c in range(4)]
        extra = Asm()
        if self.rot and st == 7 - self.od - 1: self.poll(extra, 0, "pollO", "own")
        if st == 8 - self.od - 1: self.poll(extra, 1, "pollB")
        fill = [(0, pre + [l.strip() for l in extra.lines] + [f"s_waitcnt vmcnt({vm_mid})", "s_barrier"])]
        for i, r in enumerate(self.rd_w(st + 1, 0)): fill.append((1 + i * 6 // 8, [r]))
        fill.append((7, self.dma_w(st + self.wd) if issue_w else []))
        for l in interleave(m, fill): a(l)
        if issue_o:
            for l in self.load_o(st + self.od): a(l)

    def entry_extra(self, a):
        a("s_load_dwordx2 s[66:67], s[0:1], 16")
        a("s_load_dwordx2 s[68:69], s[0:1], 48")
        a("s_load_dwordx2 s[72:73], s[0:1], 64")

    def early_setup(self, a):
        a("s_and_b32 s3, s2, 7")
        a("s_lshr_b32 s6, s2, 3")
        a("s_lshr_b32 s7, s3, 1")
        a("s_lshl_b32 s7, s7, 2")
        a(f"s_and_b32 s{S_MT}, s6, 3")
        a(f"s_add_u32 s{S_MT}, s{S_MT}, s7")
        a("s_and_b32 s7, s3, 1")
        a("s_lshl_b32 s7, s7, 3")
        a(f"s_lshr_b32 s{S_NT}, s6, 2")
        a(f"s_add_u32 s{S_NT}, s{S_NT}, s7")
        srd(a, S_WA, 66, 2097152)
        srd(a, S_WB, 68, 2097152)
        srd(a, S_OUT, 72, 4194304)
        t0, t1, t2 = 216, 217, 218
        a(f"v_and_b32 v{t0}, 63, v0")
        a(f"v_lshrrev_b32 v{t1}, 3, v{t0}")
        a(f"v_and_b32 v{t2}, 7, v{t0}")
        a(f"v_bfe_u32 v{t0}, v{t0}, 4, 2")
        a(f"v_lshlrev_b32 v{t0}, 1, v{t0}")
        a(f"v_xor_b32 v{t2}, v{t2}, v{t0}")
        a(f"v_lshlrev_b32 v{t1}, 11, v{t1}")
        a(f"v_lshl_add_u32 v{t1}, v{t2}, 4, v{t1}")
        a(f"s_lshl_b32 s3, s{S_NT}, 7")
        a(f"v_add_u32 v{t1}, s3, v{t1}")
        a(f"s_lshl_b32 s3, s{S_WV}, 15")
        a(f"v_add_u32 v{V_WO}, s3, v{t1}")
        a(f"s_add_u32 s3, s3, {16384 - 1024}")
        a(f"v_add_u32 v{V_WO + 1}, s3, v{t1}")
        a(f"s_lshl_b32 s{S_W2K}, s{S_WV}, 11")
        a(f"s_lshl_b32 s3, s{S_MT}, 3")
        a(f"s_lshl_b32 s6, s{S_QG}, 1")
        a("s_add_u32 s3, s3, s6")
        a("s_lshl_b32 s3, s3, 10")
        a(f"s_lshl_b32 s6, s{S_KH}, 17")
        a("s_add_u32 s3, s3, s6")
        a(f"s_add_u32 s{S_OB}, s3, {WS_O}")
        a(f"s_lshl_b32 s3, s{S_QB}, 12")
        a(f"s_lshl_b32 s6, s{S_H}, 2")
        a("s_add_u32 s3, s3, s6")
        a(f"s_add_u32 s{S_FOWN}, s3, {WS_FLAG}")
        a(f"s_lshr_b32 s3, s{S_MT}, 1")
        a("s_lshl_b32 s3, s3, 12")
        a(f"s_add_u32 s{S_FWAIT}, s3, {WS_FLAG}")
        if self.rot:
            a("s_and_b32 s3, s2, 7")
            a(f"s_add_u32 s{S_ROT}, s3, 1")
            a("s_lshl_b32 s3, s3, 2")
            a(f"s_lshl_b32 s{S_MSK}, 15, s3")
        if self.touch: self.touch_setup(a)
        if self.warm_out:
            a(f"v_and_b32 v{t0}, 63, v0")
            a(f"v_lshlrev_b32 v{t0}, 12, v{t0}")
            a(f"s_lshl_b32 s3, s{S_MT}, 18")
            a(f"s_lshl_b32 s6, s{S_NT}, 7")
            a("s_add_u32 s3, s3, s6")
            a(f"buffer_load_dword v{V_WARM}, v{t0}, s[{S_OUT}:{S_OUT+3}], s3 offen nt")

    def touch_setup(self, a):
        a("s_and_b32 s3, s2, 1")
        a("s_lshl_b32 s3, s3, 10")
        a("s_lshr_b32 s6, s2, 3")
        a("s_and_b32 s7, s6, 15")
        a("s_lshl_b32 s7, s7, 6")
        a(f"s_lshl_b32 s89, s{S_WV}, 3")
        a("s_add_u32 s7, s7, s89")
        a("s_lshl_b32 s7, s7, 11")
        a(f"s_add_u32 s{S_TCH}, s7, s3")
        a("s_cmp_lt_u32 s6, 16")
        a(f"s_cselect_b32 s{S_TSRD}, s66, s68")
        a(f"s_cselect_b32 s{S_TSRD+1}, s67, s69")
        a(f"s_and_b32 s{S_TSRD+1}, s{S_TSRD+1}, 0xffff")
        a(f"s_mov_b32 s{S_TSRD+2}, 2097152")
        a(f"s_mov_b32 s{S_TSRD+3}, 0x00020000")
    def touch_lines(self):
        if not self.touch: return []
        return [f"buffer_load_dwordx4 v[{V_TD}:{V_TD+3}], v{V_LANE16}, s[{S_TSRD}:{S_TSRD+3}], s{S_TCH} offen", f"s_add_u32 s{S_TCH}, s{S_TCH}, 2048"]

    def after_decision(self, a):
        assert self.wd <= 4
        for st in range(self.wd):
            for l in self.dma_w(st): a(l)

    def signal(self, a, part, tag):
        n = self.name
        a(f"s_cmp_lg_u32 s{S_WV}, 0")
        a(f"s_cbranch_scc1 {n}_{tag}")
        a("s_mov_b64 exec, 1")
        a(f"v_mov_b32 v{V_F}, {128 * part}")
        a(f"v_mov_b32 v{V_F + 1}, 1")
        a(f"buffer_store_dword v{V_F + 1}, v{V_F}, s[{S_WS}:{S_WS+3}], s{S_FOWN} offen sc1")
        a("s_mov_b64 exec, -1")
        a.label(f"{n}_{tag}")

    def poll(self, a, part, tag, sel="all"):
        n = self.name
        a(f"s_cmp_lg_u32 s{S_WV}, 0")
        a(f"s_cbranch_scc1 {n}_{tag}_skip")
        a(f"v_and_b32 v{V_F}, 31, v0")
        a(f"v_lshlrev_b32 v{V_F}, 2, v{V_F}")
        a(f"s_mov_b32 s6, {SPIN_LIMIT}")
        a.label(f"{n}_{tag}")
        a(f"buffer_load_dword v{V_F + 1}, v{V_F}, s[{S_WS}:{S_WS+3}], s{S_FWAIT} offen offset:{128 * part} sc1")
        a("s_waitcnt vmcnt(0)")
        a(f"v_cmp_eq_u32 vcc, 1, v{V_F + 1}")
        a("s_sub_u32 s6, s6, 1")
        a("s_cmp_eq_u32 s6, 0")
        a(f"s_cbranch_scc1 {n}_{tag}_skip")
        if sel == "all":
            a("s_cmp_eq_u32 vcc_lo, -1")
        elif sel == "others":
            a(f"s_or_b32 s7, vcc_lo, s{S_MSK}")
            a("s_cmp_eq_u32 s7, -1")
        else:
            a(f"s_and_b32 s7, vcc_lo, s{S_MSK}")
            a(f"s_cmp_eq_u32 s7, s{S_MSK}")
        a(f"s_cbranch_scc1 {n}_{tag}_skip")
        a(f"s_sleep {self.sleep}")
        a(f"s_branch {n}_{tag}")
        a.label(f"{n}_{tag}_skip")

    def b_mid(self, a):
        a("s_waitcnt vmcnt(0)")
        a("s_barrier")
        self.signal(a, 0, "sigA")

    def project(self, a):
        n = self.name
        WD, OD = self.wd, self.od
        self.pstamp(a, 6)
        a("v_and_b32 v202, 63, v0")
        a("v_lshrrev_b32 v13, 4, v202")
        a("v_bfe_u32 v14, v202, 2, 2")
        a("v_and_b32 v15, 1, v13")
        a("v_lshrrev_b32 v16, 1, v14")
        a("v_lshl_add_u32 v16, v15, 1, v16")
        a("v_lshlrev_b32 v16, 1, v16")
        a("v_bfe_u32 v17, v202, 1, 1")
        a("v_and_b32 v18, 1, v202")
        a("v_lshlrev_b32 v18, 3, v18")
        a(f"s_lshl_b32 s3, s{S_KH}, 12")
        a("v_add_u32 v18, s3, v18")
        a("v_lshrrev_b32 v19, 1, v13")
        a("v_lshlrev_b32 v19, 4, v19")
        a("v_lshl_add_u32 v19, v15, 2, v19")
        a("v_add_u32 v19, v19, v14")
        a("v_lshl_add_u32 v20, v13, 2, v14")
        for ct in range(4):
            a(f"v_add_u32 v21, {2 * ct}, v17")
            a("v_xor_b32 v21, v21, v16")
            a("v_lshl_add_u32 v21, v21, 4, v18")
            a(f"v_lshl_add_u32 v{V_WRA + ct}, v19, 7, v21")
            a(f"v_lshl_add_u32 v{V_WRB + ct}, v20, 7, v21")
        for r in range(32): a(f"v_mov_b32 v{ACC + r}, 0")
        self.poll(a, 0, "pollA", "others" if self.rot else "all")
        a("s_waitcnt vmcnt(0)")
        a("s_barrier")
        self.signal(a, 1, "sigB")
        self.pstamp(a, 7)
        q = []
        for s in range(OD):
            for l in self.load_o(s): a(l)
            q += [("o", s)] * 4
        for l in self.rd_w(0, 0): a(l)
        def allowed(tag):
            idx = max((i for i, t in enumerate(q) if t == tag), default=None)
            return len(q) if idx is None else len(q) - 1 - idx
        for s in range(16):
            top = allowed(("o", s))
            mid = allowed(("W", s + 1)) if s < 15 else 0
            iw, io = s + WD < 16, s + OD < 16
            self.ostage(a, s, iw, io, min(mid, 63), min(top, 63), last=(s == 15))
            if iw: q += [("W", s + WD)] * 2
            if io: q += [("o", s + OD)] * 4
        self.pstamp(a, 8)
        a(f"s_lshl_b32 s3, s{S_WV}, 12")
        a(f"v_add_u32 v2, s3, v{V_LANE16}")
        a(f"s_xor_b32 s3, s{S_WV}, 4")
        a("s_lshl_b32 s3, s3, 12")
        a(f"v_add_u32 v3, s3, v{V_LANE16}")
        a(f"s_cmp_eq_u32 s{S_KH}, 0")
        a("s_nop 7")
        a(f"s_cbranch_scc1 {n}_k0")
        for k in range(4): a(f"ds_write_b128 v2, {vr(ACC + 4 * k, 4)} offset:{k * 1024}")
        a("s_waitcnt lgkmcnt(0)")
        for r in range(16): a(f"v_mov_b32 v{ACC + r}, v{ACC + 16 + r}")
        a(f"s_branch {n}_k1")
        a.label(f"{n}_k0")
        for k in range(4): a(f"ds_write_b128 v2, {vr(ACC + 16 + 4 * k, 4)} offset:{k * 1024}")
        a.label(f"{n}_k1")
        a("s_waitcnt lgkmcnt(0)")
        a("s_barrier")
        for k in range(4): a(f"ds_read_b128 {vr(FW + 4 * k, 4)}, v3 offset:{k * 1024}")
        a("v_and_b32 v203, 15, v202")
        a(f"s_lshl_b32 s3, s{S_MT}, 7")
        a(f"s_lshl_b32 s6, s{S_QG}, 5")
        a("s_add_u32 s3, s3, s6")
        a(f"s_lshl_b32 s6, s{S_KH}, 4")
        a("s_add_u32 s3, s3, s6")
        a("v_add_u32 v203, s3, v203")
        a("v_lshlrev_b32 v203, 11, v203")
        a("v_bfe_u32 v204, v202, 4, 1")
        a("v_lshl_add_u32 v203, v204, 5, v203")
        a("v_lshrrev_b32 v204, 5, v202")
        a("v_lshl_add_u32 v203, v204, 4, v203")
        a(f"s_lshl_b32 s3, s{S_NT}, 7")
        a("s_waitcnt lgkmcnt(0)")
        for r in range(0, 16, 2):
            a(f"v_pk_add_f32 {vr(ACC + r, 2)}, {vr(ACC + r, 2)}, {vr(FW + r, 2)}")
        for pr in range(2):
            t = FW + 16 + 4 * pr
            for i2 in range(2):
                b = ACC + (pr * 2 + i2) * 4
                a(f"v_cvt_pk_bf16_f32 v{t + 2 * i2}, v{b}, v{b + 1}")
                a(f"v_cvt_pk_bf16_f32 v{t + 2 * i2 + 1}, v{b + 2}, v{b + 3}")
            a("s_nop 1")
            a(f"v_permlane16_swap_b32 v{t}, v{t + 2}")
            a(f"v_permlane16_swap_b32 v{t + 1}, v{t + 3}")
            a(f"buffer_store_dwordx4 {vr(t, 4)}, v203, s[{S_OUT}:{S_OUT+3}], s3 offen offset:{pr * 64} {self.out_mod}")
```

```python
from asmlib import *
from layout import *
import k1w, k2d, k23
from k1w import K1w
from k23 import K23, SPIN_LIMIT
from prof import Prof

F1, F2 = WS_FLAG + (32 << 10), WS_FLAG + (36 << 10)
S_DBG1 = 84
S_OWN, S_DEF = 95, 50
L_CNT = 163840 - 64
LDS_ALL = 163840

class Phase1(K1w):
    STAMP = {2: 1, 3: 2, 5: 3}
    STAMP_START = {8: 1, 9: 2, 1: 3, 2: 4}
    def pstamp(self, a, idx, vreg=None):
        m = self.STAMP_START if getattr(self, "startprof", False) else self.STAMP
        if idx in m: Prof.pstamp(self, a, m[idx], vreg)
    def clear_flags(self, a):
        n = self.name
        ws = f"s[{k1w.S_WS}:{k1w.S_WS+3}]"
        a(f"s_cmp_lg_u32 s{k1w.S_WV}, 4")
        a(f"s_cbranch_scc1 {n}_noflag")
        a("s_and_b32 s3, s2, 7")
        a("s_lshr_b32 s4, s2, 3")
        a("s_lshl_b32 s3, s3, 2")
        a("s_lshr_b32 s5, s4, 3")
        a("s_add_u32 s3, s3, s5")
        a("s_and_b32 s4, s4, 7")
        a("s_lshl_b32 s4, s4, 12")
        a("s_lshl_b32 s3, s3, 2")
        a("s_add_u32 s3, s3, s4")
        a(f"s_add_u32 s3, s3, {WS_FLAG}")
        a(f"s_lshl_b32 s4, s{k1w.S_HP}, 7")
        a(f"s_lshl_b32 s5, s{k1w.S_MT}, 2")
        a("s_add_u32 s4, s4, s5")
        a(f"s_add_u32 s5, s4, {F1}")
        a(f"s_add_u32 s4, s4, {F2}")
        a("v_mov_b32 v20, s3")
        a("v_writelane_b32 v20, s5, 1")
        a("v_writelane_b32 v20, s4, 2")
        a("s_add_u32 s3, s3, 128")
        a("v_writelane_b32 v20, s3, 3")
        a("v_mov_b32 v21, 0")
        a("s_mov_b64 exec, 15")
        a(f"buffer_store_dword v21, v20, {ws}, 0 offen sc1")
        a("s_mov_b64 exec, -1")
        a.label(f"{n}_noflag")
    def unit_extra(self, u):
        n = self.name
        p = 100
        dsc = [f"s_mov_b32 s{S_DBG1}, s{p}", f"s_and_b32 s{S_DBG1+1}, s{p+1}, 0xffff", f"s_mov_b32 s{S_DBG1+2}, 256", f"s_mov_b32 s{S_DBG1+3}, 0x00020000"]
        if u == 11:
            return ["s_waitcnt vmcnt(0)"]
        if u == 12:
            return ([f"s_cmp_lg_u32 s{k1w.S_WV}, 4", f"s_cbranch_scc1 {n}_nocnt", "s_waitcnt lgkmcnt(0)"] + dsc +
                    ["s_and_b32 s3, s2, 7", "s_lshl_b32 s3, s3, 5", "s_mov_b64 exec, 1", "v_mov_b32 v20, s3", "v_mov_b32 v21, 1",
                     f"buffer_atomic_add v21, v20, s[{S_DBG1}:{S_DBG1+3}], 0 offen", "s_mov_b64 exec, -1", f"{n}_nocnt:"])
        if u == 26:
            return ([f"s_cmp_lg_u32 s{k1w.S_WV}, 5", f"s_cbranch_scc1 {n}_nochk", "s_waitcnt lgkmcnt(0)"] + dsc +
                    ["s_mov_b64 exec, 0xff", "v_and_b32 v20, 7, v0", "v_lshlrev_b32 v20, 5, v20", f"s_mov_b32 s3, {SPIN_LIMIT}",
                     f"{n}_clr:", f"buffer_load_dword v21, v20, s[{S_DBG1}:{S_DBG1+3}], 0 offen sc1", "s_waitcnt vmcnt(0)",
                     "v_cmp_le_u32 vcc, 32, v21", "s_sub_u32 s3, s3, 1", "s_cmp_eq_u32 s3, 0", f"s_cbranch_scc1 {n}_clrdone",
                     "s_cmp_eq_u64 vcc, exec", f"s_cbranch_scc1 {n}_clrdone", "s_sleep 2", f"s_branch {n}_clr",
                     f"{n}_clrdone:", "s_mov_b64 exec, -1", f"{n}_nochk:"])
        return []
    def keep_owner(self, a):
        a(f"s_lshl_b32 s{S_OWN}, s{k1w.S_HP}, 7")
        a(f"s_lshl_b32 s3, s{k1w.S_MT}, 2")
        a(f"s_add_u32 s{S_OWN}, s{S_OWN}, s3")
    def before_drain_A(self, a):
        self.keep_owner(a)
        self.owner.setup(a, False)
    def after_E2_B(self, a):
        self.keep_owner(a)
        self.owner.setup(a, False)
    def start_extra(self, a):
        a(f"v_mov_b32 v20, {L_CNT}")
        a("v_mov_b32 v21, 0")
        a("ds_write_b32 v20, v21")
    def after_drain_A(self, a):
        n = self.name
        a("s_mov_b64 exec, 1")
        a(f"v_mov_b32 v20, {L_CNT}")
        a("v_mov_b32 v21, 1")
        a("ds_add_rtn_u32 v21, v20, v21")
        a("s_waitcnt lgkmcnt(0)")
        a("v_readfirstlane_b32 s3, v21")
        a("s_cmp_lg_u32 s3, 3")
        a(f"s_cbranch_scc1 {n}_nof1")
        a(f"s_add_u32 s3, s{S_OWN}, {F1}")
        a("v_mov_b32 v20, 0")
        a("v_mov_b32 v21, 1")
        a(f"buffer_store_dword v21, v20, s[{k2d.S_WS}:{k2d.S_WS+3}], s3 offen sc1")
        a.label(f"{n}_nof1")
        a("s_mov_b64 exec, -1")
    def after_E2_A(self, a):
        n = self.name
        a(f"s_cmp_lg_u32 s{k2d.S_WV}, 0")
        a(f"s_cbranch_scc1 {n}_w1")
        self.owner.poll_pair(a, F1, "f1")
        a.label(f"{n}_w1")

class KAll(K23):
    STAMP = {1: 5, 2: 6, 3: 7, 4: 8, 5: 9, 6: 10, 7: 11, 8: 12, 9: 13}
    def __init__(self, name, k1=None, hmod="sc1", acquire=False, startprof=False, spread=None, **kw):
        super().__init__(name, **kw)
        self.hmod, self.acquire, self.spread = hmod, acquire, spread
        self.p1 = Phase1(name + "_p1", prof=self.prof, **(k1 or {}))
        self.peel, self.pass_idx = 2, None
        self.p1.owner = self
        self.p1.startprof = startprof
        if startprof: self.STAMP = {4: 8, 9: 13}
        self.p1.defer = True
        self.npb = 3
    def pstamp(self, a, idx, vreg=None):
        if idx == 0: Prof.pstamp(self, a, 0, vreg)
        elif idx in self.STAMP: Prof.pstamp(self, a, self.STAMP[idx], vreg)

    def spin(self, a, tag, load, check):
        n = self.name
        a(f"s_mov_b32 s36, {SPIN_LIMIT}")
        a.label(f"{n}_{tag}")
        for l in load: a(l)
        a("s_waitcnt vmcnt(0)")
        for l in check: a(l)
        a("s_sub_u32 s36, s36, 1")
        a("s_cmp_eq_u32 s36, 0")
        a(f"s_cbranch_scc1 {n}_{tag}_done")
        a("s_cmp_eq_u64 vcc, exec")
        a(f"s_cbranch_scc1 {n}_{tag}_done")
        a(f"s_sleep {self.sleep}")
        a(f"s_branch {n}_{tag}")
        a.label(f"{n}_{tag}_done")

    def line_of_pair(self, base):
        return [f"s_lshr_b32 s37, s{k2d.S_H}, 1", "s_lshl_b32 s37, s37, 7", f"s_add_u32 s37, s37, {base}"]

    def poll_pair(self, a, base, tag):
        ws = f"s[{k2d.S_WS}:{k2d.S_WS+3}]"
        for l in self.line_of_pair(base): a(l)
        a("s_mov_b64 exec, 0xffff")
        a("v_and_b32 v216, 15, v0")
        a("v_lshlrev_b32 v216, 2, v216")
        self.spin(a, tag, [f"buffer_load_dword v217, v216, {ws}, s37 offen sc1"], ["v_cmp_eq_u32 vcc, 1, v217"])
        a("s_mov_b64 exec, -1")

    def pre_loads(self, a):
        a("s_barrier")
        if not self.p1.startprof: Prof.pstamp(self, a, 4)

    def deferred_list(self):
        ws, sm = f"s[{k2d.S_WS}:{k2d.S_WS+3}]", self.store_mod
        r = [f"buffer_store_dwordx4 {vr(224 + 4 * tk, 4)}, v{k2d.V_LANE16}, {ws}, s92 offen offset:{tk * 1024} {sm}" for tk in range(4)]
        for ft in range(2):
            for dt in range(2):
                r.append(f"buffer_store_dwordx4 {vr(192 + (ft * 3 + dt) * 4, 4)}, v{k2d.V_LANE16}, {ws}, s93 offen offset:{(ft * 2 + dt) * 1024} {sm}")
            r.append(f"buffer_store_dwordx4 {vr(192 + (ft * 3 + 2) * 4, 4)}, v{k2d.V_ZOFF}, {ws}, s94 offen offset:{ft * 64} {sm}")
        return r

    def deferred_stores(self, a):
        a(f"s_lshr_b32 s{S_DEF}, s{k2d.S_WV}, 2")
        a(f"s_cmp_lg_u32 s{k2d.S_MODE}, 0")
        a(f"s_cselect_b32 s{S_DEF}, 0, s{S_DEF}")

    def unit_hook(self, j, qt):
        u = 2 * j + qt
        n = self.name
        r = []
        if u < 5 and self.pass_idx == 0:
            r += [f"s_cmp_eq_u32 s{S_DEF}, 0", f"s_cbranch_scc1 {n}_ds{u}"] + self.deferred_list()[2 * u:2 * u + 2] + [f"{n}_ds{u}:"]
        if self.spread:
            k = (2 * (j % k2d.TPW) + qt - 2 * (k2d.TPW - 1)) % (2 * k2d.TPW)
            a1, a2 = self.spread
            after = self.switch_kind(j, k)
            if k == a1 and after in ("steady",): r += self.part_add()
            if k == a1 and after == "bstart": r += self.first_iter_post()
            if k == a2 and after in ("steady", "bstart"): r += self.part_loads()
            if k == a2 and after != "none": r += self.touch_lines()
        return r

    def switch_kind(self, j, k):
        T = k2d.TPW
        in_second_half = (T - 1 <= j < 2 * T - 1) or (j == T - 1)
        first_of_pass = T - 1 <= j < 2 * T - 1
        wraps = j < T - 1
        p = self.pass_idx
        if first_of_pass: return {0: "plain", 1: "bstart", None: "steady"}[p]
        if wraps: return {0: "none", 1: "plain", None: "steady"}[p]
        return {0: "plain", 1: "steady", None: "steady"}[p]

    def first_wait(self, a):
        a(f"s_waitcnt vmcnt({2 if self.warm_out else 1})")

    def raise_f2(self):
        n = self.name
        return [f"s_add_u32 s36, s{S_OWN}, {F2}", "s_mov_b64 exec, 1", "v_mov_b32 v216, 0", "v_mov_b32 v217, 1",
                f"buffer_store_dword v217, v216, s[{k2d.S_WS}:{k2d.S_WS+3}], s36 offen sc1", "s_mov_b64 exec, -1"]

    def switch_code(self, j):
        n = self.name
        first = j == k2d.TPW - 1
        sp = bool(self.spread)
        tl = [] if sp else self.touch_lines()
        if self.pass_idx == 0 and first:
            return [f"s_cmp_eq_u32 s{S_DEF}, 0", f"s_cbranch_scc1 {n}_sw1a", "s_waitcnt vmcnt(8)", f"s_branch {n}_sw1b",
                    f"{n}_sw1a:", "s_waitcnt vmcnt(0)", f"{n}_sw1b:", "s_barrier"] + tl
        if self.pass_idx == 0:
            return ["s_waitcnt vmcnt(0)", "s_barrier"] + self.wave0_only("r2", self.raise_f2()) + tl
        if self.pass_idx == 1 and first:
            return ["s_waitcnt vmcnt(0)"] + self.first_iter_pre() + ["s_barrier"] + ([] if sp else self.first_iter_post() + self.part_loads()) + tl
        return ["s_waitcnt vmcnt(0)", "s_barrier"] + ([] if sp else self.part_add() + self.part_loads()) + tl

    def wave0_only(self, tag, lines):
        n = self.name
        return [f"s_cmp_lg_u32 s{k2d.S_WV}, 0", f"s_cbranch_scc1 {n}_{tag}"] + lines + [f"{n}_{tag}:"]
    def first_only(self, tag, wave0, lines):
        return self.wave0_only(tag, lines) if wave0 else lines
    def first_iter_issue(self):
        ws = f"s[{k2d.S_WS}:{k2d.S_WS+3}]"
        return self.first_only("i2", True, self.line_of_pair(F2) + ["v_and_b32 v216, 15, v0", "v_lshlrev_b32 v216, 2, v216",
                               f"buffer_load_dword v217, v216, {ws}, s37 offen sc1"])
    def first_iter_pre(self):
        n = self.name
        ws = f"s[{k2d.S_WS}:{k2d.S_WS+3}]"
        return self.first_only("c2", True, [f"s_mov_b32 s36, {SPIN_LIMIT}", f"{n}_c2l:", "v_cmp_eq_u32 vcc, 1, v217",
                                "s_sub_u32 s36, s36, 1", "s_cmp_eq_u32 s36, 0", f"s_cbranch_scc1 {n}_c2",
                                "s_cmp_eq_u64 vcc, exec", f"s_cbranch_scc1 {n}_c2",
                                f"buffer_load_dword v217, v216, {ws}, s37 offen sc1", "s_waitcnt vmcnt(0)", f"s_branch {n}_c2l"])
    def first_iter_post(self):
        b = Asm()
        self.b_loads(b)
        return self.first_only("b2", False, [l.strip() for l in b.lines])

    def gen(self):
        a = Asm()
        n = self.name
        a("s_cmp_ge_u32 s2, 256")
        a(f"s_cbranch_scc1 {n}_end")
        self.pstamp(a, 0)
        p1 = self.p1
        a("s_load_dwordx2 s[100:101], s[0:1], 72")
        if self.code:
            first, last, nbytes = self.code
            code_prefetch(a, n, first, last, 8, 252, 254, 90)(-(-nbytes // 32768))
        p1.body(a)
        self.rest(a)
        a.label(f"{n}_end")
        a("s_endpgm")
        a.label(f"{n}_last")
        return kernel_header(n) + a.text() + kernel_desc(n, 256, 256)
```

```python
from asmlib import *
from layout import *
from prof import Prof
from dbgstamp import dbg_setup, dbg_stamp

MARGIN = 90.0
TPS, TPW = 8, 4
STG = TPS * 4096
LDS_MISC = 2 * STG
L_KV, L_Z, L_WP, L_VOTE, L_SPARE = 0, 4096, 6144, 8192, 8448
L_XO = LDS_MISC + 8448 + 1024
LDS_K2 = L_XO + 8 * 5120

V_LANE16, V_T0, V_T1, V_T2, V_T3, V_G, V_RD = 1, 2, 3, 4, 5, 6, 7
VQ, VC, VS, VP, VKF, VVF, VO, VL, VONE = 8, 24, 56, 88, 96, 112, 128, 160, 168
S_WS, S_K, S_V = 8, 12, 16
S_H, S_QB, S_WV, S_SOFF, S_CNT, S_MODE, S_WOFF, S_QG, S_KH = 20, 21, 22, 23, 24, 25, 26, 27, 32
S_KVP, S_PKV, S_PZ = 44, 48, 49
VKA, VPT, VQB, VGB, V_ZOFF = 176, 184, 224, 244, 246

class K2d(Prof):
    V_PROF = 250
    def __init__(self, name, prof=False, store_mod="nt", force_fallback=False, margin=MARGIN, sched=1, bapply=True, prio=0, diag=(), code=None, dbg=None, wsbase=0):
        self.name, self.prof, self.store_mod = name, prof, store_mod
        self.force_fallback, self.margin, self.sched, self.bapply, self.prio = force_fallback, margin, sched, bapply, prio
        self.diag = set(diag)
        self.code = code
        self.npb = 2
        self.hmod = ''
        self.wsbase = wsbase
        self.dbg = dbg

    def dma_piece(self, slot, i):
        kv, n = i >> 1, i & 1
        srd_ = S_K if kv == 0 else S_V
        ins = []
        if n == 0:
            ins += [f"s_add_u32 m0, s{S_WOFF}, {slot * STG + kv * (STG // 2)}", "s_nop 0"]
        ins.append(f"buffer_load_dwordx4 v{V_LANE16}, s[{srd_}:{srd_+3}], s{S_SOFF} offen offset:{n * 1024} {self.hmod} lds")
        if i == 3:
            ins.append(f"s_add_u32 s{S_SOFF}, s{S_SOFF}, {STG // 2}")
        return ins
    def dma_stage(self, slot):
        return [l for i in range(4) for l in self.dma_piece(slot, i)]

    @staticmethod
    def koff(j): return (j // TPW) * STG + (j % TPW) * 2048
    def rdK(self, j):
        b = VKF + 8 * (j & 1); j %= 2 * TPW
        return [f"ds_read_b128 {vr(b + 4 * st, 4)}, v{V_RD} offset:{self.koff(j) + st * 1024}" for st in range(2)]
    def rdV(self, j):
        b = VVF + 8 * (j & 1); j %= 2 * TPW
        return [f"ds_read_b128 {vr(b + 4 * st, 4)}, v{V_RD} offset:{self.koff(j) + STG // 2 + st * 1024}" for st in range(2)]

    def unit(self, a, j, qt):
        u = 2 * j + qt
        s, sn = VS + 16 * (u & 1), VS + 16 * ((u + 1) & 1)
        jn, qn = (j + (qt == 1), qt ^ 1)
        kn = VKF + 8 * (jn & 1)
        jp, qp = (j - (qt == 0), qt ^ 1)
        v, vp = VVF + 8 * (j & 1), VVF + 8 * (jp & 1)
        e = lambda r: f"v_exp_f32 v{s + r}, v{s + r}"
        c = lambda k: f"v_cvt_pk_bf16_f32 v{VP + k}, v{s + 2 * k}, v{s + 2 * k + 1}"
        O, Op, Lq, Lp = VO + 16 * qt, VO + 16 * qp, VL + 4 * qt, VL + 4 * qp
        Sa = f"v_mfma_f32_32x32x16_bf16 {vr(sn, 16)}, {vr(kn, 4)}, {vr(VQ + 8 * qn, 4)}, {vr(VC + 16 * qn, 16)}"
        Sb = f"v_mfma_f32_32x32x16_bf16 {vr(sn, 16)}, {vr(kn + 4, 4)}, {vr(VQ + 8 * qn + 4, 4)}, {vr(sn, 16)}"
        PVa = f"v_mfma_f32_32x32x16_bf16 {vr(O, 16)}, {vr(v, 4)}, {vr(VP, 4)}, {vr(O, 16)}"
        PVb = f"v_mfma_f32_32x32x16_bf16 {vr(Op, 16)}, {vr(vp + 4, 4)}, {vr(VP + 4, 4)}, {vr(Op, 16)}"
        La = f"v_mfma_f32_16x16x32_bf16 {vr(Lq, 4)}, {vr(VONE, 4)}, {vr(VP, 4)}, {vr(Lq, 4)}"
        Lb = f"v_mfma_f32_16x16x32_bf16 {vr(Lp, 4)}, {vr(VONE, 4)}, {vr(VP + 4, 4)}, {vr(Lp, 4)}"
        rd = self.rdK(j + 1) if qt == 0 else self.rdV(j + 1)
        top = ["s_waitcnt lgkmcnt(0)"]
        jj = j % TPW
        if jj == TPW - 1 and qt == 0:
            if hasattr(self, "switch_code"):
                top += self.switch_code(j)
            else:
                top += ["s_waitcnt vmcnt(0)", "s_barrier"]
                if self.bapply: top += self.part_add() + self.part_loads()
                if hasattr(self, "touch_lines"): top += self.touch_lines()
        if hasattr(self, "first_iter_issue") and j == 1 and qt == 0 and self.pass_idx == 1: top += self.first_iter_issue()
        k = (2 * jj + qt - 2 * (TPW - 1)) % (2 * TPW)
        dm = []
        if k < 4:
            dm = self.dma_piece((((j + 1) // TPW) + 1) & 1, k)
        if self.prio >= 2:
            r = (2 * jj + qt - 2 * (TPW - 1)) % (2 * TPW)
            if self.prio == 2 and r % 2 == 0: top = top + [f"s_setprio {3 - r // 2}"]
            if self.prio == 3 and r in (0, 4): top = top + [f"s_setprio {1 - r // 4}"]
            if self.prio == 4 and r in (0, 3, 5, 7): top = top + [f"s_setprio {3 - (0, 3, 5, 7).index(r)}"]
        if hasattr(self, "unit_hook"): dm = dm + self.unit_hook(j, qt)
        r0, r1 = rd[:1], rd[1:]
        if self.sched == 1:
            seq = (top + [e(0)] + r0 + [e(1)] + r1 + [e(2), e(3), Sa, c(0), c(1), e(4), e(5), Lb, e(6), e(7), c(2), c(3), Sb,
                   e(8)] + dm + [e(9), e(10), e(11), PVb, c(4), c(5), e(12), e(13), PVa, e(14), e(15), c(6), c(7), La])
        elif self.sched == 2:
            seq = (top + r0 + r1 + [e(0), e(1), e(2), e(3), Sa, c(0), c(1), e(4), e(5), Lb, e(6), e(7), c(2), c(3), Sb] + dm +
                   [e(8), e(9), e(10), e(11), PVb, c(4), c(5), e(12), e(13), PVa, e(14), e(15), c(6), c(7), La])
        elif self.sched == 3:
            seq = (top + r0 + r1 + [Sa, e(0), e(1), e(2), e(3), Lb, c(0), c(1), e(4), e(5), Sb, e(6), e(7), c(2), c(3), PVb] + dm +
                   [e(8), e(9), e(10), e(11), PVa, c(4), c(5), e(12), e(13), La, e(14), e(15), c(6), c(7)])
        elif self.sched == 4:
            seq = (top + [e(0), e(1)] + r0 + [e(2), e(3), Sa] + r1 + [c(0), c(1), e(4), e(5), e(6), e(7), Sb, c(2), c(3), Lb] + dm +
                   [e(8), e(9), e(10), e(11), PVb, c(4), c(5), e(12), e(13), PVa, e(14), e(15), c(6), c(7), La])
        elif self.sched in (5, 6, 7):
            PVb_now = f"v_mfma_f32_32x32x16_bf16 {vr(O, 16)}, {vr(v + 4, 4)}, {vr(VP + 4, 4)}, {vr(O, 16)}"
            Lb_now = f"v_mfma_f32_16x16x32_bf16 {vr(Lq, 4)}, {vr(VONE, 4)}, {vr(VP + 4, 4)}, {vr(Lq, 4)}"
            valu = [e(0), e(1), e(2), e(3), c(0), e(4), c(1), e(5), e(6), e(7), c(2), e(8), c(3), e(9), e(10), e(11), c(4), e(12), c(5), e(13), e(14), e(15), "s_nop 0", c(6), c(7)]
            if self.sched == 5:
                seq = top + r0 + r1 + valu + dm + [Sa, Sb, PVa, La, PVb_now, Lb_now, "s_nop 7"]
            elif self.sched == 6:
                seq = top + r0 + r1 + valu[:8] + [Sa] + valu[8:16] + [Sb] + valu[16:] + dm + ["s_nop 1", PVa, La, PVb_now, Lb_now]
            else:
                seq = top + r0 + r1 + [Sa] + valu[:4] + [Sb] + valu[4:] + dm + ["s_nop 1", PVa, PVb_now, La, Lb_now]
        D = self.diag
        if "nord" in D: seq = [l for l in seq if not l.startswith("ds_read")]
        if "noL" in D: seq = [l for l in seq if "16x16x32" not in l]
        for l in seq: a(l)

    def halfmax(self, a, x, t):
        a(f"v_mov_b32 v{t}, v{x}")
        a("s_nop 1")
        a(f"v_permlane32_swap_b32 v{x}, v{t}")
        a("s_nop 1")
        a(f"v_max_f32 v{x}, v{x}, v{t}")

    NT = 2
    def part_loads(self):
        kvp = f"s[{S_KVP}:{S_KVP+3}]"
        r = []
        for b in range(self.npb):
            r += [f"buffer_load_dwordx4 {vr(VPT + 8 * b, 4)}, v{V_LANE16}, {kvp}, s{S_PKV} offen {self.hmod}",
                  f"buffer_load_dwordx4 {vr(VPT + 8 * b + 4, 4)}, v{V_ZOFF}, {kvp}, s{S_PZ} offen {self.hmod}",
                  f"s_add_u32 s{S_PKV}, s{S_PKV}, {KVP_STRIDE}", f"s_add_u32 s{S_PZ}, s{S_PZ}, {KVP_STRIDE}"]
        return r
    def part_add(self):
        return [f"v_pk_add_f32 {vr(VKA + r, 2)}, {vr(VKA + r, 2)}, {vr(VPT + 8 * b + r, 2)}" for b in range(self.npb) for r in range(0, 8, 2)]
    def part_reset(self):
        return ([f"s_lshl_b32 s{S_PKV}, s{S_WV}, 10", f"s_and_b32 s{S_PZ}, s{S_WV}, 3", f"s_lshl_b32 s{S_PZ}, s{S_PZ}, 6",
                 f"s_add_u32 s{S_PZ}, s{S_PZ}, 8192"] + [f"v_mov_b32 v{VKA + r}, 0" for r in range(8)])

    def b_loads(self, a):
        ws = f"s[{S_WS}:{S_WS+3}]"
        a(f"s_lshl_b32 s6, s{S_QB}, 4")
        a(f"s_lshl_b32 s7, s{S_WV}, 1")
        a("s_add_u32 s6, s6, s7")
        a("s_lshl_b32 s7, s6, 10")
        a(f"s_lshl_b32 s3, s{S_H}, 17")
        a("s_add_u32 s7, s7, s3")
        a(f"s_add_u32 s7, s7, {WS_QB}")
        for t in range(self.NT):
            a(f"buffer_load_dwordx4 {vr(VQB + 4 * t, 4)}, v{V_LANE16}, {ws}, s7 offen offset:{t * 1024} {self.hmod}")
        a("s_lshl_b32 s7, s6, 6")
        a(f"s_add_u32 s7, s7, {WS_G}")
        a(f"v_and_b32 v{V_T0}, 15, v{V_T1}")
        a(f"v_lshlrev_b32 v{V_T0}, 2, v{V_T0}")
        for t in range(self.NT):
            a(f"buffer_load_dword v{VGB + t}, v{V_T0}, {ws}, s7 offen offset:{t * 64} {self.hmod}")
        a(f"s_lshl_b32 s6, s{S_H}, 11")
        a(f"s_lshl_b32 s7, s{S_WV}, 10")
        a("s_add_u32 s6, s6, s7")
        a(f"s_cmp_ge_u32 s{S_WV}, 2")
        a("s_cselect_b32 s6, 0x10000, s6")
        a(f"s_cselect_b32 s7, {L_SPARE - L_WP}, s7")
        a(f"s_add_u32 m0, s7, {LDS_MISC + L_WP}")
        a("s_nop 0")
        a(f"buffer_load_dwordx4 v{V_LANE16}, s[28:31], s6 offen lds")

    def b_publish(self, a):
        for k in range(4):
            a(f"v_cvt_pk_bf16_f32 v{VPT + k}, v{VKA + 2 * k}, v{VKA + 2 * k + 1}")
        a(f"v_and_b32 v{V_T1}, 63, v0")
        a(f"v_lshlrev_b32 v{V_T0}, 3, v{V_T1}")
        a(f"v_add_u32 v{V_T0}, {LDS_MISC}, v{V_T0}")
        a(f"s_lshl_b32 s6, s{S_WV}, 9")
        a(f"v_add_u32 v{V_T3}, s6, v{V_T0}")
        a(f"ds_write_b64 v{V_T3}, {vr(VPT, 2)} offset:{L_KV}")
        a(f"s_and_b32 s6, s{S_WV}, 3")
        a(f"s_lshl_b32 s6, s6, 9")
        a(f"v_add_u32 v{V_T3}, s6, v{V_T0}")
        a(f"ds_write_b64 v{V_T3}, {vr(VPT + 2, 2)} offset:{L_Z}")

    def b_apply(self, a):
        ws = f"s[{S_WS}:{S_WS+3}]"
        NT = self.NT
        a(f"v_and_b32 v{V_T1}, 63, v0")
        a(f"v_lshlrev_b32 v{V_T0}, 3, v{V_T1}")
        a(f"v_add_u32 v{V_T0}, {LDS_MISC}, v{V_T0}")
        for sg in range(2):
            for dt in range(2):
                for ft in range(2):
                    t = (sg * 2 + ft) * 2 + dt
                    a(f"ds_read_b64 {vr(24 + (sg * 2 + dt) * 4 + 2 * ft, 2)}, v{V_T0} offset:{L_KV + t * 512}")
            for ft in range(2):
                a(f"ds_read_b64 {vr(40 + sg * 4 + 2 * ft, 2)}, v{V_T0} offset:{L_Z + (sg * 2 + ft) * 512}")
        a(f"v_lshrrev_b32 v{V_T2}, 4, v{V_T1}")
        a(f"v_bfe_u32 v{V_T3}, v{V_T1}, 2, 2")
        a(f"v_lshl_add_u32 v{V_T2}, v{V_T2}, 2, v{V_T3}")
        a(f"v_lshlrev_b32 v{V_T2}, 6, v{V_T2}")
        a(f"v_and_b32 v{V_T3}, 3, v{V_T1}")
        a(f"v_lshl_add_u32 v{V_T2}, v{V_T3}, 3, v{V_T2}")
        a(f"v_add_u32 v{V_T2}, {LDS_MISC}, v{V_T2}")
        for ft in range(2):
            for q in range(2):
                a(f"ds_read_b64_tr_b16 {vr(48 + 4 * ft + 2 * q, 2)}, v{V_T2} offset:{L_WP + q * 1024 + ft * 32}")
        a(f"v_mov_b32 v56, 0x3f803f80")
        for r in range(1, 4): a(f"v_mov_b32 v{56 + r}, v56")
        a("s_waitcnt lgkmcnt(0)")
        for t in range(NT):
            for ft in range(2):
                a(f"v_mfma_f32_16x16x32_bf16 {vr(64 + 8 * t + 4 * ft, 4)}, {vr(48 + 4 * ft, 4)}, {vr(VQB + 4 * t, 4)}, 0")
        a("s_nop 7")
        P = lambda t, i: 64 + 8 * t + i
        MX, MN, TM = 96, 100, 104
        T = range(NT)
        for t in T:
            a(f"v_max3_f32 v{MX+2*t}, v{P(t,0)}, v{P(t,1)}, v{P(t,2)}")
            a(f"v_min3_f32 v{MN+2*t}, v{P(t,0)}, v{P(t,1)}, v{P(t,2)}")
        for i in (3, 5):
            for t in T:
                a(f"v_max3_f32 v{MX+2*t}, v{MX+2*t}, v{P(t,i)}, v{P(t,i+1)}")
                a(f"v_min3_f32 v{MN+2*t}, v{MN+2*t}, v{P(t,i)}, v{P(t,i+1)}")
        for t in T:
            a(f"v_max_f32 v{MX+2*t}, v{MX+2*t}, v{P(t,7)}")
            a(f"v_min_f32 v{MN+2*t}, v{MN+2*t}, v{P(t,7)}")
        for t in T: a(f"v_sub_f32 v{MN+2*t}, 0, v{MN+2*t}")
        a("s_nop 1")
        for t in T: a(f"v_permlane32_swap_b32 v{MX+2*t}, v{MN+2*t}")
        a("s_nop 1")
        for t in T: a(f"v_max_f32 v{MX+2*t}, v{MX+2*t}, v{MN+2*t}")
        for t in T: a(f"v_mov_b32 v{TM+2*t}, v{MX+2*t}")
        a("s_nop 1")
        for t in T: a(f"v_permlane16_swap_b32 v{MX+2*t}, v{TM+2*t}")
        a("s_nop 1")
        for t in T: a(f"v_max_f32 v{MX+2*t}, v{MX+2*t}, v{TM+2*t}")
        for t in T: a(f"v_mov_b32 v{MN+2*t}, v{MX+2*t}")
        a("s_nop 1")
        for t in T: a(f"v_permlane32_swap_b32 v{MX+2*t}, v{MN+2*t}")
        a("s_nop 1")
        EP = lambda t, i: 176 + 8 * t + i
        a(f"s_mov_b32 s36, {f32bits(LOG2E)}")
        a(f"s_mov_b32 s37, {f32bits(LOG2E)}")
        a(f"s_mov_b32 s38, {f32bits(-LOG2E)}")
        a(f"s_mov_b32 s39, {f32bits(-LOG2E)}")
        for t in T:
            a(f"v_mul_f32 v{MX+2*t}, s38, v{MX+2*t}")
            a(f"v_mul_f32 v{MN+2*t}, s38, v{MN+2*t}")
        for t in T:
            for i in range(0, 8, 2):
                a(f"v_pk_fma_f32 {vr(EP(t,i), 2)}, {vr(P(t,i), 2)}, s[36:37], {vr(MX+2*t, 2)} op_sel_hi:[1,1,0]")
                a(f"v_pk_fma_f32 {vr(P(t,i), 2)}, {vr(P(t,i), 2)}, s[38:39], {vr(MN+2*t, 2)} op_sel_hi:[1,1,0]")
        for t in T:
            for i in range(8):
                a(f"v_exp_f32 v{EP(t,i)}, v{EP(t,i)}")
                a(f"v_exp_f32 v{P(t,i)}, v{P(t,i)}")
        BP, BM = 96, 112
        if hasattr(self, "b_mid"): self.b_mid(a)
        a("s_nop 0")
        for t in T:
            for k in range(4):
                a(f"v_cvt_pk_bf16_f32 v{BP + 4*t + k}, v{EP(t,2*k)}, v{EP(t,2*k+1)}")
                a(f"v_cvt_pk_bf16_f32 v{BM + 4*t + k}, v{P(t,2*k)}, v{P(t,2*k+1)}")
        a("s_nop 1")
        for t in T:
            R = 176 + 32 * t
            bp, bm = vr(BP + 4 * t, 4), vr(BM + 4 * t, 4)
            for dt in range(2):
                a(f"v_mfma_f32_16x16x32_bf16 {vr(R + 4 * dt, 4)}, {vr(24 + 4 * dt, 4)}, {bp}, 0")
                a(f"v_mfma_f32_16x16x32_bf16 {vr(R + 8 + 4 * dt, 4)}, {vr(32 + 4 * dt, 4)}, {bm}, 0")
            a(f"v_mfma_f32_16x16x32_bf16 {vr(R + 16, 4)}, {vr(40, 4)}, {bp}, 0")
            a(f"v_mfma_f32_16x16x32_bf16 {vr(R + 20, 4)}, {vr(44, 4)}, {bm}, 0")
            a(f"v_mfma_f32_16x16x32_bf16 {vr(R + 24, 4)}, {vr(56, 4)}, {bp}, 0")
            a(f"v_mfma_f32_16x16x32_bf16 {vr(R + 28, 4)}, {vr(56, 4)}, {bm}, 0")
        a("s_nop 7")
        for t in T:
            R = 176 + 32 * t
            a(f"v_rcp_f32 v{R + 24}, v{R + 24}")
            a(f"v_rcp_f32 v{R + 28}, v{R + 28}")
        a("s_nop 0")
        for t in T:
            R = 176 + 32 * t
            a(f"v_mul_f32 v{R + 16}, v{R + 16}, v{R + 24}")
            a(f"v_sub_f32 v{R + 17}, 1.0, v{VGB + t}")
            a(f"v_fma_f32 v{R + 16}, v{R + 20}, v{R + 28}, v{R + 16}")
            a(f"v_add_f32 v{R + 16}, {f32bits(1e-6)}, v{R + 16}")
        for t in T:
            a(f"v_rcp_f32 v{176 + 32 * t + 16}, v{176 + 32 * t + 16}")
        a("s_nop 0")
        for t in T:
            R = 176 + 32 * t
            a(f"v_mul_f32 v{R + 16}, v{R + 16}, v{R + 17}")
            a(f"v_mul_f32 v{R + 24}, v{R + 24}, v{R + 16}")
            a(f"v_mul_f32 v{R + 28}, v{R + 28}, v{R + 16}")
        for t in T:
            R = 176 + 32 * t
            for i in range(0, 8, 2): a(f"v_pk_mul_f32 {vr(R + i, 2)}, {vr(R + i, 2)}, {vr(R + 24, 2)} op_sel_hi:[1,0]")
            for i in range(0, 8, 2): a(f"v_pk_fma_f32 {vr(R + i, 2)}, {vr(R + 8 + i, 2)}, {vr(R + 28, 2)}, {vr(R + i, 2)} op_sel_hi:[1,0,1]")
        for t in T:
            R = 176 + 32 * t
            for k in range(4):
                a(f"v_cvt_pk_bf16_f32 v{R + 20 + k}, v{R + 2 * k}, v{R + 2 * k + 1}")
            a(f"s_lshl_b32 s6, s{S_QB}, 4")
            a(f"s_lshl_b32 s7, s{S_WV}, 1")
            a("s_add_u32 s6, s6, s7")
            a(f"s_add_u32 s6, s6, {t}")
            a("s_lshl_b32 s6, s6, 10")
            a(f"s_lshl_b32 s7, s{S_H}, 17")
            a("s_add_u32 s6, s6, s7")
            a(f"s_add_u32 s6, s6, {WS_O + 32 * 131072}")
            a(f"buffer_store_dwordx4 {vr(R + 20, 4)}, v{V_LANE16}, {ws}, s6 offen {self.store_mod}")

    def gen(self):
        a = Asm()
        n = self.name
        a("s_cmp_ge_u32 s2, 256")
        a(f"s_cbranch_scc1 {n}_end")
        self.pstamp(a, 0)
        self.body(a, True)
        a.label(f"{n}_end")
        a("s_endpgm")
        a.label(f"{n}_last")
        return kernel_header(n) + a.text() + kernel_desc(n, 256, 256)

    def body(self, a, standalone):
        self.setup(a, standalone)
        self.rest(a)

    def setup(self, a, standalone):
        n = self.name
        ws = f"s[{S_WS}:{S_WS+3}]"
        a("s_load_dwordx2 s[4:5], s[0:1], 80")
        a("s_load_dwordx2 s[34:35], s[0:1], 40")
        if hasattr(self, "entry_extra"): self.entry_extra(a)
        if self.code and standalone:
            first, last, nbytes = self.code
            code_prefetch(a, n, first, last, 8, 240, 242, 90)(-(-nbytes // 32768))
        a("s_and_b32 s3, s2, 7")
        a("s_lshr_b32 s6, s2, 3")
        a(f"s_lshl_b32 s{S_H}, s3, 2")
        a("s_lshr_b32 s7, s6, 3")
        a(f"s_add_u32 s{S_H}, s{S_H}, s7")
        a(f"s_and_b32 s{S_QB}, s6, 7")
        a("v_lshrrev_b32 v2, 6, v0")
        a(f"v_and_b32 v{V_T1}, 63, v0")
        a(f"v_lshlrev_b32 v{V_LANE16}, 4, v{V_T1}")
        a(f"v_readfirstlane_b32 s{S_WV}, v2")
        a("s_waitcnt lgkmcnt(0)")
        ws_shift(a, 4, self.wsbase)
        srd(a, S_WS, 4, 0x10000000 - self.wsbase)
        srd(a, 28, 34, 65536)
        a(f"s_lshl_b32 s3, s{S_H}, 17")
        for S, off in ((S_K, WS_KA), (S_V, WS_VA)):
            a(f"s_add_u32 s6, s3, {off}")
            a(f"s_add_u32 s{S}, s4, s6")
            a(f"s_addc_u32 s{S+1}, s5, 0")
            a(f"s_and_b32 s{S+1}, s{S+1}, 0xffff")
            a(f"s_mov_b32 s{S+2}, 131072")
            a(f"s_mov_b32 s{S+3}, 0x00020000")
        a(f"s_lshl_b32 s{S_WOFF}, s{S_WV}, 11")
        a(f"s_and_b32 s{S_QG}, s{S_WV}, 3")
        a(f"s_lshr_b32 s{S_KH}, s{S_WV}, 2")
        a(f"s_lshl_b32 s6, s{S_KH}, 13")
        a(f"v_add_u32 v{V_RD}, s6, v{V_LANE16}")
        a(f"s_lshl_b32 s6, s{S_QB}, 3")
        a(f"s_lshl_b32 s7, s{S_QG}, 1")
        a("s_add_u32 s6, s6, s7")
        a("s_lshl_b32 s7, s6, 11")
        a(f"s_lshl_b32 s3, s{S_H}, 17")
        a("s_add_u32 s7, s7, s3")
        a(f"s_add_u32 s7, s7, {WS_QA}")
        a(f"s_mov_b32 s{S_MODE}, 0")
        a(f"s_mov_b32 s{S_SOFF}, s{S_WOFF}")

    def rest(self, a):
        n = self.name
        ws = f"s[{S_WS}:{S_WS+3}]"
        if hasattr(self, "pre_loads"): self.pre_loads(a)
        for l in self.dma_piece(0, 0) + self.dma_piece(0, 1): a(l)
        for i in range(4):
            a(f"buffer_load_dwordx4 {vr(VQ + 4 * i, 4)}, v{V_LANE16}, {ws}, s7 offen offset:{i * 1024} {self.hmod}")
        for l in self.dma_piece(0, 2) + self.dma_piece(0, 3): a(l)
        a(f"s_add_u32 s6, s6, s{S_KH}")
        a("s_lshl_b32 s7, s6, 7")
        a(f"s_add_u32 s7, s7, {WS_G}")
        a(f"v_and_b32 v{V_T0}, 31, v{V_T1}")
        a(f"v_lshlrev_b32 v{V_T0}, 2, v{V_T0}")
        a(f"buffer_load_dword v{V_G}, v{V_T0}, {ws}, s7 offen {self.hmod}")
        nbg = 1
        if self.bapply:
            a(f"s_lshl_b32 s6, s{S_H}, 18")
            a(f"s_add_u32 s6, s6, {WS_KVP}")
            a(f"s_add_u32 s{S_KVP}, s4, s6")
            a(f"s_addc_u32 s{S_KVP+1}, s5, 0")
            a(f"s_and_b32 s{S_KVP+1}, s{S_KVP+1}, 0xffff")
            a(f"s_mov_b32 s{S_KVP+2}, {NKVP * KVP_STRIDE}")
            a(f"s_mov_b32 s{S_KVP+3}, 0x00020000")
            a(f"v_lshrrev_b32 v{V_ZOFF}, 4, v{V_T1}")
            a(f"v_lshlrev_b32 v{V_ZOFF}, 4, v{V_ZOFF}")
            for l in self.part_reset(): a(l)
            if not hasattr(self, "deferred_stores"):
                for r in range(8 * self.npb): a(f"v_mov_b32 v{VPT + r}, 0")
        self.nbg = nbg
        self.pstamp(a, 1)
        a(f"v_lshrrev_b32 v{V_T0}, 4, v{V_T1}")
        a(f"v_lshrrev_b32 v{V_T2}, 2, v{V_T1}")
        a(f"v_xor_b32 v{V_T0}, v{V_T0}, v{V_T2}")
        a(f"v_and_b32 v{V_T0}, 1, v{V_T0}")
        a(f"v_mov_b32 v{V_T2}, 0x3f803f80")
        a(f"v_cmp_eq_u32 vcc, 0, v{V_T0}")
        a("s_nop 1")
        a(f"v_cndmask_b32 v{VONE}, 0, v{V_T2}, vcc")
        for r in range(1, 4): a(f"v_mov_b32 v{VONE + r}, v{VONE}")
        if hasattr(self, "early_setup"): self.early_setup(a)
        for r in range(32): a(f"v_mov_b32 v{VO + r}, 0")
        for r in range(8): a(f"v_mov_b32 v{VL + r}, 0")
        for r in range(8): a(f"v_mov_b32 v{VP + r}, 0")
        for r in range(4): a(f"v_mov_b32 v{VVF + 8 + 4 + r}, 0")
        if hasattr(self, "first_wait"): self.first_wait(a)
        else: a(f"s_waitcnt vmcnt({self.nbg})")
        a(f"s_branch {n}_first")
        a.label(f"{n}_restart")
        a(f"s_mov_b32 s{S_SOFF}, s{S_WOFF}")
        for l in self.dma_stage(0): a(l)
        if self.bapply:
            for l in self.part_reset(): a(l)
            for r in range(8 * self.npb): a(f"v_mov_b32 v{VPT + r}, 0")
        for r in range(32): a(f"v_mov_b32 v{VO + r}, 0")
        for r in range(8): a(f"v_mov_b32 v{VL + r}, 0")
        for r in range(8): a(f"v_mov_b32 v{VP + r}, 0")
        for r in range(4): a(f"v_mov_b32 v{VVF + 8 + 4 + r}, 0")
        a("s_waitcnt vmcnt(0)")
        a.label(f"{n}_first")
        a("s_barrier")
        self.pstamp(a, 2)
        for l in self.dma_piece(1, 0) + self.dma_piece(1, 1): a(l)
        if hasattr(self, "deferred_stores"): self.deferred_stores(a)
        if self.bapply and not hasattr(self, "switch_code"):
            a(f"s_cmp_lg_u32 s{S_MODE}, 0")
            a(f"s_cbranch_scc1 {n}_nobl")
            self.b_loads(a)
            a.label(f"{n}_nobl")
        a(f"ds_read_b128 {vr(VKF + 8, 4)}, v{V_LANE16}")
        a(f"ds_read_b128 {vr(VKF + 12, 4)}, v{V_LANE16} offset:1024")
        for l in self.rdK(0) + self.rdV(0): a(l)
        a(f"s_cmp_lg_u32 s{S_MODE}, 0")
        a(f"s_cbranch_scc1 {n}_havemax")
        a("s_waitcnt lgkmcnt(4)")
        for qt in range(2):
            s = VS + 16 * qt
            a(f"v_mfma_f32_32x32x16_bf16 {vr(s, 16)}, {vr(VKF + 8, 4)}, {vr(VQ + 8 * qt, 4)}, 0")
            a(f"v_mfma_f32_32x32x16_bf16 {vr(s, 16)}, {vr(VKF + 12, 4)}, {vr(VQ + 8 * qt + 4, 4)}, {vr(s, 16)}")
        a("s_nop 15")
        for qt in range(2):
            s, x = VS + 16 * qt, V_T0 + 2 * qt
            a(f"v_max3_f32 v{x}, v{s}, v{s + 1}, v{s + 2}")
            for r in range(3, 15, 2):
                a(f"v_max3_f32 v{x}, v{x}, v{s + r}, v{s + r + 1}")
            a(f"v_max_f32 v{x}, v{x}, v{s + 15}")
        for qt in range(2):
            x = V_T0 + 2 * qt
            self.halfmax(a, x, V_T3)
            a(f"v_add_f32 v{x}, {f32bits(self.margin)}, v{x}")
            a(f"v_sub_f32 v{VC + 16 * qt}, 0, v{x}")
            for r in range(1, 16): a(f"v_mov_b32 v{VC + 16 * qt + r}, v{VC + 16 * qt}")
        a.label(f"{n}_havemax")
        a("s_waitcnt lgkmcnt(0)")
        a(f"v_mfma_f32_32x32x16_bf16 {vr(VS, 16)}, {vr(VKF, 4)}, {vr(VQ, 4)}, {vr(VC, 16)}")
        a(f"v_mfma_f32_32x32x16_bf16 {vr(VS, 16)}, {vr(VKF + 4, 4)}, {vr(VQ + 4, 4)}, {vr(VS, 16)}")
        a("s_nop 7")
        a(f"s_mov_b32 s{S_CNT}, {32 // (2 * TPW)}")
        if self.prio == 1:
            a(f"s_cmp_ge_u32 s{S_WV}, 4")
            a(f"s_cbranch_scc0 {n}_noprio")
            a("s_setprio 1")
            a.label(f"{n}_noprio")
        self.pstamp(a, 3)
        a("s_nop 3")
        npeel = getattr(self, "peel", 0)
        for p in range(npeel):
            self.pass_idx = p
            for j in range(2 * TPW):
                for qt in range(2):
                    self.unit(a, j, qt)
        if npeel:
            self.pass_idx = None
            a(f"s_mov_b32 s{S_CNT}, {32 // (2 * TPW) - npeel}")
        a(".p2align 6")
        a.label(f"{n}_loop")
        for j in range(2 * TPW):
            for qt in range(2):
                self.unit(a, j, qt)
        a(f"s_sub_u32 s{S_CNT}, s{S_CNT}, 1")
        a(f"s_cmp_lg_u32 s{S_CNT}, 0")
        a(f"s_cbranch_scc1 {n}_loop")
        a("s_nop 1")
        if self.sched < 5:
            a(f"v_mfma_f32_32x32x16_bf16 {vr(VO + 16, 16)}, {vr(VVF + 8 + 4, 4)}, {vr(VP + 4, 4)}, {vr(VO + 16, 16)}")
            a(f"v_mfma_f32_16x16x32_bf16 {vr(VL + 4, 4)}, {vr(VONE, 4)}, {vr(VP + 4, 4)}, {vr(VL + 4, 4)}")
        if self.prio: a("s_setprio 0")
        self.pstamp(a, 4)
        a("s_waitcnt vmcnt(0) lgkmcnt(0)")
        if self.bapply:
            for l in self.part_add(): a(l)
        a("s_nop 15")
        a(f"s_mov_b32 s3, 0")
        if not self.diag:
            a(f"v_mul_f32 v{V_T0}, {f32bits(256.0)}, v{VL}")
            a(f"v_mul_f32 v{V_T2}, {f32bits(256.0)}, v{VL + 4}")
            a(f"v_mul_f32 v{V_T0}, 0, v{V_T0}")
            a(f"v_fma_f32 v{V_T0}, v{V_T2}, 0, v{V_T0}")
            a(f"v_mov_b32 v216, 0")
            a(f"v_mov_b32 v217, 0")
            for r in range(0, 32, 2): a(f"v_pk_fma_f32 v[216:217], {vr(VO + r, 2)}, 0, v[216:217] op_sel_hi:[1,0,1]")
            a(f"v_add_f32 v{V_T0}, v{V_T0}, v216")
            a(f"v_add_f32 v{V_T0}, v{V_T0}, v217")
            if self.force_fallback:
                a(f"v_mov_b32 v{V_T0}, 0x7fc00000")
            a(f"v_cmp_u_f32 vcc, v{V_T0}, v{V_T0}")
            a(f"s_or_b32 s3, vcc_lo, vcc_hi")
            a(f"s_cmp_lg_u32 s3, 0")
            a(f"s_cselect_b32 s3, 1, 0")
        a(f"v_mov_b32 v{V_T0}, s3")
        a(f"s_lshl_b32 s6, s{S_WV}, 2")
        a(f"s_add_u32 s6, s6, {LDS_MISC + L_VOTE}")
        a(f"v_mov_b32 v{V_T2}, s6")
        a(f"ds_write_b32 v{V_T2}, v{V_T0}")
        a(f"s_mul_i32 s6, s{S_WV}, {5 * 1024}")
        a(f"s_add_u32 s6, s6, {L_XO}")
        a(f"v_add_u32 v{V_T2}, s6, v{V_LANE16}")
        a(f"s_cmp_eq_u32 s{S_KH}, 0")
        a(f"s_cbranch_scc1 {n}_give1")
        for qt, lab in ((0, ""), (1, f"{n}_give1")):
            if lab: a.label(lab)
            for k in range(4):
                a(f"ds_write_b128 v{V_T2}, {vr(VO + 16 * qt + 4 * k, 4)} offset:{k * 1024}")
            a(f"ds_write_b128 v{V_T2}, {vr(VL + 4 * qt, 4)} offset:4096")
            if qt == 0: a(f"s_branch {n}_gave")
        a.label(f"{n}_gave")
        if self.bapply: self.b_publish(a)
        a("s_waitcnt lgkmcnt(0)")
        a("s_barrier")
        a(f"v_mov_b32 v{V_T0}, {LDS_MISC + L_VOTE}")
        a(f"ds_read_b128 v[216:219], v{V_T0}")
        a(f"ds_read_b128 v[220:223], v{V_T0} offset:16")
        a(f"s_xor_b32 s6, s{S_WV}, 4")
        a(f"s_mul_i32 s6, s6, {5 * 1024}")
        a(f"s_add_u32 s6, s6, {L_XO}")
        a(f"v_add_u32 v{V_T2}, s6, v{V_LANE16}")
        for k in range(4):
            a(f"ds_read_b128 {vr(VS + 4 * k, 4)}, v{V_T2} offset:{k * 1024}")
        a(f"ds_read_b128 {vr(VS + 16, 4)}, v{V_T2} offset:4096")
        a("s_waitcnt lgkmcnt(5)")
        a("v_or3_b32 v216, v216, v217, v218")
        a("v_or3_b32 v216, v216, v219, v220")
        a("v_or3_b32 v216, v216, v221, v222")
        a("v_or_b32 v216, v216, v223")
        a("s_nop 0")
        a("v_readfirstlane_b32 s3, v216")
        a(f"s_sub_u32 s6, 1, s{S_MODE}")
        a("s_and_b32 s3, s3, s6")
        a("s_cmp_eq_u32 s3, 0")
        a(f"s_cbranch_scc1 {n}_fin")
        a("s_waitcnt lgkmcnt(0)")
        a("s_barrier")
        a(f"s_mov_b32 s{S_SOFF}, s{S_WOFF}")
        a(f"s_mov_b32 s{S_CNT}, {64 // TPS}")
        a(f"v_mov_b32 v{V_T0}, 0xff800000")
        a(f"v_mov_b32 v{V_T2}, 0xff800000")
        a.label(f"{n}_maxloop")
        for l in self.dma_stage(0): a(l)
        a("s_waitcnt vmcnt(0)")
        a("s_barrier")
        for j in range(TPS):
            a(f"ds_read_b128 {vr(VKF, 4)}, v{V_LANE16} offset:{j * 2048}")
            a(f"ds_read_b128 {vr(VKF + 4, 4)}, v{V_LANE16} offset:{j * 2048 + 1024}")
            a("s_waitcnt lgkmcnt(0)")
            for qt in range(2):
                s = VS + 16 * qt
                a(f"v_mfma_f32_32x32x16_bf16 {vr(s, 16)}, {vr(VKF, 4)}, {vr(VQ + 8 * qt, 4)}, 0")
                a(f"v_mfma_f32_32x32x16_bf16 {vr(s, 16)}, {vr(VKF + 4, 4)}, {vr(VQ + 8 * qt + 4, 4)}, {vr(s, 16)}")
            a("s_nop 15")
            for qt in range(2):
                s, x = VS + 16 * qt, V_T0 + 2 * qt
                for r in range(0, 16, 2):
                    a(f"v_max3_f32 v{x}, v{x}, v{s + r}, v{s + r + 1}")
        a("s_barrier")
        a(f"s_sub_u32 s{S_CNT}, s{S_CNT}, 1")
        a(f"s_cmp_lg_u32 s{S_CNT}, 0")
        a(f"s_cbranch_scc1 {n}_maxloop")
        for qt in range(2):
            x = V_T0 + 2 * qt
            self.halfmax(a, x, V_T3)
            a(f"v_sub_f32 v{VC + 16 * qt}, 0, v{x}")
            for r in range(1, 16): a(f"v_mov_b32 v{VC + 16 * qt + r}, v{VC + 16 * qt}")
        a(f"s_mov_b32 s{S_MODE}, 1")
        a(f"s_branch {n}_restart")
        a.label(f"{n}_fin")
        if hasattr(self, "after_decision"): self.after_decision(a)
        a(f"s_cmp_eq_u32 s{S_KH}, 0")
        a(f"s_cbranch_scc1 {n}_keep0")
        for r in range(16): a(f"v_mov_b32 v{VO + r}, v{VO + 16 + r}")
        a(f"v_mov_b32 v{VL}, v{VL + 4}")
        a.label(f"{n}_keep0")
        a(f"v_and_b32 v{V_T1}, 63, v0")
        a(f"v_bfe_u32 v{V_T0}, v{V_T1}, 4, 1")
        a(f"v_lshlrev_b32 v{V_T0}, 10, v{V_T0}")
        a(f"v_lshrrev_b32 v{V_T2}, 5, v{V_T1}")
        a(f"v_lshl_add_u32 v{V_T0}, v{V_T2}, 8, v{V_T0}")
        a(f"v_and_b32 v{V_T2}, 15, v{V_T1}")
        a(f"v_lshl_add_u32 v{V_T0}, v{V_T2}, 4, v{V_T0}")
        a("s_waitcnt lgkmcnt(0)")
        a(f"v_add_f32 v{VL}, v{VL}, v{VS + 16}")
        a(f"v_rcp_f32 v{V_T2}, v{VL}")
        for r in range(0, 16, 2): a(f"v_pk_add_f32 {vr(VO + r, 2)}, {vr(VO + r, 2)}, {vr(VS + r, 2)}")
        a(f"v_mul_f32 v{V_T2}, v{V_T2}, v{V_G}")
        for r in range(0, 16, 2): a(f"v_pk_mul_f32 {vr(VO + r, 2)}, {vr(VO + r, 2)}, {vr(V_T2, 2)} op_sel_hi:[1,0]")
        for k in range(8): a(f"v_cvt_pk_bf16_f32 v{VS + k}, v{VO + 2 * k}, v{VO + 2 * k + 1}")
        a(f"s_lshl_b32 s6, s{S_QB}, 3")
        a(f"s_lshl_b32 s7, s{S_QG}, 1")
        a("s_add_u32 s6, s6, s7")
        a(f"s_add_u32 s6, s6, s{S_KH}")
        a("s_lshl_b32 s6, s6, 11")
        a(f"s_lshl_b32 s7, s{S_H}, 17")
        a("s_add_u32 s6, s6, s7")
        a(f"s_add_u32 s6, s6, {WS_O}")
        a(f"buffer_store_dwordx4 {vr(VS, 4)}, v{V_T0}, {ws}, s6 offen {self.store_mod}")
        a(f"buffer_store_dwordx4 {vr(VS + 4, 4)}, v{V_T0}, {ws}, s6 offen offset:512 {self.store_mod}")
        self.pstamp(a, 5)
        if self.bapply:
            self.b_apply(a)
        last = 6
        if hasattr(self, "project"):
            self.project(a); last = 9
        if self.prof:
            a("s_waitcnt vmcnt(0)")
            self.pstamp(a, last)
            self.pflush(a, 1, 8, S_WV, ws)
```

```python
from asmlib import *
from layout import *
from prof import Prof
from dbgstamp import dbg_setup, dbg_stamp

MARGIN = 90.0
TPS, TPW = 8, 4
STG = TPS * 4096
LDS_MISC = 2 * STG
L_KV, L_Z, L_WP, L_VOTE, L_SPARE = 0, 4096, 6144, 8192, 8448
L_XO = LDS_MISC + 8448 + 1024
LDS_K2 = L_XO + 8 * 5120

V_LANE16, V_T0, V_T1, V_T2, V_T3, V_G, V_RD = 1, 2, 3, 4, 5, 6, 7
VQ, VC, VS, VP, VKF, VVF, VO, VL, VONE = 8, 24, 56, 88, 96, 112, 128, 160, 168
S_WS, S_K, S_V = 8, 12, 16
S_H, S_QB, S_WV, S_SOFF, S_CNT, S_MODE, S_WOFF, S_QG, S_KH = 20, 21, 22, 23, 24, 25, 26, 27, 32
S_OA, S_OBB, V_OA = 40, 41, 249
S_KVP, S_PKV, S_PZ = 44, 48, 49
VKA, VPT, VQB, VGB, V_ZOFF = 176, 184, 224, 244, 246

class K2d(Prof):
    V_PROF = 250
    def __init__(self, name, prof=False, store_mod="nt", force_fallback=False, margin=MARGIN, sched=1, bapply=True, prio=0, diag=(), code=None, dbg=None, wsbase=0):
        self.name, self.prof, self.store_mod = name, prof, store_mod
        self.force_fallback, self.margin, self.sched, self.bapply, self.prio = force_fallback, margin, sched, bapply, prio
        self.diag = set(diag)
        self.code = code
        self.npb = 2
        self.hmod = ''
        self.wsbase = wsbase
        self.dbg = dbg

    def dma_piece(self, slot, i):
        kv, n = i >> 1, i & 1
        srd_ = S_K if kv == 0 else S_V
        ins = []
        if n == 0:
            ins += [f"s_add_u32 m0, s{S_WOFF}, {slot * STG + kv * (STG // 2)}", "s_nop 0"]
        ins.append(f"buffer_load_dwordx4 v{V_LANE16}, s[{srd_}:{srd_+3}], s{S_SOFF} offen offset:{n * 1024} {self.hmod} lds")
        if i == 3:
            ins.append(f"s_add_u32 s{S_SOFF}, s{S_SOFF}, {STG // 2}")
        return ins
    def dma_stage(self, slot):
        return [l for i in range(4) for l in self.dma_piece(slot, i)]

    @staticmethod
    def koff(j): return (j // TPW) * STG + (j % TPW) * 2048
    def rdK(self, j):
        b = VKF + 8 * (j & 1); j %= 2 * TPW
        return [f"ds_read_b128 {vr(b + 4 * st, 4)}, v{V_RD} offset:{self.koff(j) + st * 1024}" for st in range(2)]
    def rdV(self, j):
        b = VVF + 8 * (j & 1); j %= 2 * TPW
        return [f"ds_read_b128 {vr(b + 4 * st, 4)}, v{V_RD} offset:{self.koff(j) + STG // 2 + st * 1024}" for st in range(2)]

    def unit(self, a, j, qt):
        u = 2 * j + qt
        s, sn = VS + 16 * (u & 1), VS + 16 * ((u + 1) & 1)
        jn, qn = (j + (qt == 1), qt ^ 1)
        kn = VKF + 8 * (jn & 1)
        jp, qp = (j - (qt == 0), qt ^ 1)
        v, vp = VVF + 8 * (j & 1), VVF + 8 * (jp & 1)
        e = lambda r: f"v_exp_f32 v{s + r}, v{s + r}"
        c = lambda k: f"v_cvt_pk_bf16_f32 v{VP + k}, v{s + 2 * k}, v{s + 2 * k + 1}"
        O, Op, Lq, Lp = VO + 16 * qt, VO + 16 * qp, VL + 4 * qt, VL + 4 * qp
        Sa = f"v_mfma_f32_32x32x16_bf16 {vr(sn, 16)}, {vr(kn, 4)}, {vr(VQ + 8 * qn, 4)}, {vr(VC + 16 * qn, 16)}"
        Sb = f"v_mfma_f32_32x32x16_bf16 {vr(sn, 16)}, {vr(kn + 4, 4)}, {vr(VQ + 8 * qn + 4, 4)}, {vr(sn, 16)}"
        PVa = f"v_mfma_f32_32x32x16_bf16 {vr(O, 16)}, {vr(v, 4)}, {vr(VP, 4)}, {vr(O, 16)}"
        PVb = f"v_mfma_f32_32x32x16_bf16 {vr(Op, 16)}, {vr(vp + 4, 4)}, {vr(VP + 4, 4)}, {vr(Op, 16)}"
        La = f"v_mfma_f32_16x16x32_bf16 {vr(Lq, 4)}, {vr(VONE, 4)}, {vr(VP, 4)}, {vr(Lq, 4)}"
        Lb = f"v_mfma_f32_16x16x32_bf16 {vr(Lp, 4)}, {vr(VONE, 4)}, {vr(VP + 4, 4)}, {vr(Lp, 4)}"
        rd = self.rdK(j + 1) if qt == 0 else self.rdV(j + 1)
        top = ["s_waitcnt lgkmcnt(0)"]
        jj = j % TPW
        if jj == TPW - 1 and qt == 0:
            if hasattr(self, "switch_code"):
                top += self.switch_code(j)
            else:
                top += ["s_waitcnt vmcnt(0)", "s_barrier"]
                if self.bapply: top += self.part_add() + self.part_loads()
                if hasattr(self, "touch_lines"): top += self.touch_lines()
        if hasattr(self, "first_iter_issue") and j == 1 and qt == 0 and self.pass_idx == 1: top += self.first_iter_issue()
        k = (2 * jj + qt - 2 * (TPW - 1)) % (2 * TPW)
        dm = []
        if k < 4:
            dm = self.dma_piece((((j + 1) // TPW) + 1) & 1, k)
        if self.prio >= 2:
            r = (2 * jj + qt - 2 * (TPW - 1)) % (2 * TPW)
            if self.prio == 2 and r % 2 == 0: top = top + [f"s_setprio {3 - r // 2}"]
            if self.prio == 3 and r in (0, 4): top = top + [f"s_setprio {1 - r // 4}"]
            if self.prio == 4 and r in (0, 3, 5, 7): top = top + [f"s_setprio {3 - (0, 3, 5, 7).index(r)}"]
        if hasattr(self, "unit_hook"): dm = dm + self.unit_hook(j, qt)
        r0, r1 = rd[:1], rd[1:]
        if self.sched == 1:
            seq = (top + [e(0)] + r0 + [e(1)] + r1 + [e(2), e(3), Sa, c(0), c(1), e(4), e(5), Lb, e(6), e(7), c(2), c(3), Sb,
                   e(8)] + dm + [e(9), e(10), e(11), PVb, c(4), c(5), e(12), e(13), PVa, e(14), e(15), c(6), c(7), La])
        elif self.sched == 2:
            seq = (top + r0 + r1 + [e(0), e(1), e(2), e(3), Sa, c(0), c(1), e(4), e(5), Lb, e(6), e(7), c(2), c(3), Sb] + dm +
                   [e(8), e(9), e(10), e(11), PVb, c(4), c(5), e(12), e(13), PVa, e(14), e(15), c(6), c(7), La])
        elif self.sched == 3:
            seq = (top + r0 + r1 + [Sa, e(0), e(1), e(2), e(3), Lb, c(0), c(1), e(4), e(5), Sb, e(6), e(7), c(2), c(3), PVb] + dm +
                   [e(8), e(9), e(10), e(11), PVa, c(4), c(5), e(12), e(13), La, e(14), e(15), c(6), c(7)])
        elif self.sched == 4:
            seq = (top + [e(0), e(1)] + r0 + [e(2), e(3), Sa] + r1 + [c(0), c(1), e(4), e(5), e(6), e(7), Sb, c(2), c(3), Lb] + dm +
                   [e(8), e(9), e(10), e(11), PVb, c(4), c(5), e(12), e(13), PVa, e(14), e(15), c(6), c(7), La])
        elif self.sched in (5, 6, 7):
            PVb_now = f"v_mfma_f32_32x32x16_bf16 {vr(O, 16)}, {vr(v + 4, 4)}, {vr(VP + 4, 4)}, {vr(O, 16)}"
            Lb_now = f"v_mfma_f32_16x16x32_bf16 {vr(Lq, 4)}, {vr(VONE, 4)}, {vr(VP + 4, 4)}, {vr(Lq, 4)}"
            valu = [e(0), e(1), e(2), e(3), c(0), e(4), c(1), e(5), e(6), e(7), c(2), e(8), c(3), e(9), e(10), e(11), c(4), e(12), c(5), e(13), e(14), e(15), "s_nop 0", c(6), c(7)]
            if self.sched == 5:
                seq = top + r0 + r1 + valu + dm + [Sa, Sb, PVa, La, PVb_now, Lb_now, "s_nop 7"]
            elif self.sched == 6:
                seq = top + r0 + r1 + valu[:8] + [Sa] + valu[8:16] + [Sb] + valu[16:] + dm + ["s_nop 1", PVa, La, PVb_now, Lb_now]
            else:
                seq = top + r0 + r1 + [Sa] + valu[:4] + [Sb] + valu[4:] + dm + ["s_nop 1", PVa, PVb_now, La, Lb_now]
        D = self.diag
        if "nord" in D: seq = [l for l in seq if not l.startswith("ds_read")]
        if "noL" in D: seq = [l for l in seq if "16x16x32" not in l]
        for l in seq: a(l)

    def halfmax(self, a, x, t):
        a(f"v_mov_b32 v{t}, v{x}")
        a("s_nop 1")
        a(f"v_permlane32_swap_b32 v{x}, v{t}")
        a("s_nop 1")
        a(f"v_max_f32 v{x}, v{x}, v{t}")

    NT = 2
    def part_loads(self):
        kvp = f"s[{S_KVP}:{S_KVP+3}]"
        r = []
        for b in range(self.npb):
            r += [f"buffer_load_dwordx4 {vr(VPT + 8 * b, 4)}, v{V_LANE16}, {kvp}, s{S_PKV} offen {self.hmod}",
                  f"buffer_load_dwordx4 {vr(VPT + 8 * b + 4, 4)}, v{V_ZOFF}, {kvp}, s{S_PZ} offen {self.hmod}",
                  f"s_add_u32 s{S_PKV}, s{S_PKV}, {KVP_STRIDE}", f"s_add_u32 s{S_PZ}, s{S_PZ}, {KVP_STRIDE}"]
        return r
    def part_add(self):
        return [f"v_pk_add_f32 {vr(VKA + r, 2)}, {vr(VKA + r, 2)}, {vr(VPT + 8 * b + r, 2)}" for b in range(self.npb) for r in range(0, 8, 2)]
    def part_reset(self):
        return ([f"s_lshl_b32 s{S_PKV}, s{S_WV}, 10", f"s_and_b32 s{S_PZ}, s{S_WV}, 3", f"s_lshl_b32 s{S_PZ}, s{S_PZ}, 6",
                 f"s_add_u32 s{S_PZ}, s{S_PZ}, 8192"] + [f"v_mov_b32 v{VKA + r}, 0" for r in range(8)])

    def b_loads(self, a):
        ws = f"s[{S_WS}:{S_WS+3}]"
        a(f"s_lshl_b32 s6, s{S_QB}, 4")
        a(f"s_lshl_b32 s7, s{S_WV}, 1")
        a("s_add_u32 s6, s6, s7")
        a("s_lshl_b32 s7, s6, 10")
        a(f"s_lshl_b32 s3, s{S_H}, 17")
        a("s_add_u32 s7, s7, s3")
        a(f"s_add_u32 s7, s7, {WS_QB}")
        for t in range(self.NT):
            a(f"buffer_load_dwordx4 {vr(VQB + 4 * t, 4)}, v{V_LANE16}, {ws}, s7 offen offset:{t * 1024} {self.hmod}")
        a("s_lshl_b32 s7, s6, 6")
        a(f"s_add_u32 s7, s7, {WS_G}")
        a(f"v_and_b32 v{V_T0}, 15, v{V_T1}")
        a(f"v_lshlrev_b32 v{V_T0}, 2, v{V_T0}")
        for t in range(self.NT):
            a(f"buffer_load_dword v{VGB + t}, v{V_T0}, {ws}, s7 offen offset:{t * 64} {self.hmod}")
        a(f"s_lshl_b32 s6, s{S_H}, 11")
        a(f"s_lshl_b32 s7, s{S_WV}, 10")
        a("s_add_u32 s6, s6, s7")
        a(f"s_cmp_ge_u32 s{S_WV}, 2")
        a("s_cselect_b32 s6, 0x10000, s6")
        a(f"s_cselect_b32 s7, {L_SPARE - L_WP}, s7")
        a(f"s_add_u32 m0, s7, {LDS_MISC + L_WP}")
        a("s_nop 0")
        a(f"buffer_load_dwordx4 v{V_LANE16}, s[28:31], s6 offen lds")

    def store_addresses(self, a):
        a(f"v_bfe_u32 v{V_T0}, v{V_T1}, 4, 1")
        a(f"v_lshlrev_b32 v{V_T0}, 10, v{V_T0}")
        a(f"v_lshrrev_b32 v{V_T2}, 5, v{V_T1}")
        a(f"v_lshl_add_u32 v{V_T0}, v{V_T2}, 8, v{V_T0}")
        a(f"v_and_b32 v{V_T2}, 15, v{V_T1}")
        a(f"v_lshl_add_u32 v{V_OA}, v{V_T2}, 4, v{V_T0}")
        a(f"s_lshl_b32 s6, s{S_QB}, 3")
        a(f"s_lshl_b32 s7, s{S_QG}, 1")
        a("s_add_u32 s6, s6, s7")
        a(f"s_add_u32 s6, s6, s{S_KH}")
        a("s_lshl_b32 s6, s6, 11")
        a(f"s_lshl_b32 s7, s{S_H}, 17")
        a("s_add_u32 s6, s6, s7")
        a(f"s_add_u32 s{S_OA}, s6, {WS_O}")
        a(f"s_lshl_b32 s6, s{S_QB}, 4")
        a(f"s_lshl_b32 s3, s{S_WV}, 1")
        a("s_add_u32 s6, s6, s3")
        a("s_lshl_b32 s6, s6, 10")
        a("s_add_u32 s6, s6, s7")
        a(f"s_add_u32 s{S_OBB}, s6, {WS_O + 32 * 131072}")

    def b_publish(self, a):
        for k in range(4):
            a(f"v_cvt_pk_bf16_f32 v{VPT + k}, v{VKA + 2 * k}, v{VKA + 2 * k + 1}")
        a(f"v_and_b32 v{V_T1}, 63, v0")
        a(f"v_lshlrev_b32 v{V_T0}, 3, v{V_T1}")
        a(f"v_add_u32 v{V_T0}, {LDS_MISC}, v{V_T0}")
        a(f"s_lshl_b32 s6, s{S_WV}, 9")
        a(f"v_add_u32 v{V_T3}, s6, v{V_T0}")
        a(f"ds_write_b64 v{V_T3}, {vr(VPT, 2)} offset:{L_KV}")
        a(f"s_and_b32 s6, s{S_WV}, 3")
        a(f"s_lshl_b32 s6, s6, 9")
        a(f"v_add_u32 v{V_T3}, s6, v{V_T0}")
        a(f"ds_write_b64 v{V_T3}, {vr(VPT + 2, 2)} offset:{L_Z}")

    def b_apply(self, a):
        ws = f"s[{S_WS}:{S_WS+3}]"
        NT = self.NT
        a(f"v_and_b32 v{V_T1}, 63, v0")
        a(f"v_lshlrev_b32 v{V_T0}, 3, v{V_T1}")
        a(f"v_add_u32 v{V_T0}, {LDS_MISC}, v{V_T0}")
        for sg in range(2):
            for dt in range(2):
                for ft in range(2):
                    t = (sg * 2 + ft) * 2 + dt
                    a(f"ds_read_b64 {vr(24 + (sg * 2 + dt) * 4 + 2 * ft, 2)}, v{V_T0} offset:{L_KV + t * 512}")
            for ft in range(2):
                a(f"ds_read_b64 {vr(40 + sg * 4 + 2 * ft, 2)}, v{V_T0} offset:{L_Z + (sg * 2 + ft) * 512}")
        a(f"v_lshrrev_b32 v{V_T2}, 4, v{V_T1}")
        a(f"v_bfe_u32 v{V_T3}, v{V_T1}, 2, 2")
        a(f"v_lshl_add_u32 v{V_T2}, v{V_T2}, 2, v{V_T3}")
        a(f"v_lshlrev_b32 v{V_T2}, 6, v{V_T2}")
        a(f"v_and_b32 v{V_T3}, 3, v{V_T1}")
        a(f"v_lshl_add_u32 v{V_T2}, v{V_T3}, 3, v{V_T2}")
        a(f"v_add_u32 v{V_T2}, {LDS_MISC}, v{V_T2}")
        for ft in range(2):
            for q in range(2):
                a(f"ds_read_b64_tr_b16 {vr(48 + 4 * ft + 2 * q, 2)}, v{V_T2} offset:{L_WP + q * 1024 + ft * 32}")
        a(f"v_mov_b32 v56, 0x3f803f80")
        for r in range(1, 4): a(f"v_mov_b32 v{56 + r}, v56")
        a("s_waitcnt lgkmcnt(0)")
        for t in range(NT):
            for ft in range(2):
                a(f"v_mfma_f32_16x16x32_bf16 {vr(64 + 8 * t + 4 * ft, 4)}, {vr(48 + 4 * ft, 4)}, {vr(VQB + 4 * t, 4)}, 0")
        a("s_nop 7")
        P = lambda t, i: 64 + 8 * t + i
        MX, MN, TM = 96, 100, 104
        T = range(NT)
        for t in T:
            a(f"v_max3_f32 v{MX+2*t}, v{P(t,0)}, v{P(t,1)}, v{P(t,2)}")
            a(f"v_min3_f32 v{MN+2*t}, v{P(t,0)}, v{P(t,1)}, v{P(t,2)}")
        for i in (3, 5):
            for t in T:
                a(f"v_max3_f32 v{MX+2*t}, v{MX+2*t}, v{P(t,i)}, v{P(t,i+1)}")
                a(f"v_min3_f32 v{MN+2*t}, v{MN+2*t}, v{P(t,i)}, v{P(t,i+1)}")
        for t in T:
            a(f"v_max_f32 v{MX+2*t}, v{MX+2*t}, v{P(t,7)}")
            a(f"v_min_f32 v{MN+2*t}, v{MN+2*t}, v{P(t,7)}")
        for t in T: a(f"v_sub_f32 v{MN+2*t}, 0, v{MN+2*t}")
        a("s_nop 1")
        for t in T: a(f"v_permlane32_swap_b32 v{MX+2*t}, v{MN+2*t}")
        a("s_nop 1")
        for t in T: a(f"v_max_f32 v{MX+2*t}, v{MX+2*t}, v{MN+2*t}")
        for t in T: a(f"v_mov_b32 v{TM+2*t}, v{MX+2*t}")
        a("s_nop 1")
        for t in T: a(f"v_permlane16_swap_b32 v{MX+2*t}, v{TM+2*t}")
        a("s_nop 1")
        for t in T: a(f"v_max_f32 v{MX+2*t}, v{MX+2*t}, v{TM+2*t}")
        for t in T: a(f"v_mov_b32 v{MN+2*t}, v{MX+2*t}")
        a("s_nop 1")
        for t in T: a(f"v_permlane32_swap_b32 v{MX+2*t}, v{MN+2*t}")
        a("s_nop 1")
        EP = lambda t, i: 176 + 8 * t + i
        a(f"s_mov_b32 s36, {f32bits(LOG2E)}")
        a(f"s_mov_b32 s37, {f32bits(LOG2E)}")
        a(f"s_mov_b32 s38, {f32bits(-LOG2E)}")
        a(f"s_mov_b32 s39, {f32bits(-LOG2E)}")
        for t in T:
            a(f"v_mul_f32 v{MX+2*t}, s38, v{MX+2*t}")
            a(f"v_mul_f32 v{MN+2*t}, s38, v{MN+2*t}")
        for t in T:
            for i in range(0, 8, 2):
                a(f"v_pk_fma_f32 {vr(EP(t,i), 2)}, {vr(P(t,i), 2)}, s[36:37], {vr(MX+2*t, 2)} op_sel_hi:[1,1,0]")
                a(f"v_pk_fma_f32 {vr(P(t,i), 2)}, {vr(P(t,i), 2)}, s[38:39], {vr(MN+2*t, 2)} op_sel_hi:[1,1,0]")
        for t in T:
            for i in range(8):
                a(f"v_exp_f32 v{EP(t,i)}, v{EP(t,i)}")
                a(f"v_exp_f32 v{P(t,i)}, v{P(t,i)}")
        BP, BM = 96, 112
        if hasattr(self, "b_mid"): self.b_mid(a)
        a("s_nop 0")
        for t in T:
            for k in range(4):
                a(f"v_cvt_pk_bf16_f32 v{BP + 4*t + k}, v{EP(t,2*k)}, v{EP(t,2*k+1)}")
                a(f"v_cvt_pk_bf16_f32 v{BM + 4*t + k}, v{P(t,2*k)}, v{P(t,2*k+1)}")
        a("s_nop 1")
        for t in T:
            R = 176 + 32 * t
            bp, bm = vr(BP + 4 * t, 4), vr(BM + 4 * t, 4)
            for dt in range(2):
                a(f"v_mfma_f32_16x16x32_bf16 {vr(R + 4 * dt, 4)}, {vr(24 + 4 * dt, 4)}, {bp}, 0")
                a(f"v_mfma_f32_16x16x32_bf16 {vr(R + 8 + 4 * dt, 4)}, {vr(32 + 4 * dt, 4)}, {bm}, 0")
            a(f"v_mfma_f32_16x16x32_bf16 {vr(R + 16, 4)}, {vr(40, 4)}, {bp}, 0")
            a(f"v_mfma_f32_16x16x32_bf16 {vr(R + 20, 4)}, {vr(44, 4)}, {bm}, 0")
            a(f"v_mfma_f32_16x16x32_bf16 {vr(R + 24, 4)}, {vr(56, 4)}, {bp}, 0")
            a(f"v_mfma_f32_16x16x32_bf16 {vr(R + 28, 4)}, {vr(56, 4)}, {bm}, 0")
        a("s_nop 7")
        for t in T:
            R = 176 + 32 * t
            a(f"v_rcp_f32 v{R + 24}, v{R + 24}")
            a(f"v_rcp_f32 v{R + 28}, v{R + 28}")
        a("s_nop 0")
        for t in T:
            R = 176 + 32 * t
            a(f"v_mul_f32 v{R + 16}, v{R + 16}, v{R + 24}")
            a(f"v_sub_f32 v{R + 17}, 1.0, v{VGB + t}")
            a(f"v_fma_f32 v{R + 16}, v{R + 20}, v{R + 28}, v{R + 16}")
            a(f"v_add_f32 v{R + 16}, {f32bits(1e-6)}, v{R + 16}")
        for t in T:
            a(f"v_rcp_f32 v{176 + 32 * t + 16}, v{176 + 32 * t + 16}")
        a("s_nop 0")
        for t in T:
            R = 176 + 32 * t
            a(f"v_mul_f32 v{R + 16}, v{R + 16}, v{R + 17}")
            a(f"v_mul_f32 v{R + 24}, v{R + 24}, v{R + 16}")
            a(f"v_mul_f32 v{R + 28}, v{R + 28}, v{R + 16}")
        for t in T:
            R = 176 + 32 * t
            for i in range(0, 8, 2): a(f"v_pk_mul_f32 {vr(R + i, 2)}, {vr(R + i, 2)}, {vr(R + 24, 2)} op_sel_hi:[1,0]")
            for i in range(0, 8, 2): a(f"v_pk_fma_f32 {vr(R + i, 2)}, {vr(R + 8 + i, 2)}, {vr(R + 28, 2)}, {vr(R + i, 2)} op_sel_hi:[1,0,1]")
        for t in T:
            R = 176 + 32 * t
            for k in range(4):
                a(f"v_cvt_pk_bf16_f32 v{R + 20 + k}, v{R + 2 * k}, v{R + 2 * k + 1}")
            a(f"buffer_store_dwordx4 {vr(R + 20, 4)}, v{V_LANE16}, {ws}, s{S_OBB} offen offset:{t * 1024} {self.store_mod}")

    def gen(self):
        a = Asm()
        n = self.name
        a("s_cmp_ge_u32 s2, 256")
        a(f"s_cbranch_scc1 {n}_end")
        self.pstamp(a, 0)
        self.body(a, True)
        a.label(f"{n}_end")
        a("s_endpgm")
        a.label(f"{n}_last")
        return kernel_header(n) + a.text() + kernel_desc(n, 256, 256)

    def body(self, a, standalone):
        self.setup(a, standalone)
        self.rest(a)

    def setup(self, a, standalone):
        n = self.name
        ws = f"s[{S_WS}:{S_WS+3}]"
        a("s_load_dwordx2 s[4:5], s[0:1], 80")
        a("s_load_dwordx2 s[34:35], s[0:1], 40")
        if hasattr(self, "entry_extra"): self.entry_extra(a)
        if self.code and standalone:
            first, last, nbytes = self.code
            code_prefetch(a, n, first, last, 8, 240, 242, 90)(-(-nbytes // 32768))
        a("s_and_b32 s3, s2, 7")
        a("s_lshr_b32 s6, s2, 3")
        a(f"s_lshl_b32 s{S_H}, s3, 2")
        a("s_lshr_b32 s7, s6, 3")
        a(f"s_add_u32 s{S_H}, s{S_H}, s7")
        a(f"s_and_b32 s{S_QB}, s6, 7")
        a("v_lshrrev_b32 v2, 6, v0")
        a(f"v_and_b32 v{V_T1}, 63, v0")
        a(f"v_lshlrev_b32 v{V_LANE16}, 4, v{V_T1}")
        a(f"v_readfirstlane_b32 s{S_WV}, v2")
        a("s_waitcnt lgkmcnt(0)")
        ws_shift(a, 4, self.wsbase)
        srd(a, S_WS, 4, 0x10000000 - self.wsbase)
        srd(a, 28, 34, 65536)
        a(f"s_lshl_b32 s3, s{S_H}, 17")
        for S, off in ((S_K, WS_KA), (S_V, WS_VA)):
            a(f"s_add_u32 s6, s3, {off}")
            a(f"s_add_u32 s{S}, s4, s6")
            a(f"s_addc_u32 s{S+1}, s5, 0")
            a(f"s_and_b32 s{S+1}, s{S+1}, 0xffff")
            a(f"s_mov_b32 s{S+2}, 131072")
            a(f"s_mov_b32 s{S+3}, 0x00020000")
        a(f"s_lshl_b32 s{S_WOFF}, s{S_WV}, 11")
        a(f"s_and_b32 s{S_QG}, s{S_WV}, 3")
        a(f"s_lshr_b32 s{S_KH}, s{S_WV}, 2")
        a(f"s_lshl_b32 s6, s{S_KH}, 13")
        a(f"v_add_u32 v{V_RD}, s6, v{V_LANE16}")
        a(f"s_lshl_b32 s6, s{S_QB}, 3")
        a(f"s_lshl_b32 s7, s{S_QG}, 1")
        a("s_add_u32 s6, s6, s7")
        a("s_lshl_b32 s7, s6, 11")
        a(f"s_lshl_b32 s3, s{S_H}, 17")
        a("s_add_u32 s7, s7, s3")
        a(f"s_add_u32 s7, s7, {WS_QA}")
        a(f"s_mov_b32 s{S_MODE}, 0")
        a(f"s_mov_b32 s{S_SOFF}, s{S_WOFF}")

    def rest(self, a):
        n = self.name
        ws = f"s[{S_WS}:{S_WS+3}]"
        if hasattr(self, "pre_loads"): self.pre_loads(a)
        for l in self.dma_piece(0, 0) + self.dma_piece(0, 1): a(l)
        for i in range(4):
            a(f"buffer_load_dwordx4 {vr(VQ + 4 * i, 4)}, v{V_LANE16}, {ws}, s7 offen offset:{i * 1024} {self.hmod}")
        for l in self.dma_piece(0, 2) + self.dma_piece(0, 3): a(l)
        a(f"s_add_u32 s6, s6, s{S_KH}")
        a("s_lshl_b32 s7, s6, 7")
        a(f"s_add_u32 s7, s7, {WS_G}")
        a(f"v_and_b32 v{V_T0}, 31, v{V_T1}")
        a(f"v_lshlrev_b32 v{V_T0}, 2, v{V_T0}")
        a(f"buffer_load_dword v{V_G}, v{V_T0}, {ws}, s7 offen {self.hmod}")
        nbg = 1
        if self.bapply:
            a(f"s_lshl_b32 s6, s{S_H}, 18")
            a(f"s_add_u32 s6, s6, {WS_KVP}")
            a(f"s_add_u32 s{S_KVP}, s4, s6")
            a(f"s_addc_u32 s{S_KVP+1}, s5, 0")
            a(f"s_and_b32 s{S_KVP+1}, s{S_KVP+1}, 0xffff")
            a(f"s_mov_b32 s{S_KVP+2}, {NKVP * KVP_STRIDE}")
            a(f"s_mov_b32 s{S_KVP+3}, 0x00020000")
            a(f"v_lshrrev_b32 v{V_ZOFF}, 4, v{V_T1}")
            a(f"v_lshlrev_b32 v{V_ZOFF}, 4, v{V_ZOFF}")
            for l in self.part_reset(): a(l)
            if not hasattr(self, "deferred_stores"):
                for r in range(8 * self.npb): a(f"v_mov_b32 v{VPT + r}, 0")
        self.nbg = nbg
        self.pstamp(a, 1)
        a(f"v_lshrrev_b32 v{V_T0}, 4, v{V_T1}")
        a(f"v_lshrrev_b32 v{V_T2}, 2, v{V_T1}")
        a(f"v_xor_b32 v{V_T0}, v{V_T0}, v{V_T2}")
        a(f"v_and_b32 v{V_T0}, 1, v{V_T0}")
        a(f"v_mov_b32 v{V_T2}, 0x3f803f80")
        a(f"v_cmp_eq_u32 vcc, 0, v{V_T0}")
        a("s_nop 1")
        a(f"v_cndmask_b32 v{VONE}, 0, v{V_T2}, vcc")
        for r in range(1, 4): a(f"v_mov_b32 v{VONE + r}, v{VONE}")
        if hasattr(self, "early_setup"): self.early_setup(a)
        self.store_addresses(a)
        for r in range(32): a(f"v_mov_b32 v{VO + r}, 0")
        for r in range(8): a(f"v_mov_b32 v{VL + r}, 0")
        for r in range(8): a(f"v_mov_b32 v{VP + r}, 0")
        for r in range(4): a(f"v_mov_b32 v{VVF + 8 + 4 + r}, 0")
        if hasattr(self, "first_wait"): self.first_wait(a)
        else: a(f"s_waitcnt vmcnt({self.nbg})")
        a(f"s_branch {n}_first")
        a.label(f"{n}_restart")
        a(f"s_mov_b32 s{S_SOFF}, s{S_WOFF}")
        for l in self.dma_stage(0): a(l)
        if self.bapply:
            for l in self.part_reset(): a(l)
            for r in range(8 * self.npb): a(f"v_mov_b32 v{VPT + r}, 0")
        for r in range(32): a(f"v_mov_b32 v{VO + r}, 0")
        for r in range(8): a(f"v_mov_b32 v{VL + r}, 0")
        for r in range(8): a(f"v_mov_b32 v{VP + r}, 0")
        for r in range(4): a(f"v_mov_b32 v{VVF + 8 + 4 + r}, 0")
        a("s_waitcnt vmcnt(0)")
        a.label(f"{n}_first")
        a("s_barrier")
        self.pstamp(a, 2)
        for l in self.dma_piece(1, 0) + self.dma_piece(1, 1): a(l)
        if hasattr(self, "deferred_stores"): self.deferred_stores(a)
        if self.bapply and not hasattr(self, "switch_code"):
            a(f"s_cmp_lg_u32 s{S_MODE}, 0")
            a(f"s_cbranch_scc1 {n}_nobl")
            self.b_loads(a)
            a.label(f"{n}_nobl")
        a(f"ds_read_b128 {vr(VKF + 8, 4)}, v{V_LANE16}")
        a(f"ds_read_b128 {vr(VKF + 12, 4)}, v{V_LANE16} offset:1024")
        for l in self.rdK(0) + self.rdV(0): a(l)
        a(f"s_cmp_lg_u32 s{S_MODE}, 0")
        a(f"s_cbranch_scc1 {n}_havemax")
        a("s_waitcnt lgkmcnt(4)")
        for qt in range(2):
            s = VS + 16 * qt
            a(f"v_mfma_f32_32x32x16_bf16 {vr(s, 16)}, {vr(VKF + 8, 4)}, {vr(VQ + 8 * qt, 4)}, 0")
            a(f"v_mfma_f32_32x32x16_bf16 {vr(s, 16)}, {vr(VKF + 12, 4)}, {vr(VQ + 8 * qt + 4, 4)}, {vr(s, 16)}")
        a("s_nop 15")
        for qt in range(2):
            s, x = VS + 16 * qt, V_T0 + 2 * qt
            a(f"v_max3_f32 v{x}, v{s}, v{s + 1}, v{s + 2}")
            for r in range(3, 15, 2):
                a(f"v_max3_f32 v{x}, v{x}, v{s + r}, v{s + r + 1}")
            a(f"v_max_f32 v{x}, v{x}, v{s + 15}")
        for qt in range(2):
            x = V_T0 + 2 * qt
            self.halfmax(a, x, V_T3)
            a(f"v_add_f32 v{x}, {f32bits(self.margin)}, v{x}")
            a(f"v_sub_f32 v{VC + 16 * qt}, 0, v{x}")
            for r in range(1, 16): a(f"v_mov_b32 v{VC + 16 * qt + r}, v{VC + 16 * qt}")
        a.label(f"{n}_havemax")
        a("s_waitcnt lgkmcnt(0)")
        a(f"v_mfma_f32_32x32x16_bf16 {vr(VS, 16)}, {vr(VKF, 4)}, {vr(VQ, 4)}, {vr(VC, 16)}")
        a(f"v_mfma_f32_32x32x16_bf16 {vr(VS, 16)}, {vr(VKF + 4, 4)}, {vr(VQ + 4, 4)}, {vr(VS, 16)}")
        a("s_nop 7")
        a(f"s_mov_b32 s{S_CNT}, {32 // (2 * TPW)}")
        if self.prio == 1:
            a(f"s_cmp_ge_u32 s{S_WV}, 4")
            a(f"s_cbranch_scc0 {n}_noprio")
            a("s_setprio 1")
            a.label(f"{n}_noprio")
        self.pstamp(a, 3)
        a("s_nop 3")
        npeel = getattr(self, "peel", 0)
        for p in range(npeel):
            self.pass_idx = p
            for j in range(2 * TPW):
                for qt in range(2):
                    self.unit(a, j, qt)
        if npeel:
            self.pass_idx = None
            a(f"s_mov_b32 s{S_CNT}, {32 // (2 * TPW) - npeel}")
        a(".p2align 6")
        a.label(f"{n}_loop")
        for j in range(2 * TPW):
            for qt in range(2):
                self.unit(a, j, qt)
        a(f"s_sub_u32 s{S_CNT}, s{S_CNT}, 1")
        a(f"s_cmp_lg_u32 s{S_CNT}, 0")
        a(f"s_cbranch_scc1 {n}_loop")
        a("s_nop 1")
        if self.sched < 5:
            a(f"v_mfma_f32_32x32x16_bf16 {vr(VO + 16, 16)}, {vr(VVF + 8 + 4, 4)}, {vr(VP + 4, 4)}, {vr(VO + 16, 16)}")
            a(f"v_mfma_f32_16x16x32_bf16 {vr(VL + 4, 4)}, {vr(VONE, 4)}, {vr(VP + 4, 4)}, {vr(VL + 4, 4)}")
        if self.prio: a("s_setprio 0")
        self.pstamp(a, 4)
        a("s_waitcnt vmcnt(0) lgkmcnt(0)")
        if self.bapply:
            for l in self.part_add(): a(l)
            if self.npb < 3: a("s_nop 3")
        else:
            a("s_nop 15")
        a(f"s_mov_b32 s3, 0")
        if not self.diag:
            a(f"v_mul_f32 v{V_T0}, {f32bits(256.0)}, v{VL}")
            a(f"v_mul_f32 v{V_T2}, {f32bits(256.0)}, v{VL + 4}")
            a(f"v_mul_f32 v{V_T0}, 0, v{V_T0}")
            a(f"v_fma_f32 v{V_T0}, v{V_T2}, 0, v{V_T0}")
            a(f"v_mov_b32 v216, 0")
            a(f"v_mov_b32 v217, 0")
            for r in range(0, 32, 2): a(f"v_pk_fma_f32 v[216:217], {vr(VO + r, 2)}, 0, v[216:217] op_sel_hi:[1,0,1]")
            a(f"v_add_f32 v{V_T0}, v{V_T0}, v216")
            a(f"v_add_f32 v{V_T0}, v{V_T0}, v217")
            if self.force_fallback:
                a(f"v_mov_b32 v{V_T0}, 0x7fc00000")
            a(f"v_cmp_u_f32 vcc, v{V_T0}, v{V_T0}")
            a(f"s_or_b32 s3, vcc_lo, vcc_hi")
            a(f"s_cmp_lg_u32 s3, 0")
            a(f"s_cselect_b32 s3, 1, 0")
        a(f"v_mov_b32 v{V_T0}, s3")
        a(f"s_lshl_b32 s6, s{S_WV}, 2")
        a(f"s_add_u32 s6, s6, {LDS_MISC + L_VOTE}")
        a(f"v_mov_b32 v{V_T2}, s6")
        a(f"ds_write_b32 v{V_T2}, v{V_T0}")
        a(f"s_mul_i32 s6, s{S_WV}, {5 * 1024}")
        a(f"s_add_u32 s6, s6, {L_XO}")
        a(f"v_add_u32 v{V_T2}, s6, v{V_LANE16}")
        a(f"s_cmp_eq_u32 s{S_KH}, 0")
        a(f"s_cbranch_scc1 {n}_give1")
        for qt, lab in ((0, ""), (1, f"{n}_give1")):
            if lab: a.label(lab)
            for k in range(4):
                a(f"ds_write_b128 v{V_T2}, {vr(VO + 16 * qt + 4 * k, 4)} offset:{k * 1024}")
            a(f"ds_write_b128 v{V_T2}, {vr(VL + 4 * qt, 4)} offset:4096")
            if qt == 0: a(f"s_branch {n}_gave")
        a.label(f"{n}_gave")
        if self.bapply: self.b_publish(a)
        a("s_waitcnt lgkmcnt(0)")
        a("s_barrier")
        a(f"v_mov_b32 v{V_T0}, {LDS_MISC + L_VOTE}")
        a(f"ds_read_b128 v[216:219], v{V_T0}")
        a(f"ds_read_b128 v[220:223], v{V_T0} offset:16")
        a(f"s_xor_b32 s6, s{S_WV}, 4")
        a(f"s_mul_i32 s6, s6, {5 * 1024}")
        a(f"s_add_u32 s6, s6, {L_XO}")
        a(f"v_add_u32 v{V_T2}, s6, v{V_LANE16}")
        for k in range(4):
            a(f"ds_read_b128 {vr(VS + 4 * k, 4)}, v{V_T2} offset:{k * 1024}")
        a(f"ds_read_b128 {vr(VS + 16, 4)}, v{V_T2} offset:4096")
        a("s_waitcnt lgkmcnt(5)")
        a("v_or3_b32 v216, v216, v217, v218")
        a("v_or3_b32 v216, v216, v219, v220")
        a("v_or3_b32 v216, v216, v221, v222")
        a("v_or_b32 v216, v216, v223")
        a("s_nop 0")
        a("v_readfirstlane_b32 s3, v216")
        a(f"s_sub_u32 s6, 1, s{S_MODE}")
        a("s_and_b32 s3, s3, s6")
        a("s_cmp_eq_u32 s3, 0")
        a(f"s_cbranch_scc1 {n}_fin")
        a("s_waitcnt lgkmcnt(0)")
        a("s_barrier")
        a(f"s_mov_b32 s{S_SOFF}, s{S_WOFF}")
        a(f"s_mov_b32 s{S_CNT}, {64 // TPS}")
        a(f"v_mov_b32 v{V_T0}, 0xff800000")
        a(f"v_mov_b32 v{V_T2}, 0xff800000")
        a.label(f"{n}_maxloop")
        for l in self.dma_stage(0): a(l)
        a("s_waitcnt vmcnt(0)")
        a("s_barrier")
        for j in range(TPS):
            a(f"ds_read_b128 {vr(VKF, 4)}, v{V_LANE16} offset:{j * 2048}")
            a(f"ds_read_b128 {vr(VKF + 4, 4)}, v{V_LANE16} offset:{j * 2048 + 1024}")
            a("s_waitcnt lgkmcnt(0)")
            for qt in range(2):
                s = VS + 16 * qt
                a(f"v_mfma_f32_32x32x16_bf16 {vr(s, 16)}, {vr(VKF, 4)}, {vr(VQ + 8 * qt, 4)}, 0")
                a(f"v_mfma_f32_32x32x16_bf16 {vr(s, 16)}, {vr(VKF + 4, 4)}, {vr(VQ + 8 * qt + 4, 4)}, {vr(s, 16)}")
            a("s_nop 15")
            for qt in range(2):
                s, x = VS + 16 * qt, V_T0 + 2 * qt
                for r in range(0, 16, 2):
                    a(f"v_max3_f32 v{x}, v{x}, v{s + r}, v{s + r + 1}")
        a("s_barrier")
        a(f"s_sub_u32 s{S_CNT}, s{S_CNT}, 1")
        a(f"s_cmp_lg_u32 s{S_CNT}, 0")
        a(f"s_cbranch_scc1 {n}_maxloop")
        for qt in range(2):
            x = V_T0 + 2 * qt
            self.halfmax(a, x, V_T3)
            a(f"v_sub_f32 v{VC + 16 * qt}, 0, v{x}")
            for r in range(1, 16): a(f"v_mov_b32 v{VC + 16 * qt + r}, v{VC + 16 * qt}")
        a(f"s_mov_b32 s{S_MODE}, 1")
        a(f"s_branch {n}_restart")
        a.label(f"{n}_fin")
        if hasattr(self, "after_decision"): self.after_decision(a)
        a(f"s_cmp_eq_u32 s{S_KH}, 0")
        a(f"s_cbranch_scc1 {n}_keep0")
        for r in range(16): a(f"v_mov_b32 v{VO + r}, v{VO + 16 + r}")
        a(f"v_mov_b32 v{VL}, v{VL + 4}")
        a.label(f"{n}_keep0")
        a("s_waitcnt lgkmcnt(0)")
        a(f"v_add_f32 v{VL}, v{VL}, v{VS + 16}")
        a(f"v_rcp_f32 v{V_T2}, v{VL}")
        for r in range(0, 16, 2): a(f"v_pk_add_f32 {vr(VO + r, 2)}, {vr(VO + r, 2)}, {vr(VS + r, 2)}")
        a(f"v_mul_f32 v{V_T2}, v{V_T2}, v{V_G}")
        for r in range(0, 16, 2): a(f"v_pk_mul_f32 {vr(VO + r, 2)}, {vr(VO + r, 2)}, {vr(V_T2, 2)} op_sel_hi:[1,0]")
        for k in range(8): a(f"v_cvt_pk_bf16_f32 v{VS + k}, v{VO + 2 * k}, v{VO + 2 * k + 1}")
        a(f"buffer_store_dwordx4 {vr(VS, 4)}, v{V_OA}, {ws}, s{S_OA} offen {self.store_mod}")
        a(f"buffer_store_dwordx4 {vr(VS + 4, 4)}, v{V_OA}, {ws}, s{S_OA} offen offset:512 {self.store_mod}")
        self.pstamp(a, 5)
        if self.bapply:
            self.b_apply(a)
        last = 6
        if hasattr(self, "project"):
            self.project(a); last = 9
        if self.prof:
            a("s_waitcnt vmcnt(0)")
            self.pstamp(a, last)
            self.pflush(a, 1, 8, S_WV, ws)
```
